```python
import torch

def _softmax(x, axis=-1):
    return torch.softmax(x, dim=axis)

def _gelu(x):
    return torch.nn.functional.gelu(x, approximate='tanh')

def _silu(x):
    return torch.nn.functional.silu(x)

def _sigmoid(x):
    return torch.sigmoid(x)

def _layernorm(x, axis=-1, eps=1e-05):
    m = x.mean(dim=axis, keepdim=True)
    v = x.var(dim=axis, keepdim=True, unbiased=False)
    return (x - m) / torch.sqrt(v + eps)

def _scatter_add(tgt, idx, src, axis=0):
    return tgt.clone().index_add_(axis, idx, src)

def _segment_sum(src, seg, n):
    out = torch.zeros((n,) + src.shape[1:], dtype=src.dtype)
    return out.index_add_(0, seg, src)

def _pad(x, pw):
    flat = tuple((v for pair in reversed(pw) for v in pair))
    return torch.nn.functional.pad(x, flat)
kernel_name = 'parallel_sum__memory_aug_recurrent_mem_tr__mixer_channel_mlp__prompt'

def setup_inputs():

    _w = lambda a: (lambda t: t.to(torch.bfloat16) if t.is_floating_point() else t)(torch.as_tensor(a))

    def _A_setup():
        B, S, Dm = (1, 2048, 640)
        H, Dh = (32, 128)
        M, seg = (8, 32)
        seg = min(seg, S)
        S = S // seg * seg
        return {'x': _w((lambda *s: torch.randn(*s, dtype=torch.bfloat16) * 0.05)(B, S, Dm)), 'mem0': _w((lambda *s: torch.randn(*s, dtype=torch.bfloat16) * 0.2)(B, M, Dm)), 'Wq': _w((lambda *s: torch.randn(*s, dtype=torch.bfloat16) * 1.6)(Dm, H, Dh) * Dm ** (-0.5)), 'Wk': _w((lambda *s: torch.randn(*s, dtype=torch.bfloat16) * 1.6)(Dm, H, Dh) * Dm ** (-0.5)), 'Wv': _w((lambda *s: torch.randn(*s, dtype=torch.bfloat16) * 0.2)(Dm, H, Dh) * Dm ** (-0.5)), 'Wo': _w((lambda *s: torch.randn(*s, dtype=torch.bfloat16) * 0.2)(H, Dh, Dm) * (H * Dh) ** (-0.5)), 'seg_len': seg}
    _A_in = _A_setup()

    def _B_setup():
        B, S, D, F = (1, 2048, 640, 1728)
        return {'x': _w((lambda *s: torch.randn(*s, dtype=torch.bfloat16) * 0.05)(B, S, D)), 'w1': _w((lambda *s: torch.randn(*s, dtype=torch.bfloat16) * 0.8)(D, F) * D ** (-0.5)), 'b1': _w((lambda *s: torch.randn(*s, dtype=torch.bfloat16) * 0.4)(F)), 'w2': _w((lambda *s: torch.randn(*s, dtype=torch.bfloat16) * 0.05)(F, D) * F ** (-0.5)), 'b2': _w((lambda *s: torch.randn(*s, dtype=torch.bfloat16) * 0.05)(D))}
    _B_in = _B_setup()
    return {'A_x': _A_in['x'], 'A_mem0': _A_in['mem0'], 'A_Wq': _A_in['Wq'], 'A_Wk': _A_in['Wk'], 'A_Wv': _A_in['Wv'], 'A_Wo': _A_in['Wo'], 'A_seg_len': _A_in['seg_len'], 'B_x': _B_in['x'], 'B_w1': _B_in['w1'], 'B_b1': _B_in['b1'], 'B_w2': _B_in['w2'], 'B_b2': _B_in['b2']}

def reference(A_x, A_mem0, A_Wq, A_Wk, A_Wv, A_Wo, A_seg_len, B_x, B_w1, B_b1, B_w2, B_b2):

    def _A_ref(x, mem0, Wq, Wk, Wv, Wo, seg_len):
        B, S, Dm = x.shape
        H, Dh = (Wq.shape[1], Wq.shape[2])
        M = mem0.shape[1]
        scale = Dh ** (-0.5)
        n_seg = S // seg_len
        L = M + seg_len
        idx = torch.arange(L)
        mask = (idx[:, None] < M) | (idx[:, None] >= idx[None, :])
        mem = mem0
        outs = []
        for s in range(n_seg):
            xs = x[:, s * seg_len:(s + 1) * seg_len, :].clone()
            h = torch.concatenate([mem, xs], axis=1)
            q = torch.einsum('btd,dhe->bhte', h, Wq)
            k = torch.einsum('btd,dhe->bhte', h, Wk)
            v = torch.einsum('btd,dhe->bhte', h, Wv)
            scores = torch.einsum('bhqe,bhke->bhqk', q, k) * scale
            scores = torch.where(mask[None, None], scores, -1000000000.0)
            p = _softmax(scores, axis=-1)
            o = torch.einsum('bhqk,bhke->bhqe', p, v)
            o = torch.einsum('bhte,hed->btd', o, Wo)
            mem = o[:, :M, :].clone()
            outs.append(o[:, M:, :])
        return torch.concatenate(outs, axis=1)

    def _B_ref(x, w1, b1, w2, b2):
        y = _layernorm(x, axis=-1)
        h = _gelu(torch.einsum('bsd,df->bsf', y, w1) + b1)
        return torch.einsum('bsf,fd->bsd', h, w2) + b2
    x = A_x
    xn = _layernorm(x, axis=-1)
    return x + _A_ref(xn, A_mem0, A_Wq, A_Wk, A_Wv, A_Wo, A_seg_len) + _B_ref(xn, B_w1, B_b1, B_w2, B_b2)
```

```python
import re

TRANS = ("v_exp_f32","v_log_f32","v_rcp_f32","v_rsq_f32","v_sqrt_f32","v_sin_f32","v_cos_f32")

def regs_of(tok):
    tok = tok.strip()
    if tok.startswith("-"): tok = tok[1:]
    if tok.startswith("abs("): tok = tok[4:-1]
    if tok.startswith("|"): tok = tok.strip("|")
    m = re.fullmatch(r"([vas])\[(\d+):(\d+)\]", tok)
    if m: return [f"{m.group(1)}{i}" for i in range(int(m.group(2)), int(m.group(3))+1)]
    m = re.fullmatch(r"([vas])(\d+)", tok)
    if m: return [tok]
    if tok in ("vcc","exec","m0"): return [tok]
    if tok in ("vcc_lo","vcc_hi"): return ["vcc"]
    if tok in ("exec_lo","exec_hi"): return ["exec"]
    return []

class Ins:
    __slots__=("text","op","rd","wr","cls","ops","states","passes","wide_store","A","B","C")
    def __init__(self, text):
        self.text=text
        t=text.split(";")[0].strip()
        self.rd=set(); self.wr=set(); self.states=1; self.passes=0; self.wide_store=set()
        self.A=self.B=self.C=set()
        if not t or t.endswith(":") or t.startswith("."):
            self.op=""; self.cls="label" if t.endswith(":") else "none"; self.states=0; self.ops=[]; return
        parts=t.split(None,1); op=parts[0]; self.op=op
        rest=parts[1] if len(parts)>1 else ""
        rest=re.sub(r"\s[a-z_]+:\[[^\]]*\]","",rest)
        ops=[o.strip() for o in rest.split(",")] if rest else []
        if ops:
            last=ops[-1].split()
            ops[-1]=last[0] if last else ""
            mods=last[1:]
        else: mods=[]
        self.ops=ops
        R=lambda i: set(regs_of(ops[i])) if i<len(ops) else set()
        if op.startswith("v_mfma") or op.startswith("v_smfmac"):
            self.cls="mfma"; self.wr=R(0); self.A=R(1); self.B=R(2)
            if op.startswith("v_smfmac"): self.C=R(0); self.A=self.A|R(3)
            else: self.C=R(3)
            self.rd=self.A|self.B|self.C
            self.passes = 8 if "32x32" in op else (2 if "4x4x4" in op else 4)
        elif op.startswith("v_cmp"):
            self.cls="valu"; self.wr=R(0); self.rd=R(1)|R(2)
        elif op.startswith("v_permlane") and "swap" in op:
            self.cls="valu"; self.wr=R(0)|R(1); self.rd=R(0)|R(1)
        elif op.startswith("v_"):
            self.cls="valu"; self.wr=R(0)
            st=1
            if "_co_" in op: self.wr|=R(1); st=2
            for i in range(st,len(ops)): self.rd|=R(i)
            if op.startswith("v_fmac") or op.startswith("v_dot2c") or "dpp" in op or any(m.startswith("row_") or m.startswith("quad_perm") for m in mods): self.rd|=R(0)
            if op.startswith("v_cndmask") and len(ops)==3: self.rd.add("vcc")
        elif op.startswith("ds_"):
            self.cls="ds"
            if "read" in op or "permute" in op or "swizzle" in op:
                self.wr=R(0)
                for i in range(1,len(ops)): self.rd|=R(i)
            else:
                for i in range(len(ops)): self.rd|=R(i)
        elif op.startswith("buffer_") or op.startswith("global_"):
            self.cls="vmem"
            lds = "lds" in mods or "load_lds" in op
            if op in ("buffer_wbl2","buffer_inv"): pass
            elif lds:
                for i in range(len(ops)): self.rd|=R(i)
                self.rd.add("m0")
            elif "load" in op:
                self.wr=R(0)
                for i in range(1,len(ops)): self.rd|=R(i)
            elif "atomic" in op:
                for i in range(len(ops)): self.rd|=R(i)
                if "sc0" in mods: self.wr=R(0)
            else:
                for i in range(len(ops)): self.rd|=R(i)
                if "x3" in op or "x4" in op:
                    self.wide_store = R(0) if op.startswith("buffer_") else R(1)
        elif op=="s_nop":
            self.cls="nop"; self.states=int(ops[0])+1
        elif op.startswith("s_"):
            self.cls="salu"
            if op.startswith("s_cmp") or op.startswith("s_cbranch") or op in ("s_branch","s_barrier","s_waitcnt","s_endpgm","s_sleep","s_setprio","s_bitcmp1_b32","s_bitcmp0_b32"):
                for i in range(len(ops)): self.rd|=R(i)
            else:
                self.wr=R(0)
                for i in range(1,len(ops)): self.rd|=R(i)
                if "saveexec" in op: self.wr.add("exec")
        else:
            raise ValueError("unknown op "+text)
    @property
    def is_dpp(self): return "row_" in self.text or "quad_perm" in self.text or "_dpp" in self.op

def need(p, c):
    n=0
    if p.cls=="valu":
        vw={r for r in p.wr if r[0] in "va" and r not in("vcc",)}
        sw=p.wr-vw
        if c.cls=="mfma" and vw & c.rd: n=max(n,2)
        if c.cls=="valu":
            if vw & c.rd:
                if c.op.startswith("v_permlane") or c.is_dpp: n=max(n,2)
                if c.op.startswith("v_readlane") or c.op.startswith("v_readfirstlane"): n=max(n,1)
                if p.op.startswith(TRANS) and not c.op.startswith(TRANS): n=max(n,1)
            if sw & c.rd:
                n=max(n, 4 if c.op.startswith(("v_readlane","v_writelane")) else 2)
        if c.cls=="vmem" and sw & c.rd: n=max(n,5)
        if c.cls in("ds","vmem") and p.op.startswith(TRANS) and vw & c.rd: n=max(n,1)
    elif p.cls=="mfma":
        big={2:5,4:8,8:12,16:20}[p.passes]; part={2:4,4:6,8:10,16:18}[p.passes]
        if c.cls=="mfma":
            if p.wr & (c.A|c.B): n=max(n,big)
            if p.wr & c.C:
                if not (p.wr==c.C and p.op==c.op): n=max(n,part)
                elif p.passes==2: n=max(n,2)
            if p.wr & c.wr and not (p.wr & c.C): n=max(n,part)
        elif c.cls in("valu","ds","vmem"):
            if p.wr & (c.rd|c.wr): n=max(n,big)
            if c.cls=="valu" and p.C & c.wr: n=max(n,{2:1,4:3,8:7,16:15}[p.passes])
    elif p.cls=="vmem":
        if p.wide_store & c.wr: n=max(n,2)
    elif p.cls=="salu":
        if "m0" in p.wr and c.cls=="vmem" and "m0" in c.rd: n=max(n,1)
    return n

class Asm:
    def __init__(self, timed=True):
        self.ins=[]; self.vm=[]; self.lg=[]; self.timed=timed; self.npad=0
    def raw(self, text):
        for line in text.split("\n"):
            if line.strip(): self.e(line.strip())
    def e(self, text, tag=None):
        i=Ins(text)
        if i.cls not in("label","none"):
            pad=0
            win=[]
            for p in reversed(self.ins[-48:]):
                if p.cls=="label" and p.text.startswith("HZ_"): break
                win.append(p)
            win.reverse()
            for k,p in enumerate(win):
                n=need(p,i)
                if not n: continue
                if p.cls=="mfma" and self.timed:
                    t=4; last=0; lastp=p.passes
                    for q in win[k+1:]:
                        if q.cls=="mfma":
                            t=max(t,last+4*lastp); last=t; lastp=q.passes; t+=4
                        else: t+=4*q.states
                    dist=t//4-1
                    if i.cls=="mfma" and max(t,last+4*lastp)//4-1>=n: dist=n
                else:
                    dist=sum(q.states for q in win[k+1:])
                if n>dist: pad=max(pad,n-dist)
            if pad:
                self.npad+=pad
                while pad>0:
                    k=min(pad,16); self.ins.append(Ins(f"s_nop {k-1}")); pad-=k
        self.ins.append(i)
        if i.cls=="vmem" and i.op not in("buffer_inv",): self.vm.append(tag)
        if i.cls=="ds": self.lg.append(tag)
        return i
    def label(self, name): self.ins.append(Ins(name+":"))
    def _cnt(self, q, tags):
        if isinstance(tags,str): tags=[tags]
        idx=[k for k,t in enumerate(q) if t in tags]
        if not idx: return None
        return len(q)-1-max(idx)
    def wait(self, vm=None, lg=None):
        parts=[]
        if vm is not None:
            n = 0 if vm=="all" else self._cnt(self.vm, vm)
            if n is not None:
                assert n<=63, n
                parts.append(f"vmcnt({n})"); self.vm=self.vm[len(self.vm)-n:] if n else []
        if lg is not None:
            n = 0 if lg=="all" else self._cnt(self.lg, lg)
            if n is not None:
                n=min(n,15)
                parts.append(f"lgkmcnt({n})"); self.lg=self.lg[len(self.lg)-n:] if n else []
        if parts: self.e("s_waitcnt "+" ".join(parts))
    def text(self):
        out=[]
        for i in self.ins:
            out.append(i.text if i.cls=="label" or i.text.startswith(".") else "    "+i.text)
        return "\n".join(out)+"\n"

def vr(a,n=1,k="v"):
    return f"{k}{a}" if n==1 else f"{k}[{a}:{a+n-1}]"
```

```python
from asmlib import *
from layout import *
import math

L_MEM=0; L_X=10240; L_KX=14336; L_SEL=22528; L_ROLE=23552; L_W=24576
S_WS="s[4:7]"; S_T="s[8:11]"
sH="s12"; sSTEP="s14"; sMR="s15"; sMW="s16"; sMZ="s17"; sTAG="s18"; sTAGM="s19"
sKX="s20"; sVX="s21"; sPC="s22"; sMP="s23"; sSW="s24"; sP0="s25"; sP1="s26"; sP2="s27"
sPR=["s28","s29","s30","s31"]; sCNT="s32"; sC="s33"; sFE="s34"; sKX2="s35"; sSW2="s36"; sSW3="s37"; sSW4="s38"
sPLO="s40"; sPHI="s41"; sT0="s42"; sT1="s43"; sEX="s[44:45]"; sUNIT="s46"; sKXN="s47"; sVXN="s48"; sMPX="s49"
sCC="s[96:97]"; sONE="s[98:99]"; sHALF="s[100:101]"; sDBG="s[50:51]"; sXCC="s52"; sMODE="s53"
vL16="v0"; vA="v1"; vIDX="v2"; vW="v3"; vRL="v4"; vRS="v5"; vXW="v6"; vXR="v7"; vOW="v8"; vL8="v9"
T0=10; T1=11
AB=[12,16,20]; QA=[24,28]; KA=[32,36]; VA=[40,44]; SLA=48; SLB=56

G_ALL=[("q",0,0),("q",0,1),("k",5,1),("o",0),("o",9),("o",10)]
L_ALL=[("k",7,1),("k",8,1),("k",9,1)]+[("o",n) for n in (1,3,4,6,7,11,12,13,14,16,17)]
COND=[("o",19),("k",6,1),("k",2,1),("k",4,1),("o",15),("o",18)]
L_BASE=[0,18,35,52]
def tile_map(w):
    g={t:i for i,t in enumerate(G_ALL)}; l={t:i for i,t in enumerate(L_ALL)}; r={}
    keys=[(m,k,t) for m in "qkv" for k in range(10) for t in range(2)]+[("o",n) for n in range(20)]
    place=lambda i: ("a",8*i) if i<32 else ("v",64+8*(i-32))
    for key in keys:
        if key in g or key in l or key in COND: continue
        r[key]=place(len(r))
    if w==0: l[("o",19)]=17
    else: g[("o",19)]=6
    if w==3:
        g[("k",6,1)]=7; r[("k",2,1)]=place(54); r[("k",4,1)]=place(55); l[("o",15)]=14; l[("o",18)]=15
    else:
        l[("k",6,1)]=16; l[("k",2,1)]=14; l[("k",4,1)]=15; r[("o",15)]=place(54); r[("o",18)]=place(55)
    assert len(r)==56 and len(g)+len(l)==24 and len(l)==[18,17,17,16][w]
    return g,l,r
MAPS=[tile_map(w) for w in range(4)]
TG,TL,TR=MAPS[0]
def use_map(w):
    global TG,TL,TR
    TG,TL,TR=MAPS[w]
def o_tile(n):
    return n//4,(n//2)&1,n&1

def sw_ref(idx):
    return [sSW,sSW2,sSW3,sSW4][idx//2], (idx&1)*2048

def gload_tile(a,key,slot,tag):
    if "G" in OPT["ab"] or ("P" in OPT["ab"] and tag in("g0","g1")): return
    s,imm=sw_ref(TG[key])
    a.e(f"buffer_load_dwordx4 {vr(slot,4)}, {vL16}, {S_WS}, {s} offen offset:{imm}",tag)
    a.e(f"buffer_load_dwordx4 {vr(slot+4,4)}, {vL16}, {S_WS}, {s} offen offset:{imm+1024}",tag)
def lload_tile(a,key,slot,tag):
    o=TL[key]*2048
    a.e(f"ds_read_b128 {vr(slot,4)}, {vW} offset:{o}",tag)
    a.e(f"ds_read_b128 {vr(slot+4,4)}, {vW} offset:{o+1024}",tag)
def sm(a,acc,A,key,slot=None):
    if key in TR: k,b=TR[key]
    else: k,b="v",slot
    a.e(f"v_smfmac_f32_16x16x64_bf16 {vr(acc,4)}, {vr(A,4)}, {vr(b,8,k)}, {vIDX}")
def zero4(a,r):
    a.e(f"v_mov_b64 {vr(r,2)}, 0"); a.e(f"v_mov_b64 {vr(r+2,2)}, 0")

def chain_init(a, sW):
    e=a.e
    e("s_load_dwordx2 s[54:55], s[0:1], %d"%A_WQ); e("s_load_dwordx2 s[56:57], s[0:1], %d"%A_WK)
    e("s_load_dwordx2 s[58:59], s[0:1], %d"%A_WV); e("s_load_dwordx2 s[60:61], s[0:1], %d"%A_WO)
    e("s_load_dwordx2 s[62:63], s[0:1], %d"%A_MEM0)
    e(f"s_mov_b32 {sPLO}, 0x05040100"); e(f"s_mov_b32 {sPHI}, 0x07060302")
    e("v_lshrrev_b32 v4, 5, v0"); e("v_lshlrev_b32 v4, 4, v4"); e("v_bfe_u32 v5, v0, 4, 1"); e("v_lshl_add_u32 v4, v5, 2, v4")
    e("v_and_b32 v5, 15, v0"); e("v_lshlrev_b32 v5, 2, v5")
    e(f"s_lshl_b32 {sT0}, {sH}, 8"); e(f"s_lshl_b32 {sT1}, {sW}, 6"); e(f"s_add_u32 {sT0}, {sT0}, {sT1}")
    e("v_lshl_add_u32 v1, v4, 13, v5"); e(f"v_add_u32 v1, {sT0}, v1")
    e("v_mul_u32_u24 v2, 1280, v4"); e("v_add_u32 v2, v2, v5")
    e(f"s_mul_i32 {sT0}, {sH}, {128*1280}"); e(f"s_add_u32 {sT0}, {sT0}, {sT1}"); e(f"v_add_u32 v2, {sT0}, v2")
    e("v_mov_b32 v15, v0")
    e("v_lshlrev_b32 v0, 4, v0")
    e(f"s_mul_i32 {sT0}, {sW}, {17*2048}"); e(f"s_cmp_eq_u32 {sW}, 0"); e(f"s_cselect_b32 {sT1}, 0, 2048"); e(f"s_add_u32 {sT0}, {sT0}, {sT1}"); e(f"s_add_u32 {sT0}, {sT0}, {L_W}"); e(f"v_add_u32 v3, {sT0}, v0")
    e(f"s_lshl_b32 {sT0}, {sH}, 2"); e(f"s_add_u32 {sT0}, {sT0}, {sW}"); e(f"s_lshl_b32 {sT0}, {sT0}, 14")
    e(f"s_add_u32 {sSW}, {sT0}, {SW_OFF}"); e(f"s_add_u32 {sSW2}, {sSW}, 4096"); e(f"s_add_u32 {sSW3}, {sSW}, 8192"); e(f"s_add_u32 {sSW4}, {sSW}, 12288")
    e("s_mov_b32 s10, %d"%(640*8192)); e("s_mov_b32 s11, 0x20000")
    e("s_waitcnt lgkmcnt(0)")
    groups=[(m,k) for m in "qkv" for k in range(10)]+[("o",j,ko) for j in range(5) for ko in range(2)]
    LB=[16,32,48]
    base={"q":54,"k":56,"v":58,"o":60}
    cur=[None]
    def issue(i):
        g=groups[i]; lb=LB[i%3]
        if cur[0]!=g[0]:
            e(f"s_mov_b32 s8, s{base[g[0]]}"); e(f"s_mov_b32 s9, s{base[g[0]]+1}"); cur[0]=g[0]
        for R in range(8):
            mh,ml,p=R>>2,(R>>1)&1,R&1
            for x in range(2):
                if g[0]=="o":
                    row=64*g[2]+32*mh+8*p+2*ml+x
                    off=row*1280+256*g[1]; vo="v2"
                else:
                    row=64*g[1]+32*mh+8*p+2*ml+x
                    off=row*8192; vo="v1"
                e(f"s_mov_b32 {sT0}, {off}")
                e(f"buffer_load_dword v{lb+2*R+x}, {vo}, {S_T}, {sT0} offen",f"w{i}")
    tmp=[4,8]; tsel=[0]
    def put(key,lb,sel,w):
        g_,l_,r_=MAPS[w]
        if key in r_ and r_[key][0]=="v":
            for R in range(8): e(f"v_perm_b32 v{r_[key][1]+R}, v{lb+2*R+1}, v{lb+2*R}, {sel}")
            return
        for half in range(2):
            t=tmp[half]
            for R in range(4): e(f"v_perm_b32 v{t+R}, v{lb+2*(4*half+R)+1}, v{lb+2*(4*half+R)}, {sel}")
            if key in r_:
                for R in range(4): e(f"v_accvgpr_write_b32 a{r_[key][1]+4*half+R}, v{t+R}")
            elif key in l_:
                e(f"ds_write_b128 v3, {vr(t,4)} offset:{l_[key]*2048+half*1024}")
            else:
                sg,imm=sw_ref(g_[key])
                e(f"buffer_store_dwordx4 {vr(t,4)}, v0, {S_WS}, {sg} offen offset:{imm+half*1024}","st")
    def process(i):
        g=groups[i]; lb=LB[i%3]
        a.wait(vm=f"w{i}")
        if OPT["lock"]: e("s_barrier")
        for tau in range(2):
            key=(g[0],g[1],tau) if g[0]!="o" else ("o",4*g[1]+2*tau+g[2])
            sel=sPHI if tau else sPLO
            if key not in COND: put(key,lb,sel,0); continue
            odd=0 if key==("o",19) else 3
            q=list(a.vm); nm=f"C_i{i}_{tau}"
            e(f"s_cmp_eq_u32 {sW}, {odd}"); e(f"s_cbranch_scc1 {nm}a")
            put(key,lb,sel,1); e(f"s_branch {nm}b")
            a.label(f"{nm}a"); put(key,lb,sel,odd); a.label(f"{nm}b"); e("s_nop 1")
            a.vm=q
    issue(0); issue(1)
    for i in range(len(groups)):
        if i+2<len(groups): issue(i+2)
        process(i)
    a.wait(vm="all",lg="all")
    e("v_lshrrev_b32 v12, 5, v15"); e("v_lshlrev_b32 v1, 9, v12")
    e("v_bfe_u32 v12, v15, 1, 3"); e("v_lshl_add_u32 v1, v12, 6, v1")
    e("v_bfe_u32 v12, v15, 4, 1"); e("v_lshl_add_u32 v1, v12, 5, v1")
    e("v_and_b32 v12, 1, v15"); e("v_lshl_add_u32 v1, v12, 4, v1")
    e("v_mov_b32 v13, 0xaaaa"); e("v_mul_u32_u24 v2, v12, v13"); e("v_add_u32 v2, 0x4444, v2")
    e(f"s_lshl_b32 {sUNIT}, {sW}, 5"); e(f"s_add_u32 {sUNIT}, {sUNIT}, {sH}"); e(f"s_lshl_b32 {sT0}, {sUNIT}, 7")
    e("v_lshrrev_b32 v12, 3, v15"); e("v_mul_u32_u24 v4, 10240, v12"); e("v_and_b32 v12, 7, v15"); e("v_lshl_add_u32 v4, v12, 4, v4")
    e(f"v_add_u32 v4, {sT0}, v4")
    e("v_lshrrev_b32 v12, 4, v15"); e("v_lshlrev_b32 v5, 6, v12"); e("v_and_b32 v12, 15, v15"); e("v_lshl_add_u32 v5, v12, 3, v5")
    e(f"v_add_u32 v5, {sT0}, v5"); e("v_and_b32 v12, 0x28, v15"); e("v_cmp_eq_u32 vcc, 0, v12"); e("v_mov_b32 v13, 0x7ff00000")
    e("v_cndmask_b32 v5, v13, v5, vcc")
    e("v_lshrrev_b32 v12, 5, v15"); e("v_lshlrev_b32 v12, 2, v12"); e("v_and_b32 v13, 15, v15"); e("v_xor_b32 v12, v12, v13")
    e("v_lshlrev_b32 v6, 3, v12"); e("v_lshrrev_b32 v12, 4, v15"); e("v_lshl_add_u32 v6, v12, 7, v6")
    e(f"s_lshl_b32 {sT0}, {sW}, 10"); e(f"s_add_u32 {sT0}, {sT0}, {L_X}"); e(f"v_add_u32 v6, {sT0}, v6")
    e("v_bfe_u32 v12, v15, 3, 1"); e("v_lshlrev_b32 v7, 3, v12"); e("v_lshrrev_b32 v12, 4, v15"); e("v_lshl_add_u32 v7, v12, 1, v7")
    e("v_bfe_u32 v12, v15, 2, 1"); e("v_add_u32 v7, v7, v12"); e("v_bfe_u32 v12, v15, 1, 1"); e("v_lshlrev_b32 v12, 2, v12"); e("v_xor_b32 v7, v7, v12")
    e("v_lshlrev_b32 v7, 3, v7"); e("v_and_b32 v12, 3, v15"); e("v_lshl_add_u32 v7, v12, 7, v7"); e(f"v_add_u32 v7, {L_X}, v7")
    e("v_bfe_u32 v12, v15, 2, 2"); e("v_lshlrev_b32 v8, 7, v12"); e("v_and_b32 v12, 1, v15"); e("v_lshl_add_u32 v8, v12, 6, v8")
    e("v_lshrrev_b32 v12, 4, v15"); e("v_lshl_add_u32 v8, v12, 4, v8"); e(f"s_lshl_b32 {sT0}, {sW}, 9"); e(f"v_add_u32 v8, {sT0}, v8")
    e(f"v_and_b32 v13, 0x1ff, v8"); e(f"v_add_u32 v13, {L_ROLE+512}, v13"); e("v_and_b32 v12, 2, v15"); e("v_cmp_eq_u32 vcc, 0, v12"); e("v_cndmask_b32 v8, v13, v8, vcc")
    e("v_lshlrev_b32 v9, 3, v15")
    e("v_and_b32 v12, 15, v15"); e("v_mov_b32 v13, 0x3f80"); e("v_mov_b32 v14, 0x3f800000")
    for r,(lo,hi) in enumerate([(0,1),(4,5),(2,3),(6,7)]):
        e(f"v_mov_b32 v{16+r}, 0"); e(f"v_cmp_eq_u32 vcc, {lo}, v12"); e(f"v_cndmask_b32 v{16+r}, v{16+r}, v13, vcc")
        e(f"v_cmp_eq_u32 vcc, {hi}, v12"); e(f"v_cndmask_b32 v{16+r}, v{16+r}, v14, vcc")
    e(f"ds_write_b128 v0, v[16:19] offset:{L_SEL}")
    e(f"s_mul_i32 {sT0}, {sH}, 10240"); e(f"s_lshl_b32 {sT1}, {sW}, 9"); e(f"s_add_u32 {sT0}, {sT0}, {sT1}")
    e(f"s_add_u32 {sP0}, {sT0}, {P_OFF}"); e(f"s_add_u32 {sP1}, {sP0}, 4096"); e(f"s_add_u32 {sP2}, {sP0}, 8192")
    for m in range(4): e(f"s_mov_b32 {sPR[m]}, {P_OFF+m*81920}")
    e(f"s_lshl_b32 {sT0}, {sH}, 13"); e(f"s_add_u32 {sKX}, {sT0}, {XK_OFF}"); e(f"s_add_u32 {sKX2}, {sKX}, 4096")
    e(f"s_lshl_b32 {sT1}, {sW}, 11"); e(f"s_add_u32 {sVX}, {sT0}, {XV_OFF}"); e(f"s_add_u32 {sVXN}, {sVX}, {32*8192}"); e(f"s_add_u32 {sVX}, {sVX}, {sT1}")
    e(f"s_add_u32 {sKXN}, {sKX}, {32*8192}")
    e(f"s_mul_i32 {sPC}, {sH}, 320"); e(f"s_add_u32 {sMP}, {sPC}, {MEMP_OFF-10240}")
    c=(128**-0.5)*math.log2(math.e)
    import struct
    e(f"s_mov_b32 {sC}, 0x%08x"%struct.unpack("<I",struct.pack("<f",c))[0])
    e(f"s_mov_b32 s96, {sC}"); e(f"s_mov_b32 s97, {sC}")
    e("s_mov_b32 s98, 0x3f803f80"); e("s_mov_b32 s99, 0x3f803f80"); e("s_mov_b32 s100, 0x3f003f00"); e("s_mov_b32 s101, 0x3f003f00")
    e(f"s_mov_b32 {sFE}, 0xfffffffe")
    e("s_mov_b32 s44, 0x33333333"); e("s_mov_b32 s45, 0x33333333")
    e(f"s_lshl_b32 {sT0}, {sW}, 12"); e(f"s_add_u32 {sMR}, {sT0}, {M_OFF}")
    e(f"s_mov_b32 {sMW}, {M_OFF+16384}"); e(f"s_mov_b32 {sMZ}, {M_OFF+49152}")
    e(f"s_mov_b32 {sSTEP}, 0"); e(f"s_mov_b32 {sTAG}, 1"); e(f"s_mov_b32 {sTAGM}, -1"); e(f"s_mov_b32 {sCNT}, 0")
    e("v_mov_b64 v[16:17], 0"); e("v_mov_b64 v[18:19], -1")
    for j in range(5):
        e(f"buffer_store_dwordx2 v[16:17], {vL8}, {S_WS}, {[sP0,sP1,sP2][j//2]} offen offset:{(j&1)*2048} sc1")
    e(f"s_cmp_ge_u32 {sUNIT}, 80"); e("s_cbranch_scc1 C_noM")
    e("s_mov_b32 s8, s62"); e("s_mov_b32 s9, s63"); e("s_mov_b32 s10, 10240")
    e(f"s_and_b32 {sT0}, {sUNIT}, 3"); e(f"s_mul_i32 {sT0}, {sT0}, 2560"); e(f"s_lshr_b32 {sT1}, {sUNIT}, 2"); e(f"s_lshl_b32 {sT1}, {sT1}, 6"); e(f"s_add_u32 {sT0}, {sT0}, {sT1}")
    e("v_bfe_u32 v12, v15, 4, 1"); e("v_mul_u32_u24 v12, 1280, v12"); e("v_and_b32 v13, 7, v15"); e("v_lshl_add_u32 v12, v13, 3, v12")
    e(f"buffer_load_dwordx2 v[20:21], v12, {S_T}, {sT0} offen")
    for k in range(1,4):
        e(f"s_mov_b32 {sT1}, {M_OFF+16384*k}"); e(f"buffer_store_dwordx2 v[18:19], {vRS}, {S_WS}, {sT1} offen sc1")
    e("s_waitcnt vmcnt(0)")
    e(f"v_min_u32 v20, {sFE}, v20")
    e(f"s_mov_b32 {sT1}, {M_OFF}"); e(f"buffer_store_dwordx2 v[20:21], {vRS}, {S_WS}, {sT1} offen sc1")
    a.label("C_noM")
    e("s_mov_b32 s8, s4"); e("s_mov_b32 s9, s5"); e("s_mov_b32 s10, 0")
    e("s_waitcnt vmcnt(0) lgkmcnt(0)"); a.vm=[]; a.lg=[]
    e("s_barrier")

STAMPS=[]
OPT={"kvstride":32*8192,"d0":30,"d1":60,"d1b":80,"m1pos":0,"d2":60,"d3":0,"pf":1,"nosync":0,"stamps":[],"lock":1,"rl":20,"pub":1,"pipe":0,"fine":"","d4":0,"ab":"","pfpos":"qk"}
def delay(a,n):
    while n>0:
        k=min(n,16); a.e(f"s_nop {k-1}"); n-=k
def stamp(a,tim,name):
    if OPT["fine"] and not name.startswith(OPT["fine"]) and name!="b1": return
    if not OPT["fine"] and name[0]=="_": return
    if name not in STAMPS: STAMPS.append(name)
    if tim==3:
        i=STAMPS.index(name); assert i<19; a.e(f"s_memtime s[{54+2*i}:{55+2*i}]")
        if OPT["fine"]: a.lg+= [None,None]
        return
    if tim!=1 or name not in OPT["stamps"]: return
    i=OPT["stamps"].index(name)
    a.e("s_memtime s[70:71]"); a.e("s_waitcnt lgkmcnt(0)"); a.lg=[]
    a.e("s_sub_u32 s72, s70, s73"); a.e("s_mov_b32 s73, s70"); a.e(f"s_add_u32 s{76+i}, s{76+i}, s72")

def dma(a,n,soff,tag,first=0):
    for i in range(first,first+n):
        a.e(f"buffer_load_dwordx4 {vL16}, {S_WS}, {soff} offen offset:{1024*i} sc1 lds",tag)

def chain_wave(a, w, st, pfx, tim=0):
    use_map(w)
    e=a.e; L=lambda s: f"{pfx}{w}_{s}"
    nd=[4,4,2,0][w]
    def chk(l):
        if OPT["nosync"]: e("s_nop 0")
        else: e(f"s_cbranch_vccnz {L(l)}")
    def spin(c=None):
        if tim in(1,2) and c: e(f"s_add_u32 {c}, {c}, 1")
        e(f"s_add_u32 {sCNT}, {sCNT}, 1"); e(f"s_cmp_gt_u32 {sCNT}, 0x40000"); e("s_cbranch_scc1 L_abort")
    def aread(k,buf): e(f"ds_read_b128 {vr(buf,4)}, {vA} offset:{L_MEM+1024*k}",f"A{k}")
    def prestage():
        gload_tile(a,("q",0,0),SLA,"g0"); gload_tile(a,("q",0,1),SLB,"g1")
    def zero_acc():
        for r in QA+KA+VA: zero4(a,r)
    def mfetch():
        e(f"v_lshlrev_b32 v{T1}, 2, {vL16}")
        if w==2: e(f"v_and_b32 v{T1}, 0x7ff, v{T1}")
        e(f"buffer_load_dword v{T1}, v{T1}, {S_WS}, {sMR} offen sc1","pr")
        dma(a,nd,sMR,"dma")
    if tim in(1,2):
        e("s_memtime s[70:71]"); e("s_waitcnt lgkmcnt(0)"); e("s_mov_b32 s73, s70"); e("s_mov_b32 s74, s70")
        for i in range(11): e(f"s_mov_b32 s{76+i}, 0")
    a.label(L("rec"))
    e("s_waitcnt vmcnt(0) lgkmcnt(0)"); a.vm=[]; a.lg=[]
    spin("s84")
    e("s_barrier")
    prestage()
    if w<3: e(f"s_mov_b32 m0, {4096*w}")
    if w==0: dma(a,4,sMR,"dma")
    zero_acc()
    e("s_waitcnt vmcnt(0)"); a.vm=[]
    top_vm={0:[None]*(5*OPT["pipe"]),1:["rs","mz"],2:["rs","mz"],3:[]}[w]
    if "G" in OPT["ab"] or "P" in OPT["ab"]: top_vm=[t for t in top_vm if t[0]!="g"]
    a.vm=list(top_vm)
    a.label("HZ_"+L("top"))
    e("s_barrier")
    for k in range(3): aread(k,AB[k])
    if w in(1,2) and OPT["m1pos"]==0: mfetch()
    stamp(a,tim,"b1")
    a.wait(vm="g0",lg="A0"); sm(a,QA[0],AB[0],("q",0,0),SLA)
    a.wait(vm="g1"); sm(a,QA[1],AB[0],("q",0,1),SLB)
    gload_tile(a,("k",5,1),SLA,"g2")
    a.wait(lg="A2"); e(f"v_max3_u32 v{T0}, v{AB[0]}, v{AB[1]}, v{AB[2]}")
    sm(a,KA[0],AB[0],("k",0,0)); e(f"v_cmp_eq_u32 vcc, -1, v{T0}")
    sm(a,KA[1],AB[0],("k",0,1))
    if w==3: gload_tile(a,("k",6,1),SLB,"g3")
    else: lload_tile(a,("k",2,1),SLB,"l2")
    sm(a,VA[0],AB[0],("v",0,0)); chk("rec")
    sm(a,VA[1],AB[0],("v",0,1)); aread(3,AB[0])
    if w in(1,2) and OPT["m1pos"]==1: mfetch()
    kxw = w in(0,3)
    for i,(m,acc,t) in enumerate((("q",QA,0),("q",QA,1),("k",KA,0),("k",KA,1),("v",VA,0),("v",VA,1))):
        sm(a,acc[t],AB[1],(m,1,t))
        if kxw and i==0: e(f"s_mov_b32 m0, {L_KX+(4096 if w else 0)}")
        if kxw and 1<=i<=4: dma(a,1,sKX2 if w else sKX,"kx",i-1)
    if w==3:
        if OPT["pub"]:
            e(f"buffer_store_dwordx2 v[4:5], {vL8}, {S_T}, {sMP} offen sc1","pub")
            e("s_mov_b32 s10, 0")
        if OPT['pf']:
            e(f"v_lshlrev_b32 v5, 3, {vL16}")
            e(f"buffer_load_dword v4, v5, {S_WS}, {sKXN} offen sc1","pf")
            e(f"buffer_load_dword v4, v5, {S_WS}, {sVXN} offen sc1","pf")
    sm(a,QA[0],AB[2],("q",2,0)); sm(a,QA[1],AB[2],("q",2,1)); sm(a,KA[0],AB[2],("k",2,0))
    a.wait(lg="l2"); sm(a,KA[1],AB[2],("k",2,1),SLB)
    if w!=3: lload_tile(a,("k",4,1),SLB,"l4")
    sm(a,VA[0],AB[2],("v",2,0))
    if w in(1,2): a.wait(vm="pr"); e(f"v_cmp_eq_u32 vcc, -1, v{T1}")
    sm(a,VA[1],AB[2],("v",2,1))
    a.wait(lg="A3"); sm(a,QA[0],AB[0],("q",3,0))
    stamp(a,tim,"k2")
    if w in(1,2):
        chk("mr"); a.wait(vm="dma"); a.label(L("mok"))
    e("s_barrier"); stamp(a,tim,"b1b")
    aread(4,AB[1]); aread(5,AB[2])
    sm(a,QA[1],AB[0],("q",3,1)); e(f"v_mov_b32 v{T0}, v{AB[0]}")
    for m,acc,t in (("k",KA,0),("k",KA,1),("v",VA,0),("v",VA,1)): sm(a,acc[t],AB[0],(m,3,t))
    aread(6,AB[0])
    nxt={4:7,5:8,6:9}
    slot={4:SLB,5:SLA,6:SLB,7:SLA}
    for k in range(4,8):
        b=AB[k%3]
        a.wait(lg=f"A{k}"); sm(a,QA[0],b,("q",k,0))
        e(f"v_max_u32 v{T0}, v{T0}, v{b}")
        sm(a,QA[1],b,("q",k,1))
        sm(a,KA[0],b,("k",k,0))
        if k==5: a.wait(vm="g2")
        if k==6: a.wait(vm="g3")
        if k in(4,6,7): a.wait(lg=f"l{k}")
        sm(a,KA[1],b,("k",k,1),slot.get(k))
        if k in nxt: aread(nxt[k],b)
        if k==4 and w!=3: lload_tile(a,("k",6,1),SLB,"l6")
        if k==5: lload_tile(a,("k",7,1),SLA,"l7")
        if k==6: lload_tile(a,("k",8,1),SLB,"l8")
        if k==7: lload_tile(a,("k",9,1),SLA,"l9")
    stamp(a,tim,"k7")
    b8,b9,b7=AB[2],AB[0],AB[1]
    a.wait(lg="A8"); sm(a,QA[0],b8,("q",8,0))
    a.wait(lg="A9"); e(f"v_max3_u32 v{T0}, v{T0}, v{b8}, v{b9}")
    sm(a,QA[1],b8,("q",8,1)); e(f"v_cmp_eq_u32 vcc, -1, v{T0}")
    sm(a,QA[0],b9,("q",9,0)); a.wait(vm="kx"); e("s_barrier")
    sm(a,QA[1],b9,("q",9,1))
    def pair(acc,dst):
        e(f"v_add_f32 v{acc}, v{acc}, v{acc+1}"); e(f"v_add_f32 v{acc+2}, v{acc+2}, v{acc+3}")
        return f"v_cvt_pk_bf16_f32 v{dst}, v{acc}, v{acc+2}"
    sm(a,KA[0],b8,("k",8,0)); chk("rec"); sm(a,KA[0],b9,("k",9,0))
    c=pair(QA[0],QA[0]); a.wait(lg="l8"); sm(a,KA[1],b8,("k",8,1),SLB)
    def kxread(kt,ke,dst): e(f"ds_read_b128 {vr(dst,4)}, {vL16} offset:{L_KX+1024*(4*kt+ke)}",f"K{kt}{ke}")
    kxread(0,0,SLB); kxread(1,0,SLB+4); e(c)
    c=pair(QA[1],QA[1]); a.wait(lg="l9"); sm(a,KA[1],b9,("k",9,1),SLA)
    kxread(0,1,SLA); kxread(1,1,SLA+4); e(c)
    stamp(a,tim,"qk")
    c=pair(KA[0],QA[0]+1); e(c); e(f"ds_write_b64 {vXW}, {vr(QA[0],2)}","xw")
    sm(a,VA[0],b7,("v",7,0))
    c=pair(KA[1],QA[1]+1); e(c); e(f"ds_write_b64 {vXW}, {vr(QA[1],2)} offset:512","xw")
    sm(a,VA[1],b7,("v",7,1))
    aread(4,b7)
    sm(a,VA[0],b8,("v",8,0)); sm(a,VA[1],b8,("v",8,1)); aread(5,b8)
    sm(a,VA[0],b9,("v",9,0))
    stamp(a,tim,"_s0"); a.wait(lg="xw"); stamp(a,tim,"_s1"); e("s_barrier"); stamp(a,tim,"b2"); stamp(a,tim,"_s2")
    X=[24,28,32,36]
    for ke in range(4):
        for x in range(2): e(f"ds_read_b64_tr_b16 {vr(X[ke]+2*x,2)}, {vXR} offset:{1024*ke+512*x}",f"X{ke}")
        if ke==0: sm(a,VA[1],b9,("v",9,1))
        if ke==1: a.wait(lg="A4"); sm(a,VA[0],b7,("v",4,0))
        if ke==2: sm(a,VA[1],b7,("v",4,1))
    S0,S1,SM=b9,b7,b8
    def mf(d,A,B,first,op="v_mfma_f32_16x16x32_bf16",n=4):
        e(f"{op} {vr(d,4)}, {vr(A,n)}, {vr(B,n)}, {'0' if first else vr(d,4)}")
    stamp(a,tim,"_s3"); a.wait(lg="X0"); stamp(a,tim,"_s4"); mf(S0,SLB,X[0],1); mf(S1,SLB+4,X[0],1)
    kxread(0,2,SLB); kxread(1,2,SLB+4)
    a.wait(lg="X1"); stamp(a,tim,"_s5"); mf(S0,SLA,X[1],0); mf(S1,SLA+4,X[1],0)
    kxread(0,3,SLA); kxread(1,3,SLA+4)
    sm(a,VA[0],b8,("v",5,0)); sm(a,VA[1],b8,("v",5,1))
    stamp(a,tim,"_s6"); a.wait(lg="K12"); stamp(a,tim,"_s7"); mf(S0,SLB,X[2],0); mf(S1,SLB+4,X[2],0)
    VX=SLB; P=SLA; PM=SLA+4
    e(f"buffer_load_dwordx4 {vr(VX,4)}, {vL16}, {S_WS}, {sVX} offen sc1","vx")
    e(f"buffer_load_dwordx4 {vr(VX+4,4)}, {vL16}, {S_WS}, {sVX} offen offset:1024 sc1","vx")
    stamp(a,tim,"_s8"); a.wait(lg="K13"); stamp(a,tim,"_s9"); mf(S0,SLA,X[3],0); mf(S1,SLA+4,X[3],0)
    mf(SM,X[0],X[0],1); mf(SM,X[1],X[1],0); aread(6,X[1])
    e(f"v_max3_f32 v{T1}, v{S0}, v{S0+1}, v{S0+2}")
    mf(SM,X[2],X[2],0)
    e(f"v_max3_f32 v{T0}, v{S0+3}, v{S1}, v{S1+1}")
    mf(SM,X[3],X[3],0)
    e(f"v_max3_f32 v{T1}, v{T1}, v{S1+2}, v{S1+3}")
    stamp(a,tim,"scores"); stamp(a,tim,"_sa")
    e(f"v_max_f32 v{T1}, v{T1}, v{T0}")
    a.wait(lg="A6"); sm(a,VA[0],X[1],("v",6,0))
    e(f"v_max3_f32 v{T0}, v{T1}, v{SM+2}, v{SM+3}"); e(f"v_max3_f32 v{T1}, v{T1}, v{SM+2}, v{SM+3}")
    sm(a,VA[1],X[1],("v",6,1))
    e(f"v_permlane32_swap_b32 v{T0}, v{T1}")
    e(f"v_max_f32 v{SM}, v{T0}, v{T1}"); e(f"v_max_f32 v{T0}, v{T0}, v{T1}")
    gload_tile(a,("o",0),24,"go0")
    e(f"v_permlane16_swap_b32 v{T0}, v{SM}")
    e(f"v_max_f32 v{T0}, v{T0}, v{SM}")
    e(f"v_mul_f32 v{T0}, {sC}, v{T0}")
    stamp(a,tim,"max"); stamp(a,tim,"_sb")
    ev=[S0,S0+1,S0+2,S0+3,S1,S1+1,S1+2,S1+3,SM+2,SM+3]
    for r in ev[::2]:
        e(f"v_pk_fma_f32 {vr(r,2)}, {vr(r,2)}, {sCC}, {vr(T0,2)} op_sel_hi:[1,1,0] neg_lo:[0,0,1] neg_hi:[0,0,1]")
    for i,r in enumerate(ev[:8]):
        e(f"v_exp_f32 v{r}, v{r}")
        if i in(2,4,6): e(f"v_cvt_pk_bf16_f32 v{P+i//2-1}, v{ev[i-2]}, v{ev[i-1]}")
    e(f"v_exp_f32 v{ev[8]}, v{ev[8]}"); e(f"v_cvt_pk_bf16_f32 v{P+3}, v{ev[6]}, v{ev[7]}")
    e(f"v_exp_f32 v{ev[9]}, v{ev[9]}")
    O=[32,36]
    stamp(a,tim,"exp"); stamp(a,tim,"_p0")
    e(f"v_mov_b64 {vr(S0,2)}, {sONE}"); e(f"v_mov_b64 {vr(S0+2,2)}, {sONE}")
    e(f"v_cvt_pk_bf16_f32 v{PM}, v{ev[8]}, v{ev[8]}"); e(f"v_cvt_pk_bf16_f32 v{PM+1}, v{ev[9]}, v{ev[9]}")
    mf(S1,S0,P,1)
    e(f"v_mov_b64 {vr(SM,2)}, {sHALF}")
    e(f"v_cvt_pk_bf16_f32 v{VA[0]}, v{VA[0]}, v{VA[0]+1}")
    stamp(a,tim,"_p1"); a.wait(vm="vx"); stamp(a,tim,"_p2")
    mf(O[0],VX,P,1)
    for i in range(1,3): e(f"v_cvt_pk_bf16_f32 v{VA[0]+i}, v{VA[0]+2*i}, v{VA[0]+2*i+1}")
    mf(S1,SM,PM,0,"v_mfma_f32_16x16x16_bf16",2)
    e(f"v_cvt_pk_bf16_f32 v{VA[0]+3}, v{VA[0]+6}, v{VA[0]+7}"); e(f"v_mov_b64 v[12:13], 0")
    mf(O[1],VX+4,P,1)
    stamp(a,tim,"_p3"); gload_tile(a,("o",10),SLB,"go10"); stamp(a,tim,"_p4")
    mf(O[0],VA[0],PM,0,"v_mfma_f32_16x16x16_bf16",2)
    e(f"v_rcp_f32 v{T0}, v{S1}")
    mf(O[1],VA[0]+2,PM,0,"v_mfma_f32_16x16x16_bf16",2)
    stamp(a,tim,"_p5"); gload_tile(a,("o",9),SLA,"go9"); stamp(a,tim,"_p6")
    e(f"v_mov_b64 v[14:15], 0"); e(f"v_mov_b64 v[16:17], 0"); e(f"v_mov_b64 v[18:19], 0")
    PK=20
    stamp(a,tim,"_p7")
    for i in range(0,4,2):
        for t in range(2): e(f"v_pk_mul_f32 {vr(O[t]+i,2)}, {vr(O[t]+i,2)}, {vr(T0,2)} op_sel_hi:[1,0]")
        for k in range(2): e(f"v_cvt_pk_bf16_f32 v{PK+i+k}, v{O[0]+i+k}, v{O[1]+i+k}")
    e(f"ds_write_b128 {vOW}, {vr(PK,4)}","ow")
    stamp(a,tim,"_p8"); lload_tile(a,("o",1),32,"lo1")
    stamp(a,tim,"opack")
    a.wait(lg="ow"); stamp(a,tim,"_p9"); e("s_barrier"); stamp(a,tim,"b3"); stamp(a,tim,"_pa")
    AO=[40,44]
    e(f"ds_read_b128 {vr(AO[0],4)}, {vA} offset:{L_MEM}","ao0"); e(f"ds_read_b128 {vr(AO[1],4)}, {vA} offset:{L_MEM+1024}","ao1")
    zero4(a,20)
    SA,SB,SC,SD=24,32,SLA,SLB
    oslot={0:SA,1:SB,3:SA,4:SB,6:SA,7:SB,9:SC,10:SD}
    if w==0: oslot.update({11:SA,12:SB,13:SC,14:SD,16:SC,17:SD,19:SC})
    else:
        oslot[19]=SA
        for i,n in enumerate(n for n in range(11,19) if ("o",n) in TL): oslot[n]=[SB,SC,SD][i%3]
    after={}
    order=sorted(oslot)
    for n in order:
        prev=[m for m in order if m<n and oslot[m]==oslot[n]]
        if prev: after.setdefault(prev[-1],[]).append(n)
    TA=[12,16,20]
    tq=[]
    def finish(t):
        acc=TA[t%3]; q=lambda x,tag=None: tq.append((t,x,tag))
        if t&1==0:
            q(f"v_add_f32 v{T0}, v{acc}, v{acc+1}"); q(f"v_add_f32 v{T1}, v{acc+2}, v{acc+3}")
        else:
            j=t//2
            q(f"v_add_f32 v{acc}, v{acc}, v{acc+1}"); q(f"v_add_f32 v{acc+2}, v{acc+2}, v{acc+3}")
            q(f"v_cvt_pk_bf16_f32 v{T0}, v{T0}, v{acc}"); q(f"v_cvt_pk_bf16_f32 v{T1}, v{T1}, v{acc+2}")
            q(f"v_and_or_b32 v{T0}, v{T0}, -2, {sTAG}")
            q(f"buffer_store_dwordx2 {vr(T0,2)}, {vL8}, {S_WS}, {[sP0,sP1,sP2][j//2]} offen offset:{(j&1)*2048} {st}",f"p{j}")
        if t<7: q(f"v_mov_b64 {vr(acc,2)}, 0"); q(f"v_mov_b64 {vr(acc+2,2)}, 0")
    def flush(k,upto=99):
        while tq and k>0 and tq[0][0]<=upto:
            t,x,tag=tq.pop(0)
            if not(("v" in OPT["ab"] and tag is None) or ("s" in OPT["ab"] and tag)): e(x,tag)
            if tag is None: k-=1
        while tq and tq[0][2] is not None:
            t,x,tag=tq.pop(0)
            if "s" not in OPT["ab"]: e(x,tag)
    def red_loads():
        for m in range(4): e(f"buffer_load_dwordx4 {vr(24+4*m,4)}, {vRL}, {S_WS}, {sPR[m]} offen sc1",f"r{m}")
    ks=OPT["kvstride"]
    sal=[f"s_add_u32 {sSTEP}, {sSTEP}, 1",f"s_add_u32 {sVX}, {sVX}, {ks}"]
    if w==0: sal+=[f"s_add_u32 {sKX}, {sKX}, {ks}","s_mov_b32 m0, 0"]
    if w==3: sal+=[f"s_add_u32 {sKX2}, {sKX2}, {ks}",f"s_add_u32 {sKXN}, {sKXN}, {ks}",f"s_add_u32 {sVXN}, {sVXN}, {ks}"]
    for n in range(20):
        j,tt,ko=o_tile(n); t=n//2; key=("o",n)
        if ko==0: flush(99,t-3)
        if n<2: a.wait(lg=f"ao{ko}"); stamp(a,tim,f"_pb{n}")
        if key in TG and "g" not in OPT["ab"]: a.wait(vm=f"go{n}")
        if key in TL: a.wait(lg=f"lo{n}")
        sm(a,TA[t%3],AO[ko],key,oslot.get(n))
        for m in after.get(n,[]):
            if ("o",m) in TG: gload_tile(a,("o",m),oslot[m],f"go{m}")
            elif "l" not in OPT["ab"]: lload_tile(a,("o",m),oslot[m],f"lo{m}")
        if n==2: e("s_barrier")
        if n==8 and w==3 and OPT['pf'] and OPT['pfpos']=="out":
            e(f"buffer_load_dword {vRL}, {vRS}, {S_WS}, {sKXN} offen sc1","pf")
            e(f"buffer_load_dword {vRL}, {vRS}, {S_WS}, {sVXN} offen sc1","pf")
        if n in(9,10,15,18,19) and sal: e(sal.pop(0))
        if w==0 and n==OPT["rl"]: red_loads()
        if n in(5,13): stamp(a,tim,f"o{n}")
        if n>=2: stamp(a,tim,f"_o{n}")
        if ko==1 and t>=1: finish(t-1)
        flush(3)
    if w<3: e(f"ds_read_b128 v[40:43], {vL16} offset:{L_SEL}","sel")
    flush(99)
    finish(9); flush(99)
    assert not sal
    stamp(a,tim,"out")
    def slots():
        e(f"s_add_u32 {sMR}, {sMW}, {4096*w}")
        for r in (sMW,sMZ):
            e(f"s_add_u32 {r}, {r}, 16384"); e(f"s_and_b32 {r}, {r}, 0xffff"); e(f"s_or_b32 {r}, {r}, {M_OFF}")
        e(f"s_xor_b32 {sTAG}, {sTAG}, 1"); e(f"s_not_b32 {sTAGM}, {sTAGM}")
    if w<3:
        a.wait(lg="all")
        if w==0 and OPT["rl"]>19: delay(a,OPT['d0']); red_loads()
        if w==1: delay(a,OPT['d1']); red_loads()
        if w==2:
            delay(a,OPT['d1b'])
            e(f"s_cmp_ge_u32 {sUNIT}, 80"); e(f"s_cbranch_scc1 {L('nored')}")
            red_loads()
        prestage()
        stamp(a,tim,"rlis")
        a.label(L("red"))
        for m in range(4):
            a.wait(vm=f"r{m}")
            if m==3:
                e(f"v_bitop3_b32 v{T1}, v32, v36, {sTAGM} bitop3:0x7e")
                e(f"v_bitop3_b32 v{T0}, v{T0}, v{T1}, 1 bitop3:0xa8")
                e(f"v_cmp_ne_u32 vcc, 0, v{T0}")
            mf(44,40,24+4*m,m==0)
            if m==1: e(f"v_bitop3_b32 v{T0}, v24, v28, {sTAGM} bitop3:0x7e")
        e(f"s_cmp_eq_u32 {sSTEP}, {NSEG-1}")
        chk("redo")
        for i in range(4): e(f"v_add_f32_dpp v{44+i}, v{44+i}, v{44+i} row_ror:8 row_mask:0xf bank_mask:0xf")
        e(f"v_cvt_pk_bf16_f32 v{T0}, v44, v45"); e(f"v_cvt_pk_bf16_f32 v{T1}, v46, v47")
        e(f"v_min_u32 v{T0}, {sFE}, v{T0}")
        e(f"s_cbranch_scc1 {L('last')}")
        e(f"buffer_store_dwordx2 {vr(T0,2)}, {vRS}, {S_WS}, {sMW} offen {st}","rs")
        e(f"v_mov_b32 v44, -1")
        e(f"buffer_store_dword v44, {vRS}, {S_WS}, {sMZ} offen {st}","mz")
        stamp(a,tim,"red")
        slots()
        e("s_waitcnt vmcnt(2)"); a.vm=a.vm[-2:]
        if w==2: a.label(L("nored2"))
        zero_acc()
    if w==0:
        delay(a,OPT['d2'])
        stamp(a,tim,"mis")
        e(f"v_lshlrev_b32 v12, 2, {vL16}")
        def rnd(r):
            e(f"buffer_load_dword v{r}, v12, {S_WS}, {sMR} offen sc1"); dma(a,4,sMR,None)
        rnd(T0)
        if OPT["pipe"]:
            delay(a,OPT["d4"])
            a.label(L("m0"))
            rnd(T1)
            e("s_waitcnt vmcnt(9)"); e(f"v_cmp_eq_u32 vcc, -1, v{T0}"); chk("m0b")
            a.label(L("mok"))
            e("s_waitcnt vmcnt(5)"); a.vm=[None]*5
        else:
            a.label(L("m0"))
            e("s_waitcnt vmcnt(4)"); e(f"v_cmp_eq_u32 vcc, -1, v{T0}"); chk("m0b")
            e("s_waitcnt vmcnt(0)"); a.vm=[]
    if w==3:
        delay(a,OPT['d3'])
        prestage()
        if OPT["pub"]:
            e(f"s_add_u32 {sT0}, {sMR}, {sPC}"); e(f"s_sub_u32 {sT0}, {sT0}, {4096*3}")
            e(f"buffer_load_dwordx2 v[4:5], {vL8}, {S_WS}, {sT0} offen sc1","pl")
            e(f"s_add_u32 {sMP}, {sMP}, 10240"); e(f"s_add_u32 s10, {sMP}, 320")
        e(f"s_cmp_eq_u32 {sSTEP}, {NSEG-1}"); e(f"s_cbranch_scc1 {L('last')}")
        slots(); zero_acc()
        a.wait(vm="all")
    stamp(a,tim,"pre")
    assert OPT["ab"] or (a.vm[len(a.vm)-len(top_vm):]==top_vm and (top_vm or not a.vm)),(w,a.vm)
    if tim==3:
        e(f"s_cmp_eq_u32 {sSTEP}, 40"); e(f"s_cbranch_scc0 HZ_{L('top')}")
        n=len(STAMPS); e(f"s_memrealtime s[{54+2*n}:{55+2*n}]"); e(f"s_memtime s[{56+2*n}:{57+2*n}]")
        e("s_waitcnt lgkmcnt(0)")
        e(f"s_lshl_b32 {sT0}, {sH}, 2"); e(f"s_add_u32 {sT0}, {sT0}, {w}"); e(f"s_lshl_b32 {sT0}, {sT0}, 7"); e(f"s_add_u32 {sT0}, {sT0}, {DBG_OFF+65536}")
        e(f"v_mov_b32 v{T1}, 0"); e("s_mov_b64 exec, 1")
        for i in range(len(STAMPS)+2):
            e(f"v_mov_b32 v{T0}, s{54+2*i}"); e(f"buffer_store_dword v{T0}, v{T1}, {S_WS}, {sT0} offen offset:{4*i}")
        e("s_waitcnt vmcnt(0)"); e("s_mov_b64 exec, -1")
    e(f"s_branch HZ_{L('top')}")
    if w<3:
        a.label(L("redo"))
        if tim in(1,2): e("s_add_u32 s85, s85, 1")
        e("s_mov_b64 exec, vcc"); e("s_nop 4")
        red_loads()
        a.label(L("redo2"))
        red_loads(); spin()
        e("s_waitcnt vmcnt(4)")
        e(f"v_bitop3_b32 v{T0}, v24, v28, {sTAGM} bitop3:0x7e"); e(f"v_bitop3_b32 v{T1}, v32, v36, {sTAGM} bitop3:0x7e")
        e(f"v_bitop3_b32 v{T0}, v{T0}, v{T1}, 1 bitop3:0xa8"); e(f"v_cmp_ne_u32 vcc, 0, v{T0}")
        e(f"s_cbranch_vccnz {L('redo2')}")
        e("s_mov_b64 exec, -1"); e("s_nop 3")
        e(f"s_branch {L('red')}")
        a.label(L("last"))
        e(f"s_mov_b32 {sT0}, {MEMP_OFF+63*10240}")
        e(f"buffer_store_dwordx2 {vr(T0,2)}, {vRS}, {S_WS}, {sT0} offen sc1")
        e(f"s_branch {L('done')}")
    if w==2:
        a.label(L("nored"))
        prestage()
        e(f"s_cmp_eq_u32 {sSTEP}, {NSEG-1}"); e(f"s_cbranch_scc1 {L('done')}")
        slots(); e("s_waitcnt vmcnt(0)")
        e(f"s_branch {L('nored2')}")
    if w==3:
        a.label(L("last"))
        e("s_waitcnt vmcnt(0)")
        if OPT["pub"]: e(f"buffer_store_dwordx2 v[4:5], {vL8}, {S_T}, {sMP} offen sc1")
        e(f"s_branch {L('done')}")
    if w==0:
        a.label(L("m0b"))
        spin("s86")
        rnd(T0)
        if OPT["pipe"]:
            e("s_waitcnt vmcnt(9)"); e(f"v_cmp_eq_u32 vcc, -1, v{T1}"); e(f"s_cbranch_vccz {L('m0c')}")
            spin("s86")
        e(f"s_branch {L('m0')}")
        if OPT["pipe"]:
            a.label(L("m0c")); e("s_waitcnt vmcnt(4)"); e(f"s_branch {L('mok')}")
    if w in(1,2):
        a.label(L("mr"))
        spin("s86")
        mfetch(); e(f"s_waitcnt vmcnt({nd})")
        e(f"v_cmp_eq_u32 vcc, -1, v{T1}"); e(f"s_cbranch_vccnz {L('mr')}")
        e("s_waitcnt vmcnt(0)")
        e(f"s_branch {L('mok')}")
    a.label(L("done"))
    a.vm=[]; a.lg=[]
    e("s_waitcnt vmcnt(0) lgkmcnt(0)")
    if tim in(1,2):
        e("s_memtime s[70:71]"); e("s_waitcnt lgkmcnt(0)"); e("s_sub_u32 s83, s70, s74")
        for i in range(11): e(f"v_mov_b32 v{12+i}, s{76+i}")
        e(f"s_lshl_b32 {sT0}, {sH}, 2"); e(f"s_add_u32 {sT0}, {sT0}, {w}"); e(f"s_lshl_b32 {sT0}, {sT0}, 6"); e(f"s_add_u32 {sT0}, {sT0}, {DBG_OFF}")
        e("v_mov_b32 v10, 0"); e("s_mov_b64 exec, 1")
        e("s_memrealtime s[68:69]"); e("s_waitcnt lgkmcnt(0)")
        for i,r in enumerate((90,92,94,66,68)): e(f"v_mov_b32 v{23+i}, s{r}")
        for i in range(4): e(f"buffer_store_dwordx4 {vr(12+4*i,4)}, v10, {S_WS}, {sT0} offen offset:{16*i}")
        e("s_waitcnt vmcnt(0)")
    e("s_endpgm")
```

```python
S=2048; D=640; H=32; DH=128; NSEG=64; F=1728
FLAG_OFF = 0
KVCNT = 0; QHCNT = 4096; OCNT = 8192
M_OFF    = 0x10000
P_OFF    = 0x20000
SW_OFF   = 0x80000
MEMP_OFF = 0x404000
XK_OFF   = 0x1400000
XV_OFF   = 0x2400000
XQ_OFF   = 0x3400000
O_OFF    = 0x4400000
HH_OFF   = 0x5400000
DBG_OFF  = 0x6000000
WS_SIZE  = 0x10000000
A_X=0; A_MEM0=8; A_WQ=16; A_WK=24; A_WV=32; A_WO=40; A_SEG=48; B_X=56; B_W1=64; B_B1=72; B_W2=80; B_B2=88; D_OUT=96; D_DBG=104; D_WS=112
```

```python
from asmlib import *
from layout import *
import chain as C
import struct, math
S_WS=C.S_WS; sDBG=C.sDBG
sW="s13"; sROW="s64"; sRANK="s65"
f32=lambda x: "0x%08x"%struct.unpack("<I",struct.pack("<f",x))[0]
OPT={"tim":0}

def rt(a,i):
    if OPT["tim"]: a.e(f"s_memrealtime s[{70+2*i}:{71+2*i}]")

def spin_wait(a,name,load,cmp_fail,sCNT="s32",sleep=1):
    e=a.e
    a.label(name)
    load()
    e(f"s_add_u32 {sCNT}, {sCNT}, 1"); e(f"s_cmp_gt_u32 {sCNT}, 0x40000"); e("s_cbranch_scc1 L_abort")
    e("s_waitcnt vmcnt(0)"); a.vm=[]
    cmp_fail()
    e(f"s_cbranch_vccz {name}_ok")
    if sleep: e(f"s_sleep {sleep}")
    e(f"s_branch {name}")
    a.label(name+"_ok")

XA=0
ACC=160
TA=224
vLN="v232"; vL16="v233"; vDA="v234"; vDB="v235"; vVO="v236"; TMP=240
S_W="s[8:11]"; S_N="s[16:19]"; S_X="s[20:23]"
sRB="s24"; sCJ="s25"; sSEG="s26"; sT="s27"; sOUT="s28"; sOUT2="s29"; sSTR="s30"; sOFF="s31"; sCNT="s32"; sOFN="s33"; sA="s34"; sB="s35"; sKIND="s36"; sMIX="s37"
DEPTH=6
def xa(tt,k): return XA+80*tt+4*k
def acc(tt,t): return ACC+32*tt+4*t

def layernorm(a):
    e=a.e; one=TMP; S=[TMP+4,TMP+8]
    for i in range(4): e(f"v_mov_b32 v{one+i}, 0x3f803f80")
    e(f"v_and_b32 v{TMP+12}, 15, {vLN}"); e(f"v_lshrrev_b32 v{TMP+13}, 2, v{TMP+12}"); e(f"v_lshl_add_u32 v{TMP+13}, v{TMP+13}, 4, v{TMP+12}")
    e(f"v_lshlrev_b32 v{TMP+13}, 2, v{TMP+13}"); e(f"v_and_b32 v{TMP+12}, 3, v{TMP+12}")
    e(f"s_mov_b32 {sMIX}, 0xffff0000")
    for tt in range(2):
        for k in range(20):
            e(f"v_mfma_f32_16x16x32_bf16 {vr(S[0],4)}, {vr(one,4)}, {vr(xa(tt,k),4)}, {'0' if k==0 else vr(S[0],4)}")
            e(f"v_mfma_f32_16x16x32_bf16 {vr(S[1],4)}, {vr(xa(tt,k),4)}, {vr(xa(tt,k),4)}, {'0' if k==0 else vr(S[1],4)}")
        q=S[1]
        for i in range(1,4):
            e(f"v_cmp_eq_u32 vcc, {i}, v{TMP+12}"); e(f"v_cndmask_b32 v{q}, v{q}, v{q+i}, vcc")
        e(f"ds_bpermute_b32 v{q}, v{TMP+13}, v{q}","bp")
        m=S[0]
        e(f"v_mul_f32 v{m}, {f32(1/640)}, v{m}")
        a.wait(lg="bp")
        e(f"v_mul_f32 v{q}, {f32(1/640)}, v{q}"); e(f"v_fma_f32 v{q}, -v{m}, v{m}, v{q}"); e(f"v_max_f32 v{q}, 0, v{q}")
        rb=lambda r: (e(f"v_cvt_pk_bf16_f32 v{r}, v{r}, v{r}"), e(f"v_and_b32 v{r}, {sMIX}, v{r}"))
        rb(m); rb(q); e(f"v_add_f32 v{q}, {f32(1e-5)}, v{q}"); rb(q); e(f"v_sqrt_f32 v{q}, v{q}"); rb(q)
        e(f"v_rcp_f32 v{q}, v{q}"); e(f"v_mul_f32 v{m}, v{m}, v{q}")
        for r in range(xa(tt,0),xa(tt,0)+80):
            t=TMP+14
            e(f"v_lshlrev_b32 v{t}, 16, v{r}"); e(f"v_and_b32 v{t+1}, {sMIX}, v{r}")
            e(f"v_pk_fma_f32 {vr(t,2)}, {vr(t,2)}, {vr(q,2)}, {vr(m,2)} op_sel_hi:[1,0,0] neg_lo:[0,0,1] neg_hi:[0,0,1]")
            e(f"v_cvt_pk_bf16_f32 v{r}, v{t}, v{t+1}")

def dma_addr(a,stride):
    e=a.e; t=TMP
    e(f"v_lshrrev_b32 v{t}, 4, {vLN}"); e(f"v_lshlrev_b32 v{t+1}, 1, v{t}"); e(f"v_and_b32 v{t+2}, 15, {vLN}"); e(f"v_xor_b32 v{t+1}, v{t+1}, v{t+2}")
    e(f"s_lshl_b32 {sA}, {sW}, 4"); e(f"v_add_u32 v{t}, {sA}, v{t}"); e(f"v_mul_u32_u24 v{t}, {stride}, v{t}")
    e(f"v_lshl_add_u32 {vDA}, v{t+1}, 4, v{t}"); e(f"v_xor_b32 v{t+1}, 8, v{t+1}"); e(f"v_lshl_add_u32 {vDB}, v{t+1}, 4, v{t}")

def stage_dma(a,slot,srd,soff,tag):
    e=a.e
    out=[]
    for i in range(4):
        out.append([f"s_add_u32 m0, {sB}, {slot*16384+i*1024}",
                    (f"buffer_load_dwordx4 {vDA if i<2 else vDB}, {srd}, {soff} offen lds",tag),
                    f"s_add_u32 {soff}, {soff}, {sSTR}" if i<3 else f"s_mul_i32 {sA}, {sSTR}, 13",
                    ])
    out[-1].append(f"s_add_u32 {soff}, {soff}, {sA}")
    return out

def unit_body(a,kind):
    e=a.e
    BF=[0,32]
    def reads(st,ks,buf):
        return [(f"ds_read_b64_tr_b16 {vr(buf+4*t+2*x,2,'a')}, v{TA+t} offset:{(st%4)*16384+ks*8192+x*1024}",f"b{st}{ks}{t}") for t in range(8) for x in range(2)]
    def mf(tt,t,k,buf):
        A,B=vr(buf+4*t,4,'a'),vr(xa(tt,k),4)
        if kind=="V": A,B=B,A
        e(f"v_mfma_f32_16x16x32_bf16 {vr(acc(tt,t),4)}, {A}, {B}, {'0' if k==0 else vr(acc(tt,t),4)}")
    a.vm=[f"d{s}" for s in range(DEPTH) for _ in range(4)]
    a.wait(vm="d0"); e("s_barrier")
    for x,tag in reads(0,0,BF[0]): e(x,tag)
    for st in range(10):
        nx=st+DEPTH
        fill=stage_dma(a,nx%10,S_W if nx<10 else S_N,sOFF if nx<10 else sOFN,f"d{nx}")
        for ks in range(2):
            k=2*st+ks; buf=BF[ks]; q=[]
            if ks==0: q=reads(st,1,BF[1])
            elif st<9:
                a.wait(vm=f"d{st+1}"); e("s_barrier")
                if (st+1)%4==0:
                    for t in range(8): e(f"v_add_u32 v{TA+t}, 0x10000, v{TA+t}")
                q=reads(st+1,0,BF[0])
            for t in range(8):
                a.wait(lg=f"b{st}{ks}{t}")
                for tt in range(2):
                    mf(tt,t,k,buf)
                    if q: x,tag=q.pop(0); e(x,tag)
                if ks==1 and t%2==0 and fill:
                    for x in fill.pop(0):
                        if isinstance(x,tuple): e(x[0],x[1])
                        else: e(x)
    for t in range(8): e(f"v_subrev_u32 v{TA+t}, 0x20000, v{TA+t}")

def signal(a,off_sgpr,name):
    e=a.e
    e("s_waitcnt vmcnt(0)"); e("s_barrier")
    e(f"s_cmp_eq_u32 {sW}, 0"); e(f"s_cbranch_scc0 {name}_x")
    e("s_mov_b64 exec, 1")
    e(f"v_mov_b32 v{TMP}, 0"); e(f"v_mov_b32 v{TMP+1}, 1")
    e(f"buffer_atomic_add v{TMP+1}, v{TMP}, {S_WS}, {off_sgpr} offen")
    e("s_mov_b64 exec, -1"); e("s_nop 3")
    a.label(name+"_x")

def phase1(a):
    e=a.e
    e(f"s_load_dwordx2 s[20:21], s[0:1], {A_X}")
    e(f"s_load_dwordx2 s[40:41], s[0:1], {A_WQ}"); e(f"s_load_dwordx2 s[42:43], s[0:1], {A_WK}"); e(f"s_load_dwordx2 s[44:45], s[0:1], {A_WV}")
    e(f"s_load_dwordx2 s[46:47], s[0:1], {B_W1}"); e(f"s_load_dwordx2 s[48:49], s[0:1], {B_B1}")
    e(f"v_mov_b32 {vLN}, v0"); e(f"v_lshlrev_b32 {vL16}, 4, v0")
    e(f"s_lshr_b32 {sRB}, {sRANK}, 1"); e(f"s_sub_u32 {sCJ}, {sROW}, 1"); e(f"s_lshl_b32 {sCJ}, {sCJ}, 1"); e(f"s_and_b32 {sA}, {sRANK}, 1"); e(f"s_add_u32 {sCJ}, {sCJ}, {sA}")
    e(f"s_lshl_b32 {sSEG}, {sRB}, 2"); e(f"s_add_u32 {sSEG}, {sSEG}, {sW}")
    e(f"s_mov_b32 {sCNT}, 0")
    e(f"s_mov_b32 s22, {S*D*2}"); e("s_mov_b32 s23, 0x20000")
    e(f"s_mov_b32 s10, {D*8192}"); e("s_mov_b32 s11, 0x20000"); e(f"s_mov_b32 s18, {D*8192}"); e("s_mov_b32 s19, 0x20000")
    t=TMP
    e(f"v_and_b32 v{t}, 15, {vLN}"); e(f"v_mul_u32_u24 v{t}, 1280, v{t}"); e(f"v_lshrrev_b32 v{t+1}, 4, {vLN}"); e(f"v_lshl_add_u32 v{t}, v{t+1}, 4, v{t}")
    e(f"s_mul_i32 {sA}, {sSEG}, {32*1280}"); e(f"s_add_u32 {sB}, {sA}, {16*1280}")
    e("s_waitcnt lgkmcnt(0)")
    for tt in range(2):
        for k in range(20): e(f"buffer_load_dwordx4 {vr(xa(tt,k),4)}, v{t}, {S_X}, {sB if tt else sA} offen offset:{64*k}","x")
    dma_addr(a,8192)
    e(f"s_mov_b32 {sT}, {sCJ}"); e("s_mov_b32 s8, s42"); e("s_mov_b32 s9, s43")
    e(f"s_lshl_b32 {sOFF}, {sCJ}, 8"); e(f"s_mov_b32 {sSTR}, {4*8192}"); e(f"s_lshl_b32 {sB}, {sW}, 12")
    for st in range(DEPTH):
        for grp in stage_dma(a,st,S_W,sOFF,f"d{st}"):
            for x in grp:
                if isinstance(x,tuple): e(x[0],x[1])
                else: e(x)
    e(f"s_mul_i32 {sA}, {sCJ}, 3"); e(f"s_add_u32 {sA}, {sA}, {sW}"); e(f"s_cmp_lt_u32 {sA}, 40"); e(f"s_cselect_b32 {sKIND}, 1, 0")
    e(f"s_cmp_lt_u32 {sW}, 3"); e(f"s_cselect_b32 {sKIND}, {sKIND}, 0")
    e(f"s_lshl_b32 {sA}, {sA}, 10"); e(f"s_mul_i32 {sOUT}, {sRB}, 40960"); e(f"s_add_u32 {sA}, {sA}, {sOUT}"); e(f"s_add_u32 {sA}, {sA}, {MEMP_OFF}")
    e(f"s_cmp_eq_u32 {sKIND}, 1"); e(f"s_cselect_b32 {sA}, {sA}, 0x7ff00000")
    e(f"v_mov_b64 {vr(ACC,2)}, -1"); e(f"v_mov_b64 {vr(ACC+2,2)}, -1")
    e(f"buffer_store_dwordx4 {vr(ACC,4)}, {vL16}, {S_WS}, {sA} offen sc1","sent")
    e(f"v_bfe_u32 v{t}, {vLN}, 2, 2"); e(f"v_bfe_u32 v{t+1}, {vLN}, 4, 1"); e(f"v_lshl_add_u32 v{t+1}, v{t+1}, 2, v{t}")
    e(f"v_lshrrev_b32 v{t+2}, 4, {vLN}"); e(f"v_lshl_add_u32 v{t+2}, v{t+2}, 3, v{t}"); e(f"v_lshlrev_b32 v{t+2}, 8, v{t+2}")
    e(f"v_and_b32 v{t+3}, 3, {vLN}"); e(f"v_lshl_add_u32 v{t+2}, v{t+3}, 3, v{t+2}")
    for k in range(8):
        e(f"v_xor_b32 v{t+3}, {k}, v{t+1}"); e(f"v_lshl_add_u32 v{TA+k}, v{t+3}, 5, v{t+2}")
    e(f"v_and_b32 v{t}, 1, {vLN}"); e(f"v_lshlrev_b32 {vVO}, 10, v{t}"); e(f"v_lshrrev_b32 v{t}, 4, {vLN}"); e(f"v_lshl_add_u32 {vVO}, v{t}, 8, {vVO}")
    e(f"v_bfe_u32 v{t}, {vLN}, 1, 3"); e(f"v_lshl_add_u32 {vVO}, v{t}, 4, {vVO}")
    a.wait(vm="x")
    rt(a,0)
    e(f"s_mov_b32 {sKIND}, 0")
    a.label("W_ln")
    layernorm(a)
    e(f"s_cmp_eq_u32 {sKIND}, 3"); e("s_cbranch_scc1 W_bodyK")
    rt(a,1)
    a.label("W_next")
    e(f"s_add_u32 {sA}, {sT}, 14"); e(f"s_and_b32 {sOFN}, {sA}, 31"); e(f"s_lshl_b32 {sOFN}, {sOFN}, 8")
    e(f"s_cmp_lt_u32 {sA}, 32"); e("s_cselect_b32 s16, s42, s44"); e("s_cselect_b32 s17, s43, s45")
    e(f"s_cmp_lt_u32 {sA}, 64"); e("s_cselect_b32 s16, s16, s40"); e("s_cselect_b32 s17, s17, s41")
    e(f"s_cmp_lt_u32 {sA}, 96"); e(f"s_cselect_b32 s18, {D*8192}, 0")
    e(f"s_lshr_b32 {sKIND}, {sT}, 5")
    e(f"s_lshl_b32 {sOUT}, {sSEG}, 5"); e(f"s_and_b32 {sA}, {sT}, 31"); e(f"s_add_u32 {sOUT}, {sOUT}, {sA}"); e(f"s_lshl_b32 {sOUT}, {sOUT}, 13")
    e(f"s_lshl_b32 {sA}, {sKIND}, 24"); e(f"s_add_u32 {sOUT}, {sOUT}, {sA}"); e(f"s_add_u32 {sOUT}, {sOUT}, {XK_OFF}"); e(f"s_add_u32 {sOUT2}, {sOUT}, 4096")
    e(f"s_cmp_eq_u32 {sKIND}, 1"); e("s_cbranch_scc1 W_bodyV")
    a.label("W_bodyK")
    unit_body(a,"K")
    e(f"s_cmp_eq_u32 {sKIND}, 3"); e("s_cbranch_scc1 W_epiH")
    for tt in range(2):
        for ke in range(4):
            t0,t1=acc(tt,2*ke),acc(tt,2*ke+1); o=TMP+4*(ke&1)
            for i,(x,y) in enumerate(((t0,t0+2),(t1,t1+2),(t0+1,t0+3),(t1+1,t1+3))): e(f"v_cvt_pk_bf16_f32 v{o+i}, v{x}, v{y}")
            e(f"buffer_store_dwordx4 {vr(o,4)}, {vL16}, {S_WS}, {sOUT2 if tt else sOUT} offen offset:{1024*ke} sc1","st")
    e("s_branch W_done")
    a.label("W_bodyV")
    unit_body(a,"V")
    for tl in range(8):
        t0,t1=acc(0,tl),acc(1,tl); o=TMP+4*(tl&1)
        for i,(x,y) in enumerate(((t0,t0+1),(t0+2,t0+3),(t1,t1+1),(t1+2,t1+3))): e(f"v_cvt_pk_bf16_f32 v{o+i}, v{x}, v{y}")
        e(f"buffer_store_dwordx4 {vr(o,4)}, {vVO}, {S_WS}, {sOUT2 if tl>=4 else sOUT} offen offset:{((tl>>1)&1)*2048+(tl&1)*128} sc1","st")
    a.label("W_done")
    e("s_mov_b32 s8, s16"); e("s_mov_b32 s9, s17"); e(f"s_mov_b32 {sOFF}, {sOFN}")
    e(f"s_add_u32 {sA}, {sT}, 14"); e(f"s_cmp_lt_u32 {sT}, 64"); e(f"s_cselect_b32 {sKIND}, 1, 0"); e(f"s_cmp_ge_u32 {sA}, 64"); e(f"s_cselect_b32 {sKIND}, {sKIND}, 0")
    e(f"s_mov_b32 {sT}, {sA}")
    e(f"s_cmp_eq_u32 {sKIND}, 1"); e("s_cbranch_scc0 W_nosig")
    spin_wait(a,"W_zero",lambda:(e(f"v_mov_b32 v{TMP}, 12"),e(f"global_load_dword v{TMP+1}, v{TMP}, {sDBG} sc1")),lambda:e(f"v_cmp_gt_u32 vcc, 32, v{TMP+1}"))
    e(f"s_lshl_b32 {sA}, {sRB}, 8"); e(f"s_add_u32 {sA}, {sA}, {KVCNT}")
    signal(a,sA,"W_sigkv")
    rt(a,2)
    a.label("W_nosig")
    e(f"s_cmp_lt_u32 {sT}, 96"); e("s_cbranch_scc1 W_next")
    e("s_waitcnt vmcnt(0)"); e("s_barrier")
    dma_addr(a,F*2)
    e("s_mov_b32 s8, s46"); e("s_mov_b32 s9, s47"); e(f"s_mov_b32 s10, {D*F*2}")
    e(f"s_lshl_b32 {sOFF}, {sCJ}, 8"); e(f"s_mov_b32 {sSTR}, {4*F*2}")
    for st in range(DEPTH):
        for grp in stage_dma(a,st,S_W,sOFF,f"d{st}"):
            for x in grp:
                if isinstance(x,tuple): e(x[0],x[1])
                else: e(x)
    e(f"s_mov_b32 {sKIND}, 3"); e("s_branch W_ln")
    a.label("W_epiH")
    e("s_mov_b32 s20, s48"); e("s_mov_b32 s21, s49"); e(f"s_mov_b32 s22, {F*2}")
    e(f"v_lshrrev_b32 v{TMP}, 4, {vLN}"); e(f"v_lshlrev_b32 v{TMP}, 3, v{TMP}"); e(f"s_lshl_b32 {sA}, {sCJ}, 8")
    for tl in range(8): e(f"buffer_load_dwordx2 {vr(XA+2*tl,2)}, v{TMP}, {S_X}, {sA} offen offset:{32*tl}","b")
    e(f"s_lshl_b32 {sOUT}, {sSEG}, 1"); e(f"s_mul_i32 {sOUT}, {sOUT}, {54*1024}"); e(f"s_lshl_b32 {sA}, {sCJ}, 12"); e(f"s_add_u32 {sOUT}, {sOUT}, {sA}")
    e(f"s_add_u32 {sOUT}, {sOUT}, {HH_OFF}"); e(f"s_add_u32 {sOUT2}, {sOUT}, {54*1024}")
    k0=math.sqrt(2/math.pi); l2e=math.log2(math.e)
    e(f"s_mov_b32 {sA}, {f32(-2*k0*0.044715*l2e)}"); e(f"s_mov_b32 {sB}, {f32(-2*k0*l2e)}")
    e("s_waitcnt vmcnt(0)"); a.vm=[]
    B=32
    for tl in range(8):
        e(f"v_lshlrev_b32 v{B+4*tl}, 16, v{XA+2*tl}"); e(f"v_and_b32 v{B+4*tl+1}, {sMIX}, v{XA+2*tl}")
        e(f"v_lshlrev_b32 v{B+4*tl+2}, 16, v{XA+2*tl+1}"); e(f"v_and_b32 v{B+4*tl+3}, {sMIX}, v{XA+2*tl+1}")
    e(f"v_mov_b32 v16, {sB}")
    for tt in range(2):
        for ke in range(4):
            for tl in (2*ke,2*ke+1):
                for i in range(4):
                    z=acc(tt,tl)+i; u=20+i
                    e(f"v_add_f32 v{z}, v{z}, v{B+4*tl+i}")
                    e(f"v_mul_f32 v{u}, v{z}, v{z}"); e(f"v_fma_f32 v{u}, v{u}, {sA}, v16"); e(f"v_mul_f32 v{u}, v{u}, v{z}")
                for i in range(4): e(f"v_exp_f32 v{20+i}, v{20+i}")
                for i in range(4): e(f"v_add_f32 v{20+i}, 1.0, v{20+i}")
                for i in range(4): e(f"v_rcp_f32 v{20+i}, v{20+i}")
                for i in range(4): e(f"v_mul_f32 v{acc(tt,tl)+i}, v{acc(tt,tl)+i}, v{20+i}")
            t0,t1=acc(tt,2*ke),acc(tt,2*ke+1); o=TMP+4*(ke&1)
            for i,(x,y) in enumerate(((t0,t0+1),(t0+2,t0+3),(t1,t1+1),(t1+2,t1+3))): e(f"v_cvt_pk_bf16_f32 v{o+i}, v{x}, v{y}")
            if ke==2:
                e(f"s_cmp_eq_u32 {sCJ}, 13"); e(f"s_cselect_b32 {sT}, 0x7ff00000, {sOUT2 if tt else sOUT}")
            e(f"buffer_store_dwordx4 {vr(o,4)}, {vL16}, {S_WS}, {sT if ke>=2 else (sOUT2 if tt else sOUT)} offen offset:{1024*ke} sc1","st")
    e(f"s_lshl_b32 {sA}, {sRB}, 8"); e(f"s_add_u32 {sA}, {sA}, {QHCNT}")
    signal(a,sA,"W_sigqh")
    rt(a,3)
    a.vm=[]; a.lg=[]

def load_pairs(a,groups,LB,nreg,lock=True):
    e=a.e; sT0="s34"
    def issue(i):
        setup,loads,_,_=groups[i]; lb=LB[i%len(LB)]
        for x in setup: e(x)
        for j,(vo,off) in enumerate(loads):
            e(f"s_mov_b32 {sT0}, {off}"); e(f"buffer_load_dword v{lb+j}, {vo}, s[8:11], {sT0} offen",f"w{i}")
    def process(i):
        _,loads,dlo,dhi=groups[i]; lb=LB[i%len(LB)]
        a.wait(vm=f"w{i}")
        if lock: e("s_barrier")
        for dst,sel in ((dlo,"s38"),(dhi,"s39")):
            for R,(k,r) in enumerate(dst):
                if k=="v": e(f"v_perm_b32 v{r}, v{lb+2*R+1}, v{lb+2*R}, {sel}")
                else:
                    e(f"v_perm_b32 v{4+(R&3)}, v{lb+2*R+1}, v{lb+2*R}, {sel}"); e(f"v_accvgpr_write_b32 a{r}, v{4+(R&3)}")
    e("s_mov_b32 s38, 0x05040100"); e("s_mov_b32 s39, 0x07060302")
    n=len(LB)-1
    for i in range(n): issue(i)
    for i in range(len(groups)):
        if i+n<len(groups): issue(i+n)
        process(i)

def stageA(a):
    e=a.e
    sH="s24"; sS="s25"; sT0="s34"; sT1="s35"; sQ="s26"; sK="s27"; sV="s28"; sM="s29"; sO="s30"; sOC="s31"; sQ2="s36"; sK2="s37"
    sCC="s[96:97]"; sC="s96"
    e(f"s_and_b32 {sH}, s33, 31"); e(f"s_lshr_b32 {sS}, s33, 5")
    e(f"v_mov_b32 v15, {vLN}")
    e("v_lshrrev_b32 v4, 5, v15"); e("v_lshlrev_b32 v4, 4, v4"); e("v_bfe_u32 v5, v15, 4, 1"); e("v_lshl_add_u32 v4, v5, 2, v4")
    e("v_and_b32 v5, 15, v15"); e("v_lshlrev_b32 v5, 2, v5")
    e(f"s_lshl_b32 {sT0}, {sH}, 8"); e(f"s_lshl_b32 {sT1}, {sW}, 6"); e(f"s_add_u32 {sT0}, {sT0}, {sT1}")
    e("v_lshl_add_u32 v1, v4, 13, v5"); e(f"v_add_u32 v1, {sT0}, v1")
    e(f"s_mov_b32 s10, {D*8192}")
    place=lambda i: ("a",8*i) if i<32 else ("v",192+8*(i-32))
    T={}
    groups=[]
    for m,(lo,hi) in (("k",("s42","s43")),("v",("s44","s45"))):
        for k in range(10):
            loads=[("v1",(64*k+32*(R>>2)+8*(R&1)+2*((R>>1)&1)+x)*8192) for R in range(8) for x in range(2)]
            d=[]
            for tau in range(2):
                T[(m,k,tau)]=p=place(len(T)); d.append([(p[0],p[1]+R) for R in range(8)])
            groups.append(([f"s_mov_b32 s8, {lo}",f"s_mov_b32 s9, {hi}"] if k==0 else [],loads,d[0],d[1]))
    load_pairs(a,groups,[16,32,48],8)
    vL16="v0"; vA="v1"; vIDX="v2"; vXW="v6"; vXR="v7"; vML="v8"; vML3="v9"; vDG="v3"
    e("v_lshlrev_b32 v0, 4, v15")
    e("v_lshrrev_b32 v12, 5, v15"); e("v_lshlrev_b32 v1, 9, v12"); e("v_bfe_u32 v12, v15, 1, 3"); e("v_lshl_add_u32 v1, v12, 6, v1")
    e("v_bfe_u32 v12, v15, 4, 1"); e("v_lshl_add_u32 v1, v12, 5, v1"); e("v_and_b32 v12, 1, v15"); e("v_lshl_add_u32 v1, v12, 4, v1")
    e("v_mov_b32 v13, 0xaaaa"); e("v_mul_u32_u24 v2, v12, v13"); e("v_add_u32 v2, 0x4444, v2")
    LX=10240
    e("v_lshrrev_b32 v12, 5, v15"); e("v_lshlrev_b32 v12, 2, v12"); e("v_and_b32 v13, 15, v15"); e("v_xor_b32 v12, v12, v13")
    e("v_lshlrev_b32 v6, 3, v12"); e("v_lshrrev_b32 v12, 4, v15"); e("v_lshl_add_u32 v6, v12, 7, v6")
    e(f"s_lshl_b32 {sT0}, {sW}, 10"); e(f"s_add_u32 {sT0}, {sT0}, {LX}"); e(f"v_add_u32 v6, {sT0}, v6")
    e("v_bfe_u32 v12, v15, 3, 1"); e("v_lshlrev_b32 v7, 3, v12"); e("v_lshrrev_b32 v12, 4, v15"); e("v_lshl_add_u32 v7, v12, 1, v7")
    e("v_bfe_u32 v12, v15, 2, 1"); e("v_add_u32 v7, v7, v12"); e("v_bfe_u32 v12, v15, 1, 1"); e("v_lshlrev_b32 v12, 2, v12"); e("v_xor_b32 v7, v7, v12")
    e("v_lshlrev_b32 v7, 3, v7"); e("v_and_b32 v12, 3, v15"); e("v_lshl_add_u32 v7, v12, 7, v7"); e(f"v_add_u32 v7, {LX}, v7")
    e(f"s_mul_i32 {sT0}, {sW}, 2560"); e(f"v_add_u32 v8, {sT0}, v0")
    e("v_and_b32 v9, 0x1ff, v0"); e(f"v_add_u32 v9, {sT0}, v9")
    e("v_lshrrev_b32 v12, 4, v15"); e("v_lshlrev_b32 v12, 2, v12"); e("v_and_b32 v13, 15, v15"); e("v_sub_u32 v3, v13, v12")
    c=(128**-0.5)*math.log2(math.e)
    e(f"s_mov_b32 s96, {f32(c)}"); e(f"s_mov_b32 s97, {f32(c)}")
    e("s_mov_b32 s98, 0x3f803f80"); e("s_mov_b32 s99, 0x3f803f80"); e("s_mov_b32 s100, 0x3f003f00"); e("s_mov_b32 s101, 0x3f003f00")
    Q=16; K=48; VX=80; SX={(0,0):88,(1,0):92,(1,1):96}; SM=[100,104]; AB=108; KA=148; VA=156; X=164; P=[16,24]; O=32; ONE=48; SUM=52; PK=56
    rt(a,4)
    a.label("A_seg")
    e(f"s_lshr_b32 {sT0}, {sS}, 2"); e(f"s_lshl_b32 {sT0}, {sT0}, 8"); e(f"s_add_u32 {sT0}, {sT0}, {QHCNT}"); e("v_mov_b32 v10, 0")
    spin_wait(a,"A_qh",lambda:e(f"buffer_load_dword v11, v10, {S_WS}, {sT0} offen sc1"),lambda:e("v_cmp_gt_u32 vcc, 14, v11"),sleep=8)
    e(f"s_lshl_b32 {sT0}, {sS}, 5"); e(f"s_add_u32 {sT0}, {sT0}, {sH}"); e(f"s_lshl_b32 {sT0}, {sT0}, 13")
    e(f"s_add_u32 {sQ}, {sT0}, {XQ_OFF}"); e(f"s_add_u32 {sQ2}, {sQ}, 4096"); e(f"s_add_u32 {sK}, {sT0}, {XK_OFF}"); e(f"s_add_u32 {sK2}, {sK}, 4096")
    e(f"s_lshl_b32 {sT1}, {sW}, 11"); e(f"s_add_u32 {sV}, {sT0}, {sT1}"); e(f"s_add_u32 {sV}, {sV}, {XV_OFF}")
    for t in range(2):
        for ke in range(4):
            e(f"buffer_load_dwordx4 {vr(Q+16*t+4*ke,4)}, {vL16}, {S_WS}, {sQ2 if t else sQ} offen offset:{1024*ke} sc1",f"q{t}")
        for ke in range(4):
            e(f"buffer_load_dwordx4 {vr(K+16*t+4*ke,4)}, {vL16}, {S_WS}, {sK2 if t else sK} offen offset:{1024*ke} sc1",f"k{t}")
    for t in range(2): e(f"buffer_load_dwordx4 {vr(VX+4*t,4)}, {vL16}, {S_WS}, {sV} offen offset:{1024*t} sc1","vx")
    e(f"s_mul_i32 {sM}, {sS}, 10240"); e(f"s_add_u32 {sM}, {sM}, {MEMP_OFF}")
    e(f"s_lshl_b32 {sO}, {sS}, 6"); e(f"s_add_u32 {sO}, {sO}, {sH}"); e(f"s_lshl_b32 {sO}, {sO}, 2"); e(f"s_add_u32 {sO}, {sO}, {sW}"); e(f"s_lshl_b32 {sO}, {sO}, 10"); e(f"s_add_u32 {sO}, {sO}, {O_OFF}")
    e(f"s_lshl_b32 {sOC}, {sS}, 8"); e(f"s_add_u32 {sOC}, {sOC}, {OCNT}")
    def mf(d,A,B,first,op="v_mfma_f32_16x16x32_bf16",n=4):
        e(f"{op} {vr(d,4)}, {vr(A,n)}, {vr(B,n)}, {'0' if first else vr(d,4)}")
    for (qt,kt),d in SX.items():
        a.wait(vm=[f"q{qt}",f"k{kt}"])
        for ke in range(4): mf(d,K+16*kt+4*ke,Q+16*qt+4*ke,ke==0)
    for r in range(KA,KA+16,2): e(f"v_mov_b64 {vr(r,2)}, 0")
    e("v_mov_b32 v11, 0xff800000")
    for i in range(4):
        e(f"v_cmp_gt_i32 vcc, {i}, {vDG}")
        for d in (SX[(0,0)],SX[(1,1)]): e(f"v_cndmask_b32 v{d+i}, v{d+i}, v11, vcc")
    def ml():
        e(f"buffer_load_dwordx4 {vr(AB,4)}, {vML}, {S_WS}, {sM} offen sc1"); e(f"buffer_load_dwordx4 {vr(AB+4,4)}, {vML}, {S_WS}, {sM} offen offset:1024 sc1")
        e(f"buffer_load_dwordx4 {vr(AB+8,4)}, {vML3}, {S_WS}, {sM} offen offset:2048 sc1")
    def mc():
        e(f"v_max3_u32 v10, v{AB}, v{AB+2}, v{AB+4}"); e(f"v_max3_u32 v10, v10, v{AB+6}, v{AB+8}"); e(f"v_max_u32 v10, v10, v{AB+10}")
        e("v_cmp_eq_u32 vcc, -1, v10")
    spin_wait(a,"A_mem",ml,mc,sleep=2)
    e(f"ds_write_b128 {vML}, {vr(AB,4)}"); e(f"ds_write_b128 {vML}, {vr(AB+4,4)} offset:1024"); e(f"ds_write_b128 {vML3}, {vr(AB+8,4)} offset:2048")
    a.wait(lg="all"); e("s_barrier")
    for k in range(10): e(f"ds_read_b128 {vr(AB+4*k,4)}, {vA} offset:{1024*k}",f"A{k}")
    def sm(acc_,k,key):
        kk,b=T[key]; e(f"v_smfmac_f32_16x16x64_bf16 {vr(acc_,4)}, {vr(AB+4*k,4)}, {vr(b,8,kk)}, {vIDX}")
    for k in range(10):
        a.wait(lg=f"A{k}")
        for tau in range(2): sm(KA+4*tau,k,("k",k,tau))
    sm(VA,0,("v",0,0)); sm(VA+4,0,("v",0,1))
    for tau in range(2):
        r=KA+4*tau
        e(f"v_add_f32 v{r}, v{r}, v{r+1}"); e(f"v_add_f32 v{r+2}, v{r+2}, v{r+3}"); e(f"v_cvt_pk_bf16_f32 v{r+1}, v{r}, v{r+2}")
        e(f"v_mov_b32 v{r}, 0")
        e(f"ds_write_b64 {vXW}, {vr(r,2)} offset:{512*tau}","xw")
    for k in range(1,4):
        for tau in range(2): sm(VA+4*tau,k,("v",k,tau))
    a.wait(lg="xw"); e("s_barrier")
    for ke in range(4):
        for x in range(2): e(f"ds_read_b64_tr_b16 {vr(X+4*ke+2*x,2)}, {vXR} offset:{1024*ke+512*x}",f"X{ke}")
    for k in range(4,10):
        for tau in range(2): sm(VA+4*tau,k,("v",k,tau))
    for ke in range(4):
        a.wait(lg=f"X{ke}")
        for qt in range(2): mf(SM[qt],X+4*ke,Q+16*qt+4*ke,ke==0)
    for i in range(4): e(f"v_cvt_pk_bf16_f32 v{VA+i}, v{VA+2*i}, v{VA+2*i+1}")
    e(f"v_mov_b64 {vr(ONE,2)}, s[98:99]"); e(f"v_mov_b64 {vr(ONE+2,2)}, s[98:99]"); e(f"v_mov_b64 {vr(KA,2)}, s[100:101]")
    a.wait(vm="vx")
    for qt in range(2):
        ev=[r+i for r in ([SX[(0,0)]] if qt==0 else [SX[(1,0)],SX[(1,1)]]) for i in range(4)]+[SM[qt]+2,SM[qt]+3]
        e(f"v_max3_f32 v10, v{ev[0]}, v{ev[1]}, v{ev[2]}")
        for i in range(3,len(ev)-1,2): e(f"v_max3_f32 v10, v10, v{ev[i]}, v{ev[i+1]}")
        e(f"v_max_f32 v11, v10, v{ev[-1]}"); e(f"v_max_f32 v10, v10, v{ev[-1]}")
        e("v_permlane32_swap_b32 v10, v11"); e("v_max_f32 v12, v10, v11"); e("v_max_f32 v10, v10, v11")
        e("v_permlane16_swap_b32 v10, v12"); e("v_max_f32 v10, v10, v12"); e(f"v_mul_f32 v10, {sC}, v10")
        for r in ev[::2]: e(f"v_pk_fma_f32 {vr(r,2)}, {vr(r,2)}, {sCC}, v[10:11] op_sel_hi:[1,1,0] neg_lo:[0,0,1] neg_hi:[0,0,1]")
        for r in ev: e(f"v_exp_f32 v{r}, v{r}")
        p=P[qt]
        for i in range((len(ev)-2)//2): e(f"v_cvt_pk_bf16_f32 v{p+i}, v{ev[2*i]}, v{ev[2*i+1]}")
        if qt==0: e(f"v_mov_b64 {vr(p+2,2)}, 0")
        e(f"v_cvt_pk_bf16_f32 v{p+4}, v{ev[-2]}, v{ev[-2]}"); e(f"v_cvt_pk_bf16_f32 v{p+5}, v{ev[-1]}, v{ev[-1]}")
        o=O+8*qt
        mf(SUM,ONE,p,1); mf(o,VX,p,1); mf(o+4,VX+4,p,1)
        mf(SUM,KA,p+4,0,"v_mfma_f32_16x16x16_bf16",2); mf(o,VA,p+4,0,"v_mfma_f32_16x16x16_bf16",2); mf(o+4,VA+2,p+4,0,"v_mfma_f32_16x16x16_bf16",2)
        e(f"v_rcp_f32 v10, v{SUM}")
        pk=PK+4*qt
        for i in range(0,4,2):
            for t in range(2): e(f"v_pk_mul_f32 {vr(o+4*t+i,2)}, {vr(o+4*t+i,2)}, v[10:11] op_sel_hi:[1,0]")
            for k in range(2): e(f"v_cvt_pk_bf16_f32 v{pk+i+k}, v{o+i+k}, v{o+4+i+k}")
        if qt: e(f"s_add_u32 {sO}, {sO}, {32*4096}")
        e(f"buffer_store_dwordx4 {vr(pk,4)}, {vL16}, {S_WS}, {sO} offen sc1","o")
    e("s_waitcnt vmcnt(0)"); a.vm=[]; e("s_barrier")
    e(f"s_cmp_eq_u32 {sW}, 0"); e("s_cbranch_scc0 A_nosig")
    e("s_mov_b64 exec, 1"); e("v_mov_b32 v10, 0"); e("v_mov_b32 v11, 1")
    e(f"buffer_atomic_add v11, v10, {S_WS}, {sOC} offen"); e("s_mov_b64 exec, -1"); e("s_nop 3")
    a.label("A_nosig")
    e(f"s_add_u32 {sS}, {sS}, 2"); e(f"s_cmp_lt_u32 {sS}, 64"); e("s_cbranch_scc1 A_seg")
    finish(a)

def finish(a):
    e=a.e
    e("s_waitcnt vmcnt(0)")
    if OPT["tim"]:
        rt(a,5); e("s_waitcnt lgkmcnt(0)")
        for i in range(6): e(f"v_mov_b32 v{12+i}, s{70+2*i}")
        e("v_mov_b32 v18, s90"); e("v_mov_b32 v19, s32")
        e(f"s_lshl_b32 s34, s33, 2"); e(f"s_add_u32 s34, s34, {sW}"); e("s_lshl_b32 s34, s34, 5"); e(f"s_add_u32 s34, s34, {DBG_OFF+131072}")
        e("v_mov_b32 v10, 0"); e("s_mov_b64 exec, 1")
        e(f"buffer_store_dwordx4 v[12:15], v10, {S_WS}, s34 offen"); e(f"buffer_store_dwordx4 v[16:19], v10, {S_WS}, s34 offen offset:16")
        e("s_waitcnt vmcnt(0)")
    e("s_endpgm")

def stageB(a):
    e=a.e
    sN="s24"; sS="s25"; sHF="s26"; sT0="s34"; sT1="s35"; sHS="s27"; sHH="s28"; sOO="s29"; sXO="s30"; sPAR="s31"; sMIX="s37"
    S_O="s[16:19]"; S_XX="s[20:23]"
    e(f"s_load_dwordx2 s[40:41], s[0:1], {A_WO}"); e(f"s_load_dwordx2 s[42:43], s[0:1], {B_W2}"); e(f"s_load_dwordx2 s[44:45], s[0:1], {B_B2}")
    e(f"s_load_dwordx2 s[16:17], s[0:1], {D_OUT}"); e(f"s_load_dwordx2 s[20:21], s[0:1], {A_X}")
    e(f"s_sub_u32 {sT0}, s33, 64")
    e(f"s_mul_i32 {sS}, {sT0}, 1639"); e(f"s_lshr_b32 {sS}, {sS}, 16")
    e(f"s_mul_i32 {sT1}, {sS}, 40"); e(f"s_sub_u32 {sT0}, {sT0}, {sT1}")
    e(f"s_cmp_ge_u32 {sT0}, 20"); e(f"s_cselect_b32 {sHF}, 1, 0"); e(f"s_mul_i32 {sT1}, {sHF}, 20"); e(f"s_sub_u32 {sN}, {sT0}, {sT1}")
    e(f"v_mov_b32 v15, {vLN}")
    e("v_lshrrev_b32 v4, 4, v15"); e("v_and_b32 v5, 15, v15"); e("v_lshlrev_b32 v5, 2, v5"); e(f"s_lshl_b32 {sT0}, {sN}, 6"); e(f"v_add_u32 v5, {sT0}, v5")
    e("v_mul_u32_u24 v1, 10240, v4"); e("v_add_u32 v1, v1, v5"); e(f"s_mul_i32 {sT0}, {sW}, {1024*1280}"); e(f"v_add_u32 v1, {sT0}, v1")
    e("v_mul_u32_u24 v2, 5120, v4"); e("v_add_u32 v2, v2, v5"); e(f"s_mul_i32 {sT0}, {sW}, {14*32*1280}"); e(f"v_add_u32 v2, {sT0}, v2")
    e(f"s_mov_b32 s18, {S*D*2}"); e("s_mov_b32 s19, 0x20000"); e(f"s_mov_b32 s22, {S*D*2}"); e("s_mov_b32 s23, 0x20000")
    e("s_waitcnt lgkmcnt(0)")
    groups=[]
    for kk in range(16):
        loads=[("v1",(64*kk+32*(R>>2)+2*(R&3)+x)*1280) for R in range(8) for x in range(2)]
        d=[[("a",16*kk+8*(R>>2)+4*tau+(R&3)) for R in range(8)] for tau in range(2)]
        groups.append((["s_mov_b32 s8, s40","s_mov_b32 s9, s41",f"s_mov_b32 s10, {4096*1280}"] if kk==0 else [],loads,d[0],d[1]))
    W2=144
    for kk in range(7):
        loads=[("v2",(64*kk+32*(R>>2)+16*((R>>1)&1)+2*(R&1)+x)*1280) for R in range(8) for x in range(2)]
        d=[[("v",W2+16*kk+8*(R>>2)+4*tau+(R&3)) for R in range(8)] for tau in range(2)]
        groups.append((["s_mov_b32 s8, s42","s_mov_b32 s9, s43",f"s_mov_b32 s10, {F*1280}"] if kk==0 else [],loads,d[0],d[1]))
    load_pairs(a,groups,[16,32,48],8,lock=False)
    vL16="v0"; vXO="v1"; vRW="v2"; B2=4
    e("v_lshlrev_b32 v0, 4, v15")
    e("v_and_b32 v12, 15, v15"); e("v_mul_u32_u24 v1, 1280, v12"); e("v_lshrrev_b32 v12, 4, v15"); e("v_lshlrev_b32 v12, 4, v12")
    e(f"s_lshl_b32 {sT0}, {sN}, 6"); e(f"v_add_u32 v12, {sT0}, v12"); e("v_add_u32 v1, v1, v12")
    e(f"s_lshl_b32 {sT0}, {sW}, 11"); e(f"v_add_u32 v2, {sT0}, v0")
    e("s_mov_b32 s8, s44"); e("s_mov_b32 s9, s45"); e(f"s_mov_b32 s10, {D*2}")
    e("buffer_load_dwordx4 v[16:19], v12, s[8:11], 0 offen"); e(f"s_mov_b32 {sMIX}, 0xffff0000")
    e("s_waitcnt vmcnt(0)"); a.vm=[]
    for i in range(4): e(f"v_lshlrev_b32 v{B2+i}, 16, v{16+i}"); e(f"v_and_b32 v{B2+4+i}, {sMIX}, v{16+i}")
    e(f"s_mov_b32 {sPAR}, 0")
    AC=[12,16]; XR=20; RING=32; NR=24; RED=128
    rt(a,4)
    a.label("B_unit")
    e(f"s_lshr_b32 {sT0}, {sS}, 2"); e(f"s_lshl_b32 {sT0}, {sT0}, 8"); e(f"s_add_u32 {sT0}, {sT0}, {QHCNT}"); e("v_mov_b32 v24, 0")
    spin_wait(a,"B_qh",lambda:e(f"buffer_load_dword v25, v24, {S_WS}, {sT0} offen sc1"),lambda:e("v_cmp_gt_u32 vcc, 14, v25"),sleep=8)
    e(f"s_lshl_b32 {sHS}, {sS}, 1"); e(f"s_add_u32 {sHS}, {sHS}, {sHF}")
    e(f"s_mul_i32 {sHH}, {sHS}, {54*1024}"); e(f"s_mul_i32 {sT0}, {sW}, {14*1024}"); e(f"s_add_u32 {sHH}, {sHH}, {sT0}"); e(f"s_add_u32 {sHH}, {sHH}, {HH_OFF}")
    e(f"s_lshl_b32 {sOO}, {sHS}, 17"); e(f"s_lshl_b32 {sT0}, {sW}, 15"); e(f"s_add_u32 {sOO}, {sOO}, {sT0}"); e(f"s_add_u32 {sOO}, {sOO}, {O_OFF}")
    e(f"s_mul_i32 {sXO}, {sHS}, {16*1280}")
    def ld(i,sreg,tag):
        if i and i%4==0: e(f"s_add_u32 {sreg}, {sreg}, 4096")
        e(f"buffer_load_dwordx4 {vr(RING+4*(i%NR),4)}, {vL16}, {S_WS}, {sreg} offen offset:{1024*(i%4)} sc1",tag)
    def mm(i,base,kind,first):
        for tau in range(2):
            e(f"v_mfma_f32_16x16x32_bf16 {vr(AC[tau],4)}, {vr(base+8*i+4*tau,4,kind)}, {vr(RING+4*(i%NR),4)}, {'0' if first else vr(AC[tau],4)}")
    for i in range(14):
        if i==12:
            e(f"s_cmp_eq_u32 {sW}, 3"); e(f"s_cselect_b32 {sHH}, 0x7ff00000, {sHH}")
        ld(i,sHH,f"h{i}")
    e(f"buffer_load_dwordx4 {vr(XR,4)}, {vXO}, {S_XX}, {sXO} offen","xr")
    for i in range(14):
        a.wait(vm=f"h{i}"); mm(i,W2,"v",i==0)
    e(f"s_lshl_b32 {sT0}, {sS}, 8"); e(f"s_add_u32 {sT0}, {sT0}, {OCNT}")
    spin_wait(a,"B_o",lambda:e(f"buffer_load_dword v25, v24, {S_WS}, {sT0} offen sc1"),lambda:e("v_cmp_gt_u32 vcc, 32, v25"),sleep=2)
    for i in range(NR): ld(i,sOO,f"o{i}")
    for i in range(32):
        a.wait(vm=f"o{i}"); mm(i,0,"a",False)
        if i+NR<32: ld(i+NR,sOO,f"o{i+NR}")
    e(f"v_add_u32 v26, {sPAR}, {vRW}"); e(f"v_add_u32 v27, {sPAR}, {vL16}")
    e(f"ds_write_b128 v26, {vr(AC[0],4)}"); e(f"ds_write_b128 v26, {vr(AC[1],4)} offset:1024")
    a.wait(lg="all"); e("s_barrier")
    e(f"s_cmp_eq_u32 {sW}, 0"); e("s_cbranch_scc0 B_next")
    for j in range(6): e(f"ds_read_b128 {vr(RING+4*j,4)}, v27 offset:{2048+1024*j}",f"r{j}")
    for i in range(4):
        e(f"v_lshlrev_b32 v{RING+24+i}, 16, v{XR+i}"); e(f"v_and_b32 v{RING+28+i}, {sMIX}, v{XR+i}")
    for i in range(8): e(f"v_add_f32 v{RING+24+i}, v{RING+24+i}, v{B2+i}")
    for i in range(8): e(f"v_add_f32 v{AC[0]+i}, v{AC[0]+i}, v{RING+24+i}")
    for j in range(3):
        a.wait(lg=f"r{2*j+1}")
        for i in range(8): e(f"v_add_f32 v{AC[0]+i}, v{AC[0]+i}, v{RING+8*j+i}")
    for i in range(4): e(f"v_cvt_pk_bf16_f32 v{XR+i}, v{AC[0]+i}, v{AC[1]+i}")
    e(f"buffer_store_dwordx4 {vr(XR,4)}, {vXO}, {S_O}, {sXO} offen")
    a.label("B_next")
    e(f"s_xor_b32 {sPAR}, {sPAR}, 8192")
    e(f"s_add_u32 {sS}, {sS}, 4"); e(f"s_cmp_lt_u32 {sS}, 64"); e("s_cbranch_scc1 B_unit")
    finish(a)

def workers(a):
    e=a.e
    phase1(a)
    e(f"s_sub_u32 s33, {sROW}, 1"); e("s_lshl_b32 s33, s33, 5"); e(f"s_add_u32 s33, s33, {sRANK}")
    e("s_waitcnt vmcnt(0)"); e("s_barrier")
    e("s_cmp_lt_u32 s33, 64"); e("s_cbranch_scc0 W_stageB")
    stageA(a)
    a.label("W_stageB")
    stageB(a)
```

```python
import sys
from asmlib import *
from layout import *
import chain as C
import worker as W

NAME="parallel_sum__memory_aug_recurrent_mem_tr__mixer_channel_mlp__prompt"
KN=NAME+"_kernel"
sW="s13"; sROW="s64"; sRANK="s65"

TIM=[0]
def prologue(a):
    e=a.e
    e("s_cmp_ge_u32 s2, 256"); e("s_cbranch_scc1 L_exit")
    if TIM[0] in(1,2): e("s_memrealtime s[90:91]")
    e(f"s_load_dwordx2 {C.sDBG}, s[0:1], {D_DBG}"); e(f"s_load_dwordx2 s[4:5], s[0:1], {D_WS}")
    e(f"s_getreg_b32 {C.sXCC}, hwreg(HW_REG_XCC_ID, 0, 4)")
    e("v_lshrrev_b32 v1, 6, v0"); e(f"v_readfirstlane_b32 {sW}, v1"); e("v_and_b32 v0, 63, v0")
    e(f"s_mov_b32 s6, {WS_SIZE}"); e("s_mov_b32 s7, 0x20000")
    e(f"s_and_b32 {sROW}, {C.sXCC}, 7")
    e("s_waitcnt lgkmcnt(0)")
    e(f"s_cmp_eq_u32 {sW}, 0"); e("s_cbranch_scc0 L_gotrole")
    e("s_mov_b64 exec, 1"); e("v_mov_b32 v2, 1"); e("s_mov_b32 s42, 0")
    a.label("L_ticket")
    e(f"s_lshl_b32 s43, {sROW}, 2"); e("s_add_u32 s43, s43, 128"); e(f"s_cmp_eq_u32 {sROW}, 0"); e("s_cselect_b32 s43, 0, s43")
    e("v_mov_b32 v1, s43"); e(f"global_atomic_add v3, v1, v2, {C.sDBG} sc0"); e("s_waitcnt vmcnt(0)")
    e(f"v_readfirstlane_b32 {sRANK}, v3"); e("s_nop 3")
    e(f"s_cmp_lt_u32 {sRANK}, 32"); e("s_cbranch_scc1 L_ticketok")
    e(f"s_add_u32 {sROW}, {sROW}, 1"); e(f"s_and_b32 {sROW}, {sROW}, 7"); e("s_add_u32 s42, s42, 1")
    e("s_cmp_lt_u32 s42, 8"); e("s_cbranch_scc1 L_ticket")
    e(f"s_mov_b32 {sROW}, 8")
    a.label("L_ticketok")
    e(f"s_lshl_b32 s43, {sROW}, 5"); e(f"s_add_u32 s43, s43, {sRANK}")
    e("v_mov_b32 v3, s43"); e(f"v_mov_b32 v1, {C.L_ROLE}"); e("ds_write_b32 v1, v3"); e("s_waitcnt lgkmcnt(0)")
    e("s_mov_b64 exec, -1")
    a.label("L_gotrole")
    e("s_barrier")
    e(f"v_mov_b32 v1, {C.L_ROLE}"); e("ds_read_b32 v3, v1"); e("s_waitcnt lgkmcnt(0)")
    e("v_readfirstlane_b32 s43, v3"); e("s_nop 3")
    e(f"s_lshr_b32 {sROW}, s43, 5"); e(f"s_and_b32 {sRANK}, s43, 31")
    e("s_barrier")
    a.vm=[]; a.lg=[]
    e(f"s_cmp_ge_u32 {sROW}, 8"); e("s_cbranch_scc1 L_exit")
    e(f"s_cmp_eq_u32 {sROW}, 0"); e("s_cbranch_scc0 L_worker")

def chain_start(a, kv_need):
    e=a.e
    e(f"s_cmp_eq_u32 {sW}, 0"); e("s_cbranch_scc0 C_arrived")
    e("s_mov_b64 exec, 1")
    e(f"s_lshl_b32 s42, 1, {C.sXCC}"); e("v_mov_b32 v12, 8"); e("v_mov_b32 v13, s42")
    e(f"global_atomic_or v12, v13, {C.sDBG}"); e("s_waitcnt vmcnt(0)")
    e("v_mov_b32 v12, 4"); e("v_mov_b32 v13, 1"); e(f"global_atomic_add v12, v13, {C.sDBG}")
    e("s_mov_b32 s42, 0")
    a.label("C_poll")
    e(f"global_load_dword v14, v12, {C.sDBG} sc1")
    e("s_add_u32 s42, s42, 1"); e("s_cmp_gt_u32 s42, 0x100000"); e("s_cbranch_scc1 C_polled")
    e("s_waitcnt vmcnt(0)")
    e("v_cmp_gt_u32 vcc, 32, v14"); e("s_cbranch_vccnz C_poll")
    e(f"global_load_dword v15, v12, {C.sDBG} offset:4 sc1")
    e("s_mov_b64 exec, 0xffff"); e("v_lshlrev_b32 v16, 4, v0")
    a.label("C_pollkv")
    e("buffer_load_dword v17, v16, s[4:7], 0 offen sc1")
    e("s_add_u32 s42, s42, 1"); e("s_cmp_gt_u32 s42, 0x100000"); e("s_cbranch_scc1 C_polled")
    e("s_waitcnt vmcnt(0)")
    e(f"v_cmp_gt_u32 vcc, {kv_need}, v17"); e("s_cbranch_vccz C_polled"); e("s_sleep 4"); e("s_branch C_pollkv")
    a.label("C_polled")
    e("s_waitcnt vmcnt(0)"); e("s_mov_b64 exec, 1")
    e(f"v_mov_b32 v12, {C.L_ROLE}"); e("ds_write_b32 v12, v15"); e("s_waitcnt lgkmcnt(0)")
    e("s_mov_b64 exec, -1")
    a.label("C_arrived")
    e("s_barrier")
    e(f"v_mov_b32 v12, {C.L_ROLE}"); e("ds_read_b32 v13, v12"); e("s_waitcnt lgkmcnt(0)")
    e("v_readfirstlane_b32 s42, v13"); e("s_nop 3")
    e(f"s_bcnt1_i32_b32 {C.sMODE}, s42")
    a.vm=[]; a.lg=[]

def build(tim=0, force_slow=0, kv_need=0, workers=None):
    a=Asm(); e=a.e; TIM[0]=tim; W.OPT["tim"]=1 if tim==2 else 0
    prologue(a)
    if tim in(1,2): e("s_memrealtime s[92:93]")
    e(f"s_mov_b32 {C.sH}, {sRANK}")
    e(f"s_cmp_eq_u32 {sW}, 0"); e("s_cbranch_scc0 C_zeroed")
    e("v_lshlrev_b32 v1, 4, v0"); e("v_mov_b64 v[4:5], 0"); e("v_mov_b64 v[6:7], 0"); e(f"s_lshl_b32 s42, {C.sH}, 10")
    e("buffer_store_dwordx4 v[4:7], v1, s[4:7], s42 offen sc1"); e("s_waitcnt vmcnt(0)")
    e("s_mov_b64 exec, 1"); e("v_mov_b32 v1, 12"); e("v_mov_b32 v2, 1"); e(f"global_atomic_add v1, v2, {C.sDBG}"); e("s_mov_b64 exec, -1")
    a.label("C_zeroed"); a.vm=[]
    C.chain_init(a, sW)
    if tim in(1,2): e("s_memrealtime s[94:95]")
    chain_start(a, kv_need)
    if tim in(1,2): e("s_memrealtime s[66:67]")
    e(f"s_cmp_eq_u32 {C.sMODE}, {99 if force_slow else 1}"); e("s_cbranch_scc0 C_slow")
    for pfx,st in (("CF",""),("CS","sc1")):
        if pfx=="CS": a.label("C_slow")
        for w in (1,2,3):
            e(f"s_cmp_eq_u32 {sW}, {w}"); e(f"s_cbranch_scc1 {pfx}_w{w}")
        for w in range(4):
            a.label(f"{pfx}_w{w}")
            C.chain_wave(a,w,st,pfx,tim)
    a.label("L_worker")
    if workers: workers(a)
    a.label("L_abort")
    a.label("L_exit")
    e("s_endpgm")
    head=open("cdna_kernels/"+NAME+".s.ref").read().split("; Override launch")[0]
    out=head+"; @launch grid=(256,1,1) block=(256,1,1) lds=163840\n"
    out+=f'.amdgcn_target "amdgcn-amd-amdhsa--gfx950"\n.text\n.globl {KN}\n.p2align 8\n.type {KN},@function\n{KN}:\n'
    out+=a.text()
    out+=f""".section .rodata,"a"
.p2align 6
.amdhsa_kernel {KN}
  .amdhsa_next_free_vgpr 512
  .amdhsa_next_free_sgpr 102
  .amdhsa_accum_offset 256
  .amdhsa_group_segment_fixed_size 0
  .amdhsa_kernarg_size 120
  .amdhsa_user_sgpr_count 2
  .amdhsa_user_sgpr_kernarg_segment_ptr 1
  .amdhsa_system_sgpr_workgroup_id_x 1
  .amdhsa_float_denorm_mode_32 3
.end_amdhsa_kernel
"""
    return out, a
if __name__=="__main__":
    full=len(sys.argv)>3
    out,a=build(tim=int(sys.argv[2]) if len(sys.argv)>2 else 0, kv_need=14 if full else 0, workers=W.workers if full else None)
    open(sys.argv[1],"w").write(out); print("instructions",len(a.ins),"pad states",a.npad)
```

```python
from asmlib import *
from layout import *
import math

L_MEM=0; L_X=10240; L_KX=14336; L_SEL=22528; L_ROLE=23552; L_W=24576
S_WS="s[4:7]"; S_T="s[8:11]"
sH="s12"; sSTEP="s14"; sMR="s15"; sMW="s16"; sMZ="s17"; sTAG="s18"; sTAGM="s19"
sKX="s20"; sVX="s21"; sPC="s22"; sMP="s23"; sSW="s24"; sP0="s25"; sP1="s26"; sP2="s27"
sPR=["s28","s29","s30","s31"]; sCNT="s32"; sC="s33"; sFE="s34"; sKX2="s35"; sSW2="s36"; sSW3="s37"; sSW4="s38"
sPLO="s40"; sPHI="s41"; sT0="s42"; sT1="s43"; sEX="s[44:45]"; sUNIT="s46"; sKXN="s47"; sVXN="s48"; sMF="s49"; sPAT="s39"; sALL="s31"; sMU="s53"
sCC="s[96:97]"; sONE="s[98:99]"; sHALF="s[100:101]"; sDBG="s[50:51]"; sXCC="s52"; sMODE="s87"
vL16="v0"; vA="v1"; vIDX="v2"; vW="v3"; vRL="v4"; vRS="v5"; vXW="v6"; vXR="v7"; vOW="v8"; vL8="v9"
T0=10; T1=11
AB=[12,16,20]; QA=[24,28]; KA=[32,36]; VA=[40,44]; SLA=48; SLB=56

G_ALL=[("q",0,0),("q",0,1),("k",5,1),("o",0),("o",9),("o",10),("o",19)]
L_ALL=[("k",k,1) for k in (1,2,3,4,6,7,8,9)]+[("o",n) for n in (1,3,4,6,7,11,12,14,16)]
COND=[]
def tile_map(w):
    g={t:i for i,t in enumerate(G_ALL)}; l={t:i for i,t in enumerate(L_ALL)}; r={}
    keys=[(m,k,t) for m in "qkv" for k in range(10) for t in range(2)]+[("o",n) for n in range(20)]
    place=lambda i: ("a",8*i) if i<32 else ("v",64+8*(i-32))
    for key in keys:
        if key in g or key in l: continue
        r[key]=place(len(r))
    assert len(r)==56 and len(g)==7 and len(l)==17
    return g,l,r
MAPS=[tile_map(w) for w in range(4)]
TG,TL,TR=MAPS[0]
def use_map(w): pass
def o_tile(n):
    return n//4,(n//2)&1,n&1

def sw_ref(idx):
    return [sSW,sSW2,sSW3,sSW4][idx//2], (idx&1)*2048

def gload_tile(a,key,slot,tag):
    if "G" in OPT["ab"] or ("P" in OPT["ab"] and tag in("g0","g1")): return
    s,imm=sw_ref(TG[key])
    fl="" if tag in OPT["l1"] else OPT["gfl"]
    a.e(f"buffer_load_dwordx4 {vr(slot,4)}, {vL16}, {S_WS}, {s} offen offset:{imm} {fl}",tag)
    a.e(f"buffer_load_dwordx4 {vr(slot+4,4)}, {vL16}, {S_WS}, {s} offen offset:{imm+1024} {fl}",tag)
def gload_half(a,key,slot,tag,half):
    if "G" in OPT["ab"]: return
    s,imm=sw_ref(TG[key])
    a.e(f"buffer_load_dwordx4 {vr(slot+4*half,4)}, {vL16}, {S_WS}, {s} offen offset:{imm+1024*half}",tag)
def lload_tile(a,key,slot,tag):
    o=TL[key]*2048
    a.e(f"ds_read_b128 {vr(slot,4)}, {vW} offset:{o}",tag)
    a.e(f"ds_read_b128 {vr(slot+4,4)}, {vW} offset:{o+1024}",tag)
def sm(a,acc,A,key,slot=None):
    if key in TR: k,b=TR[key]
    else: k,b="v",slot
    a.e(f"v_smfmac_f32_16x16x64_bf16 {vr(acc,4)}, {vr(A,4)}, {vr(b,8,k)}, {vIDX}")
def zero4(a,r):
    a.e(f"v_mov_b64 {vr(r,2)}, 0"); a.e(f"v_mov_b64 {vr(r+2,2)}, 0")

def chain_init(a, sW):
    e=a.e
    e("s_load_dwordx2 s[54:55], s[0:1], %d"%A_WQ); e("s_load_dwordx2 s[56:57], s[0:1], %d"%A_WK)
    e("s_load_dwordx2 s[58:59], s[0:1], %d"%A_WV); e("s_load_dwordx2 s[60:61], s[0:1], %d"%A_WO)
    e("s_load_dwordx2 s[62:63], s[0:1], %d"%A_MEM0)
    e(f"s_mov_b32 {sPLO}, 0x05040100"); e(f"s_mov_b32 {sPHI}, 0x07060302")
    e("v_lshrrev_b32 v4, 5, v0"); e("v_lshlrev_b32 v4, 4, v4"); e("v_bfe_u32 v5, v0, 4, 1"); e("v_lshl_add_u32 v4, v5, 2, v4")
    e("v_and_b32 v5, 15, v0"); e("v_lshlrev_b32 v5, 2, v5")
    e(f"s_lshl_b32 {sT0}, {sH}, 8"); e(f"s_lshl_b32 {sT1}, {sW}, 6"); e(f"s_add_u32 {sT0}, {sT0}, {sT1}")
    e("v_lshl_add_u32 v1, v4, 13, v5"); e(f"v_add_u32 v1, {sT0}, v1")
    e("v_mul_u32_u24 v2, 1280, v4"); e("v_add_u32 v2, v2, v5")
    e(f"s_mul_i32 {sT0}, {sH}, {128*1280}"); e(f"s_add_u32 {sT0}, {sT0}, {sT1}"); e(f"v_add_u32 v2, {sT0}, v2")
    e("v_add_u32 v14, v2, v5"); e(f"v_add_u32 v14, {sT1}, v14")
    e("v_mov_b32 v15, v0")
    e("v_lshlrev_b32 v0, 4, v0")
    e(f"s_mul_i32 {sT0}, {sW}, {17*2048}"); e(f"s_add_u32 {sT0}, {sT0}, {L_W}"); e(f"v_add_u32 v3, {sT0}, v0")
    e(f"s_lshl_b32 {sT0}, {sH}, 2"); e(f"s_add_u32 {sT0}, {sT0}, {sW}"); e(f"s_lshl_b32 {sT0}, {sT0}, 14")
    e(f"s_add_u32 {sSW}, {sT0}, {SW_OFF}"); e(f"s_add_u32 {sSW2}, {sSW}, 4096"); e(f"s_add_u32 {sSW3}, {sSW}, 8192"); e(f"s_add_u32 {sSW4}, {sSW}, 12288")
    e("s_mov_b32 s10, %d"%(640*8192)); e("s_mov_b32 s11, 0x20000")
    e("s_waitcnt lgkmcnt(0)")
    groups=[(m,k) for m in "qkv" for k in range(10)]+[("o",j,ko) for j in range(5) for ko in range(2)]
    LB=[16,32,48]
    base={"q":54,"k":56,"v":58,"o":60}
    cur=[None]
    def issue(i):
        g=groups[i]; lb=LB[i%3]
        if cur[0]!=g[0]:
            e(f"s_mov_b32 s8, s{base[g[0]]}"); e(f"s_mov_b32 s9, s{base[g[0]]+1}"); cur[0]=g[0]
        for R in range(8):
            mh,ml,p=R>>2,(R>>1)&1,R&1
            for x in range(2):
                if g[0]=="o":
                    row=64*g[2]+32*mh+8*p+2*ml+x
                    if g[1]<4: off=row*1280+512*(g[1]>>1)+4*(g[1]&1); vo="v14"
                    else: off=row*1280+1024; vo="v2"
                else:
                    row=64*g[1]+32*mh+8*p+2*ml+x
                    off=row*8192; vo="v1"
                e(f"s_mov_b32 {sT0}, {off}")
                e(f"buffer_load_dword v{lb+2*R+x}, {vo}, {S_T}, {sT0} offen",f"w{i}")
    tmp=[4,8]; tsel=[0]
    def put(key,lb,sel,w):
        g_,l_,r_=MAPS[w]
        if key in r_ and r_[key][0]=="v":
            for R in range(8): e(f"v_perm_b32 v{r_[key][1]+R}, v{lb+2*R+1}, v{lb+2*R}, {sel}")
            return
        for half in range(2):
            t=tmp[half]
            for R in range(4): e(f"v_perm_b32 v{t+R}, v{lb+2*(4*half+R)+1}, v{lb+2*(4*half+R)}, {sel}")
            if key in r_:
                for R in range(4): e(f"v_accvgpr_write_b32 a{r_[key][1]+4*half+R}, v{t+R}")
            elif key in l_:
                e(f"ds_write_b128 v3, {vr(t,4)} offset:{l_[key]*2048+half*1024}")
            else:
                sg,imm=sw_ref(g_[key])
                e(f"buffer_store_dwordx4 {vr(t,4)}, v0, {S_WS}, {sg} offen offset:{imm+half*1024} sc1","st")
    def process(i):
        g=groups[i]; lb=LB[i%3]
        a.wait(vm=f"w{i}")
        if OPT["lock"]: e("s_barrier")
        for tau in range(2):
            key=(g[0],g[1],tau) if g[0]!="o" else ("o",4*g[1]+2*tau+g[2])
            sel=sPHI if tau else sPLO
            if key not in COND: put(key,lb,sel,0); continue
            odd=0 if key==("o",19) else 3
            q=list(a.vm); nm=f"C_i{i}_{tau}"
            e(f"s_cmp_eq_u32 {sW}, {odd}"); e(f"s_cbranch_scc1 {nm}a")
            put(key,lb,sel,1); e(f"s_branch {nm}b")
            a.label(f"{nm}a"); put(key,lb,sel,odd); a.label(f"{nm}b"); e("s_nop 1")
            a.vm=q
    issue(0); issue(1)
    for i in range(len(groups)):
        if i+2<len(groups): issue(i+2)
        process(i)
    a.wait(vm="all",lg="all")
    e("v_lshrrev_b32 v12, 5, v15"); e("v_lshlrev_b32 v1, 9, v12")
    e("v_bfe_u32 v12, v15, 1, 3"); e("v_lshl_add_u32 v1, v12, 6, v1")
    e("v_bfe_u32 v12, v15, 4, 1"); e("v_lshl_add_u32 v1, v12, 5, v1")
    e("v_and_b32 v12, 1, v15"); e("v_lshl_add_u32 v1, v12, 4, v1")
    e("v_mov_b32 v13, 0xaaaa"); e("v_mul_u32_u24 v2, v12, v13"); e("v_add_u32 v2, 0x4444, v2")
    e(f"s_lshl_b32 {sUNIT}, {sW}, 5"); e(f"s_add_u32 {sUNIT}, {sUNIT}, {sH}"); e(f"s_lshl_b32 {sT0}, {sUNIT}, 7")
    e("v_lshrrev_b32 v12, 3, v15"); e("v_mul_u32_u24 v4, 10240, v12"); e("v_and_b32 v12, 7, v15"); e("v_lshl_add_u32 v4, v12, 4, v4")
    e(f"v_add_u32 v4, {sT0}, v4")
    e(f"s_and_b32 {sT1}, {sUNIT}, 1"); e(f"s_lshl_b32 {sT1}, {sT1}, 2"); e(f"s_bfe_u32 {sMU}, {sUNIT}, 0x20001"); e(f"s_or_b32 {sT1}, {sT1}, {sMU}")
    e(f"s_andn2_b32 {sMU}, {sUNIT}, 7"); e(f"s_or_b32 {sT1}, {sT1}, {sMU}"); e(f"s_cmp_lt_u32 {sUNIT}, 64"); e(f"s_cselect_b32 {sMU}, {sT1}, {sUNIT}")
    e(f"s_lshl_b32 {sT0}, {sMU}, 7")
    e("v_lshrrev_b32 v12, 4, v15"); e("v_lshlrev_b32 v5, 6, v12"); e("v_and_b32 v12, 15, v15"); e("v_lshl_add_u32 v5, v12, 3, v5")
    e(f"v_add_u32 v5, {sT0}, v5"); e("v_and_b32 v12, 0x28, v15"); e("v_cmp_eq_u32 vcc, 0, v12"); e("v_mov_b32 v13, 0x7ff00000")
    e("v_cndmask_b32 v5, v13, v5, vcc")
    if OPT["probe"]=="c": e(f"s_lshl_b32 {sT1}, {sUNIT}, 3"); e(f"s_add_u32 {sT1}, {sT1}, 10240"); e(f"v_writelane_b32 v5, {sT1}, 32")
    e("v_lshrrev_b32 v12, 5, v15"); e("v_lshlrev_b32 v12, 2, v12"); e("v_and_b32 v13, 15, v15"); e("v_xor_b32 v12, v12, v13")
    e("v_lshlrev_b32 v6, 3, v12"); e("v_lshrrev_b32 v12, 4, v15"); e("v_lshl_add_u32 v6, v12, 7, v6")
    e(f"s_lshl_b32 {sT0}, {sW}, 10"); e(f"s_add_u32 {sT0}, {sT0}, {L_X}"); e(f"v_add_u32 v6, {sT0}, v6")
    e("v_bfe_u32 v12, v15, 3, 1"); e("v_lshlrev_b32 v7, 3, v12"); e("v_lshrrev_b32 v12, 4, v15"); e("v_lshl_add_u32 v7, v12, 1, v7")
    e("v_bfe_u32 v12, v15, 2, 1"); e("v_add_u32 v7, v7, v12"); e("v_bfe_u32 v12, v15, 1, 1"); e("v_lshlrev_b32 v12, 2, v12"); e("v_xor_b32 v7, v7, v12")
    e("v_lshlrev_b32 v7, 3, v7"); e("v_and_b32 v12, 3, v15"); e("v_lshl_add_u32 v7, v12, 7, v7"); e(f"v_add_u32 v7, {L_X}, v7")
    e("v_bfe_u32 v12, v15, 2, 2"); e("v_lshlrev_b32 v8, 7, v12"); e("v_and_b32 v12, 1, v15"); e("v_lshl_add_u32 v8, v12, 6, v8")
    e("v_lshrrev_b32 v12, 4, v15"); e("v_lshl_add_u32 v8, v12, 4, v8"); e(f"s_lshl_b32 {sT0}, {sW}, 9"); e(f"v_add_u32 v8, {sT0}, v8")
    if not OPT["owx"]: e(f"v_and_b32 v13, 0x1ff, v8"); e(f"v_add_u32 v13, {L_ROLE+512}, v13"); e("v_and_b32 v12, 2, v15"); e("v_cmp_eq_u32 vcc, 0, v12"); e("v_cndmask_b32 v8, v13, v8, vcc")
    e("v_lshlrev_b32 v9, 3, v15")
    e("v_and_b32 v12, 15, v15"); e("v_and_b32 v20, 0xff, v0")
    for tab,neg in ((0,1),(256,0)):
        for r,ent in enumerate([((0,2),(1,3)),((4,6),(5,7)),((2,None),(3,None)),((6,None),(7,None))]):
            e(f"v_mov_b32 v{16+r}, 0")
            for half,(pos,ng) in enumerate(ent):
                for row,val in ((pos,0x3f80),(ng if neg else None,0xbf80)):
                    if row is None: continue
                    e(f"v_mov_b32 v13, 0x{val<<(16*half):x}"); e(f"v_cmp_eq_u32 vcc, {row}, v12"); e(f"v_cndmask_b32 v{16+r}, v{16+r}, v13, vcc")
        e(f"ds_write_b128 v20, v[16:19] offset:{L_SEL+tab}")
        e("s_waitcnt lgkmcnt(0)")
    e(f"s_mul_i32 {sT0}, {sH}, 10240"); e(f"s_add_u32 {sT0}, {sT0}, {P_OFF}"); e(f"s_lshl_b32 {sT1}, {sW}, 10")
    e(f"s_add_u32 {sP0}, {sT0}, {sT1}"); e(f"s_add_u32 {sP1}, {sP0}, 4096"); e(f"s_lshl_b32 {sT1}, {sW}, 9"); e(f"s_add_u32 {sP2}, {sT0}, {sT1}"); e(f"s_add_u32 {sP2}, {sP2}, 8192")
    for m in range(4): e(f"s_mov_b32 {sPR[m]}, {P_OFF+m*81920}")
    e(f"s_lshl_b32 {sT0}, {sH}, 13"); e(f"s_add_u32 {sKX}, {sT0}, {XK_OFF}"); e(f"s_add_u32 {sKX2}, {sKX}, 4096")
    e(f"s_lshl_b32 {sT1}, {sW}, 11"); e(f"s_add_u32 {sVX}, {sT0}, {XV_OFF}"); e(f"s_add_u32 {sVXN}, {sVX}, {32*8192}"); e(f"s_add_u32 {sVX}, {sVX}, {sT1}")
    e(f"s_add_u32 {sKXN}, {sKX}, {32*8192}")
    e(f"s_mul_i32 {sPC}, {sH}, 320"); e(f"s_add_u32 {sMP}, {sPC}, {MEMP_OFF-10240}")
    c=(128**-0.5)*math.log2(math.e)
    import struct
    e(f"s_mov_b32 {sC}, 0x%08x"%struct.unpack("<I",struct.pack("<f",c))[0])
    e(f"s_mov_b32 s96, {sC}"); e(f"s_mov_b32 s97, {sC}")
    e("s_mov_b32 s98, 0x3f803f80"); e("s_mov_b32 s99, 0x3f803f80"); e("s_mov_b32 s100, 0x3f003f00"); e("s_mov_b32 s101, 0x3f003f00")
    e(f"s_mov_b32 {sFE}, 0xfffffffe")
    e("s_mov_b32 s44, 0x33333333"); e("s_mov_b32 s45, 0x33333333")
    e(f"s_lshl_b32 {sT0}, {sW}, 12"); e(f"s_add_u32 {sMR}, {sT0}, {M_OFF}")
    if OPT["probe"]=="b":
        e(f"s_and_b32 {sT0}, {sH}, {OPT['nrep']-1}"); e(f"s_lshl_b32 {sT0}, {sT0}, 8"); e(f"s_lshl_b32 {sT1}, {sW}, 5"); e(f"s_add_u32 {sT0}, {sT0}, {sT1}")
        e(f"s_add_u32 {sMF}, {sT0}, {FL_OFF}"); e(f"s_mov_b32 {sPAT}, 0")
    else:
        e(f"s_lshl_b32 {sT0}, {sW}, 8"); e(f"s_add_u32 {sMF}, {sT0}, {M_OFF+10240}")
    e(f"s_mov_b32 {sMW}, {M_OFF+16384}"); e(f"s_mov_b32 {sMZ}, {M_OFF+49152}")
    e(f"s_mov_b32 {sSTEP}, 0"); e(f"s_mov_b32 {sTAG}, 1"); e(f"s_mov_b32 {sTAGM}, -1"); e(f"s_mov_b32 {sCNT}, 0")
    e("v_mov_b64 v[24:25], 0"); e("v_mov_b64 v[26:27], 0"); e("v_mov_b64 v[18:19], -1")
    e(f"buffer_store_dwordx4 v[24:27], {vL16}, {S_WS}, {sP0} offen sc1"); e(f"buffer_store_dwordx4 v[24:27], {vL16}, {S_WS}, {sP1} offen sc1")
    e(f"buffer_store_dwordx2 v[24:25], {vL8}, {S_WS}, {sP2} offen sc1")
    e(f"s_cmp_ge_u32 {sUNIT}, 80"); e("s_cbranch_scc1 C_noM")
    e("s_mov_b32 s8, s62"); e("s_mov_b32 s9, s63"); e("s_mov_b32 s10, 10240")
    e(f"s_and_b32 {sT0}, {sMU}, 3"); e(f"s_mul_i32 {sT0}, {sT0}, 2560"); e(f"s_lshr_b32 {sT1}, {sMU}, 2"); e(f"s_lshl_b32 {sT1}, {sT1}, 6"); e(f"s_add_u32 {sT0}, {sT0}, {sT1}")
    e("v_bfe_u32 v12, v15, 4, 1"); e("v_mul_u32_u24 v12, 1280, v12"); e("v_and_b32 v13, 7, v15"); e("v_lshl_add_u32 v12, v13, 3, v12")
    e(f"buffer_load_dwordx2 v[20:21], v12, {S_T}, {sT0} offen")
    for k in range(1,4):
        e(f"s_mov_b32 {sT1}, {M_OFF+16384*k}"); e(f"buffer_store_dwordx2 v[18:19], {vRS}, {S_WS}, {sT1} offen sc1")
    e("s_waitcnt vmcnt(0)")
    e(f"v_min_u32 v20, {sFE}, v20")
    e(f"s_mov_b32 {sT1}, {M_OFF}"); e(f"buffer_store_dwordx2 v[20:21], {vRS}, {S_WS}, {sT1} offen sc1")
    a.label("C_noM")
    e("s_mov_b32 s8, s4"); e("s_mov_b32 s9, s5"); e("s_mov_b32 s10, 0")
    if OPT["probe"]=="b":
        e(f"s_cmp_eq_u32 {sW}, 3"); e("s_cbranch_scc1 C_noF")
        e(f"s_add_u32 s8, s4, {FL_OFF}"); e("s_addc_u32 s9, s5, 0"); e(f"s_mov_b32 s10, {OPT['nrep']*256}")
        e("v_lshlrev_b32 v12, 4, v0"); e("v_mov_b32 v13, 0")
        e(f"buffer_store_byte v13, v12, {S_T}, {sUNIT} offen sc1")
        a.label("C_noF")
    e("s_waitcnt vmcnt(0) lgkmcnt(0)"); a.vm=[]; a.lg=[]
    e("s_barrier")

STAMPS=[]
OPT={"kvstride":32*8192,"d0":30,"d1":80,"d1b":100,"m1pos":0,"d2":0,"d3":0,"pf":1,"nosync":0,"stamps":[],"lock":1,"rl":20,"pub":1,"pipe":2,"probe":"b","owx":1,"fine":"","prep":(13,14,15,17),"m1pre":0,"gq":(1,1),"stag":1,"kxp":(4,1),"pfp":11,"go1p":"exp","g18":(0,2,5,7),"unr":4,"goearly":1,"mpstride":10240,"pubfl":"sc1","pubpos":"qk","pfsplit":0,"kvmask":7,"kvchk":1,"pfwait":0,"pffl":"sc1","nrep":4,"np":3,"l1":(),"gfl":"","prepos":"early","percu":0,"at":40,"d4":12,"ab":"","pfpos":"qk"}
def delay(a,n):
    while n>0:
        k=min(n,16); a.e(f"s_nop {k-1}"); n-=k
def stamp(a,tim,name):
    if OPT["fine"] and not name.startswith(OPT["fine"]) and name!="b1": return
    if not OPT["fine"] and name[0]=="_": return
    if name not in STAMPS: STAMPS.append(name)
    if tim==3:
        i=STAMPS.index(name); assert i<19; a.e(f"s_memtime s[{54+2*i}:{55+2*i}]")
        if OPT["fine"]: a.lg+= [None,None]
        return
    if tim!=1 or name not in OPT["stamps"]: return
    i=OPT["stamps"].index(name)
    a.e("s_memtime s[70:71]"); a.e("s_waitcnt lgkmcnt(0)"); a.lg=[]
    a.e("s_sub_u32 s72, s70, s73"); a.e("s_mov_b32 s73, s70"); a.e(f"s_add_u32 s{76+i}, s{76+i}, s72")

def dma(a,n,soff,tag,first=0):
    for i in range(first,first+n):
        a.e(f"buffer_load_dwordx4 {vL16}, {S_WS}, {soff} offen offset:{1024*i} sc1 lds",tag)

def chain_wave(a, w, st, pfx, tim=0):
    use_map(w)
    e=a.e; L=lambda s: f"{pfx}{w}_{s}"
    nd=[4,4,2,0][w]
    def chk(l):
        if OPT["nosync"]: e("s_nop 0")
        else: e(f"s_cbranch_vccnz {L(l)}")
    def spin(c=None):
        if tim in(1,2) and c: e(f"s_add_u32 {c}, {c}, 1")
        e(f"s_add_u32 {sCNT}, {sCNT}, 1"); e(f"s_cmp_gt_u32 {sCNT}, 0x40000"); e("s_cbranch_scc1 L_abort")
    def aread(k,buf): e(f"ds_read_b128 {vr(buf,4)}, {vA} offset:{L_MEM+1024*k}",f"A{k}")
    def prestage():
        gload_tile(a,("q",0,0),SLA,"tq00"); gload_tile(a,("q",0,1),SLB,"tq01")
    def zero_acc():
        for r in QA+KA+VA: zero4(a,r)
    NREP=OPT["nrep"]
    def paddr(r):
        if OPT["probe"]=="b": e(f"v_bfe_u32 v{r}, {vL16}, 2, {4 if w==2 else 5}")
        elif OPT["probe"]=="c": e(f"v_and_b32 v{r}, {0x7f if w==2 else 0xff}, {vL8}")
        else:
            e(f"v_lshlrev_b32 v{r}, 2, {vL16}")
            if w==2: e(f"v_and_b32 v{r}, 0x7ff, v{r}")
    def probe(d,r,tag=None):
        e(f"buffer_load_dword v{d}, v{r}, {S_WS}, {sMR if OPT['probe']=='d' else sMF} offen sc1",tag)
    def pcmp(d):
        if OPT["probe"]=="b": e(f"v_cmp_ne_u32 vcc, {sPAT}, v{d}")
        else: e(f"v_cmp_eq_u32 vcc, -1, v{d}")
    def mfetch():
        paddr(T1); probe(T1,T1,"pr")
        dma(a,nd,sMR,"dma")
    if w==3: e(f"s_cmp_eq_u32 {sH}, 0"); e(f"s_cselect_b32 {sALL}, 0, 1")
    if tim in(1,2):
        e("s_memtime s[70:71]"); e("s_waitcnt lgkmcnt(0)"); e("s_mov_b32 s73, s70"); e("s_mov_b32 s74, s70")
        for i in range(11): e(f"s_mov_b32 s{76+i}, 0")
    a.label(L("rec"))
    e("s_waitcnt vmcnt(0) lgkmcnt(0)"); a.vm=[]; a.lg=[]
    spin("s84")
    e("s_barrier")
    prestage()
    if w<3: e(f"s_mov_b32 m0, {4096*w}")
    if w==0 or (w<3 and OPT["m1pre"]): dma(a,nd,sMR,"dma")
    zero_acc()
    e("s_waitcnt vmcnt(0) lgkmcnt(0)"); a.vm=[]; a.lg=[]
    top_vm={0:[],1:["rs","fl","mz"],2:["rs","fl","mz"],3:[]}[w]
    if OPT["prepos"]=="early" and w in(1,2): top_vm=["tq00"]*2+["tq01"]*2+top_vm
    if OPT["m1pre"] and w in(1,2): top_vm=["dma"]*nd
    a.vm=list(top_vm)
    a.label("HZ_"+L("top"))
    e("s_barrier")
    for k in range(3): aread(k,AB[k])
    if w in(1,2) and not OPT["m1pre"]: mfetch()
    stamp(a,tim,"b1")
    def slow_ops(where):
        if w!=3: return
        if OPT['pf'] and OPT["pfpos"]==where:
            e(f"v_lshlrev_b32 v{T1}, 3, {vL16}"); e(f"s_mov_b32 m0, {L_ROLE}")
            e(f"buffer_load_dword v{T1}, {S_WS}, {sKXN} offen {OPT['pffl']} lds","pf")
            e(f"buffer_load_dword v{T1}, {S_WS}, {sVXN} offen {OPT['pffl']} lds","pf")
        if OPT["pub"] and OPT["pubpos"]==where:
            e(f"buffer_store_dwordx2 v[4:5], {vL8}, {S_T}, {sMP} offen {OPT['pubfl']}","pub")
            e("s_mov_b32 s10, 0")
    SLOT={("q",0,0):SLA,("q",0,1):SLB,("k",5,1):SLA,("k",7,1):SLA,("k",9,1):SLA}
    for k in (1,2,3,4,6,8): SLOT[("k",k,1)]=SLB
    NEXT={("q",0,1):("k",1,1),("k",1,1):("k",2,1),("k",2,1):("k",3,1),("k",3,1):("k",4,1),("k",4,1):("k",6,1),("k",6,1):("k",8,1),("k",5,1):("k",7,1),("k",7,1):("k",9,1)}
    tg=lambda key: "t%s%d%d"%key
    ACC={"q":QA,"k":KA,"v":VA}
    def qkv(key,buf):
        if key in TG: a.wait(vm=tg(key))
        elif key in TL and key[1]>0: a.wait(lg=tg(key))
        sm(a,ACC[key[0]][key[2]],buf,key,SLOT.get(key))
        nx=NEXT.get(key)
        if nx: lload_tile(a,nx,SLOT[nx],tg(nx))
    kxw = w in(0,3)
    pos=-1
    for k in range(8):
        b=AB[k%3]
        keys=[(m,k,t) for m in ("qkv" if k<4 else "qk") for t in range(2)]
        for i,key in enumerate(keys):
            pos+=1
            if i==0: a.wait(lg=f"A{k}")
            if k==3 and i==1:
                stamp(a,tim,"k2")
                if w in(1,2) and not OPT["m1pre"]: chk("mr"); a.wait(vm="dma"); a.label(L("mok"))
                elif w in(1,2): a.wait(vm="dma")
                e("s_barrier"); stamp(a,tim,"b1b")
                aread(4,AB[1]); aread(5,AB[2])
            qkv(key,b)
            if k==0 and i==2: a.wait(lg="A2"); e(f"v_max3_u32 v{T0}, v{AB[0]}, v{AB[1]}, v{AB[2]}")
            if k==0 and i==3: e(f"v_cmp_eq_u32 vcc, -1, v{T0}")
            if k==0 and i==5: chk("rec")
            for j in range(2):
                if pos==OPT["gq"][0]+OPT["gq"][1]*j: gload_half(a,("k",5,1),SLA,tg(("k",5,1)),j)
            if kxw and pos==OPT["kxp"][0]-1: e(f"s_mov_b32 m0, {L_KX+(4096 if w else 0)}")
            for j in range(4):
                if kxw and pos==OPT["kxp"][0]+OPT["kxp"][1]*j: dma(a,1,sKX2 if w else sKX,"kx",j)
            if pos==OPT["pfp"]: slow_ops("qk")
            if k==2 and i==4 and w in(1,2) and not OPT["m1pre"]: a.wait(vm="pr"); pcmp(T1)
            if k==3 and i==2: e(f"v_mov_b32 v{T0}, v{b}")
            if k>=4 and i==1: e(f"v_max_u32 v{T0}, v{T0}, v{b}")
        if k==0: aread(3,b)
        if 3<=k<=6: aread(k+3,b)
    stamp(a,tim,"k7")
    b8,b9,b7=AB[2],AB[0],AB[1]
    a.wait(lg="A8"); qkv(("q",8,0),b8)
    a.wait(lg="A9"); e(f"v_max3_u32 v{T0}, v{T0}, v{b8}, v{b9}")
    qkv(("q",8,1),b8); e(f"v_cmp_eq_u32 vcc, -1, v{T0}")
    qkv(("q",9,0),b9); a.wait(vm="kx"); e("s_barrier")
    qkv(("q",9,1),b9)
    def kxread(kt,ke,dst): e(f"ds_read_b128 {vr(dst,4)}, {vL16} offset:{L_KX+1024*(4*kt+ke)}",f"K{kt}{ke}")
    add=lambda d,x,y: e(f"v_add_f32 v{d}, v{x}, v{y}")
    cvt=lambda d,x,y: e(f"v_cvt_pk_bf16_f32 v{d}, v{x}, v{y}")
    qkv(("k",8,0),b8); chk("rec"); qkv(("k",9,0),b9)
    add(QA[0],QA[0],QA[0]+1); add(QA[0]+2,QA[0]+2,QA[0]+3)
    qkv(("k",8,1),b8); kxread(0,0,SLB); kxread(1,0,SLB+4); cvt(QA[0],QA[0],QA[0]+2); add(QA[1],QA[1],QA[1]+1)
    qkv(("k",9,1),b9); kxread(0,1,SLA); kxread(1,1,SLA+4)
    add(QA[1]+2,QA[1]+2,QA[1]+3); cvt(QA[1],QA[1],QA[1]+2)
    stamp(a,tim,"qk")
    slow_ops("qkend")
    add(KA[0],KA[0],KA[0]+1); add(KA[0]+2,KA[0]+2,KA[0]+3); cvt(QA[0]+1,KA[0],KA[0]+2); e(f"ds_write_b64 {vXW}, {vr(QA[0],2)}","xw")
    qkv(("v",7,0),b7)
    add(KA[1],KA[1],KA[1]+1); add(KA[1]+2,KA[1]+2,KA[1]+3); cvt(QA[1]+1,KA[1],KA[1]+2); e(f"ds_write_b64 {vXW}, {vr(QA[1],2)} offset:512","xw")
    qkv(("v",7,1),b7); aread(4,b7)
    qkv(("v",8,0),b8); qkv(("v",8,1),b8); aread(5,b8)
    qkv(("v",9,0),b9)
    stamp(a,tim,"_s0"); a.wait(lg="xw"); stamp(a,tim,"_s1"); e("s_barrier"); stamp(a,tim,"b2"); stamp(a,tim,"_s2")
    X=[24,28,32,36]
    for ke in range(4):
        for x in range(2): e(f"ds_read_b64_tr_b16 {vr(X[ke]+2*x,2)}, {vXR} offset:{1024*ke+512*x}",f"X{ke}")
        if ke==0: qkv(("v",9,1),b9)
        if ke==1: a.wait(lg="A4"); qkv(("v",4,0),b7)
        if ke==2: qkv(("v",4,1),b7)
    S0,S1,SM=b9,b7,b8
    def mf(d,A,B,first,op="v_mfma_f32_16x16x32_bf16",n=4):
        e(f"{op} {vr(d,4)}, {vr(A,n)}, {vr(B,n)}, {'0' if first else vr(d,4)}")
    VM=VA[0]; VX=SLB; P=SLA; PM=SLA+4
    stamp(a,tim,"_s3"); a.wait(lg="X0"); stamp(a,tim,"_s4"); mf(S0,SLB,X[0],1); mf(S1,SLB+4,X[0],1)
    kxread(0,2,SLB); kxread(1,2,SLB+4)
    a.wait(lg="X1"); stamp(a,tim,"_s5"); mf(S0,SLA,X[1],0); mf(S1,SLA+4,X[1],0)
    kxread(0,3,SLA); kxread(1,3,SLA+4)
    qkv(("v",5,0),b8); qkv(("v",5,1),b8)
    stamp(a,tim,"_s6"); a.wait(lg="K12"); stamp(a,tim,"_s7"); mf(S0,SLB,X[2],0); mf(S1,SLB+4,X[2],0)
    e(f"buffer_load_dwordx4 {vr(VX,4)}, {vL16}, {S_WS}, {sVX} offen sc1","vx")
    stamp(a,tim,"_s8"); a.wait(lg="K13"); stamp(a,tim,"_s9"); mf(S0,SLA,X[3],0); mf(S1,SLA+4,X[3],0)
    e(f"buffer_load_dwordx4 {vr(VX+4,4)}, {vL16}, {S_WS}, {sVX} offen offset:1024 sc1","vx")
    mf(SM,X[0],X[0],1); mf(SM,X[1],X[1],0); aread(6,X[1])
    e(f"v_max3_f32 v{T1}, v{S0}, v{S0+1}, v{S0+2}")
    mf(SM,X[2],X[2],0)
    e(f"v_max3_f32 v{T0}, v{S0+3}, v{S1}, v{S1+1}")
    mf(SM,X[3],X[3],0)
    e(f"v_max3_f32 v{T1}, v{T1}, v{S1+2}, v{S1+3}")
    stamp(a,tim,"scores"); stamp(a,tim,"_sa")
    e(f"v_max_f32 v{T1}, v{T1}, v{T0}")
    a.wait(lg="A6"); qkv(("v",6,0),X[1])
    e(f"v_max3_f32 v{T0}, v{T1}, v{SM+2}, v{SM+3}"); e(f"v_max3_f32 v{T1}, v{T1}, v{SM+2}, v{SM+3}")
    qkv(("v",6,1),X[1])
    e(f"v_permlane32_swap_b32 v{T0}, v{T1}")
    e(f"v_max_f32 v{SM}, v{T0}, v{T1}"); e(f"v_max_f32 v{T0}, v{T0}, v{T1}")
    gload_half(a,("o",0),24,"go0",0)
    e(f"v_permlane16_swap_b32 v{T0}, v{SM}")
    e(f"v_max_f32 v{T0}, v{T0}, v{SM}")
    e(f"v_mul_f32 v{T0}, {sC}, v{T0}")
    stamp(a,tim,"max"); stamp(a,tim,"_sb")
    ev=[S0,S0+1,S0+2,S0+3,S1,S1+1,S1+2,S1+3,SM+2,SM+3]
    for r in ev[::2]:
        e(f"v_pk_fma_f32 {vr(r,2)}, {vr(r,2)}, {sCC}, {vr(T0,2)} op_sel_hi:[1,1,0] neg_lo:[0,0,1] neg_hi:[0,0,1]")
    for i,r in enumerate(ev[:8]):
        e(f"v_exp_f32 v{r}, v{r}")
        if i==3: gload_half(a,("o",0),24,"go0",1)
        if i in(2,4,6): cvt(P+i//2-1,ev[i-2],ev[i-1])
        if i==4: e(f"v_mov_b64 {vr(S0,2)}, {sONE}")
        if i==6: e(f"v_mov_b64 {vr(S0+2,2)}, {sONE}")
    e(f"v_exp_f32 v{ev[8]}, v{ev[8]}"); cvt(P+3,ev[6],ev[7])
    e(f"v_exp_f32 v{ev[9]}, v{ev[9]}")
    O=[32,36]
    stamp(a,tim,"exp"); stamp(a,tim,"_p0")
    e(f"v_mov_b64 {vr(SM,2)}, {sHALF}")
    mf(S1,S0,P,1)
    cvt(PM,ev[8],ev[8]); cvt(PM+1,ev[9],ev[9])
    stamp(a,tim,"_p1"); a.wait(vm="vx"); stamp(a,tim,"_p2")
    mf(O[0],VX,P,1)
    cvt(VM,VM,VM+1); cvt(VM+1,VM+2,VM+3)
    mf(S1,SM,PM,0,"v_mfma_f32_16x16x16_bf16",2)
    cvt(VM+2,VM+4,VM+5); cvt(VM+3,VM+6,VM+7)
    mf(O[1],VX+4,P,1)
    XA,YA,PO=S0,S1,SM
    zero4(a,XA)
    mf(O[0],VM,PM,0,"v_mfma_f32_16x16x16_bf16",2)
    e(f"v_rcp_f32 v{T0}, v{S1}")
    mf(O[1],VM+2,PM,0,"v_mfma_f32_16x16x16_bf16",2)
    zero4(a,YA)
    PK=PO
    stamp(a,tim,"_p7")
    for i in range(0,4,2):
        for t in range(2): e(f"v_pk_mul_f32 {vr(O[t]+i,2)}, {vr(O[t]+i,2)}, {vr(T0,2)} op_sel_hi:[1,0]")
        for k in range(2): cvt(PK+i+k,O[0]+i+k,O[1]+i+k)
    e(f"s_mov_b64 exec, {sEX}"); e(f"ds_write_b128 {vOW}, {vr(PK,4)}","ow"); e("s_mov_b64 exec, -1")
    stamp(a,tim,"_p8")
    gload_tile(a,("o",9),SLA,"go9")
    slow_ops("opack")
    ks=OPT["kvstride"]
    e(f"s_add_u32 {sSTEP}, {sSTEP}, 1"); e(f"s_add_u32 {sVX}, {sVX}, {ks}")
    if w==0: e(f"s_add_u32 {sKX}, {sKX}, {ks}"); e("s_mov_b32 m0, 0")
    if w==3: e(f"s_add_u32 {sKX2}, {sKX2}, {ks}"); e(f"s_add_u32 {sKXN}, {sKXN}, {ks}"); e(f"s_add_u32 {sVXN}, {sVXN}, {ks}")
    stamp(a,tim,"opack")
    a.wait(lg="ow"); stamp(a,tim,"_p9"); e("s_barrier"); stamp(a,tim,"b3"); stamp(a,tim,"_pa")
    AO=[40,44]
    e(f"ds_read_b128 {vr(AO[0],4)}, {vA} offset:{L_MEM}","ao0"); e(f"ds_read_b128 {vr(AO[1],4)}, {vA} offset:{L_MEM+1024}","ao1")
    lload_tile(a,("o",1),32,"lo1")
    gload_tile(a,("o",10),SLB,"go10")
    SA,SB,SC,SD=24,32,SLA,SLB
    oslot={0:SA,1:SB,3:SA,4:SB,6:SA,7:SB,9:SC,10:SD,19:SA}
    oslot.update({11:SB,12:SC,14:SD,16:SB})
    after={}
    order=sorted(oslot)
    for n in order:
        prev=[m for m in order if m<n and oslot[m]==oslot[n]]
        if prev and n!=19: after.setdefault(prev[-1],[]).append(n)
    RL=[SB,SB+4,SA,SA+4]
    def red_loads():
        for m in range(4): e(f"buffer_load_dwordx4 {vr(RL[m],4)}, {vRL}, {S_WS}, {sPR[m]} offen sc1",f"r{m}")
    z=lambda r: [f"v_mov_b64 {vr(r,2)}, 0",f"v_mov_b64 {vr(r+2,2)}, 0"]
    ad=lambda d,x,y: f"v_add_f32 v{d}, v{x}, v{y}"
    cv=lambda d,x,y: f"v_cvt_pk_bf16_f32 v{d}, v{x}, v{y}"
    tagop=lambda r: f"v_and_or_b32 v{r}, v{r}, -2, {sTAG}"
    post={n:[] for n in range(21)}
    for c in range(2):
        n=8*c
        post[n+3]+=[ad(T0,XA,XA+1),ad(T1,XA+2,XA+3)]
        post[n+5]+=[ad(PO+2,YA,YA+1),ad(PO+3,YA+2,YA+3)]
        post[n+6]+=[cv(PO,T0,PO+2),cv(PO+1,T1,PO+3)]
        post[n+7]+=[ad(T0,XA,XA+1),z(XA)[0],ad(T1,XA+2,XA+3),z(XA)[1],tagop(PO)]
        post[n+9]+=[ad(PO+2,YA,YA+1),z(YA)[0],ad(PO+3,YA+2,YA+3),z(YA)[1],cv(PO+2,T0,PO+2),cv(PO+3,T1,PO+3)]
        post[n+10]+=[(f"buffer_store_dwordx4 {vr(PO,4)}, {vL16}, {S_WS}, {[sP0,sP1][c]} offen {st}",f"p{c}")]
    post[19]+=[ad(T0,XA,XA+1),ad(T1,XA+2,XA+3)]
    post[20]+=[ad(YA,YA,YA+1),ad(YA+2,YA+2,YA+3),cv(T0,T0,YA),cv(T1,T1,YA+2),tagop(T0),
               (f"buffer_store_dwordx2 {vr(T0,2)}, {vL8}, {S_WS}, {sP2} offen {st}","p2")]
    def emit(l):
        for x in l:
            if isinstance(x,tuple):
                if "s" not in OPT["ab"]: e(x[0],x[1])
            elif "v" not in OPT["ab"]: e(x)
    for n in range(20):
        ko=n&1; key=("o",n)
        if n<2: a.wait(lg=f"ao{ko}"); stamp(a,tim,f"_pb{n}")
        if key in TL: a.wait(lg=f"lo{n}")
        elif key in TG: a.wait(vm=f"go{n}")
        sm(a,[XA,YA][(n>>1)&1],AO[ko],key,oslot.get(n))
        for m in after.get(n,[]):
            if ("o",m) in TG: gload_tile(a,("o",m),oslot[m],f"go{m}")
            else: lload_tile(a,("o",m),oslot[m],f"lo{m}")
        if n in(6,8): gload_half(a,("o",19),SA,"go19",(n-6)//2)
        for j in range(4):
            if OPT["prepos"]=="out" and n==OPT["prep"][j]: gload_half(a,("q",0,j>>1),[SLA,SLB][j>>1],f"tq0{j>>1}",j&1)
        if n==2: e("s_barrier")
        if w==0 and n==OPT["rl"]: red_loads()
        if n in(13,): stamp(a,tim,f"o{n}")
        if n>=2: stamp(a,tim,f"_o{n}")
        if n==19 and w<3:
            e(f"v_and_b32 v{PO}, 0xff, {vL16}")
            e(f"ds_read_b128 v[40:43], v{PO} offset:{L_SEL+(256 if w==2 else 0)}","sel")
        emit(post[n])
    emit(post[20])
    stamp(a,tim,"out")
    def slots():
        e(f"s_add_u32 {sMR}, {sMW}, {4096*w}")
        if w<3 and OPT["probe"]=="c": e(f"s_add_u32 {sMF}, {sMW}, {10240+256*w}")
        if w<3 and OPT["probe"]=="b": e(f"s_add_u32 {sPAT}, {sPAT}, 0x01010101")
        for r in (sMW,sMZ):
            e(f"s_add_u32 {r}, {r}, 16384"); e(f"s_and_b32 {r}, {r}, 0xffff"); e(f"s_or_b32 {r}, {r}, {M_OFF}")
        e(f"s_xor_b32 {sTAG}, {sTAG}, 1"); e(f"s_not_b32 {sTAGM}, {sTAGM}")
    if w<3:
        a.wait(lg="all")
        if w==0 and OPT["rl"]>19: delay(a,OPT['d0']); red_loads()
        e(f"v_mov_b32 v13, {sSTEP}"); e(f"v_lshlrev_b32 v14, 4, {vL16}")
        if w==1: delay(a,OPT['d1']); red_loads()
        if w==2:
            delay(a,OPT['d1b'])
            e(f"s_cmp_ge_u32 {sUNIT}, 80"); e(f"s_cbranch_scc1 {L('nored')}")
            red_loads()
        if OPT["prepos"]=="early": prestage()
        stamp(a,tim,"rlis")
        a.label(L("red"))
        for m in range(4):
            a.wait(vm=f"r{m}")
            if m==3:
                e(f"v_bitop3_b32 v{T1}, v{RL[2]}, v{RL[3]}, {sTAGM} bitop3:0x7e")
                e(f"v_bitop3_b32 v{T0}, v{T0}, v{T1}, 1 bitop3:0xa8")
                e(f"v_cmp_ne_u32 vcc, 0, v{T0}")
            mf(44,40,RL[m],m==0)
            if m==1: e(f"v_bitop3_b32 v{T0}, v{RL[0]}, v{RL[1]}, {sTAGM} bitop3:0x7e")
        e(f"s_cmp_eq_u32 {sSTEP}, {NSEG-1}")
        chk("redo")
        for i in range(4): e(f"v_add_f32_dpp v{44+i}, v{44+i}, v{44+i} row_ror:8 row_mask:0xf bank_mask:0xf")
        e(f"v_cvt_pk_bf16_f32 v{T0}, v44, v45"); e(f"v_cvt_pk_bf16_f32 v{T1}, v46, v47")
        e(f"v_min_u32 v{T0}, {sFE}, v{T0}")
        e(f"s_cbranch_scc1 {L('last')}")
        e(f"buffer_store_dwordx2 {vr(T0,2)}, {vRS}, {S_WS}, {sMW} offen {st}","rs")
        e(f"buffer_store_byte v13, v14, {S_T}, {sUNIT} offen {st}","fl")
        e(f"v_mov_b32 v15, -1")
        e(f"buffer_store_dword v15, {vRS}, {S_WS}, {sMZ} offen {st}","mz")
        stamp(a,tim,"red")
        if w==2: a.label(L("nored2"))
        slots(); zero_acc()
    if w==0 or (w<3 and OPT["m1pre"]):
        paddr(12)
        if w==0: delay(a,OPT['d2']); stamp(a,tim,"mis")
        NP=OPT["np"] if w==0 else 1
        for i in range(NP): probe(T0,12); delay(a,OPT["d4"]) if i<NP-1 else None
        a.label(L("m0"))
        for u in range(OPT["unr"] if w==0 else 1):
            e(f"s_waitcnt vmcnt({NP-1})"); pcmp(T0)
            if w==0: probe(T0,12)
            if tim in(1,2): e("s_add_u32 s86, s86, 1")
            if OPT["nosync"]: e(f"s_branch {L('m0ok')}")
            else: e(f"s_cbranch_vccz {L('m0ok')}")
        if w: probe(T0,12)
        spin(); e(f"s_branch {L('m0')}")
        a.label(L("m0ok"))
        if w==0: stamp(a,tim,"det")
        a.vm=[]
        dma(a,nd,sMR,"dma")
        if w==0: e("s_waitcnt vmcnt(0)"); a.vm=[]
    if w<3: a.wait(lg="all")
    if w==3:
        delay(a,OPT['d3'])
        if OPT["prepos"]=="early": prestage()
        if OPT["pub"]:
            e(f"s_add_u32 {sT0}, {sMR}, {sPC}"); e(f"s_sub_u32 {sT0}, {sT0}, {4096*3}")
            if "L" not in OPT["ab"]: e(f"buffer_load_dwordx2 v[4:5], {vL8}, {S_WS}, {sT0} offen sc1","pl")
            e(f"s_add_u32 {sMP}, {sMP}, {OPT['mpstride']}"); e(f"s_add_u32 s10, {sMP}, 320")
        e(f"s_cmp_eq_u32 {sSTEP}, {NSEG-1}"); e(f"s_cbranch_scc1 {L('last')}")
        if OPT["kvchk"]:
            e(f"s_cmp_eq_u32 {sALL}, 1"); e(f"s_cbranch_scc1 {L('kvok')}")
            e(f"s_lshl_b32 {sT0}, {sSTEP}, 7"); e(f"s_add_u32 {sT0}, {sT0}, {KVCNT+256}"); e(f"s_min_u32 {sT0}, {sT0}, {KVCNT+63*128}")
            e(f"s_load_dword s28, s[4:5], {sT0} glc"); e(f"s_load_dword s29, s[4:5], {KVCNT+63*128} glc")
            e("s_waitcnt lgkmcnt(0)")
            e("s_cmp_ge_u32 s29, 32"); e(f"s_cselect_b32 {sALL}, 1, 0")
            e("s_cmp_ge_u32 s28, 32"); e(f"s_cbranch_scc0 {L('kvw')}")
            a.label(L("kvok"))
        slots(); zero_acc()
        a.wait(vm="all",lg="all")
    stamp(a,tim,"pre")
    assert OPT["ab"] or (a.vm[len(a.vm)-len(top_vm):]==top_vm and (top_vm or not a.vm)),(w,a.vm)
    if tim==3:
        e(f"s_cmp_eq_u32 {sSTEP}, {OPT['at']}"); e(f"s_cbranch_scc0 HZ_{L('top')}")
        n=len(STAMPS); e(f"s_memrealtime s[{54+2*n}:{55+2*n}]"); e(f"s_memtime s[{56+2*n}:{57+2*n}]")
        e("s_waitcnt lgkmcnt(0)")
        e(f"s_lshl_b32 {sT0}, {sH}, 2"); e(f"s_add_u32 {sT0}, {sT0}, {w}"); e(f"s_lshl_b32 {sT0}, {sT0}, 7"); e(f"s_add_u32 {sT0}, {sT0}, {DBG_OFF+65536}")
        e(f"v_mov_b32 v{T1}, 0"); e("s_mov_b64 exec, 1")
        for i in range(len(STAMPS)+2):
            e(f"v_mov_b32 v{T0}, s{54+2*i}"); e(f"buffer_store_dword v{T0}, v{T1}, {S_WS}, {sT0} offen offset:{4*i}")
        e("s_waitcnt vmcnt(0)"); e("s_mov_b64 exec, -1")
    e(f"s_branch HZ_{L('top')}")
    if w<3:
        a.label(L("redo"))
        if tim in(1,2): e("s_add_u32 s85, s85, 1")
        e("s_mov_b64 exec, vcc")
        a.label(L("redo2"))
        red_loads(); spin()
        e("s_waitcnt vmcnt(0)")
        e(f"v_bitop3_b32 v{T0}, v{RL[0]}, v{RL[1]}, {sTAGM} bitop3:0x7e"); e(f"v_bitop3_b32 v{T1}, v{RL[2]}, v{RL[3]}, {sTAGM} bitop3:0x7e")
        e(f"v_bitop3_b32 v{T0}, v{T0}, v{T1}, 1 bitop3:0xa8"); e(f"v_cmp_ne_u32 vcc, 0, v{T0}")
        e(f"s_cbranch_vccnz {L('redo2')}")
        e("s_mov_b64 exec, -1"); e("s_nop 1")
        e(f"s_branch {L('red')}")
        a.label(L("last"))
        e(f"s_mov_b32 {sT0}, {MEMP_OFF+63*10240}")
        e(f"buffer_store_dwordx2 {vr(T0,2)}, {vRS}, {S_WS}, {sT0} offen sc1")
        e(f"s_branch {L('done')}")
    if w==2:
        a.label(L("nored"))
        if OPT["prepos"]=="early": prestage()
        e("s_waitcnt vmcnt(0)")
        e(f"s_cmp_eq_u32 {sSTEP}, {NSEG-1}"); e(f"s_cbranch_scc1 {L('done')}")
        e(f"s_branch {L('nored2')}")
    if w==3 and OPT["kvchk"]:
        a.label(L("kvw"))
        if tim in(1,2): e("s_add_u32 s85, s85, 1")
        e(f"v_mov_b32 v{T0}, 0")
        a.label(L("kvw2"))
        e(f"buffer_load_dword v{T1}, v{T0}, {S_WS}, {sT0} offen sc1"); spin(); e("s_waitcnt vmcnt(0)")
        e(f"v_cmp_gt_u32 vcc, 32, v{T1}"); e(f"s_cbranch_vccnz {L('kvw2')}")
        e(f"s_branch {L('kvok')}")
    if w==3:
        a.label(L("last"))
        e("s_waitcnt vmcnt(0)")
        if OPT["pub"]: e(f"buffer_store_dwordx2 v[4:5], {vL8}, {S_T}, {sMP} offen sc1")
        e(f"s_branch {L('done')}")
    if w in(1,2) and not OPT["m1pre"]:
        a.label(L("mr"))
        spin("s86")
        mfetch(); e(f"s_waitcnt vmcnt({nd})")
        pcmp(T1); e(f"s_cbranch_vccnz {L('mr')}")
        e("s_waitcnt vmcnt(0)")
        e(f"s_branch {L('mok')}")
    a.label(L("done"))
    a.vm=[]; a.lg=[]
    e("s_waitcnt vmcnt(0) lgkmcnt(0)")
    if tim in(1,2):
        e("s_memtime s[70:71]"); e("s_waitcnt lgkmcnt(0)"); e("s_sub_u32 s83, s70, s74")
        for i in range(11): e(f"v_mov_b32 v{12+i}, s{76+i}")
        e(f"s_lshl_b32 {sT0}, {sH}, 2"); e(f"s_add_u32 {sT0}, {sT0}, {w}"); e(f"s_lshl_b32 {sT0}, {sT0}, 6"); e(f"s_add_u32 {sT0}, {sT0}, {DBG_OFF}")
        e("v_mov_b32 v10, 0"); e("s_mov_b64 exec, 1")
        e("s_memrealtime s[68:69]"); e("s_waitcnt lgkmcnt(0)")
        for i,r in enumerate((90,92,94,66,68)): e(f"v_mov_b32 v{23+i}, s{r}")
        for i in range(4): e(f"buffer_store_dwordx4 {vr(12+4*i,4)}, v10, {S_WS}, {sT0} offen offset:{16*i}")
        e("s_waitcnt vmcnt(0)")
    e("s_endpgm")
```

```python
S=2048; D=640; H=32; DH=128; NSEG=64; F=1728
FLAG_OFF = 0
LNCNT = 0; KVCNT = 8192; QHCNT = 16384; OCNT = 24576
FL_OFF   = 0x8000
F1_OFF   = 0xA000
M_OFF    = 0x10000
P_OFF    = 0x20000
SW_OFF   = 0x80000
OCNT4    = 0x300000
MEMP_OFF = 0x404000
XK_OFF   = 0x1400000
XV_OFF   = 0x2400000
XQ_OFF   = 0x3400000
O_OFF    = 0x4400000
HH_OFF   = 0x5400000
XN_OFF   = 0x5C00000
YN_OFF   = 0x5E80000
DBG_OFF  = 0x6200000
WS_SIZE  = 0x10000000
A_X=0; A_MEM0=8; A_WQ=16; A_WK=24; A_WV=32; A_WO=40; A_SEG=48; B_X=56; B_W1=64; B_B1=72; B_W2=80; B_B2=88; D_OUT=96; D_DBG=104; D_WS=112
```

```python
from asmlib import *
from layout import *
import chain as C
import struct, math
S_WS=C.S_WS; sDBG=C.sDBG
sW="s13"; sROW="s64"; sRANK="s65"
f32=lambda x: "0x%08x"%struct.unpack("<I",struct.pack("<f",x))[0]
OPT={"tim":0,"hold":0}

def rt(a,i):
    if OPT["tim"]: a.e(f"s_memrealtime s[{70+2*i}:{71+2*i}]")

def spin_wait(a,name,load,cmp_fail,sCNT="s32",sleep=1):
    e=a.e
    a.label(name)
    load()
    e(f"s_add_u32 {sCNT}, {sCNT}, 1"); e(f"s_cmp_gt_u32 {sCNT}, 0x40000"); e("s_cbranch_scc1 L_abort")
    e("s_waitcnt vmcnt(0)"); a.vm=[]
    cmp_fail()
    e(f"s_cbranch_vccz {name}_ok")
    if sleep: e(f"s_sleep {sleep}")
    e(f"s_branch {name}")
    a.label(name+"_ok")

XA=0
ACC=32; BI=64; GT=80
vLN="v232"; vL16="v233"; vDA="v234"; vDB="v235"; vVO="v236"; vRD="v237"; TMP=240
S_W="s[8:11]"; S_X="s[20:23]"
sTILE="s24"; sSEG="s26"; sSRC="s27"; sOUT="s28"; sOUT2="s29"; sSTR="s30"; sOFF="s31"; sCNT="s32"; sWI="s33"; sA="s34"; sB="s35"; sKIND="s36"; sMIX="s37"
sSLOT="s16"; sSIG="s17"; sOSTR="s18"; sIT="s19"; sFILL="s38"; sG0="s39"; sOUT3="s14"; sOUT4="s15"; sHS="s25"
def wreg(j,k,t):
    i=160*j+8*k+4*t
    return vr(i,4,'a') if i<256 else vr(i-256+160,4)
def wreg2(j,k,t,x):
    i=160*j+8*k+4*t+2*x
    return vr(i,2,'a') if i<256 else vr(i-256+160,2)

def layernorm(a):
    e=a.e; one=TMP; S=[TMP+4,TMP+8]
    for k in range(20):
        e(f"v_mfma_f32_16x16x32_bf16 {vr(S[0],4)}, {vr(one,4)}, {vr(4*k,4)}, {'0' if k==0 else vr(S[0],4)}")
        e(f"v_mfma_f32_16x16x32_bf16 {vr(S[1],4)}, {vr(4*k,4)}, {vr(4*k,4)}, {'0' if k==0 else vr(S[1],4)}")
    q=S[1]
    for i in range(1,4):
        e(f"v_cmp_eq_u32 vcc, {i}, v{TMP+12}"); e(f"v_cndmask_b32 v{q}, v{q}, v{q+i}, vcc")
    e(f"ds_bpermute_b32 v{q}, v{TMP+13}, v{q}","bp")
    m=S[0]
    e(f"v_mul_f32 v{m}, {f32(1/640)}, v{m}")
    a.wait(lg="bp")
    e(f"v_mul_f32 v{q}, {f32(1/640)}, v{q}"); e(f"v_fma_f32 v{q}, -v{m}, v{m}, v{q}"); e(f"v_max_f32 v{q}, 0, v{q}")
    rb=lambda r: (e(f"v_cvt_pk_bf16_f32 v{r}, v{r}, v{r}"), e(f"v_and_b32 v{r}, {sMIX}, v{r}"))
    rb(m); rb(q); e(f"v_add_f32 v{q}, {f32(1e-5)}, v{q}"); rb(q); e(f"v_sqrt_f32 v{q}, v{q}"); rb(q)
    e(f"v_rcp_f32 v{q}, v{q}"); e(f"v_mul_f32 v{m}, v{m}, v{q}")
    for k in range(20):
        if k and k%4==0: e(f"s_add_u32 {sOUT}, {sOUT}, 4096")
        for r in range(4*k,4*k+4):
            t=TMP+14
            e(f"v_lshlrev_b32 v{t}, 16, v{r}"); e(f"v_and_b32 v{t+1}, {sMIX}, v{r}")
            e(f"v_pk_fma_f32 {vr(t,2)}, {vr(t,2)}, {vr(q,2)}, {vr(m,2)} op_sel_hi:[1,0,0] neg_lo:[0,0,1] neg_hi:[0,0,1]")
            e(f"v_cvt_pk_bf16_f32 v{r}, v{t}, v{t+1}")
        e(f"buffer_store_dwordx4 {vr(4*k,4)}, {vL16}, {S_WS}, {sOUT} offen offset:{1024*(k%4)} sc1")

def add_one(a,off):
    e=a.e
    e("s_mov_b64 exec, 1")
    e(f"v_mov_b32 v{TMP}, 0"); e(f"v_mov_b32 v{TMP+1}, 1")
    e(f"buffer_atomic_add v{TMP+1}, v{TMP}, {S_WS}, {off} offen")
    e("s_mov_b64 exec, -1"); e("s_nop 3")

def seg_dma(a):
    out=[]
    for i in range(10):
        g=[]
        if i%4==0: g.append(f"s_add_u32 m0, {sFILL}, {4096*(i//4)}")
        if i in(4,8): g.append(f"s_add_u32 {sSRC}, {sSRC}, 4096")
        g.append((f"buffer_load_dwordx4 {vL16}, {S_X}, {sSRC} offen offset:{1024*(i%4)} sc1 lds","d"))
        out.append(g)
    out[-1]+= [f"s_add_u32 {sSRC}, {sSRC}, {40960-8192}",f"s_add_u32 {sFILL}, {sFILL}, 40960",f"s_cmp_ge_u32 {sFILL}, 163840",
               f"s_cselect_b32 {sA}, 163840, 0",f"s_sub_u32 {sFILL}, {sFILL}, {sA}"]
    return out
def emit(a,g):
    for x in g:
        if isinstance(x,tuple): a.e(x[0],x[1])
        else: a.e(x)

def seg_loop(a,kind):
    e=a.e; L=lambda s: f"W{kind}_{s}"
    a.label(L("top"))
    NJ=1 if kind=="H" else 2
    e(f"s_waitcnt vmcnt({10+2*NJ})"); e("s_barrier")
    a.vm=[]; a.lg=[]
    rd=lambda f: e(f"ds_read_b128 {vr(4*(f%8),4)}, {vRD} offset:{1024*f}",f"f{f}")
    LA=7 if NJ==1 else 4
    for f in range(LA): rd(f)
    e(f"s_cmp_lt_u32 {sIT}, 2"); e(f"s_cselect_b32 {sA}, 1, {sW}"); e(f"s_cmp_eq_u32 {sA}, 0"); e(f"s_cbranch_scc0 {L('nosig')}")
    add_one(a,sSIG)
    a.label(L("nosig")); a.vm=[]
    fill=seg_dma(a)
    ac=lambda j,tt,t: ACC+16*j+8*tt+4*t
    for f in range(40):
        tt,k=f//20,f%20
        a.wait(lg=f"f{f}")
        for j in range(NJ):
            for t in range(2):
                A,B=wreg(j,k,t),vr(4*(f%8),4)
                if kind=="V": A,B=B,A
                d=vr(ac(j,tt,t),4)
                e(f"v_mfma_f32_16x16x32_bf16 {d}, {A}, {B}, {'0' if k==0 else d}")
                if j==0 and t==0 and f+LA<40: rd(f+LA)
        if f%3==0 and fill: emit(a,fill.pop(0))
    e(f"s_add_u32 {sSLOT}, {sSLOT}, 40960"); e(f"s_cmp_ge_u32 {sSLOT}, 163840"); e(f"s_cselect_b32 {sSLOT}, 0, {sSLOT}")
    e(f"v_add_u32 {vRD}, {sSLOT}, {vL16}")
    so=[[sOUT,sOUT2],[sOUT3,sOUT4]]
    for j in range(NJ):
      if kind=="K":
        for tt in range(2):
            t0,t1=ac(j,tt,0),ac(j,tt,1); o=TMP+4+4*tt
            for i,(x,y) in enumerate(((t0,t0+2),(t1,t1+2),(t0+1,t0+3),(t1+1,t1+3))): e(f"v_cvt_pk_bf16_f32 v{o+i}, v{x}, v{y}")
            e(f"buffer_store_dwordx4 {vr(o,4)}, {vL16}, {S_WS}, {so[j][tt]} offen sc1")
      elif kind=="V":
        for t in range(2):
            t0,t1=ac(j,0,t),ac(j,1,t); o=TMP+4+4*t
            for i,(x,y) in enumerate(((t0,t0+1),(t0+2,t0+3),(t1,t1+1),(t1+2,t1+3))): e(f"v_cvt_pk_bf16_f32 v{o+i}, v{x}, v{y}")
            e(f"buffer_store_dwordx4 {vr(o,4)}, {vVO}, {S_WS}, {so[j][0]} offen offset:{128*t} sc1")
      else:
        for tt in range(2):
            for t in range(2):
                for i in range(4):
                    z=ac(j,tt,t)+i; u=GT+4+i
                    e(f"v_add_f32 v{z}, v{z}, v{BI+8*j+4*t+i}")
                    e(f"v_mul_f32 v{u}, v{z}, v{z}"); e(f"v_fma_f32 v{u}, v{u}, {sG0}, v{GT}"); e(f"v_mul_f32 v{u}, v{u}, v{z}")
                for i in range(4): e(f"v_exp_f32 v{GT+4+i}, v{GT+4+i}")
                for i in range(4): e(f"v_add_f32 v{GT+4+i}, 1.0, v{GT+4+i}")
                for i in range(4): e(f"v_rcp_f32 v{GT+4+i}, v{GT+4+i}")
                for i in range(4): e(f"v_mul_f32 v{ac(j,tt,t)+i}, v{ac(j,tt,t)+i}, v{GT+4+i}")
            t0,t1=ac(j,tt,0),ac(j,tt,1); o=TMP+4+4*tt
            for i,(x,y) in enumerate(((t0,t0+1),(t0+2,t0+3),(t1,t1+1),(t1+2,t1+3))): e(f"v_cvt_pk_bf16_f32 v{o+i}, v{x}, v{y}")
            e(f"buffer_store_dwordx4 {vr(o,4)}, {vL16}, {S_WS}, {so[j][tt]} offen sc1")
    for r in (sOUT,sOUT2,sOUT3,sOUT4): e(f"s_add_u32 {r}, {r}, {sOSTR}")
    e(f"s_add_u32 {sSIG}, {sSIG}, 128")
    if OPT["tim"]:
        e(f"s_cmp_eq_u32 {sIT}, 3"); e(f"s_cbranch_scc0 {L('nt')}"); rt(a,2); e("s_waitcnt lgkmcnt(0)"); a.label(L("nt"))
    e(f"s_add_u32 {sIT}, {sIT}, 1"); e(f"s_cmp_lt_u32 {sIT}, 64"); e(f"s_cbranch_scc1 {L('top')}")
    e("s_branch W_tail")

def zero_wait(a,name):
    e=a.e
    spin_wait(a,name,lambda:(e(f"v_mov_b32 v{TMP+4}, 12"),e(f"global_load_dword v{TMP+5}, v{TMP+4}, {sDBG} sc1")),lambda:e(f"v_cmp_gt_u32 vcc, 32, v{TMP+5}"))

def common(a):
    e=a.e
    e(f"s_load_dwordx2 s[20:21], s[0:1], {A_X}")
    e(f"s_load_dwordx2 s[40:41], s[0:1], {A_WQ}"); e(f"s_load_dwordx2 s[42:43], s[0:1], {A_WK}"); e(f"s_load_dwordx2 s[44:45], s[0:1], {A_WV}")
    e(f"s_load_dwordx2 s[46:47], s[0:1], {B_W1}"); e(f"s_load_dwordx2 s[48:49], s[0:1], {B_B1}")
    e(f"v_mov_b32 {vLN}, v0"); e(f"v_lshlrev_b32 {vL16}, 4, v0")
    e(f"s_sub_u32 {sWI}, {sROW}, 1"); e(f"s_lshl_b32 {sWI}, {sWI}, 5"); e(f"s_add_u32 {sWI}, {sWI}, {sRANK}")
    e(f"s_mov_b32 {sCNT}, 0"); e(f"s_mov_b32 {sMIX}, 0xffff0000")
    e(f"s_mov_b32 s22, {S*D*2}"); e("s_mov_b32 s23, 0x20000"); e("s_mov_b32 s11, 0x20000")
    e("s_waitcnt lgkmcnt(0)")

def norm_rows(a):
    e=a.e; t=TMP
    e(f"s_sub_u32 {sHS}, {sWI}, 64"); e(f"s_cmp_lt_u32 {sHS}, 128"); e(f"s_cselect_b32 {sA}, {sW}, 1")
    e(f"s_cmp_eq_u32 {sA}, 0"); e("s_cbranch_scc0 W_noln")
    e(f"v_and_b32 v{t}, 15, {vLN}"); e(f"v_mul_u32_u24 v{t}, 1280, v{t}"); e(f"v_lshrrev_b32 v{t+1}, 4, {vLN}"); e(f"v_lshl_add_u32 v{t}, v{t+1}, 4, v{t}")
    e(f"s_mul_i32 {sA}, {sHS}, {16*1280}")
    for k in range(20): e(f"buffer_load_dwordx4 {vr(4*k,4)}, v{t}, {S_X}, {sA} offen offset:{64*k}")
    e(f"s_mul_i32 {sA}, {sHS}, 5120"); e(f"s_add_u32 {sA}, {sA}, {MEMP_OFF}"); e(f"s_add_u32 {sOUT}, {sA}, 4096")
    e(f"v_mov_b64 {vr(TMP+4,2)}, -1"); e(f"v_mov_b64 {vr(TMP+6,2)}, -1")
    for i in range(5): e(f"buffer_store_dwordx4 {vr(TMP+4,4)}, {vL16}, {S_WS}, {sA if i<4 else sOUT} offen offset:{1024*(i%4)} sc1")
    for i in range(4): e(f"v_mov_b32 v{TMP+i}, 0x3f803f80")
    e(f"v_and_b32 v{TMP+12}, 15, {vLN}"); e(f"v_lshrrev_b32 v{TMP+13}, 2, v{TMP+12}"); e(f"v_lshl_add_u32 v{TMP+13}, v{TMP+13}, 4, v{TMP+12}")
    e(f"v_lshlrev_b32 v{TMP+13}, 2, v{TMP+13}"); e(f"v_and_b32 v{TMP+12}, 3, v{TMP+12}")
    e(f"s_mul_i32 {sOUT}, {sHS}, 20480"); e(f"s_add_u32 {sOUT2}, {sOUT}, {YN_OFF}"); e(f"s_add_u32 {sOUT}, {sOUT}, {XN_OFF}")
    e("s_waitcnt vmcnt(5)")
    rt(a,0)
    e(f"s_mov_b32 {sIT}, 0")
    a.label("W_ln")
    layernorm(a)
    e(f"s_mov_b32 {sOUT}, {sOUT2}"); e(f"s_add_u32 {sIT}, {sIT}, 1"); e(f"s_cmp_lt_u32 {sIT}, 2"); e("s_cbranch_scc1 W_ln")
    zero_wait(a,"W_zero")
    e(f"s_lshr_b32 {sA}, {sHS}, 1"); e(f"s_lshl_b32 {sA}, {sA}, 7"); e(f"s_add_u32 {sA}, {sA}, {LNCNT}")
    add_one(a,sA)
    a.label("W_noln"); a.vm=[]; a.lg=[]

def project(a):
    e=a.e; t=TMP
    e(f"s_lshl_b32 {sTILE}, {sWI}, 1"); e(f"s_add_u32 {sA}, {sWI}, 48"); e(f"s_min_u32 {sTILE}, {sTILE}, {sA}"); e(f"s_lshr_b32 {sKIND}, {sTILE}, 5")
    e(f"s_cmp_eq_u32 {sKIND}, 0"); e("s_cselect_b32 s8, s42, s44"); e("s_cselect_b32 s9, s43, s45")
    e(f"s_cmp_eq_u32 {sKIND}, 2"); e("s_cselect_b32 s8, s40, s8"); e("s_cselect_b32 s9, s41, s9")
    e(f"s_cmp_eq_u32 {sKIND}, 3"); e("s_cselect_b32 s8, s46, s8"); e("s_cselect_b32 s9, s47, s9")
    e(f"s_mov_b32 {sA}, 8192"); e(f"s_cselect_b32 {sSTR}, {F*2}, {sA}"); e(f"s_mul_i32 s10, {sSTR}, {D}")
    e(f"v_lshrrev_b32 v{t+2}, 4, {vLN}"); e(f"v_lshlrev_b32 v{t+3}, 1, v{t+2}"); e(f"v_and_b32 v{t+4}, 15, {vLN}"); e(f"v_xor_b32 v{t+3}, v{t+3}, v{t+4}")
    e(f"s_lshl_b32 {sA}, {sW}, 4"); e(f"v_add_u32 v{t+2}, {sA}, v{t+2}"); e(f"v_mul_lo_u32 v{t+2}, v{t+2}, {sSTR}")
    e(f"v_lshl_add_u32 {vDA}, v{t+3}, 4, v{t+2}"); e(f"v_xor_b32 v{t+3}, 8, v{t+3}"); e(f"v_lshl_add_u32 {vDB}, v{t+3}, 4, v{t+2}")
    e(f"s_lshl_b32 {sSTR}, {sSTR}, 2"); e(f"s_mul_i32 {sSRC}, {sSTR}, 13"); e(f"s_lshl_b32 {sB}, {sW}, 12")
    e(f"v_bfe_u32 v{t}, {vLN}, 2, 2"); e(f"v_bfe_u32 v{t+1}, {vLN}, 4, 1"); e(f"v_lshl_add_u32 v{t+1}, v{t+1}, 2, v{t}")
    e(f"v_lshrrev_b32 v{t+2}, 4, {vLN}"); e(f"v_lshl_add_u32 v{t+2}, v{t+2}, 3, v{t}"); e(f"v_lshlrev_b32 v{t+2}, 8, v{t+2}")
    e(f"v_and_b32 v{t+3}, 3, {vLN}"); e(f"v_lshl_add_u32 v{t+2}, v{t+3}, 3, v{t+2}")
    e(f"s_lshl_b32 {sA}, {sW}, 1")
    e(f"v_xor_b32 v{t+3}, {sA}, v{t+1}"); e(f"v_lshl_add_u32 v{t+8}, v{t+3}, 5, v{t+2}")
    e(f"v_xor_b32 v{t+3}, 1, v{t+3}"); e(f"v_lshl_add_u32 v{t+9}, v{t+3}, 5, v{t+2}")
    def stage(n):
        if n%10==0:
            e(f"s_and_b32 {sOFF}, {sTILE}, 31"); e(f"s_add_u32 {sOFF}, {sOFF}, {n//10}"); e(f"s_lshl_b32 {sOFF}, {sOFF}, 8")
        for i in range(4):
            e(f"s_add_u32 m0, {sB}, {(n%10)*16384+i*1024}")
            e(f"buffer_load_dwordx4 {vDA if i<2 else vDB}, {S_W}, {sOFF} offen lds",f"w{n}")
            e(f"s_add_u32 {sOFF}, {sOFF}, {sSTR if i<3 else sSRC}")
    for n in range(10): stage(n)
    for n in range(20):
        j,st=n//10,n%10
        a.wait(vm=f"w{n}"); e("s_barrier")
        if n==1: e(f"s_cmp_eq_u32 {sKIND}, 3"); e("s_cselect_b32 s10, 0, s10")
        if 1<=n<=10: stage(n+9)
        if st in(4,8): e(f"v_add_u32 v{t+8}, 0x10000, v{t+8}"); e(f"v_add_u32 v{t+9}, 0x10000, v{t+9}")
        if n==10: e(f"v_subrev_u32 v{t+8}, 0x20000, v{t+8}"); e(f"v_subrev_u32 v{t+9}, 0x20000, v{t+9}")
        for ks in range(2):
            for tl in range(2):
                for x in range(2): e(f"ds_read_b64_tr_b16 {wreg2(j,2*st+ks,tl,x)}, v{t+8+tl} offset:{(st%4)*16384+ks*8192+x*1024}")
        e("s_waitcnt lgkmcnt(0)"); a.lg=[]
    e(f"v_and_b32 v{t}, 1, {vLN}"); e(f"v_lshlrev_b32 {vVO}, 10, v{t}"); e(f"v_lshrrev_b32 v{t}, 4, {vLN}"); e(f"v_lshl_add_u32 {vVO}, v{t}, 8, {vVO}")
    e(f"v_bfe_u32 v{t}, {vLN}, 1, 3"); e(f"v_lshl_add_u32 {vVO}, v{t}, 4, {vVO}")
    e("s_mov_b32 s8, s48"); e("s_mov_b32 s9, s49"); e(f"s_cmp_eq_u32 {sKIND}, 3"); e(f"s_cselect_b32 s10, {F*2}, 0")
    e(f"v_lshrrev_b32 v{t}, 4, {vLN}"); e(f"v_lshlrev_b32 v{t}, 3, v{t}"); e(f"s_and_b32 {sA}, {sTILE}, 31"); e(f"s_lshl_b32 {sA}, {sA}, 8"); e(f"s_lshl_b32 {sB}, {sW}, 6"); e(f"s_add_u32 {sA}, {sA}, {sB}")
    for j in range(2):
        for tl in range(2): e(f"buffer_load_dwordx2 {vr(88+4*j+2*tl,2)}, v{t}, {S_W}, {sA} offen offset:{256*j+32*tl}")
    e(f"v_lshlrev_b32 v{t+6}, 3, {vL16}")
    zero_wait(a,"W_zero2")
    spin_wait(a,"W_lnw",lambda:e(f"buffer_load_dword v{t+7}, v{t+6}, {S_WS}, 0 offen sc1"),lambda:e(f"v_cmp_gt_u32 vcc, 2, v{t+7}"),sleep=4)
    for i in range(8):
        e(f"v_lshlrev_b32 v{BI+2*i}, 16, v{88+i}"); e(f"v_and_b32 v{BI+2*i+1}, {sMIX}, v{88+i}")
    k0=math.sqrt(2/math.pi); l2e=math.log2(math.e)
    e(f"s_mov_b32 {sG0}, {f32(-2*k0*0.044715*l2e)}"); e(f"v_mov_b32 v{GT}, {f32(-2*k0*l2e)}")
    e("s_barrier")
    rt(a,1)
    e(f"s_cmp_eq_u32 {sKIND}, 3"); e(f"s_mov_b32 {sA}, {XN_OFF}"); e(f"s_cselect_b32 {sA}, {YN_OFF}, {sA}")
    e(f"s_add_u32 s20, s4, {sA}"); e("s_addc_u32 s21, s5, 0"); e(f"s_mov_b32 s22, {64*40960}")
    e(f"s_mul_i32 {sFILL}, {sW}, 10240"); e(f"s_mov_b32 {sSRC}, {sFILL}")
    e(f"s_mov_b32 {sSLOT}, 0"); e(f"v_mov_b32 {vRD}, {vL16}"); e(f"s_mov_b32 {sIT}, 0")
    e(f"s_and_b32 {sA}, {sTILE}, 31"); e(f"s_cmp_eq_u32 {sKIND}, 3"); e("s_cbranch_scc1 W_setH")
    e(f"s_lshl_b32 {sOUT}, {sA}, 13")
    e(f"s_lshl_b32 {sA}, {sKIND}, 24"); e(f"s_add_u32 {sOUT}, {sOUT}, {sA}"); e(f"s_add_u32 {sOUT}, {sOUT}, {XK_OFF}")
    e(f"s_cmp_eq_u32 {sKIND}, 1"); e(f"s_cselect_b32 {sA}, 11, 10"); e(f"s_lshl_b32 {sA}, {sW}, {sA}"); e(f"s_add_u32 {sOUT}, {sOUT}, {sA}")
    e(f"s_add_u32 {sOUT2}, {sOUT}, 4096"); e(f"s_add_u32 {sOUT3}, {sOUT}, 8192"); e(f"s_add_u32 {sOUT4}, {sOUT}, 12288"); e(f"s_mov_b32 {sOSTR}, {32*8192}"); e("s_branch W_setD")
    a.label("W_setH")
    e(f"s_lshl_b32 {sA}, {sA}, 2"); e(f"s_add_u32 {sA}, {sA}, {sW}")
    e(f"s_lshl_b32 {sOUT}, {sA}, 10"); e(f"s_add_u32 {sOUT}, {sOUT}, {HH_OFF}"); e(f"s_cmp_lt_u32 {sA}, 54"); e(f"s_cselect_b32 {sOUT}, {sOUT}, 0x7f000000")
    e(f"s_add_u32 {sOUT2}, {sOUT}, {54*1024}"); e(f"s_mov_b32 {sOSTR}, {2*54*1024}")
    a.label("W_setD")
    e(f"s_cmp_lt_u32 {sKIND}, 2"); e(f"s_mov_b32 {sA}, {QHCNT-2*128}"); e(f"s_cselect_b32 {sSIG}, {KVCNT-2*128}, {sA}")
    for i in range(3):
        for g in seg_dma(a): emit(a,g)
    e(f"s_cmp_eq_u32 {sKIND}, 1"); e("s_cbranch_scc1 WV_top"); e(f"s_cmp_eq_u32 {sKIND}, 3"); e("s_cbranch_scc1 WH_top")
    seg_loop(a,"K"); seg_loop(a,"V"); seg_loop(a,"H")
    a.label("W_tail")
    e("s_waitcnt vmcnt(0)"); e("s_barrier")
    e(f"s_cmp_eq_u32 {sW}, 0"); e("s_cbranch_scc0 W_tail2")
    for i in range(2):
        add_one(a,sSIG); e(f"s_add_u32 {sSIG}, {sSIG}, 128")
    a.label("W_tail2")
    rt(a,3)
    a.vm=[]; a.lg=[]
    finish(a)

def load_pairs(a,groups,LB,nreg,lock=True):
    e=a.e; sT0="s34"
    def issue(i):
        setup,loads,_,_=groups[i]; lb=LB[i%len(LB)]
        for x in setup: e(x)
        for j,(vo,off) in enumerate(loads):
            e(f"s_mov_b32 {sT0}, {off}"); e(f"buffer_load_dword v{lb+j}, {vo}, s[8:11], {sT0} offen",f"w{i}")
    def process(i):
        _,loads,dlo,dhi=groups[i]; lb=LB[i%len(LB)]
        a.wait(vm=f"w{i}")
        if lock: e("s_barrier")
        for dst,sel in ((dlo,"s38"),(dhi,"s39")):
            for R,(k,r) in enumerate(dst):
                if k=="v": e(f"v_perm_b32 v{r}, v{lb+2*R+1}, v{lb+2*R}, {sel}")
                else:
                    e(f"v_perm_b32 v{4+(R&3)}, v{lb+2*R+1}, v{lb+2*R}, {sel}"); e(f"v_accvgpr_write_b32 a{r}, v{4+(R&3)}")
    e("s_mov_b32 s38, 0x05040100"); e("s_mov_b32 s39, 0x07060302")
    n=len(LB)-1
    for i in range(n): issue(i)
    for i in range(len(groups)):
        if i+n<len(groups): issue(i+n)
        process(i)

def stageA(a):
    e=a.e
    sH="s24"; sS="s25"; sT0="s34"; sT1="s35"; sQ="s26"; sK="s27"; sV="s28"; sM="s29"; sO="s30"; sOC="s31"; sQ2="s36"; sK2="s37"
    sCC="s[96:97]"; sC="s96"
    e(f"s_and_b32 {sH}, s33, 31"); e(f"s_lshr_b32 {sS}, s33, 5"); e(f"s_sub_u32 {sS}, {sS}, 2")
    e(f"v_mov_b32 v15, {vLN}")
    e("v_lshrrev_b32 v4, 5, v15"); e("v_lshlrev_b32 v4, 4, v4"); e("v_bfe_u32 v5, v15, 4, 1"); e("v_lshl_add_u32 v4, v5, 2, v4")
    e("v_and_b32 v5, 15, v15"); e("v_lshlrev_b32 v5, 2, v5")
    e(f"s_lshl_b32 {sT0}, {sH}, 8"); e(f"s_lshl_b32 {sT1}, {sW}, 6"); e(f"s_add_u32 {sT0}, {sT0}, {sT1}")
    e("v_lshl_add_u32 v1, v4, 13, v5"); e(f"v_add_u32 v1, {sT0}, v1")
    e(f"s_mov_b32 s10, {D*8192}")
    place=lambda i: ("a",8*i) if i<32 else ("v",192+8*(i-32))
    T={}
    groups=[]
    for m,(lo,hi) in (("k",("s42","s43")),("v",("s44","s45"))):
        for k in range(10):
            loads=[("v1",(64*k+32*(R>>2)+8*(R&1)+2*((R>>1)&1)+x)*8192) for R in range(8) for x in range(2)]
            d=[]
            for tau in range(2):
                T[(m,k,tau)]=p=place(len(T)); d.append([(p[0],p[1]+R) for R in range(8)])
            groups.append(([f"s_mov_b32 s8, {lo}",f"s_mov_b32 s9, {hi}"] if k==0 else [],loads,d[0],d[1]))
    load_pairs(a,groups,[16,32,48],8)
    vL16="v0"; vA="v1"; vIDX="v2"; vXW="v6"; vXR="v7"; vML="v8"; vML3="v9"; vDG="v3"
    e("v_lshlrev_b32 v0, 4, v15")
    e("v_lshrrev_b32 v12, 5, v15"); e("v_lshlrev_b32 v1, 9, v12"); e("v_bfe_u32 v12, v15, 1, 3"); e("v_lshl_add_u32 v1, v12, 6, v1")
    e("v_bfe_u32 v12, v15, 4, 1"); e("v_lshl_add_u32 v1, v12, 5, v1"); e("v_and_b32 v12, 1, v15"); e("v_lshl_add_u32 v1, v12, 4, v1")
    e("v_mov_b32 v13, 0xaaaa"); e("v_mul_u32_u24 v2, v12, v13"); e("v_add_u32 v2, 0x4444, v2")
    LX=10240
    e("v_lshrrev_b32 v12, 5, v15"); e("v_lshlrev_b32 v12, 2, v12"); e("v_and_b32 v13, 15, v15"); e("v_xor_b32 v12, v12, v13")
    e("v_lshlrev_b32 v6, 3, v12"); e("v_lshrrev_b32 v12, 4, v15"); e("v_lshl_add_u32 v6, v12, 7, v6")
    e(f"s_lshl_b32 {sT0}, {sW}, 10"); e(f"s_add_u32 {sT0}, {sT0}, {LX}"); e(f"v_add_u32 v6, {sT0}, v6")
    e("v_bfe_u32 v12, v15, 3, 1"); e("v_lshlrev_b32 v7, 3, v12"); e("v_lshrrev_b32 v12, 4, v15"); e("v_lshl_add_u32 v7, v12, 1, v7")
    e("v_bfe_u32 v12, v15, 2, 1"); e("v_add_u32 v7, v7, v12"); e("v_bfe_u32 v12, v15, 1, 1"); e("v_lshlrev_b32 v12, 2, v12"); e("v_xor_b32 v7, v7, v12")
    e("v_lshlrev_b32 v7, 3, v7"); e("v_and_b32 v12, 3, v15"); e("v_lshl_add_u32 v7, v12, 7, v7"); e(f"v_add_u32 v7, {LX}, v7")
    e(f"s_mul_i32 {sT0}, {sW}, 2560"); e(f"v_add_u32 v8, {sT0}, v0")
    e("v_and_b32 v9, 0x1ff, v0"); e(f"v_add_u32 v9, {sT0}, v9")
    e("v_lshrrev_b32 v12, 4, v15"); e("v_lshlrev_b32 v12, 2, v12"); e("v_and_b32 v13, 15, v15"); e("v_sub_u32 v3, v13, v12")
    c=(128**-0.5)*math.log2(math.e)
    e(f"s_mov_b32 s96, {f32(c)}"); e(f"s_mov_b32 s97, {f32(c)}")
    e("s_mov_b32 s98, 0x3f803f80"); e("s_mov_b32 s99, 0x3f803f80"); e("s_mov_b32 s100, 0x3f003f00"); e("s_mov_b32 s101, 0x3f003f00")
    Q=16; K=48; VX=80; SX={(0,0):88,(1,0):92,(1,1):96}; SM=[100,104]; AB=108; KA=148; VA=156; X=164; P=[16,24]; O=32; ONE=48; SUM=52; PK=56
    rt(a,4)
    a.label("A_seg")
    e(f"s_lshl_b32 {sT0}, {sS}, 7"); e(f"s_add_u32 {sT0}, {sT0}, {KVCNT}")
    e("v_lshrrev_b32 v12, 9, v0"); e("v_lshlrev_b32 v10, 13, v12"); e("v_mul_u32_u24 v12, 2, v12"); e("v_sub_u32 v12, 32, v12")
    spin_wait(a,"A_qh",lambda:e(f"buffer_load_dword v11, v10, {S_WS}, {sT0} offen sc1"),lambda:e("v_cmp_gt_u32 vcc, v12, v11"),sleep=8)
    e(f"s_lshl_b32 {sT0}, {sS}, 5"); e(f"s_add_u32 {sT0}, {sT0}, {sH}"); e(f"s_lshl_b32 {sT0}, {sT0}, 13")
    e(f"s_add_u32 {sQ}, {sT0}, {XQ_OFF}"); e(f"s_add_u32 {sQ2}, {sQ}, 4096"); e(f"s_add_u32 {sK}, {sT0}, {XK_OFF}"); e(f"s_add_u32 {sK2}, {sK}, 4096")
    e(f"s_lshl_b32 {sT1}, {sW}, 11"); e(f"s_add_u32 {sV}, {sT0}, {sT1}"); e(f"s_add_u32 {sV}, {sV}, {XV_OFF}")
    for t in range(2):
        for ke in range(4):
            e(f"buffer_load_dwordx4 {vr(Q+16*t+4*ke,4)}, {vL16}, {S_WS}, {sQ2 if t else sQ} offen offset:{1024*ke} sc1",f"q{t}")
        for ke in range(4):
            e(f"buffer_load_dwordx4 {vr(K+16*t+4*ke,4)}, {vL16}, {S_WS}, {sK2 if t else sK} offen offset:{1024*ke} sc1",f"k{t}")
    for t in range(2): e(f"buffer_load_dwordx4 {vr(VX+4*t,4)}, {vL16}, {S_WS}, {sV} offen offset:{1024*t} sc1","vx")
    e(f"s_mul_i32 {sM}, {sS}, 10240"); e(f"s_add_u32 {sM}, {sM}, {MEMP_OFF}")
    e(f"s_lshl_b32 {sO}, {sS}, 6"); e(f"s_add_u32 {sO}, {sO}, {sH}"); e(f"s_lshl_b32 {sO}, {sO}, 2"); e(f"s_add_u32 {sO}, {sO}, {sW}"); e(f"s_lshl_b32 {sO}, {sO}, 10"); e(f"s_add_u32 {sO}, {sO}, {O_OFF}")
    e(f"s_lshl_b32 {sOC}, {sS}, 7"); e(f"s_add_u32 {sOC}, {sOC}, {OCNT}")
    def mf(d,A,B,first,op="v_mfma_f32_16x16x32_bf16",n=4):
        e(f"{op} {vr(d,4)}, {vr(A,n)}, {vr(B,n)}, {'0' if first else vr(d,4)}")
    for (qt,kt),d in SX.items():
        a.wait(vm=[f"q{qt}",f"k{kt}"])
        for ke in range(4): mf(d,K+16*kt+4*ke,Q+16*qt+4*ke,ke==0)
    for r in range(KA,KA+16,2): e(f"v_mov_b64 {vr(r,2)}, 0")
    e("v_mov_b32 v11, 0xff800000")
    for i in range(4):
        e(f"v_cmp_gt_i32 vcc, {i}, {vDG}")
        for d in (SX[(0,0)],SX[(1,1)]): e(f"v_cndmask_b32 v{d+i}, v{d+i}, v11, vcc")
    def ml():
        e(f"buffer_load_dwordx4 {vr(AB,4)}, {vML}, {S_WS}, {sM} offen sc1"); e(f"buffer_load_dwordx4 {vr(AB+4,4)}, {vML}, {S_WS}, {sM} offen offset:1024 sc1")
        e(f"buffer_load_dwordx4 {vr(AB+8,4)}, {vML3}, {S_WS}, {sM} offen offset:2048 sc1")
    def mc():
        e(f"v_max3_u32 v10, v{AB}, v{AB+2}, v{AB+4}"); e(f"v_max3_u32 v10, v10, v{AB+6}, v{AB+8}"); e(f"v_max_u32 v10, v10, v{AB+10}")
        e("v_cmp_eq_u32 vcc, -1, v10")
    spin_wait(a,"A_mem",ml,mc,sleep=2)
    e(f"ds_write_b128 {vML}, {vr(AB,4)}"); e(f"ds_write_b128 {vML}, {vr(AB+4,4)} offset:1024"); e(f"ds_write_b128 {vML3}, {vr(AB+8,4)} offset:2048")
    a.wait(lg="all"); e("s_barrier")
    for k in range(10): e(f"ds_read_b128 {vr(AB+4*k,4)}, {vA} offset:{1024*k}",f"A{k}")
    def sm(acc_,k,key):
        kk,b=T[key]; e(f"v_smfmac_f32_16x16x64_bf16 {vr(acc_,4)}, {vr(AB+4*k,4)}, {vr(b,8,kk)}, {vIDX}")
    for k in range(10):
        a.wait(lg=f"A{k}")
        for tau in range(2): sm(KA+4*tau,k,("k",k,tau))
    sm(VA,0,("v",0,0)); sm(VA+4,0,("v",0,1))
    for tau in range(2):
        r=KA+4*tau
        e(f"v_add_f32 v{r}, v{r}, v{r+1}"); e(f"v_add_f32 v{r+2}, v{r+2}, v{r+3}"); e(f"v_cvt_pk_bf16_f32 v{r+1}, v{r}, v{r+2}")
        e(f"v_mov_b32 v{r}, 0")
        e(f"ds_write_b64 {vXW}, {vr(r,2)} offset:{512*tau}","xw")
    for k in range(1,4):
        for tau in range(2): sm(VA+4*tau,k,("v",k,tau))
    a.wait(lg="xw"); e("s_barrier")
    for ke in range(4):
        for x in range(2): e(f"ds_read_b64_tr_b16 {vr(X+4*ke+2*x,2)}, {vXR} offset:{1024*ke+512*x}",f"X{ke}")
    for k in range(4,10):
        for tau in range(2): sm(VA+4*tau,k,("v",k,tau))
    for ke in range(4):
        a.wait(lg=f"X{ke}")
        for qt in range(2): mf(SM[qt],X+4*ke,Q+16*qt+4*ke,ke==0)
    for i in range(4): e(f"v_cvt_pk_bf16_f32 v{VA+i}, v{VA+2*i}, v{VA+2*i+1}")
    e(f"v_mov_b64 {vr(ONE,2)}, s[98:99]"); e(f"v_mov_b64 {vr(ONE+2,2)}, s[98:99]"); e(f"v_mov_b64 {vr(KA,2)}, s[100:101]")
    a.wait(vm="vx")
    for qt in range(2):
        ev=[r+i for r in ([SX[(0,0)]] if qt==0 else [SX[(1,0)],SX[(1,1)]]) for i in range(4)]+[SM[qt]+2,SM[qt]+3]
        e(f"v_max3_f32 v10, v{ev[0]}, v{ev[1]}, v{ev[2]}")
        for i in range(3,len(ev)-1,2): e(f"v_max3_f32 v10, v10, v{ev[i]}, v{ev[i+1]}")
        e(f"v_max_f32 v11, v10, v{ev[-1]}"); e(f"v_max_f32 v10, v10, v{ev[-1]}")
        e("v_permlane32_swap_b32 v10, v11"); e("v_max_f32 v12, v10, v11"); e("v_max_f32 v10, v10, v11")
        e("v_permlane16_swap_b32 v10, v12"); e("v_max_f32 v10, v10, v12"); e(f"v_mul_f32 v10, {sC}, v10")
        for r in ev[::2]: e(f"v_pk_fma_f32 {vr(r,2)}, {vr(r,2)}, {sCC}, v[10:11] op_sel_hi:[1,1,0] neg_lo:[0,0,1] neg_hi:[0,0,1]")
        for r in ev: e(f"v_exp_f32 v{r}, v{r}")
        p=P[qt]
        for i in range((len(ev)-2)//2): e(f"v_cvt_pk_bf16_f32 v{p+i}, v{ev[2*i]}, v{ev[2*i+1]}")
        if qt==0: e(f"v_mov_b64 {vr(p+2,2)}, 0")
        e(f"v_cvt_pk_bf16_f32 v{p+4}, v{ev[-2]}, v{ev[-2]}"); e(f"v_cvt_pk_bf16_f32 v{p+5}, v{ev[-1]}, v{ev[-1]}")
        o=O+8*qt
        mf(SUM,ONE,p,1); mf(o,VX,p,1); mf(o+4,VX+4,p,1)
        mf(SUM,KA,p+4,0,"v_mfma_f32_16x16x16_bf16",2); mf(o,VA,p+4,0,"v_mfma_f32_16x16x16_bf16",2); mf(o+4,VA+2,p+4,0,"v_mfma_f32_16x16x16_bf16",2)
        e(f"v_rcp_f32 v10, v{SUM}")
        pk=PK+4*qt
        for i in range(0,4,2):
            for t in range(2): e(f"v_pk_mul_f32 {vr(o+4*t+i,2)}, {vr(o+4*t+i,2)}, v[10:11] op_sel_hi:[1,0]")
            for k in range(2): e(f"v_cvt_pk_bf16_f32 v{pk+i+k}, v{o+i+k}, v{o+4+i+k}")
        if qt: e(f"s_add_u32 {sO}, {sO}, {32*4096}")
        e(f"buffer_store_dwordx4 {vr(pk,4)}, {vL16}, {S_WS}, {sO} offen sc1","o")
    e("s_waitcnt vmcnt(0)"); a.vm=[]; e("s_barrier")
    e(f"s_cmp_eq_u32 {sW}, 0"); e("s_cbranch_scc0 A_nosig")
    e("s_mov_b64 exec, 1"); e("v_mov_b32 v10, 0"); e("v_mov_b32 v11, 1")
    e(f"buffer_atomic_add v11, v10, {S_WS}, {sOC} offen"); e("s_mov_b64 exec, -1"); e("s_nop 3")
    a.label("A_nosig")
    e(f"s_add_u32 {sS}, {sS}, 2"); e(f"s_cmp_lt_u32 {sS}, 64"); e("s_cbranch_scc1 A_seg")
    finish(a)

def finish(a):
    e=a.e
    e("s_waitcnt vmcnt(0)")
    if OPT["tim"]:
        rt(a,5); e("s_waitcnt lgkmcnt(0)")
        for i in range(6): e(f"v_mov_b32 v{12+i}, s{70+2*i}")
        e("v_mov_b32 v18, s90"); e("v_mov_b32 v19, s32")
        e(f"s_lshl_b32 s34, s33, 2"); e(f"s_add_u32 s34, s34, {sW}"); e("s_lshl_b32 s34, s34, 5"); e(f"s_add_u32 s34, s34, {DBG_OFF+131072}")
        e("v_mov_b32 v10, 0"); e("s_mov_b64 exec, 1")
        e(f"buffer_store_dwordx4 v[12:15], v10, {S_WS}, s34 offen"); e(f"buffer_store_dwordx4 v[16:19], v10, {S_WS}, s34 offen offset:16")
        e("s_waitcnt vmcnt(0)")
    e("s_endpgm")

def stageB(a):
    e=a.e
    sN="s24"; sS="s25"; sHF="s26"; sT0="s34"; sT1="s35"; sHS="s27"; sHH="s28"; sOO="s29"; sXO="s30"; sPAR="s31"; sMIX="s37"
    S_O="s[16:19]"; S_XX="s[20:23]"
    e(f"s_load_dwordx2 s[40:41], s[0:1], {A_WO}"); e(f"s_load_dwordx2 s[42:43], s[0:1], {B_W2}"); e(f"s_load_dwordx2 s[44:45], s[0:1], {B_B2}")
    e(f"s_load_dwordx2 s[16:17], s[0:1], {D_OUT}"); e(f"s_load_dwordx2 s[20:21], s[0:1], {A_X}")
    e(f"s_sub_u32 {sT0}, s33, 128")
    e(f"s_mul_i32 {sS}, {sT0}, 1639"); e(f"s_lshr_b32 {sS}, {sS}, 16")
    e(f"s_mul_i32 {sT1}, {sS}, 40"); e(f"s_sub_u32 {sT0}, {sT0}, {sT1}")
    e(f"s_cmp_ge_u32 {sT0}, 20"); e(f"s_cselect_b32 {sHF}, 1, 0"); e(f"s_mul_i32 {sT1}, {sHF}, 20"); e(f"s_sub_u32 {sN}, {sT0}, {sT1}")
    e(f"v_mov_b32 v15, {vLN}")
    e("v_lshrrev_b32 v4, 4, v15"); e("v_and_b32 v5, 15, v15"); e("v_lshlrev_b32 v5, 2, v5"); e(f"s_lshl_b32 {sT0}, {sN}, 6"); e(f"v_add_u32 v5, {sT0}, v5")
    e("v_mul_u32_u24 v1, 10240, v4"); e("v_add_u32 v1, v1, v5"); e(f"s_mul_i32 {sT0}, {sW}, {1024*1280}"); e(f"v_add_u32 v1, {sT0}, v1")
    e("v_mul_u32_u24 v2, 5120, v4"); e("v_add_u32 v2, v2, v5"); e(f"s_mul_i32 {sT0}, {sW}, {14*32*1280}"); e(f"v_add_u32 v2, {sT0}, v2")
    e(f"s_mov_b32 s18, {S*D*2}"); e("s_mov_b32 s19, 0x20000"); e(f"s_mov_b32 s22, {S*D*2}"); e("s_mov_b32 s23, 0x20000")
    e("s_waitcnt lgkmcnt(0)")
    groups=[]
    for kk in range(16):
        loads=[("v1",(64*kk+32*(R>>2)+2*(R&3)+x)*1280) for R in range(8) for x in range(2)]
        d=[[("a",16*kk+8*(R>>2)+4*tau+(R&3)) for R in range(8)] for tau in range(2)]
        groups.append((["s_mov_b32 s8, s40","s_mov_b32 s9, s41",f"s_mov_b32 s10, {4096*1280}"] if kk==0 else [],loads,d[0],d[1]))
    W2=144
    for kk in range(7):
        loads=[("v2",(64*kk+32*(R>>2)+16*((R>>1)&1)+2*(R&1)+x)*1280) for R in range(8) for x in range(2)]
        d=[[("v",W2+16*kk+8*(R>>2)+4*tau+(R&3)) for R in range(8)] for tau in range(2)]
        groups.append((["s_mov_b32 s8, s42","s_mov_b32 s9, s43",f"s_mov_b32 s10, {F*1280}"] if kk==0 else [],loads,d[0],d[1]))
    load_pairs(a,groups,[16,32,48],8,lock=False)
    vL16="v0"; vXO="v1"; vRW="v2"; B2=4
    e("v_lshlrev_b32 v0, 4, v15")
    e("v_and_b32 v12, 15, v15"); e("v_mul_u32_u24 v1, 1280, v12"); e("v_lshrrev_b32 v12, 4, v15"); e("v_lshlrev_b32 v12, 4, v12")
    e(f"s_lshl_b32 {sT0}, {sN}, 6"); e(f"v_add_u32 v12, {sT0}, v12"); e("v_add_u32 v1, v1, v12")
    e(f"s_lshl_b32 {sT0}, {sW}, 11"); e(f"v_add_u32 v2, {sT0}, v0")
    e("s_mov_b32 s8, s44"); e("s_mov_b32 s9, s45"); e(f"s_mov_b32 s10, {D*2}")
    e("buffer_load_dwordx4 v[16:19], v12, s[8:11], 0 offen"); e(f"s_mov_b32 {sMIX}, 0xffff0000")
    e("s_waitcnt vmcnt(0)"); a.vm=[]
    for i in range(4): e(f"v_lshlrev_b32 v{B2+i}, 16, v{16+i}"); e(f"v_and_b32 v{B2+4+i}, {sMIX}, v{16+i}")
    e(f"s_mov_b32 {sPAR}, 0")
    AC=[12,16]; XR=20; RING=32; NR=24; RED=128
    rt(a,4)
    a.label("B_unit")
    e(f"s_lshl_b32 {sT0}, {sS}, 7"); e(f"s_add_u32 {sT0}, {sT0}, {QHCNT}"); e("v_mov_b32 v24, 0")
    spin_wait(a,"B_qh",lambda:e(f"buffer_load_dword v25, v24, {S_WS}, {sT0} offen sc1"),lambda:e("v_cmp_gt_u32 vcc, 30, v25"),sleep=8)
    e(f"s_lshl_b32 {sHS}, {sS}, 1"); e(f"s_add_u32 {sHS}, {sHS}, {sHF}")
    e(f"s_mul_i32 {sHH}, {sHS}, {54*1024}"); e(f"s_mul_i32 {sT0}, {sW}, {14*1024}"); e(f"s_add_u32 {sHH}, {sHH}, {sT0}"); e(f"s_add_u32 {sHH}, {sHH}, {HH_OFF}")
    e(f"s_lshl_b32 {sOO}, {sHS}, 17"); e(f"s_lshl_b32 {sT0}, {sW}, 15"); e(f"s_add_u32 {sOO}, {sOO}, {sT0}"); e(f"s_add_u32 {sOO}, {sOO}, {O_OFF}")
    e(f"s_mul_i32 {sXO}, {sHS}, {16*1280}")
    def ld(i,sreg,tag):
        if i and i%4==0: e(f"s_add_u32 {sreg}, {sreg}, 4096")
        e(f"buffer_load_dwordx4 {vr(RING+4*(i%NR),4)}, {vL16}, {S_WS}, {sreg} offen offset:{1024*(i%4)} sc1",tag)
    def mm(i,base,kind,first):
        for tau in range(2):
            e(f"v_mfma_f32_16x16x32_bf16 {vr(AC[tau],4)}, {vr(base+8*i+4*tau,4,kind)}, {vr(RING+4*(i%NR),4)}, {'0' if first else vr(AC[tau],4)}")
    for i in range(14):
        if i==12:
            e(f"s_cmp_eq_u32 {sW}, 3"); e(f"s_cselect_b32 {sHH}, 0x7ff00000, {sHH}")
        ld(i,sHH,f"h{i}")
    e(f"buffer_load_dwordx4 {vr(XR,4)}, {vXO}, {S_XX}, {sXO} offen","xr")
    for i in range(14):
        a.wait(vm=f"h{i}"); mm(i,W2,"v",i==0)
    e(f"s_lshl_b32 {sT0}, {sS}, 7"); e(f"s_add_u32 {sT0}, {sT0}, {OCNT}")
    spin_wait(a,"B_o",lambda:e(f"buffer_load_dword v25, v24, {S_WS}, {sT0} offen sc1"),lambda:e("v_cmp_gt_u32 vcc, 32, v25"),sleep=2)
    for i in range(NR): ld(i,sOO,f"o{i}")
    for i in range(32):
        a.wait(vm=f"o{i}"); mm(i,0,"a",False)
        if i+NR<32: ld(i+NR,sOO,f"o{i+NR}")
    e(f"v_add_u32 v26, {sPAR}, {vRW}"); e(f"v_add_u32 v27, {sPAR}, {vL16}")
    e(f"ds_write_b128 v26, {vr(AC[0],4)}"); e(f"ds_write_b128 v26, {vr(AC[1],4)} offset:1024")
    a.wait(lg="all"); e("s_barrier")
    e(f"s_cmp_eq_u32 {sW}, 0"); e("s_cbranch_scc0 B_next")
    for j in range(6): e(f"ds_read_b128 {vr(RING+4*j,4)}, v27 offset:{2048+1024*j}",f"r{j}")
    for i in range(4):
        e(f"v_lshlrev_b32 v{RING+24+i}, 16, v{XR+i}"); e(f"v_and_b32 v{RING+28+i}, {sMIX}, v{XR+i}")
    for i in range(8): e(f"v_add_f32 v{RING+24+i}, v{RING+24+i}, v{B2+i}")
    for i in range(8): e(f"v_add_f32 v{AC[0]+i}, v{AC[0]+i}, v{RING+24+i}")
    for j in range(3):
        a.wait(lg=f"r{2*j+1}")
        for i in range(8): e(f"v_add_f32 v{AC[0]+i}, v{AC[0]+i}, v{RING+8*j+i}")
    for i in range(4): e(f"v_cvt_pk_bf16_f32 v{XR+i}, v{AC[0]+i}, v{AC[1]+i}")
    e(f"buffer_store_dwordx4 {vr(XR,4)}, {vXO}, {S_O}, {sXO} offen sc1")
    a.label("B_next")
    e(f"s_xor_b32 {sPAR}, {sPAR}, 8192")
    e(f"s_add_u32 {sS}, {sS}, 2"); e(f"s_cmp_lt_u32 {sS}, 64"); e("s_cbranch_scc1 B_unit")
    finish(a)

def hold(a,name):
    if not OPT["hold"]: return
    e=a.e
    spin_wait(a,name,lambda:(e(f"v_mov_b32 v{TMP+4}, 4"),e(f"global_load_dword v{TMP+5}, v{TMP+4}, {sDBG} sc1")),lambda:e(f"v_cmp_gt_u32 vcc, {OPT['hold']}, v{TMP+5}"),sleep=32)

def workers(a):
    e=a.e
    common(a)
    e(f"s_cmp_lt_u32 {sWI}, 62"); e("s_cbranch_scc0 W_notp")
    project(a)
    a.label("W_notp")
    e(f"s_cmp_lt_u32 {sWI}, 64"); e("s_cbranch_scc1 L_exit")
    norm_rows(a)
    e(f"s_cmp_ge_u32 {sWI}, 208"); e("s_cbranch_scc1 L_exit")
    hold(a,"W_hold")
    zero_wait(a,"W_zero3")
    e("s_barrier")
    e(f"s_cmp_lt_u32 {sWI}, 128"); e("s_cbranch_scc0 W_stageB")
    stageA(a)
    a.label("W_stageB")
    stageB(a)
```

```python
import sys
from asmlib import *
from layout import *
import chain as C
import worker as W

NAME="parallel_sum__memory_aug_recurrent_mem_tr__mixer_channel_mlp__prompt"
KN=NAME+"_kernel"
sW="s13"; sROW="s64"; sRANK="s65"

TIM=[0]
def set_chain(mod):
    global C
    C=mod
def prologue(a):
    e=a.e
    e("s_cmp_ge_u32 s2, 256"); e("s_cbranch_scc1 L_exit")
    if TIM[0] in(1,2): e("s_memrealtime s[90:91]")
    e(f"s_load_dwordx2 {C.sDBG}, s[0:1], {D_DBG}"); e(f"s_load_dwordx2 s[4:5], s[0:1], {D_WS}")
    e(f"s_getreg_b32 {C.sXCC}, hwreg(HW_REG_XCC_ID, 0, 4)")
    e("v_lshrrev_b32 v1, 6, v0"); e(f"v_readfirstlane_b32 {sW}, v1"); e("v_and_b32 v0, 63, v0")
    e(f"s_mov_b32 s6, {WS_SIZE}"); e("s_mov_b32 s7, 0x20000")
    e(f"s_and_b32 {sROW}, {C.sXCC}, 7")
    e("s_waitcnt lgkmcnt(0)")
    e(f"s_cmp_eq_u32 {sW}, 0"); e("s_cbranch_scc0 L_gotrole")
    e("s_mov_b64 exec, 1"); e("v_mov_b32 v2, 1"); e("s_mov_b32 s42, 0")
    a.label("L_ticket")
    e(f"s_lshl_b32 s43, {sROW}, 2"); e("s_add_u32 s43, s43, 128"); e(f"s_cmp_eq_u32 {sROW}, 0"); e("s_cselect_b32 s43, 0, s43")
    e("v_mov_b32 v1, s43"); e(f"global_atomic_add v3, v1, v2, {C.sDBG} sc0"); e("s_waitcnt vmcnt(0)")
    e(f"v_readfirstlane_b32 {sRANK}, v3"); e("s_nop 3")
    e(f"s_cmp_lt_u32 {sRANK}, 32"); e("s_cbranch_scc1 L_ticketok")
    e(f"s_add_u32 {sROW}, {sROW}, 1"); e(f"s_and_b32 {sROW}, {sROW}, 7"); e("s_add_u32 s42, s42, 1")
    e("s_cmp_lt_u32 s42, 8"); e("s_cbranch_scc1 L_ticket")
    e(f"s_mov_b32 {sROW}, 8")
    a.label("L_ticketok")
    e(f"s_lshl_b32 s43, {sROW}, 5"); e(f"s_add_u32 s43, s43, {sRANK}")
    e("v_mov_b32 v3, s43"); e(f"v_mov_b32 v1, {C.L_ROLE}"); e("ds_write_b32 v1, v3"); e("s_waitcnt lgkmcnt(0)")
    e("s_mov_b64 exec, -1")
    a.label("L_gotrole")
    e("s_barrier")
    e(f"v_mov_b32 v1, {C.L_ROLE}"); e("ds_read_b32 v3, v1"); e("s_waitcnt lgkmcnt(0)")
    e("v_readfirstlane_b32 s43, v3"); e("s_nop 3")
    e(f"s_lshr_b32 {sROW}, s43, 5"); e(f"s_and_b32 {sRANK}, s43, 31")
    e("s_barrier")
    a.vm=[]; a.lg=[]
    e(f"s_cmp_ge_u32 {sROW}, 8"); e("s_cbranch_scc1 L_exit")
    e(f"s_cmp_eq_u32 {sROW}, 0"); e("s_cbranch_scc0 L_worker")

def chain_start(a, kv_need):
    e=a.e
    e(f"s_cmp_eq_u32 {sW}, 0"); e("s_cbranch_scc0 C_arrived")
    e("s_mov_b64 exec, 1")
    e(f"s_lshl_b32 s42, 1, {C.sXCC}"); e("v_mov_b32 v12, 8"); e("v_mov_b32 v13, s42")
    e(f"global_atomic_or v12, v13, {C.sDBG}"); e("s_waitcnt vmcnt(0)")
    e("v_mov_b32 v12, 4"); e("v_mov_b32 v13, 1"); e(f"global_atomic_add v12, v13, {C.sDBG}")
    e("s_mov_b32 s42, 0")
    a.label("C_poll")
    e(f"global_load_dword v14, v12, {C.sDBG} sc1")
    e("s_add_u32 s42, s42, 1"); e("s_cmp_gt_u32 s42, 0x100000"); e("s_cbranch_scc1 C_polled")
    e("s_waitcnt vmcnt(0)")
    e("v_cmp_gt_u32 vcc, 32, v14"); e("s_cbranch_vccnz C_poll")
    e(f"global_load_dword v15, v12, {C.sDBG} offset:4 sc1")
    e(f"s_mov_b64 exec, {C.OPT['kvmask']}"); e("v_lshlrev_b32 v16, 3, v0"); e(f"v_add_u32 v16, {KVCNT}, v16")
    a.label("C_pollkv")
    e("buffer_load_dword v17, v16, s[4:7], 0 offen sc1")
    e("s_add_u32 s42, s42, 1"); e("s_cmp_gt_u32 s42, 0x100000"); e("s_cbranch_scc1 C_polled")
    e("s_waitcnt vmcnt(0)")
    e(f"v_cmp_gt_u32 vcc, {kv_need}, v17"); e("s_cbranch_vccz C_polled"); e("s_sleep 4"); e("s_branch C_pollkv")
    a.label("C_polled")
    e("s_waitcnt vmcnt(0)"); e("s_mov_b64 exec, 1")
    e(f"v_mov_b32 v12, {C.L_ROLE}"); e("ds_write_b32 v12, v15"); e("s_waitcnt lgkmcnt(0)")
    e("s_mov_b64 exec, -1")
    a.label("C_arrived")
    e("s_barrier")
    e(f"v_mov_b32 v12, {C.L_ROLE}"); e("ds_read_b32 v13, v12"); e("s_waitcnt lgkmcnt(0)")
    e("v_readfirstlane_b32 s42, v13"); e("s_nop 3")
    e(f"s_bcnt1_i32_b32 {C.sMODE}, s42")
    a.vm=[]; a.lg=[]

def build(tim=0, force_slow=0, kv_need=0, workers=None):
    a=Asm(); e=a.e; TIM[0]=tim; W.OPT["tim"]=1 if tim==2 else 0
    prologue(a)
    if tim in(1,2): e("s_memrealtime s[92:93]")
    e(f"s_mov_b32 {C.sH}, {sRANK}")
    e(f"s_cmp_eq_u32 {sW}, 0"); e("s_cbranch_scc0 C_zeroed")
    e("v_lshlrev_b32 v1, 4, v0"); e("v_mov_b64 v[4:5], 0"); e("v_mov_b64 v[6:7], 0"); e(f"s_lshl_b32 s42, {C.sH}, 10")
    e("buffer_store_dwordx4 v[4:7], v1, s[4:7], s42 offen sc1"); e("s_waitcnt vmcnt(0)")
    e("s_mov_b64 exec, 1"); e("v_mov_b32 v1, 12"); e("v_mov_b32 v2, 1"); e(f"global_atomic_add v1, v2, {C.sDBG}"); e("s_mov_b64 exec, -1")
    a.label("C_zeroed"); a.vm=[]
    C.chain_init(a, sW)
    if tim in(1,2): e("s_memrealtime s[94:95]")
    chain_start(a, kv_need)
    if tim in(1,2): e("s_memrealtime s[66:67]")
    e(f"s_cmp_eq_u32 {C.sMODE}, {99 if force_slow else 1}"); e("s_cbranch_scc0 C_slow")
    for pfx,st in (("CF",""),("CS","sc1")):
        if pfx=="CS": a.label("C_slow")
        for w in (1,2,3):
            e(f"s_cmp_eq_u32 {sW}, {w}"); e(f"s_cbranch_scc1 {pfx}_w{w}")
        for w in range(4):
            a.label(f"{pfx}_w{w}")
            C.chain_wave(a,w,st,pfx,tim)
    a.label("L_worker")
    if workers: workers(a)
    a.label("L_abort")
    a.label("L_exit")
    e("s_endpgm")
    head=open("cdna_kernels/"+NAME+".s.ref").read().split("; Override launch")[0]
    out=head+"; @launch grid=(256,1,1) block=(256,1,1) lds=163840\n"
    out+=f'.amdgcn_target "amdgcn-amd-amdhsa--gfx950"\n.text\n.globl {KN}\n.p2align 8\n.type {KN},@function\n{KN}:\n'
    out+=a.text()
    out+=f""".section .rodata,"a"
.p2align 6
.amdhsa_kernel {KN}
  .amdhsa_next_free_vgpr 512
  .amdhsa_next_free_sgpr 102
  .amdhsa_accum_offset 256
  .amdhsa_group_segment_fixed_size 0
  .amdhsa_kernarg_size 120
  .amdhsa_user_sgpr_count 2
  .amdhsa_user_sgpr_kernarg_segment_ptr 1
  .amdhsa_system_sgpr_workgroup_id_x 1
  .amdhsa_float_denorm_mode_32 3
.end_amdhsa_kernel
"""
    return out, a
if __name__=="__main__":
    full=len(sys.argv)>3
    out,a=build(tim=int(sys.argv[2]) if len(sys.argv)>2 else 0, kv_need=32 if full else 0, workers=W.workers if full else None)
    open(sys.argv[1],"w").write(out); print("instructions",len(a.ins),"pad states",a.npad)
```

```python
from asmlib import *
from layout import *
import math

L_MEM=0; L_X=10240; L_KX=14336; L_SEL=22528; L_ROLE=23552; L_W=24576
S_WS="s[4:7]"; S_T="s[8:11]"
sH="s12"; sSTEP="s14"; sMR="s15"; sMW="s16"; sMZ="s17"; sTAG="s18"; sTAGM="s19"
sKX="s20"; sVX="s21"; sPC="s22"; sMP="s23"; sSW="s24"; sP0="s25"; sP1="s26"; sP2="s27"
sPR=["s28","s29","s30","s31"]; sCNT="s32"; sC="s33"; sFE="s34"; sKX2="s35"; sSW2="s36"; sSW3="s37"; sSW4="s38"
sPLO="s40"; sPHI="s41"; sT0="s42"; sT1="s43"; sEX="s[44:45]"; sUNIT="s46"; sKXN="s47"; sVXN="s48"; sMF="s49"; sPAT="s39"; sALL="s31"; sMU="s53"; sF1W="s88"; sF1R="s89"
sCC="s[96:97]"; sONE="s[98:99]"; sHALF="s[100:101]"; sDBG="s[50:51]"; sXCC="s52"; sMODE="s87"
vL16="v0"; vA="v1"; vIDX="v2"; vW="v3"; vRL="v4"; vRS="v5"; vXW="v6"; vXR="v7"; vOW="v8"; vL8="v9"
T0=10; T1=11
AB=[12,16,20,24]; QA=28; KA=32; VA=36; SL1=40; SL2=48; SL3=56

NV=12
QSEQ=[(m,k) for k in range(NV) for m in "qkv"]+[(m,k) for k in range(NV,18) for m in "qk"]+[("q",18),("q",19),("k",18),("k",19)]
Q_SLOT={0:(SL1,"L"),1:(SL2,"L"),25:(SL3,"G"),29:(SL1,"G"),33:(SL2,"G"),31:(SL3,"L"),37:(SL3,"L"),43:(SL3,"L"),35:(SL1,"L"),41:(SL1,"L"),47:(SL1,"L"),39:(SL2,"L")}
O_SLOT={0:(28,"G"),1:(SL1,"G"),9:(SL2,"G"),19:(SL1,"G"),2:(SL3,"L"),5:(SL3,"L"),8:(SL3,"L"),11:(SL3,"L"),14:(SL3,"L"),17:(SL3,"L"),12:(SL2,"L"),15:(SL2,"L")}
SLOT={QSEQ[p]:v for p,v in Q_SLOT.items()}; SLOT.update({("o",n):v for n,v in O_SLOT.items()})
TG={}; TL={}; TR={}
for key in [(m,k) for m in "qkvo" for k in range(20)]:
    kind=SLOT.get(key,(0,"R"))[1]
    if kind=="G": TG[key]=len(TG)
    elif kind=="L": TL[key]=len(TL)
    else: i=len(TR); TR[key]=("a",8*i) if i<32 else ("v",64+8*(i-32))
assert len(TR)==56 and len(TG)==7 and len(TL)==17
def use_map(w): pass

def sw_ref(idx):
    return [sSW,sSW2,sSW3,sSW4][idx//2], (idx&1)*2048

def gload_tile(a,key,slot,tag):
    if "G" in OPT["ab"] or ("P" in OPT["ab"] and tag in("g0","g1")): return
    s,imm=sw_ref(TG[key])
    fl="" if tag in OPT["l1"] else OPT["gfl"]
    a.e(f"buffer_load_dwordx4 {vr(slot,4)}, {vL16}, {S_WS}, {s} offen offset:{imm} {fl}",tag)
    a.e(f"buffer_load_dwordx4 {vr(slot+4,4)}, {vL16}, {S_WS}, {s} offen offset:{imm+1024} {fl}",tag)
def gload_half(a,key,slot,tag,half):
    if "G" in OPT["ab"]: return
    s,imm=sw_ref(TG[key])
    a.e(f"buffer_load_dwordx4 {vr(slot+4*half,4)}, {vL16}, {S_WS}, {s} offen offset:{imm+1024*half}",tag)
def lload_tile(a,key,slot,tag):
    o=TL[key]*2048
    a.e(f"ds_read_b128 {vr(slot,4)}, {vW} offset:{o}",tag)
    a.e(f"ds_read_b128 {vr(slot+4,4)}, {vW} offset:{o+1024}",tag)
def sm(a,acc,A,key,slot=None):
    if key in TR: k,b=TR[key]
    else: k,b="v",slot
    a.e(f"v_smfmac_f32_16x16x64_bf16 {vr(acc,4)}, {vr(A,4)}, {vr(b,8,k)}, {vIDX}")
def zero4(a,r):
    a.e(f"v_mov_b64 {vr(r,2)}, 0"); a.e(f"v_mov_b64 {vr(r+2,2)}, 0")

def chain_init(a, sW):
    e=a.e
    e("s_load_dwordx2 s[54:55], s[0:1], %d"%A_WQ); e("s_load_dwordx2 s[56:57], s[0:1], %d"%A_WK)
    e("s_load_dwordx2 s[58:59], s[0:1], %d"%A_WV); e("s_load_dwordx2 s[60:61], s[0:1], %d"%A_WO)
    e("s_load_dwordx2 s[62:63], s[0:1], %d"%A_MEM0)
    e(f"s_mov_b32 {sPLO}, 0x05040100"); e(f"s_mov_b32 {sPHI}, 0x07060302")
    e("v_mov_b32 v15, v0"); e("v_lshlrev_b32 v0, 4, v0"); e("s_mov_b32 s11, 0x20000")
    def lanes():
        e("v_bfe_u32 v12, v15, 1, 3"); e("v_lshlrev_b32 v1, 6, v12"); e("v_lshrrev_b32 v12, 4, v15"); e("v_lshl_add_u32 v1, v12, 4, v1")
        e("v_and_b32 v12, 1, v15")
        e("v_mov_b32 v13, 0xaaaa"); e("v_mul_u32_u24 v2, v12, v13"); e("v_add_u32 v2, 0x4444, v2")
        e(f"s_lshl_b32 {sUNIT}, {sW}, 5"); e(f"s_add_u32 {sUNIT}, {sUNIT}, {sH}"); e(f"s_lshl_b32 {sT0}, {sUNIT}, 7")
        e("v_lshrrev_b32 v12, 3, v15"); e("v_mul_u32_u24 v4, 10240, v12"); e("v_and_b32 v12, 7, v15"); e("v_lshl_add_u32 v4, v12, 4, v4")
        e(f"v_add_u32 v4, {sT0}, v4")
        e(f"s_and_b32 {sT1}, {sUNIT}, 1"); e(f"s_lshl_b32 {sT1}, {sT1}, 2"); e(f"s_bfe_u32 {sMU}, {sUNIT}, 0x20001"); e(f"s_or_b32 {sT1}, {sT1}, {sMU}")
        e(f"s_andn2_b32 {sMU}, {sUNIT}, 7"); e(f"s_or_b32 {sT1}, {sT1}, {sMU}"); e(f"s_cmp_lt_u32 {sUNIT}, 64"); e(f"s_cselect_b32 {sMU}, {sT1}, {sUNIT}")
        e(f"s_lshl_b32 {sT0}, {sMU}, 7")
        e("v_lshrrev_b32 v12, 4, v15"); e("v_lshlrev_b32 v5, 6, v12"); e("v_and_b32 v12, 15, v15"); e("v_lshl_add_u32 v5, v12, 3, v5")
        e(f"v_add_u32 v5, {sT0}, v5"); e("v_and_b32 v12, 0x28, v15"); e("v_cmp_eq_u32 vcc, 0, v12"); e("v_mov_b32 v13, 0x7ff00000")
        e("v_cndmask_b32 v5, v13, v5, vcc")
        if OPT["probe"]=="c": e(f"s_lshl_b32 {sT1}, {sUNIT}, 3"); e(f"s_add_u32 {sT1}, {sT1}, 10240"); e(f"v_writelane_b32 v5, {sT1}, 32")
        e("v_lshrrev_b32 v12, 5, v15"); e("v_lshlrev_b32 v12, 2, v12"); e("v_and_b32 v13, 15, v15"); e("v_xor_b32 v12, v12, v13")
        e("v_lshlrev_b32 v6, 3, v12"); e("v_lshrrev_b32 v12, 4, v15"); e("v_lshl_add_u32 v6, v12, 7, v6")
        e(f"s_lshl_b32 {sT0}, {sW}, 10"); e(f"s_add_u32 {sT0}, {sT0}, {L_X}"); e(f"v_add_u32 v6, {sT0}, v6")
        e("v_bfe_u32 v12, v15, 3, 1"); e("v_lshlrev_b32 v7, 3, v12"); e("v_lshrrev_b32 v12, 4, v15"); e("v_lshl_add_u32 v7, v12, 1, v7")
        e("v_bfe_u32 v12, v15, 2, 1"); e("v_add_u32 v7, v7, v12"); e("v_bfe_u32 v12, v15, 1, 1"); e("v_lshlrev_b32 v12, 2, v12"); e("v_xor_b32 v7, v7, v12")
        e("v_lshlrev_b32 v7, 3, v7"); e("v_and_b32 v12, 3, v15"); e("v_lshl_add_u32 v7, v12, 7, v7"); e(f"v_add_u32 v7, {L_X}, v7")
        e("v_bfe_u32 v12, v15, 2, 2"); e("v_lshlrev_b32 v8, 7, v12"); e("v_and_b32 v12, 1, v15"); e("v_lshl_add_u32 v8, v12, 6, v8")
        e("v_lshrrev_b32 v12, 4, v15"); e("v_lshl_add_u32 v8, v12, 4, v8"); e(f"s_lshl_b32 {sT0}, {sW}, 9"); e(f"v_add_u32 v8, {sT0}, v8")
        if not OPT["owx"]: e(f"v_and_b32 v13, 0x1ff, v8"); e(f"v_add_u32 v13, {L_ROLE+512}, v13"); e("v_and_b32 v12, 2, v15"); e("v_cmp_eq_u32 vcc, 0, v12"); e("v_cndmask_b32 v8, v13, v8, vcc")
        e("v_lshlrev_b32 v9, 3, v15")
    def waddr():
        e("v_lshrrev_b32 v4, 4, v15"); e("v_lshlrev_b32 v4, 2, v4")
        e("v_and_b32 v5, 15, v15"); e("v_lshlrev_b32 v5, 2, v5")
        e(f"s_lshl_b32 {sT0}, {sH}, 8"); e(f"s_lshl_b32 {sT1}, {sW}, 6"); e(f"s_add_u32 {sT0}, {sT0}, {sT1}")
        e("v_lshl_add_u32 v1, v4, 13, v5"); e(f"v_add_u32 v1, {sT0}, v1")
        e("v_mul_u32_u24 v2, 1280, v4"); e("v_add_u32 v2, v2, v5")
        e(f"s_mul_i32 {sT0}, {sH}, {128*1280}"); e(f"s_add_u32 {sT0}, {sT0}, {sT1}"); e(f"v_add_u32 v2, {sT0}, v2")
        e("v_add_u32 v14, v2, v5"); e(f"v_add_u32 v14, {sT1}, v14")
        if "X" in OPT["ab"]:
            e("v_add_u32 v1, v1, v5"); e(f"s_and_b32 {sT0}, {sW}, 1"); e(f"s_mul_i32 {sT0}, {sT0}, {8192-64}"); e(f"v_add_u32 v1, {sT0}, v1")
            e(f"s_and_b32 {sT0}, {sW}, 1"); e(f"s_mul_i32 {sT0}, {sT0}, 1280"); e(f"v_add_u32 v14, {sT0}, v14"); e(f"v_add_u32 v2, {sT0}, v2")
        e(f"s_mul_i32 {sT0}, {sW}, {17*2048}"); e(f"s_add_u32 {sT0}, {sT0}, {L_W}"); e(f"v_add_u32 v3, {sT0}, v0")
        e(f"s_lshl_b32 {sT0}, {sH}, 2"); e(f"s_add_u32 {sT0}, {sT0}, {sW}"); e(f"s_lshl_b32 {sT0}, {sT0}, 14")
        e(f"s_add_u32 {sSW}, {sT0}, {SW_OFF}"); e(f"s_add_u32 {sSW2}, {sSW}, 4096"); e(f"s_add_u32 {sSW3}, {sSW}, 8192"); e(f"s_add_u32 {sSW4}, {sSW}, 12288")
        e("s_mov_b32 s10, %d"%(640*8192)); e("s_mov_b32 s11, 0x20000")
    groups=[(m,k) for m in "qkv" for k in range(10)]+[("o",j,ko) for j in range(5) for ko in range(2)]
    LB=[16,32,48,240][:OPT["idepth"]+1]
    lbuf=lambda i: LB[i%len(LB)] if (len(LB)<4 or i<36) else LB[(0,1,2,0)[i-36]]
    base={"q":54,"k":56,"v":58,"o":60}
    cur=[None]
    def issue(i):
        g=groups[i]; lb=lbuf(i)
        if cur[0]!=g[0]:
            e(f"s_mov_b32 s8, s{base[g[0]]}"); e(f"s_mov_b32 s9, s{base[g[0]]+1}"); cur[0]=g[0]
        for j in range(8):
            for x in range(2):
                row=64*g[-1]+32*(j>>2)+16*((j>>1)&1)+2*(j&1)+x
                if g[0]!="o": off=row*8192; vo="v1"
                elif g[1]<4: off=row*1280+512*(g[1]>>1)+4*(g[1]&1); vo="v14"
                else: off=row*1280+1024; vo="v2"
                if "X" in OPT["ab"]:
                    if x==0: e(f"s_mov_b32 {sT0}, {off}"); e(f"buffer_load_dwordx2 v[{lb+2*j}:{lb+2*j+1}], {vo}, {S_T}, {sT0} offen",f"w{i}")
                    continue
                e(f"s_mov_b32 {sT0}, {off}")
                e(f"buffer_load_dword v{lb+2*j+x}, {vo}, {S_T}, {sT0} offen",f"w{i}")
    tmp=[4,8]
    def put(key,lb):
        src=lambda R: f"v{lb+2*(R>>1)+1}, v{lb+2*(R>>1)}, {sPHI if R&1 else sPLO}"
        if key in TR and TR[key][0]=="v":
            for R in range(8): e(f"v_perm_b32 v{TR[key][1]+R}, {src(R)}")
            return
        for half in range(2):
            t=tmp[half]
            for R in range(4): e(f"v_perm_b32 v{t+R}, {src(4*half+R)}")
            if key in TR:
                for R in range(4): e(f"v_accvgpr_write_b32 a{TR[key][1]+4*half+R}, v{t+R}")
            elif key in TL:
                e(f"ds_write_b128 v3, {vr(t,4)} offset:{TL[key]*2048+half*1024}")
            else:
                sg,imm=sw_ref(TG[key])
                e(f"buffer_store_dwordx4 {vr(t,4)}, v0, {S_WS}, {sg} offen offset:{imm+half*1024} sc1","st")
    def process(i):
        g=groups[i]; lb=lbuf(i)
        a.wait(vm=f"w{i}")
        if OPT["lock"]: e("s_barrier")
        for u in range(2):
            put((g[0],2*g[1]+u) if g[0]!="o" else ("o",4*g[1]+2*g[2]+u),lb+8*u)
    waddr(); e("s_waitcnt lgkmcnt(0)")
    issue(0); issue(1); q0=list(a.vm)
    lanes()
    e(f"s_mul_i32 {sT0}, {sH}, 10240"); e(f"s_add_u32 {sT0}, {sT0}, {P_OFF}"); e(f"s_lshl_b32 {sT1}, {sW}, 10")
    e(f"s_add_u32 {sP0}, {sT0}, {sT1}"); e(f"s_add_u32 {sP1}, {sP0}, 4096"); e(f"s_lshl_b32 {sT1}, {sW}, 9"); e(f"s_add_u32 {sP2}, {sT0}, {sT1}"); e(f"s_add_u32 {sP2}, {sP2}, 8192")
    for m in range(4): e(f"s_mov_b32 {sPR[m]}, {P_OFF+m*81920}")
    e(f"s_lshl_b32 {sT0}, {sH}, 13"); e(f"s_add_u32 {sKX}, {sT0}, {XK_OFF}"); e(f"s_add_u32 {sKX2}, {sKX}, 4096")
    e(f"s_lshl_b32 {sT1}, {sW}, 11"); e(f"s_add_u32 {sVX}, {sT0}, {XV_OFF}"); e(f"s_add_u32 {sVXN}, {sVX}, {32*8192}"); e(f"s_add_u32 {sVX}, {sVX}, {sT1}")
    e(f"s_add_u32 {sKXN}, {sKX}, {32*8192}")
    e(f"s_mul_i32 {sPC}, {sH}, {OPT['piece']}"); e(f"s_add_u32 {sMP}, {sPC}, {MEMP_OFF-10240}")
    c=(128**-0.5)*math.log2(math.e)
    import struct
    e(f"s_mov_b32 {sC}, 0x%08x"%struct.unpack("<I",struct.pack("<f",c))[0])
    e(f"s_mov_b32 s96, {sC}"); e(f"s_mov_b32 s97, {sC}")
    e("s_mov_b32 s98, 0x3f803f80"); e("s_mov_b32 s99, 0x3f803f80"); e("s_mov_b32 s100, 0x3f003f00"); e("s_mov_b32 s101, 0x3f003f00")
    e(f"s_lshl_b32 {sF1W}, {sW}, 7"); e(f"s_add_u32 {sF1W}, {sF1W}, {sH}"); e(f"s_add_u32 {sF1W}, {sF1W}, {F1_OFF}")
    e(f"s_cmp_lt_u32 {sW}, 2"); e(f"s_cselect_b32 {sT0}, 3, 2"); e(f"s_lshr_b32 {sT0}, {sH}, {sT0}"); e(f"s_and_b32 {sT0}, {sT0}, 3")
    e(f"s_lshl_b32 {sT1}, {sW}, 2"); e(f"s_add_u32 {sT0}, {sT0}, {sT1}"); e(f"s_lshl_b32 {sT0}, {sT0}, 7"); e(f"s_add_u32 {sF1R}, {sT0}, {F1_OFF}")
    e(f"s_mov_b32 {sFE}, 0xfffffffe")
    e("s_mov_b32 s44, 0x33333333"); e("s_mov_b32 s45, 0x33333333")
    e(f"s_lshl_b32 {sT0}, {sW}, 12"); e(f"s_add_u32 {sMR}, {sT0}, {M_OFF}")
    if OPT["probe"]=="b":
        e(f"s_and_b32 {sT0}, {sH}, {OPT['nrep']-1}"); e(f"s_lshl_b32 {sT0}, {sT0}, 8"); e(f"s_lshl_b32 {sT1}, {sW}, 5"); e(f"s_add_u32 {sT0}, {sT0}, {sT1}")
        e(f"s_add_u32 {sMF}, {sT0}, {FL_OFF}"); e(f"s_mov_b32 {sPAT}, 0")
    else:
        e(f"s_lshl_b32 {sT0}, {sW}, 8"); e(f"s_add_u32 {sMF}, {sT0}, {M_OFF+10240}")
    e(f"s_mov_b32 {sMW}, {M_OFF+16384}"); e(f"s_mov_b32 {sMZ}, {M_OFF+49152}")
    e(f"s_mov_b32 {sSTEP}, 0"); e(f"s_mov_b32 {sTAG}, 1"); e(f"s_mov_b32 {sTAGM}, -1"); e(f"s_mov_b32 {sCNT}, 0")
    e("v_mov_b64 v[56:57], 0"); e("v_mov_b64 v[58:59], 0"); e("v_mov_b64 v[60:61], -1")
    e(f"buffer_store_dwordx4 v[56:59], {vL16}, {S_WS}, {sP0} offen sc1"); e(f"buffer_store_dwordx4 v[56:59], {vL16}, {S_WS}, {sP1} offen sc1")
    e(f"buffer_store_dwordx2 v[56:57], {vL8}, {S_WS}, {sP2} offen sc1")
    e("s_mov_b64 exec, 1")
    for c in range(3): e(f"buffer_store_byte v56, v56, {S_WS}, {sF1W} offen offset:{512*c} sc1")
    e("s_mov_b64 exec, -1")
    e(f"s_cmp_ge_u32 {sUNIT}, 80"); e("s_cbranch_scc1 C_noM")
    e("s_mov_b32 s8, s62"); e("s_mov_b32 s9, s63"); e("s_mov_b32 s10, 10240")
    e(f"s_and_b32 {sT0}, {sMU}, 3"); e(f"s_mul_i32 {sT0}, {sT0}, 2560"); e(f"s_lshr_b32 {sT1}, {sMU}, 2"); e(f"s_lshl_b32 {sT1}, {sT1}, 6"); e(f"s_add_u32 {sT0}, {sT0}, {sT1}")
    e("v_bfe_u32 v12, v15, 4, 1"); e("v_mul_u32_u24 v12, 1280, v12"); e("v_and_b32 v13, 7, v15"); e("v_lshl_add_u32 v12, v13, 3, v12")
    e(f"buffer_load_dwordx2 v[62:63], v12, {S_T}, {sT0} offen")
    for k in range(1,4):
        e(f"s_mov_b32 {sT1}, {M_OFF+16384*k}"); e(f"buffer_store_dwordx2 v[60:61], {vRS}, {S_WS}, {sT1} offen sc1")
    e("s_waitcnt vmcnt(0)")
    e(f"v_min_u32 v62, {sFE}, v62")
    e(f"s_mov_b32 {sT1}, {M_OFF}"); e(f"buffer_store_dwordx2 v[62:63], {vRS}, {S_WS}, {sT1} offen sc1")
    a.label("C_noM")
    e("s_mov_b32 s8, s4"); e("s_mov_b32 s9, s5"); e("s_mov_b32 s10, 0")
    if OPT["probe"]=="b":
        e(f"s_cmp_eq_u32 {sW}, 3"); e("s_cbranch_scc1 C_noF")
        e(f"s_add_u32 s8, s4, {FL_OFF}"); e("s_addc_u32 s9, s5, 0"); e(f"s_mov_b32 s10, {OPT['nrep']*256}")
        e("v_lshlrev_b32 v12, 4, v0"); e("v_mov_b32 v13, 0")
        e(f"buffer_store_byte v13, v12, {S_T}, {sUNIT} offen sc1")
        a.label("C_noF")

    e(f"s_cmp_eq_u32 {sW}, 3"); e("s_cbranch_scc0 C_noZ")
    e(f"s_lshl_b32 {sT0}, {sH}, 10"); e(f"buffer_store_dwordx4 v[56:59], v0, {S_WS}, {sT0} offen sc1")
    e("s_mov_b64 exec, 1"); e(f"s_lshl_b32 {sT0}, 1, {sXCC}"); e("v_mov_b32 v12, 8"); e(f"v_mov_b32 v13, {sT0}")
    e(f"global_atomic_or v12, v13, {sDBG}"); e("s_mov_b64 exec, -1")
    a.label("C_noZ"); a.vm=[]
    e("v_and_b32 v12, 15, v15"); e("v_and_b32 v52, 0xff, v0")
    for tab,neg in ((0,0),):
        for r,ent in enumerate([((0,2),(1,3)),((4,6),(5,7)),((2,None),(3,None)),((6,None),(7,None))]):
            e(f"v_mov_b32 v{48+r}, 0")
            for half,(pos,ng) in enumerate(ent):
                for row,val in ((pos,0x3f80),(ng if neg else None,0xbf80)):
                    if row is None: continue
                    e(f"v_mov_b32 v13, 0x{val<<(16*half):x}"); e(f"v_cmp_eq_u32 vcc, {row}, v12"); e(f"v_cndmask_b32 v{48+r}, v{48+r}, v13, vcc")
        e(f"ds_write_b128 v52, v[48:51] offset:{L_SEL+tab}")
        e("s_waitcnt lgkmcnt(0)")
    waddr(); a.vm=q0
    DD=OPT["idepth"]
    e("s_mov_b32 s8, s54"); e("s_mov_b32 s9, s55")
    for i in range(2,DD): issue(i)
    for i in range(len(groups)):
        if i+DD<len(groups) and not (DD==3 and i==36): issue(i+DD)
        process(i)
        if DD==3 and i==36: issue(39)
        if i==2:
            if not OPT["lock"]: e("s_barrier")
            e(f"s_cmp_eq_u32 {sW}, 3"); e("s_cbranch_scc0 C_noA")
            q=list(a.vm)
            e("s_mov_b64 exec, 1"); e("v_mov_b32 v12, 4"); e("v_mov_b32 v13, 1"); e(f"global_atomic_add v12, v13, {sDBG}"); e("s_mov_b64 exec, -1")
            a.label("C_noA"); a.vm=q
    a.wait(vm="all",lg="all")
    lanes()
    e("s_mov_b32 s8, s4"); e("s_mov_b32 s9, s5"); e("s_mov_b32 s10, 0")
    e(f"s_cmp_eq_u32 {sW}, 3"); e("s_cbranch_scc1 C_noF2")
    e(f"s_add_u32 s8, s4, {FL_OFF}"); e("s_addc_u32 s9, s5, 0"); e(f"s_mov_b32 s10, {OPT['nrep']*256}")
    a.label("C_noF2")

STAMPS=[]
OPT={"kvstride":32*8192,"d0":25,"d1":70,"d1b":90,"m1pos":0,"d2":0,"d3":0,"pf":1,"nosync":0,"stamps":[],"lock":1,"rl":20,"pub":1,"pipe":2,"probe":"b","owx":1,"fine":"","lastlds":2,"f1":0,"q1":16,"spec":0,"kvfl":"sc1","piece":320,"m1in":0,"pairw":0,"b4":1,"ststag":0,"g9in":0,"g1pv":0,"kxout":(11,1),"b1b":18,"g19":(2,4),"idepth":2,"prep":(13,14,15,17),"m1pre":0,"gq":(0,2),"stag":1,"kxp":(7,1),"pfp":15,"go1p":"exp","g18":(0,2,5,7),"unr":4,"goearly":1,"mpstride":10240,"pubfl":"sc1","pubpos":"qk","pfsplit":0,"kvmask":7,"kvchk":1,"pfwait":0,"pffl":"sc1","nrep":4,"np":3,"l1":(),"gfl":"","prepos":"early","percu":0,"at":40,"d4":12,"ab":"","pfpos":"qk"}
def delay(a,n):
    while n>0:
        k=min(n,16); a.e(f"s_nop {k-1}"); n-=k
def stamp(a,tim,name):
    if OPT["fine"] and not name.startswith(OPT["fine"]) and name!="b1": return
    if not OPT["fine"] and name[0]=="_": return
    if name not in STAMPS: STAMPS.append(name)
    if tim==3:
        i=STAMPS.index(name); assert i<19; a.e(f"s_memtime s[{54+2*i}:{55+2*i}]")
        if OPT["fine"]: a.lg+= [None,None]
        return
    if tim!=1 or name not in OPT["stamps"]: return
    i=OPT["stamps"].index(name)
    a.e("s_memtime s[70:71]"); a.e("s_waitcnt lgkmcnt(0)"); a.lg=[]
    a.e("s_sub_u32 s72, s70, s73"); a.e("s_mov_b32 s73, s70"); a.e(f"s_add_u32 s{76+i}, s{76+i}, s72")

def dma(a,n,soff,tag,first=0):
    fl=OPT["kvfl"] if tag=="kx" else "sc1"
    for i in range(first,first+n):
        a.e(f"buffer_load_dwordx4 {vL16}, {S_WS}, {soff} offen offset:{1024*i} {fl} lds",tag)

def chain_wave(a, w, st, pfx, tim=0):
    use_map(w)
    e=a.e; L=lambda s: f"{pfx}{w}_{s}"
    nd=[4,4,2,0][w]
    def chk(l):
        if OPT["nosync"]: e("s_nop 0")
        else: e(f"s_cbranch_vccnz {L(l)}")
    def spin(c=None):
        if tim in(1,2) and c: e(f"s_add_u32 {c}, {c}, 1")
        e(f"s_add_u32 {sCNT}, {sCNT}, 1"); e(f"s_cmp_gt_u32 {sCNT}, 0x40000"); e("s_cbranch_scc1 L_abort")
    def aread(k,buf): e(f"ds_read_b128 {vr(buf,4)}, {vA} offset:{L_MEM+512*k}",f"A{k}")
    tg=lambda key: "t%s%d"%key
    def prestage():
        for p in range(2): lload_tile(a,QSEQ[p],SLOT[QSEQ[p]][0],None)
    def zero_acc():
        for r in (QA,KA,VA): zero4(a,r)
    NREP=OPT["nrep"]
    def paddr(r):
        if OPT["probe"]=="b": e(f"v_bfe_u32 v{r}, {vL16}, 2, {4 if w==2 else 5}")
        elif OPT["probe"]=="c": e(f"v_and_b32 v{r}, {0x7f if w==2 else 0xff}, {vL8}")
        else:
            e(f"v_lshlrev_b32 v{r}, 2, {vL16}")
            if w==2: e(f"v_and_b32 v{r}, 0x7ff, v{r}")
    def probe(d,r,tag=None):
        e(f"buffer_load_dword v{d}, v{r}, {S_WS}, {sMR if OPT['probe']=='d' else sMF} offen sc1",tag)
    def pcmp(d):
        if OPT["probe"]=="b": e(f"v_cmp_ne_u32 vcc, {sPAT}, v{d}")
        else: e(f"v_cmp_eq_u32 vcc, -1, v{d}")
    def mfetch():
        paddr(T1); probe(T1,T1,"pr")
        dma(a,nd,sMR,"dma")
    if w==3: e(f"s_cmp_eq_u32 {sH}, 0"); e(f"s_cselect_b32 {sALL}, 0, 1")
    if tim in(1,2):
        e("s_memtime s[70:71]"); e("s_waitcnt lgkmcnt(0)"); e("s_mov_b32 s73, s70"); e("s_mov_b32 s74, s70")
        for i in range(11): e(f"s_mov_b32 s{76+i}, 0")
    a.label(L("rec"))
    e("s_waitcnt vmcnt(0) lgkmcnt(0)"); a.vm=[]; a.lg=[]
    spin("s84")
    e("s_barrier")
    prestage()
    if OPT["kxout"] and w in(0,3):
        e(f"s_mov_b32 m0, {L_KX+(4096 if w else 0)}"); dma(a,4,sKX2 if w else sKX,"kx")
    if w<3: e(f"s_mov_b32 m0, {4096*w}")
    if w==0 or (w<3 and OPT["m1pre"]): dma(a,nd,sMR,"dma")
    zero_acc()
    e("s_waitcnt vmcnt(0) lgkmcnt(0)"); a.vm=[]; a.lg=[]
    top_vm={0:[],1:["rs","fl","mz"],2:["rs","fl","mz"],3:[]}[w]
    if OPT["m1pre"] and w in(1,2): top_vm=["dma"]*nd
    if OPT["pub"] and OPT["pubpos"]=="hop" and w==3: top_vm=["pub"]
    a.vm=list(top_vm)
    a.label("HZ_"+L("top"))
    e("s_barrier")
    for k in range(4): aread(k,AB[k])
    if w in(1,2) and not OPT["m1pre"]:
        if OPT["m1in"]: paddr(T1); probe(T1,T1,"pr")
        else: mfetch()
    stamp(a,tim,"b1")
    def slow_ops(where):
        if w!=3: return
        if OPT['pf'] and OPT["pfpos"]==where:
            e(f"v_lshlrev_b32 v{T1}, 3, {vL16}"); e(f"s_mov_b32 m0, {L_ROLE}")
            e(f"buffer_load_dword v{T1}, {S_WS}, {sKXN} offen {OPT['pffl']} lds","pf")
            e(f"buffer_load_dword v{T1}, {S_WS}, {sVXN} offen {OPT['pffl']} lds","pf")
        if OPT["pub"] and OPT["pubpos"]==where:
            e(f"buffer_store_dwordx2 v[4:5], {vL8}, {S_T}, {sMP} offen {OPT['pubfl']}","pub")
            e("s_mov_b32 s10, 0")
    ACC={"q":QA,"k":KA,"v":VA}
    def nxt(seq,tab,p):
        later=[x for x in sorted(tab) if x>p and tab[x][0]==tab[p][0]]
        return later[0] if later else None
    def qkv(key,buf,p=None):
        if key in TG: a.wait(vm=tg(key))
        elif key in TL and p>1: a.wait(lg=tg(key))
        sm(a,ACC[key[0]],buf,key,SLOT.get(key,(0,))[0])
        if p in Q_SLOT:
            n=nxt(QSEQ,Q_SLOT,p)
            if n is not None and Q_SLOT[n][1]=="L": lload_tile(a,QSEQ[n],Q_SLOT[n][0],tg(QSEQ[n]))
    kxw = w in(0,3)
    def kxread(kt,ke,dst): e(f"ds_read_b128 {vr(dst,4)}, {vL16} offset:{L_KX+1024*(4*kt+ke)}",f"K{kt}{ke}")
    cvt=lambda d,x,y: e(f"v_cvt_pk_bf16_f32 v{d}, v{x}, v{y}")
    gs=[(QSEQ[p],h) for p in (25,29,33) for h in range(2)]
    seen=set(); read=set(range(4))
    for p,key in enumerate(QSEQ):
        m,k=key; b=AB[k%4]
        if p==OPT["b1b"]:
            stamp(a,tim,"k2")
            if w in(1,2) and not OPT["m1pre"]: chk("mr"); a.wait(vm="dma"); a.label(L("mok"))
            elif w in(1,2): a.wait(vm="dma")
            e("s_barrier"); stamp(a,tim,"b1b")
            for kk in range(8,k+4):
                if kk not in read: aread(kk,AB[kk%4]); read.add(kk)
        if k not in seen:
            if OPT["pairw"] and k>=10 and k%2==0 and k+1 in read: a.wait(lg=f"A{k+1}"); seen.add(k+1)
            else: a.wait(lg=f"A{k}")
            seen.add(k)
        qkv(key,b,p)
        last=all(x[1]!=k for x in QSEQ[p+1:])
        if last and k+4<20 and (k+4<8 or p>=OPT["b1b"]) and k+4 not in read: aread(k+4,b); read.add(k+4)
        if p==1: a.wait(lg="A3"); e(f"v_max3_u32 v{T0}, v{AB[0]}, v{AB[1]}, v{AB[2]}")
        if p==2: e(f"v_max_u32 v{T0}, v{T0}, v{AB[3]}") if False else None
        if p==3: e(f"v_max_u32 v{T0}, v{T0}, v{AB[3]}")
        if p==4: e(f"v_cmp_eq_u32 vcc, -1, v{T0}")
        if p==6: chk("rec")
        if m=="q" and k==4: e(f"v_mov_b32 v{T0}, v{b}")
        if m=="q" and 5<=k<=17:
            if OPT["pairw"] and k>=10:
                if k%2==0: e(f"v_max3_u32 v{T0}, v{T0}, v{b}, v{AB[(k+1)%4]}")
            else: e(f"v_max_u32 v{T0}, v{T0}, v{b}")
        m1=OPT["m1in"] and w in(1,2) and not OPT["m1pre"]
        if m1 and p<nd: dma(a,1,sMR,"dma",p)
        for j,(gk,h) in enumerate(gs):
            if p==(OPT["gq"][0]+OPT["gq"][1]*j if not m1 else max(OPT["gq"][0]+OPT["gq"][1]*j,nd+j)): gload_half(a,gk,SLOT[gk][0],tg(gk),h)
        if not OPT["kxout"]:
            if kxw and p==OPT["kxp"][0]-1: e(f"s_mov_b32 m0, {L_KX+(4096 if w else 0)}")
            for j in range(4):
                if kxw and p==OPT["kxp"][0]+OPT["kxp"][1]*j: dma(a,1,sKX2 if w else sKX,"kx",j)
        if p==OPT["pfp"]: slow_ops("qk")
        if p==OPT["b1b"]-2 and w in(1,2) and not OPT["m1pre"]: a.wait(vm="pr"); pcmp(T1)
        if p==44: stamp(a,tim,"k7")
        if p%3==2: stamp(a,tim,f"_q{p}")
        if p==46 and not OPT["kxout"]: a.wait(vm="kx"); e("s_barrier")
        if p==47: kxread(0,0,SL3); kxread(1,0,SL3+4)
        if p==48: a.wait(lg="A19"); seen.add(19); e(f"v_max3_u32 v{T0}, v{T0}, v{AB[2]}, v{AB[3]}")
        if p==49: e(f"v_cmp_eq_u32 vcc, -1, v{T0}"); kxread(0,1,SL2); kxread(1,1,SL2+4)
        if p==51: chk("rec")
    stamp(a,tim,"qk")
    slow_ops("qkend")
    if w==3 and OPT["pub"] and OPT["pubpos"]=="lds":
        e(f"v_add_u32 v{T1}, {sPC}, {vL8}"); e(f"ds_read_b64 v[4:5], v{T1} offset:{L_MEM}","pl")
    cvt(QA,QA,QA+2); cvt(QA+2,QA+1,QA+3)
    qkv(("v",16),AB[0]); aread(12,AB[0])
    qkv(("v",17),AB[1]); aread(13,AB[1])
    cvt(QA+1,KA,KA+2); cvt(QA+3,KA+1,KA+3)
    e(f"ds_write_b64 {vXW}, {vr(QA,2)}","xw"); e(f"ds_write_b64 {vXW}, {vr(QA+2,2)} offset:512","xw")
    qkv(("v",18),AB[2]); qkv(("v",19),AB[3]); aread(14,AB[3])
    a.wait(lg="A12"); qkv(("v",12),AB[0])
    if w==3 and OPT["pub"] and OPT["lastlds"]:
        e(f"s_cmp_ge_u32 {sSTEP}, {NSEG-1-OPT['lastlds']}"); e(f"s_cbranch_scc1 {L('pub62')}"); a.label(L("pub62b"))
    if w==3 and OPT["pub"] and OPT["pubpos"]=="lds":
        e(f"s_add_u32 {sMP}, {sMP}, 10240"); e(f"s_add_u32 s10, {sMP}, {OPT['piece']}")
        e(f"buffer_store_dwordx2 v[4:5], {vL8}, {S_T}, {sMP} offen {OPT['pubfl']}","pub")
    stamp(a,tim,"_s0"); a.wait(lg="xw"); stamp(a,tim,"_s1"); e("s_barrier"); stamp(a,tim,"b2"); stamp(a,tim,"_s2")
    X=[28,32,40,44]
    for ke in range(4):
        for x in range(2): e(f"ds_read_b64_tr_b16 {vr(X[ke]+2*x,2)}, {vXR} offset:{1024*ke+512*x}",f"X{ke}")
        if ke==0: qkv(("v",13),AB[1])
        if ke==1: a.wait(lg="A14"); qkv(("v",14),AB[3])
    aread(15,AB[3])
    S0,S1,SM=AB[0],AB[2],AB[1]
    def mf(d,A,B,first,op="v_mfma_f32_16x16x32_bf16",n=4):
        e(f"{op} {vr(d,4)}, {vr(A,n)}, {vr(B,n)}, {'0' if first else vr(d,4)}")
    VM=VA; VX=SL3; P=SL2; PM=SL2+4
    stamp(a,tim,"_s3"); a.wait(lg="X0"); stamp(a,tim,"_s4"); mf(S0,SL3,X[0],1); mf(S1,SL3+4,X[0],1)
    kxread(0,2,SL3); kxread(1,2,SL3+4)
    a.wait(lg="X1"); stamp(a,tim,"_s5"); mf(S0,SL2,X[1],0); mf(S1,SL2+4,X[1],0)
    kxread(0,3,SL2); kxread(1,3,SL2+4)
    a.wait(lg="A15"); qkv(("v",15),AB[3])
    mf(SM,X[0],X[0],1); mf(SM,X[1],X[1],0)
    stamp(a,tim,"_s6"); a.wait(lg="K12"); stamp(a,tim,"_s7"); mf(S0,SL3,X[2],0); mf(S1,SL3+4,X[2],0)
    e(f"buffer_load_dwordx4 {vr(VX,4)}, {vL16}, {S_WS}, {sVX} offen {OPT['kvfl']}","vx")
    cvt(VM,VM,VM+2)
    stamp(a,tim,"_s8"); a.wait(lg="K13"); stamp(a,tim,"_s9"); mf(S0,SL2,X[3],0); cvt(VM+1,VM+1,VM+3); mf(S1,SL2+4,X[3],0)
    e(f"buffer_load_dwordx4 {vr(VX+4,4)}, {vL16}, {S_WS}, {sVX} offen offset:1024 {OPT['kvfl']}","vx")
    mf(SM,X[2],X[2],0)
    e(f"v_mov_b32 v{PM+1}, 0"); e(f"v_mov_b32 v{PM+2}, 0")
    mf(SM,X[3],X[3],0)
    e(f"v_max3_f32 v{T1}, v{S0}, v{S0+1}, v{S0+2}")
    e(f"v_max3_f32 v{T0}, v{S0+3}, v{S1}, v{S1+1}")
    e(f"v_max3_f32 v{T1}, v{T1}, v{S1+2}, v{S1+3}")
    stamp(a,tim,"scores"); stamp(a,tim,"_sa")
    e(f"v_max_f32 v{T1}, v{T1}, v{T0}")
    gload_half(a,("o",0),28,"go0",0)
    e(f"v_max3_f32 v{T0}, v{T1}, v{SM+2}, v{SM+3}"); e(f"v_max3_f32 v{T1}, v{T1}, v{SM+2}, v{SM+3}")
    e(f"v_permlane32_swap_b32 v{T0}, v{T1}")
    e(f"v_max_f32 v{SM}, v{T0}, v{T1}"); e(f"v_max_f32 v{T0}, v{T0}, v{T1}")
    gload_half(a,("o",0),28,"go0",1)
    e(f"v_permlane16_swap_b32 v{T0}, v{SM}")
    e(f"v_max_f32 v{T0}, v{T0}, v{SM}")
    e(f"v_mul_f32 v{T0}, {sC}, v{T0}")
    stamp(a,tim,"max"); stamp(a,tim,"_sb")
    ev=[S0,S0+1,S0+2,S0+3,S1,S1+1,S1+2,S1+3,SM+2,SM+3]
    for r in ev[::2]:
        e(f"v_pk_fma_f32 {vr(r,2)}, {vr(r,2)}, {sCC}, {vr(T0,2)} op_sel_hi:[1,1,0] neg_lo:[0,0,1] neg_hi:[0,0,1]")
    for i,r in enumerate(ev[:8]):
        e(f"v_exp_f32 v{r}, v{r}")
        if i in(1,6) and not OPT["g1pv"]: gload_half(a,("o",1),SL1,"go1",i//6)
        if i in(2,4,6): cvt(P+i//2-1,ev[i-2],ev[i-1])
        if i==4: e(f"v_mov_b64 {vr(S0,2)}, {sONE}")
        if i==6: e(f"v_mov_b64 {vr(S0+2,2)}, {sONE}")
    e(f"v_exp_f32 v{ev[8]}, v{ev[8]}"); cvt(P+3,ev[6],ev[7])
    e(f"v_exp_f32 v{ev[9]}, v{ev[9]}")
    O=[S0,AB[3]]
    stamp(a,tim,"exp"); stamp(a,tim,"_p0")
    mf(S1,S0,P,1)
    cvt(PM,ev[8],ev[9]); cvt(PM+3,ev[8],ev[9])
    stamp(a,tim,"_p1"); a.wait(vm="vx"); stamp(a,tim,"_p2")
    mf(O[1],VX+4,P,1)
    if OPT["g1pv"]: gload_half(a,("o",1),SL1,"go1",0)
    mf(S1,S0,PM,0,"v_mfma_f32_16x16x16_bf16",2)
    if OPT["g1pv"]: gload_half(a,("o",1),SL1,"go1",1)
    mf(O[0],VX,P,1)
    lload_tile(a,("o",2),SL3,"lo2")
    mf(O[1],VM,PM+2,0,"v_mfma_f32_16x16x16_bf16",2)
    e(f"v_rcp_f32 v{T0}, v{S1}")
    mf(O[0],VM,PM,0,"v_mfma_f32_16x16x16_bf16",2)
    ks=OPT["kvstride"]
    e(f"s_add_u32 {sSTEP}, {sSTEP}, 1"); e(f"s_add_u32 {sVX}, {sVX}, {ks}")
    if w==0: e(f"s_add_u32 {sKX}, {sKX}, {ks}"); e("s_mov_b32 m0, 0")
    if w==3: e(f"s_add_u32 {sKX2}, {sKX2}, {ks}"); e(f"s_add_u32 {sKXN}, {sKXN}, {ks}"); e(f"s_add_u32 {sVXN}, {sVXN}, {ks}")
    PK=P
    stamp(a,tim,"_p7")
    for i in range(0,4,2): e(f"v_pk_mul_f32 {vr(O[1]+i,2)}, {vr(O[1]+i,2)}, {vr(T0,2)} op_sel_hi:[1,0]")
    for i in range(0,4,2):
        e(f"v_pk_mul_f32 {vr(O[0]+i,2)}, {vr(O[0]+i,2)}, {vr(T0,2)} op_sel_hi:[1,0]")
        for k in range(2): cvt(PK+i+k,O[0]+i+k,O[1]+i+k)
    e(f"s_mov_b64 exec, {sEX}"); e(f"ds_write_b128 {vOW}, {vr(PK,4)}","ow"); e("s_mov_b64 exec, -1")
    stamp(a,tim,"_p8")
    ZA,XA,YA=36,28,32
    zero4(a,ZA)
    slow_ops("opack")
    stamp(a,tim,"opack")
    a.wait(lg="ow"); stamp(a,tim,"_p9"); e("s_barrier"); stamp(a,tim,"b3"); stamp(a,tim,"_pa")
    for k in range(4): e(f"ds_read_b128 {vr(AB[k],4)}, {vA} offset:{L_MEM+512*k}",f"ao{k}")
    if not OPT["g9in"]: gload_tile(a,("o",9),SL2,"go9")
    RL=[SL2,SL2+4,SL3,SL3+4]
    def red_loads():
        for m in range(4): e(f"buffer_load_dwordx4 {vr(RL[m],4)}, {vRL}, {S_WS}, {sPR[m]} offen sc1",f"r{m}")
    z=lambda r: [f"v_mov_b64 {vr(r,2)}, 0",f"v_mov_b64 {vr(r+2,2)}, 0"]
    cv=lambda d,x,y: f"v_cvt_pk_bf16_f32 v{d}, v{x}, v{y}"
    tagop=lambda r: f"v_and_or_b32 v{r}, v{r}, -2, {sTAG}"
    PACC=[ZA,XA,YA,ZA,XA]
    post={n:[] for n in range(21)}
    post[1]+=z(XA)[:1]; post[2]+=z(XA)[1:]; post[3]+=z(YA)[:1]; post[4]+=z(YA)[1:]
    post[5]+=[cv(ZA,ZA,ZA+1)]; post[6]+=[cv(ZA+1,ZA+2,ZA+3)]; post[7]+=[tagop(ZA)]
    sg=OPT["ststag"]*(w>>1)
    post[9]+=[cv(ZA+2,XA,XA+1),cv(ZA+3,XA+2,XA+3)]
    post[9+sg]+=[(f"buffer_store_dwordx4 {vr(ZA,4)}, {vL16}, {S_WS}, {sP0} offen {st}","p0")]
    post[10+sg]+=z(ZA); post[12]+=z(XA)[:1]; post[13]+=z(XA)[1:]
    post[13]+=[cv(YA,YA,YA+1)]; post[14]+=[cv(YA+1,YA+2,YA+3)]; post[15]+=[tagop(YA)]
    post[17]+=[cv(YA+2,ZA,ZA+1),cv(YA+3,ZA+2,ZA+3)]
    post[17+sg]+=[(f"buffer_store_dwordx4 {vr(YA,4)}, {vL16}, {S_WS}, {sP1} offen {st}","p1")]
    post[20]+=[cv(XA,XA,XA+1),cv(XA+1,XA+2,XA+3),tagop(XA),(f"buffer_store_dwordx2 {vr(XA,2)}, {vL8}, {S_WS}, {sP2} offen {st}","p2")]
    def flag(c): return [(f"buffer_store_byte v{T0}, v{T1}, {S_WS}, {sF1W} offen offset:{512*c} {st}",f"f{c}")]
    if OPT["f1"]:
        post[0]+=[f"v_mov_b32 v{T0}, {sSTEP}"]; post[8]+=[f"v_lshlrev_b32 v{T1}, 24, {vL16}"]
        post[10+sg]=flag(0)+post[10+sg]; post[18+sg]=flag(1)+post[18+sg]; post[20]+=flag(2)
    def emit(l):
        for x in l:
            if isinstance(x,tuple): e(x[0],x[1])
            else: e(x)
    def probe1(d,r): e(f"buffer_load_dword v{d}, v{r}, {S_WS}, {sF1R} offen sc1","q1")
    for n in range(20):
        ko=n&3; key=("o",n)
        if n<4: a.wait(lg=f"ao{ko}")
        if n<2: stamp(a,tim,f"_pb{n}")
        if key in TL: a.wait(lg=f"lo{n}")
        elif key in TG: a.wait(vm=f"go{n}")
        sm(a,PACC[n>>2],AB[ko],key,SLOT.get(key,(0,))[0])
        if n in O_SLOT:
            m=nxt(None,O_SLOT,n)
            if m is not None and O_SLOT[m][1]=="L": lload_tile(a,("o",m),O_SLOT[m][0],f"lo{m}")
        if OPT["g9in"] and n<2: gload_half(a,("o",9),SL2,"go9",n)
        if n in OPT["g19"]: gload_half(a,("o",19),SL1,"go19",OPT["g19"].index(n))
        if OPT["kxout"] and kxw:
            ko_=OPT["kxout"]
            if n==ko_[0]-1: e(f"s_mov_b32 m0, {L_KX+(4096 if w else 0)}")
            for j in range(4):
                if n==ko_[0]+ko_[1]*j: dma(a,1,sKX2 if w else sKX,"kx",j)
            if w==0 and n==ko_[0]+ko_[1]*3+1: e("s_mov_b32 m0, 0")
        if n==4 and OPT["b4"]: e("s_barrier")
        if w==0 and n==OPT["rl"]: red_loads()
        if n in(13,): stamp(a,tim,f"o{n}")
        if n>=2: stamp(a,tim,f"_o{n}")
        if OPT["f1"] and w==0 and n==OPT["q1"]:
            e(f"v_bfe_u32 v{SL2}, {vL16}, 2, 5"); e(f"s_add_u32 {sT1}, {sPAT}, 0x01010101"); probe1(SL2,SL2)
        if n==19 and w<3:
            e(f"v_and_b32 v16, 0xff, {vL16}")
            e(f"ds_read_b128 v[12:15], v16 offset:{L_SEL}","sel")
        emit(post[n])
    emit(post[20])
    stamp(a,tim,"out")
    def slots():
        e(f"s_add_u32 {sMR}, {sMW}, {4096*w}")
        if w<3 and OPT["probe"]=="c": e(f"s_add_u32 {sMF}, {sMW}, {10240+256*w}")
        if w<3 and OPT["probe"]=="b": e(f"s_add_u32 {sPAT}, {sPAT}, 0x01010101")
        for r in (sMW,sMZ):
            e(f"s_add_u32 {r}, {r}, 16384"); e(f"s_and_b32 {r}, {r}, 0xffff"); e(f"s_or_b32 {r}, {r}, {M_OFF}")
        e(f"s_xor_b32 {sTAG}, {sTAG}, 1"); e(f"s_not_b32 {sTAGM}, {sTAGM}")
    if w<3 and OPT["f1"]:
        if w==2: e(f"s_cmp_ge_u32 {sUNIT}, 80"); e(f"s_cbranch_scc1 {L('nored0')}")
        e(f"v_bfe_u32 v23, {vL16}, 2, 5")
        if w==0:
            a.wait(vm="q1"); e(f"v_cmp_ne_u32 vcc, {sT1}, v{SL2}")
            e(f"v_mov_b32 v20, {sSTEP}"); e(f"v_lshlrev_b32 v21, 4, {vL16}"); e("v_mov_b32 v22, -1")
            e(f"s_cbranch_vccz {L('f1ok')}")
        else:
            e(f"s_add_u32 {sT1}, {sPAT}, 0x01010101")
            e(f"v_mov_b32 v20, {sSTEP}"); e(f"v_lshlrev_b32 v21, 4, {vL16}"); e("v_mov_b32 v22, -1")
            delay(a,OPT['d1'] if w==1 else OPT['d1b'])
        probe1(T0,23); delay(a,OPT["d4"]); probe1(T0,23)
        a.label(L("f1"))
        for u in range(2):
            e("s_waitcnt vmcnt(1)"); e(f"v_cmp_ne_u32 vcc, {sT1}, v{T0}"); probe1(T0,23)
            if OPT["nosync"]: e(f"s_branch {L('f1ok')}")
            else: e(f"s_cbranch_vccz {L('f1ok')}")
        spin(); e(f"s_branch {L('f1')}")
        a.label(L("f1ok")); a.vm=[]
        red_loads()
        zero_acc()
        a.wait(lg="all")
    if w<3 and not OPT["f1"]:
        a.wait(lg="all")
        if w==0 and OPT["rl"]>19: delay(a,OPT['d0']); red_loads()
        e(f"v_mov_b32 v20, {sSTEP}"); e(f"v_lshlrev_b32 v21, 4, {vL16}"); e("v_mov_b32 v22, -1")
        zero_acc()
        if w==1: delay(a,OPT['d1']); red_loads()
        if w==2:
            delay(a,OPT['d1b'])
            e(f"s_cmp_ge_u32 {sUNIT}, 80"); e(f"s_cbranch_scc1 {L('nored')}")
            red_loads()
    if w<3:
        stamp(a,tim,"rlis")
        a.label(L("red"))
        for m in range(4):
            a.wait(vm=f"r{m}")
            if m==3:
                e(f"v_bitop3_b32 v{T1}, v{RL[2]}, v{RL[3]}, {sTAGM} bitop3:0x7e")
                e(f"v_bitop3_b32 v{T0}, v{T0}, v{T1}, 1 bitop3:0xa8")
                e(f"v_cmp_ne_u32 vcc, 0, v{T0}")
            mf(16,12,RL[m],m==0)
            if m==1: e(f"v_bitop3_b32 v{T0}, v{RL[0]}, v{RL[1]}, {sTAGM} bitop3:0x7e")
        e(f"s_cmp_eq_u32 {sSTEP}, {NSEG-1}")
        chk("redo")
        for i in range(4): e(f"v_add_f32_dpp v{16+i}, v{16+i}, v{16+i} row_ror:8 row_mask:0xf bank_mask:0xf")
        e(f"v_cvt_pk_bf16_f32 v{T0}, v16, v17"); e(f"v_cvt_pk_bf16_f32 v{T1}, v18, v19")
        e(f"v_min_u32 v{T0}, {sFE}, v{T0}")
        e(f"s_cbranch_scc1 {L('last')}")
        e(f"buffer_store_dwordx2 {vr(T0,2)}, {vRS}, {S_WS}, {sMW} offen {st}","rs")
        e(f"buffer_store_byte v20, v21, {S_T}, {sUNIT} offen {st}","fl")
        e(f"buffer_store_dword v22, {vRS}, {S_WS}, {sMZ} offen {st}","mz")
        stamp(a,tim,"red")
        if w==2: a.label(L("nored2"))
        prestage(); slots()
    if w==0 or (w<3 and OPT["m1pre"]):
        paddr(23)
        if w==0: delay(a,OPT['d2']); stamp(a,tim,"mis")
        NP=OPT["np"] if w==0 else 1
        PD=T0
        if w==0 and OPT["spec"]:
            PD=T1
            probe(T0,23); dma(a,nd,sMR,None)
            for i in range(NP): delay(a,OPT["d4"]); probe(PD,23)
            e(f"s_waitcnt vmcnt({nd+NP})"); pcmp(T0)
            e(f"s_cbranch_vccz {L('m0hit')}")
        else:
            for i in range(NP): probe(PD,23); delay(a,OPT["d4"]) if i<NP-1 else None
        a.label(L("m0"))
        for u in range(OPT["unr"] if w==0 else 1):
            e(f"s_waitcnt vmcnt({NP-1})"); pcmp(PD)
            if w==0: probe(PD,23)
            if tim in(1,2): e("s_add_u32 s86, s86, 1")
            if OPT["nosync"]: e(f"s_branch {L('m0ok')}")
            else: e(f"s_cbranch_vccz {L('m0ok')}")
        if w: probe(PD,23)
        spin(); e(f"s_branch {L('m0')}")
        a.label(L("m0ok"))
        if w==0: stamp(a,tim,"det")
        a.vm=[]
        dma(a,nd,sMR,"dma")
        if w==0: e("s_waitcnt vmcnt(0)"); a.vm=[]
        if w==0 and OPT["spec"]:
            a.label(L("m0hit")); e(f"s_waitcnt vmcnt({NP})")
    if w<3: a.wait(lg="all")
    if w==3:
        delay(a,OPT['d3'])
        prestage()
        if OPT["pub"] and OPT["pubpos"]!="lds":
            e(f"s_add_u32 {sT0}, {sMR}, {sPC}"); e(f"s_sub_u32 {sT0}, {sT0}, {4096*3}")
            e(f"s_add_u32 s10, {sT0}, {OPT['piece']}"); e(f"s_cmp_lt_u32 {sPC}, 10240"); e("s_cselect_b32 s10, s10, 0")
            if "L" not in OPT["ab"]: e(f"buffer_load_dwordx2 v[4:5], {vL8}, {S_T}, {sT0} offen sc1","pl")
            e(f"s_add_u32 {sMP}, {sMP}, {OPT['mpstride']}"); e(f"s_add_u32 s10, {sMP}, {OPT['piece']}"); e(f"s_cmp_lt_u32 {sPC}, 10240"); e("s_cselect_b32 s10, s10, 0")
            if OPT["pubpos"]=="hop":
                a.wait(vm="pl"); e(f"buffer_store_dwordx2 v[4:5], {vL8}, {S_T}, {sMP} offen {OPT['pubfl']}","pub")
        e(f"s_cmp_eq_u32 {sSTEP}, {NSEG-1}"); e(f"s_cbranch_scc1 {L('last')}")
        if OPT["kvchk"]:
            e(f"s_cmp_eq_u32 {sALL}, 1"); e(f"s_cbranch_scc1 {L('kvok')}")
            e(f"s_lshl_b32 {sT0}, {sSTEP}, 7"); e(f"s_add_u32 {sT0}, {sT0}, {KVCNT+256}"); e(f"s_min_u32 {sT0}, {sT0}, {KVCNT+63*128}")
            e(f"s_load_dword s28, s[4:5], {sT0} glc"); e(f"s_load_dword s29, s[4:5], {KVCNT+63*128} glc")
            e("s_waitcnt lgkmcnt(0)")
            e("s_cmp_ge_u32 s29, 32"); e(f"s_cselect_b32 {sALL}, 1, 0")
            e("s_cmp_ge_u32 s28, 32"); e(f"s_cbranch_scc0 {L('kvw')}")
            a.label(L("kvok"))
        slots(); zero_acc()
        if OPT["pub"] and OPT["pubpos"]=="hop": a.wait(lg="all")
        else: a.wait(vm="all",lg="all")
    stamp(a,tim,"pre")
    assert OPT["ab"] or (a.vm[len(a.vm)-len(top_vm):]==top_vm and (top_vm or not a.vm)),(w,a.vm)
    if tim==3:
        e(f"s_cmp_eq_u32 {sSTEP}, {OPT['at']}"); e(f"s_cbranch_scc0 HZ_{L('top')}")
        n=len(STAMPS); e(f"s_memrealtime s[{54+2*n}:{55+2*n}]"); e(f"s_memtime s[{56+2*n}:{57+2*n}]")
        e("s_waitcnt lgkmcnt(0)")
        e(f"s_lshl_b32 {sT0}, {sH}, 2"); e(f"s_add_u32 {sT0}, {sT0}, {w}"); e(f"s_lshl_b32 {sT0}, {sT0}, 7"); e(f"s_add_u32 {sT0}, {sT0}, {DBG_OFF+65536}")
        e(f"v_mov_b32 v{T1}, 0"); e("s_mov_b64 exec, 1")
        for i in range(len(STAMPS)+2):
            e(f"v_mov_b32 v{T0}, s{54+2*i}"); e(f"buffer_store_dword v{T0}, v{T1}, {S_WS}, {sT0} offen offset:{4*i}")
        e("s_waitcnt vmcnt(0)"); e("s_mov_b64 exec, -1")
    e(f"s_branch HZ_{L('top')}")
    if w<3:
        a.label(L("redo"))
        if tim in(1,2): e("s_add_u32 s85, s85, 1")
        e("s_mov_b64 exec, vcc")
        a.label(L("redo2"))
        red_loads(); spin()
        e("s_waitcnt vmcnt(0)")
        e(f"v_bitop3_b32 v{T0}, v{RL[0]}, v{RL[1]}, {sTAGM} bitop3:0x7e"); e(f"v_bitop3_b32 v{T1}, v{RL[2]}, v{RL[3]}, {sTAGM} bitop3:0x7e")
        e(f"v_bitop3_b32 v{T0}, v{T0}, v{T1}, 1 bitop3:0xa8"); e(f"v_cmp_ne_u32 vcc, 0, v{T0}")
        e(f"s_cbranch_vccnz {L('redo2')}")
        e("s_mov_b64 exec, -1"); e("s_nop 1")
        e(f"s_branch {L('red')}")
        a.label(L("last"))
        e(f"s_mov_b32 {sT0}, {MEMP_OFF+63*10240}")
        e(f"buffer_store_dwordx2 {vr(T0,2)}, {vRS}, {S_WS}, {sT0} offen sc1")
        e(f"s_branch {L('done')}")
    if w==2:
        if OPT["f1"]: a.label(L("nored0")); zero_acc(); e("s_waitcnt lgkmcnt(0)")
        a.label(L("nored"))
        e("s_waitcnt vmcnt(0)")
        e(f"s_cmp_eq_u32 {sSTEP}, {NSEG-1}"); e(f"s_cbranch_scc1 {L('done')}")
        e(f"s_branch {L('nored2')}")
    if w==3 and OPT["kvchk"]:
        a.label(L("kvw"))
        if tim in(1,2): e("s_add_u32 s85, s85, 1")
        e(f"v_mov_b32 v{T0}, 0")
        a.label(L("kvw2"))
        e(f"buffer_load_dword v{T1}, v{T0}, {S_WS}, {sT0} offen sc1"); spin(); e("s_waitcnt vmcnt(0)")
        e(f"v_cmp_gt_u32 vcc, 32, v{T1}"); e(f"s_cbranch_vccnz {L('kvw2')}")
        e(f"s_branch {L('kvok')}")
    if w==3 and OPT["pub"] and OPT["lastlds"]:
        a.label(L("pub62"))
        e(f"v_add_u32 v{T1}, {sPC}, {vL8}"); e(f"ds_read_b64 v[4:5], v{T1} offset:{L_MEM}")
        e(f"s_add_u32 {sT0}, {sMP}, 10240"); e(f"s_add_u32 s10, {sT0}, {OPT['piece']}"); e("s_waitcnt lgkmcnt(0)")
        e(f"buffer_store_dwordx2 v[4:5], {vL8}, {S_T}, {sT0} offen sc1"); e("s_mov_b32 s10, 0")
        e(f"s_branch {L('pub62b')}")
    if w==3:
        a.label(L("last"))
        e("s_waitcnt vmcnt(0)")
        if OPT["pub"] and OPT["pubpos"] not in("hop","lds") and not OPT["lastlds"]: e(f"buffer_store_dwordx2 v[4:5], {vL8}, {S_T}, {sMP} offen sc1")
        e(f"s_branch {L('done')}")
    if w in(1,2) and not OPT["m1pre"]:
        a.label(L("mr"))
        spin("s86")
        mfetch(); e(f"s_waitcnt vmcnt({nd})")
        pcmp(T1); e(f"s_cbranch_vccnz {L('mr')}")
        e("s_waitcnt vmcnt(0)")
        e(f"s_branch {L('mok')}")
    a.label(L("done"))
    a.vm=[]; a.lg=[]
    e("s_waitcnt vmcnt(0) lgkmcnt(0)")
    if tim in(1,2):
        e("s_memtime s[70:71]"); e("s_waitcnt lgkmcnt(0)"); e("s_sub_u32 s83, s70, s74")
        for i in range(11): e(f"v_mov_b32 v{12+i}, s{76+i}")
        e(f"s_lshl_b32 {sT0}, {sH}, 2"); e(f"s_add_u32 {sT0}, {sT0}, {w}"); e(f"s_lshl_b32 {sT0}, {sT0}, 6"); e(f"s_add_u32 {sT0}, {sT0}, {DBG_OFF}")
        e("v_mov_b32 v10, 0"); e("s_mov_b64 exec, 1")
        e("s_memrealtime s[68:69]"); e("s_waitcnt lgkmcnt(0)")
        for i,r in enumerate((90,92,94,66,68)): e(f"v_mov_b32 v{23+i}, s{r}")
        for i in range(4): e(f"buffer_store_dwordx4 {vr(12+4*i,4)}, v10, {S_WS}, {sT0} offen offset:{16*i}")
        e("s_waitcnt vmcnt(0)")
    e("s_endpgm")
```

```python
from asmlib import *
from layout import *
import chain as C
import struct, math
S_WS=C.S_WS; sDBG=C.sDBG
sW="s13"; sROW="s64"; sRANK="s65"
f32=lambda x: "0x%08x"%struct.unpack("<I",struct.pack("<f",x))[0]
OPT={"tim":0,"hold":0,"asleep":2,"bsleep":2}

def rt(a,i):
    if OPT["tim"]: a.e(f"s_memrealtime s[{70+2*i}:{71+2*i}]")

def spin_wait(a,name,load,cmp_fail,sCNT="s32",sleep=1):
    e=a.e
    a.label(name)
    load()
    e(f"s_add_u32 {sCNT}, {sCNT}, 1"); e(f"s_cmp_gt_u32 {sCNT}, 0x40000"); e("s_cbranch_scc1 L_abort")
    e("s_waitcnt vmcnt(0)"); a.vm=[]
    cmp_fail()
    e(f"s_cbranch_vccz {name}_ok")
    if sleep: e(f"s_sleep {sleep}")
    e(f"s_branch {name}")
    a.label(name+"_ok")

XA=0
ACC=32; BI=64; GT=80
vLN="v232"; vL16="v233"; vDA="v234"; vDB="v235"; vVO="v236"; vRD="v237"; TMP=240
S_W="s[8:11]"; S_X="s[20:23]"
sTILE="s24"; sSEG="s26"; sSRC="s27"; sOUT="s28"; sOUT2="s29"; sSTR="s30"; sOFF="s31"; sCNT="s32"; sWI="s33"; sA="s34"; sB="s35"; sKIND="s36"; sMIX="s37"
sSLOT="s16"; sSIG="s17"; sOSTR="s18"; sIT="s19"; sFILL="s38"; sG0="s39"; sOUT3="s14"; sOUT4="s15"; sHS="s25"
def wreg(j,k,t):
    i=160*j+8*k+4*t
    return vr(i,4,'a') if i<256 else vr(i-256+160,4)
def wreg2(j,k,t,x):
    i=160*j+8*k+4*t+2*x
    return vr(i,2,'a') if i<256 else vr(i-256+160,2)

def layernorm(a):
    e=a.e; one=TMP; S=[TMP+4,TMP+8]
    for k in range(20):
        e(f"v_mfma_f32_16x16x32_bf16 {vr(S[0],4)}, {vr(one,4)}, {vr(4*k,4)}, {'0' if k==0 else vr(S[0],4)}")
        e(f"v_mfma_f32_16x16x32_bf16 {vr(S[1],4)}, {vr(4*k,4)}, {vr(4*k,4)}, {'0' if k==0 else vr(S[1],4)}")
    q=S[1]
    for i in range(1,4):
        e(f"v_cmp_eq_u32 vcc, {i}, v{TMP+12}"); e(f"v_cndmask_b32 v{q}, v{q}, v{q+i}, vcc")
    e(f"ds_bpermute_b32 v{q}, v{TMP+13}, v{q}","bp")
    m=S[0]
    e(f"v_mul_f32 v{m}, {f32(1/640)}, v{m}")
    a.wait(lg="bp")
    e(f"v_mul_f32 v{q}, {f32(1/640)}, v{q}"); e(f"v_fma_f32 v{q}, -v{m}, v{m}, v{q}"); e(f"v_max_f32 v{q}, 0, v{q}")
    rb=lambda r: (e(f"v_cvt_pk_bf16_f32 v{r}, v{r}, v{r}"), e(f"v_and_b32 v{r}, {sMIX}, v{r}"))
    rb(m); rb(q); e(f"v_add_f32 v{q}, {f32(1e-5)}, v{q}"); rb(q); e(f"v_sqrt_f32 v{q}, v{q}"); rb(q)
    e(f"v_rcp_f32 v{q}, v{q}"); e(f"v_mul_f32 v{m}, v{m}, v{q}")
    for k in range(20):
        if k and k%4==0: e(f"s_add_u32 {sOUT}, {sOUT}, 4096")
        for r in range(4*k,4*k+4):
            t=TMP+14
            e(f"v_lshlrev_b32 v{t}, 16, v{r}"); e(f"v_and_b32 v{t+1}, {sMIX}, v{r}")
            e(f"v_pk_fma_f32 {vr(t,2)}, {vr(t,2)}, {vr(q,2)}, {vr(m,2)} op_sel_hi:[1,0,0] neg_lo:[0,0,1] neg_hi:[0,0,1]")
            e(f"v_cvt_pk_bf16_f32 v{r}, v{t}, v{t+1}")
        e(f"buffer_store_dwordx4 {vr(4*k,4)}, {vL16}, {S_WS}, {sOUT} offen offset:{1024*(k%4)} sc1")

def add_one(a,off):
    e=a.e
    e("s_mov_b64 exec, 1")
    e(f"v_mov_b32 v{TMP}, 0"); e(f"v_mov_b32 v{TMP+1}, 1")
    e(f"buffer_atomic_add v{TMP+1}, v{TMP}, {S_WS}, {off} offen")
    e("s_mov_b64 exec, -1"); e("s_nop 3")

def seg_dma(a):
    out=[]
    for i in range(10):
        g=[]
        if i%4==0: g.append(f"s_add_u32 m0, {sFILL}, {4096*(i//4)}")
        if i in(4,8): g.append(f"s_add_u32 {sSRC}, {sSRC}, 4096")
        g.append((f"buffer_load_dwordx4 {vL16}, {S_X}, {sSRC} offen offset:{1024*(i%4)} sc1 lds","d"))
        out.append(g)
    out[-1]+= [f"s_add_u32 {sSRC}, {sSRC}, {40960-8192}",f"s_add_u32 {sFILL}, {sFILL}, 40960",f"s_cmp_ge_u32 {sFILL}, 163840",
               f"s_cselect_b32 {sA}, 163840, 0",f"s_sub_u32 {sFILL}, {sFILL}, {sA}"]
    return out
def emit(a,g):
    for x in g:
        if isinstance(x,tuple): a.e(x[0],x[1])
        else: a.e(x)

def seg_loop(a,kind):
    e=a.e; L=lambda s: f"W{kind}_{s}"
    a.label(L("top"))
    NJ=1 if kind=="H" else 2
    e(f"s_waitcnt vmcnt({10+2*NJ})"); e("s_barrier")
    a.vm=[]; a.lg=[]
    rd=lambda f: e(f"ds_read_b128 {vr(4*(f%8),4)}, {vRD} offset:{1024*f}",f"f{f}")
    LA=7 if NJ==1 else 4
    for f in range(LA): rd(f)
    e(f"s_cmp_lt_u32 {sIT}, 2"); e(f"s_cselect_b32 {sA}, 1, {sW}"); e(f"s_cmp_eq_u32 {sA}, 0"); e(f"s_cbranch_scc0 {L('nosig')}")
    add_one(a,sSIG)
    a.label(L("nosig")); a.vm=[]
    fill=seg_dma(a)
    ac=lambda j,tt,t: ACC+16*j+8*tt+4*t
    for f in range(40):
        tt,k=f//20,f%20
        a.wait(lg=f"f{f}")
        for j in range(NJ):
            for t in range(2):
                A,B=wreg(j,k,t),vr(4*(f%8),4)
                if kind=="V": A,B=B,A
                d=vr(ac(j,tt,t),4)
                e(f"v_mfma_f32_16x16x32_bf16 {d}, {A}, {B}, {'0' if k==0 else d}")
                if j==0 and t==0 and f+LA<40: rd(f+LA)
        if f%3==0 and fill: emit(a,fill.pop(0))
    e(f"s_add_u32 {sSLOT}, {sSLOT}, 40960"); e(f"s_cmp_ge_u32 {sSLOT}, 163840"); e(f"s_cselect_b32 {sSLOT}, 0, {sSLOT}")
    e(f"v_add_u32 {vRD}, {sSLOT}, {vL16}")
    so=[[sOUT,sOUT2],[sOUT3,sOUT4]]
    for j in range(NJ):
      if kind=="K":
        for tt in range(2):
            t0,t1=ac(j,tt,0),ac(j,tt,1); o=TMP+4+4*tt
            for i,(x,y) in enumerate(((t0,t0+2),(t1,t1+2),(t0+1,t0+3),(t1+1,t1+3))): e(f"v_cvt_pk_bf16_f32 v{o+i}, v{x}, v{y}")
            e(f"buffer_store_dwordx4 {vr(o,4)}, {vL16}, {S_WS}, {so[j][tt]} offen sc1")
      elif kind=="V":
        for t in range(2):
            t0,t1=ac(j,0,t),ac(j,1,t); o=TMP+4+4*t
            for i,(x,y) in enumerate(((t0,t0+1),(t0+2,t0+3),(t1,t1+1),(t1+2,t1+3))): e(f"v_cvt_pk_bf16_f32 v{o+i}, v{x}, v{y}")
            e(f"buffer_store_dwordx4 {vr(o,4)}, {vVO}, {S_WS}, {so[j][0]} offen offset:{128*t} sc1")
      else:
        for tt in range(2):
            for t in range(2):
                for i in range(4):
                    z=ac(j,tt,t)+i; u=GT+4+i
                    e(f"v_add_f32 v{z}, v{z}, v{BI+8*j+4*t+i}")
                    e(f"v_mul_f32 v{u}, v{z}, v{z}"); e(f"v_fma_f32 v{u}, v{u}, {sG0}, v{GT}"); e(f"v_mul_f32 v{u}, v{u}, v{z}")
                for i in range(4): e(f"v_exp_f32 v{GT+4+i}, v{GT+4+i}")
                for i in range(4): e(f"v_add_f32 v{GT+4+i}, 1.0, v{GT+4+i}")
                for i in range(4): e(f"v_rcp_f32 v{GT+4+i}, v{GT+4+i}")
                for i in range(4): e(f"v_mul_f32 v{ac(j,tt,t)+i}, v{ac(j,tt,t)+i}, v{GT+4+i}")
            t0,t1=ac(j,tt,0),ac(j,tt,1); o=TMP+4+4*tt
            for i,(x,y) in enumerate(((t0,t0+1),(t0+2,t0+3),(t1,t1+1),(t1+2,t1+3))): e(f"v_cvt_pk_bf16_f32 v{o+i}, v{x}, v{y}")
            e(f"buffer_store_dwordx4 {vr(o,4)}, {vL16}, {S_WS}, {so[j][tt]} offen sc1")
    for r in (sOUT,sOUT2,sOUT3,sOUT4): e(f"s_add_u32 {r}, {r}, {sOSTR}")
    e(f"s_add_u32 {sSIG}, {sSIG}, 128")
    if OPT["tim"]:
        e(f"s_cmp_eq_u32 {sIT}, 3"); e(f"s_cbranch_scc0 {L('nt')}"); rt(a,2); e("s_waitcnt lgkmcnt(0)"); a.label(L("nt"))
    e(f"s_add_u32 {sIT}, {sIT}, 1"); e(f"s_cmp_lt_u32 {sIT}, 64"); e(f"s_cbranch_scc1 {L('top')}")
    e("s_branch W_tail")

def zero_wait(a,name):
    e=a.e
    spin_wait(a,name,lambda:(e(f"v_mov_b32 v{TMP+4}, 4"),e(f"global_load_dword v{TMP+5}, v{TMP+4}, {sDBG} sc1")),lambda:e(f"v_cmp_gt_u32 vcc, 32, v{TMP+5}"))

def common(a):
    e=a.e
    e(f"s_load_dwordx2 s[20:21], s[0:1], {A_X}")
    e(f"s_load_dwordx2 s[40:41], s[0:1], {A_WQ}"); e(f"s_load_dwordx2 s[42:43], s[0:1], {A_WK}"); e(f"s_load_dwordx2 s[44:45], s[0:1], {A_WV}")
    e(f"s_load_dwordx2 s[46:47], s[0:1], {B_W1}"); e(f"s_load_dwordx2 s[48:49], s[0:1], {B_B1}")
    e(f"v_mov_b32 {vLN}, v0"); e(f"v_lshlrev_b32 {vL16}, 4, v0")
    e(f"s_sub_u32 {sWI}, {sROW}, 1"); e(f"s_lshl_b32 {sWI}, {sWI}, 5"); e(f"s_add_u32 {sWI}, {sWI}, {sRANK}")
    e(f"s_mov_b32 {sCNT}, 0"); e(f"s_mov_b32 {sMIX}, 0xffff0000")
    e(f"s_mov_b32 s22, {S*D*2}"); e("s_mov_b32 s23, 0x20000"); e("s_mov_b32 s11, 0x20000")
    e("s_waitcnt lgkmcnt(0)")

def norm_rows(a):
    e=a.e; t=TMP
    e(f"s_sub_u32 {sHS}, {sWI}, 64"); e(f"s_cmp_lt_u32 {sHS}, 128"); e(f"s_cselect_b32 {sA}, {sW}, 1")
    e(f"s_cmp_eq_u32 {sA}, 0"); e("s_cbranch_scc0 W_noln")
    e(f"v_and_b32 v{t}, 15, {vLN}"); e(f"v_mul_u32_u24 v{t}, 1280, v{t}"); e(f"v_lshrrev_b32 v{t+1}, 4, {vLN}"); e(f"v_lshl_add_u32 v{t}, v{t+1}, 4, v{t}")
    e(f"s_mul_i32 {sA}, {sHS}, {16*1280}")
    for k in range(20): e(f"buffer_load_dwordx4 {vr(4*k,4)}, v{t}, {S_X}, {sA} offen offset:{64*k}")
    e(f"s_mul_i32 {sA}, {sHS}, 5120"); e(f"s_add_u32 {sA}, {sA}, {MEMP_OFF}"); e(f"s_add_u32 {sOUT}, {sA}, 4096")
    e(f"v_mov_b64 {vr(TMP+4,2)}, -1"); e(f"v_mov_b64 {vr(TMP+6,2)}, -1")
    for i in range(5): e(f"buffer_store_dwordx4 {vr(TMP+4,4)}, {vL16}, {S_WS}, {sA if i<4 else sOUT} offen offset:{1024*(i%4)} sc1")
    for i in range(4): e(f"v_mov_b32 v{TMP+i}, 0x3f803f80")
    e(f"v_and_b32 v{TMP+12}, 15, {vLN}"); e(f"v_lshrrev_b32 v{TMP+13}, 2, v{TMP+12}"); e(f"v_lshl_add_u32 v{TMP+13}, v{TMP+13}, 4, v{TMP+12}")
    e(f"v_lshlrev_b32 v{TMP+13}, 2, v{TMP+13}"); e(f"v_and_b32 v{TMP+12}, 3, v{TMP+12}")
    e(f"s_mul_i32 {sOUT}, {sHS}, 20480"); e(f"s_add_u32 {sOUT2}, {sOUT}, {YN_OFF}"); e(f"s_add_u32 {sOUT}, {sOUT}, {XN_OFF}")
    e("s_waitcnt vmcnt(5)")
    rt(a,0)
    e(f"s_mov_b32 {sIT}, 0")
    a.label("W_ln")
    layernorm(a)
    e(f"s_mov_b32 {sOUT}, {sOUT2}"); e(f"s_add_u32 {sIT}, {sIT}, 1"); e(f"s_cmp_lt_u32 {sIT}, 2"); e("s_cbranch_scc1 W_ln")
    zero_wait(a,"W_zero")
    e(f"s_lshr_b32 {sA}, {sHS}, 1"); e(f"s_lshl_b32 {sA}, {sA}, 7"); e(f"s_add_u32 {sA}, {sA}, {LNCNT}")
    add_one(a,sA)
    a.label("W_noln"); a.vm=[]; a.lg=[]

def project(a):
    e=a.e; t=TMP
    e(f"s_lshl_b32 {sTILE}, {sWI}, 1"); e(f"s_add_u32 {sA}, {sWI}, 48"); e(f"s_min_u32 {sTILE}, {sTILE}, {sA}"); e(f"s_lshr_b32 {sKIND}, {sTILE}, 5")
    e(f"s_cmp_eq_u32 {sKIND}, 0"); e("s_cselect_b32 s8, s42, s44"); e("s_cselect_b32 s9, s43, s45")
    e(f"s_cmp_eq_u32 {sKIND}, 2"); e("s_cselect_b32 s8, s40, s8"); e("s_cselect_b32 s9, s41, s9")
    e(f"s_cmp_eq_u32 {sKIND}, 3"); e("s_cselect_b32 s8, s46, s8"); e("s_cselect_b32 s9, s47, s9")
    e(f"s_mov_b32 {sA}, 8192"); e(f"s_cselect_b32 {sSTR}, {F*2}, {sA}"); e(f"s_mul_i32 s10, {sSTR}, {D}")
    e(f"v_lshrrev_b32 v{t+2}, 4, {vLN}"); e(f"v_lshlrev_b32 v{t+3}, 1, v{t+2}"); e(f"v_and_b32 v{t+4}, 15, {vLN}"); e(f"v_xor_b32 v{t+3}, v{t+3}, v{t+4}")
    e(f"s_lshl_b32 {sA}, {sW}, 4"); e(f"v_add_u32 v{t+2}, {sA}, v{t+2}"); e(f"v_mul_lo_u32 v{t+2}, v{t+2}, {sSTR}")
    e(f"v_lshl_add_u32 {vDA}, v{t+3}, 4, v{t+2}"); e(f"v_xor_b32 v{t+3}, 8, v{t+3}"); e(f"v_lshl_add_u32 {vDB}, v{t+3}, 4, v{t+2}")
    e(f"s_lshl_b32 {sSTR}, {sSTR}, 2"); e(f"s_mul_i32 {sSRC}, {sSTR}, 13"); e(f"s_lshl_b32 {sB}, {sW}, 12")
    e(f"v_bfe_u32 v{t}, {vLN}, 2, 2"); e(f"v_bfe_u32 v{t+1}, {vLN}, 4, 1"); e(f"v_lshl_add_u32 v{t+1}, v{t+1}, 2, v{t}")
    e(f"v_lshrrev_b32 v{t+2}, 4, {vLN}"); e(f"v_lshl_add_u32 v{t+2}, v{t+2}, 3, v{t}"); e(f"v_lshlrev_b32 v{t+2}, 8, v{t+2}")
    e(f"v_and_b32 v{t+3}, 3, {vLN}"); e(f"v_lshl_add_u32 v{t+2}, v{t+3}, 3, v{t+2}")
    e(f"s_lshl_b32 {sA}, {sW}, 1")
    e(f"v_xor_b32 v{t+3}, {sA}, v{t+1}"); e(f"v_lshl_add_u32 v{t+8}, v{t+3}, 5, v{t+2}")
    e(f"v_xor_b32 v{t+3}, 1, v{t+3}"); e(f"v_lshl_add_u32 v{t+9}, v{t+3}, 5, v{t+2}")
    def stage(n):
        if n%10==0:
            e(f"s_and_b32 {sOFF}, {sTILE}, 31"); e(f"s_add_u32 {sOFF}, {sOFF}, {n//10}"); e(f"s_lshl_b32 {sOFF}, {sOFF}, 8")
        for i in range(4):
            e(f"s_add_u32 m0, {sB}, {(n%10)*16384+i*1024}")
            e(f"buffer_load_dwordx4 {vDA if i<2 else vDB}, {S_W}, {sOFF} offen lds",f"w{n}")
            e(f"s_add_u32 {sOFF}, {sOFF}, {sSTR if i<3 else sSRC}")
    for n in range(10): stage(n)
    for n in range(20):
        j,st=n//10,n%10
        a.wait(vm=f"w{n}"); e("s_barrier")
        if n==1: e(f"s_cmp_eq_u32 {sKIND}, 3"); e("s_cselect_b32 s10, 0, s10")
        if 1<=n<=10: stage(n+9)
        if st in(4,8): e(f"v_add_u32 v{t+8}, 0x10000, v{t+8}"); e(f"v_add_u32 v{t+9}, 0x10000, v{t+9}")
        if n==10: e(f"v_subrev_u32 v{t+8}, 0x20000, v{t+8}"); e(f"v_subrev_u32 v{t+9}, 0x20000, v{t+9}")
        for ks in range(2):
            for tl in range(2):
                for x in range(2): e(f"ds_read_b64_tr_b16 {wreg2(j,2*st+ks,tl,x)}, v{t+8+tl} offset:{(st%4)*16384+ks*8192+x*1024}")
        e("s_waitcnt lgkmcnt(0)"); a.lg=[]
    e(f"v_and_b32 v{t}, 1, {vLN}"); e(f"v_lshlrev_b32 {vVO}, 10, v{t}"); e(f"v_lshrrev_b32 v{t}, 4, {vLN}"); e(f"v_lshl_add_u32 {vVO}, v{t}, 8, {vVO}")
    e(f"v_bfe_u32 v{t}, {vLN}, 1, 3"); e(f"v_lshl_add_u32 {vVO}, v{t}, 4, {vVO}")
    e("s_mov_b32 s8, s48"); e("s_mov_b32 s9, s49"); e(f"s_cmp_eq_u32 {sKIND}, 3"); e(f"s_cselect_b32 s10, {F*2}, 0")
    e(f"v_lshrrev_b32 v{t}, 4, {vLN}"); e(f"v_lshlrev_b32 v{t}, 3, v{t}"); e(f"s_and_b32 {sA}, {sTILE}, 31"); e(f"s_lshl_b32 {sA}, {sA}, 8"); e(f"s_lshl_b32 {sB}, {sW}, 6"); e(f"s_add_u32 {sA}, {sA}, {sB}")
    for j in range(2):
        for tl in range(2): e(f"buffer_load_dwordx2 {vr(88+4*j+2*tl,2)}, v{t}, {S_W}, {sA} offen offset:{256*j+32*tl}")
    e(f"v_lshlrev_b32 v{t+6}, 3, {vL16}")
    zero_wait(a,"W_zero2")
    spin_wait(a,"W_lnw",lambda:e(f"buffer_load_dword v{t+7}, v{t+6}, {S_WS}, 0 offen sc1"),lambda:e(f"v_cmp_gt_u32 vcc, 2, v{t+7}"),sleep=4)
    for i in range(8):
        e(f"v_lshlrev_b32 v{BI+2*i}, 16, v{88+i}"); e(f"v_and_b32 v{BI+2*i+1}, {sMIX}, v{88+i}")
    k0=math.sqrt(2/math.pi); l2e=math.log2(math.e)
    e(f"s_mov_b32 {sG0}, {f32(-2*k0*0.044715*l2e)}"); e(f"v_mov_b32 v{GT}, {f32(-2*k0*l2e)}")
    e("s_barrier")
    rt(a,1)
    e(f"s_cmp_eq_u32 {sKIND}, 3"); e(f"s_mov_b32 {sA}, {XN_OFF}"); e(f"s_cselect_b32 {sA}, {YN_OFF}, {sA}")
    e(f"s_add_u32 s20, s4, {sA}"); e("s_addc_u32 s21, s5, 0"); e(f"s_mov_b32 s22, {64*40960}")
    e(f"s_mul_i32 {sFILL}, {sW}, 10240"); e(f"s_mov_b32 {sSRC}, {sFILL}")
    e(f"s_mov_b32 {sSLOT}, 0"); e(f"v_mov_b32 {vRD}, {vL16}"); e(f"s_mov_b32 {sIT}, 0")
    e(f"s_and_b32 {sA}, {sTILE}, 31"); e(f"s_cmp_eq_u32 {sKIND}, 3"); e("s_cbranch_scc1 W_setH")
    e(f"s_lshl_b32 {sOUT}, {sA}, 13")
    e(f"s_lshl_b32 {sA}, {sKIND}, 24"); e(f"s_add_u32 {sOUT}, {sOUT}, {sA}"); e(f"s_add_u32 {sOUT}, {sOUT}, {XK_OFF}")
    e(f"s_cmp_eq_u32 {sKIND}, 1"); e(f"s_cselect_b32 {sA}, 11, 10"); e(f"s_lshl_b32 {sA}, {sW}, {sA}"); e(f"s_add_u32 {sOUT}, {sOUT}, {sA}")
    e(f"s_add_u32 {sOUT2}, {sOUT}, 4096"); e(f"s_add_u32 {sOUT3}, {sOUT}, 8192"); e(f"s_add_u32 {sOUT4}, {sOUT}, 12288"); e(f"s_mov_b32 {sOSTR}, {32*8192}"); e("s_branch W_setD")
    a.label("W_setH")
    e(f"s_lshl_b32 {sA}, {sA}, 2"); e(f"s_add_u32 {sA}, {sA}, {sW}")
    e(f"s_lshl_b32 {sOUT}, {sA}, 10"); e(f"s_add_u32 {sOUT}, {sOUT}, {HH_OFF}"); e(f"s_cmp_lt_u32 {sA}, 54"); e(f"s_cselect_b32 {sOUT}, {sOUT}, 0x7f000000")
    e(f"s_add_u32 {sOUT2}, {sOUT}, {54*1024}"); e(f"s_mov_b32 {sOSTR}, {2*54*1024}")
    a.label("W_setD")
    e(f"s_cmp_lt_u32 {sKIND}, 2"); e(f"s_mov_b32 {sA}, {QHCNT-2*128}"); e(f"s_cselect_b32 {sSIG}, {KVCNT-2*128}, {sA}")
    for i in range(3):
        for g in seg_dma(a): emit(a,g)
    e(f"s_cmp_eq_u32 {sKIND}, 1"); e("s_cbranch_scc1 WV_top"); e(f"s_cmp_eq_u32 {sKIND}, 3"); e("s_cbranch_scc1 WH_top")
    seg_loop(a,"K"); seg_loop(a,"V"); seg_loop(a,"H")
    a.label("W_tail")
    e("s_waitcnt vmcnt(0)"); e("s_barrier")
    e(f"s_cmp_eq_u32 {sW}, 0"); e("s_cbranch_scc0 W_tail2")
    for i in range(2):
        add_one(a,sSIG); e(f"s_add_u32 {sSIG}, {sSIG}, 128")
    a.label("W_tail2")
    rt(a,3)
    a.vm=[]; a.lg=[]
    finish(a)

def load_pairs(a,groups,LB,nreg,lock=True):
    e=a.e; sT0="s34"
    def issue(i):
        setup,loads,_,_=groups[i]; lb=LB[i%len(LB)]
        for x in setup: e(x)
        for j,(vo,off) in enumerate(loads):
            e(f"s_mov_b32 {sT0}, {off}"); e(f"buffer_load_dword v{lb+j}, {vo}, s[8:11], {sT0} offen",f"w{i}")
    def process(i):
        _,loads,dlo,dhi=groups[i]; lb=LB[i%len(LB)]
        a.wait(vm=f"w{i}")
        if lock: e("s_barrier")
        for dst,sel in ((dlo,"s38"),(dhi,"s39")):
            for R,(k,r) in enumerate(dst):
                if k=="v": e(f"v_perm_b32 v{r}, v{lb+2*R+1}, v{lb+2*R}, {sel}")
                else:
                    e(f"v_perm_b32 v{4+(R&3)}, v{lb+2*R+1}, v{lb+2*R}, {sel}"); e(f"v_accvgpr_write_b32 a{r}, v{4+(R&3)}")
    e("s_mov_b32 s38, 0x05040100"); e("s_mov_b32 s39, 0x07060302")
    n=len(LB)-1
    for i in range(n): issue(i)
    for i in range(len(groups)):
        if i+n<len(groups): issue(i+n)
        process(i)

def stageA(a):
    e=a.e
    sH="s24"; sS="s25"; sT0="s34"; sT1="s35"; sQ="s26"; sK="s27"; sV="s28"; sM="s29"; sO="s30"; sOC="s31"; sQ2="s36"; sK2="s37"
    sCC="s[96:97]"; sC="s96"
    e(f"s_and_b32 {sH}, s33, 31"); e(f"s_lshr_b32 {sS}, s33, 5"); e(f"s_sub_u32 {sS}, {sS}, 2")
    e(f"v_mov_b32 v15, {vLN}")
    e("v_lshrrev_b32 v4, 5, v15"); e("v_lshlrev_b32 v4, 4, v4"); e("v_bfe_u32 v5, v15, 4, 1"); e("v_lshl_add_u32 v4, v5, 2, v4")
    e("v_and_b32 v5, 15, v15"); e("v_lshlrev_b32 v5, 2, v5")
    e(f"s_lshl_b32 {sT0}, {sH}, 8"); e(f"s_lshl_b32 {sT1}, {sW}, 6"); e(f"s_add_u32 {sT0}, {sT0}, {sT1}")
    e("v_lshl_add_u32 v1, v4, 13, v5"); e(f"v_add_u32 v1, {sT0}, v1")
    e(f"s_mov_b32 s10, {D*8192}")
    place=lambda i: ("a",8*i) if i<32 else ("v",192+8*(i-32))
    T={}
    groups=[]
    for m,(lo,hi) in (("k",("s42","s43")),("v",("s44","s45"))):
        for k in range(10):
            loads=[("v1",(64*k+32*(R>>2)+8*(R&1)+2*((R>>1)&1)+x)*8192) for R in range(8) for x in range(2)]
            d=[]
            for tau in range(2):
                T[(m,k,tau)]=p=place(len(T)); d.append([(p[0],p[1]+R) for R in range(8)])
            groups.append(([f"s_mov_b32 s8, {lo}",f"s_mov_b32 s9, {hi}"] if k==0 else [],loads,d[0],d[1]))
    load_pairs(a,groups,[16,32,48],8)
    vL16="v0"; vA="v1"; vIDX="v2"; vXW="v6"; vXR="v7"; vML="v8"; vML3="v9"; vDG="v3"
    e("v_lshlrev_b32 v0, 4, v15")
    e("v_lshrrev_b32 v12, 5, v15"); e("v_lshlrev_b32 v1, 9, v12"); e("v_bfe_u32 v12, v15, 1, 3"); e("v_lshl_add_u32 v1, v12, 6, v1")
    e("v_bfe_u32 v12, v15, 4, 1"); e("v_lshl_add_u32 v1, v12, 5, v1"); e("v_and_b32 v12, 1, v15"); e("v_lshl_add_u32 v1, v12, 4, v1")
    e("v_mov_b32 v13, 0xaaaa"); e("v_mul_u32_u24 v2, v12, v13"); e("v_add_u32 v2, 0x4444, v2")
    LX=10240
    e("v_lshrrev_b32 v12, 5, v15"); e("v_lshlrev_b32 v12, 2, v12"); e("v_and_b32 v13, 15, v15"); e("v_xor_b32 v12, v12, v13")
    e("v_lshlrev_b32 v6, 3, v12"); e("v_lshrrev_b32 v12, 4, v15"); e("v_lshl_add_u32 v6, v12, 7, v6")
    e(f"s_lshl_b32 {sT0}, {sW}, 10"); e(f"s_add_u32 {sT0}, {sT0}, {LX}"); e(f"v_add_u32 v6, {sT0}, v6")
    e("v_bfe_u32 v12, v15, 3, 1"); e("v_lshlrev_b32 v7, 3, v12"); e("v_lshrrev_b32 v12, 4, v15"); e("v_lshl_add_u32 v7, v12, 1, v7")
    e("v_bfe_u32 v12, v15, 2, 1"); e("v_add_u32 v7, v7, v12"); e("v_bfe_u32 v12, v15, 1, 1"); e("v_lshlrev_b32 v12, 2, v12"); e("v_xor_b32 v7, v7, v12")
    e("v_lshlrev_b32 v7, 3, v7"); e("v_and_b32 v12, 3, v15"); e("v_lshl_add_u32 v7, v12, 7, v7"); e(f"v_add_u32 v7, {LX}, v7")
    e(f"s_mul_i32 {sT0}, {sW}, 2560"); e(f"v_add_u32 v8, {sT0}, v0")
    e("v_and_b32 v9, 0x1ff, v0"); e(f"v_add_u32 v9, {sT0}, v9")
    e("v_lshrrev_b32 v12, 4, v15"); e("v_lshlrev_b32 v12, 2, v12"); e("v_and_b32 v13, 15, v15"); e("v_sub_u32 v3, v13, v12")
    c=(128**-0.5)*math.log2(math.e)
    e(f"s_mov_b32 s96, {f32(c)}"); e(f"s_mov_b32 s97, {f32(c)}")
    e("s_mov_b32 s98, 0x3f803f80"); e("s_mov_b32 s99, 0x3f803f80"); e("s_mov_b32 s100, 0x3f003f00"); e("s_mov_b32 s101, 0x3f003f00")
    Q=16; K=48; VX=80; SX={(0,0):88,(1,0):92,(1,1):96}; SM=[100,104]; AB=108; KA=148; VA=156; X=164; P=[16,24]; O=32; ONE=48; SUM=52; PK=56
    rt(a,4)
    a.label("A_seg")
    e(f"s_lshl_b32 {sT0}, {sS}, 7"); e(f"s_add_u32 {sT0}, {sT0}, {KVCNT}")
    e("v_lshrrev_b32 v12, 9, v0"); e("v_lshlrev_b32 v10, 13, v12"); e("v_mul_u32_u24 v12, 2, v12"); e("v_sub_u32 v12, 32, v12")
    spin_wait(a,"A_qh",lambda:e(f"buffer_load_dword v11, v10, {S_WS}, {sT0} offen sc1"),lambda:e("v_cmp_gt_u32 vcc, v12, v11"),sleep=8)
    e(f"s_lshl_b32 {sT0}, {sS}, 5"); e(f"s_add_u32 {sT0}, {sT0}, {sH}"); e(f"s_lshl_b32 {sT0}, {sT0}, 13")
    e(f"s_add_u32 {sQ}, {sT0}, {XQ_OFF}"); e(f"s_add_u32 {sQ2}, {sQ}, 4096"); e(f"s_add_u32 {sK}, {sT0}, {XK_OFF}"); e(f"s_add_u32 {sK2}, {sK}, 4096")
    e(f"s_lshl_b32 {sT1}, {sW}, 11"); e(f"s_add_u32 {sV}, {sT0}, {sT1}"); e(f"s_add_u32 {sV}, {sV}, {XV_OFF}")
    for t in range(2):
        for ke in range(4):
            e(f"buffer_load_dwordx4 {vr(Q+16*t+4*ke,4)}, {vL16}, {S_WS}, {sQ2 if t else sQ} offen offset:{1024*ke} sc1",f"q{t}")
        for ke in range(4):
            e(f"buffer_load_dwordx4 {vr(K+16*t+4*ke,4)}, {vL16}, {S_WS}, {sK2 if t else sK} offen offset:{1024*ke} sc1",f"k{t}")
    for t in range(2): e(f"buffer_load_dwordx4 {vr(VX+4*t,4)}, {vL16}, {S_WS}, {sV} offen offset:{1024*t} sc1","vx")
    e(f"s_mul_i32 {sM}, {sS}, 10240"); e(f"s_add_u32 {sM}, {sM}, {MEMP_OFF}")
    e(f"s_lshl_b32 {sO}, {sS}, 6"); e(f"s_add_u32 {sO}, {sO}, {sH}"); e(f"s_lshl_b32 {sO}, {sO}, 2"); e(f"s_add_u32 {sO}, {sO}, {sW}"); e(f"s_lshl_b32 {sO}, {sO}, 10"); e(f"s_add_u32 {sO}, {sO}, {O_OFF}")
    e(f"s_lshl_b32 {sOC}, {sS}, 7"); e(f"s_add_u32 {sOC}, {sOC}, {OCNT}")
    def mf(d,A,B,first,op="v_mfma_f32_16x16x32_bf16",n=4):
        e(f"{op} {vr(d,4)}, {vr(A,n)}, {vr(B,n)}, {'0' if first else vr(d,4)}")
    for (qt,kt),d in SX.items():
        a.wait(vm=[f"q{qt}",f"k{kt}"])
        for ke in range(4): mf(d,K+16*kt+4*ke,Q+16*qt+4*ke,ke==0)
    for r in range(KA,KA+16,2): e(f"v_mov_b64 {vr(r,2)}, 0")
    e("v_mov_b32 v11, 0xff800000")
    for i in range(4):
        e(f"v_cmp_gt_i32 vcc, {i}, {vDG}")
        for d in (SX[(0,0)],SX[(1,1)]): e(f"v_cndmask_b32 v{d+i}, v{d+i}, v11, vcc")
    def ml():
        e(f"buffer_load_dwordx4 {vr(AB,4)}, {vML}, {S_WS}, {sM} offen sc1"); e(f"buffer_load_dwordx4 {vr(AB+4,4)}, {vML}, {S_WS}, {sM} offen offset:1024 sc1")
        e(f"buffer_load_dwordx4 {vr(AB+8,4)}, {vML3}, {S_WS}, {sM} offen offset:2048 sc1")
    def mc():
        e(f"v_max3_u32 v10, v{AB}, v{AB+2}, v{AB+4}"); e(f"v_max3_u32 v10, v10, v{AB+6}, v{AB+8}"); e(f"v_max_u32 v10, v10, v{AB+10}")
        e("v_cmp_eq_u32 vcc, -1, v10")
    spin_wait(a,"A_mem",ml,mc,sleep=OPT["asleep"])
    e(f"ds_write_b128 {vML}, {vr(AB,4)}"); e(f"ds_write_b128 {vML}, {vr(AB+4,4)} offset:1024"); e(f"ds_write_b128 {vML3}, {vr(AB+8,4)} offset:2048")
    a.wait(lg="all"); e("s_barrier")
    for k in range(10): e(f"ds_read_b128 {vr(AB+4*k,4)}, {vA} offset:{1024*k}",f"A{k}")
    def sm(acc_,k,key):
        kk,b=T[key]; e(f"v_smfmac_f32_16x16x64_bf16 {vr(acc_,4)}, {vr(AB+4*k,4)}, {vr(b,8,kk)}, {vIDX}")
    for k in range(10):
        a.wait(lg=f"A{k}")
        for tau in range(2): sm(KA+4*tau,k,("k",k,tau))
    sm(VA,0,("v",0,0)); sm(VA+4,0,("v",0,1))
    for tau in range(2):
        r=KA+4*tau
        e(f"v_add_f32 v{r}, v{r}, v{r+1}"); e(f"v_add_f32 v{r+2}, v{r+2}, v{r+3}"); e(f"v_cvt_pk_bf16_f32 v{r+1}, v{r}, v{r+2}")
        e(f"v_mov_b32 v{r}, 0")
        e(f"ds_write_b64 {vXW}, {vr(r,2)} offset:{512*tau}","xw")
    for k in range(1,4):
        for tau in range(2): sm(VA+4*tau,k,("v",k,tau))
    a.wait(lg="xw"); e("s_barrier")
    for ke in range(4):
        for x in range(2): e(f"ds_read_b64_tr_b16 {vr(X+4*ke+2*x,2)}, {vXR} offset:{1024*ke+512*x}",f"X{ke}")
    for k in range(4,10):
        for tau in range(2): sm(VA+4*tau,k,("v",k,tau))
    for ke in range(4):
        a.wait(lg=f"X{ke}")
        for qt in range(2): mf(SM[qt],X+4*ke,Q+16*qt+4*ke,ke==0)
    for i in range(4): e(f"v_cvt_pk_bf16_f32 v{VA+i}, v{VA+2*i}, v{VA+2*i+1}")
    e(f"v_mov_b64 {vr(ONE,2)}, s[98:99]"); e(f"v_mov_b64 {vr(ONE+2,2)}, s[98:99]"); e(f"v_mov_b64 {vr(KA,2)}, s[100:101]")
    a.wait(vm="vx")
    for qt in range(2):
        ev=[r+i for r in ([SX[(0,0)]] if qt==0 else [SX[(1,0)],SX[(1,1)]]) for i in range(4)]+[SM[qt]+2,SM[qt]+3]
        e(f"v_max3_f32 v10, v{ev[0]}, v{ev[1]}, v{ev[2]}")
        for i in range(3,len(ev)-1,2): e(f"v_max3_f32 v10, v10, v{ev[i]}, v{ev[i+1]}")
        e(f"v_max_f32 v11, v10, v{ev[-1]}"); e(f"v_max_f32 v10, v10, v{ev[-1]}")
        e("v_permlane32_swap_b32 v10, v11"); e("v_max_f32 v12, v10, v11"); e("v_max_f32 v10, v10, v11")
        e("v_permlane16_swap_b32 v10, v12"); e("v_max_f32 v10, v10, v12"); e(f"v_mul_f32 v10, {sC}, v10")
        for r in ev[::2]: e(f"v_pk_fma_f32 {vr(r,2)}, {vr(r,2)}, {sCC}, v[10:11] op_sel_hi:[1,1,0] neg_lo:[0,0,1] neg_hi:[0,0,1]")
        for r in ev: e(f"v_exp_f32 v{r}, v{r}")
        p=P[qt]
        for i in range((len(ev)-2)//2): e(f"v_cvt_pk_bf16_f32 v{p+i}, v{ev[2*i]}, v{ev[2*i+1]}")
        if qt==0: e(f"v_mov_b64 {vr(p+2,2)}, 0")
        e(f"v_cvt_pk_bf16_f32 v{p+4}, v{ev[-2]}, v{ev[-2]}"); e(f"v_cvt_pk_bf16_f32 v{p+5}, v{ev[-1]}, v{ev[-1]}")
        o=O+8*qt
        mf(SUM,ONE,p,1); mf(o,VX,p,1); mf(o+4,VX+4,p,1)
        mf(SUM,KA,p+4,0,"v_mfma_f32_16x16x16_bf16",2); mf(o,VA,p+4,0,"v_mfma_f32_16x16x16_bf16",2); mf(o+4,VA+2,p+4,0,"v_mfma_f32_16x16x16_bf16",2)
        e(f"v_rcp_f32 v10, v{SUM}")
        pk=PK+4*qt
        for i in range(0,4,2):
            for t in range(2): e(f"v_pk_mul_f32 {vr(o+4*t+i,2)}, {vr(o+4*t+i,2)}, v[10:11] op_sel_hi:[1,0]")
            for k in range(2): e(f"v_cvt_pk_bf16_f32 v{pk+i+k}, v{o+i+k}, v{o+4+i+k}")
        if qt: e(f"s_add_u32 {sO}, {sO}, {32*4096}")
        e(f"buffer_store_dwordx4 {vr(pk,4)}, {vL16}, {S_WS}, {sO} offen sc1","o")
    e("s_waitcnt vmcnt(0)"); a.vm=[]; e("s_barrier")
    e(f"s_cmp_eq_u32 {sW}, 0"); e("s_cbranch_scc0 A_nosig")
    e("s_mov_b64 exec, 1"); e("v_mov_b32 v10, 0"); e("v_mov_b32 v11, 1")
    e(f"buffer_atomic_add v11, v10, {S_WS}, {sOC} offen"); e("s_mov_b64 exec, -1"); e("s_nop 3")
    a.label("A_nosig")
    e(f"s_add_u32 {sS}, {sS}, 2"); e(f"s_cmp_lt_u32 {sS}, 64"); e("s_cbranch_scc1 A_seg")
    finish(a)

def finish(a):
    e=a.e
    e("s_waitcnt vmcnt(0)")
    if OPT["tim"]:
        rt(a,5); e("s_waitcnt lgkmcnt(0)")
        for i in range(6): e(f"v_mov_b32 v{12+i}, s{70+2*i}")
        e("v_mov_b32 v18, s90"); e("v_mov_b32 v19, s32")
        e(f"s_lshl_b32 s34, s33, 2"); e(f"s_add_u32 s34, s34, {sW}"); e("s_lshl_b32 s34, s34, 5"); e(f"s_add_u32 s34, s34, {DBG_OFF+131072}")
        e("v_mov_b32 v10, 0"); e("s_mov_b64 exec, 1")
        e(f"buffer_store_dwordx4 v[12:15], v10, {S_WS}, s34 offen"); e(f"buffer_store_dwordx4 v[16:19], v10, {S_WS}, s34 offen offset:16")
        if C.OPT["dbgout"]:
            e("v_mov_b32 v10, 40"); e(f"global_atomic_umax v10, v17, {sDBG}")
        e("s_waitcnt vmcnt(0)")
    e("s_endpgm")

def stageB(a):
    e=a.e
    sN="s24"; sS="s25"; sHF="s26"; sT0="s34"; sT1="s35"; sHS="s27"; sHH="s28"; sOO="s29"; sXO="s30"; sPAR="s31"; sMIX="s37"
    S_O="s[16:19]"; S_XX="s[20:23]"
    e(f"s_load_dwordx2 s[40:41], s[0:1], {A_WO}"); e(f"s_load_dwordx2 s[42:43], s[0:1], {B_W2}"); e(f"s_load_dwordx2 s[44:45], s[0:1], {B_B2}")
    e(f"s_load_dwordx2 s[16:17], s[0:1], {D_OUT}"); e(f"s_load_dwordx2 s[20:21], s[0:1], {A_X}")
    e(f"s_sub_u32 {sT0}, s33, 128")
    e(f"s_mul_i32 {sS}, {sT0}, 1639"); e(f"s_lshr_b32 {sS}, {sS}, 16")
    e(f"s_mul_i32 {sT1}, {sS}, 40"); e(f"s_sub_u32 {sT0}, {sT0}, {sT1}")
    e(f"s_cmp_ge_u32 {sT0}, 20"); e(f"s_cselect_b32 {sHF}, 1, 0"); e(f"s_mul_i32 {sT1}, {sHF}, 20"); e(f"s_sub_u32 {sN}, {sT0}, {sT1}")
    e(f"v_mov_b32 v15, {vLN}")
    e("v_lshrrev_b32 v4, 4, v15"); e("v_and_b32 v5, 15, v15"); e("v_lshlrev_b32 v5, 2, v5"); e(f"s_lshl_b32 {sT0}, {sN}, 6"); e(f"v_add_u32 v5, {sT0}, v5")
    e("v_mul_u32_u24 v1, 10240, v4"); e("v_add_u32 v1, v1, v5"); e(f"s_mul_i32 {sT0}, {sW}, {1024*1280}"); e(f"v_add_u32 v1, {sT0}, v1")
    e("v_mul_u32_u24 v2, 5120, v4"); e("v_add_u32 v2, v2, v5"); e(f"s_mul_i32 {sT0}, {sW}, {14*32*1280}"); e(f"v_add_u32 v2, {sT0}, v2")
    e(f"s_mov_b32 s18, {S*D*2}"); e("s_mov_b32 s19, 0x20000"); e(f"s_mov_b32 s22, {S*D*2}"); e("s_mov_b32 s23, 0x20000")
    e("s_waitcnt lgkmcnt(0)")
    groups=[]
    for kk in range(16):
        loads=[("v1",(64*kk+32*(R>>2)+2*(R&3)+x)*1280) for R in range(8) for x in range(2)]
        d=[[("a",16*kk+8*(R>>2)+4*tau+(R&3)) for R in range(8)] for tau in range(2)]
        groups.append((["s_mov_b32 s8, s40","s_mov_b32 s9, s41",f"s_mov_b32 s10, {4096*1280}"] if kk==0 else [],loads,d[0],d[1]))
    W2=144
    for kk in range(7):
        loads=[("v2",(64*kk+32*(R>>2)+16*((R>>1)&1)+2*(R&1)+x)*1280) for R in range(8) for x in range(2)]
        d=[[("v",W2+16*kk+8*(R>>2)+4*tau+(R&3)) for R in range(8)] for tau in range(2)]
        groups.append((["s_mov_b32 s8, s42","s_mov_b32 s9, s43",f"s_mov_b32 s10, {F*1280}"] if kk==0 else [],loads,d[0],d[1]))
    load_pairs(a,groups,[16,32,48],8,lock=False)
    vL16="v0"; vXO="v1"; vRW="v2"; B2=4
    e("v_lshlrev_b32 v0, 4, v15")
    e("v_and_b32 v12, 15, v15"); e("v_mul_u32_u24 v1, 1280, v12"); e("v_lshrrev_b32 v12, 4, v15"); e("v_lshlrev_b32 v12, 4, v12")
    e(f"s_lshl_b32 {sT0}, {sN}, 6"); e(f"v_add_u32 v12, {sT0}, v12"); e("v_add_u32 v1, v1, v12")
    e(f"s_lshl_b32 {sT0}, {sW}, 11"); e(f"v_add_u32 v2, {sT0}, v0")
    e("s_mov_b32 s8, s44"); e("s_mov_b32 s9, s45"); e(f"s_mov_b32 s10, {D*2}")
    e("buffer_load_dwordx4 v[16:19], v12, s[8:11], 0 offen"); e(f"s_mov_b32 {sMIX}, 0xffff0000")
    e("s_waitcnt vmcnt(0)"); a.vm=[]
    for i in range(4): e(f"v_lshlrev_b32 v{B2+i}, 16, v{16+i}"); e(f"v_and_b32 v{B2+4+i}, {sMIX}, v{16+i}")
    e(f"s_mov_b32 {sPAR}, 0")
    AC=[12,16]; XR=20; RING=32; NR=24; RED=128
    rt(a,4)
    a.label("B_unit")
    e(f"s_lshl_b32 {sT0}, {sS}, 7"); e(f"s_add_u32 {sT0}, {sT0}, {QHCNT}"); e("v_mov_b32 v24, 0")
    spin_wait(a,"B_qh",lambda:e(f"buffer_load_dword v25, v24, {S_WS}, {sT0} offen sc1"),lambda:e("v_cmp_gt_u32 vcc, 30, v25"),sleep=8)
    e(f"s_lshl_b32 {sHS}, {sS}, 1"); e(f"s_add_u32 {sHS}, {sHS}, {sHF}")
    e(f"s_mul_i32 {sHH}, {sHS}, {54*1024}"); e(f"s_mul_i32 {sT0}, {sW}, {14*1024}"); e(f"s_add_u32 {sHH}, {sHH}, {sT0}"); e(f"s_add_u32 {sHH}, {sHH}, {HH_OFF}")
    e(f"s_lshl_b32 {sOO}, {sHS}, 17"); e(f"s_lshl_b32 {sT0}, {sW}, 15"); e(f"s_add_u32 {sOO}, {sOO}, {sT0}"); e(f"s_add_u32 {sOO}, {sOO}, {O_OFF}")
    e(f"s_mul_i32 {sXO}, {sHS}, {16*1280}")
    def ld(i,sreg,tag):
        if i and i%4==0: e(f"s_add_u32 {sreg}, {sreg}, 4096")
        e(f"buffer_load_dwordx4 {vr(RING+4*(i%NR),4)}, {vL16}, {S_WS}, {sreg} offen offset:{1024*(i%4)} sc1",tag)
    def mm(i,base,kind,first):
        for tau in range(2):
            e(f"v_mfma_f32_16x16x32_bf16 {vr(AC[tau],4)}, {vr(base+8*i+4*tau,4,kind)}, {vr(RING+4*(i%NR),4)}, {'0' if first else vr(AC[tau],4)}")
    for i in range(14):
        if i==12:
            e(f"s_cmp_eq_u32 {sW}, 3"); e(f"s_cselect_b32 {sHH}, 0x7ff00000, {sHH}")
        ld(i,sHH,f"h{i}")
    e(f"buffer_load_dwordx4 {vr(XR,4)}, {vXO}, {S_XX}, {sXO} offen","xr")
    for i in range(14):
        a.wait(vm=f"h{i}"); mm(i,W2,"v",i==0)
    e(f"s_lshl_b32 {sT0}, {sS}, 7"); e(f"s_add_u32 {sT0}, {sT0}, {OCNT}")
    spin_wait(a,"B_o",lambda:e(f"buffer_load_dword v25, v24, {S_WS}, {sT0} offen sc1"),lambda:e("v_cmp_gt_u32 vcc, 32, v25"),sleep=OPT["bsleep"])
    for i in range(NR): ld(i,sOO,f"o{i}")
    for i in range(32):
        a.wait(vm=f"o{i}"); mm(i,0,"a",False)
        if i+NR<32: ld(i+NR,sOO,f"o{i+NR}")
    e(f"v_add_u32 v26, {sPAR}, {vRW}"); e(f"v_add_u32 v27, {sPAR}, {vL16}")
    e(f"ds_write_b128 v26, {vr(AC[0],4)}"); e(f"ds_write_b128 v26, {vr(AC[1],4)} offset:1024")
    a.wait(lg="all"); e("s_barrier")
    e(f"s_cmp_eq_u32 {sW}, 0"); e("s_cbranch_scc0 B_next")
    for j in range(6): e(f"ds_read_b128 {vr(RING+4*j,4)}, v27 offset:{2048+1024*j}",f"r{j}")
    for i in range(4):
        e(f"v_lshlrev_b32 v{RING+24+i}, 16, v{XR+i}"); e(f"v_and_b32 v{RING+28+i}, {sMIX}, v{XR+i}")
    for i in range(8): e(f"v_add_f32 v{RING+24+i}, v{RING+24+i}, v{B2+i}")
    for i in range(8): e(f"v_add_f32 v{AC[0]+i}, v{AC[0]+i}, v{RING+24+i}")
    for j in range(3):
        a.wait(lg=f"r{2*j+1}")
        for i in range(8): e(f"v_add_f32 v{AC[0]+i}, v{AC[0]+i}, v{RING+8*j+i}")
    for i in range(4): e(f"v_cvt_pk_bf16_f32 v{XR+i}, v{AC[0]+i}, v{AC[1]+i}")
    e(f"buffer_store_dwordx4 {vr(XR,4)}, {vXO}, {S_O}, {sXO} offen sc1")
    a.label("B_next")
    e(f"s_xor_b32 {sPAR}, {sPAR}, 8192")
    e(f"s_add_u32 {sS}, {sS}, 2"); e(f"s_cmp_lt_u32 {sS}, 64"); e("s_cbranch_scc1 B_unit")
    finish(a)

def hold(a,name):
    if not OPT["hold"]: return
    e=a.e
    spin_wait(a,name,lambda:(e(f"v_mov_b32 v{TMP+4}, 4"),e(f"global_load_dword v{TMP+5}, v{TMP+4}, {sDBG} sc1")),lambda:e(f"v_cmp_gt_u32 vcc, {OPT['hold']}, v{TMP+5}"),sleep=32)

def workers(a):
    e=a.e
    common(a)
    e(f"s_cmp_lt_u32 {sWI}, 62"); e("s_cbranch_scc0 W_notp")
    project(a)
    a.label("W_notp")
    e(f"s_cmp_lt_u32 {sWI}, 64"); e("s_cbranch_scc1 L_exit")
    norm_rows(a)
    e(f"s_cmp_ge_u32 {sWI}, 208"); e("s_cbranch_scc1 L_exit")
    hold(a,"W_hold")
    zero_wait(a,"W_zero3")
    e("s_barrier")
    e(f"s_cmp_lt_u32 {sWI}, 128"); e("s_cbranch_scc0 W_stageB")
    stageA(a)
    a.label("W_stageB")
    stageB(a)
```

```python
import sys
from asmlib import *
from layout import *
import chain as C
import worker as W

NAME="parallel_sum__memory_aug_recurrent_mem_tr__mixer_channel_mlp__prompt"
KN=NAME+"_kernel"
sW="s13"; sROW="s64"; sRANK="s65"

TIM=[0]
def set_chain(mod):
    global C
    C=mod
def prologue(a):
    e=a.e
    e("s_cmp_ge_u32 s2, 256"); e("s_cbranch_scc1 L_exit")
    if TIM[0] in(1,2): e("s_memrealtime s[90:91]")
    e(f"s_load_dwordx2 {C.sDBG}, s[0:1], {D_DBG}"); e(f"s_load_dwordx2 s[4:5], s[0:1], {D_WS}")
    e(f"s_getreg_b32 {C.sXCC}, hwreg(HW_REG_XCC_ID, 0, 4)")
    e("v_lshrrev_b32 v1, 6, v0"); e(f"v_readfirstlane_b32 {sW}, v1"); e("v_and_b32 v0, 63, v0")
    e(f"s_mov_b32 s6, {WS_SIZE}"); e("s_mov_b32 s7, 0x20000")
    e(f"s_and_b32 {sROW}, {C.sXCC}, 7")
    e("s_waitcnt lgkmcnt(0)")
    e(f"s_cmp_eq_u32 {sW}, 0"); e("s_cbranch_scc0 L_gotrole")
    e("s_mov_b64 exec, 1"); e("v_mov_b32 v2, 1"); e("s_mov_b32 s42, 0")
    a.label("L_ticket")
    e(f"s_lshl_b32 s43, {sROW}, 2"); e("s_add_u32 s43, s43, 128"); e(f"s_cmp_eq_u32 {sROW}, 0"); e("s_cselect_b32 s43, 0, s43")
    e("v_mov_b32 v1, s43"); e(f"global_atomic_add v3, v1, v2, {C.sDBG} sc0"); e("s_waitcnt vmcnt(0)")
    e(f"v_readfirstlane_b32 {sRANK}, v3"); e("s_nop 3")
    e(f"s_cmp_lt_u32 {sRANK}, 32"); e("s_cbranch_scc1 L_ticketok")
    e(f"s_add_u32 {sROW}, {sROW}, 1"); e(f"s_and_b32 {sROW}, {sROW}, 7"); e("s_add_u32 s42, s42, 1")
    e("s_cmp_lt_u32 s42, 8"); e("s_cbranch_scc1 L_ticket")
    e(f"s_mov_b32 {sROW}, 8")
    a.label("L_ticketok")
    e(f"s_lshl_b32 s43, {sROW}, 5"); e(f"s_add_u32 s43, s43, {sRANK}")
    e("v_mov_b32 v3, s43"); e(f"v_mov_b32 v1, {C.L_ROLE}"); e("ds_write_b32 v1, v3"); e("s_waitcnt lgkmcnt(0)")
    e("s_mov_b64 exec, -1")
    a.label("L_gotrole")
    e("s_barrier")
    e(f"v_mov_b32 v1, {C.L_ROLE}"); e("ds_read_b32 v3, v1"); e("s_waitcnt lgkmcnt(0)")
    e("v_readfirstlane_b32 s43, v3"); e("s_nop 3")
    e(f"s_lshr_b32 {sROW}, s43, 5"); e(f"s_and_b32 {sRANK}, s43, 31")
    e("s_barrier")
    a.vm=[]; a.lg=[]
    e(f"s_cmp_ge_u32 {sROW}, 8"); e("s_cbranch_scc1 L_exit")
    e(f"s_cmp_eq_u32 {sROW}, 0"); e("s_cbranch_scc0 L_worker")

def chain_start(a, kv_need):
    e=a.e
    e(f"s_cmp_eq_u32 {sW}, 0"); e("s_cbranch_scc0 C_arrived")
    e(f"s_mov_b64 exec, {C.OPT['kvmask']}"); e("v_lshlrev_b32 v16, 3, v0"); e(f"v_add_u32 v16, {KVCNT}, v16"); e("v_mov_b32 v12, 4")
    e("s_mov_b32 s42, 0")
    a.label("C_poll")
    e(f"global_load_dwordx2 v[14:15], v12, {C.sDBG} sc1")
    e("s_add_u32 s42, s42, 1"); e("s_cmp_gt_u32 s42, 0x100000"); e("s_cbranch_scc1 C_polled")
    e("s_waitcnt vmcnt(0)")
    e("v_cmp_gt_u32 vcc, 32, v14"); e("s_cbranch_vccnz C_poll")
    a.label("C_pollkv")
    e("buffer_load_dword v17, v16, s[4:7], 0 offen sc1")
    e("s_add_u32 s42, s42, 1"); e("s_cmp_gt_u32 s42, 0x100000"); e("s_cbranch_scc1 C_polled")
    e("s_waitcnt vmcnt(0)")
    e(f"v_cmp_gt_u32 vcc, {kv_need}, v17"); e("s_cbranch_vccz C_polled"); e("s_sleep 4"); e("s_branch C_pollkv")
    a.label("C_polled")
    e("s_waitcnt vmcnt(0)"); e("s_mov_b64 exec, 1")
    e(f"v_mov_b32 v12, {C.L_ROLE}"); e("ds_write_b32 v12, v15"); e("s_waitcnt lgkmcnt(0)")
    e("s_mov_b64 exec, -1")
    a.label("C_arrived")
    e("s_barrier")
    e(f"v_mov_b32 v12, {C.L_ROLE}"); e("ds_read_b32 v13, v12"); e("s_waitcnt lgkmcnt(0)")
    e("v_readfirstlane_b32 s42, v13"); e("s_nop 3")
    e(f"s_bcnt1_i32_b32 {C.sMODE}, s42")
    a.vm=[]; a.lg=[]

def build(tim=0, force_slow=0, kv_need=0, workers=None):
    a=Asm(); e=a.e; TIM[0]=tim; W.OPT["tim"]=1 if tim==2 else 0
    prologue(a)
    if tim in(1,2): e("s_memrealtime s[92:93]")
    e(f"s_mov_b32 {C.sH}, {sRANK}")
    C.chain_init(a, sW)
    if tim in(1,2): e("s_memrealtime s[94:95]")
    chain_start(a, kv_need)
    if tim in(1,2): e("s_memrealtime s[66:67]")
    e(f"s_cmp_eq_u32 {C.sMODE}, {99 if force_slow else 1}"); e("s_cbranch_scc0 C_slow")
    for pfx,st in (("CF",""),("CS","sc1")):
        if pfx=="CS": a.label("C_slow")
        for w in (1,2,3):
            e(f"s_cmp_eq_u32 {sW}, {w}"); e(f"s_cbranch_scc1 {pfx}_w{w}")
        for w in range(4):
            a.label(f"{pfx}_w{w}")
            C.chain_wave(a,w,st,pfx,tim)
    a.label("L_worker")
    if workers: workers(a)
    a.label("L_abort")
    a.label("L_exit")
    e("s_endpgm")
    head=open("cdna_kernels/"+NAME+".s.ref").read().split("; Override launch")[0]
    out=head+"; @launch grid=(256,1,1) block=(256,1,1) lds=163840\n"
    out+=f'.amdgcn_target "amdgcn-amd-amdhsa--gfx950"\n.text\n.globl {KN}\n.p2align 8\n.type {KN},@function\n{KN}:\n'
    out+=a.text()
    out+=f""".section .rodata,"a"
.p2align 6
.amdhsa_kernel {KN}
  .amdhsa_next_free_vgpr 512
  .amdhsa_next_free_sgpr 102
  .amdhsa_accum_offset 256
  .amdhsa_group_segment_fixed_size 0
  .amdhsa_kernarg_size 120
  .amdhsa_user_sgpr_count 2
  .amdhsa_user_sgpr_kernarg_segment_ptr 1
  .amdhsa_system_sgpr_workgroup_id_x 1
  .amdhsa_float_denorm_mode_32 3
.end_amdhsa_kernel
"""
    return out, a
if __name__=="__main__":
    full=len(sys.argv)>3
    out,a=build(tim=int(sys.argv[2]) if len(sys.argv)>2 else 0, kv_need=32 if full else 0, workers=W.workers if full else None)
    open(sys.argv[1],"w").write(out); print("instructions",len(a.ins),"pad states",a.npad)
```

```python
from asmlib import *
from layout import *
import math

L_MEM=0; L_X=10240; L_KX=14336; L_SEL=22528; L_ROLE=23552; L_W=24576
S_WS="s[4:7]"; S_T="s[8:11]"
sH="s12"; sSTEP="s14"; sMR="s15"; sMW="s16"; sMZ="s17"; sTAG="s18"; sTAGM="s19"
sKX="s20"; sVX="s21"; sPC="s22"; sMP="s23"; sSW="s24"; sP0="s25"; sP1="s26"; sP2="s27"
sPR=["s28","s29","s30","s31"]; sCNT="s32"; sC="s33"; sFE="s34"; sKX2="s35"; sSW2="s36"; sSW3="s37"; sSW4="s38"
sPLO="s40"; sPHI="s41"; sT0="s42"; sT1="s43"; sEX="s[44:45]"; sUNIT="s46"; sKXN="s47"; sVXN="s48"; sMF="s49"; sPAT="s39"; sALL="s31"; sMU="s53"; sF1W="s88"; sF1R="s89"
sCC="s[96:97]"; sONE="s[98:99]"; sHALF="s[100:101]"; sDBG="s[50:51]"; sXCC="s52"; sMODE="s87"
vL16="v0"; vA="v1"; vIDX="v2"; vW="v3"; vRL="v4"; vRS="v5"; vXW="v6"; vXR="v7"; vOW="v8"; vL8="v9"
T0=10; T1=11
AB=[12,16,20,24]; QA=28; KA=32; VA=36; SL1=40; SL2=48; SL3=56

QSEQ=[]; Q_SLOT={}; O_SLOT={}; SLOT={}; TG={}; TL={}; TR={}; GPOS=[]
QS={0:{0:(SL1,"L"),1:(SL2,"L"),25:(SL3,"G"),29:(SL1,"G"),33:(SL2,"G"),31:(SL3,"L"),37:(SL3,"L"),43:(SL3,"L"),35:(SL1,"L"),41:(SL1,"L"),47:(SL1,"L"),39:(SL2,"L")},
    1:{16:(SL3,"G"),19:(SL1,"G"),22:(SL2,"G"),23:(SL3,"L"),29:(SL3,"L"),35:(SL3,"L"),41:(SL3,"L"),25:(SL1,"L"),31:(SL1,"L"),37:(SL1,"L"),27:(SL2,"L"),33:(SL2,"L")},
    2:{12:(SL3,"G"),16:(SL1,"G"),20:(SL2,"G"),18:(SL3,"L"),24:(SL3,"L"),30:(SL3,"L"),36:(SL3,"L"),22:(SL1,"L"),28:(SL1,"L"),34:(SL1,"L"),26:(SL2,"L"),32:(SL2,"L")},
    3:{14:(SL3,"G"),18:(SL1,"G"),22:(SL2,"G"),20:(SL3,"L"),28:(SL3,"L"),36:(SL3,"L"),44:(SL3,"L"),24:(SL1,"L"),32:(SL1,"L"),40:(SL1,"L"),30:(SL2,"L"),38:(SL2,"L")}}
OS={0:{0:(28,"G"),1:(SL1,"G"),9:(SL2,"G"),19:(SL1,"G"),2:(SL3,"L"),5:(SL3,"L"),8:(SL3,"L"),11:(SL3,"L"),14:(SL3,"L"),17:(SL3,"L"),12:(SL2,"L"),15:(SL2,"L")},
    1:{0:(28,"G"),1:(SL1,"G"),11:(SL2,"G"),19:(SL1,"G"),2:(SL3,"L"),6:(SL3,"L"),10:(SL3,"L"),14:(SL3,"L"),18:(SL3,"L"),5:(SL1,"L"),15:(SL2,"L"),17:(SL3,"X")},
    2:{0:(28,"G"),1:(SL1,"G"),9:(SL2,"G"),19:(SL1,"G"),2:(SL3,"L"),6:(SL3,"L"),10:(SL3,"L"),14:(SL3,"L"),18:(SL3,"L"),5:(SL1,"L"),13:(SL2,"L"),17:(SL2,"L")},
    3:{0:(28,"G"),1:(SL1,"G"),11:(SL2,"G"),19:(SL1,"G"),2:(SL3,"L"),6:(SL3,"L"),10:(SL3,"L"),13:(SL3,"L"),16:(SL3,"L"),5:(SL1,"L"),15:(SL2,"L"),18:(SL2,"L")},
    4:{0:(28,"G"),1:(SL1,"G"),18:(SL2,"G"),19:(SL1,"G"),2:(SL3,"L"),6:(SL3,"L"),10:(SL3,"L"),14:(SL3,"L"),3:(SL2,"L"),7:(SL2,"L"),5:(SL1,"L"),9:(SL1,"L")}}
def setup_tiles():
    NV=OPT['nv']
    QSEQ[:]=[(m,k) for k in range(NV) for m in "qkv"]+[(m,k) for k in range(NV,18) for m in "qk"]+[("q",18),("q",19),("k",18),("k",19)]
    for d in (Q_SLOT,O_SLOT,SLOT,TG,TL,TR): d.clear()
    Q_SLOT.update(QS[OPT["qs"]]); O_SLOT.update(OS[OPT["os"]])
    GPOS[:]=sorted(p for p,v in Q_SLOT.items() if v[1]=="G")
    SLOT.update({QSEQ[p]:v for p,v in Q_SLOT.items()}); SLOT.update({("o",n):v for n,v in O_SLOT.items()})
    for key in [(m,k) for m in "qkvo" for k in range(20)]:
        kind=SLOT.get(key,(0,"R"))[1]
        if kind=="G": TG[key]=len(TG)
        elif kind=="L": TL[key]=len(TL)
        else: i=len(TR); TR[key]=("a",8*i) if i<32 else ("v",64+8*(i-32))
    assert len(TR)==56 and len(TG)==7 and len(TL)==17
def use_map(w): pass

def sw_ref(idx):
    return [sSW,sSW2,sSW3,sSW4][idx//2], (idx&1)*2048

def gload_tile(a,key,slot,tag):
    if "G" in OPT["ab"] or ("O" in OPT["ab"] and tag in("go9","go19")): return
    s,imm=sw_ref(TG[key])
    fl="" if tag in OPT["l1"] else OPT["gfl"]
    a.e(f"buffer_load_dwordx4 {vr(slot,4)}, {vL16}, {S_WS}, {s} offen offset:{imm} {fl}",tag)
    a.e(f"buffer_load_dwordx4 {vr(slot+4,4)}, {vL16}, {S_WS}, {s} offen offset:{imm+1024} {fl}",tag)
def gload_half(a,key,slot,tag,half):
    if "G" in OPT["ab"] or ("O" in OPT["ab"] and tag in("go9","go19")): return
    s,imm=sw_ref(TG[key])
    a.e(f"buffer_load_dwordx4 {vr(slot+4*half,4)}, {vL16}, {S_WS}, {s} offen offset:{imm+1024*half}",tag)
def lload_tile(a,key,slot,tag):
    o=TL[key]*2048
    a.e(f"ds_read_b128 {vr(slot,4)}, {vW} offset:{o}",tag)
    a.e(f"ds_read_b128 {vr(slot+4,4)}, {vW} offset:{o+1024}",tag)
def sm(a,acc,A,key,slot=None):
    if key in TR: k,b=TR[key]
    else: k,b="v",slot
    a.e(f"v_smfmac_f32_16x16x64_bf16 {vr(acc,4)}, {vr(A,4)}, {vr(b,8,k)}, {vIDX}")
def zero4(a,r):
    a.e(f"v_mov_b64 {vr(r,2)}, 0"); a.e(f"v_mov_b64 {vr(r+2,2)}, 0")

def chain_init(a, sW):
    setup_tiles()
    e=a.e
    e("s_load_dwordx2 s[54:55], s[0:1], %d"%A_WQ); e("s_load_dwordx2 s[56:57], s[0:1], %d"%A_WK)
    e("s_load_dwordx2 s[58:59], s[0:1], %d"%A_WV); e("s_load_dwordx2 s[60:61], s[0:1], %d"%A_WO)
    e("s_load_dwordx2 s[62:63], s[0:1], %d"%A_MEM0)
    e(f"s_mov_b32 {sPLO}, 0x05040100"); e(f"s_mov_b32 {sPHI}, 0x07060302")
    e("v_mov_b32 v15, v0"); e("v_lshlrev_b32 v0, 4, v0"); e("s_mov_b32 s11, 0x20000")
    def lanes():
        e("v_bfe_u32 v12, v15, 1, 3"); e("v_lshlrev_b32 v1, 6, v12"); e("v_lshrrev_b32 v12, 4, v15"); e("v_lshl_add_u32 v1, v12, 4, v1")
        e("v_and_b32 v12, 1, v15")
        e("v_mov_b32 v13, 0xaaaa"); e("v_mul_u32_u24 v2, v12, v13"); e("v_add_u32 v2, 0x4444, v2")
        e(f"s_lshl_b32 {sUNIT}, {sW}, 5"); e(f"s_add_u32 {sUNIT}, {sUNIT}, {sH}"); e(f"s_lshl_b32 {sT0}, {sUNIT}, 7")
        e("v_lshrrev_b32 v12, 3, v15"); e("v_mul_u32_u24 v4, 10240, v12"); e("v_and_b32 v12, 7, v15"); e("v_lshl_add_u32 v4, v12, 4, v4")
        e(f"v_add_u32 v4, {sT0}, v4")
        e(f"s_and_b32 {sT1}, {sUNIT}, 1"); e(f"s_lshl_b32 {sT1}, {sT1}, 2"); e(f"s_bfe_u32 {sMU}, {sUNIT}, 0x20001"); e(f"s_or_b32 {sT1}, {sT1}, {sMU}")
        e(f"s_andn2_b32 {sMU}, {sUNIT}, 7"); e(f"s_or_b32 {sT1}, {sT1}, {sMU}"); e(f"s_cmp_lt_u32 {sUNIT}, 64"); e(f"s_cselect_b32 {sMU}, {sT1}, {sUNIT}")
        e(f"s_lshl_b32 {sT0}, {sMU}, 7")
        e("v_lshrrev_b32 v12, 4, v15"); e("v_lshlrev_b32 v5, 6, v12"); e("v_and_b32 v12, 15, v15"); e("v_lshl_add_u32 v5, v12, 3, v5")
        e(f"v_add_u32 v5, {sT0}, v5"); e("v_and_b32 v12, 0x28, v15"); e("v_cmp_eq_u32 vcc, 0, v12"); e("v_mov_b32 v13, 0x7ff00000")
        e("v_cndmask_b32 v5, v13, v5, vcc")
        if OPT["probe"]=="c": e(f"s_lshl_b32 {sT1}, {sUNIT}, 3"); e(f"s_add_u32 {sT1}, {sT1}, 10240"); e(f"v_writelane_b32 v5, {sT1}, 32")
        e("v_lshrrev_b32 v12, 5, v15"); e("v_lshlrev_b32 v12, 2, v12"); e("v_and_b32 v13, 15, v15"); e("v_xor_b32 v12, v12, v13")
        e("v_lshlrev_b32 v6, 3, v12"); e("v_lshrrev_b32 v12, 4, v15"); e("v_lshl_add_u32 v6, v12, 7, v6")
        e(f"s_lshl_b32 {sT0}, {sW}, 10"); e(f"s_add_u32 {sT0}, {sT0}, {L_X}"); e(f"v_add_u32 v6, {sT0}, v6")
        e("v_bfe_u32 v12, v15, 3, 1"); e("v_lshlrev_b32 v7, 3, v12"); e("v_lshrrev_b32 v12, 4, v15"); e("v_lshl_add_u32 v7, v12, 1, v7")
        e("v_bfe_u32 v12, v15, 2, 1"); e("v_add_u32 v7, v7, v12"); e("v_bfe_u32 v12, v15, 1, 1"); e("v_lshlrev_b32 v12, 2, v12"); e("v_xor_b32 v7, v7, v12")
        e("v_lshlrev_b32 v7, 3, v7"); e("v_and_b32 v12, 3, v15"); e("v_lshl_add_u32 v7, v12, 7, v7"); e(f"v_add_u32 v7, {L_X}, v7")
        e("v_bfe_u32 v12, v15, 2, 2"); e("v_lshlrev_b32 v8, 7, v12"); e("v_and_b32 v12, 1, v15"); e("v_lshl_add_u32 v8, v12, 6, v8")
        e("v_lshrrev_b32 v12, 4, v15"); e("v_lshl_add_u32 v8, v12, 4, v8"); e(f"s_lshl_b32 {sT0}, {sW}, 9"); e(f"v_add_u32 v8, {sT0}, v8")
        if not OPT["owx"]: e(f"v_and_b32 v13, 0x1ff, v8"); e(f"v_add_u32 v13, {L_ROLE+512}, v13"); e("v_and_b32 v12, 2, v15"); e("v_cmp_eq_u32 vcc, 0, v12"); e("v_cndmask_b32 v8, v13, v8, vcc")
        e("v_lshlrev_b32 v9, 3, v15")
    def waddr():
        e("v_lshrrev_b32 v4, 4, v15"); e("v_lshlrev_b32 v4, 2, v4")
        e("v_and_b32 v5, 15, v15"); e("v_lshlrev_b32 v5, 2, v5")
        e(f"s_lshl_b32 {sT0}, {sH}, 8"); e(f"s_lshl_b32 {sT1}, {sW}, 6"); e(f"s_add_u32 {sT0}, {sT0}, {sT1}")
        e("v_lshl_add_u32 v1, v4, 13, v5"); e(f"v_add_u32 v1, {sT0}, v1")
        e("v_mul_u32_u24 v2, 1280, v4"); e("v_add_u32 v2, v2, v5")
        e(f"s_mul_i32 {sT0}, {sH}, {128*1280}"); e(f"s_add_u32 {sT0}, {sT0}, {sT1}"); e(f"v_add_u32 v2, {sT0}, v2")
        e("v_add_u32 v14, v2, v5"); e(f"v_add_u32 v14, {sT1}, v14")
        if "X" in OPT["ab"]:
            e("v_add_u32 v1, v1, v5"); e(f"s_and_b32 {sT0}, {sW}, 1"); e(f"s_mul_i32 {sT0}, {sT0}, {8192-64}"); e(f"v_add_u32 v1, {sT0}, v1")
            e(f"s_and_b32 {sT0}, {sW}, 1"); e(f"s_mul_i32 {sT0}, {sT0}, 1280"); e(f"v_add_u32 v14, {sT0}, v14"); e(f"v_add_u32 v2, {sT0}, v2")
        e(f"s_mul_i32 {sT0}, {sW}, {17*2048}"); e(f"s_add_u32 {sT0}, {sT0}, {L_W}"); e(f"v_add_u32 v3, {sT0}, v0")
        e(f"s_lshl_b32 {sT0}, {sH}, 2"); e(f"s_add_u32 {sT0}, {sT0}, {sW}"); e(f"s_lshl_b32 {sT0}, {sT0}, 14")
        e(f"s_add_u32 {sSW}, {sT0}, {SW_OFF}"); e(f"s_add_u32 {sSW2}, {sSW}, 4096"); e(f"s_add_u32 {sSW3}, {sSW}, 8192"); e(f"s_add_u32 {sSW4}, {sSW}, 12288")
        e("s_mov_b32 s10, %d"%(640*8192)); e("s_mov_b32 s11, 0x20000")
    groups=[(m,k) for m in "qkv" for k in range(10)]+[("o",j,ko) for j in range(5) for ko in range(2)]
    LB=[16,32,48,240][:OPT["idepth"]+1]
    lbuf=lambda i: LB[i%len(LB)] if (len(LB)<4 or i<36) else LB[(0,1,2,0)[i-36]]
    base={"q":54,"k":56,"v":58,"o":60}
    cur=[None]
    def issue(i):
        g=groups[i]; lb=lbuf(i)
        if cur[0]!=g[0]:
            e(f"s_mov_b32 s8, s{base[g[0]]}"); e(f"s_mov_b32 s9, s{base[g[0]]+1}"); cur[0]=g[0]
        for j in range(8):
            for x in range(2):
                row=64*g[-1]+32*(j>>2)+16*((j>>1)&1)+2*(j&1)+x
                if g[0]!="o": off=row*8192; vo="v1"
                elif g[1]<4: off=row*1280+512*(g[1]>>1)+4*(g[1]&1); vo="v14"
                else: off=row*1280+1024; vo="v2"
                if "X" in OPT["ab"]:
                    if x==0: e(f"s_mov_b32 {sT0}, {off}"); e(f"buffer_load_dwordx2 v[{lb+2*j}:{lb+2*j+1}], {vo}, {S_T}, {sT0} offen",f"w{i}")
                    continue
                e(f"s_mov_b32 {sT0}, {off}")
                e(f"buffer_load_dword v{lb+2*j+x}, {vo}, {S_T}, {sT0} offen",f"w{i}")
    tmp=[4,8]
    def put(key,lb):
        src=lambda R: f"v{lb+2*(R>>1)+1}, v{lb+2*(R>>1)}, {sPHI if R&1 else sPLO}"
        if key in TR and TR[key][0]=="v":
            for R in range(8): e(f"v_perm_b32 v{TR[key][1]+R}, {src(R)}")
            return
        for half in range(2):
            t=tmp[half]
            for R in range(4): e(f"v_perm_b32 v{t+R}, {src(4*half+R)}")
            if key in TR:
                for R in range(4): e(f"v_accvgpr_write_b32 a{TR[key][1]+4*half+R}, v{t+R}")
            elif key in TL:
                e(f"ds_write_b128 v3, {vr(t,4)} offset:{TL[key]*2048+half*1024}")
            else:
                sg,imm=sw_ref(TG[key])
                e(f"buffer_store_dwordx4 {vr(t,4)}, v0, {S_WS}, {sg} offen offset:{imm+half*1024} {OPT['swfl']}","st")
    def process(i):
        g=groups[i]; lb=lbuf(i)
        a.wait(vm=f"w{i}")
        if OPT["lock"]: e("s_barrier")
        for u in range(2):
            put((g[0],2*g[1]+u) if g[0]!="o" else ("o",4*g[1]+2*g[2]+u),lb+8*u)
    waddr(); e("s_waitcnt lgkmcnt(0)")
    issue(0); issue(1); q0=list(a.vm)
    lanes()
    e(f"s_mul_i32 {sT0}, {sH}, 10240"); e(f"s_add_u32 {sT0}, {sT0}, {P_OFF}"); e(f"s_lshl_b32 {sT1}, {sW}, 10")
    e(f"s_add_u32 {sP0}, {sT0}, {sT1}"); e(f"s_add_u32 {sP1}, {sP0}, 4096"); e(f"s_lshl_b32 {sT1}, {sW}, 9"); e(f"s_add_u32 {sP2}, {sT0}, {sT1}"); e(f"s_add_u32 {sP2}, {sP2}, 8192")
    for m in range(4): e(f"s_mov_b32 {sPR[m]}, {P_OFF+m*81920}")
    e(f"s_lshl_b32 {sT0}, {sH}, 13"); e(f"s_add_u32 {sKX}, {sT0}, {XK_OFF}"); e(f"s_add_u32 {sKX2}, {sKX}, 4096")
    e(f"s_lshl_b32 {sT1}, {sW}, 11"); e(f"s_add_u32 {sVX}, {sT0}, {XV_OFF}"); e(f"s_add_u32 {sVXN}, {sVX}, {32*8192}"); e(f"s_add_u32 {sVX}, {sVX}, {sT1}")
    e(f"s_add_u32 {sKXN}, {sKX}, {32*8192}")
    e(f"s_mul_i32 {sPC}, {sH}, {OPT['piece']}"); e(f"s_add_u32 {sMP}, {sPC}, {MEMP_OFF-10240}")
    c=(128**-0.5)*math.log2(math.e)
    import struct
    e(f"s_mov_b32 {sC}, 0x%08x"%struct.unpack("<I",struct.pack("<f",c))[0])
    e(f"s_mov_b32 s96, {sC}"); e(f"s_mov_b32 s97, {sC}")
    e("s_mov_b32 s98, 0x3f803f80"); e("s_mov_b32 s99, 0x3f803f80"); e("s_mov_b32 s100, 0x3f003f00"); e("s_mov_b32 s101, 0x3f003f00")
    e(f"s_lshl_b32 {sF1W}, {sW}, 7"); e(f"s_add_u32 {sF1W}, {sF1W}, {sH}"); e(f"s_add_u32 {sF1W}, {sF1W}, {F1_OFF}")
    e(f"s_cmp_lt_u32 {sW}, 2"); e(f"s_cselect_b32 {sT0}, 3, 2"); e(f"s_lshr_b32 {sT0}, {sH}, {sT0}"); e(f"s_and_b32 {sT0}, {sT0}, 3")
    e(f"s_lshl_b32 {sT1}, {sW}, 2"); e(f"s_add_u32 {sT0}, {sT0}, {sT1}"); e(f"s_lshl_b32 {sT0}, {sT0}, 7"); e(f"s_add_u32 {sF1R}, {sT0}, {F1_OFF}")
    e(f"s_mov_b32 {sFE}, 0xfffffffe")
    e("s_mov_b32 s44, 0x33333333"); e("s_mov_b32 s45, 0x33333333")
    e(f"s_lshl_b32 {sT0}, {sW}, 12"); e(f"s_add_u32 {sMR}, {sT0}, {M_OFF}")
    if OPT["probe"]=="b":
        e(f"s_and_b32 {sT0}, {sH}, {OPT['nrep']-1}"); e(f"s_lshl_b32 {sT0}, {sT0}, 8"); e(f"s_lshl_b32 {sT1}, {sW}, 5"); e(f"s_add_u32 {sT0}, {sT0}, {sT1}")
        e(f"s_add_u32 {sMF}, {sT0}, {FL_OFF}"); e(f"s_mov_b32 {sPAT}, 0")
    else:
        e(f"s_lshl_b32 {sT0}, {sW}, 8"); e(f"s_add_u32 {sMF}, {sT0}, {M_OFF+10240}")
    e(f"s_mov_b32 {sMW}, {M_OFF+16384}"); e(f"s_mov_b32 {sMZ}, {M_OFF+49152}")
    e(f"s_mov_b32 {sSTEP}, 0"); e(f"s_mov_b32 {sTAG}, 1"); e(f"s_mov_b32 {sTAGM}, -1"); e(f"s_mov_b32 {sCNT}, 0")
    e("v_mov_b64 v[56:57], 0"); e("v_mov_b64 v[58:59], 0"); e("v_mov_b64 v[60:61], -1")
    e(f"buffer_store_dwordx4 v[56:59], {vL16}, {S_WS}, {sP0} offen sc1"); e(f"buffer_store_dwordx4 v[56:59], {vL16}, {S_WS}, {sP1} offen sc1")
    e(f"buffer_store_dwordx2 v[56:57], {vL8}, {S_WS}, {sP2} offen sc1")
    e("s_mov_b64 exec, 1")
    for c in range(3): e(f"buffer_store_byte v56, v56, {S_WS}, {sF1W} offen offset:{512*c} sc1")
    e("s_mov_b64 exec, -1")
    e(f"s_cmp_ge_u32 {sUNIT}, 80"); e("s_cbranch_scc1 C_noM")
    e("s_mov_b32 s8, s62"); e("s_mov_b32 s9, s63"); e("s_mov_b32 s10, 10240")
    e(f"s_and_b32 {sT0}, {sMU}, 3"); e(f"s_mul_i32 {sT0}, {sT0}, 2560"); e(f"s_lshr_b32 {sT1}, {sMU}, 2"); e(f"s_lshl_b32 {sT1}, {sT1}, 6"); e(f"s_add_u32 {sT0}, {sT0}, {sT1}")
    e("v_bfe_u32 v12, v15, 4, 1"); e("v_mul_u32_u24 v12, 1280, v12"); e("v_and_b32 v13, 7, v15"); e("v_lshl_add_u32 v12, v13, 3, v12")
    e(f"buffer_load_dwordx2 v[62:63], v12, {S_T}, {sT0} offen")
    for k in range(1,4):
        e(f"s_mov_b32 {sT1}, {M_OFF+16384*k}"); e(f"buffer_store_dwordx2 v[60:61], {vRS}, {S_WS}, {sT1} offen sc1")
    e("s_waitcnt vmcnt(0)")
    e(f"v_min_u32 v62, {sFE}, v62")
    e(f"s_mov_b32 {sT1}, {M_OFF}"); e(f"buffer_store_dwordx2 v[62:63], {vRS}, {S_WS}, {sT1} offen sc1")
    a.label("C_noM")
    e("s_mov_b32 s8, s4"); e("s_mov_b32 s9, s5"); e("s_mov_b32 s10, 0")
    if OPT["probe"]=="b":
        e(f"s_cmp_eq_u32 {sW}, 3"); e("s_cbranch_scc1 C_noF")
        e(f"s_add_u32 s8, s4, {FL_OFF}"); e("s_addc_u32 s9, s5, 0"); e(f"s_mov_b32 s10, {OPT['nrep']*256}")
        e("v_lshlrev_b32 v12, 4, v0"); e("v_mov_b32 v13, 0")
        e(f"buffer_store_byte v13, v12, {S_T}, {sUNIT} offen sc1")
        a.label("C_noF")

    e(f"s_cmp_eq_u32 {sW}, 3"); e("s_cbranch_scc0 C_noZ")
    e(f"s_lshl_b32 {sT0}, {sH}, 10"); e(f"buffer_store_dwordx4 v[56:59], v0, {S_WS}, {sT0} offen sc1")
    e("s_mov_b64 exec, 1"); e(f"s_lshl_b32 {sT0}, 1, {sXCC}"); e("v_mov_b32 v12, 8"); e(f"v_mov_b32 v13, {sT0}")
    e(f"global_atomic_or v12, v13, {sDBG}"); e("s_mov_b64 exec, -1")
    a.label("C_noZ"); a.vm=[]
    e("v_and_b32 v12, 15, v15"); e("v_and_b32 v52, 0xff, v0")
    for tab,neg in ((0,0),):
        for r,ent in enumerate([((0,2),(1,3)),((4,6),(5,7)),((2,None),(3,None)),((6,None),(7,None))]):
            e(f"v_mov_b32 v{48+r}, 0")
            for half,(pos,ng) in enumerate(ent):
                for row,val in ((pos,0x3f80),(ng if neg else None,0xbf80)):
                    if row is None: continue
                    e(f"v_mov_b32 v13, 0x{val<<(16*half):x}"); e(f"v_cmp_eq_u32 vcc, {row}, v12"); e(f"v_cndmask_b32 v{48+r}, v{48+r}, v13, vcc")
        e(f"ds_write_b128 v52, v[48:51] offset:{L_SEL+tab}")
        e("s_waitcnt lgkmcnt(0)")
    waddr(); a.vm=q0
    DD=OPT["idepth"]
    e("s_mov_b32 s8, s54"); e("s_mov_b32 s9, s55")
    for i in range(2,DD): issue(i)
    for i in range(len(groups)):
        if i+DD<len(groups) and not (DD==3 and i==36): issue(i+DD)
        process(i)
        if DD==3 and i==36: issue(39)
        if i==2:
            if not OPT["lock"]: e("s_barrier")
            e(f"s_cmp_eq_u32 {sW}, 3"); e("s_cbranch_scc0 C_noA")
            q=list(a.vm)
            e("s_mov_b64 exec, 1"); e("v_mov_b32 v12, 4"); e("v_mov_b32 v13, 1"); e(f"global_atomic_add v12, v13, {sDBG}"); e("s_mov_b64 exec, -1")
            a.label("C_noA"); a.vm=q
    a.wait(vm="all",lg="all")
    lanes()
    e("s_mov_b32 s8, s4"); e("s_mov_b32 s9, s5"); e("s_mov_b32 s10, 0")
    e(f"s_cmp_eq_u32 {sW}, 3"); e("s_cbranch_scc1 C_noF2")
    e(f"s_add_u32 s8, s4, {FL_OFF}"); e("s_addc_u32 s9, s5, 0"); e(f"s_mov_b32 s10, {OPT['nrep']*256}")
    a.label("C_noF2")

STAMPS=[]
OPT={"kvstride":32*8192,"d0":25,"d1":70,"d1b":90,"m1pos":0,"d2":0,"d3":0,"pf":1,"nosync":0,"stamps":[],"lock":1,"rl":20,"pub":1,"pipe":2,"probe":"b","owx":1,"fine":"","b4p":4,"nv":12,"rtail":0,"half":0,"kxb0":0,"pubp":6,"qs":0,"os":0,"b0w0":1,"pfw":3,"w2late":1,"b0":3,"rot":1,"al":(6,0),"gate":0,"swfl":"","wb":1,"warm":1,"nat":(None,"p2","p2"),"dbgout":0,"lastlds":2,"f1":0,"q1":16,"spec":0,"kvfl":"sc1","piece":320,"m1in":0,"pairw":1,"b4":1,"ststag":0,"g9in":0,"g1pv":1,"kxout":(11,1),"b1b":15,"g19":(2,4),"idepth":2,"prep":(13,14,15,17),"m1pre":0,"gq":(0,1),"stag":1,"kxp":(7,1),"pfp":15,"go1p":"exp","g18":(10,11),"unr":4,"goearly":1,"mpstride":10240,"pubfl":"sc1","pubpos":"qk","pfsplit":0,"kvmask":7,"kvchk":1,"pfwait":0,"pffl":"sc1","nrep":4,"np":3,"l1":(),"gfl":"","prepos":"early","percu":0,"at":40,"d4":0,"ab":"","pfpos":"qk"}
def delay(a,n):
    while n>0:
        k=min(n,16); a.e(f"s_nop {k-1}"); n-=k
def stamp(a,tim,name):
    if OPT["fine"] and not name.startswith(OPT["fine"]) and name!="b1": return
    if not OPT["fine"] and name[0]=="_": return
    if name not in STAMPS: STAMPS.append(name)
    if tim==3:
        i=STAMPS.index(name); assert i<19; a.e(f"s_memtime s[{54+2*i}:{55+2*i}]")
        if OPT["fine"]: a.lg+= [None,None]
        return
    if tim!=1 or name not in OPT["stamps"]: return
    i=OPT["stamps"].index(name)
    a.e("s_memtime s[70:71]"); a.e("s_waitcnt lgkmcnt(0)"); a.lg=[]
    a.e("s_sub_u32 s72, s70, s73"); a.e("s_mov_b32 s73, s70"); a.e(f"s_add_u32 s{76+i}, s{76+i}, s72")

def dma(a,n,soff,tag,first=0):
    fl=OPT["kvfl"] if tag=="kx" else "sc1"
    for i in range(first,first+n):
        a.e(f"buffer_load_dwordx4 {vL16}, {S_WS}, {soff} offen offset:{1024*i} {fl} lds",tag)

def chain_wave(a, w, st, pfx, tim=0):
    use_map(w)
    e=a.e; L=lambda s: f"{pfx}{w}_{s}"
    nd=[4,4,2,0][w]
    def chk(l):
        if OPT["nosync"]: e("s_nop 0")
        else: e(f"s_cbranch_vccnz {L(l)}")
    def spin(c=None):
        if tim in(1,2) and c: e(f"s_add_u32 {c}, {c}, 1")
        e(f"s_add_u32 {sCNT}, {sCNT}, 1"); e(f"s_cmp_gt_u32 {sCNT}, 0x40000"); e("s_cbranch_scc1 L_abort")
    def aread(k,buf): e(f"ds_read_b128 {vr(buf,4)}, {vA} offset:{L_MEM+512*k}",f"A{k}")
    tg=lambda key: "t%s%d"%key
    def prestage():
        for p in range(2):
            if p in Q_SLOT: lload_tile(a,QSEQ[p],SLOT[QSEQ[p]][0],None)
    B0L=[(QSEQ[p],h) for p in GPOS for h in range(2)][:max(OPT["b0"]-1,0)]
    def b0loads():
        for k,h in B0L: gload_half(a,k,SLOT[k][0],tg(k),h)
    def zero_acc():
        for r in (QA,KA,VA): zero4(a,r)
    NREP=OPT["nrep"]
    def paddr(r):
        if OPT["probe"]=="b": e(f"v_bfe_u32 v{r}, {vL16}, 2, {4 if w==2 else 5}")
        elif OPT["probe"]=="c": e(f"v_and_b32 v{r}, {0x7f if w==2 else 0xff}, {vL8}")
        else:
            e(f"v_lshlrev_b32 v{r}, 2, {vL16}")
            if w==2: e(f"v_and_b32 v{r}, 0x7ff, v{r}")
    def probe(d,r,tag=None):
        e(f"buffer_load_dword v{d}, v{r}, {S_WS}, {sMR if OPT['probe']=='d' else sMF} offen sc1",tag)
    def pcmp(d):
        if OPT["probe"]=="b": e(f"v_cmp_ne_u32 vcc, {sPAT}, v{d}")
        else: e(f"v_cmp_eq_u32 vcc, -1, v{d}")
    def mfetch():
        paddr(T1); probe(T1,T1,"pr")
        dma(a,nd,sMR,"dma")
    if w==3: e(f"s_cmp_eq_u32 {sH}, 0"); e(f"s_cselect_b32 {sALL}, 0, 1")
    if tim in(1,2):
        e("s_memtime s[70:71]"); e("s_waitcnt lgkmcnt(0)"); e("s_mov_b32 s73, s70"); e("s_mov_b32 s74, s70")
        for i in range(11): e(f"s_mov_b32 s{76+i}, 0")
    if OPT["warm"]:
        e(f"v_lshlrev_b32 v{T1}, 3, {vL16}")
        if w<3:
            for k in range(4): e(f"s_mov_b32 {sT0}, {M_OFF+16384*k}"); e(f"buffer_load_dwordx2 v[12:13], {vRS}, {S_WS}, {sT0} offen sc1")
            e(f"buffer_load_dword v14, v{T1}, {S_WS}, {sP0} offen sc1") if w==0 else None
        else:
            e(f"s_sub_u32 {sT0}, {sVXN}, {32*8192}"); e(f"buffer_load_dword v14, v{T1}, {S_WS}, {sT0} offen sc1")
    if tim==5 and w==0:
        e("s_memrealtime s[70:71]"); e("s_waitcnt lgkmcnt(0)")
        e(f"s_lshl_b32 s72, {sH}, 8"); e(f"s_add_u32 s72, s72, {DBG_OFF+0x40000}")
        e(f"v_mov_b32 v{T0}, s70"); e(f"v_lshlrev_b32 v{T1}, 24, {vL16}")
        e(f"buffer_store_dword v{T0}, v{T1}, {S_WS}, s72 offen")
    if OPT["gate"] and w==0:
        e(f"v_mov_b32 v{T0}, 0x7f"); e(f"v_lshlrev_b32 v{T1}, 24, {vL16}")
        e(f"buffer_store_byte v{T0}, v{T1}, {S_WS}, {sF1W} offen {st}")
        e(f"v_bfe_u32 v{T1}, {vL16}, 2, 5"); e(f"s_mov_b32 {sT0}, {F1_OFF}"); e(f"s_mov_b32 {sT1}, 0x7f7f7f7f")
        a.label(L("gate"))
        e(f"buffer_load_dword v{T0}, v{T1}, {S_WS}, {sT0} offen sc1"); spin(); e("s_waitcnt vmcnt(0)")
        e(f"v_cmp_ne_u32 vcc, {sT1}, v{T0}"); e(f"s_cbranch_vccz {L('gated')}"); e("s_sleep 2"); e(f"s_branch {L('gate')}")
        a.label(L("gated"))
    a.label(L("rec"))
    e("s_waitcnt vmcnt(0) lgkmcnt(0)"); a.vm=[]; a.lg=[]
    spin("s84")
    e("s_barrier")
    prestage()
    if OPT["kxout"] and w in(0,3):
        e(f"s_mov_b32 m0, {L_KX+(4096 if w else 0)}"); dma(a,4,sKX2 if w else sKX,"kx")
    if w<3: e(f"s_mov_b32 m0, {4096*w}")
    if w==0 or (w<3 and OPT["m1pre"]): dma(a,nd,sMR,"dma")
    if OPT["b0"] and (w==1 or (w==2 and not OPT["w2late"])): mfetch()
    if w or OPT["b0w0"]: b0loads()
    zero_acc()
    e("s_waitcnt vmcnt(0) lgkmcnt(0)"); a.vm=[]; a.lg=[]
    top_vm={0:[],1:["rs","fl","mz"],2:["rs","fl","mz"],3:[]}[w]
    if OPT["m1pre"] and w in(1,2): top_vm=["dma"]*nd
    if OPT["b0"] and (w==1 or (w==2 and not OPT["w2late"])): top_vm=top_vm+["pr"]+["dma"]*nd
    if w or OPT["b0w0"]: top_vm=top_vm+[tg(k) for k,h in B0L]
    if OPT["kxb0"] and w==3: top_vm=top_vm+["kx"]*8
    if OPT["pub"] and OPT["pubpos"]=="hop" and w==3: top_vm=["pub"]
    a.vm=list(top_vm)
    if OPT["al"]:
        e(f"s_branch HZ_{L('top')}"); a.ins.append(Ins(f".p2align {OPT['al'][0]}"))
        for i in range(OPT["al"][1]): a.ins.append(Ins("s_nop 0"))
    if OPT["rot"] and w==0:
        a.label(L("pretop")); e(f"s_waitcnt vmcnt({len(top_vm)+2*OPT['half']})")
        if OPT["half"]: a.vm=["dmb","dmb"]+a.vm
    a.label("HZ_"+L("top"))
    e("s_barrier")
    for k in range(4): aread(k,AB[k])
    if w==2 and OPT["b0"] and OPT["w2late"]: mfetch()
    if w in(1,2) and not OPT["m1pre"] and not OPT["b0"]:
        if OPT["m1in"]: paddr(T1); probe(T1,T1,"pr")
        else: mfetch()
    stamp(a,tim,"b1")
    def slow_ops(where):
        if w==OPT["pfw"] and OPT['pf'] and OPT["pfpos"]==where:
            tr=T1 if w==3 else 4*0+T0
            e(f"v_lshlrev_b32 v{tr}, 3, {vL16}"); e(f"s_mov_b32 m0, {L_ROLE}")
            e(f"buffer_load_dword v{tr}, {S_WS}, {sKXN} offen {OPT['pffl']} lds","pf")
            e(f"buffer_load_dword v{tr}, {S_WS}, {sVXN} offen {OPT['pffl']} lds","pf")
            if w==2: e("s_mov_b32 m0, 8192")
        if w!=3: return
        if OPT["pub"] and OPT["pubpos"]==where:
            e(f"buffer_store_dwordx2 v[4:5], {vL8}, {S_T}, {sMP} offen {OPT['pubfl']}","pub")
            e("s_mov_b32 s10, 0")
    ACC={"q":QA,"k":KA,"v":VA}
    def nxt(seq,tab,p):
        later=[x for x in sorted(tab) if x>p and tab[x][0]==tab[p][0]]
        return later[0] if later else None
    def qkv(key,buf,p=None):
        if key in TG: a.wait(vm=tg(key))
        elif key in TL and p>1: a.wait(lg=tg(key))
        sm(a,ACC[key[0]],buf,key,SLOT.get(key,(0,))[0])
        if p in Q_SLOT:
            n=nxt(QSEQ,Q_SLOT,p)
            if n is not None and Q_SLOT[n][1]=="L": lload_tile(a,QSEQ[n],Q_SLOT[n][0],tg(QSEQ[n]))
    kxw = w in(0,3)
    def kxread(kt,ke,dst): e(f"ds_read_b128 {vr(dst,4)}, {vL16} offset:{L_KX+1024*(4*kt+ke)}",f"K{kt}{ke}")
    cvt=lambda d,x,y: e(f"v_cvt_pk_bf16_f32 v{d}, v{x}, v{y}")
    gs=[(QSEQ[p],h) for p in GPOS for h in range(2)]
    seen=set(); read=set(range(4))
    for p,key in enumerate(QSEQ):
        m,k=key; b=AB[k%4]
        if p==OPT["b1b"]:
            stamp(a,tim,"k2")
            if w==2 and OPT["w2late"]: chk("mr"); a.label(L("mok"))
            elif w in(1,2) and not OPT["m1pre"]: chk("mr"); a.wait(vm="dma"); a.label(L("mok"))
            elif w in(1,2): a.wait(vm="dma")
            e("s_barrier"); stamp(a,tim,"b1b")
            for kk in range(8,k+4):
                if kk not in read: aread(kk,AB[kk%4]); read.add(kk)
        if k not in seen:
            if OPT["pairw"] and k>=10 and k%2==0 and k+1 in read: a.wait(lg=f"A{k+1}"); seen.add(k+1)
            else: a.wait(lg=f"A{k}")
            seen.add(k)
        qkv(key,b,p)
        if p==2 and OPT["half"]:
            if w==0: a.wait(vm="dmb")
            e("s_barrier")
        last=all(x[1]!=k for x in QSEQ[p+1:])
        if last and k+4<20 and (k+4<8 or p>=OPT["b1b"]) and k+4 not in read: aread(k+4,b); read.add(k+4)
        if p==1: a.wait(lg="A3"); e(f"v_max3_u32 v{T0}, v{AB[0]}, v{AB[1]}, v{AB[2]}")
        if p==2: e(f"v_max_u32 v{T0}, v{T0}, v{AB[3]}") if False else None
        if p==3: e(f"v_max_u32 v{T0}, v{T0}, v{AB[3]}")
        if p==4: e(f"v_cmp_eq_u32 vcc, -1, v{T0}")
        if p==6: chk("rec")
        if m=="q" and k==4: e(f"v_mov_b32 v{T0}, v{b}")
        if m=="q" and 5<=k<=17:
            if OPT["pairw"] and k>=10:
                if k%2==0: e(f"v_max3_u32 v{T0}, v{T0}, v{b}, v{AB[(k+1)%4]}")
            else: e(f"v_max_u32 v{T0}, v{T0}, v{b}")
        m1=OPT["m1in"] and w in(1,2) and not OPT["m1pre"]
        if m1 and p<nd: dma(a,1,sMR,"dma",p)
        for j,(gk,h) in enumerate(gs):
            if (w or OPT["b0w0"]) and j<OPT["b0"]-1: continue
            if p==(OPT["gq"][0]+OPT["gq"][1]*j if not m1 else max(OPT["gq"][0]+OPT["gq"][1]*j,nd+j)): gload_half(a,gk,SLOT[gk][0],tg(gk),h)
        if not OPT["kxout"]:
            if kxw and p==OPT["kxp"][0]-1: e(f"s_mov_b32 m0, {L_KX+(4096 if w else 0)}")
            for j in range(4):
                if kxw and p==OPT["kxp"][0]+OPT["kxp"][1]*j: dma(a,1,sKX2 if w else sKX,"kx",j)
        if p==OPT["pfp"]: slow_ops("qk")
        if p==OPT["pubp"]: slow_ops("qk2")
        if p==OPT["b1b"]-2 and w in(1,2) and not OPT["m1pre"]: a.wait(vm="pr"); pcmp(T1)
        if p==35 and OPT["w2late"]:
            if w==2: a.wait(vm="dma")
            if w==3: a.wait(vm="kx")
            e("s_barrier")
        if p==44: stamp(a,tim,"k7")
        if p%3==2: stamp(a,tim,f"_q{p}")
        if p==46 and not OPT["kxout"]: a.wait(vm="kx"); e("s_barrier")
        if p==47: kxread(0,0,SL3); kxread(1,0,SL3+4)
        if p==48: a.wait(lg="A19"); seen.add(19); e(f"v_max3_u32 v{T0}, v{T0}, v{AB[2]}, v{AB[3]}")
        if p==49: e(f"v_cmp_eq_u32 vcc, -1, v{T0}"); kxread(0,1,SL2); kxread(1,1,SL2+4)
        if p==51: chk("rec")
    stamp(a,tim,"qk")
    slow_ops("qkend")
    if w==3 and OPT["pub"] and OPT["pubpos"]=="lds":
        e(f"v_add_u32 v{T1}, {sPC}, {vL8}"); e(f"ds_read_b64 v[4:5], v{T1} offset:{L_MEM}","pl")
    cvt(QA,QA,QA+2); cvt(QA+2,QA+1,QA+3)
    qkv(("v",16),AB[0]); aread(12,AB[0])
    qkv(("v",17),AB[1]); aread(13,AB[1])
    cvt(QA+1,KA,KA+2); cvt(QA+3,KA+1,KA+3)
    e(f"ds_write_b64 {vXW}, {vr(QA,2)}","xw"); e(f"ds_write_b64 {vXW}, {vr(QA+2,2)} offset:512","xw")
    qkv(("v",18),AB[2]); qkv(("v",19),AB[3]); aread(14,AB[3])
    a.wait(lg="A12"); qkv(("v",12),AB[0])
    if w==3 and OPT["pub"] and OPT["lastlds"]:
        e(f"s_cmp_ge_u32 {sSTEP}, {NSEG-1-OPT['lastlds']}"); e(f"s_cbranch_scc1 {L('pub62')}"); a.label(L("pub62b"))
    if w==3 and OPT["pub"] and OPT["pubpos"]=="lds":
        e(f"s_add_u32 {sMP}, {sMP}, 10240"); e(f"s_add_u32 s10, {sMP}, {OPT['piece']}")
        e(f"buffer_store_dwordx2 v[4:5], {vL8}, {S_T}, {sMP} offen {OPT['pubfl']}","pub")
    stamp(a,tim,"_s0"); a.wait(lg="xw"); stamp(a,tim,"_s1"); e("s_barrier"); stamp(a,tim,"b2"); stamp(a,tim,"_s2")
    X=[28,32,40,44]
    for ke in range(4):
        for x in range(2): e(f"ds_read_b64_tr_b16 {vr(X[ke]+2*x,2)}, {vXR} offset:{1024*ke+512*x}",f"X{ke}")
        if ke==0: qkv(("v",13),AB[1])
        if ke==1: a.wait(lg="A14"); qkv(("v",14),AB[3])
    aread(15,AB[3])
    S0,S1,SM=AB[0],AB[2],AB[1]
    def mf(d,A,B,first,op="v_mfma_f32_16x16x32_bf16",n=4):
        e(f"{op} {vr(d,4)}, {vr(A,n)}, {vr(B,n)}, {'0' if first else vr(d,4)}")
    VM=VA; VX=SL3; P=SL2; PM=SL2+4
    stamp(a,tim,"_s3"); a.wait(lg="X0"); stamp(a,tim,"_s4"); mf(S0,SL3,X[0],1); mf(S1,SL3+4,X[0],1)
    kxread(0,2,SL3); kxread(1,2,SL3+4)
    a.wait(lg="X1"); stamp(a,tim,"_s5"); mf(S0,SL2,X[1],0); mf(S1,SL2+4,X[1],0)
    kxread(0,3,SL2); kxread(1,3,SL2+4)
    a.wait(lg="A15"); qkv(("v",15),AB[3])
    mf(SM,X[0],X[0],1); mf(SM,X[1],X[1],0)
    stamp(a,tim,"_s6"); a.wait(lg="K12"); stamp(a,tim,"_s7"); mf(S0,SL3,X[2],0); mf(S1,SL3+4,X[2],0)
    e(f"buffer_load_dwordx4 {vr(VX,4)}, {vL16}, {S_WS}, {sVX} offen {OPT['kvfl']}","vx")
    cvt(VM,VM,VM+2)
    stamp(a,tim,"_s8"); a.wait(lg="K13"); stamp(a,tim,"_s9"); mf(S0,SL2,X[3],0); cvt(VM+1,VM+1,VM+3); mf(S1,SL2+4,X[3],0)
    e(f"buffer_load_dwordx4 {vr(VX+4,4)}, {vL16}, {S_WS}, {sVX} offen offset:1024 {OPT['kvfl']}","vx")
    mf(SM,X[2],X[2],0)
    e(f"v_mov_b32 v{PM+1}, 0"); e(f"v_mov_b32 v{PM+2}, 0")
    mf(SM,X[3],X[3],0)
    e(f"v_max3_f32 v{T1}, v{S0}, v{S0+1}, v{S0+2}")
    e(f"v_max3_f32 v{T0}, v{S0+3}, v{S1}, v{S1+1}")
    e(f"v_max3_f32 v{T1}, v{T1}, v{S1+2}, v{S1+3}")
    stamp(a,tim,"scores"); stamp(a,tim,"_sa")
    e(f"v_max_f32 v{T1}, v{T1}, v{T0}")
    gload_half(a,("o",0),28,"go0",0)
    e(f"v_max3_f32 v{T0}, v{T1}, v{SM+2}, v{SM+3}"); e(f"v_max3_f32 v{T1}, v{T1}, v{SM+2}, v{SM+3}")
    e(f"v_permlane32_swap_b32 v{T0}, v{T1}")
    e(f"v_max_f32 v{SM}, v{T0}, v{T1}"); e(f"v_max_f32 v{T0}, v{T0}, v{T1}")
    gload_half(a,("o",0),28,"go0",1)
    e(f"v_permlane16_swap_b32 v{T0}, v{SM}")
    e(f"v_max_f32 v{T0}, v{T0}, v{SM}")
    e(f"v_mul_f32 v{T0}, {sC}, v{T0}")
    stamp(a,tim,"max"); stamp(a,tim,"_sb")
    ev=[S0,S0+1,S0+2,S0+3,S1,S1+1,S1+2,S1+3,SM+2,SM+3]
    for r in ev[::2]:
        e(f"v_pk_fma_f32 {vr(r,2)}, {vr(r,2)}, {sCC}, {vr(T0,2)} op_sel_hi:[1,1,0] neg_lo:[0,0,1] neg_hi:[0,0,1]")
    for i,r in enumerate(ev[:8]):
        e(f"v_exp_f32 v{r}, v{r}")
        if i in(1,6) and not OPT["g1pv"]: gload_half(a,("o",1),SL1,"go1",i//6)
        if i in(2,4,6): cvt(P+i//2-1,ev[i-2],ev[i-1])
        if i==4: e(f"v_mov_b64 {vr(S0,2)}, {sONE}")
        if i==6: e(f"v_mov_b64 {vr(S0+2,2)}, {sONE}")
    e(f"v_exp_f32 v{ev[8]}, v{ev[8]}"); cvt(P+3,ev[6],ev[7])
    e(f"v_exp_f32 v{ev[9]}, v{ev[9]}")
    O=[S0,AB[3]]
    stamp(a,tim,"exp"); stamp(a,tim,"_p0")
    mf(S1,S0,P,1)
    cvt(PM,ev[8],ev[9]); cvt(PM+3,ev[8],ev[9])
    stamp(a,tim,"_p1"); a.wait(vm="vx"); stamp(a,tim,"_p2")
    mf(O[1],VX+4,P,1)
    if OPT["g1pv"]: gload_half(a,("o",1),SL1,"go1",0)
    mf(S1,S0,PM,0,"v_mfma_f32_16x16x16_bf16",2)
    if OPT["g1pv"]: gload_half(a,("o",1),SL1,"go1",1)
    mf(O[0],VX,P,1)
    lload_tile(a,("o",2),SL3,"lo2")
    mf(O[1],VM,PM+2,0,"v_mfma_f32_16x16x16_bf16",2)
    e(f"v_rcp_f32 v{T0}, v{S1}")
    mf(O[0],VM,PM,0,"v_mfma_f32_16x16x16_bf16",2)
    ks=OPT["kvstride"]
    e(f"s_add_u32 {sSTEP}, {sSTEP}, 1"); e(f"s_add_u32 {sVX}, {sVX}, {ks}")
    if w==0: e(f"s_add_u32 {sKX}, {sKX}, {ks}"); e("s_mov_b32 m0, 0")
    if w==3: e(f"s_add_u32 {sKX2}, {sKX2}, {ks}"); e(f"s_add_u32 {sKX}, {sKX}, {ks}")
    if w==OPT["pfw"]: e(f"s_add_u32 {sKXN}, {sKXN}, {ks}"); e(f"s_add_u32 {sVXN}, {sVXN}, {ks}")
    PK=P
    stamp(a,tim,"_p7")
    for i in range(0,4,2): e(f"v_pk_mul_f32 {vr(O[1]+i,2)}, {vr(O[1]+i,2)}, {vr(T0,2)} op_sel_hi:[1,0]")
    for i in range(0,4,2):
        e(f"v_pk_mul_f32 {vr(O[0]+i,2)}, {vr(O[0]+i,2)}, {vr(T0,2)} op_sel_hi:[1,0]")
        for k in range(2): cvt(PK+i+k,O[0]+i+k,O[1]+i+k)
    e(f"s_mov_b64 exec, {sEX}"); e(f"ds_write_b128 {vOW}, {vr(PK,4)}","ow"); e("s_mov_b64 exec, -1")
    stamp(a,tim,"_p8")
    G2=[n for n,v in O_SLOT.items() if v==(SL2,"G")][0]
    ZA,XA,YA=36,28,32
    zero4(a,ZA)
    slow_ops("opack")
    stamp(a,tim,"opack")
    a.wait(lg="ow"); stamp(a,tim,"_p9"); e("s_barrier"); stamp(a,tim,"b3"); stamp(a,tim,"_pa")
    for k in range(4): e(f"ds_read_b128 {vr(AB[k],4)}, {vA} offset:{L_MEM+512*k}",f"ao{k}")
    F2=min(n for n,v in O_SLOT.items() if v[0]==SL2)
    if F2!=G2: lload_tile(a,("o",F2),SL2,f"lo{F2}")
    elif not OPT["g9in"]: gload_tile(a,("o",G2),SL2,f"go{G2}")
    RL=[SL2,SL2+4,SL3,SL3+4]
    def red_loads():
        for m in range(4): e(f"buffer_load_dwordx4 {vr(RL[m],4)}, {vRL}, {S_WS}, {sPR[m]} offen sc1",f"r{m}")
    z=lambda r: [f"v_mov_b64 {vr(r,2)}, 0",f"v_mov_b64 {vr(r+2,2)}, 0"]
    cv=lambda d,x,y: f"v_cvt_pk_bf16_f32 v{d}, v{x}, v{y}"
    tagop=lambda r: f"v_and_or_b32 v{r}, v{r}, -2, {sTAG}"
    PACC=[ZA,XA,YA,ZA,XA]
    post={n:[] for n in range(21)}
    post[1]+=z(XA)[:1]; post[2]+=z(XA)[1:]; post[3]+=z(YA)[:1]; post[4]+=z(YA)[1:]
    post[5]+=[cv(ZA,ZA,ZA+1)]; post[6]+=[cv(ZA+1,ZA+2,ZA+3)]; post[7]+=[tagop(ZA)]
    sg=OPT["ststag"]*(w>>1)
    post[9]+=[cv(ZA+2,XA,XA+1),cv(ZA+3,XA+2,XA+3)]
    post[9+sg]+=[(f"buffer_store_dwordx4 {vr(ZA,4)}, {vL16}, {S_WS}, {sP0} offen {st}","p0")]
    post[10+sg]+=z(ZA); post[12]+=z(XA)[:1]; post[13]+=z(XA)[1:]
    post[13]+=[cv(YA,YA,YA+1)]; post[14]+=[cv(YA+1,YA+2,YA+3)]; post[15]+=[tagop(YA)]
    post[17]+=[cv(YA+2,ZA,ZA+1),cv(YA+3,ZA+2,ZA+3)]
    post[17+sg]+=[(f"buffer_store_dwordx4 {vr(YA,4)}, {vL16}, {S_WS}, {sP1} offen {st}","p1")]
    post[20]+=[cv(XA,XA,XA+1),cv(XA+1,XA+2,XA+3),tagop(XA),(f"buffer_store_dwordx2 {vr(XA,2)}, {vL8}, {S_WS}, {sP2} offen {st}","p2")]
    def flag(c): return [(f"buffer_store_byte v{T0}, v{T1}, {S_WS}, {sF1W} offen offset:{512*c} {st}",f"f{c}")]
    if OPT["f1"]:
        post[0]+=[f"v_mov_b32 v{T0}, {sSTEP}"]; post[8]+=[f"v_lshlrev_b32 v{T1}, 24, {vL16}"]
        post[10+sg]=flag(0)+post[10+sg]; post[18+sg]=flag(1)+post[18+sg]; post[20]+=flag(2)
    def emit(l):
        for x in l:
            if isinstance(x,tuple): e(x[0],x[1])
            else: e(x)
    def probe1(d,r): e(f"buffer_load_dword v{d}, v{r}, {S_WS}, {sF1R} offen sc1","q1")
    for n in range(20):
        ko=n&3; key=("o",n)
        if n<4: a.wait(lg=f"ao{ko}")
        if n<2: stamp(a,tim,f"_pb{n}")
        if key in TL: a.wait(lg=f"lo{n}")
        elif key in TG: a.wait(vm=f"go{n}")
        sm(a,PACC[n>>2],AB[ko],key,SLOT.get(key,(0,))[0])
        if n in O_SLOT:
            m=nxt(None,O_SLOT,n)
            if m is not None and O_SLOT[m][1]=="L": lload_tile(a,("o",m),O_SLOT[m][0],f"lo{m}")
        if F2!=G2 and n in OPT["g18"]: gload_half(a,("o",G2),SL2,f"go{G2}",OPT["g18"].index(n))
        if OPT["g9in"] and n<2: gload_half(a,("o",G2),SL2,f"go{G2}",n)
        if n in OPT["g19"]: gload_half(a,("o",19),SL1,"go19",OPT["g19"].index(n))
        if OPT["kxout"] and kxw and not OPT["kxb0"]:
            ko_=OPT["kxout"]
            if n==ko_[0]-1: e(f"s_mov_b32 m0, {L_KX+(4096 if w else 0)}")
            for j in range(4):
                if n==ko_[0]+ko_[1]*j and "K" not in OPT["ab"]: dma(a,1,sKX2 if w else sKX,"kx",j)
            if w==0 and n==ko_[0]+ko_[1]*3+1: e("s_mov_b32 m0, 0")
        if n==OPT["b4p"] and OPT["b4"]: e("s_barrier")
        if w==0 and n==OPT["rl"]: red_loads()
        if n in(13,): stamp(a,tim,f"o{n}")
        if n>=2: stamp(a,tim,f"_o{n}")
        if OPT["f1"] and w==0 and n==OPT["q1"]:
            e(f"v_bfe_u32 v{SL2}, {vL16}, 2, 5"); e(f"s_add_u32 {sT1}, {sPAT}, 0x01010101"); probe1(SL2,SL2)
        if n==19 and w<3:
            e(f"v_and_b32 v16, 0xff, {vL16}")
            e(f"ds_read_b128 v[12:15], v16 offset:{L_SEL}","sel")
        emit(post[n])
    emit(post[20])
    stamp(a,tim,"out")
    def slots():
        e(f"s_add_u32 {sMR}, {sMW}, {4096*w}")
        if w<3 and OPT["probe"]=="c": e(f"s_add_u32 {sMF}, {sMW}, {10240+256*w}")
        if w<3 and OPT["probe"]=="b": e(f"s_add_u32 {sPAT}, {sPAT}, 0x01010101")
        for r in (sMW,sMZ):
            e(f"s_add_u32 {r}, {r}, 16384"); e(f"s_and_b32 {r}, {r}, 0xffff"); e(f"s_or_b32 {r}, {r}, {M_OFF}")
        e(f"s_xor_b32 {sTAG}, {sTAG}, 1"); e(f"s_not_b32 {sTAGM}, {sTAGM}")
    if w<3 and OPT["f1"]:
        if w==2: e(f"s_cmp_ge_u32 {sUNIT}, 80"); e(f"s_cbranch_scc1 {L('nored0')}")
        e(f"v_bfe_u32 v23, {vL16}, 2, 5")
        if w==0:
            a.wait(vm="q1"); e(f"v_cmp_ne_u32 vcc, {sT1}, v{SL2}")
            e(f"v_mov_b32 v20, {sSTEP}"); e(f"v_lshlrev_b32 v21, 4, {vL16}"); e("v_mov_b32 v22, -1")
            e(f"s_cbranch_vccz {L('f1ok')}")
        else:
            e(f"s_add_u32 {sT1}, {sPAT}, 0x01010101")
            e(f"v_mov_b32 v20, {sSTEP}"); e(f"v_lshlrev_b32 v21, 4, {vL16}"); e("v_mov_b32 v22, -1")
            delay(a,OPT['d1'] if w==1 else OPT['d1b'])
        probe1(T0,23); delay(a,OPT["d4"]); probe1(T0,23)
        a.label(L("f1"))
        for u in range(2):
            e("s_waitcnt vmcnt(1)"); e(f"v_cmp_ne_u32 vcc, {sT1}, v{T0}"); probe1(T0,23)
            if OPT["nosync"]: e(f"s_branch {L('f1ok')}")
            else: e(f"s_cbranch_vccz {L('f1ok')}")
        spin(); e(f"s_branch {L('f1')}")
        a.label(L("f1ok")); a.vm=[]
        red_loads()
        zero_acc()
        a.wait(lg="all")
    if w<3 and not OPT["f1"] and OPT["nat"]:
        e(f"v_mov_b32 v20, {sSTEP}"); e(f"v_lshlrev_b32 v21, 4, {vL16}"); e("v_mov_b32 v22, -1")
        if w<2: zero_acc()
        if w==0: paddr(23)
        if w==0 and 0 in Q_SLOT: lload_tile(a,QSEQ[0],SL1,None)
        a.wait(lg="all")
        if OPT["nat"][w]: a.wait(vm=OPT["nat"][w])
        if w==2:
            zero_acc()
            e(f"s_cmp_ge_u32 {sUNIT}, 80"); e(f"s_cbranch_scc1 {L('nored')}")
        red_loads()
    elif w<3 and not OPT["f1"]:
        a.wait(lg="all")
        if w==0 and OPT["rl"]>19: delay(a,OPT['d0']); red_loads()
        e(f"v_mov_b32 v20, {sSTEP}"); e(f"v_lshlrev_b32 v21, 4, {vL16}"); e("v_mov_b32 v22, -1")
        zero_acc()
        if w==1: delay(a,OPT['d1']); red_loads()
        if w==2:
            delay(a,OPT['d1b'])
            e(f"s_cmp_ge_u32 {sUNIT}, 80"); e(f"s_cbranch_scc1 {L('nored')}")
            red_loads()
    if w<3:
        stamp(a,tim,"rlis")
        a.label(L("red"))
        for m in range(4):
            a.wait(vm=f"r{m}")
            if m==3 and not OPT["rtail"]:
                e(f"v_bitop3_b32 v{T1}, v{RL[2]}, v{RL[3]}, {sTAGM} bitop3:0x7e")
                e(f"v_bitop3_b32 v{T0}, v{T0}, v{T1}, 1 bitop3:0xa8")
                e(f"v_cmp_ne_u32 vcc, 0, v{T0}")
            mf(16,12,RL[m],m==0)
            if m==1: e(f"v_bitop3_b32 v{T0}, v{RL[0]}, v{RL[1]}, {sTAGM} bitop3:0x7e")
            if m==3 and OPT["rtail"]:
                e(f"v_bitop3_b32 v{T1}, v{RL[2]}, v{RL[3]}, {sTAGM} bitop3:0x7e")
                e(f"v_bitop3_b32 v{T0}, v{T0}, v{T1}, 1 bitop3:0xa8")
                e(f"v_cmp_ne_u32 vcc, 0, v{T0}")
        e(f"s_cmp_eq_u32 {sSTEP}, {NSEG-1}")
        if not OPT["rtail"]: chk("redo")
        for i in range(4): e(f"v_add_f32_dpp v{16+i}, v{16+i}, v{16+i} row_ror:8 row_mask:0xf bank_mask:0xf")
        e(f"v_cvt_pk_bf16_f32 v{T0}, v16, v17"); e(f"v_cvt_pk_bf16_f32 v{T1}, v18, v19")
        e(f"v_min_u32 v{T0}, {sFE}, v{T0}")
        if OPT["rtail"]: chk("redo")
        e(f"s_cbranch_scc1 {L('last')}")
        e(f"buffer_store_dwordx2 {vr(T0,2)}, {vRS}, {S_WS}, {sMW} offen {st}","rs")
        e(f"buffer_store_byte v20, v21, {S_T}, {sUNIT} offen {st}","fl")
        e(f"buffer_store_dword v22, {vRS}, {S_WS}, {sMZ} offen {st}","mz")
        stamp(a,tim,"red")
        if w==2: a.label(L("nored2"))
        if w==0 and OPT["nat"]:
            if 1 in Q_SLOT: lload_tile(a,QSEQ[1],SL2,None)
        else: prestage()
        slots()
    if w==0 or (w<3 and OPT["m1pre"]):
        if not (w==0 and OPT["nat"]): paddr(23)
        if w==0: delay(a,OPT['d2']); stamp(a,tim,"mis")
        NP=OPT["np"] if w==0 else 1
        PD=T0
        if w==0 and OPT["spec"]:
            PD=T1
            probe(T0,23); dma(a,nd,sMR,None)
            for i in range(NP): delay(a,OPT["d4"]); probe(PD,23)
            e(f"s_waitcnt vmcnt({nd+NP})"); pcmp(T0)
            e(f"s_cbranch_vccz {L('m0hit')}")
        else:
            for i in range(NP): probe(PD,23); delay(a,OPT["d4"]) if i<NP-1 else None
        a.label(L("m0"))
        for u in range(OPT["unr"] if w==0 else 1):
            e(f"s_waitcnt vmcnt({NP-1})"); pcmp(PD)
            if w==0: probe(PD,23)
            if tim in(1,2): e("s_add_u32 s86, s86, 1")
            if OPT["nosync"]: e(f"s_branch {L('m0ok')}")
            else: e(f"s_cbranch_vccz {L('m0ok')}")
        if w: probe(PD,23)
        spin(); e(f"s_branch {L('m0')}")
        a.label(L("m0ok"))
        if w==0: stamp(a,tim,"det")
        a.vm=[]
        dma(a,nd,sMR,"dma")
        if w==0 and OPT["b0"]: e("s_barrier")
        if w==0: a.vm=[]
        if w==0 and OPT["b0w0"]: b0loads()
        if w==0 and not OPT["rot"]: e(f"s_waitcnt vmcnt({len(a.vm)})")
        if w==0 and OPT["spec"]:
            a.label(L("m0hit")); e(f"s_waitcnt vmcnt({NP})")
    if w<3: a.wait(lg="all")
    if w==3:
        delay(a,OPT['d3'])
        prestage()
        if OPT["pub"] and OPT["pubpos"]!="lds":
            e(f"s_add_u32 {sT0}, {sMR}, {sPC}"); e(f"s_sub_u32 {sT0}, {sT0}, {4096*3}")
            e(f"s_add_u32 s10, {sT0}, {OPT['piece']}"); e(f"s_cmp_lt_u32 {sPC}, 10240"); e("s_cselect_b32 s10, s10, 0")
            if "L" not in OPT["ab"]: e(f"buffer_load_dwordx2 v[4:5], {vL8}, {S_T}, {sT0} offen sc1","pl")
            e(f"s_add_u32 {sMP}, {sMP}, {OPT['mpstride']}"); e(f"s_add_u32 s10, {sMP}, {OPT['piece']}"); e(f"s_cmp_lt_u32 {sPC}, 10240"); e("s_cselect_b32 s10, s10, 0")
            if OPT["pubpos"]=="hop":
                a.wait(vm="pl"); e(f"buffer_store_dwordx2 v[4:5], {vL8}, {S_T}, {sMP} offen {OPT['pubfl']}","pub")
        e(f"s_cmp_eq_u32 {sSTEP}, {NSEG-1}"); e(f"s_cbranch_scc1 {L('last')}")
        if OPT["kvchk"]:
            e(f"s_cmp_eq_u32 {sALL}, 1"); e(f"s_cbranch_scc1 {L('kvok')}")
            e(f"s_lshl_b32 {sT0}, {sSTEP}, 7"); e(f"s_add_u32 {sT0}, {sT0}, {KVCNT+256}"); e(f"s_min_u32 {sT0}, {sT0}, {KVCNT+63*128}")
            e(f"s_load_dword s28, s[4:5], {sT0} glc"); e(f"s_load_dword s29, s[4:5], {KVCNT+63*128} glc")
            e("s_waitcnt lgkmcnt(0)")
            e("s_cmp_ge_u32 s29, 32"); e(f"s_cselect_b32 {sALL}, 1, 0")
            e("s_cmp_ge_u32 s28, 32"); e(f"s_cbranch_scc0 {L('kvw')}")
            a.label(L("kvok"))
        slots(); zero_acc()
        if OPT["pub"] and OPT["pubpos"]=="hop": a.wait(lg="all")
        else: a.wait(vm="all",lg="all")
    if OPT["b0"] and w:
        e("s_barrier")
        if w==1 or (w==2 and not OPT["w2late"]): mfetch()
        b0loads()
        if OPT["kxb0"] and w==3:
            e(f"s_mov_b32 m0, {L_KX}"); dma(a,4,sKX,"kx"); e(f"s_mov_b32 m0, {L_KX+4096}"); dma(a,4,sKX2,"kx")
    stamp(a,tim,"pre")
    assert OPT["ab"] or (a.vm[len(a.vm)-len(top_vm):]==top_vm and (top_vm or not a.vm)),(w,a.vm)
    if tim in(4,5) and w==(3 if tim==4 else 0):
        e("s_memtime s[70:71]" if tim==4 else "s_memrealtime s[70:71]"); e("s_waitcnt lgkmcnt(0)")
        e(f"v_writelane_b32 v4, s70, 63") if False else None
        e(f"s_lshl_b32 s72, {sH}, 8"); e(f"s_lshl_b32 s73, {sSTEP}, 2"); e("s_add_u32 s72, s72, s73"); e(f"s_add_u32 s72, s72, {DBG_OFF+0x40000}")
        e(f"v_mov_b32 v{T0}, s70"); e(f"v_lshlrev_b32 v{T1}, 24, {vL16}")
        e(f"buffer_store_dword v{T0}, v{T1}, {S_WS}, s72 offen")
    if tim==3:
        e(f"s_cmp_eq_u32 {sSTEP}, {OPT['at']}"); e(f"s_cbranch_scc0 HZ_{L('top')}")
        n=len(STAMPS); e(f"s_memrealtime s[{54+2*n}:{55+2*n}]"); e(f"s_memtime s[{56+2*n}:{57+2*n}]")
        e("s_waitcnt lgkmcnt(0)")
        e(f"s_lshl_b32 {sT0}, {sH}, 2"); e(f"s_add_u32 {sT0}, {sT0}, {w}"); e(f"s_lshl_b32 {sT0}, {sT0}, 7"); e(f"s_add_u32 {sT0}, {sT0}, {DBG_OFF+65536}")
        e(f"v_mov_b32 v{T1}, 0"); e("s_mov_b64 exec, 1")
        for i in range(len(STAMPS)+2):
            e(f"v_mov_b32 v{T0}, s{54+2*i}"); e(f"buffer_store_dword v{T0}, v{T1}, {S_WS}, {sT0} offen offset:{4*i}")
        e("s_waitcnt vmcnt(0)"); e("s_mov_b64 exec, -1")
    e(f"s_branch {L('pretop')}" if OPT["rot"] and w==0 else f"s_branch HZ_{L('top')}")
    if w<3:
        a.label(L("redo"))
        if tim in(1,2): e("s_add_u32 s85, s85, 1")
        e("s_mov_b64 exec, vcc")
        a.label(L("redo2"))
        red_loads(); spin()
        e("s_waitcnt vmcnt(0)")
        e(f"v_bitop3_b32 v{T0}, v{RL[0]}, v{RL[1]}, {sTAGM} bitop3:0x7e"); e(f"v_bitop3_b32 v{T1}, v{RL[2]}, v{RL[3]}, {sTAGM} bitop3:0x7e")
        e(f"v_bitop3_b32 v{T0}, v{T0}, v{T1}, 1 bitop3:0xa8"); e(f"v_cmp_ne_u32 vcc, 0, v{T0}")
        e(f"s_cbranch_vccnz {L('redo2')}")
        e("s_mov_b64 exec, -1"); e("s_nop 1")
        e(f"s_branch {L('red')}")
        a.label(L("last"))
        e(f"s_mov_b32 {sT0}, {MEMP_OFF+63*10240}")
        e(f"buffer_store_dwordx2 {vr(T0,2)}, {vRS}, {S_WS}, {sT0} offen sc1")
        e(f"s_branch {L('done')}")
    if w==2:
        if OPT["f1"]: a.label(L("nored0")); zero_acc(); e("s_waitcnt lgkmcnt(0)")
        a.label(L("nored"))
        e("s_waitcnt vmcnt(0)")
        e(f"s_cmp_eq_u32 {sSTEP}, {NSEG-1}"); e(f"s_cbranch_scc1 {L('done')}")
        e(f"s_branch {L('nored2')}")
    if w==3 and OPT["kvchk"]:
        a.label(L("kvw"))
        if tim in(1,2): e("s_add_u32 s85, s85, 1")
        e(f"v_mov_b32 v{T0}, 0")
        a.label(L("kvw2"))
        e(f"buffer_load_dword v{T1}, v{T0}, {S_WS}, {sT0} offen sc1"); spin(); e("s_waitcnt vmcnt(0)")
        e(f"v_cmp_gt_u32 vcc, 32, v{T1}"); e(f"s_cbranch_vccnz {L('kvw2')}")
        e(f"s_branch {L('kvok')}")
    if w==3 and OPT["pub"] and OPT["lastlds"]:
        a.label(L("pub62"))
        e(f"v_add_u32 v{T1}, {sPC}, {vL8}"); e(f"ds_read_b64 v[4:5], v{T1} offset:{L_MEM}")
        e(f"s_add_u32 {sT0}, {sMP}, 10240"); e(f"s_add_u32 s10, {sT0}, {OPT['piece']}"); e("s_waitcnt lgkmcnt(0)")
        e(f"buffer_store_dwordx2 v[4:5], {vL8}, {S_T}, {sT0} offen sc1"); e("s_mov_b32 s10, 0")
        e(f"s_branch {L('pub62b')}")
    if w==3:
        a.label(L("last"))
        e("s_waitcnt vmcnt(0)")
        if OPT["pub"] and OPT["pubpos"] not in("hop","lds") and not OPT["lastlds"]: e(f"buffer_store_dwordx2 v[4:5], {vL8}, {S_T}, {sMP} offen sc1")
        e(f"s_branch {L('done')}")
    if w in(1,2) and not OPT["m1pre"]:
        a.label(L("mr"))
        spin("s86")
        mfetch(); e(f"s_waitcnt vmcnt({nd})")
        pcmp(T1); e(f"s_cbranch_vccnz {L('mr')}")
        e("s_waitcnt vmcnt(0)")
        e(f"s_branch {L('mok')}")
    a.label(L("done"))
    a.vm=[]; a.lg=[]
    e("s_waitcnt vmcnt(0) lgkmcnt(0)")
    if w==3 and OPT["wb"]:
        e(f"s_cmp_eq_u32 {sH}, 0"); e(f"s_cbranch_scc0 {L('nowb')}"); e("buffer_wbl2 sc1"); e("s_waitcnt vmcnt(0)"); a.label(L("nowb"))
    if tim in(1,2):
        e("s_memtime s[70:71]"); e("s_waitcnt lgkmcnt(0)"); e("s_sub_u32 s83, s70, s74")
        for i in range(11): e(f"v_mov_b32 v{12+i}, s{76+i}")
        e(f"s_lshl_b32 {sT0}, {sH}, 2"); e(f"s_add_u32 {sT0}, {sT0}, {w}"); e(f"s_lshl_b32 {sT0}, {sT0}, 6"); e(f"s_add_u32 {sT0}, {sT0}, {DBG_OFF}")
        e("v_mov_b32 v10, 0"); e("s_mov_b64 exec, 1")
        e("s_memrealtime s[68:69]"); e("s_waitcnt lgkmcnt(0)")
        for i,r in enumerate((90,92,94,66,68)): e(f"v_mov_b32 v{23+i}, s{r}")
        for i in range(4): e(f"buffer_store_dwordx4 {vr(12+4*i,4)}, v10, {S_WS}, {sT0} offen offset:{16*i}")
        if OPT["dbgout"] and w==0:
            for i in range(5):
                e(f"v_mov_b32 v10, {16+4*i}"); e(f"global_atomic_umax v10, v{23+i}, {sDBG}")
            e("v_mov_b32 v10, 36"); e(f"global_atomic_umax v10, v19, {sDBG}")
        e("s_waitcnt vmcnt(0)")
    e("s_endpgm")
```

```python
from asmlib import *
from layout import *
import math

L_MEM=0; L_X=10240; L_KX=14336; L_SEL=22528; L_ROLE=23552; L_W=24576
S_WS="s[4:7]"; S_T="s[8:11]"
sH="s12"; sSTEP="s14"; sMR="s15"; sMW="s16"; sMZ="s17"; sTAG="s18"; sTAGM="s19"
sKX="s20"; sVX="s21"; sPC="s22"; sMP="s23"; sSW="s24"; sP0="s25"; sP1="s26"; sP2="s27"
sPR=["s28","s29","s30","s31"]; sCNT="s32"; sC="s33"; sFE="s34"; sKX2="s35"; sSW2="s36"; sSW3="s37"; sSW4="s38"
sPLO="s40"; sPHI="s41"; sT0="s42"; sT1="s43"; sEX="s[44:45]"; sUNIT="s46"; sKXN="s47"; sVXN="s48"; sMF="s49"; sPAT="s39"; sALL="s31"; sMU="s53"; sF1W="s88"; sF1R="s89"
sCC="s[96:97]"; sONE="s[98:99]"; sHALF="s[100:101]"; sDBG="s[50:51]"; sXCC="s52"; sMODE="s87"
vL16="v0"; vA="v1"; vIDX="v2"; vW="v3"; vRL="v4"; vRS="v5"; vXW="v6"; vXR="v7"; vOW="v8"; vL8="v9"
T0=10; T1=11
AB=[12,16,20,24]; QA=28; KA=32; VA=36; SL1=40; SL2=48; SL3=56

QSEQ=[]; Q_SLOT={}; O_SLOT={}; SLOT={}; TG={}; TL={}; TR={}; GPOS=[]
QS={0:{0:(SL1,"L"),1:(SL2,"L"),25:(SL3,"G"),29:(SL1,"G"),33:(SL2,"G"),31:(SL3,"L"),37:(SL3,"L"),43:(SL3,"L"),35:(SL1,"L"),41:(SL1,"L"),47:(SL1,"L"),39:(SL2,"L")},
    1:{16:(SL3,"G"),19:(SL1,"G"),22:(SL2,"G"),23:(SL3,"L"),29:(SL3,"L"),35:(SL3,"L"),41:(SL3,"L"),25:(SL1,"L"),31:(SL1,"L"),37:(SL1,"L"),27:(SL2,"L"),33:(SL2,"L")},
    2:{12:(SL3,"G"),16:(SL1,"G"),20:(SL2,"G"),18:(SL3,"L"),24:(SL3,"L"),30:(SL3,"L"),36:(SL3,"L"),22:(SL1,"L"),28:(SL1,"L"),34:(SL1,"L"),26:(SL2,"L"),32:(SL2,"L")},
    3:{14:(SL3,"G"),18:(SL1,"G"),22:(SL2,"G"),20:(SL3,"L"),28:(SL3,"L"),36:(SL3,"L"),44:(SL3,"L"),24:(SL1,"L"),32:(SL1,"L"),40:(SL1,"L"),30:(SL2,"L"),38:(SL2,"L")},
    4:{0:(SL1,"L"),1:(SL2,"L"),12:(SL3,"G"),27:(SL1,"G"),31:(SL2,"G"),18:(SL3,"L"),24:(SL3,"L"),30:(SL3,"L"),33:(SL1,"L"),39:(SL1,"L"),37:(SL2,"L"),43:(SL2,"L")},
    5:{0:(SL1,"L"),1:(SL2,"L"),10:(SL3,"G"),24:(SL1,"G"),28:(SL2,"G"),16:(SL3,"L"),22:(SL3,"L"),30:(SL3,"L"),38:(SL3,"L"),32:(SL1,"L"),42:(SL1,"L"),35:(SL2,"L")},
    6:{0:(SL1,"L"),1:(SL2,"L"),14:(SL3,"G"),25:(SL1,"G"),29:(SL2,"G"),20:(SL3,"L"),27:(SL3,"L"),33:(SL3,"L"),40:(SL3,"L"),31:(SL1,"L"),37:(SL1,"L"),35:(SL2,"L")}}
OS={0:{0:(28,"G"),1:(SL1,"G"),9:(SL2,"G"),19:(SL1,"G"),2:(SL3,"L"),5:(SL3,"L"),8:(SL3,"L"),11:(SL3,"L"),14:(SL3,"L"),17:(SL3,"L"),12:(SL2,"L"),15:(SL2,"L")},
    1:{0:(28,"G"),1:(SL1,"G"),11:(SL2,"G"),19:(SL1,"G"),2:(SL3,"L"),6:(SL3,"L"),10:(SL3,"L"),14:(SL3,"L"),18:(SL3,"L"),5:(SL1,"L"),15:(SL2,"L"),17:(SL3,"X")},
    2:{0:(28,"G"),1:(SL1,"G"),9:(SL2,"G"),19:(SL1,"G"),2:(SL3,"L"),6:(SL3,"L"),10:(SL3,"L"),14:(SL3,"L"),18:(SL3,"L"),5:(SL1,"L"),13:(SL2,"L"),17:(SL2,"L")},
    3:{0:(28,"G"),1:(SL1,"G"),11:(SL2,"G"),19:(SL1,"G"),2:(SL3,"L"),6:(SL3,"L"),10:(SL3,"L"),13:(SL3,"L"),16:(SL3,"L"),5:(SL1,"L"),15:(SL2,"L"),18:(SL2,"L")},
    4:{0:(28,"G"),1:(SL1,"G"),18:(SL2,"G"),19:(SL1,"G"),2:(SL3,"L"),6:(SL3,"L"),10:(SL3,"L"),14:(SL3,"L"),3:(SL2,"L"),7:(SL2,"L"),5:(SL1,"L"),9:(SL1,"L")}}
def setup_tiles():
    NV=OPT['nv']
    QSEQ[:]=[(m,k) for k in range(NV) for m in "qkv"]+[(m,k) for k in range(NV,18) for m in "qk"]+[("q",18),("q",19),("k",18),("k",19)]
    for d in (Q_SLOT,O_SLOT,SLOT,TG,TL,TR): d.clear()
    Q_SLOT.update(QS[OPT["qs"]]); O_SLOT.update(OS[OPT["os"]])
    GPOS[:]=sorted(p for p,v in Q_SLOT.items() if v[1]=="G")
    SLOT.update({QSEQ[p]:v for p,v in Q_SLOT.items()}); SLOT.update({("o",n):v for n,v in O_SLOT.items()})
    for key in [(m,k) for m in "qkvo" for k in range(20)]:
        kind=SLOT.get(key,(0,"R"))[1]
        if kind=="G": TG[key]=len(TG)
        elif kind=="L": TL[key]=len(TL)
        else: i=len(TR); TR[key]=("a",8*i) if i<32 else ("v",64+8*(i-32))
    assert len(TR)==56 and len(TG)==7 and len(TL)==17
def use_map(w): pass

def sw_ref(idx):
    return [sSW,sSW2,sSW3,sSW4][idx//2], (idx&1)*2048

def gload_tile(a,key,slot,tag):
    if "G" in OPT["ab"] or ("O" in OPT["ab"] and tag in("go9","go19")): return
    s,imm=sw_ref(TG[key])
    fl="" if tag in OPT["l1"] else OPT["gfl"]
    a.e(f"buffer_load_dwordx4 {vr(slot,4)}, {vL16}, {S_WS}, {s} offen offset:{imm} {fl}",tag)
    a.e(f"buffer_load_dwordx4 {vr(slot+4,4)}, {vL16}, {S_WS}, {s} offen offset:{imm+1024} {fl}",tag)
def gload_half(a,key,slot,tag,half):
    if "G" in OPT["ab"] or ("O" in OPT["ab"] and tag in("go9","go19")): return
    s,imm=sw_ref(TG[key])
    a.e(f"buffer_load_dwordx4 {vr(slot+4*half,4)}, {vL16}, {S_WS}, {s} offen offset:{imm+1024*half}",tag)
def lload_tile(a,key,slot,tag):
    o=TL[key]*2048
    a.e(f"ds_read_b128 {vr(slot,4)}, {vW} offset:{o}",tag)
    a.e(f"ds_read_b128 {vr(slot+4,4)}, {vW} offset:{o+1024}",tag)
def sm(a,acc,A,key,slot=None):
    if key in TR: k,b=TR[key]
    else: k,b="v",slot
    a.e(f"v_smfmac_f32_16x16x64_bf16 {vr(acc,4)}, {vr(A,4)}, {vr(b,8,k)}, {vIDX}")
def zero4(a,r):
    a.e(f"v_mov_b64 {vr(r,2)}, 0"); a.e(f"v_mov_b64 {vr(r+2,2)}, 0")

def chain_init(a, sW):
    setup_tiles()
    e=a.e
    e("s_load_dwordx2 s[54:55], s[0:1], %d"%A_WQ); e("s_load_dwordx2 s[56:57], s[0:1], %d"%A_WK)
    e("s_load_dwordx2 s[58:59], s[0:1], %d"%A_WV); e("s_load_dwordx2 s[60:61], s[0:1], %d"%A_WO)
    e("s_load_dwordx2 s[62:63], s[0:1], %d"%A_MEM0)
    e(f"s_mov_b32 {sPLO}, 0x05040100"); e(f"s_mov_b32 {sPHI}, 0x07060302")
    e("v_mov_b32 v15, v0"); e("v_lshlrev_b32 v0, 4, v0"); e("s_mov_b32 s11, 0x20000")
    def lanes():
        e("v_bfe_u32 v12, v15, 1, 3"); e("v_lshlrev_b32 v1, 6, v12"); e("v_lshrrev_b32 v12, 4, v15"); e("v_lshl_add_u32 v1, v12, 4, v1")
        e("v_and_b32 v12, 1, v15")
        e("v_mov_b32 v13, 0xaaaa"); e("v_mul_u32_u24 v2, v12, v13"); e("v_add_u32 v2, 0x4444, v2")
        e(f"s_lshl_b32 {sUNIT}, {sW}, 5"); e(f"s_add_u32 {sUNIT}, {sUNIT}, {sH}"); e(f"s_lshl_b32 {sT0}, {sUNIT}, 7")
        e("v_lshrrev_b32 v12, 3, v15"); e("v_mul_u32_u24 v4, 10240, v12"); e("v_and_b32 v12, 7, v15"); e("v_lshl_add_u32 v4, v12, 4, v4")
        e(f"v_add_u32 v4, {sT0}, v4")
        e(f"s_and_b32 {sT1}, {sUNIT}, 1"); e(f"s_lshl_b32 {sT1}, {sT1}, 2"); e(f"s_bfe_u32 {sMU}, {sUNIT}, 0x20001"); e(f"s_or_b32 {sT1}, {sT1}, {sMU}")
        e(f"s_andn2_b32 {sMU}, {sUNIT}, 7"); e(f"s_or_b32 {sT1}, {sT1}, {sMU}"); e(f"s_cmp_lt_u32 {sUNIT}, 64"); e(f"s_cselect_b32 {sMU}, {sT1}, {sUNIT}")
        e(f"s_lshl_b32 {sT0}, {sMU}, 7")
        e("v_lshrrev_b32 v12, 4, v15"); e("v_lshlrev_b32 v5, 6, v12"); e("v_and_b32 v12, 15, v15"); e("v_lshl_add_u32 v5, v12, 3, v5")
        e(f"v_add_u32 v5, {sT0}, v5"); e("v_and_b32 v12, 0x28, v15"); e("v_cmp_eq_u32 vcc, 0, v12"); e("v_mov_b32 v13, 0x7ff00000")
        e("v_cndmask_b32 v5, v13, v5, vcc")
        if OPT["probe"]=="c": e(f"s_lshl_b32 {sT1}, {sUNIT}, 3"); e(f"s_add_u32 {sT1}, {sT1}, 10240"); e(f"v_writelane_b32 v5, {sT1}, 32")
        e("v_lshrrev_b32 v12, 5, v15"); e("v_lshlrev_b32 v12, 2, v12"); e("v_and_b32 v13, 15, v15"); e("v_xor_b32 v12, v12, v13")
        e("v_lshlrev_b32 v6, 3, v12"); e("v_lshrrev_b32 v12, 4, v15"); e("v_lshl_add_u32 v6, v12, 7, v6")
        e(f"s_lshl_b32 {sT0}, {sW}, 10"); e(f"s_add_u32 {sT0}, {sT0}, {L_X}"); e(f"v_add_u32 v6, {sT0}, v6")
        e("v_bfe_u32 v12, v15, 3, 1"); e("v_lshlrev_b32 v7, 3, v12"); e("v_lshrrev_b32 v12, 4, v15"); e("v_lshl_add_u32 v7, v12, 1, v7")
        e("v_bfe_u32 v12, v15, 2, 1"); e("v_add_u32 v7, v7, v12"); e("v_bfe_u32 v12, v15, 1, 1"); e("v_lshlrev_b32 v12, 2, v12"); e("v_xor_b32 v7, v7, v12")
        e("v_lshlrev_b32 v7, 3, v7"); e("v_and_b32 v12, 3, v15"); e("v_lshl_add_u32 v7, v12, 7, v7"); e(f"v_add_u32 v7, {L_X}, v7")
        e("v_bfe_u32 v12, v15, 2, 2"); e("v_lshlrev_b32 v8, 7, v12"); e("v_and_b32 v12, 1, v15"); e("v_lshl_add_u32 v8, v12, 6, v8")
        e("v_lshrrev_b32 v12, 4, v15"); e("v_lshl_add_u32 v8, v12, 4, v8"); e(f"s_lshl_b32 {sT0}, {sW}, 9"); e(f"v_add_u32 v8, {sT0}, v8")
        if OPT["owx"]==2: e("v_and_b32 v12, 2, v15"); e("v_lshl_add_u32 v8, v12, 17, v8")
        if not OPT["owx"]: e(f"v_and_b32 v13, 0x1ff, v8"); e(f"v_add_u32 v13, {L_ROLE+512}, v13"); e("v_and_b32 v12, 2, v15"); e("v_cmp_eq_u32 vcc, 0, v12"); e("v_cndmask_b32 v8, v13, v8, vcc")
        e("v_lshlrev_b32 v9, 3, v15")
    def waddr():
        e("v_lshrrev_b32 v4, 4, v15"); e("v_lshlrev_b32 v4, 2, v4")
        e("v_and_b32 v5, 15, v15"); e("v_lshlrev_b32 v5, 2, v5")
        e(f"s_lshl_b32 {sT0}, {sH}, 8"); e(f"s_lshl_b32 {sT1}, {sW}, 6"); e(f"s_add_u32 {sT0}, {sT0}, {sT1}")
        e("v_lshl_add_u32 v1, v4, 13, v5"); e(f"v_add_u32 v1, {sT0}, v1")
        e("v_mul_u32_u24 v2, 1280, v4"); e("v_add_u32 v2, v2, v5")
        e(f"s_mul_i32 {sT0}, {sH}, {128*1280}"); e(f"s_add_u32 {sT0}, {sT0}, {sT1}"); e(f"v_add_u32 v2, {sT0}, v2")
        e("v_add_u32 v14, v2, v5"); e(f"v_add_u32 v14, {sT1}, v14")
        if "X" in OPT["ab"]:
            e("v_add_u32 v1, v1, v5"); e(f"s_and_b32 {sT0}, {sW}, 1"); e(f"s_mul_i32 {sT0}, {sT0}, {8192-64}"); e(f"v_add_u32 v1, {sT0}, v1")
            e(f"s_and_b32 {sT0}, {sW}, 1"); e(f"s_mul_i32 {sT0}, {sT0}, 1280"); e(f"v_add_u32 v14, {sT0}, v14"); e(f"v_add_u32 v2, {sT0}, v2")
        if OPT["stg"]:
            e("v_lshrrev_b32 v12, 4, v15"); e(f"s_lshl_b32 {sT0}, {sW}, 4"); e(f"v_add_u32 v1, {sT0}, v12"); e("v_lshlrev_b32 v1, 13, v1")
            e("v_and_b32 v13, 15, v15"); e("v_lshl_add_u32 v1, v13, 4, v1"); e(f"s_lshl_b32 {sT0}, {sH}, 8"); e(f"v_add_u32 v1, {sT0}, v1")
            e("v_lshlrev_b32 v13, 10, v12"); e("v_add_u32 v13, v13, v5"); e(f"v_add_u32 v13, {sT1}, v13")
        e(f"s_mul_i32 {sT0}, {sW}, {17*2048}"); e(f"s_add_u32 {sT0}, {sT0}, {L_W}"); e(f"v_add_u32 v3, {sT0}, v0")
        e(f"s_lshl_b32 {sT0}, {sH}, 2"); e(f"s_add_u32 {sT0}, {sT0}, {sW}"); e(f"s_lshl_b32 {sT0}, {sT0}, 14")
        e(f"s_add_u32 {sSW}, {sT0}, {SW_OFF}"); e(f"s_add_u32 {sSW2}, {sSW}, 4096"); e(f"s_add_u32 {sSW3}, {sSW}, 8192"); e(f"s_add_u32 {sSW4}, {sSW}, 12288")
        e("s_mov_b32 s10, %d"%(640*8192)); e("s_mov_b32 s11, 0x20000")
        if OPT["stg"]: e(f"s_lshl_b32 {sT1}, {sW}, 12")
    groups=[(m,k) for m in "qkv" for k in range(10)]+[("o",j,ko) for j in range(5) for ko in range(2)]
    LB=[16,32,48,240][:OPT["idepth"]+1]
    lbuf=lambda i: LB[i%len(LB)] if (len(LB)<4 or i<36) else LB[(0,1,2,0)[i-36]]
    base={"q":54,"k":56,"v":58,"o":60}
    cur=[None]
    STG=OPT["stg"]
    if STG:
        groups=groups[:30]+[("o2",c,ko) for c in range(2) for ko in range(4)]+[("o",4,ko) for ko in range(2)]
        base["o2"]=60
        assert all(TL[k]>=9 for k in TL if k[0]=="o") and all(TL[k]<9 for k in TL if k[0]!="o")
    NS=OPT["ns"]; SD=OPT["sd"]
    slot=lambda i: L_W+(i%NS)*17*2048+9*2048 if i%NS<4 else 0
    def issue(i):
        g=groups[i]; lb=lbuf(i)
        if cur[0]!=g[0]:
            e(f"s_mov_b32 s8, s{base[g[0]]}"); e(f"s_mov_b32 s9, s{base[g[0]]+1}"); cur[0]=g[0]
        if STG and i<30:
            for j in range(4):
                e(f"s_add_u32 m0, {sT1}, {slot(i)+1024*j}"); e(f"s_mov_b32 {sT0}, {(64*g[1]+4*j)*8192}")
                e(f"buffer_load_dwordx4 v1, {S_T}, {sT0} offen {OPT['wfl']} lds",f"w{i}")
            return
        if g[0]=="o2":
            for j in range(4):
                for x in range(2):
                    row=32*g[2]+16*(j>>1)+2*(j&1)+x
                    e(f"s_mov_b32 {sT0}, {row*1280+512*g[1]}")
                    e(f"buffer_load_dwordx2 {vr(lb+4*j+2*x,2)}, v14, {S_T}, {sT0} offen",f"w{i}")
            return
        for j in range(8):
            for x in range(2):
                row=64*g[-1]+32*(j>>2)+16*((j>>1)&1)+2*(j&1)+x
                if g[0]!="o": off=row*8192; vo="v1"
                elif g[1]<4: off=row*1280+512*(g[1]>>1)+4*(g[1]&1); vo="v14"
                else: off=row*1280+1024; vo="v2"
                e(f"s_mov_b32 {sT0}, {off}")
                e(f"buffer_load_dword v{lb+2*j+x}, {vo}, {S_T}, {sT0} offen",f"w{i}")
    tmp=[4,8]
    def put(key,lb,st=2,dx=1):
        src=lambda R: f"v{lb+st*(R>>1)+dx}, v{lb+st*(R>>1)}, {sPHI if R&1 else sPLO}"
        if key in TR and TR[key][0]=="v":
            for R in range(8): e(f"v_perm_b32 v{TR[key][1]+R}, {src(R)}")
            return
        for half in range(2):
            t=tmp[half]
            for R in range(4): e(f"v_perm_b32 v{t+R}, {src(4*half+R)}")
            if key in TR:
                for R in range(4): e(f"v_accvgpr_write_b32 a{TR[key][1]+4*half+R}, v{t+R}")
            elif key in TL:
                e(f"ds_write_b128 v3, {vr(t,4)} offset:{TL[key]*2048+half*1024}")
            else:
                sg,imm=sw_ref(TG[key])
                e(f"buffer_store_dwordx4 {vr(t,4)}, v0, {S_WS}, {sg} offen offset:{imm+half*1024} {OPT['swfl']}","st")
    def process(i):
        g=groups[i]; lb=lbuf(i)
        a.wait(vm=f"w{i}")
        if STG and i<30:
            lb=16
            e("s_barrier")
            if i+SD<30: issue(i+SD)
            elif i==30-SD: issue(30)
            elif i==31-SD: issue(31)
            e(f"v_add_u32 v12, {slot(i)}, v13")
            for j in range(8):
                row=32*(j>>2)+16*((j>>1)&1)+2*(j&1)
                e(f"ds_read2st64_b32 {vr(lb+2*j,2)}, v12 offset0:{row} offset1:{row+1}")
            e("s_waitcnt lgkmcnt(0)"); a.lg=[]
            if i==29: e("s_barrier")
        elif OPT["lock"] and not STG: e("s_barrier")
        for u in range(2):
            if g[0]=="o2": put(("o",8*g[1]+4*u+g[2]),lb+u,4,2)
            else: put((g[0],2*g[1]+u) if g[0]!="o" else ("o",4*g[1]+2*g[2]+u),lb+8*u)
    waddr(); e("s_waitcnt lgkmcnt(0)")
    issue(0); issue(1); q0=list(a.vm)
    lanes()
    e(f"s_mul_i32 {sT0}, {sH}, 10240"); e(f"s_add_u32 {sT0}, {sT0}, {P_OFF}"); e(f"s_lshl_b32 {sT1}, {sW}, 10")
    e(f"s_add_u32 {sP0}, {sT0}, {sT1}"); e(f"s_add_u32 {sP1}, {sP0}, 4096"); e(f"s_lshl_b32 {sT1}, {sW}, 9"); e(f"s_add_u32 {sP2}, {sT0}, {sT1}"); e(f"s_add_u32 {sP2}, {sP2}, 8192")
    for m in range(4): e(f"s_mov_b32 {sPR[m]}, {P_OFF+m*81920}")
    e(f"s_lshl_b32 {sT0}, {sH}, 13"); e(f"s_add_u32 {sKX}, {sT0}, {XK_OFF}"); e(f"s_add_u32 {sKX2}, {sKX}, 4096")
    e(f"s_lshl_b32 {sT1}, {sW}, 11"); e(f"s_add_u32 {sVX}, {sT0}, {XV_OFF}"); e(f"s_add_u32 {sVXN}, {sVX}, {32*8192}"); e(f"s_add_u32 {sVX}, {sVX}, {sT1}")
    e(f"s_add_u32 {sKXN}, {sKX}, {32*8192}")
    e(f"s_mul_i32 {sPC}, {sH}, {OPT['piece']}"); e(f"s_add_u32 {sMP}, {sPC}, {MEMP_OFF-10240}")
    c=(128**-0.5)*math.log2(math.e)
    import struct
    e(f"s_mov_b32 {sC}, 0x%08x"%struct.unpack("<I",struct.pack("<f",c))[0])
    e(f"s_mov_b32 s96, {sC}"); e(f"s_mov_b32 s97, {sC}")
    e("s_mov_b32 s98, 0x3f803f80"); e("s_mov_b32 s99, 0x3f803f80"); e("s_mov_b32 s100, 0x3f003f00"); e("s_mov_b32 s101, 0x3f003f00")
    e(f"s_lshl_b32 {sF1W}, {sW}, 7"); e(f"s_add_u32 {sF1W}, {sF1W}, {sH}"); e(f"s_add_u32 {sF1W}, {sF1W}, {F1_OFF}")
    e(f"s_cmp_lt_u32 {sW}, 2"); e(f"s_cselect_b32 {sT0}, 3, 2"); e(f"s_lshr_b32 {sT0}, {sH}, {sT0}"); e(f"s_and_b32 {sT0}, {sT0}, 3")
    e(f"s_lshl_b32 {sT1}, {sW}, 2"); e(f"s_add_u32 {sT0}, {sT0}, {sT1}"); e(f"s_lshl_b32 {sT0}, {sT0}, 7"); e(f"s_add_u32 {sF1R}, {sT0}, {F1_OFF}")
    e(f"s_mov_b32 {sFE}, 0xfffffffe")
    e("s_mov_b32 s44, 0x33333333"); e("s_mov_b32 s45, 0x33333333")
    e(f"s_lshl_b32 {sT0}, {sW}, 12"); e(f"s_add_u32 {sMR}, {sT0}, {M_OFF}")
    if OPT["probe"]=="b":
        e(f"s_and_b32 {sT0}, {sH}, {OPT['nrep']-1}"); e(f"s_lshl_b32 {sT0}, {sT0}, 8"); e(f"s_lshl_b32 {sT1}, {sW}, 5"); e(f"s_add_u32 {sT0}, {sT0}, {sT1}")
        e(f"s_add_u32 {sMF}, {sT0}, {FL_OFF}"); e(f"s_mov_b32 {sPAT}, 0")
    else:
        e(f"s_lshl_b32 {sT0}, {sW}, 8"); e(f"s_add_u32 {sMF}, {sT0}, {M_OFF+10240}")
    e(f"s_mov_b32 {sMW}, {M_OFF+16384}"); e(f"s_mov_b32 {sMZ}, {M_OFF+49152}")
    e(f"s_mov_b32 {sSTEP}, 0"); e(f"s_mov_b32 {sTAG}, 1"); e(f"s_mov_b32 {sTAGM}, -1"); e(f"s_mov_b32 {sCNT}, 0")
    e("v_mov_b64 v[56:57], 0"); e("v_mov_b64 v[58:59], 0"); e("v_mov_b64 v[60:61], -1")
    e(f"buffer_store_dwordx4 v[56:59], {vL16}, {S_WS}, {sP0} offen sc1"); e(f"buffer_store_dwordx4 v[56:59], {vL16}, {S_WS}, {sP1} offen sc1")
    e(f"buffer_store_dwordx2 v[56:57], {vL8}, {S_WS}, {sP2} offen sc1")
    e("s_mov_b64 exec, 1")
    for c in range(3): e(f"buffer_store_byte v56, v56, {S_WS}, {sF1W} offen offset:{512*c} sc1")
    e("s_mov_b64 exec, -1")
    e(f"s_cmp_ge_u32 {sUNIT}, 80"); e("s_cbranch_scc1 C_noM")
    e("s_mov_b32 s8, s62"); e("s_mov_b32 s9, s63"); e("s_mov_b32 s10, 10240")
    e(f"s_and_b32 {sT0}, {sMU}, 3"); e(f"s_mul_i32 {sT0}, {sT0}, 2560"); e(f"s_lshr_b32 {sT1}, {sMU}, 2"); e(f"s_lshl_b32 {sT1}, {sT1}, 6"); e(f"s_add_u32 {sT0}, {sT0}, {sT1}")
    e("v_bfe_u32 v12, v15, 4, 1"); e("v_mul_u32_u24 v12, 1280, v12"); e("v_and_b32 v13, 7, v15"); e("v_lshl_add_u32 v12, v13, 3, v12")
    e(f"buffer_load_dwordx2 v[62:63], v12, {S_T}, {sT0} offen")
    for k in range(1,4):
        e(f"s_mov_b32 {sT1}, {M_OFF+16384*k}"); e(f"buffer_store_dwordx2 v[60:61], {vRS}, {S_WS}, {sT1} offen sc1")
    e("s_waitcnt vmcnt(0)")
    e(f"v_min_u32 v62, {sFE}, v62")
    e(f"s_mov_b32 {sT1}, {M_OFF}"); e(f"buffer_store_dwordx2 v[62:63], {vRS}, {S_WS}, {sT1} offen sc1")
    a.label("C_noM")
    e("s_mov_b32 s8, s4"); e("s_mov_b32 s9, s5"); e("s_mov_b32 s10, 0")
    if OPT["probe"]=="b":
        e(f"s_cmp_eq_u32 {sW}, 3"); e("s_cbranch_scc1 C_noF")
        e(f"s_add_u32 s8, s4, {FL_OFF}"); e("s_addc_u32 s9, s5, 0"); e(f"s_mov_b32 s10, {OPT['nrep']*256}")
        e("v_lshlrev_b32 v12, 4, v0"); e("v_mov_b32 v13, 0")
        e(f"buffer_store_byte v13, v12, {S_T}, {sUNIT} offen sc1")
        a.label("C_noF")

    e(f"s_cmp_eq_u32 {sW}, 3"); e("s_cbranch_scc0 C_noZ")
    e(f"s_lshl_b32 {sT0}, {sH}, 10"); e(f"buffer_store_dwordx4 v[56:59], v0, {S_WS}, {sT0} offen sc1")
    e("s_mov_b64 exec, 1"); e(f"s_lshl_b32 {sT0}, 1, {sXCC}"); e("v_mov_b32 v12, 8"); e(f"v_mov_b32 v13, {sT0}")
    e(f"global_atomic_or v12, v13, {sDBG}"); e("s_mov_b64 exec, -1")
    a.label("C_noZ"); a.vm=[]
    e("v_and_b32 v12, 15, v15"); e("v_and_b32 v52, 0xff, v0")
    for tab,neg in ((0,0),):
        for r,ent in enumerate([((0,2),(1,3)),((4,6),(5,7)),((2,None),(3,None)),((6,None),(7,None))]):
            e(f"v_mov_b32 v{48+r}, 0")
            for half,(pos,ng) in enumerate(ent):
                for row,val in ((pos,0x3f80),(ng if neg else None,0xbf80)):
                    if row is None: continue
                    e(f"v_mov_b32 v13, 0x{val<<(16*half):x}"); e(f"v_cmp_eq_u32 vcc, {row}, v12"); e(f"v_cndmask_b32 v{48+r}, v{48+r}, v13, vcc")
        e(f"ds_write_b128 v52, v[48:51] offset:{L_SEL+tab}")
        e("s_waitcnt lgkmcnt(0)")
    waddr(); a.vm=q0
    DD=OPT["idepth"]
    e("s_mov_b32 s8, s54"); e("s_mov_b32 s9, s55")
    if STG:
        for i in range(2,SD): issue(i)
        lbuf=lambda i: (32,48,16)[(i-30)%3]
    else:
        for i in range(2,DD): issue(i)
    for i in range(len(groups)):
        if STG:
            if 32<=i+2<len(groups): issue(i+2)
        elif i+DD<len(groups) and not (DD==3 and i==36): issue(i+DD)
        process(i)
        if DD==3 and i==36 and not STG: issue(39)
        if i==(2 if not STG else max(SD,3)-1):
            if not OPT["lock"]: e("s_barrier")
            e(f"s_cmp_eq_u32 {sW}, 3"); e("s_cbranch_scc0 C_noA")
            q=list(a.vm)
            e("s_mov_b64 exec, 1"); e("v_mov_b32 v4, 4"); e("v_mov_b32 v5, 1"); e(f"global_atomic_add v4, v5, {sDBG}"); e("s_mov_b64 exec, -1")
            a.label("C_noA"); a.vm=q
    a.wait(vm="all",lg="all")
    lanes()
    e("s_mov_b32 s8, s4"); e("s_mov_b32 s9, s5"); e("s_mov_b32 s10, 0")
    e(f"s_cmp_eq_u32 {sW}, 3"); e("s_cbranch_scc1 C_noF2")
    e(f"s_add_u32 s8, s4, {FL_OFF}"); e("s_addc_u32 s9, s5, 0"); e(f"s_mov_b32 s10, {OPT['nrep']*256}")
    a.label("C_noF2")

STAMPS=[]
OPT={"kvstride":32*8192,"d0":25,"d1":70,"d1b":90,"m1pos":0,"d2":0,"d3":0,"pf":1,"nosync":0,"stamps":[],"lock":1,"rl":20,"pub":1,"pipe":2,"probe":"b","owx":2,"fine":"","b1c":35,"g0p":0,"blind":0,"nanchk":1,"ns":4,"sd":3,"wfl":"","stg":1,"b4p":4,"nv":12,"rtail":0,"half":1,"kxb0":0,"pubp":6,"qs":0,"os":0,"b0w0":1,"pfw":3,"w2late":1,"b0":3,"rot":1,"al":(6,0),"gate":0,"swfl":"","wb":1,"warm":1,"nat":(None,"p2","p2"),"dbgout":0,"lastlds":2,"f1":0,"q1":16,"spec":0,"kvfl":"sc1","piece":320,"m1in":0,"pairw":0,"b4":1,"ststag":0,"g9in":0,"g1pv":1,"kxout":(11,1),"b1b":13,"g19":(2,4),"idepth":2,"prep":(13,14,15,17),"m1pre":0,"gq":(0,1),"stag":1,"kxp":(7,1),"pfp":13,"go1p":"exp","g18":(10,11),"unr":4,"goearly":1,"mpstride":10240,"pubfl":"sc1","pubpos":"qk","pfsplit":0,"kvmask":7,"kvchk":1,"pfwait":0,"pffl":"sc1","nrep":2,"np":5,"l1":(),"gfl":"","prepos":"early","percu":0,"at":40,"d4":0,"ab":"","pfpos":"qk"}
def delay(a,n):
    while n>0:
        k=min(n,16); a.e(f"s_nop {k-1}"); n-=k
def stamp(a,tim,name):
    if OPT["fine"] and not name.startswith(OPT["fine"]) and name!="b1": return
    if not OPT["fine"] and name[0]=="_": return
    if name not in STAMPS: STAMPS.append(name)
    if tim==3:
        i=STAMPS.index(name); assert i<19; a.e(f"s_memtime s[{54+2*i}:{55+2*i}]")
        if OPT["fine"]: a.lg+= [None,None]
        return
    if tim!=1 or name not in OPT["stamps"]: return
    i=OPT["stamps"].index(name)
    a.e("s_memtime s[70:71]"); a.e("s_waitcnt lgkmcnt(0)"); a.lg=[]
    a.e("s_sub_u32 s72, s70, s73"); a.e("s_mov_b32 s73, s70"); a.e(f"s_add_u32 s{76+i}, s{76+i}, s72")

def dma(a,n,soff,tag,first=0):
    fl=OPT["kvfl"] if tag=="kx" else "sc1"
    for i in range(first,first+n):
        a.e(f"buffer_load_dwordx4 {vL16}, {S_WS}, {soff} offen offset:{1024*i} {fl} lds",tag)

def chain_wave(a, w, st, pfx, tim=0):
    use_map(w)
    e=a.e; L=lambda s: f"{pfx}{w}_{s}"
    nd=[4,4,2,0][w]
    def chk(l):
        if OPT["nosync"] or (OPT["blind"] and l=="mr"): e("s_nop 0")
        else: e(f"s_cbranch_vccnz {L(l)}")
    def spin(c=None):
        if tim in(1,2) and c: e(f"s_add_u32 {c}, {c}, 1")
        e(f"s_add_u32 {sCNT}, {sCNT}, 1"); e(f"s_cmp_gt_u32 {sCNT}, 0x40000"); e("s_cbranch_scc1 L_abort")
    def aread(k,buf): e(f"ds_read_b128 {vr(buf,4)}, {vA} offset:{L_MEM+512*k}",f"A{k}")
    tg=lambda key: "t%s%d"%key
    def prestage():
        for p in range(2):
            if p in Q_SLOT: lload_tile(a,QSEQ[p],SLOT[QSEQ[p]][0],None)
    B0L=[(QSEQ[p],h) for p in GPOS for h in range(2)][:max(OPT["b0"]-1,0)]
    def b0loads():
        for k,h in B0L: gload_half(a,k,SLOT[k][0],tg(k),h)
    def zero_acc():
        for r in (QA,KA,VA): zero4(a,r)
    NREP=OPT["nrep"]
    def paddr(r):
        if OPT["probe"]=="b": e(f"v_bfe_u32 v{r}, {vL16}, 2, {4 if w==2 else 5}")
        elif OPT["probe"]=="c": e(f"v_and_b32 v{r}, {0x7f if w==2 else 0xff}, {vL8}")
        else:
            e(f"v_lshlrev_b32 v{r}, 2, {vL16}")
            if w==2: e(f"v_and_b32 v{r}, 0x7ff, v{r}")
    def probe(d,r,tag=None):
        e(f"buffer_load_dword v{d}, v{r}, {S_WS}, {sMR if OPT['probe']=='d' else sMF} offen sc1",tag)
    def pcmp(d):
        if OPT["probe"]=="b": e(f"v_cmp_ne_u32 vcc, {sPAT}, v{d}")
        else: e(f"v_cmp_eq_u32 vcc, -1, v{d}")
    def mfetch():
        paddr(T1); probe(T1,T1,"pr")
        dma(a,nd,sMR,"dma")
    if w==3: e(f"s_cmp_eq_u32 {sH}, 0"); e(f"s_cselect_b32 {sALL}, 0, 1")
    if tim in(1,2):
        e("s_memtime s[70:71]"); e("s_waitcnt lgkmcnt(0)"); e("s_mov_b32 s73, s70"); e("s_mov_b32 s74, s70")
        for i in range(11): e(f"s_mov_b32 s{76+i}, 0")
    if OPT["warm"]:
        e(f"v_lshlrev_b32 v{T1}, 3, {vL16}")
        if w<3:
            for k in range(4): e(f"s_mov_b32 {sT0}, {M_OFF+16384*k}"); e(f"buffer_load_dwordx2 v[12:13], {vRS}, {S_WS}, {sT0} offen sc1")
            e(f"buffer_load_dword v14, v{T1}, {S_WS}, {sP0} offen sc1") if w==0 else None
        else:
            e(f"s_sub_u32 {sT0}, {sVXN}, {32*8192}"); e(f"buffer_load_dword v14, v{T1}, {S_WS}, {sT0} offen sc1")
    if tim==5 and w==0:
        e("s_memrealtime s[70:71]"); e("s_waitcnt lgkmcnt(0)")
        e(f"s_lshl_b32 s72, {sH}, 8"); e(f"s_add_u32 s72, s72, {DBG_OFF+0x40000}")
        e(f"v_mov_b32 v{T0}, s70"); e(f"v_lshlrev_b32 v{T1}, 24, {vL16}")
        e(f"buffer_store_dword v{T0}, v{T1}, {S_WS}, s72 offen")
    if OPT["gate"] and w==0:
        e(f"v_mov_b32 v{T0}, 0x7f"); e(f"v_lshlrev_b32 v{T1}, 24, {vL16}")
        e(f"buffer_store_byte v{T0}, v{T1}, {S_WS}, {sF1W} offen {st}")
        e(f"v_bfe_u32 v{T1}, {vL16}, 2, 5"); e(f"s_mov_b32 {sT0}, {F1_OFF}"); e(f"s_mov_b32 {sT1}, 0x7f7f7f7f")
        a.label(L("gate"))
        e(f"buffer_load_dword v{T0}, v{T1}, {S_WS}, {sT0} offen sc1"); spin(); e("s_waitcnt vmcnt(0)")
        e(f"v_cmp_ne_u32 vcc, {sT1}, v{T0}"); e(f"s_cbranch_vccz {L('gated')}"); e("s_sleep 2"); e(f"s_branch {L('gate')}")
        a.label(L("gated"))
    a.label(L("rec"))
    e("s_waitcnt vmcnt(0) lgkmcnt(0)"); a.vm=[]; a.lg=[]
    spin("s84")
    e("s_barrier")
    prestage()
    if OPT["kxout"] and w in(0,3):
        e(f"s_mov_b32 m0, {L_KX+(4096 if w else 0)}"); dma(a,4,sKX2 if w else sKX,"kx")
    if w<3: e(f"s_mov_b32 m0, {4096*w}")
    if w==0 or (w<3 and OPT["m1pre"]): dma(a,nd,sMR,"dma")
    if OPT["b0"] and (w==1 or (w==2 and not OPT["w2late"])): mfetch()
    if w or OPT["b0w0"]: b0loads()
    zero_acc()
    e("s_waitcnt vmcnt(0) lgkmcnt(0)"); a.vm=[]; a.lg=[]
    top_vm={0:[],1:["rs","fl","mz"],2:["rs","fl","mz"],3:[]}[w]
    if OPT["m1pre"] and w in(1,2): top_vm=["dma"]*nd
    if OPT["b0"] and (w==1 or (w==2 and not OPT["w2late"])): top_vm=top_vm+["pr"]+["dma"]*nd
    if w or OPT["b0w0"]: top_vm=top_vm+[tg(k) for k,h in B0L]
    if OPT["kxb0"] and w==3: top_vm=top_vm+["kx"]*8
    if OPT["pub"] and OPT["pubpos"]=="hop" and w==3: top_vm=["pub"]
    a.vm=list(top_vm)
    if OPT["al"]:
        e(f"s_branch HZ_{L('top')}"); a.ins.append(Ins(f".p2align {OPT['al'][0]}"))
        for i in range(OPT["al"][1]): a.ins.append(Ins("s_nop 0"))
    if OPT["rot"] and w==0:
        a.label(L("pretop")); e(f"s_waitcnt vmcnt({len(top_vm)+2*OPT['half']})")
        if OPT["half"]: a.vm=["dmb","dmb"]+a.vm
    a.label("HZ_"+L("top"))
    e("s_barrier")
    for k in range(4): aread(k,AB[k])
    if w==2 and OPT["b0"] and OPT["w2late"]: mfetch()
    if w in(1,2) and not OPT["m1pre"] and not OPT["b0"]:
        if OPT["m1in"]: paddr(T1); probe(T1,T1,"pr")
        else: mfetch()
    stamp(a,tim,"b1")
    def slow_ops(where):
        if w==OPT["pfw"] and OPT['pf'] and OPT["pfpos"]==where:
            tr=T1 if w==3 else 4*0+T0
            e(f"v_lshlrev_b32 v{tr}, 3, {vL16}"); e(f"s_mov_b32 m0, {L_ROLE}")
            e(f"buffer_load_dword v{tr}, {S_WS}, {sKXN} offen {OPT['pffl']} lds","pf")
            e(f"buffer_load_dword v{tr}, {S_WS}, {sVXN} offen {OPT['pffl']} lds","pf")
            if w==2: e("s_mov_b32 m0, 8192")
        if w!=3: return
        if OPT["pub"] and OPT["pubpos"]==where:
            e(f"buffer_store_dwordx2 v[4:5], {vL8}, {S_T}, {sMP} offen {OPT['pubfl']}","pub")
            e("s_mov_b32 s10, 0")
    ACC={"q":QA,"k":KA,"v":VA}
    def nxt(seq,tab,p):
        later=[x for x in sorted(tab) if x>p and tab[x][0]==tab[p][0]]
        return later[0] if later else None
    def qkv(key,buf,p=None):
        if key in TG: a.wait(vm=tg(key))
        elif key in TL and p>1: a.wait(lg=tg(key))
        sm(a,ACC[key[0]],buf,key,SLOT.get(key,(0,))[0])
        if p in Q_SLOT:
            n=nxt(QSEQ,Q_SLOT,p)
            if n is not None and Q_SLOT[n][1]=="L": lload_tile(a,QSEQ[n],Q_SLOT[n][0],tg(QSEQ[n]))
    kxw = w in(0,3)
    def kxread(kt,ke,dst): e(f"ds_read_b128 {vr(dst,4)}, {vL16} offset:{L_KX+1024*(4*kt+ke)}",f"K{kt}{ke}")
    cvt=lambda d,x,y: e(f"v_cvt_pk_bf16_f32 v{d}, v{x}, v{y}")
    gs=[(QSEQ[p],h) for p in GPOS for h in range(2)]
    seen=set(); read=set(range(4))
    for p,key in enumerate(QSEQ):
        m,k=key; b=AB[k%4]
        if p==OPT["b1b"]:
            stamp(a,tim,"k2")
            if w==2 and OPT["w2late"]: chk("mr"); a.label(L("mok"))
            elif w in(1,2) and not OPT["m1pre"]: chk("mr"); a.wait(vm="dma"); a.label(L("mok"))
            elif w in(1,2): a.wait(vm="dma")
            e("s_barrier"); stamp(a,tim,"b1b")
            for kk in range(8,k+4):
                if kk not in read: aread(kk,AB[kk%4]); read.add(kk)
        if k not in seen:
            if OPT["pairw"] and k>=10 and k%2==0 and k+1 in read: a.wait(lg=f"A{k+1}"); seen.add(k+1)
            else: a.wait(lg=f"A{k}")
            seen.add(k)
        qkv(key,b,p)
        if p==2 and OPT["half"]:
            if w==0: a.wait(vm="dmb")
            e("s_barrier")
        last=all(x[1]!=k for x in QSEQ[p+1:])
        if last and k+4<20 and (k+4<8 or p>=OPT["b1b"]) and k+4 not in read: aread(k+4,b); read.add(k+4)
        if not OPT['nanchk'] and p==1: a.wait(lg="A3"); e(f"v_max3_u32 v{T0}, v{AB[0]}, v{AB[1]}, v{AB[2]}")
        if p==2: e(f"v_max_u32 v{T0}, v{T0}, v{AB[3]}") if False else None
        if not OPT['nanchk'] and p==3: e(f"v_max_u32 v{T0}, v{T0}, v{AB[3]}")
        if not OPT['nanchk'] and p==4: e(f"v_cmp_eq_u32 vcc, -1, v{T0}")
        if not OPT['nanchk'] and p==6: chk("rec")
        if not OPT['nanchk'] and m=="q" and k==4: e(f"v_mov_b32 v{T0}, v{b}")
        if not OPT['nanchk'] and m=="q" and 5<=k<=17:
            if OPT["pairw"] and k>=10:
                if k%2==0: e(f"v_max3_u32 v{T0}, v{T0}, v{b}, v{AB[(k+1)%4]}")
            else: e(f"v_max_u32 v{T0}, v{T0}, v{b}")
        m1=OPT["m1in"] and w in(1,2) and not OPT["m1pre"]
        if m1 and p<nd: dma(a,1,sMR,"dma",p)
        for j,(gk,h) in enumerate(gs):
            if (w or OPT["b0w0"]) and j<OPT["b0"]-1: continue
            if p==(OPT["gq"][0]+OPT["gq"][1]*j if not m1 else max(OPT["gq"][0]+OPT["gq"][1]*j,nd+j)): gload_half(a,gk,SLOT[gk][0],tg(gk),h)
        if not OPT["kxout"]:
            if kxw and p==OPT["kxp"][0]-1: e(f"s_mov_b32 m0, {L_KX+(4096 if w else 0)}")
            for j in range(4):
                if kxw and p==OPT["kxp"][0]+OPT["kxp"][1]*j: dma(a,1,sKX2 if w else sKX,"kx",j)
        if p==OPT["pfp"]: slow_ops("qk")
        if p==OPT["pubp"]: slow_ops("qk2")
        if p==OPT["b1b"]-2 and w in(1,2) and not OPT["m1pre"]: a.wait(vm="pr"); pcmp(T1)
        if p==OPT["b1c"] and OPT["w2late"]:
            if w==2: a.wait(vm="dma")
            if w==3: a.wait(vm="kx")
            e("s_barrier")
        if p==44: stamp(a,tim,"k7")
        if p%3==2: stamp(a,tim,f"_q{p}")
        if p==46 and not OPT["kxout"]: a.wait(vm="kx"); e("s_barrier")
        if p==47: kxread(0,0,SL3); kxread(1,0,SL3+4)
        if p==48 and not OPT["nanchk"]: a.wait(lg="A19"); seen.add(19); e(f"v_max3_u32 v{T0}, v{T0}, v{AB[2]}, v{AB[3]}")
        if p==49 and not OPT["nanchk"]: e(f"v_cmp_eq_u32 vcc, -1, v{T0}")
        if p==49: kxread(0,1,SL2); kxread(1,1,SL2+4)
        if p==51 and not OPT["nanchk"]: chk("rec")
        if p==51 and OPT["nanchk"]: e(f"v_cmp_u_f32 vcc, v{QA}, v{QA+2}")
    stamp(a,tim,"qk")
    slow_ops("qkend")
    if w==3 and OPT["pub"] and OPT["pubpos"]=="lds":
        e(f"v_add_u32 v{T1}, {sPC}, {vL8}"); e(f"ds_read_b64 v[4:5], v{T1} offset:{L_MEM}","pl")
    cvt(QA,QA,QA+2); cvt(QA+2,QA+1,QA+3)
    qkv(("v",16),AB[0]); aread(12,AB[0])
    qkv(("v",17),AB[1]); aread(13,AB[1])
    if OPT["nanchk"]: chk("scan"); a.label(L("scanned"))
    cvt(QA+1,KA,KA+2); cvt(QA+3,KA+1,KA+3)
    e(f"ds_write_b64 {vXW}, {vr(QA,2)}","xw"); e(f"ds_write_b64 {vXW}, {vr(QA+2,2)} offset:512","xw")
    qkv(("v",18),AB[2]); qkv(("v",19),AB[3]); aread(14,AB[3])
    a.wait(lg="A12"); qkv(("v",12),AB[0])
    if w==3 and OPT["pub"] and OPT["lastlds"]:
        e(f"s_cmp_ge_u32 {sSTEP}, {NSEG-1-OPT['lastlds']}"); e(f"s_cbranch_scc1 {L('pub62')}"); a.label(L("pub62b"))
    if w==3 and OPT["pub"] and OPT["pubpos"]=="lds":
        e(f"s_add_u32 {sMP}, {sMP}, 10240"); e(f"s_add_u32 s10, {sMP}, {OPT['piece']}")
        e(f"buffer_store_dwordx2 v[4:5], {vL8}, {S_T}, {sMP} offen {OPT['pubfl']}","pub")
    stamp(a,tim,"_s0"); a.wait(lg="xw"); stamp(a,tim,"_s1"); e("s_barrier"); stamp(a,tim,"b2"); stamp(a,tim,"_s2")
    X=[28,32,40,44]
    for ke in range(4):
        for x in range(2): e(f"ds_read_b64_tr_b16 {vr(X[ke]+2*x,2)}, {vXR} offset:{1024*ke+512*x}",f"X{ke}")
        if ke==0: qkv(("v",13),AB[1])
        if ke==1: a.wait(lg="A14"); qkv(("v",14),AB[3])
    aread(15,AB[3])
    S0,S1,SM=AB[0],AB[2],AB[1]
    def mf(d,A,B,first,op="v_mfma_f32_16x16x32_bf16",n=4):
        e(f"{op} {vr(d,4)}, {vr(A,n)}, {vr(B,n)}, {'0' if first else vr(d,4)}")
    VM=VA; VX=SL3; P=SL2; PM=SL2+4
    stamp(a,tim,"_s3"); a.wait(lg="X0"); stamp(a,tim,"_s4"); mf(S0,SL3,X[0],1); mf(S1,SL3+4,X[0],1)
    kxread(0,2,SL3); kxread(1,2,SL3+4)
    a.wait(lg="X1"); stamp(a,tim,"_s5"); mf(S0,SL2,X[1],0); mf(S1,SL2+4,X[1],0)
    kxread(0,3,SL2); kxread(1,3,SL2+4)
    a.wait(lg="A15"); qkv(("v",15),AB[3])
    mf(SM,X[0],X[0],1); mf(SM,X[1],X[1],0)
    stamp(a,tim,"_s6"); a.wait(lg="K12"); stamp(a,tim,"_s7"); mf(S0,SL3,X[2],0); mf(S1,SL3+4,X[2],0)
    e(f"buffer_load_dwordx4 {vr(VX,4)}, {vL16}, {S_WS}, {sVX} offen {OPT['kvfl']}","vx")
    cvt(VM,VM,VM+2)
    stamp(a,tim,"_s8"); a.wait(lg="K13"); stamp(a,tim,"_s9"); mf(S0,SL2,X[3],0); cvt(VM+1,VM+1,VM+3); mf(S1,SL2+4,X[3],0)
    e(f"buffer_load_dwordx4 {vr(VX+4,4)}, {vL16}, {S_WS}, {sVX} offen offset:1024 {OPT['kvfl']}","vx")
    mf(SM,X[2],X[2],0)
    if OPT["g0p"]==1: gload_half(a,("o",0),28,"go0",0)
    e(f"v_mov_b32 v{PM+1}, 0"); e(f"v_mov_b32 v{PM+2}, 0")
    mf(SM,X[3],X[3],0)
    if OPT["g0p"]==1: gload_half(a,("o",0),28,"go0",1)
    e(f"v_max3_f32 v{T1}, v{S0}, v{S0+1}, v{S0+2}")
    e(f"v_max3_f32 v{T0}, v{S0+3}, v{S1}, v{S1+1}")
    e(f"v_max3_f32 v{T1}, v{T1}, v{S1+2}, v{S1+3}")
    stamp(a,tim,"scores"); stamp(a,tim,"_sa")
    e(f"v_max_f32 v{T1}, v{T1}, v{T0}")
    if OPT["g0p"]==0: gload_half(a,("o",0),28,"go0",0)
    e(f"v_max3_f32 v{T0}, v{T1}, v{SM+2}, v{SM+3}"); e(f"v_max3_f32 v{T1}, v{T1}, v{SM+2}, v{SM+3}")
    e(f"v_permlane32_swap_b32 v{T0}, v{T1}")
    e(f"v_max_f32 v{SM}, v{T0}, v{T1}"); e(f"v_max_f32 v{T0}, v{T0}, v{T1}")
    if OPT["g0p"]==0: gload_half(a,("o",0),28,"go0",1)
    e(f"v_permlane16_swap_b32 v{T0}, v{SM}")
    e(f"v_max_f32 v{T0}, v{T0}, v{SM}")
    e(f"v_mul_f32 v{T0}, {sC}, v{T0}")
    stamp(a,tim,"max"); stamp(a,tim,"_sb")
    ev=[S0,S0+1,S0+2,S0+3,S1,S1+1,S1+2,S1+3,SM+2,SM+3]
    for r in ev[::2]:
        e(f"v_pk_fma_f32 {vr(r,2)}, {vr(r,2)}, {sCC}, {vr(T0,2)} op_sel_hi:[1,1,0] neg_lo:[0,0,1] neg_hi:[0,0,1]")
    for i,r in enumerate(ev[:8]):
        e(f"v_exp_f32 v{r}, v{r}")
        if i in(1,6) and not OPT["g1pv"]: gload_half(a,("o",1),SL1,"go1",i//6)
        if i in(2,4,6): cvt(P+i//2-1,ev[i-2],ev[i-1])
        if i==4: e(f"v_mov_b64 {vr(S0,2)}, {sONE}")
        if i==6: e(f"v_mov_b64 {vr(S0+2,2)}, {sONE}")
    e(f"v_exp_f32 v{ev[8]}, v{ev[8]}"); cvt(P+3,ev[6],ev[7])
    e(f"v_exp_f32 v{ev[9]}, v{ev[9]}")
    O=[S0,AB[3]]
    stamp(a,tim,"exp"); stamp(a,tim,"_p0")
    mf(S1,S0,P,1)
    cvt(PM,ev[8],ev[9]); cvt(PM+3,ev[8],ev[9])
    stamp(a,tim,"_p1"); a.wait(vm="vx"); stamp(a,tim,"_p2")
    mf(O[1],VX+4,P,1)
    if OPT["g1pv"]: gload_half(a,("o",1),SL1,"go1",0)
    mf(S1,S0,PM,0,"v_mfma_f32_16x16x16_bf16",2)
    if OPT["g1pv"]: gload_half(a,("o",1),SL1,"go1",1)
    mf(O[0],VX,P,1)
    lload_tile(a,("o",2),SL3,"lo2")
    mf(O[1],VM,PM+2,0,"v_mfma_f32_16x16x16_bf16",2)
    if OPT["g0p"]==2: gload_tile(a,("o",0),28,"go0")
    e(f"v_rcp_f32 v{T0}, v{S1}")
    mf(O[0],VM,PM,0,"v_mfma_f32_16x16x16_bf16",2)
    ks=OPT["kvstride"]
    e(f"s_add_u32 {sSTEP}, {sSTEP}, 1"); e(f"s_add_u32 {sVX}, {sVX}, {ks}")
    if w==0: e(f"s_add_u32 {sKX}, {sKX}, {ks}"); e("s_mov_b32 m0, 0")
    if w==3: e(f"s_add_u32 {sKX2}, {sKX2}, {ks}"); e(f"s_add_u32 {sKX}, {sKX}, {ks}")
    if w==OPT["pfw"]: e(f"s_add_u32 {sKXN}, {sKXN}, {ks}"); e(f"s_add_u32 {sVXN}, {sVXN}, {ks}")
    PK=P
    stamp(a,tim,"_p7")
    for i in range(0,4,2): e(f"v_pk_mul_f32 {vr(O[1]+i,2)}, {vr(O[1]+i,2)}, {vr(T0,2)} op_sel_hi:[1,0]")
    for i in range(0,4,2):
        e(f"v_pk_mul_f32 {vr(O[0]+i,2)}, {vr(O[0]+i,2)}, {vr(T0,2)} op_sel_hi:[1,0]")
        for k in range(2): cvt(PK+i+k,O[0]+i+k,O[1]+i+k)
    if OPT["owx"]==1: e(f"s_mov_b64 exec, {sEX}")
    e(f"ds_write_b128 {vOW}, {vr(PK,4)}","ow")
    if OPT["owx"]==1: e("s_mov_b64 exec, -1")
    stamp(a,tim,"_p8")
    G2=[n for n,v in O_SLOT.items() if v==(SL2,"G")][0]
    ZA,XA,YA=36,28,32
    zero4(a,ZA)
    slow_ops("opack")
    stamp(a,tim,"opack")
    a.wait(lg="ow"); stamp(a,tim,"_p9"); e("s_barrier"); stamp(a,tim,"b3"); stamp(a,tim,"_pa")
    for k in range(4): e(f"ds_read_b128 {vr(AB[k],4)}, {vA} offset:{L_MEM+512*k}",f"ao{k}")
    F2=min(n for n,v in O_SLOT.items() if v[0]==SL2)
    if F2!=G2: lload_tile(a,("o",F2),SL2,f"lo{F2}")
    elif not OPT["g9in"]: gload_tile(a,("o",G2),SL2,f"go{G2}")
    RL=[SL2,SL2+4,SL3,SL3+4]
    def red_loads():
        for m in range(4): e(f"buffer_load_dwordx4 {vr(RL[m],4)}, {vRL}, {S_WS}, {sPR[m]} offen sc1",f"r{m}")
    z=lambda r: [f"v_mov_b64 {vr(r,2)}, 0",f"v_mov_b64 {vr(r+2,2)}, 0"]
    cv=lambda d,x,y: f"v_cvt_pk_bf16_f32 v{d}, v{x}, v{y}"
    tagop=lambda r: f"v_and_or_b32 v{r}, v{r}, -2, {sTAG}"
    PACC=[ZA,XA,YA,ZA,XA]
    post={n:[] for n in range(21)}
    post[1]+=z(XA)[:1]; post[2]+=z(XA)[1:]; post[3]+=z(YA)[:1]; post[4]+=z(YA)[1:]
    post[5]+=[cv(ZA,ZA,ZA+1)]; post[6]+=[cv(ZA+1,ZA+2,ZA+3)]; post[7]+=[tagop(ZA)]
    sg=OPT["ststag"]*(w>>1)
    post[9]+=[cv(ZA+2,XA,XA+1),cv(ZA+3,XA+2,XA+3)]
    post[9+sg]+=[(f"buffer_store_dwordx4 {vr(ZA,4)}, {vL16}, {S_WS}, {sP0} offen {st}","p0")]
    post[10+sg]+=z(ZA); post[12]+=z(XA)[:1]; post[13]+=z(XA)[1:]
    post[13]+=[cv(YA,YA,YA+1)]; post[14]+=[cv(YA+1,YA+2,YA+3)]; post[15]+=[tagop(YA)]
    post[17]+=[cv(YA+2,ZA,ZA+1),cv(YA+3,ZA+2,ZA+3)]
    post[17+sg]+=[(f"buffer_store_dwordx4 {vr(YA,4)}, {vL16}, {S_WS}, {sP1} offen {st}","p1")]
    post[20]+=[cv(XA,XA,XA+1),cv(XA+1,XA+2,XA+3),tagop(XA),(f"buffer_store_dwordx2 {vr(XA,2)}, {vL8}, {S_WS}, {sP2} offen {st}","p2")]
    def flag(c): return [(f"buffer_store_byte v{T0}, v{T1}, {S_WS}, {sF1W} offen offset:{512*c} {st}",f"f{c}")]
    if OPT["f1"]:
        post[0]+=[f"v_mov_b32 v{T0}, {sSTEP}"]; post[8]+=[f"v_lshlrev_b32 v{T1}, 24, {vL16}"]
        post[10+sg]=flag(0)+post[10+sg]; post[18+sg]=flag(1)+post[18+sg]; post[20]+=flag(2)
    def emit(l):
        for x in l:
            if isinstance(x,tuple): e(x[0],x[1])
            else: e(x)
    def probe1(d,r): e(f"buffer_load_dword v{d}, v{r}, {S_WS}, {sF1R} offen sc1","q1")
    for n in range(20):
        ko=n&3; key=("o",n)
        if n<4: a.wait(lg=f"ao{ko}")
        if n<2: stamp(a,tim,f"_pb{n}")
        if key in TL: a.wait(lg=f"lo{n}")
        elif key in TG: a.wait(vm=f"go{n}")
        sm(a,PACC[n>>2],AB[ko],key,SLOT.get(key,(0,))[0])
        if n in O_SLOT:
            m=nxt(None,O_SLOT,n)
            if m is not None and O_SLOT[m][1]=="L": lload_tile(a,("o",m),O_SLOT[m][0],f"lo{m}")
        if F2!=G2 and n in OPT["g18"]: gload_half(a,("o",G2),SL2,f"go{G2}",OPT["g18"].index(n))
        if OPT["g9in"] and n<2: gload_half(a,("o",G2),SL2,f"go{G2}",n)
        if n in OPT["g19"]: gload_half(a,("o",19),SL1,"go19",OPT["g19"].index(n))
        if OPT["kxout"] and kxw and not OPT["kxb0"]:
            ko_=OPT["kxout"]
            if n==ko_[0]-1: e(f"s_mov_b32 m0, {L_KX+(4096 if w else 0)}")
            for j in range(4):
                if n==ko_[0]+ko_[1]*j and "K" not in OPT["ab"]: dma(a,1,sKX2 if w else sKX,"kx",j)
            if w==0 and n==ko_[0]+ko_[1]*3+1: e("s_mov_b32 m0, 0")
        if n==OPT["b4p"] and OPT["b4"]: e("s_barrier")
        if w==0 and n==OPT["rl"]: red_loads()
        if n in(13,): stamp(a,tim,f"o{n}")
        if n>=2: stamp(a,tim,f"_o{n}")
        if OPT["f1"] and w==0 and n==OPT["q1"]:
            e(f"v_bfe_u32 v{SL2}, {vL16}, 2, 5"); e(f"s_add_u32 {sT1}, {sPAT}, 0x01010101"); probe1(SL2,SL2)
        if n==19 and w<3:
            e(f"v_and_b32 v16, 0xff, {vL16}")
            e(f"ds_read_b128 v[12:15], v16 offset:{L_SEL}","sel")
        emit(post[n])
    emit(post[20])
    stamp(a,tim,"out")
    def slots():
        e(f"s_add_u32 {sMR}, {sMW}, {4096*w}")
        if w<3 and OPT["probe"]=="c": e(f"s_add_u32 {sMF}, {sMW}, {10240+256*w}")
        if w<3 and OPT["probe"]=="b": e(f"s_add_u32 {sPAT}, {sPAT}, 0x01010101")
        for r in (sMW,sMZ):
            e(f"s_add_u32 {r}, {r}, 16384"); e(f"s_and_b32 {r}, {r}, 0xffff"); e(f"s_or_b32 {r}, {r}, {M_OFF}")
        e(f"s_xor_b32 {sTAG}, {sTAG}, 1"); e(f"s_not_b32 {sTAGM}, {sTAGM}")
    if w<3 and OPT["f1"]:
        if w==2: e(f"s_cmp_ge_u32 {sUNIT}, 80"); e(f"s_cbranch_scc1 {L('nored0')}")
        e(f"v_bfe_u32 v23, {vL16}, 2, 5")
        if w==0:
            a.wait(vm="q1"); e(f"v_cmp_ne_u32 vcc, {sT1}, v{SL2}")
            e(f"v_mov_b32 v20, {sSTEP}"); e(f"v_lshlrev_b32 v21, 4, {vL16}"); e("v_mov_b32 v22, -1")
            e(f"s_cbranch_vccz {L('f1ok')}")
        else:
            e(f"s_add_u32 {sT1}, {sPAT}, 0x01010101")
            e(f"v_mov_b32 v20, {sSTEP}"); e(f"v_lshlrev_b32 v21, 4, {vL16}"); e("v_mov_b32 v22, -1")
            delay(a,OPT['d1'] if w==1 else OPT['d1b'])
        probe1(T0,23); delay(a,OPT["d4"]); probe1(T0,23)
        a.label(L("f1"))
        for u in range(2):
            e("s_waitcnt vmcnt(1)"); e(f"v_cmp_ne_u32 vcc, {sT1}, v{T0}"); probe1(T0,23)
            if OPT["nosync"]: e(f"s_branch {L('f1ok')}")
            else: e(f"s_cbranch_vccz {L('f1ok')}")
        spin(); e(f"s_branch {L('f1')}")
        a.label(L("f1ok")); a.vm=[]
        red_loads()
        zero_acc()
        a.wait(lg="all")
    if w<3 and not OPT["f1"] and OPT["nat"]:
        e(f"v_mov_b32 v20, {sSTEP}"); e(f"v_lshlrev_b32 v21, 4, {vL16}"); e("v_mov_b32 v22, -1")
        if w<2: zero_acc()
        if w==0: paddr(23)
        if w==0 and 0 in Q_SLOT: lload_tile(a,QSEQ[0],SL1,None)
        a.wait(lg="all")
        if OPT["nat"][w]: a.wait(vm=OPT["nat"][w])
        if w==2:
            zero_acc()
            e(f"s_cmp_ge_u32 {sUNIT}, 80"); e(f"s_cbranch_scc1 {L('nored')}")
        red_loads()
    elif w<3 and not OPT["f1"]:
        a.wait(lg="all")
        if w==0 and OPT["rl"]>19: delay(a,OPT['d0']); red_loads()
        e(f"v_mov_b32 v20, {sSTEP}"); e(f"v_lshlrev_b32 v21, 4, {vL16}"); e("v_mov_b32 v22, -1")
        zero_acc()
        if w==1: delay(a,OPT['d1']); red_loads()
        if w==2:
            delay(a,OPT['d1b'])
            e(f"s_cmp_ge_u32 {sUNIT}, 80"); e(f"s_cbranch_scc1 {L('nored')}")
            red_loads()
    if w<3:
        stamp(a,tim,"rlis")
        a.label(L("red"))
        for m in range(4):
            a.wait(vm=f"r{m}")
            if m==3 and not OPT["rtail"]:
                e(f"v_bitop3_b32 v{T1}, v{RL[2]}, v{RL[3]}, {sTAGM} bitop3:0x7e")
                e(f"v_bitop3_b32 v{T0}, v{T0}, v{T1}, 1 bitop3:0xa8")
                e(f"v_cmp_ne_u32 vcc, 0, v{T0}")
            mf(16,12,RL[m],m==0)
            if m==1: e(f"v_bitop3_b32 v{T0}, v{RL[0]}, v{RL[1]}, {sTAGM} bitop3:0x7e")
            if m==3 and OPT["rtail"]:
                e(f"v_bitop3_b32 v{T1}, v{RL[2]}, v{RL[3]}, {sTAGM} bitop3:0x7e")
                e(f"v_bitop3_b32 v{T0}, v{T0}, v{T1}, 1 bitop3:0xa8")
                e(f"v_cmp_ne_u32 vcc, 0, v{T0}")
        e(f"s_cmp_eq_u32 {sSTEP}, {NSEG-1}")
        if not OPT["rtail"]: chk("redo")
        for i in range(4): e(f"v_add_f32_dpp v{16+i}, v{16+i}, v{16+i} row_ror:8 row_mask:0xf bank_mask:0xf")
        e(f"v_cvt_pk_bf16_f32 v{T0}, v16, v17"); e(f"v_cvt_pk_bf16_f32 v{T1}, v18, v19")
        e(f"v_min_u32 v{T0}, {sFE}, v{T0}")
        if OPT["rtail"]: chk("redo")
        e(f"s_cbranch_scc1 {L('last')}")
        e(f"buffer_store_dwordx2 {vr(T0,2)}, {vRS}, {S_WS}, {sMW} offen {st}","rs")
        e(f"buffer_store_byte v20, v21, {S_T}, {sUNIT} offen {st}","fl")
        e(f"buffer_store_dword v22, {vRS}, {S_WS}, {sMZ} offen {st}","mz")
        stamp(a,tim,"red")
        if w==2: a.label(L("nored2"))
        if w==0 and OPT["nat"]:
            if 1 in Q_SLOT: lload_tile(a,QSEQ[1],SL2,None)
        else: prestage()
        slots()
    if w==0 or (w<3 and OPT["m1pre"]):
        if not (w==0 and OPT["nat"]): paddr(23)
        if w==0: delay(a,OPT['d2']); stamp(a,tim,"mis")
        NP=OPT["np"] if w==0 else 1
        PD=T0
        if w==0 and OPT["spec"]:
            PD=T1
            probe(T0,23); dma(a,nd,sMR,None)
            for i in range(NP): delay(a,OPT["d4"]); probe(PD,23)
            e(f"s_waitcnt vmcnt({nd+NP})"); pcmp(T0)
            e(f"s_cbranch_vccz {L('m0hit')}")
        else:
            for i in range(NP): probe(PD,23); delay(a,OPT["d4"]) if i<NP-1 else None
        a.label(L("m0"))
        for u in range(OPT["unr"] if w==0 else 1):
            e(f"s_waitcnt vmcnt({NP-1})"); pcmp(PD)
            if w==0: probe(PD,23)
            if tim in(1,2): e("s_add_u32 s86, s86, 1")
            if OPT["nosync"] or OPT["blind"]: e(f"s_branch {L('m0ok')}")
            else: e(f"s_cbranch_vccz {L('m0ok')}")
        if w: probe(PD,23)
        spin(); e(f"s_branch {L('m0')}")
        a.label(L("m0ok"))
        if w==0: stamp(a,tim,"det")
        a.vm=[]
        dma(a,nd,sMR,"dma")
        if w==0 and OPT["b0"]: e("s_barrier")
        if w==0: a.vm=[]
        if w==0 and OPT["b0w0"]: b0loads()
        if w==0 and not OPT["rot"]: e(f"s_waitcnt vmcnt({len(a.vm)})")
        if w==0 and OPT["spec"]:
            a.label(L("m0hit")); e(f"s_waitcnt vmcnt({NP})")
    if w<3: a.wait(lg="all")
    if w==3:
        delay(a,OPT['d3'])
        prestage()
        if OPT["pub"] and OPT["pubpos"]!="lds":
            e(f"s_add_u32 {sT0}, {sMR}, {sPC}"); e(f"s_sub_u32 {sT0}, {sT0}, {4096*3}")
            e(f"s_add_u32 s10, {sT0}, {OPT['piece']}"); e(f"s_cmp_lt_u32 {sPC}, 10240"); e("s_cselect_b32 s10, s10, 0")
            if "L" not in OPT["ab"]: e(f"buffer_load_dwordx2 v[4:5], {vL8}, {S_T}, {sT0} offen sc1","pl")
            e(f"s_add_u32 {sMP}, {sMP}, {OPT['mpstride']}"); e(f"s_add_u32 s10, {sMP}, {OPT['piece']}"); e(f"s_cmp_lt_u32 {sPC}, 10240"); e("s_cselect_b32 s10, s10, 0")
            if OPT["pubpos"]=="hop":
                a.wait(vm="pl"); e(f"buffer_store_dwordx2 v[4:5], {vL8}, {S_T}, {sMP} offen {OPT['pubfl']}","pub")
        e(f"s_cmp_eq_u32 {sSTEP}, {NSEG-1}"); e(f"s_cbranch_scc1 {L('last')}")
        if OPT["kvchk"]:
            e(f"s_cmp_eq_u32 {sALL}, 1"); e(f"s_cbranch_scc1 {L('kvok')}")
            e(f"s_lshl_b32 {sT0}, {sSTEP}, 7"); e(f"s_add_u32 {sT0}, {sT0}, {KVCNT+256}"); e(f"s_min_u32 {sT0}, {sT0}, {KVCNT+63*128}")
            e(f"s_load_dword s28, s[4:5], {sT0} glc"); e(f"s_load_dword s29, s[4:5], {KVCNT+63*128} glc")
            e("s_waitcnt lgkmcnt(0)")
            e("s_cmp_ge_u32 s29, 32"); e(f"s_cselect_b32 {sALL}, 1, 0")
            e("s_cmp_ge_u32 s28, 32"); e(f"s_cbranch_scc0 {L('kvw')}")
            a.label(L("kvok"))
        slots(); zero_acc()
        if OPT["pub"] and OPT["pubpos"]=="hop": a.wait(lg="all")
        else: a.wait(vm="all",lg="all")
    if OPT["b0"] and w:
        e("s_barrier")
        if w==1 or (w==2 and not OPT["w2late"]): mfetch()
        b0loads()
        if OPT["kxb0"] and w==3:
            e(f"s_mov_b32 m0, {L_KX}"); dma(a,4,sKX,"kx"); e(f"s_mov_b32 m0, {L_KX+4096}"); dma(a,4,sKX2,"kx")
    stamp(a,tim,"pre")
    assert OPT["ab"] or (a.vm[len(a.vm)-len(top_vm):]==top_vm and (top_vm or not a.vm)),(w,a.vm)
    if tim in(4,5) and w==(3 if tim==4 else 0):
        e("s_memtime s[70:71]" if tim==4 else "s_memrealtime s[70:71]"); e("s_waitcnt lgkmcnt(0)")
        e(f"v_writelane_b32 v4, s70, 63") if False else None
        e(f"s_lshl_b32 s72, {sH}, 8"); e(f"s_lshl_b32 s73, {sSTEP}, 2"); e("s_add_u32 s72, s72, s73"); e(f"s_add_u32 s72, s72, {DBG_OFF+0x40000}")
        e(f"v_mov_b32 v{T0}, s70"); e(f"v_lshlrev_b32 v{T1}, 24, {vL16}")
        e(f"buffer_store_dword v{T0}, v{T1}, {S_WS}, s72 offen")
    if tim==3:
        e(f"s_cmp_eq_u32 {sSTEP}, {OPT['at']}"); e(f"s_cbranch_scc0 {L('pretop') if OPT['rot'] and w==0 else 'HZ_'+L('top')}")
        n=len(STAMPS); e(f"s_memrealtime s[{54+2*n}:{55+2*n}]"); e(f"s_memtime s[{56+2*n}:{57+2*n}]")
        e("s_waitcnt lgkmcnt(0)")
        e(f"s_lshl_b32 {sT0}, {sH}, 2"); e(f"s_add_u32 {sT0}, {sT0}, {w}"); e(f"s_lshl_b32 {sT0}, {sT0}, 7"); e(f"s_add_u32 {sT0}, {sT0}, {DBG_OFF+65536}")
        e(f"v_mov_b32 v{T1}, 0"); e("s_mov_b64 exec, 1")
        for i in range(len(STAMPS)+2):
            e(f"v_mov_b32 v{T0}, s{54+2*i}"); e(f"buffer_store_dword v{T0}, v{T1}, {S_WS}, {sT0} offen offset:{4*i}")
        e("s_waitcnt vmcnt(0)"); e("s_mov_b64 exec, -1")
    e(f"s_branch {L('pretop')}" if OPT["rot"] and w==0 else f"s_branch HZ_{L('top')}")
    if w<3:
        a.label(L("redo"))
        if tim in(1,2): e("s_add_u32 s85, s85, 1")
        e("s_mov_b64 exec, vcc")
        a.label(L("redo2"))
        red_loads(); spin()
        e("s_waitcnt vmcnt(0)")
        e(f"v_bitop3_b32 v{T0}, v{RL[0]}, v{RL[1]}, {sTAGM} bitop3:0x7e"); e(f"v_bitop3_b32 v{T1}, v{RL[2]}, v{RL[3]}, {sTAGM} bitop3:0x7e")
        e(f"v_bitop3_b32 v{T0}, v{T0}, v{T1}, 1 bitop3:0xa8"); e(f"v_cmp_ne_u32 vcc, 0, v{T0}")
        e(f"s_cbranch_vccnz {L('redo2')}")
        e("s_mov_b64 exec, -1"); e("s_nop 1")
        e(f"s_branch {L('red')}")
        a.label(L("last"))
        e(f"s_mov_b32 {sT0}, {MEMP_OFF+63*10240}")
        e(f"buffer_store_dwordx2 {vr(T0,2)}, {vRS}, {S_WS}, {sT0} offen sc1")
        e(f"s_branch {L('done')}")
    if OPT["nanchk"]:
        a.label(L("scan"))
        e(f"v_mov_b32 v{T0}, 0")
        for k in range(10):
            e(f"ds_read_b32 v{T1}, {vL16} offset:{L_MEM+1024*k}"); e("s_waitcnt lgkmcnt(0)"); e(f"v_max_u32 v{T0}, v{T0}, v{T1}")
        e(f"v_cmp_eq_u32 vcc, -1, v{T0}"); e(f"s_cbranch_vccnz {L('rec')}"); e(f"s_branch {L('scanned')}")
    if w==2:
        if OPT["f1"]: a.label(L("nored0")); zero_acc(); e("s_waitcnt lgkmcnt(0)")
        a.label(L("nored"))
        e("s_waitcnt vmcnt(0)")
        e(f"s_cmp_eq_u32 {sSTEP}, {NSEG-1}"); e(f"s_cbranch_scc1 {L('done')}")
        e(f"s_branch {L('nored2')}")
    if w==3 and OPT["kvchk"]:
        a.label(L("kvw"))
        if tim in(1,2): e("s_add_u32 s85, s85, 1")
        e(f"v_mov_b32 v{T0}, 0")
        a.label(L("kvw2"))
        e(f"buffer_load_dword v{T1}, v{T0}, {S_WS}, {sT0} offen sc1"); spin(); e("s_waitcnt vmcnt(0)")
        e(f"v_cmp_gt_u32 vcc, 32, v{T1}"); e(f"s_cbranch_vccnz {L('kvw2')}")
        e(f"s_branch {L('kvok')}")
    if w==3 and OPT["pub"] and OPT["lastlds"]:
        a.label(L("pub62"))
        e(f"v_add_u32 v{T1}, {sPC}, {vL8}"); e(f"ds_read_b64 v[4:5], v{T1} offset:{L_MEM}")
        e(f"s_add_u32 {sT0}, {sMP}, 10240"); e(f"s_add_u32 s10, {sT0}, {OPT['piece']}"); e("s_waitcnt lgkmcnt(0)")
        e(f"buffer_store_dwordx2 v[4:5], {vL8}, {S_T}, {sT0} offen sc1"); e("s_mov_b32 s10, 0")
        e(f"s_branch {L('pub62b')}")
    if w==3:
        a.label(L("last"))
        e("s_waitcnt vmcnt(0)")
        if OPT["pub"] and OPT["pubpos"] not in("hop","lds") and not OPT["lastlds"]: e(f"buffer_store_dwordx2 v[4:5], {vL8}, {S_T}, {sMP} offen sc1")
        e(f"s_branch {L('done')}")
    if w in(1,2) and not OPT["m1pre"]:
        a.label(L("mr"))
        spin("s86")
        mfetch(); e(f"s_waitcnt vmcnt({nd})")
        pcmp(T1); e(f"s_cbranch_vccnz {L('mr')}")
        e("s_waitcnt vmcnt(0)")
        e(f"s_branch {L('mok')}")
    a.label(L("done"))
    a.vm=[]; a.lg=[]
    e("s_waitcnt vmcnt(0) lgkmcnt(0)")
    if w==3 and OPT["wb"]:
        e(f"s_cmp_eq_u32 {sH}, 0"); e(f"s_cbranch_scc0 {L('nowb')}"); e("buffer_wbl2 sc1"); e("s_waitcnt vmcnt(0)"); a.label(L("nowb"))
    if tim in(1,2):
        e("s_memtime s[70:71]"); e("s_waitcnt lgkmcnt(0)"); e("s_sub_u32 s83, s70, s74")
        for i in range(11): e(f"v_mov_b32 v{12+i}, s{76+i}")
        e(f"s_lshl_b32 {sT0}, {sH}, 2"); e(f"s_add_u32 {sT0}, {sT0}, {w}"); e(f"s_lshl_b32 {sT0}, {sT0}, 6"); e(f"s_add_u32 {sT0}, {sT0}, {DBG_OFF}")
        e("v_mov_b32 v10, 0"); e("s_mov_b64 exec, 1")
        e("s_memrealtime s[68:69]"); e("s_waitcnt lgkmcnt(0)")
        for i,r in enumerate((90,92,94,66,68)): e(f"v_mov_b32 v{23+i}, s{r}")
        for i in range(4): e(f"buffer_store_dwordx4 {vr(12+4*i,4)}, v10, {S_WS}, {sT0} offen offset:{16*i}")
        if OPT["dbgout"] and w==0:
            for i in range(5):
                e(f"v_mov_b32 v10, {16+4*i}"); e(f"global_atomic_umax v10, v{23+i}, {sDBG}")
            e("v_mov_b32 v10, 36"); e(f"global_atomic_umax v10, v19, {sDBG}")
        e("s_waitcnt vmcnt(0)")
    e("s_endpgm")
```

```python
from asmlib import *
from layout import *
import chain as C
import struct, math
S_WS=C.S_WS; sDBG=C.sDBG
sW="s13"; sROW="s64"; sRANK="s65"
f32=lambda x: "0x%08x"%struct.unpack("<I",struct.pack("<f",x))[0]
OPT={"tim":0,"hold":0,"holdn":32,"asleep":1,"bsleep":1}

def rt(a,i):
    if OPT["tim"]: a.e(f"s_memrealtime s[{70+2*i}:{71+2*i}]")

def spin_wait(a,name,load,cmp_fail,sCNT="s32",sleep=1):
    e=a.e
    a.label(name)
    load()
    e(f"s_add_u32 {sCNT}, {sCNT}, 1"); e(f"s_cmp_gt_u32 {sCNT}, 0x40000"); e("s_cbranch_scc1 L_abort")
    e("s_waitcnt vmcnt(0)"); a.vm=[]
    cmp_fail()
    e(f"s_cbranch_vccz {name}_ok")
    if sleep: e(f"s_sleep {sleep}")
    e(f"s_branch {name}")
    a.label(name+"_ok")

XA=0
ACC=32; BI=64; GT=80
vLN="v232"; vL16="v233"; vDA="v234"; vDB="v235"; vVO="v236"; vRD="v237"; TMP=240
S_W="s[8:11]"; S_X="s[20:23]"
sTILE="s24"; sSEG="s26"; sSRC="s27"; sOUT="s28"; sOUT2="s29"; sSTR="s30"; sOFF="s31"; sCNT="s32"; sWI="s33"; sA="s34"; sB="s35"; sKIND="s36"; sMIX="s37"
sSLOT="s16"; sSIG="s17"; sOSTR="s18"; sIT="s19"; sFILL="s38"; sG0="s39"; sOUT3="s14"; sOUT4="s15"; sHS="s25"
def wreg(j,k,t):
    i=160*j+8*k+4*t
    return vr(i,4,'a') if i<256 else vr(i-256+160,4)
def wreg2(j,k,t,x):
    i=160*j+8*k+4*t+2*x
    return vr(i,2,'a') if i<256 else vr(i-256+160,2)

def layernorm(a):
    e=a.e; one=TMP; S=[TMP+4,TMP+8]
    for k in range(20):
        e(f"v_mfma_f32_16x16x32_bf16 {vr(S[0],4)}, {vr(one,4)}, {vr(4*k,4)}, {'0' if k==0 else vr(S[0],4)}")
        e(f"v_mfma_f32_16x16x32_bf16 {vr(S[1],4)}, {vr(4*k,4)}, {vr(4*k,4)}, {'0' if k==0 else vr(S[1],4)}")
    q=S[1]
    for i in range(1,4):
        e(f"v_cmp_eq_u32 vcc, {i}, v{TMP+12}"); e(f"v_cndmask_b32 v{q}, v{q}, v{q+i}, vcc")
    e(f"ds_bpermute_b32 v{q}, v{TMP+13}, v{q}","bp")
    m=S[0]
    e(f"v_mul_f32 v{m}, {f32(1/640)}, v{m}")
    a.wait(lg="bp")
    e(f"v_mul_f32 v{q}, {f32(1/640)}, v{q}"); e(f"v_fma_f32 v{q}, -v{m}, v{m}, v{q}"); e(f"v_max_f32 v{q}, 0, v{q}")
    rb=lambda r: (e(f"v_cvt_pk_bf16_f32 v{r}, v{r}, v{r}"), e(f"v_and_b32 v{r}, {sMIX}, v{r}"))
    rb(m); rb(q); e(f"v_add_f32 v{q}, {f32(1e-5)}, v{q}"); rb(q); e(f"v_sqrt_f32 v{q}, v{q}"); rb(q)
    e(f"v_rcp_f32 v{q}, v{q}"); e(f"v_mul_f32 v{m}, v{m}, v{q}")
    for k in range(20):
        if k and k%4==0: e(f"s_add_u32 {sOUT}, {sOUT}, 4096")
        for r in range(4*k,4*k+4):
            t=TMP+14
            e(f"v_lshlrev_b32 v{t}, 16, v{r}"); e(f"v_and_b32 v{t+1}, {sMIX}, v{r}")
            e(f"v_pk_fma_f32 {vr(t,2)}, {vr(t,2)}, {vr(q,2)}, {vr(m,2)} op_sel_hi:[1,0,0] neg_lo:[0,0,1] neg_hi:[0,0,1]")
            e(f"v_cvt_pk_bf16_f32 v{r}, v{t}, v{t+1}")
        e(f"buffer_store_dwordx4 {vr(4*k,4)}, {vL16}, {S_WS}, {sOUT} offen offset:{1024*(k%4)} sc1")

def add_one(a,off):
    e=a.e
    e("s_mov_b64 exec, 1")
    e(f"v_mov_b32 v{TMP}, 0"); e(f"v_mov_b32 v{TMP+1}, 1")
    e(f"buffer_atomic_add v{TMP+1}, v{TMP}, {S_WS}, {off} offen")
    e("s_mov_b64 exec, -1"); e("s_nop 3")

def seg_dma(a):
    out=[]
    for i in range(10):
        g=[]
        if i%4==0: g.append(f"s_add_u32 m0, {sFILL}, {4096*(i//4)}")
        if i in(4,8): g.append(f"s_add_u32 {sSRC}, {sSRC}, 4096")
        g.append((f"buffer_load_dwordx4 {vL16}, {S_X}, {sSRC} offen offset:{1024*(i%4)} sc1 lds","d"))
        out.append(g)
    out[-1]+= [f"s_add_u32 {sSRC}, {sSRC}, {40960-8192}",f"s_add_u32 {sFILL}, {sFILL}, 40960",f"s_cmp_ge_u32 {sFILL}, 163840",
               f"s_cselect_b32 {sA}, 163840, 0",f"s_sub_u32 {sFILL}, {sFILL}, {sA}"]
    return out
def emit(a,g):
    for x in g:
        if isinstance(x,tuple): a.e(x[0],x[1])
        else: a.e(x)

def seg_loop(a,kind):
    e=a.e; L=lambda s: f"W{kind}_{s}"
    a.label(L("top"))
    NJ=1 if kind=="H" else 2
    e(f"s_waitcnt vmcnt({10+2*NJ})"); e("s_barrier")
    a.vm=[]; a.lg=[]
    rd=lambda f: e(f"ds_read_b128 {vr(4*(f%8),4)}, {vRD} offset:{1024*f}",f"f{f}")
    LA=7 if NJ==1 else 4
    for f in range(LA): rd(f)
    e(f"s_cmp_lt_u32 {sIT}, 2"); e(f"s_cselect_b32 {sA}, 1, {sW}"); e(f"s_cmp_eq_u32 {sA}, 0"); e(f"s_cbranch_scc0 {L('nosig')}")
    add_one(a,sSIG)
    a.label(L("nosig")); a.vm=[]
    fill=seg_dma(a)
    ac=lambda j,tt,t: ACC+16*j+8*tt+4*t
    for f in range(40):
        tt,k=f//20,f%20
        a.wait(lg=f"f{f}")
        for j in range(NJ):
            for t in range(2):
                A,B=wreg(j,k,t),vr(4*(f%8),4)
                if kind=="V": A,B=B,A
                d=vr(ac(j,tt,t),4)
                e(f"v_mfma_f32_16x16x32_bf16 {d}, {A}, {B}, {'0' if k==0 else d}")
                if j==0 and t==0 and f+LA<40: rd(f+LA)
        if f%3==0 and fill: emit(a,fill.pop(0))
    e(f"s_add_u32 {sSLOT}, {sSLOT}, 40960"); e(f"s_cmp_ge_u32 {sSLOT}, 163840"); e(f"s_cselect_b32 {sSLOT}, 0, {sSLOT}")
    e(f"v_add_u32 {vRD}, {sSLOT}, {vL16}")
    so=[[sOUT,sOUT2],[sOUT3,sOUT4]]
    for j in range(NJ):
      if kind=="K":
        for tt in range(2):
            t0,t1=ac(j,tt,0),ac(j,tt,1); o=TMP+4+4*tt
            for i,(x,y) in enumerate(((t0,t0+2),(t1,t1+2),(t0+1,t0+3),(t1+1,t1+3))): e(f"v_cvt_pk_bf16_f32 v{o+i}, v{x}, v{y}")
            e(f"buffer_store_dwordx4 {vr(o,4)}, {vL16}, {S_WS}, {so[j][tt]} offen sc1")
      elif kind=="V":
        for t in range(2):
            t0,t1=ac(j,0,t),ac(j,1,t); o=TMP+4+4*t
            for i,(x,y) in enumerate(((t0,t0+1),(t0+2,t0+3),(t1,t1+1),(t1+2,t1+3))): e(f"v_cvt_pk_bf16_f32 v{o+i}, v{x}, v{y}")
            e(f"buffer_store_dwordx4 {vr(o,4)}, {vVO}, {S_WS}, {so[j][0]} offen offset:{128*t} sc1")
      else:
        for tt in range(2):
            for t in range(2):
                for i in range(4):
                    z=ac(j,tt,t)+i; u=GT+4+i
                    e(f"v_add_f32 v{z}, v{z}, v{BI+8*j+4*t+i}")
                    e(f"v_mul_f32 v{u}, v{z}, v{z}"); e(f"v_fma_f32 v{u}, v{u}, {sG0}, v{GT}"); e(f"v_mul_f32 v{u}, v{u}, v{z}")
                for i in range(4): e(f"v_exp_f32 v{GT+4+i}, v{GT+4+i}")
                for i in range(4): e(f"v_add_f32 v{GT+4+i}, 1.0, v{GT+4+i}")
                for i in range(4): e(f"v_rcp_f32 v{GT+4+i}, v{GT+4+i}")
                for i in range(4): e(f"v_mul_f32 v{ac(j,tt,t)+i}, v{ac(j,tt,t)+i}, v{GT+4+i}")
            t0,t1=ac(j,tt,0),ac(j,tt,1); o=TMP+4+4*tt
            for i,(x,y) in enumerate(((t0,t0+1),(t0+2,t0+3),(t1,t1+1),(t1+2,t1+3))): e(f"v_cvt_pk_bf16_f32 v{o+i}, v{x}, v{y}")
            e(f"buffer_store_dwordx4 {vr(o,4)}, {vL16}, {S_WS}, {so[j][tt]} offen sc1")
    for r in (sOUT,sOUT2,sOUT3,sOUT4): e(f"s_add_u32 {r}, {r}, {sOSTR}")
    e(f"s_add_u32 {sSIG}, {sSIG}, 128")
    if OPT["tim"]:
        e(f"s_cmp_eq_u32 {sIT}, 3"); e(f"s_cbranch_scc0 {L('nt')}"); rt(a,2); e("s_waitcnt lgkmcnt(0)"); a.label(L("nt"))
    e(f"s_add_u32 {sIT}, {sIT}, 1"); e(f"s_cmp_lt_u32 {sIT}, 64"); e(f"s_cbranch_scc1 {L('top')}")
    e("s_branch W_tail")

def zero_wait(a,name):
    e=a.e
    spin_wait(a,name,lambda:(e(f"v_mov_b32 v{TMP+4}, 4"),e(f"global_load_dword v{TMP+5}, v{TMP+4}, {sDBG} sc1")),lambda:e(f"v_cmp_gt_u32 vcc, 32, v{TMP+5}"))

def common(a):
    e=a.e
    e(f"s_load_dwordx2 s[20:21], s[0:1], {A_X}")
    e(f"s_load_dwordx2 s[40:41], s[0:1], {A_WQ}"); e(f"s_load_dwordx2 s[42:43], s[0:1], {A_WK}"); e(f"s_load_dwordx2 s[44:45], s[0:1], {A_WV}")
    e(f"s_load_dwordx2 s[46:47], s[0:1], {B_W1}"); e(f"s_load_dwordx2 s[48:49], s[0:1], {B_B1}")
    e(f"v_mov_b32 {vLN}, v0"); e(f"v_lshlrev_b32 {vL16}, 4, v0")
    e(f"s_sub_u32 {sWI}, {sROW}, 1"); e(f"s_lshl_b32 {sWI}, {sWI}, 5"); e(f"s_add_u32 {sWI}, {sWI}, {sRANK}")
    e(f"s_mov_b32 {sCNT}, 0"); e(f"s_mov_b32 {sMIX}, 0xffff0000")
    e(f"s_mov_b32 s22, {S*D*2}"); e("s_mov_b32 s23, 0x20000"); e("s_mov_b32 s11, 0x20000")
    e("s_waitcnt lgkmcnt(0)")

def norm_rows(a):
    e=a.e; t=TMP
    e(f"s_sub_u32 {sHS}, {sWI}, 64"); e(f"s_cmp_lt_u32 {sHS}, 128"); e(f"s_cselect_b32 {sA}, {sW}, 1")
    e(f"s_cmp_eq_u32 {sA}, 0"); e("s_cbranch_scc0 W_noln")
    e(f"v_and_b32 v{t}, 15, {vLN}"); e(f"v_mul_u32_u24 v{t}, 1280, v{t}"); e(f"v_lshrrev_b32 v{t+1}, 4, {vLN}"); e(f"v_lshl_add_u32 v{t}, v{t+1}, 4, v{t}")
    e(f"s_mul_i32 {sA}, {sHS}, {16*1280}")
    for k in range(20): e(f"buffer_load_dwordx4 {vr(4*k,4)}, v{t}, {S_X}, {sA} offen offset:{64*k}")
    e(f"s_mul_i32 {sA}, {sHS}, 5120"); e(f"s_add_u32 {sA}, {sA}, {MEMP_OFF}"); e(f"s_add_u32 {sOUT}, {sA}, 4096")
    e(f"v_mov_b64 {vr(TMP+4,2)}, -1"); e(f"v_mov_b64 {vr(TMP+6,2)}, -1")
    for i in range(5): e(f"buffer_store_dwordx4 {vr(TMP+4,4)}, {vL16}, {S_WS}, {sA if i<4 else sOUT} offen offset:{1024*(i%4)} sc1")
    for i in range(4): e(f"v_mov_b32 v{TMP+i}, 0x3f803f80")
    e(f"v_and_b32 v{TMP+12}, 15, {vLN}"); e(f"v_lshrrev_b32 v{TMP+13}, 2, v{TMP+12}"); e(f"v_lshl_add_u32 v{TMP+13}, v{TMP+13}, 4, v{TMP+12}")
    e(f"v_lshlrev_b32 v{TMP+13}, 2, v{TMP+13}"); e(f"v_and_b32 v{TMP+12}, 3, v{TMP+12}")
    e(f"s_mul_i32 {sOUT}, {sHS}, 20480"); e(f"s_add_u32 {sOUT2}, {sOUT}, {YN_OFF}"); e(f"s_add_u32 {sOUT}, {sOUT}, {XN_OFF}")
    e("s_waitcnt vmcnt(5)")
    rt(a,0)
    e(f"s_mov_b32 {sIT}, 0")
    a.label("W_ln")
    layernorm(a)
    e(f"s_mov_b32 {sOUT}, {sOUT2}"); e(f"s_add_u32 {sIT}, {sIT}, 1"); e(f"s_cmp_lt_u32 {sIT}, 2"); e("s_cbranch_scc1 W_ln")
    zero_wait(a,"W_zero")
    e(f"s_lshr_b32 {sA}, {sHS}, 1"); e(f"s_lshl_b32 {sA}, {sA}, 7"); e(f"s_add_u32 {sA}, {sA}, {LNCNT}")
    add_one(a,sA)
    a.label("W_noln"); a.vm=[]; a.lg=[]

def project(a):
    e=a.e; t=TMP
    e(f"s_lshl_b32 {sTILE}, {sWI}, 1"); e(f"s_add_u32 {sA}, {sWI}, 48"); e(f"s_min_u32 {sTILE}, {sTILE}, {sA}"); e(f"s_lshr_b32 {sKIND}, {sTILE}, 5")
    e(f"s_cmp_eq_u32 {sKIND}, 0"); e("s_cselect_b32 s8, s42, s44"); e("s_cselect_b32 s9, s43, s45")
    e(f"s_cmp_eq_u32 {sKIND}, 2"); e("s_cselect_b32 s8, s40, s8"); e("s_cselect_b32 s9, s41, s9")
    e(f"s_cmp_eq_u32 {sKIND}, 3"); e("s_cselect_b32 s8, s46, s8"); e("s_cselect_b32 s9, s47, s9")
    e(f"s_mov_b32 {sA}, 8192"); e(f"s_cselect_b32 {sSTR}, {F*2}, {sA}"); e(f"s_mul_i32 s10, {sSTR}, {D}")
    e(f"v_lshrrev_b32 v{t+2}, 4, {vLN}"); e(f"v_lshlrev_b32 v{t+3}, 1, v{t+2}"); e(f"v_and_b32 v{t+4}, 15, {vLN}"); e(f"v_xor_b32 v{t+3}, v{t+3}, v{t+4}")
    e(f"s_lshl_b32 {sA}, {sW}, 4"); e(f"v_add_u32 v{t+2}, {sA}, v{t+2}"); e(f"v_mul_lo_u32 v{t+2}, v{t+2}, {sSTR}")
    e(f"v_lshl_add_u32 {vDA}, v{t+3}, 4, v{t+2}"); e(f"v_xor_b32 v{t+3}, 8, v{t+3}"); e(f"v_lshl_add_u32 {vDB}, v{t+3}, 4, v{t+2}")
    e(f"s_lshl_b32 {sSTR}, {sSTR}, 2"); e(f"s_mul_i32 {sSRC}, {sSTR}, 13"); e(f"s_lshl_b32 {sB}, {sW}, 12")
    e(f"v_bfe_u32 v{t}, {vLN}, 2, 2"); e(f"v_bfe_u32 v{t+1}, {vLN}, 4, 1"); e(f"v_lshl_add_u32 v{t+1}, v{t+1}, 2, v{t}")
    e(f"v_lshrrev_b32 v{t+2}, 4, {vLN}"); e(f"v_lshl_add_u32 v{t+2}, v{t+2}, 3, v{t}"); e(f"v_lshlrev_b32 v{t+2}, 8, v{t+2}")
    e(f"v_and_b32 v{t+3}, 3, {vLN}"); e(f"v_lshl_add_u32 v{t+2}, v{t+3}, 3, v{t+2}")
    e(f"s_lshl_b32 {sA}, {sW}, 1")
    e(f"v_xor_b32 v{t+3}, {sA}, v{t+1}"); e(f"v_lshl_add_u32 v{t+8}, v{t+3}, 5, v{t+2}")
    e(f"v_xor_b32 v{t+3}, 1, v{t+3}"); e(f"v_lshl_add_u32 v{t+9}, v{t+3}, 5, v{t+2}")
    def stage(n):
        if n%10==0:
            e(f"s_and_b32 {sOFF}, {sTILE}, 31"); e(f"s_add_u32 {sOFF}, {sOFF}, {n//10}"); e(f"s_lshl_b32 {sOFF}, {sOFF}, 8")
        for i in range(4):
            e(f"s_add_u32 m0, {sB}, {(n%10)*16384+i*1024}")
            e(f"buffer_load_dwordx4 {vDA if i<2 else vDB}, {S_W}, {sOFF} offen lds",f"w{n}")
            e(f"s_add_u32 {sOFF}, {sOFF}, {sSTR if i<3 else sSRC}")
    for n in range(10): stage(n)
    for n in range(20):
        j,st=n//10,n%10
        a.wait(vm=f"w{n}"); e("s_barrier")
        if n==1: e(f"s_cmp_eq_u32 {sKIND}, 3"); e("s_cselect_b32 s10, 0, s10")
        if 1<=n<=10: stage(n+9)
        if st in(4,8): e(f"v_add_u32 v{t+8}, 0x10000, v{t+8}"); e(f"v_add_u32 v{t+9}, 0x10000, v{t+9}")
        if n==10: e(f"v_subrev_u32 v{t+8}, 0x20000, v{t+8}"); e(f"v_subrev_u32 v{t+9}, 0x20000, v{t+9}")
        for ks in range(2):
            for tl in range(2):
                for x in range(2): e(f"ds_read_b64_tr_b16 {wreg2(j,2*st+ks,tl,x)}, v{t+8+tl} offset:{(st%4)*16384+ks*8192+x*1024}")
        e("s_waitcnt lgkmcnt(0)"); a.lg=[]
    e(f"v_and_b32 v{t}, 1, {vLN}"); e(f"v_lshlrev_b32 {vVO}, 10, v{t}"); e(f"v_lshrrev_b32 v{t}, 4, {vLN}"); e(f"v_lshl_add_u32 {vVO}, v{t}, 8, {vVO}")
    e(f"v_bfe_u32 v{t}, {vLN}, 1, 3"); e(f"v_lshl_add_u32 {vVO}, v{t}, 4, {vVO}")
    e("s_mov_b32 s8, s48"); e("s_mov_b32 s9, s49"); e(f"s_cmp_eq_u32 {sKIND}, 3"); e(f"s_cselect_b32 s10, {F*2}, 0")
    e(f"v_lshrrev_b32 v{t}, 4, {vLN}"); e(f"v_lshlrev_b32 v{t}, 3, v{t}"); e(f"s_and_b32 {sA}, {sTILE}, 31"); e(f"s_lshl_b32 {sA}, {sA}, 8"); e(f"s_lshl_b32 {sB}, {sW}, 6"); e(f"s_add_u32 {sA}, {sA}, {sB}")
    for j in range(2):
        for tl in range(2): e(f"buffer_load_dwordx2 {vr(88+4*j+2*tl,2)}, v{t}, {S_W}, {sA} offen offset:{256*j+32*tl}")
    e(f"v_lshlrev_b32 v{t+6}, 3, {vL16}")
    zero_wait(a,"W_zero2")
    spin_wait(a,"W_lnw",lambda:e(f"buffer_load_dword v{t+7}, v{t+6}, {S_WS}, 0 offen sc1"),lambda:e(f"v_cmp_gt_u32 vcc, 2, v{t+7}"),sleep=4)
    for i in range(8):
        e(f"v_lshlrev_b32 v{BI+2*i}, 16, v{88+i}"); e(f"v_and_b32 v{BI+2*i+1}, {sMIX}, v{88+i}")
    k0=math.sqrt(2/math.pi); l2e=math.log2(math.e)
    e(f"s_mov_b32 {sG0}, {f32(-2*k0*0.044715*l2e)}"); e(f"v_mov_b32 v{GT}, {f32(-2*k0*l2e)}")
    e("s_barrier")
    rt(a,1)
    e(f"s_cmp_eq_u32 {sKIND}, 3"); e(f"s_mov_b32 {sA}, {XN_OFF}"); e(f"s_cselect_b32 {sA}, {YN_OFF}, {sA}")
    e(f"s_add_u32 s20, s4, {sA}"); e("s_addc_u32 s21, s5, 0"); e(f"s_mov_b32 s22, {64*40960}")
    e(f"s_mul_i32 {sFILL}, {sW}, 10240"); e(f"s_mov_b32 {sSRC}, {sFILL}")
    e(f"s_mov_b32 {sSLOT}, 0"); e(f"v_mov_b32 {vRD}, {vL16}"); e(f"s_mov_b32 {sIT}, 0")
    e(f"s_and_b32 {sA}, {sTILE}, 31"); e(f"s_cmp_eq_u32 {sKIND}, 3"); e("s_cbranch_scc1 W_setH")
    e(f"s_lshl_b32 {sOUT}, {sA}, 13")
    e(f"s_lshl_b32 {sA}, {sKIND}, 24"); e(f"s_add_u32 {sOUT}, {sOUT}, {sA}"); e(f"s_add_u32 {sOUT}, {sOUT}, {XK_OFF}")
    e(f"s_cmp_eq_u32 {sKIND}, 1"); e(f"s_cselect_b32 {sA}, 11, 10"); e(f"s_lshl_b32 {sA}, {sW}, {sA}"); e(f"s_add_u32 {sOUT}, {sOUT}, {sA}")
    e(f"s_add_u32 {sOUT2}, {sOUT}, 4096"); e(f"s_add_u32 {sOUT3}, {sOUT}, 8192"); e(f"s_add_u32 {sOUT4}, {sOUT}, 12288"); e(f"s_mov_b32 {sOSTR}, {32*8192}"); e("s_branch W_setD")
    a.label("W_setH")
    e(f"s_lshl_b32 {sA}, {sA}, 2"); e(f"s_add_u32 {sA}, {sA}, {sW}")
    e(f"s_lshl_b32 {sOUT}, {sA}, 10"); e(f"s_add_u32 {sOUT}, {sOUT}, {HH_OFF}"); e(f"s_cmp_lt_u32 {sA}, 54"); e(f"s_cselect_b32 {sOUT}, {sOUT}, 0x7f000000")
    e(f"s_add_u32 {sOUT2}, {sOUT}, {54*1024}"); e(f"s_mov_b32 {sOSTR}, {2*54*1024}")
    a.label("W_setD")
    e(f"s_cmp_lt_u32 {sKIND}, 2"); e(f"s_mov_b32 {sA}, {QHCNT-2*128}"); e(f"s_cselect_b32 {sSIG}, {KVCNT-2*128}, {sA}")
    for i in range(3):
        for g in seg_dma(a): emit(a,g)
    e(f"s_cmp_eq_u32 {sKIND}, 1"); e("s_cbranch_scc1 WV_top"); e(f"s_cmp_eq_u32 {sKIND}, 3"); e("s_cbranch_scc1 WH_top")
    seg_loop(a,"K"); seg_loop(a,"V"); seg_loop(a,"H")
    a.label("W_tail")
    e("s_waitcnt vmcnt(0)"); e("s_barrier")
    e(f"s_cmp_eq_u32 {sW}, 0"); e("s_cbranch_scc0 W_tail2")
    for i in range(2):
        add_one(a,sSIG); e(f"s_add_u32 {sSIG}, {sSIG}, 128")
    a.label("W_tail2")
    rt(a,3)
    a.vm=[]; a.lg=[]
    finish(a)

def load_pairs(a,groups,LB,nreg,lock=True):
    e=a.e; sT0="s34"
    def issue(i):
        setup,loads,_,_=groups[i]; lb=LB[i%len(LB)]
        for x in setup: e(x)
        for j,(vo,off) in enumerate(loads):
            e(f"s_mov_b32 {sT0}, {off}"); e(f"buffer_load_dword v{lb+j}, {vo}, s[8:11], {sT0} offen",f"w{i}")
    def process(i):
        _,loads,dlo,dhi=groups[i]; lb=LB[i%len(LB)]
        a.wait(vm=f"w{i}")
        if lock: e("s_barrier")
        for dst,sel in ((dlo,"s38"),(dhi,"s39")):
            for R,(k,r) in enumerate(dst):
                if k=="v": e(f"v_perm_b32 v{r}, v{lb+2*R+1}, v{lb+2*R}, {sel}")
                else:
                    e(f"v_perm_b32 v{4+(R&3)}, v{lb+2*R+1}, v{lb+2*R}, {sel}"); e(f"v_accvgpr_write_b32 a{r}, v{4+(R&3)}")
    e("s_mov_b32 s38, 0x05040100"); e("s_mov_b32 s39, 0x07060302")
    n=len(LB)-1
    for i in range(n): issue(i)
    for i in range(len(groups)):
        if i+n<len(groups): issue(i+n)
        process(i)

def stageA(a):
    e=a.e
    sH="s24"; sS="s25"; sT0="s34"; sT1="s35"; sQ="s26"; sK="s27"; sV="s28"; sM="s29"; sO="s30"; sOC="s31"; sQ2="s36"; sK2="s37"
    sCC="s[96:97]"; sC="s96"
    e(f"s_and_b32 {sH}, s33, 31"); e(f"s_lshr_b32 {sS}, s33, 5"); e(f"s_sub_u32 {sS}, {sS}, 2")
    e(f"v_mov_b32 v15, {vLN}")
    e("v_lshrrev_b32 v4, 5, v15"); e("v_lshlrev_b32 v4, 4, v4"); e("v_bfe_u32 v5, v15, 4, 1"); e("v_lshl_add_u32 v4, v5, 2, v4")
    e("v_and_b32 v5, 15, v15"); e("v_lshlrev_b32 v5, 2, v5")
    e(f"s_lshl_b32 {sT0}, {sH}, 8"); e(f"s_lshl_b32 {sT1}, {sW}, 6"); e(f"s_add_u32 {sT0}, {sT0}, {sT1}")
    e("v_lshl_add_u32 v1, v4, 13, v5"); e(f"v_add_u32 v1, {sT0}, v1")
    e(f"s_mov_b32 s10, {D*8192}")
    place=lambda i: ("a",8*i) if i<32 else ("v",192+8*(i-32))
    T={}
    groups=[]
    for m,(lo,hi) in (("k",("s42","s43")),("v",("s44","s45"))):
        for k in range(10):
            loads=[("v1",(64*k+32*(R>>2)+8*(R&1)+2*((R>>1)&1)+x)*8192) for R in range(8) for x in range(2)]
            d=[]
            for tau in range(2):
                T[(m,k,tau)]=p=place(len(T)); d.append([(p[0],p[1]+R) for R in range(8)])
            groups.append(([f"s_mov_b32 s8, {lo}",f"s_mov_b32 s9, {hi}"] if k==0 else [],loads,d[0],d[1]))
    load_pairs(a,groups,[16,32,48],8)
    vL16="v0"; vA="v1"; vIDX="v2"; vXW="v6"; vXR="v7"; vML="v8"; vML3="v9"; vDG="v3"
    e("v_lshlrev_b32 v0, 4, v15")
    e("v_lshrrev_b32 v12, 5, v15"); e("v_lshlrev_b32 v1, 9, v12"); e("v_bfe_u32 v12, v15, 1, 3"); e("v_lshl_add_u32 v1, v12, 6, v1")
    e("v_bfe_u32 v12, v15, 4, 1"); e("v_lshl_add_u32 v1, v12, 5, v1"); e("v_and_b32 v12, 1, v15"); e("v_lshl_add_u32 v1, v12, 4, v1")
    e("v_mov_b32 v13, 0xaaaa"); e("v_mul_u32_u24 v2, v12, v13"); e("v_add_u32 v2, 0x4444, v2")
    LX=10240
    e("v_lshrrev_b32 v12, 5, v15"); e("v_lshlrev_b32 v12, 2, v12"); e("v_and_b32 v13, 15, v15"); e("v_xor_b32 v12, v12, v13")
    e("v_lshlrev_b32 v6, 3, v12"); e("v_lshrrev_b32 v12, 4, v15"); e("v_lshl_add_u32 v6, v12, 7, v6")
    e(f"s_lshl_b32 {sT0}, {sW}, 10"); e(f"s_add_u32 {sT0}, {sT0}, {LX}"); e(f"v_add_u32 v6, {sT0}, v6")
    e("v_bfe_u32 v12, v15, 3, 1"); e("v_lshlrev_b32 v7, 3, v12"); e("v_lshrrev_b32 v12, 4, v15"); e("v_lshl_add_u32 v7, v12, 1, v7")
    e("v_bfe_u32 v12, v15, 2, 1"); e("v_add_u32 v7, v7, v12"); e("v_bfe_u32 v12, v15, 1, 1"); e("v_lshlrev_b32 v12, 2, v12"); e("v_xor_b32 v7, v7, v12")
    e("v_lshlrev_b32 v7, 3, v7"); e("v_and_b32 v12, 3, v15"); e("v_lshl_add_u32 v7, v12, 7, v7"); e(f"v_add_u32 v7, {LX}, v7")
    e(f"s_mul_i32 {sT0}, {sW}, 2560"); e(f"v_add_u32 v8, {sT0}, v0")
    e("v_and_b32 v9, 0x1ff, v0"); e(f"v_add_u32 v9, {sT0}, v9")
    e("v_lshrrev_b32 v12, 4, v15"); e("v_lshlrev_b32 v12, 2, v12"); e("v_and_b32 v13, 15, v15"); e("v_sub_u32 v3, v13, v12")
    c=(128**-0.5)*math.log2(math.e)
    e(f"s_mov_b32 s96, {f32(c)}"); e(f"s_mov_b32 s97, {f32(c)}")
    e("s_mov_b32 s98, 0x3f803f80"); e("s_mov_b32 s99, 0x3f803f80"); e("s_mov_b32 s100, 0x3f003f00"); e("s_mov_b32 s101, 0x3f003f00")
    Q=16; K=48; VX=80; SX={(0,0):88,(1,0):92,(1,1):96}; SM=[100,104]; AB=108; KA=148; VA=156; X=164; P=[16,24]; O=32; ONE=48; SUM=52; PK=56
    rt(a,4)
    a.label("A_seg")
    e(f"s_lshl_b32 {sT0}, {sS}, 7"); e(f"s_add_u32 {sT0}, {sT0}, {KVCNT}")
    e("v_lshrrev_b32 v12, 9, v0"); e("v_lshlrev_b32 v10, 13, v12"); e("v_mul_u32_u24 v12, 2, v12"); e("v_sub_u32 v12, 32, v12")
    spin_wait(a,"A_qh",lambda:e(f"buffer_load_dword v11, v10, {S_WS}, {sT0} offen sc1"),lambda:e("v_cmp_gt_u32 vcc, v12, v11"),sleep=8)
    e(f"s_lshl_b32 {sT0}, {sS}, 5"); e(f"s_add_u32 {sT0}, {sT0}, {sH}"); e(f"s_lshl_b32 {sT0}, {sT0}, 13")
    e(f"s_add_u32 {sQ}, {sT0}, {XQ_OFF}"); e(f"s_add_u32 {sQ2}, {sQ}, 4096"); e(f"s_add_u32 {sK}, {sT0}, {XK_OFF}"); e(f"s_add_u32 {sK2}, {sK}, 4096")
    e(f"s_lshl_b32 {sT1}, {sW}, 11"); e(f"s_add_u32 {sV}, {sT0}, {sT1}"); e(f"s_add_u32 {sV}, {sV}, {XV_OFF}")
    for t in range(2):
        for ke in range(4):
            e(f"buffer_load_dwordx4 {vr(Q+16*t+4*ke,4)}, {vL16}, {S_WS}, {sQ2 if t else sQ} offen offset:{1024*ke} sc1",f"q{t}")
        for ke in range(4):
            e(f"buffer_load_dwordx4 {vr(K+16*t+4*ke,4)}, {vL16}, {S_WS}, {sK2 if t else sK} offen offset:{1024*ke} sc1",f"k{t}")
    for t in range(2): e(f"buffer_load_dwordx4 {vr(VX+4*t,4)}, {vL16}, {S_WS}, {sV} offen offset:{1024*t} sc1","vx")
    e(f"s_mul_i32 {sM}, {sS}, 10240"); e(f"s_add_u32 {sM}, {sM}, {MEMP_OFF}")
    e(f"s_lshl_b32 {sO}, {sS}, 6"); e(f"s_add_u32 {sO}, {sO}, {sH}"); e(f"s_lshl_b32 {sO}, {sO}, 2"); e(f"s_add_u32 {sO}, {sO}, {sW}"); e(f"s_lshl_b32 {sO}, {sO}, 10"); e(f"s_add_u32 {sO}, {sO}, {O_OFF}")
    e(f"s_lshl_b32 {sOC}, {sS}, 7"); e(f"s_add_u32 {sOC}, {sOC}, {OCNT}")
    def mf(d,A,B,first,op="v_mfma_f32_16x16x32_bf16",n=4):
        e(f"{op} {vr(d,4)}, {vr(A,n)}, {vr(B,n)}, {'0' if first else vr(d,4)}")
    for (qt,kt),d in SX.items():
        a.wait(vm=[f"q{qt}",f"k{kt}"])
        for ke in range(4): mf(d,K+16*kt+4*ke,Q+16*qt+4*ke,ke==0)
    for r in range(KA,KA+16,2): e(f"v_mov_b64 {vr(r,2)}, 0")
    e("v_mov_b32 v11, 0xff800000")
    for i in range(4):
        e(f"v_cmp_gt_i32 vcc, {i}, {vDG}")
        for d in (SX[(0,0)],SX[(1,1)]): e(f"v_cndmask_b32 v{d+i}, v{d+i}, v11, vcc")
    def ml():
        e(f"buffer_load_dwordx4 {vr(AB,4)}, {vML}, {S_WS}, {sM} offen sc1"); e(f"buffer_load_dwordx4 {vr(AB+4,4)}, {vML}, {S_WS}, {sM} offen offset:1024 sc1")
        e(f"buffer_load_dwordx4 {vr(AB+8,4)}, {vML3}, {S_WS}, {sM} offen offset:2048 sc1")
    def mc():
        e(f"v_max3_u32 v10, v{AB}, v{AB+2}, v{AB+4}"); e(f"v_max3_u32 v10, v10, v{AB+6}, v{AB+8}"); e(f"v_max_u32 v10, v10, v{AB+10}")
        e("v_cmp_eq_u32 vcc, -1, v10")
    spin_wait(a,"A_mem",ml,mc,sleep=OPT["asleep"])
    e(f"ds_write_b128 {vML}, {vr(AB,4)}"); e(f"ds_write_b128 {vML}, {vr(AB+4,4)} offset:1024"); e(f"ds_write_b128 {vML3}, {vr(AB+8,4)} offset:2048")
    a.wait(lg="all"); e("s_barrier")
    for k in range(10): e(f"ds_read_b128 {vr(AB+4*k,4)}, {vA} offset:{1024*k}",f"A{k}")
    def sm(acc_,k,key):
        kk,b=T[key]; e(f"v_smfmac_f32_16x16x64_bf16 {vr(acc_,4)}, {vr(AB+4*k,4)}, {vr(b,8,kk)}, {vIDX}")
    for k in range(10):
        a.wait(lg=f"A{k}")
        for tau in range(2): sm(KA+4*tau,k,("k",k,tau))
    sm(VA,0,("v",0,0)); sm(VA+4,0,("v",0,1))
    for tau in range(2):
        r=KA+4*tau
        e(f"v_add_f32 v{r}, v{r}, v{r+1}"); e(f"v_add_f32 v{r+2}, v{r+2}, v{r+3}"); e(f"v_cvt_pk_bf16_f32 v{r+1}, v{r}, v{r+2}")
        e(f"v_mov_b32 v{r}, 0")
        e(f"ds_write_b64 {vXW}, {vr(r,2)} offset:{512*tau}","xw")
    for k in range(1,4):
        for tau in range(2): sm(VA+4*tau,k,("v",k,tau))
    a.wait(lg="xw"); e("s_barrier")
    for ke in range(4):
        for x in range(2): e(f"ds_read_b64_tr_b16 {vr(X+4*ke+2*x,2)}, {vXR} offset:{1024*ke+512*x}",f"X{ke}")
    for k in range(4,10):
        for tau in range(2): sm(VA+4*tau,k,("v",k,tau))
    for ke in range(4):
        a.wait(lg=f"X{ke}")
        for qt in range(2): mf(SM[qt],X+4*ke,Q+16*qt+4*ke,ke==0)
    for i in range(4): e(f"v_cvt_pk_bf16_f32 v{VA+i}, v{VA+2*i}, v{VA+2*i+1}")
    e(f"v_mov_b64 {vr(ONE,2)}, s[98:99]"); e(f"v_mov_b64 {vr(ONE+2,2)}, s[98:99]"); e(f"v_mov_b64 {vr(KA,2)}, s[100:101]")
    a.wait(vm="vx")
    for qt in range(2):
        ev=[r+i for r in ([SX[(0,0)]] if qt==0 else [SX[(1,0)],SX[(1,1)]]) for i in range(4)]+[SM[qt]+2,SM[qt]+3]
        e(f"v_max3_f32 v10, v{ev[0]}, v{ev[1]}, v{ev[2]}")
        for i in range(3,len(ev)-1,2): e(f"v_max3_f32 v10, v10, v{ev[i]}, v{ev[i+1]}")
        e(f"v_max_f32 v11, v10, v{ev[-1]}"); e(f"v_max_f32 v10, v10, v{ev[-1]}")
        e("v_permlane32_swap_b32 v10, v11"); e("v_max_f32 v12, v10, v11"); e("v_max_f32 v10, v10, v11")
        e("v_permlane16_swap_b32 v10, v12"); e("v_max_f32 v10, v10, v12"); e(f"v_mul_f32 v10, {sC}, v10")
        for r in ev[::2]: e(f"v_pk_fma_f32 {vr(r,2)}, {vr(r,2)}, {sCC}, v[10:11] op_sel_hi:[1,1,0] neg_lo:[0,0,1] neg_hi:[0,0,1]")
        for r in ev: e(f"v_exp_f32 v{r}, v{r}")
        p=P[qt]
        for i in range((len(ev)-2)//2): e(f"v_cvt_pk_bf16_f32 v{p+i}, v{ev[2*i]}, v{ev[2*i+1]}")
        if qt==0: e(f"v_mov_b64 {vr(p+2,2)}, 0")
        e(f"v_cvt_pk_bf16_f32 v{p+4}, v{ev[-2]}, v{ev[-2]}"); e(f"v_cvt_pk_bf16_f32 v{p+5}, v{ev[-1]}, v{ev[-1]}")
        o=O+8*qt
        mf(SUM,ONE,p,1); mf(o,VX,p,1); mf(o+4,VX+4,p,1)
        mf(SUM,KA,p+4,0,"v_mfma_f32_16x16x16_bf16",2); mf(o,VA,p+4,0,"v_mfma_f32_16x16x16_bf16",2); mf(o+4,VA+2,p+4,0,"v_mfma_f32_16x16x16_bf16",2)
        e(f"v_rcp_f32 v10, v{SUM}")
        pk=PK+4*qt
        for i in range(0,4,2):
            for t in range(2): e(f"v_pk_mul_f32 {vr(o+4*t+i,2)}, {vr(o+4*t+i,2)}, v[10:11] op_sel_hi:[1,0]")
            for k in range(2): e(f"v_cvt_pk_bf16_f32 v{pk+i+k}, v{o+i+k}, v{o+4+i+k}")
        if qt: e(f"s_add_u32 {sO}, {sO}, {32*4096}")
        e(f"buffer_store_dwordx4 {vr(pk,4)}, {vL16}, {S_WS}, {sO} offen sc1","o")
    e("s_waitcnt vmcnt(0)"); a.vm=[]; e("s_barrier")
    e(f"s_cmp_eq_u32 {sW}, 0"); e("s_cbranch_scc0 A_nosig")
    e("s_mov_b64 exec, 1"); e("v_mov_b32 v10, 0"); e("v_mov_b32 v11, 1")
    e(f"buffer_atomic_add v11, v10, {S_WS}, {sOC} offen"); e("s_mov_b64 exec, -1"); e("s_nop 3")
    a.label("A_nosig")
    e(f"s_add_u32 {sS}, {sS}, 2"); e(f"s_cmp_lt_u32 {sS}, 64"); e("s_cbranch_scc1 A_seg")
    finish(a)

def finish(a):
    e=a.e
    e("s_waitcnt vmcnt(0)")
    if OPT["tim"]:
        rt(a,5); e("s_waitcnt lgkmcnt(0)")
        for i in range(6): e(f"v_mov_b32 v{12+i}, s{70+2*i}")
        e("v_mov_b32 v18, s90"); e("v_mov_b32 v19, s32")
        e(f"s_lshl_b32 s34, s33, 2"); e(f"s_add_u32 s34, s34, {sW}"); e("s_lshl_b32 s34, s34, 5"); e(f"s_add_u32 s34, s34, {DBG_OFF+131072}")
        e("v_mov_b32 v10, 0"); e("s_mov_b64 exec, 1")
        e(f"buffer_store_dwordx4 v[12:15], v10, {S_WS}, s34 offen"); e(f"buffer_store_dwordx4 v[16:19], v10, {S_WS}, s34 offen offset:16")
        if C.OPT["dbgout"]:
            e("v_mov_b32 v10, 40"); e(f"global_atomic_umax v10, v17, {sDBG}")
        e("s_waitcnt vmcnt(0)")
    e("s_endpgm")

def stageB(a):
    e=a.e
    sN="s24"; sS="s25"; sHF="s26"; sT0="s34"; sT1="s35"; sHS="s27"; sHH="s28"; sOO="s29"; sXO="s30"; sPAR="s31"; sMIX="s37"
    S_O="s[16:19]"; S_XX="s[20:23]"
    e(f"s_load_dwordx2 s[40:41], s[0:1], {A_WO}"); e(f"s_load_dwordx2 s[42:43], s[0:1], {B_W2}"); e(f"s_load_dwordx2 s[44:45], s[0:1], {B_B2}")
    e(f"s_load_dwordx2 s[16:17], s[0:1], {D_OUT}"); e(f"s_load_dwordx2 s[20:21], s[0:1], {A_X}")
    e(f"s_sub_u32 {sT0}, s33, 128")
    e(f"s_mul_i32 {sS}, {sT0}, 1639"); e(f"s_lshr_b32 {sS}, {sS}, 16")
    e(f"s_mul_i32 {sT1}, {sS}, 40"); e(f"s_sub_u32 {sT0}, {sT0}, {sT1}")
    e(f"s_cmp_ge_u32 {sT0}, 20"); e(f"s_cselect_b32 {sHF}, 1, 0"); e(f"s_mul_i32 {sT1}, {sHF}, 20"); e(f"s_sub_u32 {sN}, {sT0}, {sT1}")
    e(f"v_mov_b32 v15, {vLN}")
    e("v_lshrrev_b32 v4, 4, v15"); e("v_and_b32 v5, 15, v15"); e("v_lshlrev_b32 v5, 2, v5"); e(f"s_lshl_b32 {sT0}, {sN}, 6"); e(f"v_add_u32 v5, {sT0}, v5")
    e("v_mul_u32_u24 v1, 10240, v4"); e("v_add_u32 v1, v1, v5"); e(f"s_mul_i32 {sT0}, {sW}, {1024*1280}"); e(f"v_add_u32 v1, {sT0}, v1")
    e("v_mul_u32_u24 v2, 5120, v4"); e("v_add_u32 v2, v2, v5"); e(f"s_mul_i32 {sT0}, {sW}, {14*32*1280}"); e(f"v_add_u32 v2, {sT0}, v2")
    e(f"s_mov_b32 s18, {S*D*2}"); e("s_mov_b32 s19, 0x20000"); e(f"s_mov_b32 s22, {S*D*2}"); e("s_mov_b32 s23, 0x20000")
    e("s_waitcnt lgkmcnt(0)")
    groups=[]
    for kk in range(16):
        loads=[("v1",(64*kk+32*(R>>2)+2*(R&3)+x)*1280) for R in range(8) for x in range(2)]
        d=[[("a",16*kk+8*(R>>2)+4*tau+(R&3)) for R in range(8)] for tau in range(2)]
        groups.append((["s_mov_b32 s8, s40","s_mov_b32 s9, s41",f"s_mov_b32 s10, {4096*1280}"] if kk==0 else [],loads,d[0],d[1]))
    W2=144
    for kk in range(7):
        loads=[("v2",(64*kk+32*(R>>2)+16*((R>>1)&1)+2*(R&1)+x)*1280) for R in range(8) for x in range(2)]
        d=[[("v",W2+16*kk+8*(R>>2)+4*tau+(R&3)) for R in range(8)] for tau in range(2)]
        groups.append((["s_mov_b32 s8, s42","s_mov_b32 s9, s43",f"s_mov_b32 s10, {F*1280}"] if kk==0 else [],loads,d[0],d[1]))
    load_pairs(a,groups,[16,32,48],8,lock=False)
    vL16="v0"; vXO="v1"; vRW="v2"; B2=4
    e("v_lshlrev_b32 v0, 4, v15")
    e("v_and_b32 v12, 15, v15"); e("v_mul_u32_u24 v1, 1280, v12"); e("v_lshrrev_b32 v12, 4, v15"); e("v_lshlrev_b32 v12, 4, v12")
    e(f"s_lshl_b32 {sT0}, {sN}, 6"); e(f"v_add_u32 v12, {sT0}, v12"); e("v_add_u32 v1, v1, v12")
    e(f"s_lshl_b32 {sT0}, {sW}, 11"); e(f"v_add_u32 v2, {sT0}, v0")
    e("s_mov_b32 s8, s44"); e("s_mov_b32 s9, s45"); e(f"s_mov_b32 s10, {D*2}")
    e("buffer_load_dwordx4 v[16:19], v12, s[8:11], 0 offen"); e(f"s_mov_b32 {sMIX}, 0xffff0000")
    e("s_waitcnt vmcnt(0)"); a.vm=[]
    for i in range(4): e(f"v_lshlrev_b32 v{B2+i}, 16, v{16+i}"); e(f"v_and_b32 v{B2+4+i}, {sMIX}, v{16+i}")
    e(f"s_mov_b32 {sPAR}, 0")
    AC=[12,16]; XR=20; RING=32; NR=24; RED=128
    rt(a,4)
    a.label("B_unit")
    e(f"s_lshl_b32 {sT0}, {sS}, 7"); e(f"s_add_u32 {sT0}, {sT0}, {QHCNT}"); e("v_mov_b32 v24, 0")
    spin_wait(a,"B_qh",lambda:e(f"buffer_load_dword v25, v24, {S_WS}, {sT0} offen sc1"),lambda:e("v_cmp_gt_u32 vcc, 30, v25"),sleep=8)
    e(f"s_lshl_b32 {sHS}, {sS}, 1"); e(f"s_add_u32 {sHS}, {sHS}, {sHF}")
    e(f"s_mul_i32 {sHH}, {sHS}, {54*1024}"); e(f"s_mul_i32 {sT0}, {sW}, {14*1024}"); e(f"s_add_u32 {sHH}, {sHH}, {sT0}"); e(f"s_add_u32 {sHH}, {sHH}, {HH_OFF}")
    e(f"s_lshl_b32 {sOO}, {sHS}, 17"); e(f"s_lshl_b32 {sT0}, {sW}, 15"); e(f"s_add_u32 {sOO}, {sOO}, {sT0}"); e(f"s_add_u32 {sOO}, {sOO}, {O_OFF}")
    e(f"s_mul_i32 {sXO}, {sHS}, {16*1280}")
    def ld(i,sreg,tag):
        if i and i%4==0: e(f"s_add_u32 {sreg}, {sreg}, 4096")
        e(f"buffer_load_dwordx4 {vr(RING+4*(i%NR),4)}, {vL16}, {S_WS}, {sreg} offen offset:{1024*(i%4)} sc1",tag)
    def mm(i,base,kind,first):
        for tau in range(2):
            e(f"v_mfma_f32_16x16x32_bf16 {vr(AC[tau],4)}, {vr(base+8*i+4*tau,4,kind)}, {vr(RING+4*(i%NR),4)}, {'0' if first else vr(AC[tau],4)}")
    for i in range(14):
        if i==12:
            e(f"s_cmp_eq_u32 {sW}, 3"); e(f"s_cselect_b32 {sHH}, 0x7ff00000, {sHH}")
        ld(i,sHH,f"h{i}")
    e(f"buffer_load_dwordx4 {vr(XR,4)}, {vXO}, {S_XX}, {sXO} offen","xr")
    for i in range(14):
        a.wait(vm=f"h{i}"); mm(i,W2,"v",i==0)
    e(f"s_lshl_b32 {sT0}, {sS}, 7"); e(f"s_add_u32 {sT0}, {sT0}, {OCNT}")
    spin_wait(a,"B_o",lambda:e(f"buffer_load_dword v25, v24, {S_WS}, {sT0} offen sc1"),lambda:e("v_cmp_gt_u32 vcc, 32, v25"),sleep=OPT["bsleep"])
    for i in range(NR): ld(i,sOO,f"o{i}")
    for i in range(32):
        a.wait(vm=f"o{i}"); mm(i,0,"a",False)
        if i+NR<32: ld(i+NR,sOO,f"o{i+NR}")
    e(f"v_add_u32 v26, {sPAR}, {vRW}"); e(f"v_add_u32 v27, {sPAR}, {vL16}")
    e(f"ds_write_b128 v26, {vr(AC[0],4)}"); e(f"ds_write_b128 v26, {vr(AC[1],4)} offset:1024")
    a.wait(lg="all"); e("s_barrier")
    e(f"s_cmp_eq_u32 {sW}, 0"); e("s_cbranch_scc0 B_next")
    for j in range(6): e(f"ds_read_b128 {vr(RING+4*j,4)}, v27 offset:{2048+1024*j}",f"r{j}")
    for i in range(4):
        e(f"v_lshlrev_b32 v{RING+24+i}, 16, v{XR+i}"); e(f"v_and_b32 v{RING+28+i}, {sMIX}, v{XR+i}")
    for i in range(8): e(f"v_add_f32 v{RING+24+i}, v{RING+24+i}, v{B2+i}")
    for i in range(8): e(f"v_add_f32 v{AC[0]+i}, v{AC[0]+i}, v{RING+24+i}")
    for j in range(3):
        a.wait(lg=f"r{2*j+1}")
        for i in range(8): e(f"v_add_f32 v{AC[0]+i}, v{AC[0]+i}, v{RING+8*j+i}")
    for i in range(4): e(f"v_cvt_pk_bf16_f32 v{XR+i}, v{AC[0]+i}, v{AC[1]+i}")
    e(f"buffer_store_dwordx4 {vr(XR,4)}, {vXO}, {S_O}, {sXO} offen sc1")
    a.label("B_next")
    e(f"s_xor_b32 {sPAR}, {sPAR}, 8192")
    e(f"s_add_u32 {sS}, {sS}, 2"); e(f"s_cmp_lt_u32 {sS}, 64"); e("s_cbranch_scc1 B_unit")
    finish(a)

def hold(a,name):
    if not OPT["hold"]: return
    e=a.e
    e(f"s_mov_b32 {sA}, {OPT['hold']}")
    spin_wait(a,name,lambda:(e(f"v_mov_b32 v{TMP+4}, 0"),e(f"buffer_load_dword v{TMP+5}, v{TMP+4}, {S_WS}, {sA} offen sc1")),lambda:e(f"v_cmp_gt_u32 vcc, {OPT['holdn']}, v{TMP+5}"),sleep=16)

def workers(a):
    e=a.e
    common(a)
    e(f"s_cmp_lt_u32 {sWI}, 62"); e("s_cbranch_scc0 W_notp")
    project(a)
    a.label("W_notp")
    e(f"s_cmp_lt_u32 {sWI}, 64"); e("s_cbranch_scc1 L_exit")
    norm_rows(a)
    e(f"s_cmp_ge_u32 {sWI}, 208"); e("s_cbranch_scc1 L_exit")
    zero_wait(a,"W_zero3")
    hold(a,"W_hold")
    e("s_barrier")
    e(f"s_cmp_lt_u32 {sWI}, 128"); e("s_cbranch_scc0 W_stageB")
    stageA(a)
    a.label("W_stageB")
    stageB(a)
```

```python
from asmlib import *
from layout import *
import math

L_MEM=0; L_X=10240; L_KX=14336; L_SEL=22528; L_ROLE=23552; L_W=24576
S_WS="s[4:7]"; S_T="s[8:11]"
sH="s12"; sSTEP="s14"; sMR="s15"; sMW="s16"; sMZ="s17"; sTAG="s18"; sTAGM="s19"
sKX="s20"; sVX="s21"; sPC="s22"; sMP="s23"; sSW="s24"; sP0="s25"; sP1="s26"; sP2="s27"
sPR=["s28","s29","s30","s31"]; sCNT="s32"; sC="s33"; sFE="s34"; sKX2="s35"; sSW2="s36"; sSW3="s37"; sSW4="s38"
sPLO="s40"; sPHI="s41"; sT0="s42"; sT1="s43"; sEX="s[44:45]"; sUNIT="s46"; sKXN="s47"; sVXN="s48"; sMF="s49"; sPAT="s39"; sALL="s31"; sMU="s53"; sF1W="s88"; sF1R="s89"
sCC="s[96:97]"; sONE="s[98:99]"; sHALF="s[100:101]"; sDBG="s[50:51]"; sXCC="s52"; sMODE="s87"
vL16="v0"; vA="v1"; vIDX="v2"; vW="v3"; vRL="v4"; vRS="v5"; vXW="v6"; vXR="v7"; vOW="v8"; vL8="v9"
T0=10; T1=11
AB=[12,16,20,24]; QA=28; KA=32; VA=36; SL1=40; SL2=48; SL3=56

QSEQ=[]; Q_SLOT={}; O_SLOT={}; SLOT={}; TG={}; TL={}; TR={}; GPOS=[]
QS={0:{0:(SL1,"L"),1:(SL2,"L"),25:(SL3,"G"),29:(SL1,"G"),33:(SL2,"G"),31:(SL3,"L"),37:(SL3,"L"),43:(SL3,"L"),35:(SL1,"L"),41:(SL1,"L"),47:(SL1,"L"),39:(SL2,"L")},
    1:{16:(SL3,"G"),19:(SL1,"G"),22:(SL2,"G"),23:(SL3,"L"),29:(SL3,"L"),35:(SL3,"L"),41:(SL3,"L"),25:(SL1,"L"),31:(SL1,"L"),37:(SL1,"L"),27:(SL2,"L"),33:(SL2,"L")},
    2:{12:(SL3,"G"),16:(SL1,"G"),20:(SL2,"G"),18:(SL3,"L"),24:(SL3,"L"),30:(SL3,"L"),36:(SL3,"L"),22:(SL1,"L"),28:(SL1,"L"),34:(SL1,"L"),26:(SL2,"L"),32:(SL2,"L")},
    3:{14:(SL3,"G"),18:(SL1,"G"),22:(SL2,"G"),20:(SL3,"L"),28:(SL3,"L"),36:(SL3,"L"),44:(SL3,"L"),24:(SL1,"L"),32:(SL1,"L"),40:(SL1,"L"),30:(SL2,"L"),38:(SL2,"L")},
    4:{0:(SL1,"L"),1:(SL2,"L"),12:(SL3,"G"),27:(SL1,"G"),31:(SL2,"G"),18:(SL3,"L"),24:(SL3,"L"),30:(SL3,"L"),33:(SL1,"L"),39:(SL1,"L"),37:(SL2,"L"),43:(SL2,"L")},
    5:{0:(SL1,"L"),1:(SL2,"L"),10:(SL3,"G"),24:(SL1,"G"),28:(SL2,"G"),16:(SL3,"L"),22:(SL3,"L"),30:(SL3,"L"),38:(SL3,"L"),32:(SL1,"L"),42:(SL1,"L"),35:(SL2,"L")},
    6:{0:(SL1,"L"),1:(SL2,"L"),14:(SL3,"G"),25:(SL1,"G"),29:(SL2,"G"),20:(SL3,"L"),27:(SL3,"L"),33:(SL3,"L"),40:(SL3,"L"),31:(SL1,"L"),37:(SL1,"L"),35:(SL2,"L")}}
OS={0:{0:(28,"G"),1:(SL1,"G"),9:(SL2,"G"),19:(SL1,"G"),2:(SL3,"L"),5:(SL3,"L"),8:(SL3,"L"),11:(SL3,"L"),14:(SL3,"L"),17:(SL3,"L"),12:(SL2,"L"),15:(SL2,"L")},
    1:{0:(28,"G"),1:(SL1,"G"),11:(SL2,"G"),19:(SL1,"G"),2:(SL3,"L"),6:(SL3,"L"),10:(SL3,"L"),14:(SL3,"L"),18:(SL3,"L"),5:(SL1,"L"),15:(SL2,"L"),17:(SL3,"X")},
    2:{0:(28,"G"),1:(SL1,"G"),9:(SL2,"G"),19:(SL1,"G"),2:(SL3,"L"),6:(SL3,"L"),10:(SL3,"L"),14:(SL3,"L"),18:(SL3,"L"),5:(SL1,"L"),13:(SL2,"L"),17:(SL2,"L")},
    3:{0:(28,"G"),1:(SL1,"G"),11:(SL2,"G"),19:(SL1,"G"),2:(SL3,"L"),6:(SL3,"L"),10:(SL3,"L"),13:(SL3,"L"),16:(SL3,"L"),5:(SL1,"L"),15:(SL2,"L"),18:(SL2,"L")},
    4:{0:(28,"G"),1:(SL1,"G"),18:(SL2,"G"),19:(SL1,"G"),2:(SL3,"L"),6:(SL3,"L"),10:(SL3,"L"),14:(SL3,"L"),3:(SL2,"L"),7:(SL2,"L"),5:(SL1,"L"),9:(SL1,"L")},
    5:{0:(28,"G"),1:(SL1,"G"),9:(SL2,"G"),19:(SL1,"G"),2:(SL3,"L"),6:(SL3,"L"),10:(SL3,"L"),13:(SL3,"L"),16:(SL3,"L"),12:(SL2,"L"),15:(SL2,"L"),18:(SL2,"L")},
    6:{0:(28,"G"),1:(SL1,"G"),8:(SL2,"G"),19:(SL1,"G"),2:(SL3,"L"),7:(SL3,"L"),10:(SL3,"L"),13:(SL3,"L"),16:(SL3,"L"),11:(SL2,"L"),14:(SL2,"L"),17:(SL2,"L")},
    8:{0:(28,"G"),4:(SL1,"G"),10:(SL2,"G"),19:(SL1,"G"),2:(SL3,"L"),5:(SL3,"L"),8:(SL3,"L"),11:(SL3,"L"),14:(SL3,"L"),17:(SL3,"L"),13:(SL2,"L"),16:(SL2,"L")},
    9:{0:(28,"G"),3:(SL1,"G"),10:(SL2,"G"),19:(SL1,"G"),2:(SL3,"L"),6:(SL3,"L"),9:(SL3,"L"),12:(SL3,"L"),15:(SL3,"L"),18:(SL3,"L"),13:(SL2,"L"),16:(SL2,"L")}}
def setup_tiles():
    NV=OPT['nv']
    QSEQ[:]=[(m,k) for k in range(NV) for m in "qkv"]+[(m,k) for k in range(NV,18) for m in "qk"]+[("q",18),("q",19),("k",18),("k",19)]
    for d in (Q_SLOT,O_SLOT,SLOT,TG,TL,TR): d.clear()
    Q_SLOT.update(QS[OPT["qs"]]); O_SLOT.update(OS[OPT["os"]])
    GPOS[:]=sorted(p for p,v in Q_SLOT.items() if v[1]=="G")
    SLOT.update({QSEQ[p]:v for p,v in Q_SLOT.items()}); SLOT.update({("o",n):v for n,v in O_SLOT.items()})
    for key in [(m,k) for m in "qkvo" for k in range(20)]:
        kind=SLOT.get(key,(0,"R"))[1]
        if kind=="G": TG[key]=len(TG)
        elif kind=="L": TL[key]=len(TL)
        else: i=len(TR); TR[key]=("a",8*i) if i<32 else ("v",64+8*(i-32))
    assert len(TR)==56 and len(TG)==7 and len(TL)==17
def use_map(w): pass

def sw_ref(idx):
    return [sSW,sSW2,sSW3,sSW4][idx//2], (idx&1)*2048

def gload_tile(a,key,slot,tag):
    if "G" in OPT["ab"] or ("O" in OPT["ab"] and tag in("go9","go19")): return
    s,imm=sw_ref(TG[key])
    fl="" if tag in OPT["l1"] else OPT["gfl"]
    a.e(f"buffer_load_dwordx4 {vr(slot,4)}, {vL16}, {S_WS}, {s} offen offset:{imm} {fl}",tag)
    a.e(f"buffer_load_dwordx4 {vr(slot+4,4)}, {vL16}, {S_WS}, {s} offen offset:{imm+1024} {fl}",tag)
def gload_half(a,key,slot,tag,half):
    if "G" in OPT["ab"] or ("O" in OPT["ab"] and tag in("go9","go19")): return
    s,imm=sw_ref(TG[key])
    a.e(f"buffer_load_dwordx4 {vr(slot+4*half,4)}, {vL16}, {S_WS}, {s} offen offset:{imm+1024*half}",tag)
def lload_tile(a,key,slot,tag):
    o=TL[key]*2048
    a.e(f"ds_read_b128 {vr(slot,4)}, {vW} offset:{o}",tag)
    a.e(f"ds_read_b128 {vr(slot+4,4)}, {vW} offset:{o+1024}",tag)
def sm(a,acc,A,key,slot=None):
    if key in TR: k,b=TR[key]
    else: k,b="v",slot
    a.e(f"v_smfmac_f32_16x16x64_bf16 {vr(acc,4)}, {vr(A,4)}, {vr(b,8,k)}, {vIDX}")
def zero4(a,r):
    a.e(f"v_mov_b64 {vr(r,2)}, 0"); a.e(f"v_mov_b64 {vr(r+2,2)}, 0")

def chain_init(a, sW):
    setup_tiles()
    e=a.e
    e("s_load_dwordx2 s[54:55], s[0:1], %d"%A_WQ); e("s_load_dwordx2 s[56:57], s[0:1], %d"%A_WK)
    e("s_load_dwordx2 s[58:59], s[0:1], %d"%A_WV); e("s_load_dwordx2 s[60:61], s[0:1], %d"%A_WO)
    e("s_load_dwordx2 s[62:63], s[0:1], %d"%A_MEM0)
    e(f"s_mov_b32 {sPLO}, 0x05040100"); e(f"s_mov_b32 {sPHI}, 0x07060302")
    e("v_mov_b32 v15, v0"); e("v_lshlrev_b32 v0, 4, v0"); e("s_mov_b32 s11, 0x20000")
    def lanes():
        e("v_bfe_u32 v12, v15, 1, 3"); e("v_lshlrev_b32 v1, 6, v12"); e("v_lshrrev_b32 v12, 4, v15"); e("v_lshl_add_u32 v1, v12, 4, v1")
        e("v_and_b32 v12, 1, v15")
        e("v_mov_b32 v13, 0xaaaa"); e("v_mul_u32_u24 v2, v12, v13"); e("v_add_u32 v2, 0x4444, v2")
        e(f"s_lshl_b32 {sUNIT}, {sW}, 5"); e(f"s_add_u32 {sUNIT}, {sUNIT}, {sH}"); e(f"s_lshl_b32 {sT0}, {sUNIT}, 7")
        e("v_lshrrev_b32 v12, 3, v15"); e("v_mul_u32_u24 v4, 10240, v12"); e("v_and_b32 v12, 7, v15"); e("v_lshl_add_u32 v4, v12, 4, v4")
        e(f"v_add_u32 v4, {sT0}, v4")
        e(f"s_and_b32 {sT1}, {sUNIT}, 1"); e(f"s_lshl_b32 {sT1}, {sT1}, 2"); e(f"s_bfe_u32 {sMU}, {sUNIT}, 0x20001"); e(f"s_or_b32 {sT1}, {sT1}, {sMU}")
        e(f"s_andn2_b32 {sMU}, {sUNIT}, 7"); e(f"s_or_b32 {sT1}, {sT1}, {sMU}"); e(f"s_cmp_lt_u32 {sUNIT}, 64"); e(f"s_cselect_b32 {sMU}, {sT1}, {sUNIT}")
        e(f"s_lshl_b32 {sT0}, {sMU}, 7")
        e("v_lshrrev_b32 v12, 4, v15"); e("v_lshlrev_b32 v5, 6, v12"); e("v_and_b32 v12, 15, v15"); e("v_lshl_add_u32 v5, v12, 3, v5")
        e(f"v_add_u32 v5, {sT0}, v5"); e("v_and_b32 v12, 0x28, v15"); e("v_cmp_eq_u32 vcc, 0, v12"); e("v_mov_b32 v13, 0x7ff00000")
        e("v_cndmask_b32 v5, v13, v5, vcc")
        if OPT["probe"]=="c": e(f"s_lshl_b32 {sT1}, {sUNIT}, 3"); e(f"s_add_u32 {sT1}, {sT1}, 10240"); e(f"v_writelane_b32 v5, {sT1}, 32")
        e("v_lshrrev_b32 v12, 5, v15"); e("v_lshlrev_b32 v12, 2, v12"); e("v_and_b32 v13, 15, v15"); e("v_xor_b32 v12, v12, v13")
        e("v_lshlrev_b32 v6, 3, v12"); e("v_lshrrev_b32 v12, 4, v15"); e("v_lshl_add_u32 v6, v12, 7, v6")
        e(f"s_lshl_b32 {sT0}, {sW}, 10"); e(f"s_add_u32 {sT0}, {sT0}, {L_X}"); e(f"v_add_u32 v6, {sT0}, v6")
        e("v_bfe_u32 v12, v15, 3, 1"); e("v_lshlrev_b32 v7, 3, v12"); e("v_lshrrev_b32 v12, 4, v15"); e("v_lshl_add_u32 v7, v12, 1, v7")
        e("v_bfe_u32 v12, v15, 2, 1"); e("v_add_u32 v7, v7, v12"); e("v_bfe_u32 v12, v15, 1, 1"); e("v_lshlrev_b32 v12, 2, v12"); e("v_xor_b32 v7, v7, v12")
        e("v_lshlrev_b32 v7, 3, v7"); e("v_and_b32 v12, 3, v15"); e("v_lshl_add_u32 v7, v12, 7, v7"); e(f"v_add_u32 v7, {L_X}, v7")
        e("v_bfe_u32 v12, v15, 2, 2"); e("v_lshlrev_b32 v8, 7, v12"); e("v_and_b32 v12, 1, v15"); e("v_lshl_add_u32 v8, v12, 6, v8")
        e("v_lshrrev_b32 v12, 4, v15"); e("v_lshl_add_u32 v8, v12, 4, v8"); e(f"s_lshl_b32 {sT0}, {sW}, 9"); e(f"v_add_u32 v8, {sT0}, v8")
        if OPT["owx"]==2: e("v_and_b32 v12, 2, v15"); e("v_lshl_add_u32 v8, v12, 17, v8")
        if not OPT["owx"]: e(f"v_and_b32 v13, 0x1ff, v8"); e(f"v_add_u32 v13, {L_ROLE+512}, v13"); e("v_and_b32 v12, 2, v15"); e("v_cmp_eq_u32 vcc, 0, v12"); e("v_cndmask_b32 v8, v13, v8, vcc")
        e("v_lshlrev_b32 v9, 3, v15")
    def waddr():
        e("v_lshrrev_b32 v4, 4, v15"); e("v_lshlrev_b32 v4, 2, v4")
        e("v_and_b32 v5, 15, v15"); e("v_lshlrev_b32 v5, 2, v5")
        e(f"s_lshl_b32 {sT0}, {sH}, 8"); e(f"s_lshl_b32 {sT1}, {sW}, 6"); e(f"s_add_u32 {sT0}, {sT0}, {sT1}")
        e("v_lshl_add_u32 v1, v4, 13, v5"); e(f"v_add_u32 v1, {sT0}, v1")
        e("v_mul_u32_u24 v2, 1280, v4"); e("v_add_u32 v2, v2, v5")
        e(f"s_mul_i32 {sT0}, {sH}, {128*1280}"); e(f"s_add_u32 {sT0}, {sT0}, {sT1}"); e(f"v_add_u32 v2, {sT0}, v2")
        e("v_add_u32 v14, v2, v5"); e(f"v_add_u32 v14, {sT1}, v14")
        if "X" in OPT["ab"]:
            e("v_add_u32 v1, v1, v5"); e(f"s_and_b32 {sT0}, {sW}, 1"); e(f"s_mul_i32 {sT0}, {sT0}, {8192-64}"); e(f"v_add_u32 v1, {sT0}, v1")
            e(f"s_and_b32 {sT0}, {sW}, 1"); e(f"s_mul_i32 {sT0}, {sT0}, 1280"); e(f"v_add_u32 v14, {sT0}, v14"); e(f"v_add_u32 v2, {sT0}, v2")
        if OPT["stg"]:
            e("v_lshrrev_b32 v12, 4, v15"); e(f"s_lshl_b32 {sT0}, {sW}, 4"); e(f"v_add_u32 v1, {sT0}, v12"); e("v_lshlrev_b32 v1, 13, v1")
            e("v_and_b32 v13, 15, v15"); e("v_lshl_add_u32 v1, v13, 4, v1"); e(f"s_lshl_b32 {sT0}, {sH}, 8"); e(f"v_add_u32 v1, {sT0}, v1")
            e("v_lshlrev_b32 v13, 10, v12"); e("v_add_u32 v13, v13, v5"); e(f"v_add_u32 v13, {sT1}, v13")
        e(f"s_mul_i32 {sT0}, {sW}, {17*2048}"); e(f"s_add_u32 {sT0}, {sT0}, {L_W}"); e(f"v_add_u32 v3, {sT0}, v0")
        e(f"s_lshl_b32 {sT0}, {sH}, 2"); e(f"s_add_u32 {sT0}, {sT0}, {sW}"); e(f"s_lshl_b32 {sT0}, {sT0}, 14")
        e(f"s_add_u32 {sSW}, {sT0}, {SW_OFF}"); e(f"s_add_u32 {sSW2}, {sSW}, 4096"); e(f"s_add_u32 {sSW3}, {sSW}, 8192"); e(f"s_add_u32 {sSW4}, {sSW}, 12288")
        e("s_mov_b32 s10, %d"%(640*8192)); e("s_mov_b32 s11, 0x20000")
        if OPT["stg"]: e(f"s_lshl_b32 {sT1}, {sW}, 12")
    groups=[(m,k) for m in "qkv" for k in range(10)]+[("o",j,ko) for j in range(5) for ko in range(2)]
    LB=[16,32,48,240][:OPT["idepth"]+1]
    lbuf=lambda i: LB[i%len(LB)] if (len(LB)<4 or i<36) else LB[(0,1,2,0)[i-36]]
    base={"q":54,"k":56,"v":58,"o":60}
    cur=[None]
    STG=OPT["stg"]
    if STG:
        groups=groups[:30]+[("o2",c,ko) for c in range(2) for ko in range(4)]+[("o",4,ko) for ko in range(2)]
        base["o2"]=60
        assert all(TL[k]>=9 for k in TL if k[0]=="o") and all(TL[k]<9 for k in TL if k[0]!="o")
    NS=OPT["ns"]; SD=OPT["sd"]
    slot=lambda i: L_W+(i%NS)*17*2048+9*2048 if i%NS<4 else 0
    def issue(i):
        g=groups[i]; lb=lbuf(i)
        if cur[0]!=g[0]:
            e(f"s_mov_b32 s8, s{base[g[0]]}"); e(f"s_mov_b32 s9, s{base[g[0]]+1}"); cur[0]=g[0]
        if STG and i<30:
            for j in range(4):
                e(f"s_add_u32 m0, {sT1}, {slot(i)+1024*j}"); e(f"s_mov_b32 {sT0}, {(64*g[1]+4*j)*8192}")
                e(f"buffer_load_dwordx4 v1, {S_T}, {sT0} offen {OPT['wfl']} lds",f"w{i}")
            return
        if g[0]=="o2":
            for j in range(4):
                for x in range(2):
                    row=32*g[2]+16*(j>>1)+2*(j&1)+x
                    e(f"s_mov_b32 {sT0}, {row*1280+512*g[1]}")
                    e(f"buffer_load_dwordx2 {vr(lb+4*j+2*x,2)}, v14, {S_T}, {sT0} offen",f"w{i}")
            return
        for j in range(8):
            for x in range(2):
                row=64*g[-1]+32*(j>>2)+16*((j>>1)&1)+2*(j&1)+x
                if g[0]!="o": off=row*8192; vo="v1"
                elif g[1]<4: off=row*1280+512*(g[1]>>1)+4*(g[1]&1); vo="v14"
                else: off=row*1280+1024; vo="v2"
                e(f"s_mov_b32 {sT0}, {off}")
                e(f"buffer_load_dword v{lb+2*j+x}, {vo}, {S_T}, {sT0} offen",f"w{i}")
    tmp=[4,8]
    def put(key,lb,st=2,dx=1):
        src=lambda R: f"v{lb+st*(R>>1)+dx}, v{lb+st*(R>>1)}, {sPHI if R&1 else sPLO}"
        if key in TR and TR[key][0]=="v":
            for R in range(8): e(f"v_perm_b32 v{TR[key][1]+R}, {src(R)}")
            return
        for half in range(2):
            t=tmp[half]
            for R in range(4): e(f"v_perm_b32 v{t+R}, {src(4*half+R)}")
            if key in TR:
                for R in range(4): e(f"v_accvgpr_write_b32 a{TR[key][1]+4*half+R}, v{t+R}")
            elif key in TL:
                e(f"ds_write_b128 v3, {vr(t,4)} offset:{TL[key]*2048+half*1024}")
            else:
                sg,imm=sw_ref(TG[key])
                e(f"buffer_store_dwordx4 {vr(t,4)}, v0, {S_WS}, {sg} offen offset:{imm+half*1024} {OPT['swfl']}","st")
    def process(i):
        g=groups[i]; lb=lbuf(i)
        a.wait(vm=f"w{i}")
        if STG and i<30:
            lb=16
            e("s_barrier")
            if i+SD<30: issue(i+SD)
            elif i==30-SD: issue(30)
            elif i==31-SD: issue(31)
            e(f"v_add_u32 v12, {slot(i)}, v13")
            for j in range(8):
                row=32*(j>>2)+16*((j>>1)&1)+2*(j&1)
                e(f"ds_read2st64_b32 {vr(lb+2*j,2)}, v12 offset0:{row} offset1:{row+1}")
            e("s_waitcnt lgkmcnt(0)"); a.lg=[]
            if i==29: e("s_barrier")
        elif OPT["lock"] and not STG: e("s_barrier")
        for u in range(2):
            if g[0]=="o2": put(("o",8*g[1]+4*u+g[2]),lb+u,4,2)
            else: put((g[0],2*g[1]+u) if g[0]!="o" else ("o",4*g[1]+2*g[2]+u),lb+8*u)
    waddr(); e("s_waitcnt lgkmcnt(0)")
    issue(0); issue(1); q0=list(a.vm)
    lanes()
    e(f"s_mul_i32 {sT0}, {sH}, 10240"); e(f"s_add_u32 {sT0}, {sT0}, {P_OFF}"); e(f"s_lshl_b32 {sT1}, {sW}, 10")
    e(f"s_add_u32 {sP0}, {sT0}, {sT1}"); e(f"s_add_u32 {sP1}, {sP0}, 4096"); e(f"s_lshl_b32 {sT1}, {sW}, 9"); e(f"s_add_u32 {sP2}, {sT0}, {sT1}"); e(f"s_add_u32 {sP2}, {sP2}, 8192")
    for m in range(4): e(f"s_mov_b32 {sPR[m]}, {P_OFF+m*81920}")
    e(f"s_lshl_b32 {sT0}, {sH}, 13"); e(f"s_add_u32 {sKX}, {sT0}, {XK_OFF}"); e(f"s_add_u32 {sKX2}, {sKX}, 4096")
    e(f"s_lshl_b32 {sT1}, {sW}, 11"); e(f"s_add_u32 {sVX}, {sT0}, {XV_OFF}"); e(f"s_add_u32 {sVXN}, {sVX}, {32*8192}"); e(f"s_add_u32 {sVX}, {sVX}, {sT1}")
    e(f"s_add_u32 {sKXN}, {sKX}, {32*8192}")
    e(f"s_mul_i32 {sPC}, {sH}, {OPT['piece']}"); e(f"s_add_u32 {sMP}, {sPC}, {MEMP_OFF-10240}")
    c=(128**-0.5)*math.log2(math.e)
    import struct
    e(f"s_mov_b32 {sC}, 0x%08x"%struct.unpack("<I",struct.pack("<f",c))[0])
    e(f"s_mov_b32 s96, {sC}"); e(f"s_mov_b32 s97, {sC}")
    e("s_mov_b32 s98, 0x3f803f80"); e("s_mov_b32 s99, 0x3f803f80"); e("s_mov_b32 s100, 0x3f003f00"); e("s_mov_b32 s101, 0x3f003f00")
    e(f"s_lshl_b32 {sF1W}, {sW}, 7"); e(f"s_add_u32 {sF1W}, {sF1W}, {sH}"); e(f"s_add_u32 {sF1W}, {sF1W}, {F1_OFF}")
    e(f"s_cmp_lt_u32 {sW}, 2"); e(f"s_cselect_b32 {sT0}, 3, 2"); e(f"s_lshr_b32 {sT0}, {sH}, {sT0}"); e(f"s_and_b32 {sT0}, {sT0}, 3")
    e(f"s_lshl_b32 {sT1}, {sW}, 2"); e(f"s_add_u32 {sT0}, {sT0}, {sT1}"); e(f"s_lshl_b32 {sT0}, {sT0}, 7"); e(f"s_add_u32 {sF1R}, {sT0}, {F1_OFF}")
    e(f"s_mov_b32 {sFE}, 0xfffffffe")
    e("s_mov_b32 s44, 0x33333333"); e("s_mov_b32 s45, 0x33333333")
    e(f"s_lshl_b32 {sT0}, {sW}, 12"); e(f"s_add_u32 {sMR}, {sT0}, {M_OFF}")
    if OPT["probe"]=="b":
        e(f"s_and_b32 {sT0}, {sH}, {OPT['nrep']-1}"); e(f"s_lshl_b32 {sT0}, {sT0}, 8"); e(f"s_lshl_b32 {sT1}, {sW}, 5"); e(f"s_add_u32 {sT0}, {sT0}, {sT1}")
        e(f"s_add_u32 {sMF}, {sT0}, {FL_OFF}"); e(f"s_mov_b32 {sPAT}, 0")
    else:
        e(f"s_lshl_b32 {sT0}, {sW}, 8"); e(f"s_add_u32 {sMF}, {sT0}, {M_OFF+10240}")
    e(f"s_mov_b32 {sMW}, {M_OFF+16384}"); e(f"s_mov_b32 {sMZ}, {M_OFF+49152}")
    e(f"s_mov_b32 {sSTEP}, 0"); e(f"s_mov_b32 {sTAG}, 1"); e(f"s_mov_b32 {sTAGM}, -1"); e(f"s_mov_b32 {sCNT}, 0")
    e("v_mov_b64 v[56:57], 0"); e("v_mov_b64 v[58:59], 0"); e("v_mov_b64 v[60:61], -1")
    e(f"buffer_store_dwordx4 v[56:59], {vL16}, {S_WS}, {sP0} offen sc1"); e(f"buffer_store_dwordx4 v[56:59], {vL16}, {S_WS}, {sP1} offen sc1")
    e(f"buffer_store_dwordx2 v[56:57], {vL8}, {S_WS}, {sP2} offen sc1")
    e("s_mov_b64 exec, 1")
    for c in range(3): e(f"buffer_store_byte v56, v56, {S_WS}, {sF1W} offen offset:{512*c} sc1")
    e("s_mov_b64 exec, -1")
    e(f"s_cmp_ge_u32 {sUNIT}, 80"); e("s_cbranch_scc1 C_noM")
    e("s_mov_b32 s8, s62"); e("s_mov_b32 s9, s63"); e("s_mov_b32 s10, 10240")
    e(f"s_and_b32 {sT0}, {sMU}, 3"); e(f"s_mul_i32 {sT0}, {sT0}, 2560"); e(f"s_lshr_b32 {sT1}, {sMU}, 2"); e(f"s_lshl_b32 {sT1}, {sT1}, 6"); e(f"s_add_u32 {sT0}, {sT0}, {sT1}")
    e("v_bfe_u32 v12, v15, 4, 1"); e("v_mul_u32_u24 v12, 1280, v12"); e("v_and_b32 v13, 7, v15"); e("v_lshl_add_u32 v12, v13, 3, v12")
    e(f"buffer_load_dwordx2 v[62:63], v12, {S_T}, {sT0} offen")
    for k in range(1,4):
        e(f"s_mov_b32 {sT1}, {M_OFF+16384*k}"); e(f"buffer_store_dwordx2 v[60:61], {vRS}, {S_WS}, {sT1} offen sc1")
    e("s_waitcnt vmcnt(0)")
    e(f"v_min_u32 v62, {sFE}, v62")
    e(f"s_mov_b32 {sT1}, {M_OFF}"); e(f"buffer_store_dwordx2 v[62:63], {vRS}, {S_WS}, {sT1} offen sc1")
    a.label("C_noM")
    e("s_mov_b32 s8, s4"); e("s_mov_b32 s9, s5"); e("s_mov_b32 s10, 0")
    if OPT["probe"]=="b":
        e(f"s_cmp_eq_u32 {sW}, 3"); e("s_cbranch_scc1 C_noF")
        e(f"s_add_u32 s8, s4, {FL_OFF}"); e("s_addc_u32 s9, s5, 0"); e(f"s_mov_b32 s10, {OPT['nrep']*256}")
        e("v_lshlrev_b32 v12, 4, v0"); e("v_mov_b32 v13, 0")
        e(f"buffer_store_byte v13, v12, {S_T}, {sUNIT} offen sc1")
        a.label("C_noF")

    e(f"s_cmp_eq_u32 {sW}, 3"); e("s_cbranch_scc0 C_noZ")
    e(f"s_lshl_b32 {sT0}, {sH}, 10"); e(f"buffer_store_dwordx4 v[56:59], v0, {S_WS}, {sT0} offen sc1")
    e("s_mov_b64 exec, 1"); e(f"s_lshl_b32 {sT0}, 1, {sXCC}"); e("v_mov_b32 v12, 8"); e(f"v_mov_b32 v13, {sT0}")
    e(f"global_atomic_or v12, v13, {sDBG}"); e("s_mov_b64 exec, -1")
    a.label("C_noZ"); a.vm=[]
    e("v_and_b32 v12, 15, v15"); e("v_and_b32 v52, 0xff, v0")
    for tab,neg in ((0,0),):
        for r,ent in enumerate([((0,2),(1,3)),((4,6),(5,7)),((2,None),(3,None)),((6,None),(7,None))]):
            e(f"v_mov_b32 v{48+r}, 0")
            for half,(pos,ng) in enumerate(ent):
                for row,val in ((pos,0x3f80),(ng if neg else None,0xbf80)):
                    if row is None: continue
                    e(f"v_mov_b32 v13, 0x{val<<(16*half):x}"); e(f"v_cmp_eq_u32 vcc, {row}, v12"); e(f"v_cndmask_b32 v{48+r}, v{48+r}, v13, vcc")
        e(f"ds_write_b128 v52, v[48:51] offset:{L_SEL+tab}")
        e("s_waitcnt lgkmcnt(0)")
    waddr(); a.vm=q0
    DD=OPT["idepth"]
    e("s_mov_b32 s8, s54"); e("s_mov_b32 s9, s55")
    if STG:
        for i in range(2,SD): issue(i)
        lbuf=lambda i: (32,48,16)[(i-30)%3]
    else:
        for i in range(2,DD): issue(i)
    for i in range(len(groups)):
        if STG:
            if 32<=i+2<len(groups): issue(i+2)
        elif i+DD<len(groups) and not (DD==3 and i==36): issue(i+DD)
        process(i)
        if DD==3 and i==36 and not STG: issue(39)
        if i==(2 if not STG else max(SD,3)-1):
            if not OPT["lock"]: e("s_barrier")
            e(f"s_cmp_eq_u32 {sW}, 3"); e("s_cbranch_scc0 C_noA")
            q=list(a.vm)
            e("s_mov_b64 exec, 1"); e("v_mov_b32 v4, 4"); e("v_mov_b32 v5, 1"); e(f"global_atomic_add v4, v5, {sDBG}"); e("s_mov_b64 exec, -1")
            a.label("C_noA"); a.vm=q
    a.wait(vm="all",lg="all")
    lanes()
    e("s_mov_b32 s8, s4"); e("s_mov_b32 s9, s5"); e("s_mov_b32 s10, 0")
    e(f"s_cmp_eq_u32 {sW}, 3"); e("s_cbranch_scc1 C_noF2")
    e(f"s_add_u32 s8, s4, {FL_OFF}"); e("s_addc_u32 s9, s5, 0"); e(f"s_mov_b32 s10, {OPT['nrep']*256}")
    a.label("C_noF2")

STAMPS=[]
OPT={"kvstride":32*8192,"d0":25,"d1":70,"d1b":90,"m1pos":0,"d2":0,"d3":0,"pf":1,"nosync":0,"stamps":[],"lock":1,"rl":20,"pub":1,"pipe":2,"probe":"b","owx":2,"fine":"","vxe":0,"gq2":0,"vo":1,"one":1,"kxw":(2,3),"xo":1,"g9pre":1,"b1c":35,"g0p":0,"blind":0,"nanchk":1,"ns":4,"sd":3,"wfl":"","stg":1,"b4p":3,"nv":12,"rtail":0,"half":1,"kxb0":0,"pubp":6,"qs":0,"os":5,"b0w0":1,"pfw":0,"w2late":1,"b0":3,"rot":1,"al":(6,0),"gate":0,"swfl":"","wb":1,"warm":1,"nat":("p0","p2","p2"),"dbgout":0,"lastlds":2,"f1":0,"q1":16,"spec":0,"kvfl":"sc1","piece":320,"m1in":0,"pairw":0,"b4":0,"ststag":0,"g9in":0,"g1pv":1,"kxout":(11,1),"b1b":13,"g19":(2,4),"idepth":2,"prep":(13,14,15,17),"m1pre":0,"gq":(0,1),"stag":1,"kxp":(7,1),"pfp":13,"go1p":"exp","g18":(10,11),"unr":4,"goearly":1,"mpstride":10240,"pubfl":"sc1","pubpos":"qk","pfsplit":0,"kvmask":7,"kvchk":1,"pfwait":0,"pffl":"sc1","nrep":2,"np":5,"l1":(),"gfl":"","prepos":"early","percu":0,"at":40,"d4":0,"ab":"","pfpos":"qk"}
def delay(a,n):
    while n>0:
        k=min(n,16); a.e(f"s_nop {k-1}"); n-=k
def stamp(a,tim,name):
    if OPT["fine"] and not name.startswith(OPT["fine"]) and name!="b1": return
    if not OPT["fine"] and name[0]=="_": return
    if name not in STAMPS: STAMPS.append(name)
    if tim==3:
        i=STAMPS.index(name); assert i<19; a.e(f"s_memtime s[{54+2*i}:{55+2*i}]")
        if OPT["fine"]: a.lg+= [None,None]
        return
    if tim!=1 or name not in OPT["stamps"]: return
    i=OPT["stamps"].index(name)
    a.e("s_memtime s[70:71]"); a.e("s_waitcnt lgkmcnt(0)"); a.lg=[]
    a.e("s_sub_u32 s72, s70, s73"); a.e("s_mov_b32 s73, s70"); a.e(f"s_add_u32 s{76+i}, s{76+i}, s72")

def dma(a,n,soff,tag,first=0):
    fl=OPT["kvfl"] if tag=="kx" else "sc1"
    for i in range(first,first+n):
        a.e(f"buffer_load_dwordx4 {vL16}, {S_WS}, {soff} offen offset:{1024*i} {fl} lds",tag)

def chain_wave(a, w, st, pfx, tim=0):
    use_map(w)
    e=a.e; L=lambda s: f"{pfx}{w}_{s}"
    nd=[4,4,2,0][w]
    def chk(l):
        if OPT["nosync"] or (OPT["blind"] and l=="mr"): e("s_nop 0")
        else: e(f"s_cbranch_vccnz {L(l)}")
    def spin(c=None):
        if tim in(1,2) and c: e(f"s_add_u32 {c}, {c}, 1")
        e(f"s_add_u32 {sCNT}, {sCNT}, 1"); e(f"s_cmp_gt_u32 {sCNT}, 0x40000"); e("s_cbranch_scc1 L_abort")
    def aread(k,buf): e(f"ds_read_b128 {vr(buf,4)}, {vA} offset:{L_MEM+512*k}",f"A{k}")
    tg=lambda key: "t%s%d"%key
    def prestage():
        for p in range(2):
            if p in Q_SLOT: lload_tile(a,QSEQ[p],SLOT[QSEQ[p]][0],None)
    B0L=[(QSEQ[p],h) for p in GPOS for h in range(2)][:max(OPT["b0"]-1,0)]
    def b0loads():
        for k,h in B0L: gload_half(a,k,SLOT[k][0],tg(k),h)
    def zero_acc():
        for r in (QA,KA,VA): zero4(a,r)
    NREP=OPT["nrep"]
    def paddr(r):
        if OPT["probe"]=="b": e(f"v_bfe_u32 v{r}, {vL16}, 2, {4 if w==2 else 5}")
        elif OPT["probe"]=="c": e(f"v_and_b32 v{r}, {0x7f if w==2 else 0xff}, {vL8}")
        else:
            e(f"v_lshlrev_b32 v{r}, 2, {vL16}")
            if w==2: e(f"v_and_b32 v{r}, 0x7ff, v{r}")
    def probe(d,r,tag=None):
        e(f"buffer_load_dword v{d}, v{r}, {S_WS}, {sMR if OPT['probe']=='d' else sMF} offen sc1",tag)
    def pcmp(d):
        if OPT["probe"]=="b": e(f"v_cmp_ne_u32 vcc, {sPAT}, v{d}")
        else: e(f"v_cmp_eq_u32 vcc, -1, v{d}")
    def mfetch():
        paddr(T1); probe(T1,T1,"pr")
        dma(a,nd,sMR,"dma")
    if w==3: e(f"s_cmp_eq_u32 {sH}, 0"); e(f"s_cselect_b32 {sALL}, 0, 1")
    if tim in(1,2):
        e("s_memtime s[70:71]"); e("s_waitcnt lgkmcnt(0)"); e("s_mov_b32 s73, s70"); e("s_mov_b32 s74, s70")
        for i in range(11): e(f"s_mov_b32 s{76+i}, 0")
    if OPT["warm"]:
        e(f"v_lshlrev_b32 v{T1}, 3, {vL16}")
        if w<3:
            for k in range(4): e(f"s_mov_b32 {sT0}, {M_OFF+16384*k}"); e(f"buffer_load_dwordx2 v[12:13], {vRS}, {S_WS}, {sT0} offen sc1")
            e(f"buffer_load_dword v14, v{T1}, {S_WS}, {sP0} offen sc1") if w==0 else None
        else:
            e(f"s_sub_u32 {sT0}, {sVXN}, {32*8192}"); e(f"buffer_load_dword v14, v{T1}, {S_WS}, {sT0} offen sc1")
    if tim==5 and w==0:
        e("s_memrealtime s[70:71]"); e("s_waitcnt lgkmcnt(0)")
        e(f"s_lshl_b32 s72, {sH}, 8"); e(f"s_add_u32 s72, s72, {DBG_OFF+0x40000}")
        e(f"v_mov_b32 v{T0}, s70"); e(f"v_lshlrev_b32 v{T1}, 24, {vL16}")
        e(f"buffer_store_dword v{T0}, v{T1}, {S_WS}, s72 offen")
    if OPT["gate"] and w==0:
        e(f"v_mov_b32 v{T0}, 0x7f"); e(f"v_lshlrev_b32 v{T1}, 24, {vL16}")
        e(f"buffer_store_byte v{T0}, v{T1}, {S_WS}, {sF1W} offen {st}")
        e(f"v_bfe_u32 v{T1}, {vL16}, 2, 5"); e(f"s_mov_b32 {sT0}, {F1_OFF}"); e(f"s_mov_b32 {sT1}, 0x7f7f7f7f")
        a.label(L("gate"))
        e(f"buffer_load_dword v{T0}, v{T1}, {S_WS}, {sT0} offen sc1"); spin(); e("s_waitcnt vmcnt(0)")
        e(f"v_cmp_ne_u32 vcc, {sT1}, v{T0}"); e(f"s_cbranch_vccz {L('gated')}"); e("s_sleep 2"); e(f"s_branch {L('gate')}")
        a.label(L("gated"))
    a.label(L("rec"))
    e("s_waitcnt vmcnt(0) lgkmcnt(0)"); a.vm=[]; a.lg=[]
    spin("s84")
    e("s_barrier")
    prestage()
    if OPT["kxout"] and w in(0,3):
        e(f"s_mov_b32 m0, {L_KX+(4096 if w else 0)}"); dma(a,4,sKX2 if w else sKX,"kx")
    if w<3: e(f"s_mov_b32 m0, {4096*w}")
    if w==0 or (w<3 and OPT["m1pre"]): dma(a,nd,sMR,"dma")
    if OPT["b0"] and (w==1 or (w==2 and not OPT["w2late"])): mfetch()
    if w or OPT["b0w0"]: b0loads()
    zero_acc()
    e("s_waitcnt vmcnt(0) lgkmcnt(0)"); a.vm=[]; a.lg=[]
    top_vm={0:[],1:["rs","fl","mz"],2:["rs","fl","mz"],3:[]}[w]
    if OPT["m1pre"] and w in(1,2): top_vm=["dma"]*nd
    if OPT["b0"] and (w==1 or (w==2 and not OPT["w2late"])): top_vm=top_vm+["pr"]+["dma"]*nd
    if w or OPT["b0w0"]: top_vm=top_vm+[tg(k) for k,h in B0L]
    if OPT["kxb0"] and w==3: top_vm=top_vm+["kx"]*8
    if OPT["pub"] and OPT["pubpos"]=="hop" and w==3: top_vm=["pub"]
    a.vm=list(top_vm)
    if OPT["al"]:
        e(f"s_branch HZ_{L('top')}"); a.ins.append(Ins(f".p2align {OPT['al'][0]}"))
        for i in range(OPT["al"][1]): a.ins.append(Ins("s_nop 0"))
    if OPT["rot"] and w==0:
        a.label(L("pretop")); e(f"s_waitcnt vmcnt({len(top_vm)+2*OPT['half']})")
        if OPT["half"]: a.vm=["dmb","dmb"]+a.vm
    a.label("HZ_"+L("top"))
    e("s_barrier")
    for k in range(4): aread(k,AB[k])
    if w==2 and OPT["b0"] and OPT["w2late"]: mfetch()
    if w in(1,2) and not OPT["m1pre"] and not OPT["b0"]:
        if OPT["m1in"]: paddr(T1); probe(T1,T1,"pr")
        else: mfetch()
    stamp(a,tim,"b1")
    def slow_ops(where):
        if w==OPT["pfw"] and OPT['pf'] and OPT["pfpos"]==where:
            tr=T1 if w==3 else 4*0+T0
            e(f"v_lshlrev_b32 v{tr}, 3, {vL16}"); e(f"s_mov_b32 m0, {L_ROLE}")
            e(f"buffer_load_dword v{tr}, {S_WS}, {sKXN} offen {OPT['pffl']} lds","pf")
            e(f"buffer_load_dword v{tr}, {S_WS}, {sVXN} offen {OPT['pffl']} lds","pf")
            if w in(1,2): e(f"s_mov_b32 m0, {4096*w}")
        if w!=3: return
        if OPT["pub"] and OPT["pubpos"]==where:
            e(f"buffer_store_dwordx2 v[4:5], {vL8}, {S_T}, {sMP} offen {OPT['pubfl']}","pub")
            e("s_mov_b32 s10, 0")
    ACC={"q":QA,"k":KA,"v":VA}
    def nxt(seq,tab,p):
        later=[x for x in sorted(tab) if x>p and tab[x][0]==tab[p][0]]
        return later[0] if later else None
    def qkv(key,buf,p=None):
        if key in TG: a.wait(vm=tg(key))
        elif key in TL and p>1: a.wait(lg=tg(key))
        sm(a,ACC[key[0]],buf,key,SLOT.get(key,(0,))[0])
        if p in Q_SLOT:
            n=nxt(QSEQ,Q_SLOT,p)
            if n is not None and Q_SLOT[n][1]=="L": lload_tile(a,QSEQ[n],Q_SLOT[n][0],tg(QSEQ[n]))
    kxw = w in(0,3)
    def kxread(kt,ke,dst): e(f"ds_read_b128 {vr(dst,4)}, {vL16} offset:{L_KX+1024*(4*kt+ke)}",f"K{kt}{ke}")
    cvt=lambda d,x,y: e(f"v_cvt_pk_bf16_f32 v{d}, v{x}, v{y}")
    gs=[(QSEQ[p],h) for p in GPOS for h in range(2)]
    seen=set(); read=set(range(4))
    for p,key in enumerate(QSEQ):
        m,k=key; b=AB[k%4]
        if p==OPT["b1b"]:
            stamp(a,tim,"k2")
            if w==2 and OPT["w2late"] and OPT["b1c"]: chk("mr"); a.label(L("mok"))
            elif w in(1,2) and not OPT["m1pre"]: chk("mr"); a.wait(vm="dma"); a.label(L("mok"))
            elif w in(1,2): a.wait(vm="dma")
            e("s_barrier"); stamp(a,tim,"b1b")
            for kk in range(8,k+4):
                if kk not in read: aread(kk,AB[kk%4]); read.add(kk)
        if k not in seen:
            if OPT["pairw"] and k>=10 and k%2==0 and k+1 in read: a.wait(lg=f"A{k+1}"); seen.add(k+1)
            else: a.wait(lg=f"A{k}")
            seen.add(k)
        qkv(key,b,p)
        if p==2 and OPT["half"]:
            if w==0: a.wait(vm="dmb")
            e("s_barrier")
        last=all(x[1]!=k for x in QSEQ[p+1:])
        if last and k+4<20 and (k+4<8 or p>=OPT["b1b"]) and k+4 not in read: aread(k+4,b); read.add(k+4)
        if not OPT['nanchk'] and p==1: a.wait(lg="A3"); e(f"v_max3_u32 v{T0}, v{AB[0]}, v{AB[1]}, v{AB[2]}")
        if p==2: e(f"v_max_u32 v{T0}, v{T0}, v{AB[3]}") if False else None
        if not OPT['nanchk'] and p==3: e(f"v_max_u32 v{T0}, v{T0}, v{AB[3]}")
        if not OPT['nanchk'] and p==4: e(f"v_cmp_eq_u32 vcc, -1, v{T0}")
        if not OPT['nanchk'] and p==6: chk("rec")
        if not OPT['nanchk'] and m=="q" and k==4: e(f"v_mov_b32 v{T0}, v{b}")
        if not OPT['nanchk'] and m=="q" and 5<=k<=17:
            if OPT["pairw"] and k>=10:
                if k%2==0: e(f"v_max3_u32 v{T0}, v{T0}, v{b}, v{AB[(k+1)%4]}")
            else: e(f"v_max_u32 v{T0}, v{T0}, v{b}")
        m1=OPT["m1in"] and w in(1,2) and not OPT["m1pre"]
        if m1 and p<nd: dma(a,1,sMR,"dma",p)
        for j,(gk,h) in enumerate(gs):
            if (w or OPT["b0w0"]) and j<OPT["b0"]-1: continue
            if OPT["gq2"]:
                if p==(j-2)//2: gload_half(a,gk,SLOT[gk][0],tg(gk),h)
                continue
            if p==(OPT["gq"][0]+OPT["gq"][1]*j if not m1 else max(OPT["gq"][0]+OPT["gq"][1]*j,nd+j)): gload_half(a,gk,SLOT[gk][0],tg(gk),h)
        if not OPT["kxout"]:
            if kxw and p==OPT["kxp"][0]-1: e(f"s_mov_b32 m0, {L_KX+(4096 if w else 0)}")
            for j in range(4):
                if kxw and p==OPT["kxp"][0]+OPT["kxp"][1]*j: dma(a,1,sKX2 if w else sKX,"kx",j)
        if p==OPT["pfp"]: slow_ops("qk")
        if p==OPT["pubp"]: slow_ops("qk2")
        if p==OPT["b1b"]-2 and w in(1,2) and not OPT["m1pre"]: a.wait(vm="pr"); pcmp(T1)
        if p==OPT["b1c"] and OPT["w2late"] and OPT["b1c"]:
            if w==2: a.wait(vm="dma")
            if w==3: a.wait(vm="kx")
            e("s_barrier")
        if p==44: stamp(a,tim,"k7")
        if p%3==2: stamp(a,tim,f"_q{p}")
        if p==46 and not OPT["kxout"]: a.wait(vm="kx"); e("s_barrier")
        if p==47: kxread(0,0,SL3); kxread(1,0,SL3+4)
        if p==48 and not OPT["nanchk"]: a.wait(lg="A19"); seen.add(19); e(f"v_max3_u32 v{T0}, v{T0}, v{AB[2]}, v{AB[3]}")
        if p==49 and not OPT["nanchk"]: e(f"v_cmp_eq_u32 vcc, -1, v{T0}")
        if p==49: kxread(0,1,SL2); kxread(1,1,SL2+4)
        if p==51 and not OPT["nanchk"]: chk("rec")
        if p==51 and OPT["nanchk"]: e(f"v_cmp_u_f32 vcc, v{QA}, v{QA+2}")
    stamp(a,tim,"qk")
    slow_ops("qkend")
    if w==3 and OPT["pub"] and OPT["pubpos"]=="lds":
        e(f"v_add_u32 v{T1}, {sPC}, {vL8}"); e(f"ds_read_b64 v[4:5], v{T1} offset:{L_MEM}","pl")
    cvt(QA,QA,QA+2); cvt(QA+2,QA+1,QA+3)
    qkv(("v",16),AB[0]); aread(12,AB[0])
    qkv(("v",17),AB[1]); aread(13,AB[1])
    if OPT["nanchk"]: chk("scan"); a.label(L("scanned"))
    cvt(QA+1,KA,KA+2); cvt(QA+3,KA+1,KA+3)
    e(f"ds_write_b64 {vXW}, {vr(QA,2)}","xw"); e(f"ds_write_b64 {vXW}, {vr(QA+2,2)} offset:512","xw")
    qkv(("v",18),AB[2])
    if OPT["vo"]: aread(15,AB[2])
    qkv(("v",19),AB[3]); aread(14,AB[3])
    a.wait(lg="A12"); qkv(("v",12),AB[0])
    if OPT["vo"]: a.wait(lg="A13"); qkv(("v",13),AB[1])
    if w==3 and OPT["pub"] and OPT["lastlds"]:
        e(f"s_cmp_ge_u32 {sSTEP}, {NSEG-1-OPT['lastlds']}"); e(f"s_cbranch_scc1 {L('pub62')}"); a.label(L("pub62b"))
    if w==3 and OPT["pub"] and OPT["pubpos"]=="lds":
        e(f"s_add_u32 {sMP}, {sMP}, 10240"); e(f"s_add_u32 s10, {sMP}, {OPT['piece']}")
        e(f"buffer_store_dwordx2 v[4:5], {vL8}, {S_T}, {sMP} offen {OPT['pubfl']}","pub")
    stamp(a,tim,"_s0"); a.wait(lg="xw"); stamp(a,tim,"_s1"); e("s_barrier"); stamp(a,tim,"b2"); stamp(a,tim,"_s2")
    G1=min(n for n,v in O_SLOT.items() if v==(SL1,"G"))
    X=[28,32,40,44]
    S0,S1,SM=AB[0],AB[2],AB[1]
    def mf(d,A,B,first,op="v_mfma_f32_16x16x32_bf16",n=4):
        e(f"{op} {vr(d,4)}, {vr(A,n)}, {vr(B,n)}, {'0' if first else vr(d,4)}")
    VM=VA; VX=SL3; P=SL2; PM=SL2+4
    def xr(ke):
        for x in range(2): e(f"ds_read_b64_tr_b16 {vr(X[ke]+2*x,2)}, {vXR} offset:{1024*ke+512*x}",f"X{ke}")
    if OPT["xo"]==0:
        for ke in range(4):
            xr(ke)
            if ke==0: qkv(("v",13),AB[1])
            if ke==1: a.wait(lg="A14"); qkv(("v",14),AB[3])
        aread(15,AB[3])
        stamp(a,tim,"_s3"); a.wait(lg="X0"); stamp(a,tim,"_s4"); mf(S0,SL3,X[0],1); mf(S1,SL3+4,X[0],1)
        kxread(0,2,SL3); kxread(1,2,SL3+4)
        a.wait(lg="X1"); stamp(a,tim,"_s5"); mf(S0,SL2,X[1],0); mf(S1,SL2+4,X[1],0)
        kxread(0,3,SL2); kxread(1,3,SL2+4)
    else:
        if OPT["vo"]:
            xr(0); a.wait(lg="A15"); qkv(("v",15),AB[2]); xr(1); a.wait(lg="A14"); qkv(("v",14),AB[3])
            if OPT["vxe"]: e(f"buffer_load_dwordx4 {vr(AB[3],4)}, {vL16}, {S_WS}, {sVX} offen offset:1024 {OPT['kvfl']}","vx1")
        else:
            xr(0); qkv(("v",13),AB[1]); xr(1); a.wait(lg="A14"); qkv(("v",14),AB[3]); aread(15,AB[3])
        a.wait(lg="X0"); mf(S0,SL3,X[0],1); xr(2); mf(S1,SL3+4,X[0],1)
        kxread(0,2,SL3); kxread(1,2,SL3+4)
        a.wait(lg="X1"); mf(S0,SL2,X[1],0); xr(3); mf(S1,SL2+4,X[1],0)
        kxread(0,3,SL2); kxread(1,3,SL2+4)
    if not OPT["vo"]: a.wait(lg="A15"); qkv(("v",15),AB[3])
    ONE=AB[3] if OPT["one"] else S0
    mf(SM,X[0],X[0],1)
    if OPT["one"]: e(f"v_mov_b64 {vr(ONE,2)}, {sONE}"); e(f"v_mov_b64 {vr(ONE+2,2)}, {sONE}")
    mf(SM,X[1],X[1],0)
    stamp(a,tim,"_s6"); a.wait(lg="K12"); stamp(a,tim,"_s7"); mf(S0,SL3,X[2],0); mf(S1,SL3+4,X[2],0)
    e(f"buffer_load_dwordx4 {vr(VX,4)}, {vL16}, {S_WS}, {sVX} offen {OPT['kvfl']}","vx")
    cvt(VM,VM,VM+2)
    stamp(a,tim,"_s8"); a.wait(lg="K13"); stamp(a,tim,"_s9"); mf(S0,SL2,X[3],0); cvt(VM+1,VM+1,VM+3); mf(S1,SL2+4,X[3],0)
    if not OPT["vxe"]: e(f"buffer_load_dwordx4 {vr(VX+4,4)}, {vL16}, {S_WS}, {sVX} offen offset:1024 {OPT['kvfl']}","vx")
    mf(SM,X[2],X[2],0)
    if OPT["g0p"]==1: gload_half(a,("o",0),28,"go0",0)
    e(f"v_mov_b32 v{PM+1}, 0"); e(f"v_mov_b32 v{PM+2}, 0")
    mf(SM,X[3],X[3],0)
    if OPT["g0p"]==1: gload_half(a,("o",0),28,"go0",1)
    e(f"v_max3_f32 v{T1}, v{S0}, v{S0+1}, v{S0+2}")
    e(f"v_max3_f32 v{T0}, v{S0+3}, v{S1}, v{S1+1}")
    e(f"v_max3_f32 v{T1}, v{T1}, v{S1+2}, v{S1+3}")
    stamp(a,tim,"scores"); stamp(a,tim,"_sa")
    e(f"v_max_f32 v{T1}, v{T1}, v{T0}")
    if OPT["g0p"]==0: gload_half(a,("o",0),28,"go0",0)
    e(f"v_max3_f32 v{T0}, v{T1}, v{SM+2}, v{SM+3}"); e(f"v_max3_f32 v{T1}, v{T1}, v{SM+2}, v{SM+3}")
    e(f"v_permlane32_swap_b32 v{T0}, v{T1}")
    e(f"v_max_f32 v{SM}, v{T0}, v{T1}"); e(f"v_max_f32 v{T0}, v{T0}, v{T1}")
    if OPT["g0p"]==0: gload_half(a,("o",0),28,"go0",1)
    e(f"v_permlane16_swap_b32 v{T0}, v{SM}")
    e(f"v_max_f32 v{T0}, v{T0}, v{SM}")
    e(f"v_mul_f32 v{T0}, {sC}, v{T0}")
    stamp(a,tim,"max"); stamp(a,tim,"_sb")
    ev=[S0,S0+1,S0+2,S0+3,S1,S1+1,S1+2,S1+3,SM+2,SM+3]
    for r in ev[::2]:
        e(f"v_pk_fma_f32 {vr(r,2)}, {vr(r,2)}, {sCC}, {vr(T0,2)} op_sel_hi:[1,1,0] neg_lo:[0,0,1] neg_hi:[0,0,1]")
    for i,r in enumerate(ev[:8]):
        e(f"v_exp_f32 v{r}, v{r}")
        if i in(1,6) and not OPT["g1pv"]: gload_half(a,("o",G1),SL1,f"go{G1}",i//6)
        if i in(2,4,6): cvt(P+i//2-1,ev[i-2],ev[i-1])
        if i==4 and not OPT["one"]: e(f"v_mov_b64 {vr(S0,2)}, {sONE}")
        if i==6 and not OPT["one"]: e(f"v_mov_b64 {vr(S0+2,2)}, {sONE}")
    e(f"v_exp_f32 v{ev[8]}, v{ev[8]}"); cvt(P+3,ev[6],ev[7])
    e(f"v_exp_f32 v{ev[9]}, v{ev[9]}")
    O=[AB[3],S0] if OPT['one'] else [S0,AB[3]]
    VX1=VX+4
    if OPT['vxe']: O=[S0,SL3+4]; VX1=AB[3]
    stamp(a,tim,"exp"); stamp(a,tim,"_p0")
    mf(S1,ONE,P,1)
    cvt(PM,ev[8],ev[9]); cvt(PM+3,ev[8],ev[9])
    stamp(a,tim,"_p1"); a.wait(vm="vx1" if OPT["vxe"] else "vx"); stamp(a,tim,"_p2")
    mf(O[1],VX1,P,1)
    if OPT["g1pv"]: gload_half(a,("o",G1),SL1,f"go{G1}",0)
    mf(S1,ONE,PM,0,"v_mfma_f32_16x16x16_bf16",2)
    if OPT["g1pv"]: gload_half(a,("o",G1),SL1,f"go{G1}",1)
    if OPT["vxe"]: a.wait(vm="vx")
    mf(O[0],VX,P,1)
    if not OPT["vxe"]: lload_tile(a,("o",2),SL3,"lo2")
    mf(O[1],VM,PM+2,0,"v_mfma_f32_16x16x16_bf16",2)
    if OPT["g0p"]==2: gload_tile(a,("o",0),28,"go0")
    e(f"v_rcp_f32 v{T0}, v{S1}")
    mf(O[0],VM,PM,0,"v_mfma_f32_16x16x16_bf16",2)
    ks=OPT["kvstride"]
    e(f"s_add_u32 {sSTEP}, {sSTEP}, 1"); e(f"s_add_u32 {sVX}, {sVX}, {ks}")
    if w==0: e("s_mov_b32 m0, 0")
    e(f"s_add_u32 {sKX2}, {sKX2}, {ks}"); e(f"s_add_u32 {sKX}, {sKX}, {ks}")
    if w==OPT["pfw"]: e(f"s_add_u32 {sKXN}, {sKXN}, {ks}"); e(f"s_add_u32 {sVXN}, {sVXN}, {ks}")
    PK=P
    stamp(a,tim,"_p7")
    for i in range(0,4,2): e(f"v_pk_mul_f32 {vr(O[1]+i,2)}, {vr(O[1]+i,2)}, {vr(T0,2)} op_sel_hi:[1,0]")
    for i in range(0,4,2):
        e(f"v_pk_mul_f32 {vr(O[0]+i,2)}, {vr(O[0]+i,2)}, {vr(T0,2)} op_sel_hi:[1,0]")
        for k in range(2): cvt(PK+i+k,O[0]+i+k,O[1]+i+k)
    if OPT["owx"]==1: e(f"s_mov_b64 exec, {sEX}")
    e(f"ds_write_b128 {vOW}, {vr(PK,4)}","ow")
    if OPT["owx"]==1: e("s_mov_b64 exec, -1")
    stamp(a,tim,"_p8")
    if OPT["vxe"]: lload_tile(a,("o",2),SL3,"lo2")
    G2=[n for n,v in O_SLOT.items() if v==(SL2,"G")][0]
    ZA,XA,YA=36,28,32
    zero4(a,ZA)
    slow_ops("opack")
    stamp(a,tim,"opack")
    a.wait(lg="ow")
    if OPT["g9pre"]: gload_tile(a,("o",G2),SL2,f"go{G2}")
    stamp(a,tim,"_p9"); e("s_barrier"); stamp(a,tim,"b3"); stamp(a,tim,"_pa")
    for k in range(4): e(f"ds_read_b128 {vr(AB[k],4)}, {vA} offset:{L_MEM+512*k}",f"ao{k}")
    F2=min(n for n,v in O_SLOT.items() if v[0]==SL2)
    if F2!=G2: lload_tile(a,("o",F2),SL2,f"lo{F2}")
    elif not OPT["g9in"] and not OPT["g9pre"]: gload_tile(a,("o",G2),SL2,f"go{G2}")
    RL=[SL2,SL2+4,SL3,SL3+4]
    def red_loads():
        for m in range(4): e(f"buffer_load_dwordx4 {vr(RL[m],4)}, {vRL}, {S_WS}, {sPR[m]} offen sc1",f"r{m}")
    z=lambda r: [f"v_mov_b64 {vr(r,2)}, 0",f"v_mov_b64 {vr(r+2,2)}, 0"]
    cv=lambda d,x,y: f"v_cvt_pk_bf16_f32 v{d}, v{x}, v{y}"
    tagop=lambda r: f"v_and_or_b32 v{r}, v{r}, -2, {sTAG}"
    PACC=[ZA,XA,YA,ZA,XA]
    post={n:[] for n in range(21)}
    post[1]+=z(XA)[:1]; post[2]+=z(XA)[1:]; post[3]+=z(YA)[:1]; post[4]+=z(YA)[1:]
    post[5]+=[cv(ZA,ZA,ZA+1)]; post[6]+=[cv(ZA+1,ZA+2,ZA+3)]; post[7]+=[tagop(ZA)]
    sg=OPT["ststag"]*(w>>1)
    post[9]+=[cv(ZA+2,XA,XA+1),cv(ZA+3,XA+2,XA+3)]
    post[9+sg]+=[(f"buffer_store_dwordx4 {vr(ZA,4)}, {vL16}, {S_WS}, {sP0} offen {st}","p0")]
    post[10+sg]+=z(ZA); post[12]+=z(XA)[:1]; post[13]+=z(XA)[1:]
    post[13]+=[cv(YA,YA,YA+1)]; post[14]+=[cv(YA+1,YA+2,YA+3)]; post[15]+=[tagop(YA)]
    post[17]+=[cv(YA+2,ZA,ZA+1),cv(YA+3,ZA+2,ZA+3)]
    post[17+sg]+=[(f"buffer_store_dwordx4 {vr(YA,4)}, {vL16}, {S_WS}, {sP1} offen {st}","p1")]
    post[20]+=[cv(XA,XA,XA+1),cv(XA+1,XA+2,XA+3),tagop(XA),(f"buffer_store_dwordx2 {vr(XA,2)}, {vL8}, {S_WS}, {sP2} offen {st}","p2")]
    def flag(c): return [(f"buffer_store_byte v{T0}, v{T1}, {S_WS}, {sF1W} offen offset:{512*c} {st}",f"f{c}")]
    if OPT["f1"]:
        post[0]+=[f"v_mov_b32 v{T0}, {sSTEP}"]; post[8]+=[f"v_lshlrev_b32 v{T1}, 24, {vL16}"]
        post[10+sg]=flag(0)+post[10+sg]; post[18+sg]=flag(1)+post[18+sg]; post[20]+=flag(2)
    def emit(l):
        for x in l:
            if isinstance(x,tuple): e(x[0],x[1])
            else: e(x)
    def probe1(d,r): e(f"buffer_load_dword v{d}, v{r}, {S_WS}, {sF1R} offen sc1","q1")
    for n in range(20):
        ko=n&3; key=("o",n)
        if n<4: a.wait(lg=f"ao{ko}")
        if n<2: stamp(a,tim,f"_pb{n}")
        if key in TL: a.wait(lg=f"lo{n}")
        elif key in TG: a.wait(vm=f"go{n}")
        sm(a,PACC[n>>2],AB[ko],key,SLOT.get(key,(0,))[0])
        if n in O_SLOT:
            m=nxt(None,O_SLOT,n)
            if m is not None and O_SLOT[m][1]=="L": lload_tile(a,("o",m),O_SLOT[m][0],f"lo{m}")
        if F2!=G2 and n in OPT["g18"]: gload_half(a,("o",G2),SL2,f"go{G2}",OPT["g18"].index(n))
        if OPT["g9in"] and n<2: gload_half(a,("o",G2),SL2,f"go{G2}",n)
        if n in OPT["g19"]: gload_half(a,("o",19),SL1,"go19",OPT["g19"].index(n))
        if OPT["kxout"] and w in OPT["kxw"] and not OPT["kxb0"]:
            ko_=OPT["kxout"]; nk=8//len(OPT["kxw"]); f0=nk*OPT["kxw"].index(w)
            if n==ko_[0]-1: e(f"s_mov_b32 m0, {L_KX+4096*(f0//4)}")
            for j in range(nk):
                if n==ko_[0]+ko_[1]*j: dma(a,1,sKX2 if f0>=4 else sKX,"kx",f0%4+j)
            if w<3 and n==ko_[0]+ko_[1]*(nk-1)+1: e(f"s_mov_b32 m0, {4096*w}")
        if n==OPT["b4p"] and OPT["b4"]: e("s_barrier")
        if w==0 and n==OPT["rl"]: red_loads()
        if n in(13,): stamp(a,tim,f"o{n}")
        if n>=2: stamp(a,tim,f"_o{n}")
        if OPT["f1"] and w==0 and n==OPT["q1"]:
            e(f"v_bfe_u32 v{SL2}, {vL16}, 2, 5"); e(f"s_add_u32 {sT1}, {sPAT}, 0x01010101"); probe1(SL2,SL2)
        if n==19 and w<3:
            e(f"v_and_b32 v16, 0xff, {vL16}")
            e(f"ds_read_b128 v[12:15], v16 offset:{L_SEL}","sel")
        emit(post[n])
    emit(post[20])
    if w==0 and OPT["rl"]==20.5: red_loads()
    stamp(a,tim,"out")
    def slots():
        e(f"s_add_u32 {sMR}, {sMW}, {4096*w}")
        if w<3 and OPT["probe"]=="c": e(f"s_add_u32 {sMF}, {sMW}, {10240+256*w}")
        if w<3 and OPT["probe"]=="b": e(f"s_add_u32 {sPAT}, {sPAT}, 0x01010101")
        for r in (sMW,sMZ):
            e(f"s_add_u32 {r}, {r}, 16384"); e(f"s_and_b32 {r}, {r}, 0xffff"); e(f"s_or_b32 {r}, {r}, {M_OFF}")
        e(f"s_xor_b32 {sTAG}, {sTAG}, 1"); e(f"s_not_b32 {sTAGM}, {sTAGM}")
    if w<3 and OPT["f1"]:
        if w==2: e(f"s_cmp_ge_u32 {sUNIT}, 80"); e(f"s_cbranch_scc1 {L('nored0')}")
        e(f"v_bfe_u32 v23, {vL16}, 2, 5")
        if w==0:
            a.wait(vm="q1"); e(f"v_cmp_ne_u32 vcc, {sT1}, v{SL2}")
            e(f"v_mov_b32 v20, {sSTEP}"); e(f"v_lshlrev_b32 v21, 4, {vL16}"); e("v_mov_b32 v22, -1")
            e(f"s_cbranch_vccz {L('f1ok')}")
        else:
            e(f"s_add_u32 {sT1}, {sPAT}, 0x01010101")
            e(f"v_mov_b32 v20, {sSTEP}"); e(f"v_lshlrev_b32 v21, 4, {vL16}"); e("v_mov_b32 v22, -1")
            delay(a,OPT['d1'] if w==1 else OPT['d1b'])
        probe1(T0,23); delay(a,OPT["d4"]); probe1(T0,23)
        a.label(L("f1"))
        for u in range(2):
            e("s_waitcnt vmcnt(1)"); e(f"v_cmp_ne_u32 vcc, {sT1}, v{T0}"); probe1(T0,23)
            if OPT["nosync"]: e(f"s_branch {L('f1ok')}")
            else: e(f"s_cbranch_vccz {L('f1ok')}")
        spin(); e(f"s_branch {L('f1')}")
        a.label(L("f1ok")); a.vm=[]
        red_loads()
        zero_acc()
        a.wait(lg="all")
    if w<3 and not OPT["f1"] and OPT["nat"]:
        e(f"v_mov_b32 v20, {sSTEP}"); e(f"v_lshlrev_b32 v21, 4, {vL16}"); e("v_mov_b32 v22, -1")
        if w<2: zero_acc()
        if w==0: paddr(23)
        if w==0 and 0 in Q_SLOT: lload_tile(a,QSEQ[0],SL1,None)
        a.wait(lg="all")
        if OPT["nat"][w]: a.wait(vm=OPT["nat"][w])
        if w==2:
            zero_acc()
            e(f"s_cmp_ge_u32 {sUNIT}, 80"); e(f"s_cbranch_scc1 {L('nored')}")
        if not (w==0 and OPT["rl"]<=20.5 and OPT["rl"]!=20): red_loads()
    elif w<3 and not OPT["f1"]:
        a.wait(lg="all")
        if w==0 and OPT["rl"]>19: delay(a,OPT['d0']); red_loads()
        e(f"v_mov_b32 v20, {sSTEP}"); e(f"v_lshlrev_b32 v21, 4, {vL16}"); e("v_mov_b32 v22, -1")
        zero_acc()
        if w==1: delay(a,OPT['d1']); red_loads()
        if w==2:
            delay(a,OPT['d1b'])
            e(f"s_cmp_ge_u32 {sUNIT}, 80"); e(f"s_cbranch_scc1 {L('nored')}")
            red_loads()
    if w<3:
        stamp(a,tim,"rlis")
        a.label(L("red"))
        for m in range(4):
            a.wait(vm=f"r{m}")
            if m==3 and not OPT["rtail"]:
                e(f"v_bitop3_b32 v{T1}, v{RL[2]}, v{RL[3]}, {sTAGM} bitop3:0x7e")
                e(f"v_bitop3_b32 v{T0}, v{T0}, v{T1}, 1 bitop3:0xa8")
                e(f"v_cmp_ne_u32 vcc, 0, v{T0}")
            mf(16,12,RL[m],m==0)
            if m==1: e(f"v_bitop3_b32 v{T0}, v{RL[0]}, v{RL[1]}, {sTAGM} bitop3:0x7e")
            if m==3 and OPT["rtail"]:
                e(f"v_bitop3_b32 v{T1}, v{RL[2]}, v{RL[3]}, {sTAGM} bitop3:0x7e")
                e(f"v_bitop3_b32 v{T0}, v{T0}, v{T1}, 1 bitop3:0xa8")
                e(f"v_cmp_ne_u32 vcc, 0, v{T0}")
        e(f"s_cmp_eq_u32 {sSTEP}, {NSEG-1}")
        if not OPT["rtail"]: chk("redo")
        for i in range(4): e(f"v_add_f32_dpp v{16+i}, v{16+i}, v{16+i} row_ror:8 row_mask:0xf bank_mask:0xf")
        e(f"v_cvt_pk_bf16_f32 v{T0}, v16, v17"); e(f"v_cvt_pk_bf16_f32 v{T1}, v18, v19")
        e(f"v_min_u32 v{T0}, {sFE}, v{T0}")
        if OPT["rtail"]: chk("redo")
        e(f"s_cbranch_scc1 {L('last')}")
        e(f"buffer_store_dwordx2 {vr(T0,2)}, {vRS}, {S_WS}, {sMW} offen {st}","rs")
        e(f"buffer_store_byte v20, v21, {S_T}, {sUNIT} offen {st}","fl")
        e(f"buffer_store_dword v22, {vRS}, {S_WS}, {sMZ} offen {st}","mz")
        stamp(a,tim,"red")
        if w==2: a.label(L("nored2"))
        if w==0 and OPT["nat"]:
            if 1 in Q_SLOT: lload_tile(a,QSEQ[1],SL2,None)
        else: prestage()
        slots()
    if w==0 or (w<3 and OPT["m1pre"]):
        if not (w==0 and OPT["nat"]): paddr(23)
        if w==0: delay(a,OPT['d2']); stamp(a,tim,"mis")
        NP=OPT["np"] if w==0 else 1
        PD=T0
        if w==0 and OPT["spec"]:
            PD=T1
            probe(T0,23); dma(a,nd,sMR,None)
            for i in range(NP): delay(a,OPT["d4"]); probe(PD,23)
            e(f"s_waitcnt vmcnt({nd+NP})"); pcmp(T0)
            e(f"s_cbranch_vccz {L('m0hit')}")
        else:
            for i in range(NP): probe(PD,23); delay(a,OPT["d4"]) if i<NP-1 else None
        a.label(L("m0"))
        for u in range(OPT["unr"] if w==0 else 1):
            e(f"s_waitcnt vmcnt({NP-1})"); pcmp(PD)
            if w==0: probe(PD,23)
            if tim in(1,2): e("s_add_u32 s86, s86, 1")
            if OPT["nosync"] or OPT["blind"]: e(f"s_branch {L('m0ok')}")
            else: e(f"s_cbranch_vccz {L('m0ok')}")
        if w: probe(PD,23)
        spin(); e(f"s_branch {L('m0')}")
        a.label(L("m0ok"))
        if w==0: stamp(a,tim,"det")
        a.vm=[]
        dma(a,nd,sMR,"dma")
        if w==0 and OPT["b0"]: e("s_barrier")
        if w==0: a.vm=[]
        if w==0 and OPT["b0w0"]: b0loads()
        if w==0 and not OPT["rot"]: e(f"s_waitcnt vmcnt({len(a.vm)})")
        if w==0 and OPT["spec"]:
            a.label(L("m0hit")); e(f"s_waitcnt vmcnt({NP})")
    if w<3: a.wait(lg="all")
    if w==3:
        delay(a,OPT['d3'])
        prestage()
        if OPT["pub"] and OPT["pubpos"]!="lds":
            e(f"s_add_u32 {sT0}, {sMR}, {sPC}"); e(f"s_sub_u32 {sT0}, {sT0}, {4096*3}")
            e(f"s_add_u32 s10, {sT0}, {OPT['piece']}"); e(f"s_cmp_lt_u32 {sPC}, 10240"); e("s_cselect_b32 s10, s10, 0")
            if "L" not in OPT["ab"]: e(f"buffer_load_dwordx2 v[4:5], {vL8}, {S_T}, {sT0} offen sc1","pl")
            e(f"s_add_u32 {sMP}, {sMP}, {OPT['mpstride']}"); e(f"s_add_u32 s10, {sMP}, {OPT['piece']}"); e(f"s_cmp_lt_u32 {sPC}, 10240"); e("s_cselect_b32 s10, s10, 0")
            if OPT["pubpos"]=="hop":
                a.wait(vm="pl"); e(f"buffer_store_dwordx2 v[4:5], {vL8}, {S_T}, {sMP} offen {OPT['pubfl']}","pub")
        e(f"s_cmp_eq_u32 {sSTEP}, {NSEG-1}"); e(f"s_cbranch_scc1 {L('last')}")
        if OPT["kvchk"]:
            e(f"s_cmp_eq_u32 {sALL}, 1"); e(f"s_cbranch_scc1 {L('kvok')}")
            e(f"s_lshl_b32 {sT0}, {sSTEP}, 7"); e(f"s_add_u32 {sT0}, {sT0}, {KVCNT+256}"); e(f"s_min_u32 {sT0}, {sT0}, {KVCNT+63*128}")
            e(f"s_load_dword s28, s[4:5], {sT0} glc"); e(f"s_load_dword s29, s[4:5], {KVCNT+63*128} glc")
            e("s_waitcnt lgkmcnt(0)")
            e("s_cmp_ge_u32 s29, 32"); e(f"s_cselect_b32 {sALL}, 1, 0")
            e("s_cmp_ge_u32 s28, 32"); e(f"s_cbranch_scc0 {L('kvw')}")
            a.label(L("kvok"))
        slots(); zero_acc()
        if OPT["pub"] and OPT["pubpos"]=="hop": a.wait(lg="all")
        else: a.wait(vm="all",lg="all")
    if OPT["b0"] and w:
        e("s_barrier")
        if w==1 or (w==2 and not OPT["w2late"]): mfetch()
        b0loads()
        if OPT["kxb0"] and w==3:
            e(f"s_mov_b32 m0, {L_KX}"); dma(a,4,sKX,"kx"); e(f"s_mov_b32 m0, {L_KX+4096}"); dma(a,4,sKX2,"kx")
    stamp(a,tim,"pre")
    assert OPT["ab"] or (a.vm[len(a.vm)-len(top_vm):]==top_vm and (top_vm or not a.vm)),(w,a.vm)
    if tim in(4,5) and w==(3 if tim==4 else 0):
        e("s_memtime s[70:71]" if tim==4 else "s_memrealtime s[70:71]"); e("s_waitcnt lgkmcnt(0)")
        e(f"v_writelane_b32 v4, s70, 63") if False else None
        e(f"s_lshl_b32 s72, {sH}, 8"); e(f"s_lshl_b32 s73, {sSTEP}, 2"); e("s_add_u32 s72, s72, s73"); e(f"s_add_u32 s72, s72, {DBG_OFF+0x40000}")
        e(f"v_mov_b32 v{T0}, s70"); e(f"v_lshlrev_b32 v{T1}, 24, {vL16}")
        e(f"buffer_store_dword v{T0}, v{T1}, {S_WS}, s72 offen")
    if tim==3:
        e(f"s_cmp_eq_u32 {sSTEP}, {OPT['at']}"); e(f"s_cbranch_scc0 {L('pretop') if OPT['rot'] and w==0 else 'HZ_'+L('top')}")
        n=len(STAMPS); e(f"s_memrealtime s[{54+2*n}:{55+2*n}]"); e(f"s_memtime s[{56+2*n}:{57+2*n}]")
        e("s_waitcnt lgkmcnt(0)")
        e(f"s_lshl_b32 {sT0}, {sH}, 2"); e(f"s_add_u32 {sT0}, {sT0}, {w}"); e(f"s_lshl_b32 {sT0}, {sT0}, 7"); e(f"s_add_u32 {sT0}, {sT0}, {DBG_OFF+65536}")
        e(f"v_mov_b32 v{T1}, 0"); e("s_mov_b64 exec, 1")
        for i in range(len(STAMPS)+2):
            e(f"v_mov_b32 v{T0}, s{54+2*i}"); e(f"buffer_store_dword v{T0}, v{T1}, {S_WS}, {sT0} offen offset:{4*i}")
        e("s_waitcnt vmcnt(0)"); e("s_mov_b64 exec, -1")
    e(f"s_branch {L('pretop')}" if OPT["rot"] and w==0 else f"s_branch HZ_{L('top')}")
    if w<3:
        a.label(L("redo"))
        if tim in(1,2): e("s_add_u32 s85, s85, 1")
        e("s_mov_b64 exec, vcc")
        a.label(L("redo2"))
        red_loads(); spin()
        e("s_waitcnt vmcnt(0)")
        e(f"v_bitop3_b32 v{T0}, v{RL[0]}, v{RL[1]}, {sTAGM} bitop3:0x7e"); e(f"v_bitop3_b32 v{T1}, v{RL[2]}, v{RL[3]}, {sTAGM} bitop3:0x7e")
        e(f"v_bitop3_b32 v{T0}, v{T0}, v{T1}, 1 bitop3:0xa8"); e(f"v_cmp_ne_u32 vcc, 0, v{T0}")
        e(f"s_cbranch_vccnz {L('redo2')}")
        e("s_mov_b64 exec, -1"); e("s_nop 1")
        e(f"s_branch {L('red')}")
        a.label(L("last"))
        e(f"s_mov_b32 {sT0}, {MEMP_OFF+63*10240}")
        e(f"buffer_store_dwordx2 {vr(T0,2)}, {vRS}, {S_WS}, {sT0} offen sc1")
        e(f"s_branch {L('done')}")
    if OPT["nanchk"]:
        a.label(L("scan"))
        e(f"v_mov_b32 v{T0}, 0")
        for k in range(10):
            e(f"ds_read_b32 v{T1}, {vL16} offset:{L_MEM+1024*k}"); e("s_waitcnt lgkmcnt(0)"); e(f"v_max_u32 v{T0}, v{T0}, v{T1}")
        e(f"v_cmp_eq_u32 vcc, -1, v{T0}"); e(f"s_cbranch_vccnz {L('rec')}"); e(f"s_branch {L('scanned')}")
    if w==2:
        if OPT["f1"]: a.label(L("nored0")); zero_acc(); e("s_waitcnt lgkmcnt(0)")
        a.label(L("nored"))
        e("s_waitcnt vmcnt(0)")
        e(f"s_cmp_eq_u32 {sSTEP}, {NSEG-1}"); e(f"s_cbranch_scc1 {L('done')}")
        e(f"s_branch {L('nored2')}")
    if w==3 and OPT["kvchk"]:
        a.label(L("kvw"))
        if tim in(1,2): e("s_add_u32 s85, s85, 1")
        e(f"v_mov_b32 v{T0}, 0")
        a.label(L("kvw2"))
        e(f"buffer_load_dword v{T1}, v{T0}, {S_WS}, {sT0} offen sc1"); spin(); e("s_waitcnt vmcnt(0)")
        e(f"v_cmp_gt_u32 vcc, 32, v{T1}"); e(f"s_cbranch_vccnz {L('kvw2')}")
        e(f"s_branch {L('kvok')}")
    if w==3 and OPT["pub"] and OPT["lastlds"]:
        a.label(L("pub62"))
        e(f"v_add_u32 v{T1}, {sPC}, {vL8}"); e(f"ds_read_b64 v[4:5], v{T1} offset:{L_MEM}")
        e(f"s_add_u32 {sT0}, {sMP}, 10240"); e(f"s_add_u32 s10, {sT0}, {OPT['piece']}"); e("s_waitcnt lgkmcnt(0)")
        e(f"buffer_store_dwordx2 v[4:5], {vL8}, {S_T}, {sT0} offen sc1"); e("s_mov_b32 s10, 0")
        e(f"s_branch {L('pub62b')}")
    if w==3:
        a.label(L("last"))
        e("s_waitcnt vmcnt(0)")
        if OPT["pub"] and OPT["pubpos"] not in("hop","lds") and not OPT["lastlds"]: e(f"buffer_store_dwordx2 v[4:5], {vL8}, {S_T}, {sMP} offen sc1")
        e(f"s_branch {L('done')}")
    if w in(1,2) and not OPT["m1pre"]:
        a.label(L("mr"))
        spin("s86")
        mfetch(); e(f"s_waitcnt vmcnt({nd})")
        pcmp(T1); e(f"s_cbranch_vccnz {L('mr')}")
        e("s_waitcnt vmcnt(0)")
        e(f"s_branch {L('mok')}")
    a.label(L("done"))
    a.vm=[]; a.lg=[]
    e("s_waitcnt vmcnt(0) lgkmcnt(0)")
    if w==3 and OPT["wb"]:
        e(f"s_cmp_eq_u32 {sH}, 0"); e(f"s_cbranch_scc0 {L('nowb')}"); e("buffer_wbl2 sc1"); e("s_waitcnt vmcnt(0)"); a.label(L("nowb"))
    if tim in(1,2):
        e("s_memtime s[70:71]"); e("s_waitcnt lgkmcnt(0)"); e("s_sub_u32 s83, s70, s74")
        for i in range(11): e(f"v_mov_b32 v{12+i}, s{76+i}")
        e(f"s_lshl_b32 {sT0}, {sH}, 2"); e(f"s_add_u32 {sT0}, {sT0}, {w}"); e(f"s_lshl_b32 {sT0}, {sT0}, 6"); e(f"s_add_u32 {sT0}, {sT0}, {DBG_OFF}")
        e("v_mov_b32 v10, 0"); e("s_mov_b64 exec, 1")
        e("s_memrealtime s[68:69]"); e("s_waitcnt lgkmcnt(0)")
        for i,r in enumerate((90,92,94,66,68)): e(f"v_mov_b32 v{23+i}, s{r}")
        for i in range(4): e(f"buffer_store_dwordx4 {vr(12+4*i,4)}, v10, {S_WS}, {sT0} offen offset:{16*i}")
        if OPT["dbgout"] and w==0:
            for i in range(5):
                e(f"v_mov_b32 v10, {16+4*i}"); e(f"global_atomic_umax v10, v{23+i}, {sDBG}")
            e("v_mov_b32 v10, 36"); e(f"global_atomic_umax v10, v19, {sDBG}")
        e("s_waitcnt vmcnt(0)")
    e("s_endpgm")
```

```python
from asmlib import *
from layout import *
import math

L_MEM=0; L_X=10240; L_KX=14336; L_SEL=22528; L_ROLE=23552; L_W=24576
S_WS="s[4:7]"; S_T="s[8:11]"
sH="s12"; sSTEP="s14"; sMR="s15"; sMW="s16"; sMZ="s17"; sTAG="s18"; sTAGM="s19"
sKX="s20"; sVX="s21"; sPC="s22"; sMP="s23"; sSW="s24"; sP0="s25"; sP1="s26"; sP2="s27"
sPR=["s28","s29","s30","s31"]; sCNT="s32"; sC="s33"; sFE="s34"; sKX2="s35"; sSW2="s36"; sSW3="s37"; sSW4="s38"
sPLO="s40"; sPHI="s41"; sT0="s42"; sT1="s43"; sEX="s[44:45]"; sUNIT="s46"; sKXN="s47"; sVXN="s48"; sMF="s49"; sPAT="s39"; sALL="s31"; sMU="s53"; sF1W="s88"; sF1R="s89"
sCC="s[96:97]"; sONE="s[98:99]"; sHALF="s[100:101]"; sDBG="s[50:51]"; sXCC="s52"; sMODE="s87"
vL16="v0"; vA="v1"; vIDX="v2"; vW="v3"; vRL="v4"; vRS="v5"; vXW="v6"; vXR="v7"; vOW="v8"; vL8="v9"
T0=10; T1=11
AB=[12,16,20,24]; QA=28; KA=32; VA=36; SL1=40; SL2=48; SL3=56

QSEQ=[]; Q_SLOT={}; O_SLOT={}; SLOT={}; TG={}; TL={}; TR={}; GPOS=[]
QS={0:{0:(SL1,"L"),1:(SL2,"L"),25:(SL3,"G"),29:(SL1,"G"),33:(SL2,"G"),31:(SL3,"L"),37:(SL3,"L"),43:(SL3,"L"),35:(SL1,"L"),41:(SL1,"L"),47:(SL1,"L"),39:(SL2,"L")},
    1:{16:(SL3,"G"),19:(SL1,"G"),22:(SL2,"G"),23:(SL3,"L"),29:(SL3,"L"),35:(SL3,"L"),41:(SL3,"L"),25:(SL1,"L"),31:(SL1,"L"),37:(SL1,"L"),27:(SL2,"L"),33:(SL2,"L")},
    2:{12:(SL3,"G"),16:(SL1,"G"),20:(SL2,"G"),18:(SL3,"L"),24:(SL3,"L"),30:(SL3,"L"),36:(SL3,"L"),22:(SL1,"L"),28:(SL1,"L"),34:(SL1,"L"),26:(SL2,"L"),32:(SL2,"L")},
    3:{14:(SL3,"G"),18:(SL1,"G"),22:(SL2,"G"),20:(SL3,"L"),28:(SL3,"L"),36:(SL3,"L"),44:(SL3,"L"),24:(SL1,"L"),32:(SL1,"L"),40:(SL1,"L"),30:(SL2,"L"),38:(SL2,"L")},
    4:{0:(SL1,"L"),1:(SL2,"L"),12:(SL3,"G"),27:(SL1,"G"),31:(SL2,"G"),18:(SL3,"L"),24:(SL3,"L"),30:(SL3,"L"),33:(SL1,"L"),39:(SL1,"L"),37:(SL2,"L"),43:(SL2,"L")},
    5:{0:(SL1,"L"),1:(SL2,"L"),10:(SL3,"G"),24:(SL1,"G"),28:(SL2,"G"),16:(SL3,"L"),22:(SL3,"L"),30:(SL3,"L"),38:(SL3,"L"),32:(SL1,"L"),42:(SL1,"L"),35:(SL2,"L")},
    6:{0:(SL1,"L"),1:(SL2,"L"),14:(SL3,"G"),25:(SL1,"G"),29:(SL2,"G"),20:(SL3,"L"),27:(SL3,"L"),33:(SL3,"L"),40:(SL3,"L"),31:(SL1,"L"),37:(SL1,"L"),35:(SL2,"L")}}
OS={0:{0:(28,"G"),1:(SL1,"G"),9:(SL2,"G"),19:(SL1,"G"),2:(SL3,"L"),5:(SL3,"L"),8:(SL3,"L"),11:(SL3,"L"),14:(SL3,"L"),17:(SL3,"L"),12:(SL2,"L"),15:(SL2,"L")},
    1:{0:(28,"G"),1:(SL1,"G"),11:(SL2,"G"),19:(SL1,"G"),2:(SL3,"L"),6:(SL3,"L"),10:(SL3,"L"),14:(SL3,"L"),18:(SL3,"L"),5:(SL1,"L"),15:(SL2,"L"),17:(SL3,"X")},
    2:{0:(28,"G"),1:(SL1,"G"),9:(SL2,"G"),19:(SL1,"G"),2:(SL3,"L"),6:(SL3,"L"),10:(SL3,"L"),14:(SL3,"L"),18:(SL3,"L"),5:(SL1,"L"),13:(SL2,"L"),17:(SL2,"L")},
    3:{0:(28,"G"),1:(SL1,"G"),11:(SL2,"G"),19:(SL1,"G"),2:(SL3,"L"),6:(SL3,"L"),10:(SL3,"L"),13:(SL3,"L"),16:(SL3,"L"),5:(SL1,"L"),15:(SL2,"L"),18:(SL2,"L")},
    4:{0:(28,"G"),1:(SL1,"G"),18:(SL2,"G"),19:(SL1,"G"),2:(SL3,"L"),6:(SL3,"L"),10:(SL3,"L"),14:(SL3,"L"),3:(SL2,"L"),7:(SL2,"L"),5:(SL1,"L"),9:(SL1,"L")},
    5:{0:(28,"G"),1:(SL1,"G"),9:(SL2,"G"),19:(SL1,"G"),2:(SL3,"L"),6:(SL3,"L"),10:(SL3,"L"),13:(SL3,"L"),16:(SL3,"L"),12:(SL2,"L"),15:(SL2,"L"),18:(SL2,"L")},
    6:{0:(28,"G"),1:(SL1,"G"),8:(SL2,"G"),19:(SL1,"G"),2:(SL3,"L"),7:(SL3,"L"),10:(SL3,"L"),13:(SL3,"L"),16:(SL3,"L"),11:(SL2,"L"),14:(SL2,"L"),17:(SL2,"L")},
    8:{0:(28,"G"),4:(SL1,"G"),10:(SL2,"G"),19:(SL1,"G"),2:(SL3,"L"),5:(SL3,"L"),8:(SL3,"L"),11:(SL3,"L"),14:(SL3,"L"),17:(SL3,"L"),13:(SL2,"L"),16:(SL2,"L")},
    9:{0:(28,"G"),3:(SL1,"G"),10:(SL2,"G"),19:(SL1,"G"),2:(SL3,"L"),6:(SL3,"L"),9:(SL3,"L"),12:(SL3,"L"),15:(SL3,"L"),18:(SL3,"L"),13:(SL2,"L"),16:(SL2,"L")}}
def setup_tiles():
    NV=OPT['nv']
    QSEQ[:]=[(m,k) for k in range(NV) for m in "qkv"]+[(m,k) for k in range(NV,18) for m in "qk"]+[("q",18),("q",19),("k",18),("k",19)]
    for d in (Q_SLOT,O_SLOT,SLOT,TG,TL,TR): d.clear()
    Q_SLOT.update(QS[OPT["qs"]]); O_SLOT.update(OS[OPT["os"]])
    GPOS[:]=sorted(p for p,v in Q_SLOT.items() if v[1]=="G")
    SLOT.update({QSEQ[p]:v for p,v in Q_SLOT.items()}); SLOT.update({("o",n):v for n,v in O_SLOT.items()})
    for key in [(m,k) for m in "qkvo" for k in range(20)]:
        kind=SLOT.get(key,(0,"R"))[1]
        if kind=="G": TG[key]=len(TG)
        elif kind=="L": TL[key]=len(TL)
        else: i=len(TR); TR[key]=("a",8*i) if i<32 else ("v",64+8*(i-32))
    assert len(TR)==56 and len(TG)==7 and len(TL)==17
def use_map(w): pass

def sw_ref(idx):
    return [sSW,sSW2,sSW3,sSW4][idx//2], (idx&1)*2048

def gload_tile(a,key,slot,tag):
    if "G" in OPT["ab"] or ("O" in OPT["ab"] and tag in("go9","go19")): return
    s,imm=sw_ref(TG[key])
    fl="" if tag in OPT["l1"] else OPT["gfl"]
    a.e(f"buffer_load_dwordx4 {vr(slot,4)}, {vL16}, {S_WS}, {s} offen offset:{imm} {fl}",tag)
    a.e(f"buffer_load_dwordx4 {vr(slot+4,4)}, {vL16}, {S_WS}, {s} offen offset:{imm+1024} {fl}",tag)
def gload_half(a,key,slot,tag,half):
    if "G" in OPT["ab"] or ("O" in OPT["ab"] and tag in("go9","go19")): return
    s,imm=sw_ref(TG[key])
    a.e(f"buffer_load_dwordx4 {vr(slot+4*half,4)}, {vL16}, {S_WS}, {s} offen offset:{imm+1024*half}",tag)
def lload_tile(a,key,slot,tag):
    o=TL[key]*2048
    a.e(f"ds_read_b128 {vr(slot,4)}, {vW} offset:{o}",tag)
    a.e(f"ds_read_b128 {vr(slot+4,4)}, {vW} offset:{o+1024}",tag)
def sm(a,acc,A,key,slot=None):
    if key in TR: k,b=TR[key]
    else: k,b="v",slot
    a.e(f"v_smfmac_f32_16x16x64_bf16 {vr(acc,4)}, {vr(A,4)}, {vr(b,8,k)}, {vIDX}")
def zero4(a,r):
    a.e(f"v_mov_b64 {vr(r,2)}, 0"); a.e(f"v_mov_b64 {vr(r+2,2)}, 0")

def chain_init(a, sW):
    setup_tiles()
    e=a.e
    e("s_load_dwordx2 s[54:55], s[0:1], %d"%A_WQ); e("s_load_dwordx2 s[56:57], s[0:1], %d"%A_WK)
    e("s_load_dwordx2 s[58:59], s[0:1], %d"%A_WV); e("s_load_dwordx2 s[60:61], s[0:1], %d"%A_WO)
    e("s_load_dwordx2 s[62:63], s[0:1], %d"%A_MEM0)
    e(f"s_mov_b32 {sPLO}, 0x05040100"); e(f"s_mov_b32 {sPHI}, 0x07060302")
    e("v_mov_b32 v15, v0"); e("v_lshlrev_b32 v0, 4, v0"); e("s_mov_b32 s11, 0x20000")
    def lanes():
        e("v_bfe_u32 v12, v15, 1, 3"); e("v_lshlrev_b32 v1, 6, v12"); e("v_lshrrev_b32 v12, 4, v15"); e("v_lshl_add_u32 v1, v12, 4, v1")
        e("v_and_b32 v12, 1, v15")
        e("v_mov_b32 v13, 0xaaaa"); e("v_mul_u32_u24 v2, v12, v13"); e("v_add_u32 v2, 0x4444, v2")
        e(f"s_lshl_b32 {sUNIT}, {sW}, 5"); e(f"s_add_u32 {sUNIT}, {sUNIT}, {sH}"); e(f"s_lshl_b32 {sT0}, {sUNIT}, 7")
        e("v_lshrrev_b32 v12, 3, v15"); e("v_mul_u32_u24 v4, 10240, v12"); e("v_and_b32 v12, 7, v15"); e("v_lshl_add_u32 v4, v12, 4, v4")
        e(f"v_add_u32 v4, {sT0}, v4")
        e(f"s_and_b32 {sT1}, {sUNIT}, 1"); e(f"s_lshl_b32 {sT1}, {sT1}, 2"); e(f"s_bfe_u32 {sMU}, {sUNIT}, 0x20001"); e(f"s_or_b32 {sT1}, {sT1}, {sMU}")
        e(f"s_andn2_b32 {sMU}, {sUNIT}, 7"); e(f"s_or_b32 {sT1}, {sT1}, {sMU}"); e(f"s_cmp_lt_u32 {sUNIT}, 64"); e(f"s_cselect_b32 {sMU}, {sT1}, {sUNIT}")
        e(f"s_lshl_b32 {sT0}, {sMU}, 7")
        e("v_lshrrev_b32 v12, 4, v15"); e("v_lshlrev_b32 v5, 6, v12"); e("v_and_b32 v12, 15, v15"); e("v_lshl_add_u32 v5, v12, 3, v5")
        e(f"v_add_u32 v5, {sT0}, v5"); e("v_and_b32 v12, 0x28, v15"); e("v_cmp_eq_u32 vcc, 0, v12"); e("v_mov_b32 v13, 0x7ff00000")
        e("v_cndmask_b32 v5, v13, v5, vcc")
        if OPT["probe"]=="c": e(f"s_lshl_b32 {sT1}, {sUNIT}, 3"); e(f"s_add_u32 {sT1}, {sT1}, 10240"); e(f"v_writelane_b32 v5, {sT1}, 32")
        e("v_lshrrev_b32 v12, 5, v15"); e("v_lshlrev_b32 v12, 2, v12"); e("v_and_b32 v13, 15, v15"); e("v_xor_b32 v12, v12, v13")
        e("v_lshlrev_b32 v6, 3, v12"); e("v_lshrrev_b32 v12, 4, v15"); e("v_lshl_add_u32 v6, v12, 7, v6")
        e(f"s_lshl_b32 {sT0}, {sW}, 10"); e(f"s_add_u32 {sT0}, {sT0}, {L_X}"); e(f"v_add_u32 v6, {sT0}, v6")
        e("v_bfe_u32 v12, v15, 3, 1"); e("v_lshlrev_b32 v7, 3, v12"); e("v_lshrrev_b32 v12, 4, v15"); e("v_lshl_add_u32 v7, v12, 1, v7")
        e("v_bfe_u32 v12, v15, 2, 1"); e("v_add_u32 v7, v7, v12"); e("v_bfe_u32 v12, v15, 1, 1"); e("v_lshlrev_b32 v12, 2, v12"); e("v_xor_b32 v7, v7, v12")
        e("v_lshlrev_b32 v7, 3, v7"); e("v_and_b32 v12, 3, v15"); e("v_lshl_add_u32 v7, v12, 7, v7"); e(f"v_add_u32 v7, {L_X}, v7")
        e("v_bfe_u32 v12, v15, 2, 2"); e("v_lshlrev_b32 v8, 7, v12"); e("v_and_b32 v12, 1, v15"); e("v_lshl_add_u32 v8, v12, 6, v8")
        e("v_lshrrev_b32 v12, 4, v15"); e("v_lshl_add_u32 v8, v12, 4, v8"); e(f"s_lshl_b32 {sT0}, {sW}, 9"); e(f"v_add_u32 v8, {sT0}, v8")
        if OPT["owx"]==2: e("v_and_b32 v12, 2, v15"); e("v_lshl_add_u32 v8, v12, 17, v8")
        if not OPT["owx"]: e(f"v_and_b32 v13, 0x1ff, v8"); e(f"v_add_u32 v13, {L_ROLE+512}, v13"); e("v_and_b32 v12, 2, v15"); e("v_cmp_eq_u32 vcc, 0, v12"); e("v_cndmask_b32 v8, v13, v8, vcc")
        e("v_lshlrev_b32 v9, 3, v15")
    def waddr():
        e("v_lshrrev_b32 v4, 4, v15"); e("v_lshlrev_b32 v4, 2, v4")
        e("v_and_b32 v5, 15, v15"); e("v_lshlrev_b32 v5, 2, v5")
        e(f"s_lshl_b32 {sT0}, {sH}, 8"); e(f"s_lshl_b32 {sT1}, {sW}, 6"); e(f"s_add_u32 {sT0}, {sT0}, {sT1}")
        e("v_lshl_add_u32 v1, v4, 13, v5"); e(f"v_add_u32 v1, {sT0}, v1")
        e("v_mul_u32_u24 v2, 1280, v4"); e("v_add_u32 v2, v2, v5")
        e(f"s_mul_i32 {sT0}, {sH}, {128*1280}"); e(f"s_add_u32 {sT0}, {sT0}, {sT1}"); e(f"v_add_u32 v2, {sT0}, v2")
        e("v_add_u32 v14, v2, v5"); e(f"v_add_u32 v14, {sT1}, v14")
        if "X" in OPT["ab"]:
            e("v_add_u32 v1, v1, v5"); e(f"s_and_b32 {sT0}, {sW}, 1"); e(f"s_mul_i32 {sT0}, {sT0}, {8192-64}"); e(f"v_add_u32 v1, {sT0}, v1")
            e(f"s_and_b32 {sT0}, {sW}, 1"); e(f"s_mul_i32 {sT0}, {sT0}, 1280"); e(f"v_add_u32 v14, {sT0}, v14"); e(f"v_add_u32 v2, {sT0}, v2")
        if OPT["stg"]:
            e("v_lshrrev_b32 v12, 4, v15"); e(f"s_lshl_b32 {sT0}, {sW}, 4"); e(f"v_add_u32 v1, {sT0}, v12"); e("v_lshlrev_b32 v1, 13, v1")
            e("v_and_b32 v13, 15, v15"); e("v_lshl_add_u32 v1, v13, 4, v1"); e(f"s_lshl_b32 {sT0}, {sH}, 8"); e(f"v_add_u32 v1, {sT0}, v1")
            e("v_lshlrev_b32 v13, 10, v12"); e("v_add_u32 v13, v13, v5"); e(f"v_add_u32 v13, {sT1}, v13")
        e(f"s_mul_i32 {sT0}, {sW}, {17*2048}"); e(f"s_add_u32 {sT0}, {sT0}, {L_W}"); e(f"v_add_u32 v3, {sT0}, v0")
        e(f"s_lshl_b32 {sT0}, {sH}, 2"); e(f"s_add_u32 {sT0}, {sT0}, {sW}"); e(f"s_lshl_b32 {sT0}, {sT0}, 14")
        e(f"s_add_u32 {sSW}, {sT0}, {SW_OFF}"); e(f"s_add_u32 {sSW2}, {sSW}, 4096"); e(f"s_add_u32 {sSW3}, {sSW}, 8192"); e(f"s_add_u32 {sSW4}, {sSW}, 12288")
        e("s_mov_b32 s10, %d"%(640*8192)); e("s_mov_b32 s11, 0x20000")
        if OPT["stg"]: e(f"s_lshl_b32 {sT1}, {sW}, 12")
    groups=[(m,k) for m in "qkv" for k in range(10)]+[("o",j,ko) for j in range(5) for ko in range(2)]
    LB=[16,32,48,240][:OPT["idepth"]+1]
    lbuf=lambda i: LB[i%len(LB)] if (len(LB)<4 or i<36) else LB[(0,1,2,0)[i-36]]
    base={"q":54,"k":56,"v":58,"o":60}
    cur=[None]
    STG=OPT["stg"]
    if STG:
        groups=groups[:30]+[("o2",c,ko) for c in range(2) for ko in range(4)]+[("o",4,ko) for ko in range(2)]
        base["o2"]=60
        assert all(TL[k]>=9 for k in TL if k[0]=="o") and all(TL[k]<9 for k in TL if k[0]!="o")
    NS=OPT["ns"]; SD=OPT["sd"]
    slot=lambda i: L_W+(i%NS)*17*2048+9*2048 if i%NS<4 else 0
    def issue(i):
        g=groups[i]; lb=lbuf(i)
        if cur[0]!=g[0]:
            e(f"s_mov_b32 s8, s{base[g[0]]}"); e(f"s_mov_b32 s9, s{base[g[0]]+1}"); cur[0]=g[0]
        if STG and i<30:
            for j in range(4):
                e(f"s_add_u32 m0, {sT1}, {slot(i)+1024*j}"); e(f"s_mov_b32 {sT0}, {(64*g[1]+4*j)*8192}")
                e(f"buffer_load_dwordx4 v1, {S_T}, {sT0} offen {OPT['wfl']} lds",f"w{i}")
            return
        if g[0]=="o2":
            for j in range(4):
                for x in range(2):
                    row=32*g[2]+16*(j>>1)+2*(j&1)+x
                    e(f"s_mov_b32 {sT0}, {row*1280+512*g[1]}")
                    e(f"buffer_load_dwordx2 {vr(lb+4*j+2*x,2)}, v14, {S_T}, {sT0} offen",f"w{i}")
            return
        for j in range(8):
            for x in range(2):
                row=64*g[-1]+32*(j>>2)+16*((j>>1)&1)+2*(j&1)+x
                if g[0]!="o": off=row*8192; vo="v1"
                elif g[1]<4: off=row*1280+512*(g[1]>>1)+4*(g[1]&1); vo="v14"
                else: off=row*1280+1024; vo="v2"
                e(f"s_mov_b32 {sT0}, {off}")
                e(f"buffer_load_dword v{lb+2*j+x}, {vo}, {S_T}, {sT0} offen",f"w{i}")
    tmp=[4,8]
    def put(key,lb,st=2,dx=1):
        src=lambda R: f"v{lb+st*(R>>1)+dx}, v{lb+st*(R>>1)}, {sPHI if R&1 else sPLO}"
        if key in TR and TR[key][0]=="v":
            for R in range(8): e(f"v_perm_b32 v{TR[key][1]+R}, {src(R)}")
            return
        for half in range(2):
            t=tmp[half]
            for R in range(4): e(f"v_perm_b32 v{t+R}, {src(4*half+R)}")
            if key in TR:
                for R in range(4): e(f"v_accvgpr_write_b32 a{TR[key][1]+4*half+R}, v{t+R}")
            elif key in TL:
                e(f"ds_write_b128 v3, {vr(t,4)} offset:{TL[key]*2048+half*1024}")
            else:
                sg,imm=sw_ref(TG[key])
                e(f"buffer_store_dwordx4 {vr(t,4)}, v0, {S_WS}, {sg} offen offset:{imm+half*1024} {OPT['swfl']}","st")
    def process(i):
        g=groups[i]; lb=lbuf(i)
        a.wait(vm=f"w{i}")
        if STG and i<30:
            lb=16
            e("s_barrier")
            if i+SD<30: issue(i+SD)
            elif i==30-SD: issue(30)
            elif i==31-SD: issue(31)
            e(f"v_add_u32 v12, {slot(i)}, v13")
            for j in range(8):
                row=32*(j>>2)+16*((j>>1)&1)+2*(j&1)
                e(f"ds_read2st64_b32 {vr(lb+2*j,2)}, v12 offset0:{row} offset1:{row+1}")
            e("s_waitcnt lgkmcnt(0)"); a.lg=[]
            if i==29: e("s_barrier")
        elif OPT["lock"] and not STG: e("s_barrier")
        for u in range(2):
            if g[0]=="o2": put(("o",8*g[1]+4*u+g[2]),lb+u,4,2)
            else: put((g[0],2*g[1]+u) if g[0]!="o" else ("o",4*g[1]+2*g[2]+u),lb+8*u)
    waddr(); e("s_waitcnt lgkmcnt(0)")
    issue(0); issue(1); q0=list(a.vm)
    lanes()
    e(f"s_mul_i32 {sT0}, {sH}, 10240"); e(f"s_add_u32 {sT0}, {sT0}, {P_OFF}"); e(f"s_lshl_b32 {sT1}, {sW}, 10")
    e(f"s_add_u32 {sP0}, {sT0}, {sT1}"); e(f"s_add_u32 {sP1}, {sP0}, 4096"); e(f"s_lshl_b32 {sT1}, {sW}, 9"); e(f"s_add_u32 {sP2}, {sT0}, {sT1}"); e(f"s_add_u32 {sP2}, {sP2}, 8192")
    for m in range(4): e(f"s_mov_b32 {sPR[m]}, {P_OFF+m*81920}")
    e(f"s_lshl_b32 {sT0}, {sH}, 13"); e(f"s_add_u32 {sKX}, {sT0}, {XK_OFF}"); e(f"s_add_u32 {sKX2}, {sKX}, 4096")
    e(f"s_lshl_b32 {sT1}, {sW}, 11"); e(f"s_add_u32 {sVX}, {sT0}, {XV_OFF}"); e(f"s_add_u32 {sVXN}, {sVX}, {32*8192}"); e(f"s_add_u32 {sVX}, {sVX}, {sT1}")
    e(f"s_add_u32 {sKXN}, {sKX}, {32*8192}")
    e(f"s_mul_i32 {sPC}, {sH}, {OPT['piece']}"); e(f"s_add_u32 {sMP}, {sPC}, {MEMP_OFF-10240}")
    c=(128**-0.5)*math.log2(math.e)
    import struct
    e(f"s_mov_b32 {sC}, 0x%08x"%struct.unpack("<I",struct.pack("<f",c))[0])
    e(f"s_mov_b32 s96, {sC}"); e(f"s_mov_b32 s97, {sC}")
    e("s_mov_b32 s98, 0x3f803f80"); e("s_mov_b32 s99, 0x3f803f80"); e("s_mov_b32 s100, 0x3f003f00"); e("s_mov_b32 s101, 0x3f003f00")
    e(f"s_lshl_b32 {sF1W}, {sW}, 7"); e(f"s_add_u32 {sF1W}, {sF1W}, {sH}"); e(f"s_add_u32 {sF1W}, {sF1W}, {F1_OFF}")
    e(f"s_cmp_lt_u32 {sW}, 2"); e(f"s_cselect_b32 {sT0}, 3, 2"); e(f"s_lshr_b32 {sT0}, {sH}, {sT0}"); e(f"s_and_b32 {sT0}, {sT0}, 3")
    e(f"s_lshl_b32 {sT1}, {sW}, 2"); e(f"s_add_u32 {sT0}, {sT0}, {sT1}"); e(f"s_lshl_b32 {sT0}, {sT0}, 7"); e(f"s_add_u32 {sF1R}, {sT0}, {F1_OFF}")
    e(f"s_mov_b32 {sFE}, 0xfffffffe")
    e("s_mov_b32 s44, 0x33333333"); e("s_mov_b32 s45, 0x33333333")
    e(f"s_lshl_b32 {sT0}, {sW}, 12"); e(f"s_add_u32 {sMR}, {sT0}, {M_OFF}")
    if OPT["probe"]=="b":
        e(f"s_and_b32 {sT0}, {sH}, {OPT['nrep']-1}"); e(f"s_lshl_b32 {sT0}, {sT0}, 8"); e(f"s_lshl_b32 {sT1}, {sW}, 5"); e(f"s_add_u32 {sT0}, {sT0}, {sT1}")
        e(f"s_add_u32 {sMF}, {sT0}, {FL_OFF}"); e(f"s_mov_b32 {sPAT}, 0")
    else:
        e(f"s_lshl_b32 {sT0}, {sW}, 8"); e(f"s_add_u32 {sMF}, {sT0}, {M_OFF+10240}")
    e(f"s_mov_b32 {sMW}, {M_OFF+16384}"); e(f"s_mov_b32 {sMZ}, {M_OFF+49152}")
    e(f"s_mov_b32 {sSTEP}, 0"); e(f"s_mov_b32 {sTAG}, 1"); e(f"s_mov_b32 {sTAGM}, -1"); e(f"s_mov_b32 {sCNT}, 0")
    e("v_mov_b64 v[56:57], 0"); e("v_mov_b64 v[58:59], 0"); e("v_mov_b64 v[60:61], -1")
    e(f"buffer_store_dwordx4 v[56:59], {vL16}, {S_WS}, {sP0} offen sc1"); e(f"buffer_store_dwordx4 v[56:59], {vL16}, {S_WS}, {sP1} offen sc1")
    e(f"buffer_store_dwordx2 v[56:57], {vL8}, {S_WS}, {sP2} offen sc1")
    e("s_mov_b64 exec, 1")
    for c in range(3): e(f"buffer_store_byte v56, v56, {S_WS}, {sF1W} offen offset:{512*c} sc1")
    e("s_mov_b64 exec, -1")
    e(f"s_cmp_ge_u32 {sUNIT}, 80"); e("s_cbranch_scc1 C_noM")
    e("s_mov_b32 s8, s62"); e("s_mov_b32 s9, s63"); e("s_mov_b32 s10, 10240")
    e(f"s_and_b32 {sT0}, {sMU}, 3"); e(f"s_mul_i32 {sT0}, {sT0}, 2560"); e(f"s_lshr_b32 {sT1}, {sMU}, 2"); e(f"s_lshl_b32 {sT1}, {sT1}, 6"); e(f"s_add_u32 {sT0}, {sT0}, {sT1}")
    e("v_bfe_u32 v12, v15, 4, 1"); e("v_mul_u32_u24 v12, 1280, v12"); e("v_and_b32 v13, 7, v15"); e("v_lshl_add_u32 v12, v13, 3, v12")
    e(f"buffer_load_dwordx2 v[62:63], v12, {S_T}, {sT0} offen")
    for k in range(1,4):
        e(f"s_mov_b32 {sT1}, {M_OFF+16384*k}"); e(f"buffer_store_dwordx2 v[60:61], {vRS}, {S_WS}, {sT1} offen sc1")
    e("s_waitcnt vmcnt(0)")
    e(f"v_min_u32 v62, {sFE}, v62")
    e(f"s_mov_b32 {sT1}, {M_OFF}"); e(f"buffer_store_dwordx2 v[62:63], {vRS}, {S_WS}, {sT1} offen sc1")
    a.label("C_noM")
    e("s_mov_b32 s8, s4"); e("s_mov_b32 s9, s5"); e("s_mov_b32 s10, 0")
    if OPT["probe"]=="b":
        e(f"s_cmp_eq_u32 {sW}, 3"); e("s_cbranch_scc1 C_noF")
        e(f"s_add_u32 s8, s4, {FL_OFF}"); e("s_addc_u32 s9, s5, 0"); e(f"s_mov_b32 s10, {OPT['nrep']*256}")
        e("v_lshlrev_b32 v12, 4, v0"); e("v_mov_b32 v13, 0")
        e(f"buffer_store_byte v13, v12, {S_T}, {sUNIT} offen sc1")
        a.label("C_noF")

    e(f"s_cmp_eq_u32 {sW}, 3"); e("s_cbranch_scc0 C_noZ")
    e(f"s_lshl_b32 {sT0}, {sH}, 10"); e(f"buffer_store_dwordx4 v[56:59], v0, {S_WS}, {sT0} offen sc1")
    e(f"s_add_u32 {sT0}, {sT0}, {OCNT4}"); e(f"buffer_store_dwordx4 v[56:59], v0, {S_WS}, {sT0} offen sc1")
    e("s_mov_b64 exec, 1"); e(f"s_lshl_b32 {sT0}, 1, {sXCC}"); e("v_mov_b32 v12, 8"); e(f"v_mov_b32 v13, {sT0}")
    e(f"global_atomic_or v12, v13, {sDBG}"); e("s_mov_b64 exec, -1")
    a.label("C_noZ"); a.vm=[]
    e("v_and_b32 v12, 15, v15"); e("v_and_b32 v52, 0xff, v0")
    for tab,neg in ((0,0),):
        for r,ent in enumerate([((0,2),(1,3)),((4,6),(5,7)),((2,None),(3,None)),((6,None),(7,None))]):
            e(f"v_mov_b32 v{48+r}, 0")
            for half,(pos,ng) in enumerate(ent):
                for row,val in ((pos,0x3f80),(ng if neg else None,0xbf80)):
                    if row is None: continue
                    e(f"v_mov_b32 v13, 0x{val<<(16*half):x}"); e(f"v_cmp_eq_u32 vcc, {row}, v12"); e(f"v_cndmask_b32 v{48+r}, v{48+r}, v13, vcc")
        e(f"ds_write_b128 v52, v[48:51] offset:{L_SEL+tab}")
        e("s_waitcnt lgkmcnt(0)")
    waddr(); a.vm=q0
    DD=OPT["idepth"]
    e("s_mov_b32 s8, s54"); e("s_mov_b32 s9, s55")
    if STG:
        for i in range(2,SD): issue(i)
        lbuf=lambda i: (32,48,16)[(i-30)%3]
    else:
        for i in range(2,DD): issue(i)
    for i in range(len(groups)):
        if STG:
            if 32<=i+2<len(groups): issue(i+2)
        elif i+DD<len(groups) and not (DD==3 and i==36): issue(i+DD)
        process(i)
        if DD==3 and i==36 and not STG: issue(39)
        if i==(2 if not STG else max(SD,3)-1):
            if not OPT["lock"]: e("s_barrier")
            e(f"s_cmp_eq_u32 {sW}, 3"); e("s_cbranch_scc0 C_noA")
            q=list(a.vm)
            e("s_mov_b64 exec, 1"); e("v_mov_b32 v4, 4"); e("v_mov_b32 v5, 1"); e(f"global_atomic_add v4, v5, {sDBG}"); e("s_mov_b64 exec, -1")
            a.label("C_noA"); a.vm=q
    a.wait(vm="all",lg="all")
    lanes()
    e("s_mov_b32 s8, s4"); e("s_mov_b32 s9, s5"); e("s_mov_b32 s10, 0")
    e(f"s_cmp_eq_u32 {sW}, 3"); e("s_cbranch_scc1 C_noF2")
    e(f"s_add_u32 s8, s4, {FL_OFF}"); e("s_addc_u32 s9, s5, 0"); e(f"s_mov_b32 s10, {OPT['nrep']*256}")
    a.label("C_noF2")

STAMPS=[]
OPT={"kvstride":32*8192,"d0":25,"d1":70,"d1b":90,"m1pos":0,"d2":0,"d3":0,"pf":1,"nosync":0,"stamps":[],"lock":1,"rl":20,"pub":1,"pipe":2,"probe":"b","owx":2,"fine":"","sweep":0,"swpfl":"","showinit":0,"vxe":0,"gq2":0,"vo":1,"one":1,"kxw":(2,3),"xo":1,"g9pre":1,"b1c":35,"g0p":0,"blind":0,"nanchk":1,"ns":4,"sd":3,"wfl":"","stg":1,"b4p":3,"nv":12,"rtail":0,"half":1,"kxb0":0,"pubp":6,"qs":0,"os":5,"b0w0":1,"pfw":0,"w2late":1,"b0":3,"rot":1,"al":(6,0),"gate":0,"swfl":"","wb":1,"warm":1,"nat":("p0","p2","p2"),"dbgout":0,"lastlds":2,"f1":0,"q1":16,"spec":0,"kvfl":"sc1","piece":320,"m1in":0,"pairw":0,"b4":0,"ststag":0,"g9in":0,"g1pv":1,"kxout":(11,1),"b1b":13,"g19":(2,4),"idepth":2,"prep":(13,14,15,17),"m1pre":0,"gq":(0,1),"stag":1,"kxp":(7,1),"pfp":13,"go1p":"exp","g18":(10,11),"unr":4,"goearly":1,"mpstride":10240,"pubfl":"sc1","pubpos":"qk","pfsplit":0,"kvmask":7,"kvchk":1,"pfwait":0,"pffl":"sc1","nrep":2,"np":5,"l1":(),"gfl":"","prepos":"early","percu":0,"at":40,"d4":0,"ab":"","pfpos":"qk"}
def delay(a,n):
    while n>0:
        k=min(n,16); a.e(f"s_nop {k-1}"); n-=k
def stamp(a,tim,name):
    if OPT["fine"] and not name.startswith(OPT["fine"]) and name!="b1": return
    if not OPT["fine"] and name[0]=="_": return
    if name not in STAMPS: STAMPS.append(name)
    if tim==3:
        i=STAMPS.index(name); assert i<19; a.e(f"s_memtime s[{54+2*i}:{55+2*i}]")
        if OPT["fine"]: a.lg+= [None,None]
        return
    if tim!=1 or name not in OPT["stamps"]: return
    i=OPT["stamps"].index(name)
    a.e("s_memtime s[70:71]"); a.e("s_waitcnt lgkmcnt(0)"); a.lg=[]
    a.e("s_sub_u32 s72, s70, s73"); a.e("s_mov_b32 s73, s70"); a.e(f"s_add_u32 s{76+i}, s{76+i}, s72")

def dma(a,n,soff,tag,first=0):
    fl=OPT["kvfl"] if tag=="kx" else "sc1"
    for i in range(first,first+n):
        a.e(f"buffer_load_dwordx4 {vL16}, {S_WS}, {soff} offen offset:{1024*i} {fl} lds",tag)

def chain_wave(a, w, st, pfx, tim=0):
    use_map(w)
    e=a.e; L=lambda s: f"{pfx}{w}_{s}"
    nd=[4,4,2,0][w]
    def chk(l):
        if OPT["nosync"] or (OPT["blind"] and l=="mr"): e("s_nop 0")
        else: e(f"s_cbranch_vccnz {L(l)}")
    def spin(c=None):
        if tim in(1,2) and c: e(f"s_add_u32 {c}, {c}, 1")
        e(f"s_add_u32 {sCNT}, {sCNT}, 1"); e(f"s_cmp_gt_u32 {sCNT}, 0x40000"); e("s_cbranch_scc1 L_abort")
    def aread(k,buf): e(f"ds_read_b128 {vr(buf,4)}, {vA} offset:{L_MEM+512*k}",f"A{k}")
    tg=lambda key: "t%s%d"%key
    def prestage():
        for p in range(2):
            if p in Q_SLOT: lload_tile(a,QSEQ[p],SLOT[QSEQ[p]][0],None)
    B0L=[(QSEQ[p],h) for p in GPOS for h in range(2)][:max(OPT["b0"]-1,0)]
    def b0loads():
        for k,h in B0L: gload_half(a,k,SLOT[k][0],tg(k),h)
    def zero_acc():
        for r in (QA,KA,VA): zero4(a,r)
    NREP=OPT["nrep"]
    def paddr(r):
        if OPT["probe"]=="b": e(f"v_bfe_u32 v{r}, {vL16}, 2, {4 if w==2 else 5}")
        elif OPT["probe"]=="c": e(f"v_and_b32 v{r}, {0x7f if w==2 else 0xff}, {vL8}")
        else:
            e(f"v_lshlrev_b32 v{r}, 2, {vL16}")
            if w==2: e(f"v_and_b32 v{r}, 0x7ff, v{r}")
    def probe(d,r,tag=None):
        e(f"buffer_load_dword v{d}, v{r}, {S_WS}, {sMR if OPT['probe']=='d' else sMF} offen sc1",tag)
    def pcmp(d):
        if OPT["probe"]=="b": e(f"v_cmp_ne_u32 vcc, {sPAT}, v{d}")
        else: e(f"v_cmp_eq_u32 vcc, -1, v{d}")
    def mfetch():
        paddr(T1); probe(T1,T1,"pr")
        dma(a,nd,sMR,"dma")
    if w==3: e(f"s_cmp_eq_u32 {sH}, 0"); e(f"s_cselect_b32 {sALL}, 0, 1")
    if tim in(1,2):
        e("s_memtime s[70:71]"); e("s_waitcnt lgkmcnt(0)"); e("s_mov_b32 s73, s70"); e("s_mov_b32 s74, s70")
        for i in range(11): e(f"s_mov_b32 s{76+i}, 0")
    if OPT["warm"]:
        e(f"v_lshlrev_b32 v{T1}, 3, {vL16}")
        if w<3:
            for k in range(4): e(f"s_mov_b32 {sT0}, {M_OFF+16384*k}"); e(f"buffer_load_dwordx2 v[12:13], {vRS}, {S_WS}, {sT0} offen sc1")
            e(f"buffer_load_dword v14, v{T1}, {S_WS}, {sP0} offen sc1") if w==0 else None
        else:
            e(f"s_sub_u32 {sT0}, {sVXN}, {32*8192}"); e(f"buffer_load_dword v14, v{T1}, {S_WS}, {sT0} offen sc1")
    if tim==5 and w==0:
        e("s_memrealtime s[70:71]"); e("s_waitcnt lgkmcnt(0)")
        e(f"s_lshl_b32 s72, {sH}, 8"); e(f"s_add_u32 s72, s72, {DBG_OFF+0x40000}")
        e(f"v_mov_b32 v{T0}, s70"); e(f"v_lshlrev_b32 v{T1}, 24, {vL16}")
        e(f"buffer_store_dword v{T0}, v{T1}, {S_WS}, s72 offen")
    if OPT["gate"] and w==0:
        e(f"v_mov_b32 v{T0}, 0x7f"); e(f"v_lshlrev_b32 v{T1}, 24, {vL16}")
        e(f"buffer_store_byte v{T0}, v{T1}, {S_WS}, {sF1W} offen {st}")
        e(f"v_bfe_u32 v{T1}, {vL16}, 2, 5"); e(f"s_mov_b32 {sT0}, {F1_OFF}"); e(f"s_mov_b32 {sT1}, 0x7f7f7f7f")
        a.label(L("gate"))
        e(f"buffer_load_dword v{T0}, v{T1}, {S_WS}, {sT0} offen sc1"); spin(); e("s_waitcnt vmcnt(0)")
        e(f"v_cmp_ne_u32 vcc, {sT1}, v{T0}"); e(f"s_cbranch_vccz {L('gated')}"); e("s_sleep 2"); e(f"s_branch {L('gate')}")
        a.label(L("gated"))
    a.label(L("rec"))
    e("s_waitcnt vmcnt(0) lgkmcnt(0)"); a.vm=[]; a.lg=[]
    spin("s84")
    e("s_barrier")
    prestage()
    if OPT["kxout"] and w in(0,3):
        e(f"s_mov_b32 m0, {L_KX+(4096 if w else 0)}"); dma(a,4,sKX2 if w else sKX,"kx")
    if w<3: e(f"s_mov_b32 m0, {4096*w}")
    if w==0 or (w<3 and OPT["m1pre"]): dma(a,nd,sMR,"dma")
    if OPT["b0"] and (w==1 or (w==2 and not OPT["w2late"])): mfetch()
    if w or OPT["b0w0"]: b0loads()
    zero_acc()
    e("s_waitcnt vmcnt(0) lgkmcnt(0)"); a.vm=[]; a.lg=[]
    top_vm={0:[],1:["rs","fl","mz"],2:["rs","fl","mz"],3:[]}[w]
    if OPT["m1pre"] and w in(1,2): top_vm=["dma"]*nd
    if OPT["b0"] and (w==1 or (w==2 and not OPT["w2late"])): top_vm=top_vm+["pr"]+["dma"]*nd
    if w or OPT["b0w0"]: top_vm=top_vm+[tg(k) for k,h in B0L]
    if OPT["kxb0"] and w==3: top_vm=top_vm+["kx"]*8
    if OPT["pub"] and OPT["pubpos"]=="hop" and w==3: top_vm=["pub"]
    a.vm=list(top_vm)
    if OPT["al"]:
        e(f"s_branch HZ_{L('top')}"); a.ins.append(Ins(f".p2align {OPT['al'][0]}"))
        for i in range(OPT["al"][1]): a.ins.append(Ins("s_nop 0"))
    if OPT["rot"] and w==0:
        a.label(L("pretop")); e(f"s_waitcnt vmcnt({len(top_vm)+2*OPT['half']})")
        if OPT["half"]: a.vm=["dmb","dmb"]+a.vm
    a.label("HZ_"+L("top"))
    e("s_barrier")
    for k in range(4): aread(k,AB[k])
    if w==2 and OPT["b0"] and OPT["w2late"]: mfetch()
    if w in(1,2) and not OPT["m1pre"] and not OPT["b0"]:
        if OPT["m1in"]: paddr(T1); probe(T1,T1,"pr")
        else: mfetch()
    stamp(a,tim,"b1")
    def slow_ops(where):
        if w==OPT["pfw"] and OPT['pf'] and OPT["pfpos"]==where:
            tr=T1 if w==3 else 4*0+T0
            e(f"v_lshlrev_b32 v{tr}, 3, {vL16}"); e(f"s_mov_b32 m0, {L_ROLE}")
            e(f"buffer_load_dword v{tr}, {S_WS}, {sKXN} offen {OPT['pffl']} lds","pf")
            e(f"buffer_load_dword v{tr}, {S_WS}, {sVXN} offen {OPT['pffl']} lds","pf")
            if w in(1,2): e(f"s_mov_b32 m0, {4096*w}")
        if w!=3: return
        if OPT["pub"] and OPT["pubpos"]==where:
            e(f"buffer_store_dwordx2 v[4:5], {vL8}, {S_T}, {sMP} offen {OPT['pubfl']}","pub")
            e("s_mov_b32 s10, 0")
    ACC={"q":QA,"k":KA,"v":VA}
    def nxt(seq,tab,p):
        later=[x for x in sorted(tab) if x>p and tab[x][0]==tab[p][0]]
        return later[0] if later else None
    def qkv(key,buf,p=None):
        if key in TG: a.wait(vm=tg(key))
        elif key in TL and p>1: a.wait(lg=tg(key))
        sm(a,ACC[key[0]],buf,key,SLOT.get(key,(0,))[0])
        if p in Q_SLOT:
            n=nxt(QSEQ,Q_SLOT,p)
            if n is not None and Q_SLOT[n][1]=="L": lload_tile(a,QSEQ[n],Q_SLOT[n][0],tg(QSEQ[n]))
    kxw = w in(0,3)
    def kxread(kt,ke,dst): e(f"ds_read_b128 {vr(dst,4)}, {vL16} offset:{L_KX+1024*(4*kt+ke)}",f"K{kt}{ke}")
    cvt=lambda d,x,y: e(f"v_cvt_pk_bf16_f32 v{d}, v{x}, v{y}")
    gs=[(QSEQ[p],h) for p in GPOS for h in range(2)]
    seen=set(); read=set(range(4)); NQ=len(QSEQ); NV=OPT["nv"]
    for p,key in enumerate(QSEQ):
        m,k=key; b=AB[k%4]
        if p==OPT["b1b"]:
            stamp(a,tim,"k2")
            if w==2 and OPT["w2late"] and OPT["b1c"]: chk("mr"); a.label(L("mok"))
            elif w in(1,2) and not OPT["m1pre"]: chk("mr"); a.wait(vm="dma"); a.label(L("mok"))
            elif w in(1,2): a.wait(vm="dma")
            e("s_barrier"); stamp(a,tim,"b1b")
            for kk in range(8,k+4):
                if kk not in read: aread(kk,AB[kk%4]); read.add(kk)
        if k not in seen:
            if OPT["pairw"] and k>=10 and k%2==0 and k+1 in read: a.wait(lg=f"A{k+1}"); seen.add(k+1)
            else: a.wait(lg=f"A{k}")
            seen.add(k)
        qkv(key,b,p)
        if p==2 and OPT["half"]:
            if w==0: a.wait(vm="dmb")
            e("s_barrier")
        last=all(x[1]!=k for x in QSEQ[p+1:])
        if last and k+4<20 and (k+4<8 or p>=OPT["b1b"]) and k+4 not in read: aread(k+4,b); read.add(k+4)
        if not OPT['nanchk'] and p==1: a.wait(lg="A3"); e(f"v_max3_u32 v{T0}, v{AB[0]}, v{AB[1]}, v{AB[2]}")
        if p==2: e(f"v_max_u32 v{T0}, v{T0}, v{AB[3]}") if False else None
        if not OPT['nanchk'] and p==3: e(f"v_max_u32 v{T0}, v{T0}, v{AB[3]}")
        if not OPT['nanchk'] and p==4: e(f"v_cmp_eq_u32 vcc, -1, v{T0}")
        if not OPT['nanchk'] and p==6: chk("rec")
        if not OPT['nanchk'] and m=="q" and k==4: e(f"v_mov_b32 v{T0}, v{b}")
        if not OPT['nanchk'] and m=="q" and 5<=k<=17:
            if OPT["pairw"] and k>=10:
                if k%2==0: e(f"v_max3_u32 v{T0}, v{T0}, v{b}, v{AB[(k+1)%4]}")
            else: e(f"v_max_u32 v{T0}, v{T0}, v{b}")
        m1=OPT["m1in"] and w in(1,2) and not OPT["m1pre"]
        if m1 and p<nd: dma(a,1,sMR,"dma",p)
        for j,(gk,h) in enumerate(gs):
            if (w or OPT["b0w0"]) and j<OPT["b0"]-1: continue
            if OPT["gq2"]:
                if p==(j-2)//2: gload_half(a,gk,SLOT[gk][0],tg(gk),h)
                continue
            if p==(OPT["gq"][0]+OPT["gq"][1]*j if not m1 else max(OPT["gq"][0]+OPT["gq"][1]*j,nd+j)): gload_half(a,gk,SLOT[gk][0],tg(gk),h)
        if not OPT["kxout"]:
            if kxw and p==OPT["kxp"][0]-1: e(f"s_mov_b32 m0, {L_KX+(4096 if w else 0)}")
            for j in range(4):
                if kxw and p==OPT["kxp"][0]+OPT["kxp"][1]*j: dma(a,1,sKX2 if w else sKX,"kx",j)
        if p==OPT["pfp"]: slow_ops("qk")
        if p==OPT["pubp"]: slow_ops("qk2")
        if p==OPT["b1b"]-2 and w in(1,2) and not OPT["m1pre"]: a.wait(vm="pr"); pcmp(T1)
        if p==OPT["b1c"] and OPT["w2late"] and OPT["b1c"]:
            if w==2: a.wait(vm="dma")
            if w==3: a.wait(vm="kx")
            e("s_barrier")
        if p==44: stamp(a,tim,"k7")
        if p%3==2: stamp(a,tim,f"_q{p}")
        if p==46 and not OPT["kxout"]: a.wait(vm="kx"); e("s_barrier")
        if p==NQ-5: kxread(0,0,SL3); kxread(1,0,SL3+4)
        if p==NQ-4 and not OPT["nanchk"]: a.wait(lg="A19"); seen.add(19); e(f"v_max3_u32 v{T0}, v{T0}, v{AB[2]}, v{AB[3]}")
        if p==NQ-3 and not OPT["nanchk"]: e(f"v_cmp_eq_u32 vcc, -1, v{T0}")
        if p==NQ-3: kxread(0,1,SL2); kxread(1,1,SL2+4)
        if p==NQ-1 and not OPT["nanchk"]: chk("rec")
        if p==NQ-1 and OPT["nanchk"]: e(f"v_cmp_u_f32 vcc, v{QA}, v{QA+2}")
    stamp(a,tim,"qk")
    slow_ops("qkend")
    if w==3 and OPT["pub"] and OPT["pubpos"]=="lds":
        e(f"v_add_u32 v{T1}, {sPC}, {vL8}"); e(f"ds_read_b64 v[4:5], v{T1} offset:{L_MEM}","pl")
    RR=list(range(NV,16))
    def vre(i,buf):
        if i<len(RR): aread(RR[i],buf)
    def vdo(i,buf):
        if i<len(RR): a.wait(lg=f"A{RR[i]}"); qkv(("v",RR[i]),buf)
    cvt(QA,QA,QA+2); cvt(QA+2,QA+1,QA+3)
    qkv(("v",16),AB[0]); vre(0,AB[0])
    qkv(("v",17),AB[1]); vre(1,AB[1])
    if OPT["nanchk"]: chk("scan"); a.label(L("scanned"))
    cvt(QA+1,KA,KA+2); cvt(QA+3,KA+1,KA+3)
    e(f"ds_write_b64 {vXW}, {vr(QA,2)}","xw"); e(f"ds_write_b64 {vXW}, {vr(QA+2,2)} offset:512","xw")
    qkv(("v",18),AB[2]); vre(2,AB[2])
    qkv(("v",19),AB[3]); vre(3,AB[3])
    vdo(0,AB[0]); vdo(1,AB[1])
    if w==3 and OPT["pub"] and OPT["lastlds"]:
        e(f"s_cmp_ge_u32 {sSTEP}, {NSEG-1-OPT['lastlds']}"); e(f"s_cbranch_scc1 {L('pub62')}"); a.label(L("pub62b"))
    if False:
        e(f"s_add_u32 {sMP}, {sMP}, 10240"); e(f"s_add_u32 s10, {sMP}, {OPT['piece']}")
        e(f"buffer_store_dwordx2 v[4:5], {vL8}, {S_T}, {sMP} offen {OPT['pubfl']}","pub")
    stamp(a,tim,"_s0"); a.wait(lg="xw"); stamp(a,tim,"_s1"); e("s_barrier"); stamp(a,tim,"b2"); stamp(a,tim,"_s2")
    G1=min(n for n,v in O_SLOT.items() if v==(SL1,"G"))
    X=[28,32,40,44]
    S0,S1,SM=AB[0],AB[2],AB[1]
    def mf(d,A,B,first,op="v_mfma_f32_16x16x32_bf16",n=4):
        e(f"{op} {vr(d,4)}, {vr(A,n)}, {vr(B,n)}, {'0' if first else vr(d,4)}")
    VM=VA; VX=SL3; P=SL2; PM=SL2+4
    def xr(ke):
        for x in range(2): e(f"ds_read_b64_tr_b16 {vr(X[ke]+2*x,2)}, {vXR} offset:{1024*ke+512*x}",f"X{ke}")
    xr(0); vdo(2,AB[2]); xr(1); vdo(3,AB[3]); vre(4,AB[3])
    a.wait(lg="X0"); mf(S0,SL3,X[0],1); xr(2); mf(S1,SL3+4,X[0],1)
    kxread(0,2,SL3); kxread(1,2,SL3+4)
    a.wait(lg="X1"); mf(S0,SL2,X[1],0); xr(3); mf(S1,SL2+4,X[1],0)
    kxread(0,3,SL2); kxread(1,3,SL2+4)
    vdo(4,AB[3]); vre(5,AB[3])
    ONE=AB[3] if OPT["one"] else S0
    mf(SM,X[0],X[0],1)
    if OPT["one"] and len(RR)<6: e(f"v_mov_b64 {vr(ONE,2)}, {sONE}"); e(f"v_mov_b64 {vr(ONE+2,2)}, {sONE}")
    mf(SM,X[1],X[1],0)
    vdo(5,AB[3])
    if OPT["one"] and len(RR)==6: e(f"v_mov_b64 {vr(ONE,2)}, {sONE}"); e(f"v_mov_b64 {vr(ONE+2,2)}, {sONE}")
    stamp(a,tim,"_s6"); a.wait(lg="K12"); stamp(a,tim,"_s7"); mf(S0,SL3,X[2],0); mf(S1,SL3+4,X[2],0)
    e(f"buffer_load_dwordx4 {vr(VX,4)}, {vL16}, {S_WS}, {sVX} offen {OPT['kvfl']}","vx")
    cvt(VM,VM,VM+2)
    stamp(a,tim,"_s8"); a.wait(lg="K13"); stamp(a,tim,"_s9"); mf(S0,SL2,X[3],0); cvt(VM+1,VM+1,VM+3); mf(S1,SL2+4,X[3],0)
    if not OPT["vxe"]: e(f"buffer_load_dwordx4 {vr(VX+4,4)}, {vL16}, {S_WS}, {sVX} offen offset:1024 {OPT['kvfl']}","vx")
    mf(SM,X[2],X[2],0)
    if OPT["g0p"]==1: gload_half(a,("o",0),28,"go0",0)
    e(f"v_mov_b32 v{PM+1}, 0"); e(f"v_mov_b32 v{PM+2}, 0")
    mf(SM,X[3],X[3],0)
    if OPT["g0p"]==1: gload_half(a,("o",0),28,"go0",1)
    e(f"v_max3_f32 v{T1}, v{S0}, v{S0+1}, v{S0+2}")
    e(f"v_max3_f32 v{T0}, v{S0+3}, v{S1}, v{S1+1}")
    e(f"v_max3_f32 v{T1}, v{T1}, v{S1+2}, v{S1+3}")
    stamp(a,tim,"scores"); stamp(a,tim,"_sa")
    e(f"v_max_f32 v{T1}, v{T1}, v{T0}")
    if OPT["g0p"]==0: gload_half(a,("o",0),28,"go0",0)
    e(f"v_max3_f32 v{T0}, v{T1}, v{SM+2}, v{SM+3}"); e(f"v_max3_f32 v{T1}, v{T1}, v{SM+2}, v{SM+3}")
    e(f"v_permlane32_swap_b32 v{T0}, v{T1}")
    e(f"v_max_f32 v{SM}, v{T0}, v{T1}"); e(f"v_max_f32 v{T0}, v{T0}, v{T1}")
    if OPT["g0p"]==0: gload_half(a,("o",0),28,"go0",1)
    e(f"v_permlane16_swap_b32 v{T0}, v{SM}")
    e(f"v_max_f32 v{T0}, v{T0}, v{SM}")
    e(f"v_mul_f32 v{T0}, {sC}, v{T0}")
    stamp(a,tim,"max"); stamp(a,tim,"_sb")
    ev=[S0,S0+1,S0+2,S0+3,S1,S1+1,S1+2,S1+3,SM+2,SM+3]
    for r in ev[::2]:
        e(f"v_pk_fma_f32 {vr(r,2)}, {vr(r,2)}, {sCC}, {vr(T0,2)} op_sel_hi:[1,1,0] neg_lo:[0,0,1] neg_hi:[0,0,1]")
    for i,r in enumerate(ev[:8]):
        e(f"v_exp_f32 v{r}, v{r}")
        if i in(1,6) and not OPT["g1pv"]: gload_half(a,("o",G1),SL1,f"go{G1}",i//6)
        if i in(2,4,6): cvt(P+i//2-1,ev[i-2],ev[i-1])
        if i==4 and not OPT["one"]: e(f"v_mov_b64 {vr(S0,2)}, {sONE}")
        if i==6 and not OPT["one"]: e(f"v_mov_b64 {vr(S0+2,2)}, {sONE}")
    e(f"v_exp_f32 v{ev[8]}, v{ev[8]}"); cvt(P+3,ev[6],ev[7])
    e(f"v_exp_f32 v{ev[9]}, v{ev[9]}")
    O=[AB[3],S0] if OPT['one'] else [S0,AB[3]]
    VX1=VX+4
    if OPT['vxe']: O=[S0,SL3+4]; VX1=AB[3]
    stamp(a,tim,"exp"); stamp(a,tim,"_p0")
    mf(S1,ONE,P,1)
    cvt(PM,ev[8],ev[9]); cvt(PM+3,ev[8],ev[9])
    stamp(a,tim,"_p1"); a.wait(vm="vx1" if OPT["vxe"] else "vx"); stamp(a,tim,"_p2")
    mf(O[1],VX1,P,1)
    if OPT["g1pv"]: gload_half(a,("o",G1),SL1,f"go{G1}",0)
    mf(S1,ONE,PM,0,"v_mfma_f32_16x16x16_bf16",2)
    if OPT["g1pv"]: gload_half(a,("o",G1),SL1,f"go{G1}",1)
    if OPT["vxe"]: a.wait(vm="vx")
    mf(O[0],VX,P,1)
    if not OPT["vxe"]: lload_tile(a,("o",2),SL3,"lo2")
    mf(O[1],VM,PM+2,0,"v_mfma_f32_16x16x16_bf16",2)
    if OPT["g0p"]==2: gload_tile(a,("o",0),28,"go0")
    e(f"v_rcp_f32 v{T0}, v{S1}")
    mf(O[0],VM,PM,0,"v_mfma_f32_16x16x16_bf16",2)
    ks=OPT["kvstride"]
    e(f"s_add_u32 {sSTEP}, {sSTEP}, 1"); e(f"s_add_u32 {sVX}, {sVX}, {ks}")
    if w==0: e("s_mov_b32 m0, 0")
    e(f"s_add_u32 {sKX2}, {sKX2}, {ks}"); e(f"s_add_u32 {sKX}, {sKX}, {ks}")
    if w==OPT["pfw"]: e(f"s_add_u32 {sKXN}, {sKXN}, {ks}"); e(f"s_add_u32 {sVXN}, {sVXN}, {ks}")
    PK=P
    stamp(a,tim,"_p7")
    for i in range(0,4,2): e(f"v_pk_mul_f32 {vr(O[1]+i,2)}, {vr(O[1]+i,2)}, {vr(T0,2)} op_sel_hi:[1,0]")
    for i in range(0,4,2):
        e(f"v_pk_mul_f32 {vr(O[0]+i,2)}, {vr(O[0]+i,2)}, {vr(T0,2)} op_sel_hi:[1,0]")
        for k in range(2): cvt(PK+i+k,O[0]+i+k,O[1]+i+k)
    if OPT["owx"]==1: e(f"s_mov_b64 exec, {sEX}")
    e(f"ds_write_b128 {vOW}, {vr(PK,4)}","ow")
    if OPT["owx"]==1: e("s_mov_b64 exec, -1")
    stamp(a,tim,"_p8")
    if OPT["vxe"]: lload_tile(a,("o",2),SL3,"lo2")
    G2=[n for n,v in O_SLOT.items() if v==(SL2,"G")][0]
    ZA,XA,YA=36,28,32
    zero4(a,ZA)
    slow_ops("opack")
    stamp(a,tim,"opack")
    a.wait(lg="ow")
    if OPT["g9pre"]: gload_tile(a,("o",G2),SL2,f"go{G2}")
    stamp(a,tim,"_p9"); e("s_barrier"); stamp(a,tim,"b3"); stamp(a,tim,"_pa")
    for k in range(4): e(f"ds_read_b128 {vr(AB[k],4)}, {vA} offset:{L_MEM+512*k}",f"ao{k}")
    F2=min(n for n,v in O_SLOT.items() if v[0]==SL2)
    if F2!=G2: lload_tile(a,("o",F2),SL2,f"lo{F2}")
    elif not OPT["g9in"] and not OPT["g9pre"]: gload_tile(a,("o",G2),SL2,f"go{G2}")
    RL=[SL2,SL2+4,SL3,SL3+4]
    def red_loads():
        for m in range(4): e(f"buffer_load_dwordx4 {vr(RL[m],4)}, {vRL}, {S_WS}, {sPR[m]} offen sc1",f"r{m}")
    z=lambda r: [f"v_mov_b64 {vr(r,2)}, 0",f"v_mov_b64 {vr(r+2,2)}, 0"]
    cv=lambda d,x,y: f"v_cvt_pk_bf16_f32 v{d}, v{x}, v{y}"
    tagop=lambda r: f"v_and_or_b32 v{r}, v{r}, -2, {sTAG}"
    PACC=[ZA,XA,YA,ZA,XA]
    post={n:[] for n in range(21)}
    post[1]+=z(XA)[:1]; post[2]+=z(XA)[1:]; post[3]+=z(YA)[:1]; post[4]+=z(YA)[1:]
    post[5]+=[cv(ZA,ZA,ZA+1)]; post[6]+=[cv(ZA+1,ZA+2,ZA+3)]; post[7]+=[tagop(ZA)]
    sg=OPT["ststag"]*(w>>1)
    post[9]+=[cv(ZA+2,XA,XA+1),cv(ZA+3,XA+2,XA+3)]
    post[9+sg]+=[(f"buffer_store_dwordx4 {vr(ZA,4)}, {vL16}, {S_WS}, {sP0} offen {st}","p0")]
    post[10+sg]+=z(ZA); post[12]+=z(XA)[:1]; post[13]+=z(XA)[1:]
    post[13]+=[cv(YA,YA,YA+1)]; post[14]+=[cv(YA+1,YA+2,YA+3)]; post[15]+=[tagop(YA)]
    post[17]+=[cv(YA+2,ZA,ZA+1),cv(YA+3,ZA+2,ZA+3)]
    post[17+sg]+=[(f"buffer_store_dwordx4 {vr(YA,4)}, {vL16}, {S_WS}, {sP1} offen {st}","p1")]
    post[20]+=[cv(XA,XA,XA+1),cv(XA+1,XA+2,XA+3),tagop(XA),(f"buffer_store_dwordx2 {vr(XA,2)}, {vL8}, {S_WS}, {sP2} offen {st}","p2")]
    def flag(c): return [(f"buffer_store_byte v{T0}, v{T1}, {S_WS}, {sF1W} offen offset:{512*c} {st}",f"f{c}")]
    if OPT["f1"]:
        post[0]+=[f"v_mov_b32 v{T0}, {sSTEP}"]; post[8]+=[f"v_lshlrev_b32 v{T1}, 24, {vL16}"]
        post[10+sg]=flag(0)+post[10+sg]; post[18+sg]=flag(1)+post[18+sg]; post[20]+=flag(2)
    def emit(l):
        for x in l:
            if isinstance(x,tuple): e(x[0],x[1])
            else: e(x)
    def probe1(d,r): e(f"buffer_load_dword v{d}, v{r}, {S_WS}, {sF1R} offen sc1","q1")
    for n in range(20):
        ko=n&3; key=("o",n)
        if n<4: a.wait(lg=f"ao{ko}")
        if n<2: stamp(a,tim,f"_pb{n}")
        if key in TL: a.wait(lg=f"lo{n}")
        elif key in TG: a.wait(vm=f"go{n}")
        sm(a,PACC[n>>2],AB[ko],key,SLOT.get(key,(0,))[0])
        if n in O_SLOT:
            m=nxt(None,O_SLOT,n)
            if m is not None and O_SLOT[m][1]=="L": lload_tile(a,("o",m),O_SLOT[m][0],f"lo{m}")
        if F2!=G2 and n in OPT["g18"]: gload_half(a,("o",G2),SL2,f"go{G2}",OPT["g18"].index(n))
        if OPT["g9in"] and n<2: gload_half(a,("o",G2),SL2,f"go{G2}",n)
        if n in OPT["g19"]: gload_half(a,("o",19),SL1,"go19",OPT["g19"].index(n))
        if OPT["kxout"] and w in OPT["kxw"] and not OPT["kxb0"]:
            ko_=OPT["kxout"]; nk=8//len(OPT["kxw"]); f0=nk*OPT["kxw"].index(w)
            if n==ko_[0]-1: e(f"s_mov_b32 m0, {L_KX+4096*(f0//4)}")
            for j in range(nk):
                if n==ko_[0]+ko_[1]*j: dma(a,1,sKX2 if f0>=4 else sKX,"kx",f0%4+j)
            if w<3 and n==ko_[0]+ko_[1]*(nk-1)+1: e(f"s_mov_b32 m0, {4096*w}")
        if n==OPT["b4p"] and OPT["b4"]: e("s_barrier")
        if w==0 and n==OPT["rl"]: red_loads()
        if n in(13,): stamp(a,tim,f"o{n}")
        if n>=2: stamp(a,tim,f"_o{n}")
        if OPT["f1"] and w==0 and n==OPT["q1"]:
            e(f"v_bfe_u32 v{SL2}, {vL16}, 2, 5"); e(f"s_add_u32 {sT1}, {sPAT}, 0x01010101"); probe1(SL2,SL2)
        if n==19 and w<3:
            e(f"v_and_b32 v16, 0xff, {vL16}")
            e(f"ds_read_b128 v[12:15], v16 offset:{L_SEL}","sel")
        emit(post[n])
    emit(post[20])
    if w==0 and OPT["rl"]==20.5: red_loads()
    stamp(a,tim,"out")
    def slots():
        e(f"s_add_u32 {sMR}, {sMW}, {4096*w}")
        if w<3 and OPT["probe"]=="c": e(f"s_add_u32 {sMF}, {sMW}, {10240+256*w}")
        if w<3 and OPT["probe"]=="b": e(f"s_add_u32 {sPAT}, {sPAT}, 0x01010101")
        for r in (sMW,sMZ):
            e(f"s_add_u32 {r}, {r}, 16384"); e(f"s_and_b32 {r}, {r}, 0xffff"); e(f"s_or_b32 {r}, {r}, {M_OFF}")
        e(f"s_xor_b32 {sTAG}, {sTAG}, 1"); e(f"s_not_b32 {sTAGM}, {sTAGM}")
    if w<3 and OPT["f1"]:
        if w==2: e(f"s_cmp_ge_u32 {sUNIT}, 80"); e(f"s_cbranch_scc1 {L('nored0')}")
        e(f"v_bfe_u32 v23, {vL16}, 2, 5")
        if w==0:
            a.wait(vm="q1"); e(f"v_cmp_ne_u32 vcc, {sT1}, v{SL2}")
            e(f"v_mov_b32 v20, {sSTEP}"); e(f"v_lshlrev_b32 v21, 4, {vL16}"); e("v_mov_b32 v22, -1")
            e(f"s_cbranch_vccz {L('f1ok')}")
        else:
            e(f"s_add_u32 {sT1}, {sPAT}, 0x01010101")
            e(f"v_mov_b32 v20, {sSTEP}"); e(f"v_lshlrev_b32 v21, 4, {vL16}"); e("v_mov_b32 v22, -1")
            delay(a,OPT['d1'] if w==1 else OPT['d1b'])
        probe1(T0,23); delay(a,OPT["d4"]); probe1(T0,23)
        a.label(L("f1"))
        for u in range(2):
            e("s_waitcnt vmcnt(1)"); e(f"v_cmp_ne_u32 vcc, {sT1}, v{T0}"); probe1(T0,23)
            if OPT["nosync"]: e(f"s_branch {L('f1ok')}")
            else: e(f"s_cbranch_vccz {L('f1ok')}")
        spin(); e(f"s_branch {L('f1')}")
        a.label(L("f1ok")); a.vm=[]
        red_loads()
        zero_acc()
        a.wait(lg="all")
    if w<3 and not OPT["f1"] and OPT["nat"]:
        e(f"v_mov_b32 v20, {sSTEP}"); e(f"v_lshlrev_b32 v21, 4, {vL16}"); e("v_mov_b32 v22, -1")
        if w<2: zero_acc()
        if w==0: paddr(23)
        if w==0 and 0 in Q_SLOT: lload_tile(a,QSEQ[0],SL1,None)
        a.wait(lg="all")
        if OPT["nat"][w]: a.wait(vm=OPT["nat"][w])
        if w==2:
            zero_acc()
            e(f"s_cmp_ge_u32 {sUNIT}, 80"); e(f"s_cbranch_scc1 {L('nored')}")
        if not (w==0 and OPT["rl"]<=20.5 and OPT["rl"]!=20): red_loads()
    elif w<3 and not OPT["f1"]:
        a.wait(lg="all")
        if w==0 and OPT["rl"]>19: delay(a,OPT['d0']); red_loads()
        e(f"v_mov_b32 v20, {sSTEP}"); e(f"v_lshlrev_b32 v21, 4, {vL16}"); e("v_mov_b32 v22, -1")
        zero_acc()
        if w==1: delay(a,OPT['d1']); red_loads()
        if w==2:
            delay(a,OPT['d1b'])
            e(f"s_cmp_ge_u32 {sUNIT}, 80"); e(f"s_cbranch_scc1 {L('nored')}")
            red_loads()
    if w<3:
        stamp(a,tim,"rlis")
        a.label(L("red"))
        for m in range(4):
            a.wait(vm=f"r{m}")
            if m==3 and not OPT["rtail"]:
                e(f"v_bitop3_b32 v{T1}, v{RL[2]}, v{RL[3]}, {sTAGM} bitop3:0x7e")
                e(f"v_bitop3_b32 v{T0}, v{T0}, v{T1}, 1 bitop3:0xa8")
                e(f"v_cmp_ne_u32 vcc, 0, v{T0}")
            mf(16,12,RL[m],m==0)
            if m==1: e(f"v_bitop3_b32 v{T0}, v{RL[0]}, v{RL[1]}, {sTAGM} bitop3:0x7e")
            if m==3 and OPT["rtail"]:
                e(f"v_bitop3_b32 v{T1}, v{RL[2]}, v{RL[3]}, {sTAGM} bitop3:0x7e")
                e(f"v_bitop3_b32 v{T0}, v{T0}, v{T1}, 1 bitop3:0xa8")
                e(f"v_cmp_ne_u32 vcc, 0, v{T0}")
        e(f"s_cmp_eq_u32 {sSTEP}, {NSEG-1}")
        if not OPT["rtail"]: chk("redo")
        for i in range(4): e(f"v_add_f32_dpp v{16+i}, v{16+i}, v{16+i} row_ror:8 row_mask:0xf bank_mask:0xf")
        e(f"v_cvt_pk_bf16_f32 v{T0}, v16, v17"); e(f"v_cvt_pk_bf16_f32 v{T1}, v18, v19")
        e(f"v_min_u32 v{T0}, {sFE}, v{T0}")
        if OPT["rtail"]: chk("redo")
        e(f"s_cbranch_scc1 {L('last')}")
        e(f"buffer_store_dwordx2 {vr(T0,2)}, {vRS}, {S_WS}, {sMW} offen {st}","rs")
        e(f"buffer_store_byte v20, v21, {S_T}, {sUNIT} offen {st}","fl")
        e(f"buffer_store_dword v22, {vRS}, {S_WS}, {sMZ} offen {st}","mz")
        stamp(a,tim,"red")
        if w==2: a.label(L("nored2"))
        if w==0 and OPT["nat"]:
            if 1 in Q_SLOT: lload_tile(a,QSEQ[1],SL2,None)
        else: prestage()
        slots()
    if w==0 or (w<3 and OPT["m1pre"]):
        if not (w==0 and OPT["nat"]): paddr(23)
        if w==0: delay(a,OPT['d2']); stamp(a,tim,"mis")
        NP=OPT["np"] if w==0 else 1
        PD=T0
        if w==0 and OPT["spec"]:
            PD=T1
            probe(T0,23); dma(a,nd,sMR,None)
            for i in range(NP): delay(a,OPT["d4"]); probe(PD,23)
            e(f"s_waitcnt vmcnt({nd+NP})"); pcmp(T0)
            e(f"s_cbranch_vccz {L('m0hit')}")
        else:
            for i in range(NP): probe(PD,23); delay(a,OPT["d4"]) if i<NP-1 else None
        a.label(L("m0"))
        for u in range(OPT["unr"] if w==0 else 1):
            e(f"s_waitcnt vmcnt({NP-1})"); pcmp(PD)
            if w==0: probe(PD,23)
            if tim in(1,2): e("s_add_u32 s86, s86, 1")
            if OPT["nosync"] or OPT["blind"]: e(f"s_branch {L('m0ok')}")
            else: e(f"s_cbranch_vccz {L('m0ok')}")
        if w: probe(PD,23)
        spin(); e(f"s_branch {L('m0')}")
        a.label(L("m0ok"))
        if w==0: stamp(a,tim,"det")
        a.vm=[]
        dma(a,nd,sMR,"dma")
        if w==0 and OPT["spec"]: a.label(L("m0hit"))
        if w==0 and OPT["b0"]: e("s_barrier")
        if w==0: a.vm=[]
        if w==0 and OPT["b0w0"]: b0loads()
        if w==0 and not OPT["rot"]: e(f"s_waitcnt vmcnt({len(a.vm)})")
    if w<3: a.wait(lg="all")
    if w==3:
        delay(a,OPT['d3'])
        prestage()
        if OPT["pub"] and OPT["pubpos"]!="lds":
            e(f"s_add_u32 {sT0}, {sMR}, {sPC}"); e(f"s_sub_u32 {sT0}, {sT0}, {4096*3}")
            e(f"s_add_u32 s10, {sT0}, {OPT['piece']}"); e(f"s_cmp_lt_u32 {sPC}, 10240"); e("s_cselect_b32 s10, s10, 0")
            if "L" not in OPT["ab"]: e(f"buffer_load_dwordx2 v[4:5], {vL8}, {S_T}, {sT0} offen sc1","pl")
            e(f"s_add_u32 {sMP}, {sMP}, {OPT['mpstride']}"); e(f"s_add_u32 s10, {sMP}, {OPT['piece']}"); e(f"s_cmp_lt_u32 {sPC}, 10240"); e("s_cselect_b32 s10, s10, 0")
            if OPT["pubpos"]=="hop":
                a.wait(vm="pl"); e(f"buffer_store_dwordx2 v[4:5], {vL8}, {S_T}, {sMP} offen {OPT['pubfl']}","pub")
        e(f"s_cmp_eq_u32 {sSTEP}, {NSEG-1}"); e(f"s_cbranch_scc1 {L('last')}")
        if OPT["kvchk"]:
            e(f"s_cmp_eq_u32 {sALL}, 1"); e(f"s_cbranch_scc1 {L('kvok')}")
            e(f"s_lshl_b32 {sT0}, {sSTEP}, 7"); e(f"s_add_u32 {sT0}, {sT0}, {KVCNT+256}"); e(f"s_min_u32 {sT0}, {sT0}, {KVCNT+63*128}")
            e(f"s_load_dword s28, s[4:5], {sT0} glc"); e(f"s_load_dword s29, s[4:5], {KVCNT+63*128} glc")
            e("s_waitcnt lgkmcnt(0)")
            e("s_cmp_ge_u32 s29, 32"); e(f"s_cselect_b32 {sALL}, 1, 0")
            e("s_cmp_ge_u32 s28, 32"); e(f"s_cbranch_scc0 {L('kvw')}")
            a.label(L("kvok"))
        slots(); zero_acc()
        if OPT["pub"] and OPT["pubpos"]=="hop": a.wait(lg="all")
        else: a.wait(vm="all",lg="all")
    if OPT["b0"] and w:
        e("s_barrier")
        if w==1 or (w==2 and not OPT["w2late"]): mfetch()
        b0loads()
        if OPT["kxb0"] and w==3:
            e(f"s_mov_b32 m0, {L_KX}"); dma(a,4,sKX,"kx"); e(f"s_mov_b32 m0, {L_KX+4096}"); dma(a,4,sKX2,"kx")
    stamp(a,tim,"pre")
    assert OPT["ab"] or (a.vm[len(a.vm)-len(top_vm):]==top_vm and (top_vm or not a.vm)),(w,a.vm)
    if tim in(4,5) and w==(3 if tim==4 else 0):
        e("s_memtime s[70:71]" if tim==4 else "s_memrealtime s[70:71]"); e("s_waitcnt lgkmcnt(0)")
        e(f"v_writelane_b32 v4, s70, 63") if False else None
        e(f"s_lshl_b32 s72, {sH}, 8"); e(f"s_lshl_b32 s73, {sSTEP}, 2"); e("s_add_u32 s72, s72, s73"); e(f"s_add_u32 s72, s72, {DBG_OFF+0x40000}")
        e(f"v_mov_b32 v{T0}, s70"); e(f"v_lshlrev_b32 v{T1}, 24, {vL16}")
        e(f"buffer_store_dword v{T0}, v{T1}, {S_WS}, s72 offen")
    if tim==3:
        e(f"s_cmp_eq_u32 {sSTEP}, {OPT['at']}"); e(f"s_cbranch_scc0 {L('pretop') if OPT['rot'] and w==0 else 'HZ_'+L('top')}")
        n=len(STAMPS); e(f"s_memrealtime s[{54+2*n}:{55+2*n}]"); e(f"s_memtime s[{56+2*n}:{57+2*n}]")
        e("s_waitcnt lgkmcnt(0)")
        e(f"s_lshl_b32 {sT0}, {sH}, 2"); e(f"s_add_u32 {sT0}, {sT0}, {w}"); e(f"s_lshl_b32 {sT0}, {sT0}, 7"); e(f"s_add_u32 {sT0}, {sT0}, {DBG_OFF+65536}")
        e(f"v_mov_b32 v{T1}, 0"); e("s_mov_b64 exec, 1")
        for i in range(len(STAMPS)+2):
            e(f"v_mov_b32 v{T0}, s{54+2*i}"); e(f"buffer_store_dword v{T0}, v{T1}, {S_WS}, {sT0} offen offset:{4*i}")
        e("s_waitcnt vmcnt(0)"); e("s_mov_b64 exec, -1")
    e(f"s_branch {L('pretop')}" if OPT["rot"] and w==0 else f"s_branch HZ_{L('top')}")
    if w<3:
        a.label(L("redo"))
        if tim in(1,2): e("s_add_u32 s85, s85, 1")
        e("s_mov_b64 exec, vcc")
        a.label(L("redo2"))
        red_loads(); spin()
        e("s_waitcnt vmcnt(0)")
        e(f"v_bitop3_b32 v{T0}, v{RL[0]}, v{RL[1]}, {sTAGM} bitop3:0x7e"); e(f"v_bitop3_b32 v{T1}, v{RL[2]}, v{RL[3]}, {sTAGM} bitop3:0x7e")
        e(f"v_bitop3_b32 v{T0}, v{T0}, v{T1}, 1 bitop3:0xa8"); e(f"v_cmp_ne_u32 vcc, 0, v{T0}")
        e(f"s_cbranch_vccnz {L('redo2')}")
        e("s_mov_b64 exec, -1"); e("s_nop 1")
        e(f"s_branch {L('red')}")
        a.label(L("last"))
        e(f"s_mov_b32 {sT0}, {MEMP_OFF+63*10240}")
        e(f"buffer_store_dwordx2 {vr(T0,2)}, {vRS}, {S_WS}, {sT0} offen sc1")
        e(f"s_branch {L('done')}")
    if OPT["nanchk"]:
        a.label(L("scan"))
        e(f"v_mov_b32 v{T0}, 0")
        for k in range(10):
            e(f"ds_read_b32 v{T1}, {vL16} offset:{L_MEM+1024*k}"); e("s_waitcnt lgkmcnt(0)"); e(f"v_max_u32 v{T0}, v{T0}, v{T1}")
        e(f"v_cmp_eq_u32 vcc, -1, v{T0}"); e(f"s_cbranch_vccnz {L('rec')}"); e(f"s_branch {L('scanned')}")
    if w==2:
        if OPT["f1"]: a.label(L("nored0")); zero_acc(); e("s_waitcnt lgkmcnt(0)")
        a.label(L("nored"))
        e("s_waitcnt vmcnt(0)")
        e(f"s_cmp_eq_u32 {sSTEP}, {NSEG-1}"); e(f"s_cbranch_scc1 {L('done')}")
        e(f"s_branch {L('nored2')}")
    if w==3 and OPT["kvchk"]:
        a.label(L("kvw"))
        if tim in(1,2): e("s_add_u32 s85, s85, 1")
        e(f"v_mov_b32 v{T0}, 0")
        a.label(L("kvw2"))
        e(f"buffer_load_dword v{T1}, v{T0}, {S_WS}, {sT0} offen sc1"); spin(); e("s_waitcnt vmcnt(0)")
        e(f"v_cmp_gt_u32 vcc, 32, v{T1}"); e(f"s_cbranch_vccnz {L('kvw2')}")
        e(f"s_branch {L('kvok')}")
    if w==3 and OPT["pub"] and OPT["lastlds"]:
        a.label(L("pub62"))
        e(f"v_add_u32 v{T1}, {sPC}, {vL8}"); e(f"ds_read_b64 v[4:5], v{T1} offset:{L_MEM}")
        e(f"s_add_u32 {sT0}, {sMP}, 10240"); e(f"s_add_u32 s10, {sT0}, {OPT['piece']}"); e("s_waitcnt lgkmcnt(0)")
        e(f"buffer_store_dwordx2 v[4:5], {vL8}, {S_T}, {sT0} offen sc1"); e("s_mov_b32 s10, 0")
        e(f"s_branch {L('pub62b')}")
    if w==3:
        a.label(L("last"))
        e("s_waitcnt vmcnt(0)")
        if OPT["pub"] and OPT["pubpos"] not in("hop","lds") and not OPT["lastlds"]: e(f"buffer_store_dwordx2 v[4:5], {vL8}, {S_T}, {sMP} offen sc1")
        e(f"s_branch {L('done')}")
    if w in(1,2) and not OPT["m1pre"]:
        a.label(L("mr"))
        spin("s86")
        mfetch(); e(f"s_waitcnt vmcnt({nd})")
        pcmp(T1); e(f"s_cbranch_vccnz {L('mr')}")
        e("s_waitcnt vmcnt(0)")
        e(f"s_branch {L('mok')}")
    a.label(L("done"))
    a.vm=[]; a.lg=[]
    e("s_waitcnt vmcnt(0) lgkmcnt(0)")
    if w==3 and OPT["wb"]:
        e(f"s_cmp_eq_u32 {sH}, 0"); e(f"s_cbranch_scc0 {L('nowb')}"); e("buffer_wbl2 sc1"); e("s_waitcnt vmcnt(0)"); a.label(L("nowb"))
    if tim in(1,2):
        e("s_memtime s[70:71]"); e("s_waitcnt lgkmcnt(0)"); e("s_sub_u32 s83, s70, s74")
        for i in range(11): e(f"v_mov_b32 v{12+i}, s{76+i}")
        e(f"s_lshl_b32 {sT0}, {sH}, 2"); e(f"s_add_u32 {sT0}, {sT0}, {w}"); e(f"s_lshl_b32 {sT0}, {sT0}, 6"); e(f"s_add_u32 {sT0}, {sT0}, {DBG_OFF}")
        e("v_mov_b32 v10, 0"); e("s_mov_b64 exec, 1")
        e("s_memrealtime s[68:69]"); e("s_waitcnt lgkmcnt(0)")
        for i,r in enumerate((90,92,94,66,68)): e(f"v_mov_b32 v{23+i}, s{r}")
        for i in range(4): e(f"buffer_store_dwordx4 {vr(12+4*i,4)}, v10, {S_WS}, {sT0} offen offset:{16*i}")
        if OPT["dbgout"] and w==0:
            for i in range(5):
                e(f"v_mov_b32 v10, {16+4*i}"); e(f"global_atomic_umax v10, v{23+i}, {sDBG}")
            e("v_mov_b32 v10, 36"); e(f"global_atomic_umax v10, v19, {sDBG}")
        e("s_waitcnt vmcnt(0)")
    e("s_endpgm")
```

```python
from asmlib import *
from layout import *
import chain as C
import struct, math
S_WS=C.S_WS; sDBG=C.sDBG
sW="s13"; sROW="s64"; sRANK="s65"
f32=lambda x: "0x%08x"%struct.unpack("<I",struct.pack("<f",x))[0]
OPT={"tim":0,"hold":0,"split":0,"holdn":32,"asleep":1,"bsleep":1}

def rt(a,i):
    if OPT["tim"]: a.e(f"s_memrealtime s[{70+2*i}:{71+2*i}]")

def spin_wait(a,name,load,cmp_fail,sCNT="s32",sleep=1):
    e=a.e
    a.label(name)
    load()
    e(f"s_add_u32 {sCNT}, {sCNT}, 1"); e(f"s_cmp_gt_u32 {sCNT}, 0x40000"); e("s_cbranch_scc1 L_abort")
    e("s_waitcnt vmcnt(0)"); a.vm=[]
    cmp_fail()
    e(f"s_cbranch_vccz {name}_ok")
    if sleep: e(f"s_sleep {sleep}")
    e(f"s_branch {name}")
    a.label(name+"_ok")

XA=0
ACC=32; BI=64; GT=80
vLN="v232"; vL16="v233"; vDA="v234"; vDB="v235"; vVO="v236"; vRD="v237"; TMP=240
S_W="s[8:11]"; S_X="s[20:23]"
sTILE="s24"; sSEG="s26"; sSRC="s27"; sOUT="s28"; sOUT2="s29"; sSTR="s30"; sOFF="s31"; sCNT="s32"; sWI="s33"; sA="s34"; sB="s35"; sKIND="s36"; sMIX="s37"
sSLOT="s16"; sSIG="s17"; sOSTR="s18"; sIT="s19"; sFILL="s38"; sG0="s39"; sOUT3="s14"; sOUT4="s15"; sHS="s25"
def wreg(j,k,t):
    i=160*j+8*k+4*t
    return vr(i,4,'a') if i<256 else vr(i-256+160,4)
def wreg2(j,k,t,x):
    i=160*j+8*k+4*t+2*x
    return vr(i,2,'a') if i<256 else vr(i-256+160,2)

def layernorm(a):
    e=a.e; one=TMP; S=[TMP+4,TMP+8]
    for k in range(20):
        e(f"v_mfma_f32_16x16x32_bf16 {vr(S[0],4)}, {vr(one,4)}, {vr(4*k,4)}, {'0' if k==0 else vr(S[0],4)}")
        e(f"v_mfma_f32_16x16x32_bf16 {vr(S[1],4)}, {vr(4*k,4)}, {vr(4*k,4)}, {'0' if k==0 else vr(S[1],4)}")
    q=S[1]
    for i in range(1,4):
        e(f"v_cmp_eq_u32 vcc, {i}, v{TMP+12}"); e(f"v_cndmask_b32 v{q}, v{q}, v{q+i}, vcc")
    e(f"ds_bpermute_b32 v{q}, v{TMP+13}, v{q}","bp")
    m=S[0]
    e(f"v_mul_f32 v{m}, {f32(1/640)}, v{m}")
    a.wait(lg="bp")
    e(f"v_mul_f32 v{q}, {f32(1/640)}, v{q}"); e(f"v_fma_f32 v{q}, -v{m}, v{m}, v{q}"); e(f"v_max_f32 v{q}, 0, v{q}")
    rb=lambda r: (e(f"v_cvt_pk_bf16_f32 v{r}, v{r}, v{r}"), e(f"v_and_b32 v{r}, {sMIX}, v{r}"))
    rb(m); rb(q); e(f"v_add_f32 v{q}, {f32(1e-5)}, v{q}"); rb(q); e(f"v_sqrt_f32 v{q}, v{q}"); rb(q)
    e(f"v_rcp_f32 v{q}, v{q}"); e(f"v_mul_f32 v{m}, v{m}, v{q}")
    for k in range(20):
        if k and k%4==0: e(f"s_add_u32 {sOUT}, {sOUT}, 4096")
        for r in range(4*k,4*k+4):
            t=TMP+14
            e(f"v_lshlrev_b32 v{t}, 16, v{r}"); e(f"v_and_b32 v{t+1}, {sMIX}, v{r}")
            e(f"v_pk_fma_f32 {vr(t,2)}, {vr(t,2)}, {vr(q,2)}, {vr(m,2)} op_sel_hi:[1,0,0] neg_lo:[0,0,1] neg_hi:[0,0,1]")
            e(f"v_cvt_pk_bf16_f32 v{r}, v{t}, v{t+1}")
        e(f"buffer_store_dwordx4 {vr(4*k,4)}, {vL16}, {S_WS}, {sOUT} offen offset:{1024*(k%4)} sc1")

def add_one(a,off):
    e=a.e
    e("s_mov_b64 exec, 1")
    e(f"v_mov_b32 v{TMP}, 0"); e(f"v_mov_b32 v{TMP+1}, 1")
    e(f"buffer_atomic_add v{TMP+1}, v{TMP}, {S_WS}, {off} offen")
    e("s_mov_b64 exec, -1"); e("s_nop 3")

def seg_dma(a):
    out=[]
    for i in range(10):
        g=[]
        if i%4==0: g.append(f"s_add_u32 m0, {sFILL}, {4096*(i//4)}")
        if i in(4,8): g.append(f"s_add_u32 {sSRC}, {sSRC}, 4096")
        g.append((f"buffer_load_dwordx4 {vL16}, {S_X}, {sSRC} offen offset:{1024*(i%4)} sc1 lds","d"))
        out.append(g)
    out[-1]+= [f"s_add_u32 {sSRC}, {sSRC}, {40960-8192}",f"s_add_u32 {sFILL}, {sFILL}, 40960",f"s_cmp_ge_u32 {sFILL}, 163840",
               f"s_cselect_b32 {sA}, 163840, 0",f"s_sub_u32 {sFILL}, {sFILL}, {sA}"]
    return out
def emit(a,g):
    for x in g:
        if isinstance(x,tuple): a.e(x[0],x[1])
        else: a.e(x)

def seg_loop(a,kind):
    e=a.e; L=lambda s: f"W{kind}_{s}"
    a.label(L("top"))
    NJ=1 if kind=="H" else 2
    e(f"s_waitcnt vmcnt({10+2*NJ})"); e("s_barrier")
    a.vm=[]; a.lg=[]
    rd=lambda f: e(f"ds_read_b128 {vr(4*(f%8),4)}, {vRD} offset:{1024*f}",f"f{f}")
    LA=7 if NJ==1 else 4
    for f in range(LA): rd(f)
    e(f"s_cmp_lt_u32 {sIT}, 2"); e(f"s_cselect_b32 {sA}, 1, {sW}"); e(f"s_cmp_eq_u32 {sA}, 0"); e(f"s_cbranch_scc0 {L('nosig')}")
    add_one(a,sSIG)
    a.label(L("nosig")); a.vm=[]
    fill=seg_dma(a)
    ac=lambda j,tt,t: ACC+16*j+8*tt+4*t
    for f in range(40):
        tt,k=f//20,f%20
        a.wait(lg=f"f{f}")
        for j in range(NJ):
            for t in range(2):
                A,B=wreg(j,k,t),vr(4*(f%8),4)
                if kind=="V": A,B=B,A
                d=vr(ac(j,tt,t),4)
                e(f"v_mfma_f32_16x16x32_bf16 {d}, {A}, {B}, {'0' if k==0 else d}")
                if j==0 and t==0 and f+LA<40: rd(f+LA)
        if f%3==0 and fill: emit(a,fill.pop(0))
    e(f"s_add_u32 {sSLOT}, {sSLOT}, 40960"); e(f"s_cmp_ge_u32 {sSLOT}, 163840"); e(f"s_cselect_b32 {sSLOT}, 0, {sSLOT}")
    e(f"v_add_u32 {vRD}, {sSLOT}, {vL16}")
    so=[[sOUT,sOUT2],[sOUT3,sOUT4]]
    for j in range(NJ):
      if kind=="K":
        for tt in range(2):
            t0,t1=ac(j,tt,0),ac(j,tt,1); o=TMP+4+4*tt
            for i,(x,y) in enumerate(((t0,t0+2),(t1,t1+2),(t0+1,t0+3),(t1+1,t1+3))): e(f"v_cvt_pk_bf16_f32 v{o+i}, v{x}, v{y}")
            e(f"buffer_store_dwordx4 {vr(o,4)}, {vL16}, {S_WS}, {so[j][tt]} offen sc1")
      elif kind=="V":
        for t in range(2):
            t0,t1=ac(j,0,t),ac(j,1,t); o=TMP+4+4*t
            for i,(x,y) in enumerate(((t0,t0+1),(t0+2,t0+3),(t1,t1+1),(t1+2,t1+3))): e(f"v_cvt_pk_bf16_f32 v{o+i}, v{x}, v{y}")
            e(f"buffer_store_dwordx4 {vr(o,4)}, {vVO}, {S_WS}, {so[j][0]} offen offset:{128*t} sc1")
      else:
        for tt in range(2):
            for t in range(2):
                for i in range(4):
                    z=ac(j,tt,t)+i; u=GT+4+i
                    e(f"v_add_f32 v{z}, v{z}, v{BI+8*j+4*t+i}")
                    e(f"v_mul_f32 v{u}, v{z}, v{z}"); e(f"v_fma_f32 v{u}, v{u}, {sG0}, v{GT}"); e(f"v_mul_f32 v{u}, v{u}, v{z}")
                for i in range(4): e(f"v_exp_f32 v{GT+4+i}, v{GT+4+i}")
                for i in range(4): e(f"v_add_f32 v{GT+4+i}, 1.0, v{GT+4+i}")
                for i in range(4): e(f"v_rcp_f32 v{GT+4+i}, v{GT+4+i}")
                for i in range(4): e(f"v_mul_f32 v{ac(j,tt,t)+i}, v{ac(j,tt,t)+i}, v{GT+4+i}")
            t0,t1=ac(j,tt,0),ac(j,tt,1); o=TMP+4+4*tt
            for i,(x,y) in enumerate(((t0,t0+1),(t0+2,t0+3),(t1,t1+1),(t1+2,t1+3))): e(f"v_cvt_pk_bf16_f32 v{o+i}, v{x}, v{y}")
            e(f"buffer_store_dwordx4 {vr(o,4)}, {vL16}, {S_WS}, {so[j][tt]} offen sc1")
    for r in (sOUT,sOUT2,sOUT3,sOUT4): e(f"s_add_u32 {r}, {r}, {sOSTR}")
    e(f"s_add_u32 {sSIG}, {sSIG}, 128")
    if OPT["tim"]:
        e(f"s_cmp_eq_u32 {sIT}, 3"); e(f"s_cbranch_scc0 {L('nt')}"); rt(a,2); e("s_waitcnt lgkmcnt(0)"); a.label(L("nt"))
    e(f"s_add_u32 {sIT}, {sIT}, 1"); e(f"s_cmp_lt_u32 {sIT}, 64"); e(f"s_cbranch_scc1 {L('top')}")
    e("s_branch W_tail")

def zero_wait(a,name):
    e=a.e
    spin_wait(a,name,lambda:(e(f"v_mov_b32 v{TMP+4}, 4"),e(f"global_load_dword v{TMP+5}, v{TMP+4}, {sDBG} sc1")),lambda:e(f"v_cmp_gt_u32 vcc, 32, v{TMP+5}"))

def common(a):
    e=a.e
    e(f"s_load_dwordx2 s[20:21], s[0:1], {A_X}")
    e(f"s_load_dwordx2 s[40:41], s[0:1], {A_WQ}"); e(f"s_load_dwordx2 s[42:43], s[0:1], {A_WK}"); e(f"s_load_dwordx2 s[44:45], s[0:1], {A_WV}")
    e(f"s_load_dwordx2 s[54:55], s[0:1], {A_WO}")
    e(f"s_load_dwordx2 s[46:47], s[0:1], {B_W1}"); e(f"s_load_dwordx2 s[48:49], s[0:1], {B_B1}")
    e(f"v_mov_b32 {vLN}, v0"); e(f"v_lshlrev_b32 {vL16}, 4, v0")
    e(f"s_sub_u32 {sWI}, {sROW}, 1"); e(f"s_lshl_b32 {sWI}, {sWI}, 5"); e(f"s_add_u32 {sWI}, {sWI}, {sRANK}")
    e(f"s_mov_b32 {sCNT}, 0"); e(f"s_mov_b32 {sMIX}, 0xffff0000")
    e(f"s_mov_b32 s22, {S*D*2}"); e("s_mov_b32 s23, 0x20000"); e("s_mov_b32 s11, 0x20000")
    e("s_waitcnt lgkmcnt(0)")

def norm_rows(a):
    e=a.e; t=TMP
    e(f"s_sub_u32 {sHS}, {sWI}, 64"); e(f"s_cmp_lt_u32 {sHS}, 128"); e(f"s_cselect_b32 {sA}, {sW}, 1")
    e(f"s_cmp_eq_u32 {sA}, 0"); e(f"s_cselect_b32 {sKIND}, 1, 0"); e("s_cbranch_scc0 W_nox")
    e(f"v_and_b32 v{t}, 15, {vLN}"); e(f"v_mul_u32_u24 v{t}, 1280, v{t}"); e(f"v_lshrrev_b32 v{t+1}, 4, {vLN}"); e(f"v_lshl_add_u32 v{t}, v{t+1}, 4, v{t}")
    e(f"s_mul_i32 {sA}, {sHS}, {16*1280}")
    for k in range(20): e(f"buffer_load_dwordx4 {vr(4*k,4)}, v{t}, {S_X}, {sA} offen offset:{64*k}")
    a.label("W_nox")
    if C.OPT["sweep"]:
        e("s_barrier")
        e(f"s_lshl_b32 {sA}, {sHS}, 2"); e(f"s_add_u32 {sA}, {sA}, {sW}"); e(f"s_lshl_b32 {sA}, {sA}, 13")
        e(f"v_lshlrev_b32 v239, 3, {vL16}"); e(f"s_mov_b32 s10, {640*8192}")
        for r in (40,42,44,54):
            e(f"s_mov_b32 s8, s{r}"); e(f"s_mov_b32 s9, s{r+1}")
            e(f"buffer_load_dword v238, v239, s[8:11], {sA} offen {C.OPT['swpfl']}")
    e(f"s_cmp_eq_u32 {sKIND}, 1"); e("s_cbranch_scc0 W_noln")
    e(f"s_mul_i32 {sA}, {sHS}, 5120"); e(f"s_add_u32 {sA}, {sA}, {MEMP_OFF}"); e(f"s_add_u32 {sOUT}, {sA}, 4096")
    e(f"v_mov_b64 {vr(TMP+4,2)}, -1"); e(f"v_mov_b64 {vr(TMP+6,2)}, -1")
    for i in range(5): e(f"buffer_store_dwordx4 {vr(TMP+4,4)}, {vL16}, {S_WS}, {sA if i<4 else sOUT} offen offset:{1024*(i%4)} sc1")
    for i in range(4): e(f"v_mov_b32 v{TMP+i}, 0x3f803f80")
    e(f"v_and_b32 v{TMP+12}, 15, {vLN}"); e(f"v_lshrrev_b32 v{TMP+13}, 2, v{TMP+12}"); e(f"v_lshl_add_u32 v{TMP+13}, v{TMP+13}, 4, v{TMP+12}")
    e(f"v_lshlrev_b32 v{TMP+13}, 2, v{TMP+13}"); e(f"v_and_b32 v{TMP+12}, 3, v{TMP+12}")
    e(f"s_mul_i32 {sOUT}, {sHS}, 20480"); e(f"s_add_u32 {sOUT2}, {sOUT}, {YN_OFF}"); e(f"s_add_u32 {sOUT}, {sOUT}, {XN_OFF}")
    e(f"s_waitcnt vmcnt({9 if C.OPT['sweep'] else 5})")
    rt(a,0)
    e(f"s_mov_b32 {sIT}, 0")
    a.label("W_ln")
    layernorm(a)
    e(f"s_mov_b32 {sOUT}, {sOUT2}"); e(f"s_add_u32 {sIT}, {sIT}, 1"); e(f"s_cmp_lt_u32 {sIT}, 2"); e("s_cbranch_scc1 W_ln")
    zero_wait(a,"W_zero")
    e(f"s_lshr_b32 {sA}, {sHS}, 1"); e(f"s_lshl_b32 {sA}, {sA}, 7"); e(f"s_add_u32 {sA}, {sA}, {LNCNT}")
    add_one(a,sA)
    a.label("W_noln"); a.vm=[]; a.lg=[]

def project(a):
    e=a.e; t=TMP
    e(f"s_lshl_b32 {sTILE}, {sWI}, 1"); e(f"s_add_u32 {sA}, {sWI}, 48"); e(f"s_min_u32 {sTILE}, {sTILE}, {sA}"); e(f"s_lshr_b32 {sKIND}, {sTILE}, 5")
    e(f"s_cmp_eq_u32 {sKIND}, 0"); e("s_cselect_b32 s8, s42, s44"); e("s_cselect_b32 s9, s43, s45")
    e(f"s_cmp_eq_u32 {sKIND}, 2"); e("s_cselect_b32 s8, s40, s8"); e("s_cselect_b32 s9, s41, s9")
    e(f"s_cmp_eq_u32 {sKIND}, 3"); e("s_cselect_b32 s8, s46, s8"); e("s_cselect_b32 s9, s47, s9")
    e(f"s_mov_b32 {sA}, 8192"); e(f"s_cselect_b32 {sSTR}, {F*2}, {sA}"); e(f"s_mul_i32 s10, {sSTR}, {D}")
    e(f"v_lshrrev_b32 v{t+2}, 4, {vLN}"); e(f"v_lshlrev_b32 v{t+3}, 1, v{t+2}"); e(f"v_and_b32 v{t+4}, 15, {vLN}"); e(f"v_xor_b32 v{t+3}, v{t+3}, v{t+4}")
    e(f"s_lshl_b32 {sA}, {sW}, 4"); e(f"v_add_u32 v{t+2}, {sA}, v{t+2}"); e(f"v_mul_lo_u32 v{t+2}, v{t+2}, {sSTR}")
    e(f"v_lshl_add_u32 {vDA}, v{t+3}, 4, v{t+2}"); e(f"v_xor_b32 v{t+3}, 8, v{t+3}"); e(f"v_lshl_add_u32 {vDB}, v{t+3}, 4, v{t+2}")
    e(f"s_lshl_b32 {sSTR}, {sSTR}, 2"); e(f"s_mul_i32 {sSRC}, {sSTR}, 13"); e(f"s_lshl_b32 {sB}, {sW}, 12")
    e(f"v_bfe_u32 v{t}, {vLN}, 2, 2"); e(f"v_bfe_u32 v{t+1}, {vLN}, 4, 1"); e(f"v_lshl_add_u32 v{t+1}, v{t+1}, 2, v{t}")
    e(f"v_lshrrev_b32 v{t+2}, 4, {vLN}"); e(f"v_lshl_add_u32 v{t+2}, v{t+2}, 3, v{t}"); e(f"v_lshlrev_b32 v{t+2}, 8, v{t+2}")
    e(f"v_and_b32 v{t+3}, 3, {vLN}"); e(f"v_lshl_add_u32 v{t+2}, v{t+3}, 3, v{t+2}")
    e(f"s_lshl_b32 {sA}, {sW}, 1")
    e(f"v_xor_b32 v{t+3}, {sA}, v{t+1}"); e(f"v_lshl_add_u32 v{t+8}, v{t+3}, 5, v{t+2}")
    e(f"v_xor_b32 v{t+3}, 1, v{t+3}"); e(f"v_lshl_add_u32 v{t+9}, v{t+3}, 5, v{t+2}")
    def stage(n):
        if n%10==0:
            e(f"s_and_b32 {sOFF}, {sTILE}, 31"); e(f"s_add_u32 {sOFF}, {sOFF}, {n//10}"); e(f"s_lshl_b32 {sOFF}, {sOFF}, 8")
        for i in range(4):
            e(f"s_add_u32 m0, {sB}, {(n%10)*16384+i*1024}")
            e(f"buffer_load_dwordx4 {vDA if i<2 else vDB}, {S_W}, {sOFF} offen lds",f"w{n}")
            e(f"s_add_u32 {sOFF}, {sOFF}, {sSTR if i<3 else sSRC}")
    for n in range(10): stage(n)
    for n in range(20):
        j,st=n//10,n%10
        a.wait(vm=f"w{n}"); e("s_barrier")
        if n==1: e(f"s_cmp_eq_u32 {sKIND}, 3"); e("s_cselect_b32 s10, 0, s10")
        if 1<=n<=10: stage(n+9)
        if st in(4,8): e(f"v_add_u32 v{t+8}, 0x10000, v{t+8}"); e(f"v_add_u32 v{t+9}, 0x10000, v{t+9}")
        if n==10: e(f"v_subrev_u32 v{t+8}, 0x20000, v{t+8}"); e(f"v_subrev_u32 v{t+9}, 0x20000, v{t+9}")
        for ks in range(2):
            for tl in range(2):
                for x in range(2): e(f"ds_read_b64_tr_b16 {wreg2(j,2*st+ks,tl,x)}, v{t+8+tl} offset:{(st%4)*16384+ks*8192+x*1024}")
        e("s_waitcnt lgkmcnt(0)"); a.lg=[]
    e(f"v_and_b32 v{t}, 1, {vLN}"); e(f"v_lshlrev_b32 {vVO}, 10, v{t}"); e(f"v_lshrrev_b32 v{t}, 4, {vLN}"); e(f"v_lshl_add_u32 {vVO}, v{t}, 8, {vVO}")
    e(f"v_bfe_u32 v{t}, {vLN}, 1, 3"); e(f"v_lshl_add_u32 {vVO}, v{t}, 4, {vVO}")
    e("s_mov_b32 s8, s48"); e("s_mov_b32 s9, s49"); e(f"s_cmp_eq_u32 {sKIND}, 3"); e(f"s_cselect_b32 s10, {F*2}, 0")
    e(f"v_lshrrev_b32 v{t}, 4, {vLN}"); e(f"v_lshlrev_b32 v{t}, 3, v{t}"); e(f"s_and_b32 {sA}, {sTILE}, 31"); e(f"s_lshl_b32 {sA}, {sA}, 8"); e(f"s_lshl_b32 {sB}, {sW}, 6"); e(f"s_add_u32 {sA}, {sA}, {sB}")
    for j in range(2):
        for tl in range(2): e(f"buffer_load_dwordx2 {vr(88+4*j+2*tl,2)}, v{t}, {S_W}, {sA} offen offset:{256*j+32*tl}")
    e(f"v_lshlrev_b32 v{t+6}, 3, {vL16}")
    zero_wait(a,"W_zero2")
    spin_wait(a,"W_lnw",lambda:e(f"buffer_load_dword v{t+7}, v{t+6}, {S_WS}, 0 offen sc1"),lambda:e(f"v_cmp_gt_u32 vcc, 2, v{t+7}"),sleep=4)
    for i in range(8):
        e(f"v_lshlrev_b32 v{BI+2*i}, 16, v{88+i}"); e(f"v_and_b32 v{BI+2*i+1}, {sMIX}, v{88+i}")
    k0=math.sqrt(2/math.pi); l2e=math.log2(math.e)
    e(f"s_mov_b32 {sG0}, {f32(-2*k0*0.044715*l2e)}"); e(f"v_mov_b32 v{GT}, {f32(-2*k0*l2e)}")
    e("s_barrier")
    rt(a,1)
    e(f"s_cmp_eq_u32 {sKIND}, 3"); e(f"s_mov_b32 {sA}, {XN_OFF}"); e(f"s_cselect_b32 {sA}, {YN_OFF}, {sA}")
    e(f"s_add_u32 s20, s4, {sA}"); e("s_addc_u32 s21, s5, 0"); e(f"s_mov_b32 s22, {64*40960}")
    e(f"s_mul_i32 {sFILL}, {sW}, 10240"); e(f"s_mov_b32 {sSRC}, {sFILL}")
    e(f"s_mov_b32 {sSLOT}, 0"); e(f"v_mov_b32 {vRD}, {vL16}"); e(f"s_mov_b32 {sIT}, 0")
    e(f"s_and_b32 {sA}, {sTILE}, 31"); e(f"s_cmp_eq_u32 {sKIND}, 3"); e("s_cbranch_scc1 W_setH")
    e(f"s_lshl_b32 {sOUT}, {sA}, 13")
    e(f"s_lshl_b32 {sA}, {sKIND}, 24"); e(f"s_add_u32 {sOUT}, {sOUT}, {sA}"); e(f"s_add_u32 {sOUT}, {sOUT}, {XK_OFF}")
    e(f"s_cmp_eq_u32 {sKIND}, 1"); e(f"s_cselect_b32 {sA}, 11, 10"); e(f"s_lshl_b32 {sA}, {sW}, {sA}"); e(f"s_add_u32 {sOUT}, {sOUT}, {sA}")
    e(f"s_add_u32 {sOUT2}, {sOUT}, 4096"); e(f"s_add_u32 {sOUT3}, {sOUT}, 8192"); e(f"s_add_u32 {sOUT4}, {sOUT}, 12288"); e(f"s_mov_b32 {sOSTR}, {32*8192}"); e("s_branch W_setD")
    a.label("W_setH")
    e(f"s_lshl_b32 {sA}, {sA}, 2"); e(f"s_add_u32 {sA}, {sA}, {sW}")
    e(f"s_lshl_b32 {sOUT}, {sA}, 10"); e(f"s_add_u32 {sOUT}, {sOUT}, {HH_OFF}"); e(f"s_cmp_lt_u32 {sA}, 54"); e(f"s_cselect_b32 {sOUT}, {sOUT}, 0x7f000000")
    e(f"s_add_u32 {sOUT2}, {sOUT}, {54*1024}"); e(f"s_mov_b32 {sOSTR}, {2*54*1024}")
    a.label("W_setD")
    e(f"s_cmp_lt_u32 {sKIND}, 2"); e(f"s_mov_b32 {sA}, {QHCNT-2*128}"); e(f"s_cselect_b32 {sSIG}, {KVCNT-2*128}, {sA}")
    for i in range(3):
        for g in seg_dma(a): emit(a,g)
    e(f"s_cmp_eq_u32 {sKIND}, 1"); e("s_cbranch_scc1 WV_top"); e(f"s_cmp_eq_u32 {sKIND}, 3"); e("s_cbranch_scc1 WH_top")
    seg_loop(a,"K"); seg_loop(a,"V"); seg_loop(a,"H")
    a.label("W_tail")
    e("s_waitcnt vmcnt(0)"); e("s_barrier")
    e(f"s_cmp_eq_u32 {sW}, 0"); e("s_cbranch_scc0 W_tail2")
    for i in range(2):
        add_one(a,sSIG); e(f"s_add_u32 {sSIG}, {sSIG}, 128")
    a.label("W_tail2")
    rt(a,3)
    a.vm=[]; a.lg=[]
    finish(a)

def load_pairs(a,groups,LB,nreg,lock=True):
    e=a.e; sT0="s34"
    def issue(i):
        setup,loads,_,_=groups[i]; lb=LB[i%len(LB)]
        for x in setup: e(x)
        for j,(vo,off) in enumerate(loads):
            e(f"s_mov_b32 {sT0}, {off}"); e(f"buffer_load_dword v{lb+j}, {vo}, s[8:11], {sT0} offen",f"w{i}")
    def process(i):
        _,loads,dlo,dhi=groups[i]; lb=LB[i%len(LB)]
        a.wait(vm=f"w{i}")
        if lock: e("s_barrier")
        for dst,sel in ((dlo,"s38"),(dhi,"s39")):
            for R,(k,r) in enumerate(dst):
                if k=="v": e(f"v_perm_b32 v{r}, v{lb+2*R+1}, v{lb+2*R}, {sel}")
                else:
                    e(f"v_perm_b32 v{4+(R&3)}, v{lb+2*R+1}, v{lb+2*R}, {sel}"); e(f"v_accvgpr_write_b32 a{r}, v{4+(R&3)}")
    e("s_mov_b32 s38, 0x05040100"); e("s_mov_b32 s39, 0x07060302")
    n=len(LB)-1
    for i in range(n): issue(i)
    for i in range(len(groups)):
        if i+n<len(groups): issue(i+n)
        process(i)

def stageA(a):
    e=a.e
    sH="s24"; sS="s25"; sT0="s34"; sT1="s35"; sQ="s26"; sK="s27"; sV="s28"; sM="s29"; sO="s30"; sOC="s31"; sQ2="s36"; sK2="s37"
    sCC="s[96:97]"; sC="s96"
    e(f"s_and_b32 {sH}, s33, 31"); e(f"s_lshr_b32 {sS}, s33, 5"); e(f"s_sub_u32 {sS}, {sS}, 2")
    e(f"v_mov_b32 v15, {vLN}")
    e("v_lshrrev_b32 v4, 5, v15"); e("v_lshlrev_b32 v4, 4, v4"); e("v_bfe_u32 v5, v15, 4, 1"); e("v_lshl_add_u32 v4, v5, 2, v4")
    e("v_and_b32 v5, 15, v15"); e("v_lshlrev_b32 v5, 2, v5")
    e(f"s_lshl_b32 {sT0}, {sH}, 8"); e(f"s_lshl_b32 {sT1}, {sW}, 6"); e(f"s_add_u32 {sT0}, {sT0}, {sT1}")
    e("v_lshl_add_u32 v1, v4, 13, v5"); e(f"v_add_u32 v1, {sT0}, v1")
    e(f"s_mov_b32 s10, {D*8192}")
    place=lambda i: ("a",8*i) if i<32 else ("v",192+8*(i-32))
    T={}
    groups=[]
    for m,(lo,hi) in (("k",("s42","s43")),("v",("s44","s45"))):
        for k in range(10):
            loads=[("v1",(64*k+32*(R>>2)+8*(R&1)+2*((R>>1)&1)+x)*8192) for R in range(8) for x in range(2)]
            d=[]
            for tau in range(2):
                T[(m,k,tau)]=p=place(len(T)); d.append([(p[0],p[1]+R) for R in range(8)])
            groups.append(([f"s_mov_b32 s8, {lo}",f"s_mov_b32 s9, {hi}"] if k==0 else [],loads,d[0],d[1]))
    load_pairs(a,groups,[16,32,48],8)
    vL16="v0"; vA="v1"; vIDX="v2"; vXW="v6"; vXR="v7"; vML="v8"; vML3="v9"; vDG="v3"
    e("v_lshlrev_b32 v0, 4, v15")
    e("v_lshrrev_b32 v12, 5, v15"); e("v_lshlrev_b32 v1, 9, v12"); e("v_bfe_u32 v12, v15, 1, 3"); e("v_lshl_add_u32 v1, v12, 6, v1")
    e("v_bfe_u32 v12, v15, 4, 1"); e("v_lshl_add_u32 v1, v12, 5, v1"); e("v_and_b32 v12, 1, v15"); e("v_lshl_add_u32 v1, v12, 4, v1")
    e("v_mov_b32 v13, 0xaaaa"); e("v_mul_u32_u24 v2, v12, v13"); e("v_add_u32 v2, 0x4444, v2")
    LX=10240
    e("v_lshrrev_b32 v12, 5, v15"); e("v_lshlrev_b32 v12, 2, v12"); e("v_and_b32 v13, 15, v15"); e("v_xor_b32 v12, v12, v13")
    e("v_lshlrev_b32 v6, 3, v12"); e("v_lshrrev_b32 v12, 4, v15"); e("v_lshl_add_u32 v6, v12, 7, v6")
    e(f"s_lshl_b32 {sT0}, {sW}, 10"); e(f"s_add_u32 {sT0}, {sT0}, {LX}"); e(f"v_add_u32 v6, {sT0}, v6")
    e("v_bfe_u32 v12, v15, 3, 1"); e("v_lshlrev_b32 v7, 3, v12"); e("v_lshrrev_b32 v12, 4, v15"); e("v_lshl_add_u32 v7, v12, 1, v7")
    e("v_bfe_u32 v12, v15, 2, 1"); e("v_add_u32 v7, v7, v12"); e("v_bfe_u32 v12, v15, 1, 1"); e("v_lshlrev_b32 v12, 2, v12"); e("v_xor_b32 v7, v7, v12")
    e("v_lshlrev_b32 v7, 3, v7"); e("v_and_b32 v12, 3, v15"); e("v_lshl_add_u32 v7, v12, 7, v7"); e(f"v_add_u32 v7, {LX}, v7")
    e(f"s_mul_i32 {sT0}, {sW}, 2560"); e(f"v_add_u32 v8, {sT0}, v0")
    e("v_and_b32 v9, 0x1ff, v0"); e(f"v_add_u32 v9, {sT0}, v9")
    e("v_lshrrev_b32 v12, 4, v15"); e("v_lshlrev_b32 v12, 2, v12"); e("v_and_b32 v13, 15, v15"); e("v_sub_u32 v3, v13, v12")
    c=(128**-0.5)*math.log2(math.e)
    e(f"s_mov_b32 s96, {f32(c)}"); e(f"s_mov_b32 s97, {f32(c)}")
    e("s_mov_b32 s98, 0x3f803f80"); e("s_mov_b32 s99, 0x3f803f80"); e("s_mov_b32 s100, 0x3f003f00"); e("s_mov_b32 s101, 0x3f003f00")
    Q=16; K=48; VX=80; SX={(0,0):88,(1,0):92,(1,1):96}; SM=[100,104]; AB=108; KA=148; VA=156; X=164; P=[16,24]; O=32; ONE=48; SUM=52; PK=56
    rt(a,4)
    a.label("A_seg")
    e(f"s_lshl_b32 {sT0}, {sS}, 7"); e(f"s_add_u32 {sT0}, {sT0}, {KVCNT}")
    e("v_lshrrev_b32 v12, 9, v0"); e("v_lshlrev_b32 v10, 13, v12"); e("v_mul_u32_u24 v12, 2, v12"); e("v_sub_u32 v12, 32, v12")
    spin_wait(a,"A_qh",lambda:e(f"buffer_load_dword v11, v10, {S_WS}, {sT0} offen sc1"),lambda:e("v_cmp_gt_u32 vcc, v12, v11"),sleep=8)
    e(f"s_lshl_b32 {sT0}, {sS}, 5"); e(f"s_add_u32 {sT0}, {sT0}, {sH}"); e(f"s_lshl_b32 {sT0}, {sT0}, 13")
    e(f"s_add_u32 {sQ}, {sT0}, {XQ_OFF}"); e(f"s_add_u32 {sQ2}, {sQ}, 4096"); e(f"s_add_u32 {sK}, {sT0}, {XK_OFF}"); e(f"s_add_u32 {sK2}, {sK}, 4096")
    e(f"s_lshl_b32 {sT1}, {sW}, 11"); e(f"s_add_u32 {sV}, {sT0}, {sT1}"); e(f"s_add_u32 {sV}, {sV}, {XV_OFF}")
    for t in range(2):
        for ke in range(4):
            e(f"buffer_load_dwordx4 {vr(Q+16*t+4*ke,4)}, {vL16}, {S_WS}, {sQ2 if t else sQ} offen offset:{1024*ke} sc1",f"q{t}")
        for ke in range(4):
            e(f"buffer_load_dwordx4 {vr(K+16*t+4*ke,4)}, {vL16}, {S_WS}, {sK2 if t else sK} offen offset:{1024*ke} sc1",f"k{t}")
    for t in range(2): e(f"buffer_load_dwordx4 {vr(VX+4*t,4)}, {vL16}, {S_WS}, {sV} offen offset:{1024*t} sc1","vx")
    e(f"s_mul_i32 {sM}, {sS}, 10240"); e(f"s_add_u32 {sM}, {sM}, {MEMP_OFF}")
    e(f"s_lshl_b32 {sO}, {sS}, 6"); e(f"s_add_u32 {sO}, {sO}, {sH}"); e(f"s_lshl_b32 {sO}, {sO}, 2"); e(f"s_add_u32 {sO}, {sO}, {sW}"); e(f"s_lshl_b32 {sO}, {sO}, 10"); e(f"s_add_u32 {sO}, {sO}, {O_OFF}")
    e(f"s_lshl_b32 {sOC}, {sS}, 2"); e(f"s_lshr_b32 {sT0}, {sH}, 3"); e(f"s_add_u32 {sOC}, {sOC}, {sT0}"); e(f"s_lshl_b32 {sOC}, {sOC}, 7"); e(f"s_add_u32 {sOC}, {sOC}, {OCNT4}")
    def mf(d,A,B,first,op="v_mfma_f32_16x16x32_bf16",n=4):
        e(f"{op} {vr(d,4)}, {vr(A,n)}, {vr(B,n)}, {'0' if first else vr(d,4)}")
    for (qt,kt),d in SX.items():
        a.wait(vm=[f"q{qt}",f"k{kt}"])
        for ke in range(4): mf(d,K+16*kt+4*ke,Q+16*qt+4*ke,ke==0)
    for r in range(KA,KA+16,2): e(f"v_mov_b64 {vr(r,2)}, 0")
    e("v_mov_b32 v11, 0xff800000")
    for i in range(4):
        e(f"v_cmp_gt_i32 vcc, {i}, {vDG}")
        for d in (SX[(0,0)],SX[(1,1)]): e(f"v_cndmask_b32 v{d+i}, v{d+i}, v11, vcc")
    def ml():
        e(f"buffer_load_dwordx4 {vr(AB,4)}, {vML}, {S_WS}, {sM} offen sc1"); e(f"buffer_load_dwordx4 {vr(AB+4,4)}, {vML}, {S_WS}, {sM} offen offset:1024 sc1")
        e(f"buffer_load_dwordx4 {vr(AB+8,4)}, {vML3}, {S_WS}, {sM} offen offset:2048 sc1")
    def mc():
        e(f"v_max3_u32 v10, v{AB}, v{AB+2}, v{AB+4}"); e(f"v_max3_u32 v10, v10, v{AB+6}, v{AB+8}"); e(f"v_max_u32 v10, v10, v{AB+10}")
        e("v_cmp_eq_u32 vcc, -1, v10")
    spin_wait(a,"A_mem",ml,mc,sleep=OPT["asleep"])
    rt(a,0)
    e(f"ds_write_b128 {vML}, {vr(AB,4)}"); e(f"ds_write_b128 {vML}, {vr(AB+4,4)} offset:1024"); e(f"ds_write_b128 {vML3}, {vr(AB+8,4)} offset:2048")
    a.wait(lg="all"); e("s_barrier")
    for k in range(10): e(f"ds_read_b128 {vr(AB+4*k,4)}, {vA} offset:{1024*k}",f"A{k}")
    def sm(acc_,k,key):
        kk,b=T[key]; e(f"v_smfmac_f32_16x16x64_bf16 {vr(acc_,4)}, {vr(AB+4*k,4)}, {vr(b,8,kk)}, {vIDX}")
    for k in range(10):
        a.wait(lg=f"A{k}")
        for tau in range(2): sm(KA+4*tau,k,("k",k,tau))
    sm(VA,0,("v",0,0)); sm(VA+4,0,("v",0,1))
    for tau in range(2):
        r=KA+4*tau
        e(f"v_add_f32 v{r}, v{r}, v{r+1}"); e(f"v_add_f32 v{r+2}, v{r+2}, v{r+3}"); e(f"v_cvt_pk_bf16_f32 v{r+1}, v{r}, v{r+2}")
        e(f"v_mov_b32 v{r}, 0")
        e(f"ds_write_b64 {vXW}, {vr(r,2)} offset:{512*tau}","xw")
    for k in range(1,4):
        for tau in range(2): sm(VA+4*tau,k,("v",k,tau))
    a.wait(lg="xw"); e("s_barrier")
    for ke in range(4):
        for x in range(2): e(f"ds_read_b64_tr_b16 {vr(X+4*ke+2*x,2)}, {vXR} offset:{1024*ke+512*x}",f"X{ke}")
    for k in range(4,10):
        for tau in range(2): sm(VA+4*tau,k,("v",k,tau))
    for ke in range(4):
        a.wait(lg=f"X{ke}")
        for qt in range(2): mf(SM[qt],X+4*ke,Q+16*qt+4*ke,ke==0)
    for i in range(4): e(f"v_cvt_pk_bf16_f32 v{VA+i}, v{VA+2*i}, v{VA+2*i+1}")
    e(f"v_mov_b64 {vr(ONE,2)}, s[98:99]"); e(f"v_mov_b64 {vr(ONE+2,2)}, s[98:99]"); e(f"v_mov_b64 {vr(KA,2)}, s[100:101]")
    a.wait(vm="vx")
    for qt in range(2):
        ev=[r+i for r in ([SX[(0,0)]] if qt==0 else [SX[(1,0)],SX[(1,1)]]) for i in range(4)]+[SM[qt]+2,SM[qt]+3]
        e(f"v_max3_f32 v10, v{ev[0]}, v{ev[1]}, v{ev[2]}")
        for i in range(3,len(ev)-1,2): e(f"v_max3_f32 v10, v10, v{ev[i]}, v{ev[i+1]}")
        e(f"v_max_f32 v11, v10, v{ev[-1]}"); e(f"v_max_f32 v10, v10, v{ev[-1]}")
        e("v_permlane32_swap_b32 v10, v11"); e("v_max_f32 v12, v10, v11"); e("v_max_f32 v10, v10, v11")
        e("v_permlane16_swap_b32 v10, v12"); e("v_max_f32 v10, v10, v12"); e(f"v_mul_f32 v10, {sC}, v10")
        for r in ev[::2]: e(f"v_pk_fma_f32 {vr(r,2)}, {vr(r,2)}, {sCC}, v[10:11] op_sel_hi:[1,1,0] neg_lo:[0,0,1] neg_hi:[0,0,1]")
        for r in ev: e(f"v_exp_f32 v{r}, v{r}")
        p=P[qt]
        for i in range((len(ev)-2)//2): e(f"v_cvt_pk_bf16_f32 v{p+i}, v{ev[2*i]}, v{ev[2*i+1]}")
        if qt==0: e(f"v_mov_b64 {vr(p+2,2)}, 0")
        e(f"v_cvt_pk_bf16_f32 v{p+4}, v{ev[-2]}, v{ev[-2]}"); e(f"v_cvt_pk_bf16_f32 v{p+5}, v{ev[-1]}, v{ev[-1]}")
        o=O+8*qt
        mf(SUM,ONE,p,1); mf(o,VX,p,1); mf(o+4,VX+4,p,1)
        mf(SUM,KA,p+4,0,"v_mfma_f32_16x16x16_bf16",2); mf(o,VA,p+4,0,"v_mfma_f32_16x16x16_bf16",2); mf(o+4,VA+2,p+4,0,"v_mfma_f32_16x16x16_bf16",2)
        e(f"v_rcp_f32 v10, v{SUM}")
        pk=PK+4*qt
        for i in range(0,4,2):
            for t in range(2): e(f"v_pk_mul_f32 {vr(o+4*t+i,2)}, {vr(o+4*t+i,2)}, v[10:11] op_sel_hi:[1,0]")
            for k in range(2): e(f"v_cvt_pk_bf16_f32 v{pk+i+k}, v{o+i+k}, v{o+4+i+k}")
        if qt: e(f"s_add_u32 {sO}, {sO}, {32*4096}")
        e(f"buffer_store_dwordx4 {vr(pk,4)}, {vL16}, {S_WS}, {sO} offen sc1","o")
    rt(a,1)
    e("s_waitcnt vmcnt(0)"); a.vm=[]; e("s_barrier")
    rt(a,2)
    e(f"s_cmp_eq_u32 {sW}, 0"); e("s_cbranch_scc0 A_nosig")
    e("s_mov_b64 exec, 1"); e("v_mov_b32 v10, 0"); e("v_mov_b32 v11, 1")
    e(f"buffer_atomic_add v11, v10, {S_WS}, {sOC} offen"); e("s_mov_b64 exec, -1"); e("s_nop 3")
    a.label("A_nosig")
    e(f"s_add_u32 {sS}, {sS}, 2"); e(f"s_cmp_lt_u32 {sS}, 64"); e("s_cbranch_scc1 A_seg")
    finish(a)

def finish(a):
    e=a.e
    e("s_waitcnt vmcnt(0)")
    if OPT["tim"]:
        rt(a,5); e("s_waitcnt lgkmcnt(0)")
        for i in range(6): e(f"v_mov_b32 v{12+i}, s{70+2*i}")
        e("v_mov_b32 v18, s90"); e("v_mov_b32 v19, s32")
        e(f"s_lshl_b32 s34, s33, 2"); e(f"s_add_u32 s34, s34, {sW}"); e("s_lshl_b32 s34, s34, 5"); e(f"s_add_u32 s34, s34, {DBG_OFF+131072}")
        e("v_mov_b32 v10, 0"); e("s_mov_b64 exec, 1")
        e(f"buffer_store_dwordx4 v[12:15], v10, {S_WS}, s34 offen"); e(f"buffer_store_dwordx4 v[16:19], v10, {S_WS}, s34 offen offset:16")
        if C.OPT["dbgout"]:
            e("v_mov_b32 v10, 40"); e(f"global_atomic_umax v10, v17, {sDBG}")
        e("s_waitcnt vmcnt(0)")
    e("s_endpgm")

def stageB(a):
    e=a.e
    sN="s24"; sS="s25"; sHF="s26"; sT0="s34"; sT1="s35"; sHS="s27"; sHH="s28"; sOO="s29"; sXO="s30"; sPAR="s31"; sMIX="s37"
    S_O="s[16:19]"; S_XX="s[20:23]"
    e(f"s_load_dwordx2 s[40:41], s[0:1], {A_WO}"); e(f"s_load_dwordx2 s[42:43], s[0:1], {B_W2}"); e(f"s_load_dwordx2 s[44:45], s[0:1], {B_B2}")
    e(f"s_load_dwordx2 s[16:17], s[0:1], {D_OUT}"); e(f"s_load_dwordx2 s[20:21], s[0:1], {A_X}")
    e(f"s_sub_u32 {sT0}, s33, 128")
    e(f"s_mul_i32 {sS}, {sT0}, 1639"); e(f"s_lshr_b32 {sS}, {sS}, 16")
    e(f"s_mul_i32 {sT1}, {sS}, 40"); e(f"s_sub_u32 {sT0}, {sT0}, {sT1}")
    e(f"s_cmp_ge_u32 {sT0}, 20"); e(f"s_cselect_b32 {sHF}, 1, 0"); e(f"s_mul_i32 {sT1}, {sHF}, 20"); e(f"s_sub_u32 {sN}, {sT0}, {sT1}")
    e(f"v_mov_b32 v15, {vLN}")
    e("v_lshrrev_b32 v4, 4, v15"); e("v_and_b32 v5, 15, v15"); e("v_lshlrev_b32 v5, 2, v5"); e(f"s_lshl_b32 {sT0}, {sN}, 6"); e(f"v_add_u32 v5, {sT0}, v5")
    e("v_mul_u32_u24 v1, 10240, v4"); e("v_add_u32 v1, v1, v5"); e(f"s_mul_i32 {sT0}, {sW}, {1024*1280}"); e(f"v_add_u32 v1, {sT0}, v1")
    e("v_mul_u32_u24 v2, 5120, v4"); e("v_add_u32 v2, v2, v5"); e(f"s_mul_i32 {sT0}, {sW}, {14*32*1280}"); e(f"v_add_u32 v2, {sT0}, v2")
    e(f"s_mov_b32 s18, {S*D*2}"); e("s_mov_b32 s19, 0x20000"); e(f"s_mov_b32 s22, {S*D*2}"); e("s_mov_b32 s23, 0x20000")
    e("s_waitcnt lgkmcnt(0)")
    groups=[]
    for kk in range(16):
        loads=[("v1",(64*kk+32*(R>>2)+2*(R&3)+x)*1280) for R in range(8) for x in range(2)]
        d=[[("a",16*kk+8*(R>>2)+4*tau+(R&3)) for R in range(8)] for tau in range(2)]
        groups.append((["s_mov_b32 s8, s40","s_mov_b32 s9, s41",f"s_mov_b32 s10, {4096*1280}"] if kk==0 else [],loads,d[0],d[1]))
    W2=144
    for kk in range(7):
        loads=[("v2",(64*kk+32*(R>>2)+16*((R>>1)&1)+2*(R&1)+x)*1280) for R in range(8) for x in range(2)]
        d=[[("v",W2+16*kk+8*(R>>2)+4*tau+(R&3)) for R in range(8)] for tau in range(2)]
        groups.append((["s_mov_b32 s8, s42","s_mov_b32 s9, s43",f"s_mov_b32 s10, {F*1280}"] if kk==0 else [],loads,d[0],d[1]))
    load_pairs(a,groups,[16,32,48],8,lock=False)
    vL16="v0"; vXO="v1"; vRW="v2"; B2=4
    e("v_lshlrev_b32 v0, 4, v15")
    e("v_and_b32 v12, 15, v15"); e("v_mul_u32_u24 v1, 1280, v12"); e("v_lshrrev_b32 v12, 4, v15"); e("v_lshlrev_b32 v12, 4, v12")
    e(f"s_lshl_b32 {sT0}, {sN}, 6"); e(f"v_add_u32 v12, {sT0}, v12"); e("v_add_u32 v1, v1, v12")
    e(f"s_lshl_b32 {sT0}, {sW}, 11"); e(f"v_add_u32 v2, {sT0}, v0")
    e("s_mov_b32 s8, s44"); e("s_mov_b32 s9, s45"); e(f"s_mov_b32 s10, {D*2}")
    e("buffer_load_dwordx4 v[16:19], v12, s[8:11], 0 offen"); e(f"s_mov_b32 {sMIX}, 0xffff0000")
    e("s_waitcnt vmcnt(0)"); a.vm=[]
    for i in range(4): e(f"v_lshlrev_b32 v{B2+i}, 16, v{16+i}"); e(f"v_and_b32 v{B2+4+i}, {sMIX}, v{16+i}")
    e(f"s_mov_b32 {sPAR}, 0")
    AC=[12,16]; XR=20; RING=32; NR=24; RED=128
    rt(a,4)
    e("v_mov_b32 v28, v0"); e("v_mov_b32 v29, v1"); e(f"s_mov_b32 s39, {sS}")
    a.label("B_unit")
    if OPT["split"]:
        e(f"s_cmp_eq_u32 {sS}, 63"); e("s_cbranch_scc0 B_full")
        e("v_bfe_u32 v24, v0, 7, 1"); e("v_cmp_eq_u32 vcc, s39, v24"); e("v_mov_b32 v24, 0x7ff00000")
        e("v_cndmask_b32 v28, v24, v0, vcc"); e("v_cndmask_b32 v29, v24, v1, vcc")
        a.label("B_full")
    e(f"s_lshl_b32 {sT0}, {sS}, 7"); e(f"s_add_u32 {sT0}, {sT0}, {QHCNT}"); e("v_mov_b32 v24, 0")
    spin_wait(a,"B_qh",lambda:e(f"buffer_load_dword v25, v24, {S_WS}, {sT0} offen sc1"),lambda:e("v_cmp_gt_u32 vcc, 30, v25"),sleep=8)
    e(f"s_lshl_b32 {sHS}, {sS}, 1"); e(f"s_add_u32 {sHS}, {sHS}, {sHF}")
    e(f"s_mul_i32 {sHH}, {sHS}, {54*1024}"); e(f"s_mul_i32 {sT0}, {sW}, {14*1024}"); e(f"s_add_u32 {sHH}, {sHH}, {sT0}"); e(f"s_add_u32 {sHH}, {sHH}, {HH_OFF}")
    e(f"s_lshl_b32 {sOO}, {sHS}, 17"); e(f"s_lshl_b32 {sT0}, {sW}, 15"); e(f"s_add_u32 {sOO}, {sOO}, {sT0}"); e(f"s_add_u32 {sOO}, {sOO}, {O_OFF}")
    e(f"s_mul_i32 {sXO}, {sHS}, {16*1280}")
    def ld(i,sreg,tag):
        if i and i%4==0: e(f"s_add_u32 {sreg}, {sreg}, 4096")
        e(f"buffer_load_dwordx4 {vr(RING+4*(i%NR),4)}, v28, {S_WS}, {sreg} offen offset:{1024*(i%4)} sc1",tag)
    def mm(i,base,kind,first):
        for tau in range(2):
            e(f"v_mfma_f32_16x16x32_bf16 {vr(AC[tau],4)}, {vr(base+8*i+4*tau,4,kind)}, {vr(RING+4*(i%NR),4)}, {'0' if first else vr(AC[tau],4)}")
    for i in range(14):
        if i==12:
            e(f"s_cmp_eq_u32 {sW}, 3"); e(f"s_cselect_b32 {sHH}, 0x7ff00000, {sHH}")
        ld(i,sHH,f"h{i}")
    e(f"buffer_load_dwordx4 {vr(XR,4)}, {vXO}, {S_XX}, {sXO} offen","xr")
    for i in range(14):
        a.wait(vm=f"h{i}"); mm(i,W2,"v",i==0)
    e(f"s_lshl_b32 {sT0}, {sS}, 2"); e(f"s_add_u32 {sT0}, {sT0}, {sW}"); e(f"s_lshl_b32 {sT0}, {sT0}, 7"); e(f"s_add_u32 {sT0}, {sT0}, {OCNT4}")
    spin_wait(a,"B_o",lambda:e(f"buffer_load_dword v25, v24, {S_WS}, {sT0} offen sc1"),lambda:e("v_cmp_gt_u32 vcc, 8, v25"),sleep=OPT["bsleep"])
    rt(a,0)
    for i in range(NR): ld(i,sOO,f"o{i}")
    for i in range(32):
        a.wait(vm=f"o{i}"); mm(i,0,"a",False)
        if i+NR<32: ld(i+NR,sOO,f"o{i+NR}")
    rt(a,1)
    e(f"v_add_u32 v26, {sPAR}, {vRW}"); e(f"v_add_u32 v27, {sPAR}, {vL16}")
    e(f"ds_write_b128 v26, {vr(AC[0],4)}"); e(f"ds_write_b128 v26, {vr(AC[1],4)} offset:1024")
    a.wait(lg="all"); e("s_barrier")
    e(f"s_cmp_eq_u32 {sW}, 0"); e("s_cbranch_scc0 B_next")
    for j in range(6): e(f"ds_read_b128 {vr(RING+4*j,4)}, v27 offset:{2048+1024*j}",f"r{j}")
    for i in range(4):
        e(f"v_lshlrev_b32 v{RING+24+i}, 16, v{XR+i}"); e(f"v_and_b32 v{RING+28+i}, {sMIX}, v{XR+i}")
    for i in range(8): e(f"v_add_f32 v{RING+24+i}, v{RING+24+i}, v{B2+i}")
    for i in range(8): e(f"v_add_f32 v{AC[0]+i}, v{AC[0]+i}, v{RING+24+i}")
    for j in range(3):
        a.wait(lg=f"r{2*j+1}")
        for i in range(8): e(f"v_add_f32 v{AC[0]+i}, v{AC[0]+i}, v{RING+8*j+i}")
    for i in range(4): e(f"v_cvt_pk_bf16_f32 v{XR+i}, v{AC[0]+i}, v{AC[1]+i}")
    e(f"buffer_store_dwordx4 {vr(XR,4)}, v29, {S_O}, {sXO} offen sc1")
    a.label("B_next")
    e(f"s_xor_b32 {sPAR}, {sPAR}, 8192")
    e(f"s_add_u32 {sS}, {sS}, 2")
    if OPT["split"]: e(f"s_cmp_eq_u32 {sS}, 64"); e(f"s_cselect_b32 {sS}, 63, {sS}")
    e(f"s_cmp_lt_u32 {sS}, 64"); e("s_cbranch_scc1 B_unit")
    finish(a)

def hold(a,name):
    if not OPT["hold"]: return
    e=a.e
    e(f"s_mov_b32 {sA}, {OPT['hold']}")
    spin_wait(a,name,lambda:(e(f"v_mov_b32 v{TMP+4}, 0"),e(f"buffer_load_dword v{TMP+5}, v{TMP+4}, {S_WS}, {sA} offen sc1")),lambda:e(f"v_cmp_gt_u32 vcc, {OPT['holdn']}, v{TMP+5}"),sleep=16)

def workers(a):
    e=a.e
    common(a)
    e(f"s_cmp_lt_u32 {sWI}, 62"); e("s_cbranch_scc0 W_notp")
    project(a)
    a.label("W_notp")
    e(f"s_cmp_lt_u32 {sWI}, 64"); e("s_cbranch_scc1 L_exit")
    norm_rows(a)
    e(f"s_cmp_ge_u32 {sWI}, 208"); e("s_cbranch_scc1 L_exit")
    zero_wait(a,"W_zero3")
    hold(a,"W_hold")
    e("s_barrier")
    e(f"s_cmp_lt_u32 {sWI}, 128"); e("s_cbranch_scc0 W_stageB")
    stageA(a)
    a.label("W_stageB")
    stageB(a)
```

```python
import sys
from asmlib import *
from layout import *
import chain as C
import worker as W

NAME="parallel_sum__memory_aug_recurrent_mem_tr__mixer_channel_mlp__prompt"
KN=NAME+"_kernel"
sW="s13"; sROW="s64"; sRANK="s65"

DOC=""";
;              CS* (write-through stores) runs for any other placement.
"""
TIM=[0]
def set_chain(mod):
    global C
    C=mod
def prologue(a):
    e=a.e
    e("s_cmp_ge_u32 s2, 256"); e("s_cbranch_scc1 L_exit")
    if TIM[0] in(1,2): e("s_memrealtime s[90:91]")
    e(f"s_load_dwordx2 {C.sDBG}, s[0:1], {D_DBG}"); e(f"s_load_dwordx2 s[4:5], s[0:1], {D_WS}")
    e(f"s_getreg_b32 {C.sXCC}, hwreg(HW_REG_XCC_ID, 0, 4)")
    e("v_lshrrev_b32 v1, 6, v0"); e(f"v_readfirstlane_b32 {sW}, v1"); e("v_and_b32 v0, 63, v0")
    e(f"s_mov_b32 s6, {WS_SIZE}"); e("s_mov_b32 s7, 0x20000")
    e(f"s_and_b32 {sROW}, {C.sXCC}, 7")
    e("s_waitcnt lgkmcnt(0)")
    e(f"s_cmp_eq_u32 {sW}, 0"); e("s_cbranch_scc0 L_gotrole")
    e("s_mov_b64 exec, 1"); e("v_mov_b32 v2, 1"); e("s_mov_b32 s42, 0")
    a.label("L_ticket")
    e(f"s_lshl_b32 s43, {sROW}, 2"); e("s_add_u32 s43, s43, 128"); e(f"s_cmp_eq_u32 {sROW}, 0"); e("s_cselect_b32 s43, 0, s43")
    e("v_mov_b32 v1, s43"); e(f"global_atomic_add v3, v1, v2, {C.sDBG} sc0"); e("s_waitcnt vmcnt(0)")
    e(f"v_readfirstlane_b32 {sRANK}, v3"); e("s_nop 3")
    e(f"s_cmp_lt_u32 {sRANK}, 32"); e("s_cbranch_scc1 L_ticketok")
    e(f"s_add_u32 {sROW}, {sROW}, 1"); e(f"s_and_b32 {sROW}, {sROW}, 7"); e("s_add_u32 s42, s42, 1")
    e("s_cmp_lt_u32 s42, 8"); e("s_cbranch_scc1 L_ticket")
    e(f"s_mov_b32 {sROW}, 8")
    a.label("L_ticketok")
    e(f"s_lshl_b32 s43, {sROW}, 5"); e(f"s_add_u32 s43, s43, {sRANK}")
    e("v_mov_b32 v3, s43"); e(f"v_mov_b32 v1, {C.L_ROLE}"); e("ds_write_b32 v1, v3"); e("s_waitcnt lgkmcnt(0)")
    e("s_mov_b64 exec, -1")
    a.label("L_gotrole")
    e("s_barrier")
    e(f"v_mov_b32 v1, {C.L_ROLE}"); e("ds_read_b32 v3, v1"); e("s_waitcnt lgkmcnt(0)")
    e("v_readfirstlane_b32 s43, v3"); e("s_nop 3")
    e(f"s_lshr_b32 {sROW}, s43, 5"); e(f"s_and_b32 {sRANK}, s43, 31")
    e("s_barrier")
    a.vm=[]; a.lg=[]
    e(f"s_cmp_ge_u32 {sROW}, 8"); e("s_cbranch_scc1 L_exit")
    e(f"s_cmp_eq_u32 {sROW}, 0"); e("s_cbranch_scc0 L_worker")

def chain_start(a, kv_need):
    e=a.e
    e(f"s_cmp_eq_u32 {sW}, 0"); e("s_cbranch_scc0 C_arrived")
    e(f"s_mov_b64 exec, {C.OPT['kvmask']}"); e("v_lshlrev_b32 v16, 3, v0"); e(f"v_add_u32 v16, {KVCNT}, v16"); e("v_mov_b32 v12, 4")
    e("s_mov_b32 s42, 0")
    a.label("C_poll")
    e(f"global_load_dwordx2 v[14:15], v12, {C.sDBG} sc1")
    e("s_add_u32 s42, s42, 1"); e("s_cmp_gt_u32 s42, 0x100000"); e("s_cbranch_scc1 C_polled")
    e("s_waitcnt vmcnt(0)")
    e("v_cmp_gt_u32 vcc, 32, v14"); e("s_cbranch_vccnz C_poll")
    a.label("C_pollkv")
    e("buffer_load_dword v17, v16, s[4:7], 0 offen sc1")
    e("s_add_u32 s42, s42, 1"); e("s_cmp_gt_u32 s42, 0x100000"); e("s_cbranch_scc1 C_polled")
    e("s_waitcnt vmcnt(0)")
    e(f"v_cmp_gt_u32 vcc, {kv_need}, v17"); e("s_cbranch_vccz C_polled"); e("s_sleep 4"); e("s_branch C_pollkv")
    a.label("C_polled")
    e("s_waitcnt vmcnt(0)"); e("s_mov_b64 exec, 1")
    e(f"v_mov_b32 v12, {C.L_ROLE}"); e("ds_write_b32 v12, v15"); e("s_waitcnt lgkmcnt(0)")
    e("s_mov_b64 exec, -1")
    a.label("C_arrived")
    e("s_barrier")
    e(f"v_mov_b32 v12, {C.L_ROLE}"); e("ds_read_b32 v13, v12"); e("s_waitcnt lgkmcnt(0)")
    e("v_readfirstlane_b32 s42, v13"); e("s_nop 3")
    e(f"s_bcnt1_i32_b32 {C.sMODE}, s42")
    a.vm=[]; a.lg=[]

def build(tim=0, force_slow=0, kv_need=0, workers=None):
    a=Asm(); e=a.e; TIM[0]=tim; W.OPT["tim"]=1 if tim==2 else 0
    prologue(a)
    if tim in(1,2): e("s_memrealtime s[92:93]")
    e(f"s_mov_b32 {C.sH}, {sRANK}")
    C.chain_init(a, sW)
    if tim in(1,2): e("s_memrealtime s[94:95]")
    chain_start(a, kv_need)
    if tim in(1,2): e("s_memrealtime s[66:67]")
    e(f"s_cmp_eq_u32 {C.sMODE}, {99 if force_slow else 1}"); e("s_cbranch_scc0 C_slow")
    for pfx,st in (("CF",""),("CS","sc1")):
        if pfx=="CS": a.label("C_slow")
        for w in (1,2,3):
            e(f"s_cmp_eq_u32 {sW}, {w}"); e(f"s_cbranch_scc1 {pfx}_w{w}")
        for w in range(4):
            a.label(f"{pfx}_w{w}")
            C.chain_wave(a,w,st,pfx,tim)
    a.label("L_worker")
    if workers: workers(a)
    a.label("L_abort")
    a.label("L_exit")
    e("s_endpgm")
    head=open("cdna_kernels/"+NAME+".s.ref").read().split("; Override launch")[0]
    out=head+"; @launch grid=(256,1,1) block=(256,1,1) lds=163840\n"+DOC
    out+=f'.amdgcn_target "amdgcn-amd-amdhsa--gfx950"\n.text\n.globl {KN}\n.p2align 8\n.type {KN},@function\n{KN}:\n'
    out+=a.text()
    out+=f""".section .rodata,"a"
.p2align 6
.amdhsa_kernel {KN}
  .amdhsa_next_free_vgpr 512
  .amdhsa_next_free_sgpr 102
  .amdhsa_accum_offset 256
  .amdhsa_group_segment_fixed_size 0
  .amdhsa_kernarg_size 120
  .amdhsa_user_sgpr_count 2
  .amdhsa_user_sgpr_kernarg_segment_ptr 1
  .amdhsa_system_sgpr_workgroup_id_x 1
  .amdhsa_float_denorm_mode_32 3
.end_amdhsa_kernel
"""
    return out, a
if __name__=="__main__":
    full=len(sys.argv)>3
    out,a=build(tim=int(sys.argv[2]) if len(sys.argv)>2 else 0, kv_need=32 if full else 0, workers=W.workers if full else None)
    open(sys.argv[1],"w").write(out); print("instructions",len(a.ins),"pad states",a.npad)
```

```python
from asmlib import *
from layout import *
import math

L_MEM=0; L_X=10240; L_KX=14336; L_SEL=22528; L_ROLE=23552; L_W=24576
S_WS="s[4:7]"; S_T="s[8:11]"
sH="s12"; sSTEP="s14"; sMR="s15"; sMW="s16"; sMZ="s17"; sTAG="s18"; sTAGM="s19"
sKX="s20"; sVX="s21"; sPC="s22"; sMP="s23"; sSW="s24"; sP0="s25"; sP1="s26"; sP2="s27"
sPR=["s28","s29","s30","s31"]; sCNT="s32"; sC="s33"; sFE="s34"; sKX2="s35"; sSW2="s36"; sSW3="s37"; sSW4="s38"
sPLO="s40"; sPHI="s41"; sT0="s42"; sT1="s43"; sEX="s[44:45]"; sUNIT="s46"; sKXN="s47"; sVXN="s48"; sMF="s49"; sPAT="s39"; sALL="s31"; sMU="s53"; sF1W="s88"; sF1R="s89"
sCC="s[96:97]"; sONE="s[98:99]"; sHALF="s[100:101]"; sDBG="s[50:51]"; sXCC="s52"; sMODE="s87"
vL16="v0"; vA="v1"; vIDX="v2"; vW="v3"; vRL="v4"; vRS="v5"; vXW="v6"; vXR="v7"; vOW="v8"; vL8="v9"
T0=10; T1=11
AB=[12,16,20,24]; QA=28; KA=32; VA=36; SL1=40; SL2=48; SL3=56

QSEQ=[]; Q_SLOT={}; O_SLOT={}; SLOT={}; TG={}; TL={}; TR={}; GPOS=[]
QS={0:{0:(SL1,"L"),1:(SL2,"L"),25:(SL3,"G"),29:(SL1,"G"),33:(SL2,"G"),31:(SL3,"L"),37:(SL3,"L"),43:(SL3,"L"),35:(SL1,"L"),41:(SL1,"L"),47:(SL1,"L"),39:(SL2,"L")},
    1:{16:(SL3,"G"),19:(SL1,"G"),22:(SL2,"G"),23:(SL3,"L"),29:(SL3,"L"),35:(SL3,"L"),41:(SL3,"L"),25:(SL1,"L"),31:(SL1,"L"),37:(SL1,"L"),27:(SL2,"L"),33:(SL2,"L")},
    2:{12:(SL3,"G"),16:(SL1,"G"),20:(SL2,"G"),18:(SL3,"L"),24:(SL3,"L"),30:(SL3,"L"),36:(SL3,"L"),22:(SL1,"L"),28:(SL1,"L"),34:(SL1,"L"),26:(SL2,"L"),32:(SL2,"L")},
    3:{14:(SL3,"G"),18:(SL1,"G"),22:(SL2,"G"),20:(SL3,"L"),28:(SL3,"L"),36:(SL3,"L"),44:(SL3,"L"),24:(SL1,"L"),32:(SL1,"L"),40:(SL1,"L"),30:(SL2,"L"),38:(SL2,"L")},
    4:{0:(SL1,"L"),1:(SL2,"L"),12:(SL3,"G"),27:(SL1,"G"),31:(SL2,"G"),18:(SL3,"L"),24:(SL3,"L"),30:(SL3,"L"),33:(SL1,"L"),39:(SL1,"L"),37:(SL2,"L"),43:(SL2,"L")},
    5:{0:(SL1,"L"),1:(SL2,"L"),10:(SL3,"G"),24:(SL1,"G"),28:(SL2,"G"),16:(SL3,"L"),22:(SL3,"L"),30:(SL3,"L"),38:(SL3,"L"),32:(SL1,"L"),42:(SL1,"L"),35:(SL2,"L")},
    6:{0:(SL1,"L"),1:(SL2,"L"),14:(SL3,"G"),25:(SL1,"G"),29:(SL2,"G"),20:(SL3,"L"),27:(SL3,"L"),33:(SL3,"L"),40:(SL3,"L"),31:(SL1,"L"),37:(SL1,"L"),35:(SL2,"L")}}
OS={0:{0:(28,"G"),1:(SL1,"G"),9:(SL2,"G"),19:(SL1,"G"),2:(SL3,"L"),5:(SL3,"L"),8:(SL3,"L"),11:(SL3,"L"),14:(SL3,"L"),17:(SL3,"L"),12:(SL2,"L"),15:(SL2,"L")},
    1:{0:(28,"G"),1:(SL1,"G"),11:(SL2,"G"),19:(SL1,"G"),2:(SL3,"L"),6:(SL3,"L"),10:(SL3,"L"),14:(SL3,"L"),18:(SL3,"L"),5:(SL1,"L"),15:(SL2,"L"),17:(SL3,"X")},
    2:{0:(28,"G"),1:(SL1,"G"),9:(SL2,"G"),19:(SL1,"G"),2:(SL3,"L"),6:(SL3,"L"),10:(SL3,"L"),14:(SL3,"L"),18:(SL3,"L"),5:(SL1,"L"),13:(SL2,"L"),17:(SL2,"L")},
    3:{0:(28,"G"),1:(SL1,"G"),11:(SL2,"G"),19:(SL1,"G"),2:(SL3,"L"),6:(SL3,"L"),10:(SL3,"L"),13:(SL3,"L"),16:(SL3,"L"),5:(SL1,"L"),15:(SL2,"L"),18:(SL2,"L")},
    4:{0:(28,"G"),1:(SL1,"G"),18:(SL2,"G"),19:(SL1,"G"),2:(SL3,"L"),6:(SL3,"L"),10:(SL3,"L"),14:(SL3,"L"),3:(SL2,"L"),7:(SL2,"L"),5:(SL1,"L"),9:(SL1,"L")},
    5:{0:(28,"G"),1:(SL1,"G"),9:(SL2,"G"),19:(SL1,"G"),2:(SL3,"L"),6:(SL3,"L"),10:(SL3,"L"),13:(SL3,"L"),16:(SL3,"L"),12:(SL2,"L"),15:(SL2,"L"),18:(SL2,"L")},
    6:{0:(28,"G"),1:(SL1,"G"),8:(SL2,"G"),19:(SL1,"G"),2:(SL3,"L"),7:(SL3,"L"),10:(SL3,"L"),13:(SL3,"L"),16:(SL3,"L"),11:(SL2,"L"),14:(SL2,"L"),17:(SL2,"L")},
    8:{0:(28,"G"),4:(SL1,"G"),10:(SL2,"G"),19:(SL1,"G"),2:(SL3,"L"),5:(SL3,"L"),8:(SL3,"L"),11:(SL3,"L"),14:(SL3,"L"),17:(SL3,"L"),13:(SL2,"L"),16:(SL2,"L")},
    9:{0:(28,"G"),3:(SL1,"G"),10:(SL2,"G"),19:(SL1,"G"),2:(SL3,"L"),6:(SL3,"L"),9:(SL3,"L"),12:(SL3,"L"),15:(SL3,"L"),18:(SL3,"L"),13:(SL2,"L"),16:(SL2,"L")}}
def setup_tiles():
    NV=OPT['nv']
    QSEQ[:]=[(m,k) for k in range(NV) for m in "qkv"]+[(m,k) for k in range(NV,18) for m in "qk"]+[("q",18),("q",19),("k",18),("k",19)]
    for d in (Q_SLOT,O_SLOT,SLOT,TG,TL,TR): d.clear()
    Q_SLOT.update(QS[OPT["qs"]]); O_SLOT.update(OS[OPT["os"]])
    GPOS[:]=sorted(p for p,v in Q_SLOT.items() if v[1]=="G")
    SLOT.update({QSEQ[p]:v for p,v in Q_SLOT.items()}); SLOT.update({("o",n):v for n,v in O_SLOT.items()})
    for key in [(m,k) for m in "qkvo" for k in range(20)]:
        kind=SLOT.get(key,(0,"R"))[1]
        if kind=="G": TG[key]=len(TG)
        elif kind=="L": TL[key]=len(TL)
        else: i=len(TR); TR[key]=("a",8*i) if i<32 else ("v",64+8*(i-32))
    assert len(TR)==56 and len(TG)==7 and len(TL)==17
def use_map(w): pass

def sw_ref(idx):
    return [sSW,sSW2,sSW3,sSW4][idx//2], (idx&1)*2048

def gload_tile(a,key,slot,tag):
    if "G" in OPT["ab"] or ("O" in OPT["ab"] and tag in("go9","go19")): return
    s,imm=sw_ref(TG[key])
    fl="" if tag in OPT["l1"] else OPT["gfl"]
    a.e(f"buffer_load_dwordx4 {vr(slot,4)}, {vL16}, {S_WS}, {s} offen offset:{imm} {fl}",tag)
    a.e(f"buffer_load_dwordx4 {vr(slot+4,4)}, {vL16}, {S_WS}, {s} offen offset:{imm+1024} {fl}",tag)
def gload_half(a,key,slot,tag,half):
    if "G" in OPT["ab"] or ("O" in OPT["ab"] and tag in("go9","go19")): return
    s,imm=sw_ref(TG[key])
    a.e(f"buffer_load_dwordx4 {vr(slot+4*half,4)}, {vL16}, {S_WS}, {s} offen offset:{imm+1024*half}",tag)
def lload_tile(a,key,slot,tag):
    o=TL[key]*2048
    a.e(f"ds_read_b128 {vr(slot,4)}, {vW} offset:{o}",tag)
    a.e(f"ds_read_b128 {vr(slot+4,4)}, {vW} offset:{o+1024}",tag)
def sm(a,acc,A,key,slot=None):
    if key in TR: k,b=TR[key]
    else: k,b="v",slot
    a.e(f"v_smfmac_f32_16x16x64_bf16 {vr(acc,4)}, {vr(A,4)}, {vr(b,8,k)}, {vIDX}")
def zero4(a,r):
    a.e(f"v_mov_b64 {vr(r,2)}, 0"); a.e(f"v_mov_b64 {vr(r+2,2)}, 0")

def chain_init(a, sW):
    setup_tiles()
    e=a.e
    e("s_load_dwordx2 s[54:55], s[0:1], %d"%A_WQ); e("s_load_dwordx2 s[56:57], s[0:1], %d"%A_WK)
    e("s_load_dwordx2 s[58:59], s[0:1], %d"%A_WV); e("s_load_dwordx2 s[60:61], s[0:1], %d"%A_WO)
    e("s_load_dwordx2 s[62:63], s[0:1], %d"%A_MEM0)
    e(f"s_mov_b32 {sPLO}, 0x05040100"); e(f"s_mov_b32 {sPHI}, 0x07060302")
    e("v_mov_b32 v15, v0"); e("v_lshlrev_b32 v0, 4, v0"); e("s_mov_b32 s11, 0x20000")
    def lanes():
        e("v_bfe_u32 v12, v15, 1, 3"); e("v_lshlrev_b32 v1, 6, v12"); e("v_lshrrev_b32 v12, 4, v15"); e("v_lshl_add_u32 v1, v12, 4, v1")
        e("v_and_b32 v12, 1, v15")
        e("v_mov_b32 v13, 0xaaaa"); e("v_mul_u32_u24 v2, v12, v13"); e("v_add_u32 v2, 0x4444, v2")
        e(f"s_lshl_b32 {sUNIT}, {sW}, 5"); e(f"s_add_u32 {sUNIT}, {sUNIT}, {sH}"); e(f"s_lshl_b32 {sT0}, {sUNIT}, 7")
        e("v_lshrrev_b32 v12, 3, v15"); e("v_mul_u32_u24 v4, 10240, v12"); e("v_and_b32 v12, 7, v15"); e("v_lshl_add_u32 v4, v12, 4, v4")
        e(f"v_add_u32 v4, {sT0}, v4")
        e(f"s_and_b32 {sT1}, {sUNIT}, 1"); e(f"s_lshl_b32 {sT1}, {sT1}, 2"); e(f"s_bfe_u32 {sMU}, {sUNIT}, 0x20001"); e(f"s_or_b32 {sT1}, {sT1}, {sMU}")
        e(f"s_andn2_b32 {sMU}, {sUNIT}, 7"); e(f"s_or_b32 {sT1}, {sT1}, {sMU}"); e(f"s_cmp_lt_u32 {sUNIT}, 64"); e(f"s_cselect_b32 {sMU}, {sT1}, {sUNIT}")
        e(f"s_lshl_b32 {sT0}, {sMU}, 7")
        e("v_lshrrev_b32 v12, 4, v15"); e("v_lshlrev_b32 v5, 6, v12"); e("v_and_b32 v12, 15, v15"); e("v_lshl_add_u32 v5, v12, 3, v5")
        e(f"v_add_u32 v5, {sT0}, v5"); e("v_and_b32 v12, 0x28, v15"); e("v_cmp_eq_u32 vcc, 0, v12"); e("v_mov_b32 v13, 0x7ff00000")
        e("v_cndmask_b32 v5, v13, v5, vcc")
        if OPT["probe"]=="c": e(f"s_lshl_b32 {sT1}, {sUNIT}, 3"); e(f"s_add_u32 {sT1}, {sT1}, 10240"); e(f"v_writelane_b32 v5, {sT1}, 32")
        e("v_lshrrev_b32 v12, 5, v15"); e("v_lshlrev_b32 v12, 2, v12"); e("v_and_b32 v13, 15, v15"); e("v_xor_b32 v12, v12, v13")
        e("v_lshlrev_b32 v6, 3, v12"); e("v_lshrrev_b32 v12, 4, v15"); e("v_lshl_add_u32 v6, v12, 7, v6")
        e(f"s_lshl_b32 {sT0}, {sW}, 10"); e(f"s_add_u32 {sT0}, {sT0}, {L_X}"); e(f"v_add_u32 v6, {sT0}, v6")
        e("v_bfe_u32 v12, v15, 3, 1"); e("v_lshlrev_b32 v7, 3, v12"); e("v_lshrrev_b32 v12, 4, v15"); e("v_lshl_add_u32 v7, v12, 1, v7")
        e("v_bfe_u32 v12, v15, 2, 1"); e("v_add_u32 v7, v7, v12"); e("v_bfe_u32 v12, v15, 1, 1"); e("v_lshlrev_b32 v12, 2, v12"); e("v_xor_b32 v7, v7, v12")
        e("v_lshlrev_b32 v7, 3, v7"); e("v_and_b32 v12, 3, v15"); e("v_lshl_add_u32 v7, v12, 7, v7"); e(f"v_add_u32 v7, {L_X}, v7")
        e("v_bfe_u32 v12, v15, 2, 2"); e("v_lshlrev_b32 v8, 7, v12"); e("v_and_b32 v12, 1, v15"); e("v_lshl_add_u32 v8, v12, 6, v8")
        e("v_lshrrev_b32 v12, 4, v15"); e("v_lshl_add_u32 v8, v12, 4, v8"); e(f"s_lshl_b32 {sT0}, {sW}, 9"); e(f"v_add_u32 v8, {sT0}, v8")
        if OPT["owx"]==2: e("v_and_b32 v12, 2, v15"); e("v_lshl_add_u32 v8, v12, 17, v8")
        if not OPT["owx"]: e(f"v_and_b32 v13, 0x1ff, v8"); e(f"v_add_u32 v13, {L_ROLE+512}, v13"); e("v_and_b32 v12, 2, v15"); e("v_cmp_eq_u32 vcc, 0, v12"); e("v_cndmask_b32 v8, v13, v8, vcc")
        e("v_lshlrev_b32 v9, 3, v15")
    def waddr():
        e("v_lshrrev_b32 v4, 4, v15"); e("v_lshlrev_b32 v4, 2, v4")
        e("v_and_b32 v5, 15, v15"); e("v_lshlrev_b32 v5, 2, v5")
        e(f"s_lshl_b32 {sT0}, {sH}, 8"); e(f"s_lshl_b32 {sT1}, {sW}, 6"); e(f"s_add_u32 {sT0}, {sT0}, {sT1}")
        e("v_lshl_add_u32 v1, v4, 13, v5"); e(f"v_add_u32 v1, {sT0}, v1")
        e("v_mul_u32_u24 v2, 1280, v4"); e("v_add_u32 v2, v2, v5")
        e(f"s_mul_i32 {sT0}, {sH}, {128*1280}"); e(f"s_add_u32 {sT0}, {sT0}, {sT1}"); e(f"v_add_u32 v2, {sT0}, v2")
        e("v_add_u32 v14, v2, v5"); e(f"v_add_u32 v14, {sT1}, v14")
        if "X" in OPT["ab"]:
            e("v_add_u32 v1, v1, v5"); e(f"s_and_b32 {sT0}, {sW}, 1"); e(f"s_mul_i32 {sT0}, {sT0}, {8192-64}"); e(f"v_add_u32 v1, {sT0}, v1")
            e(f"s_and_b32 {sT0}, {sW}, 1"); e(f"s_mul_i32 {sT0}, {sT0}, 1280"); e(f"v_add_u32 v14, {sT0}, v14"); e(f"v_add_u32 v2, {sT0}, v2")
        if OPT["stg"]:
            e("v_lshrrev_b32 v12, 4, v15"); e(f"s_lshl_b32 {sT0}, {sW}, 4"); e(f"v_add_u32 v1, {sT0}, v12"); e("v_lshlrev_b32 v1, 13, v1")
            e("v_and_b32 v13, 15, v15"); e("v_lshl_add_u32 v1, v13, 4, v1"); e(f"s_lshl_b32 {sT0}, {sH}, 8"); e(f"v_add_u32 v1, {sT0}, v1")
            e("v_lshlrev_b32 v13, 10, v12"); e("v_add_u32 v13, v13, v5"); e(f"v_add_u32 v13, {sT1}, v13")
        e(f"s_mul_i32 {sT0}, {sW}, {17*2048}"); e(f"s_add_u32 {sT0}, {sT0}, {L_W}"); e(f"v_add_u32 v3, {sT0}, v0")
        e(f"s_lshl_b32 {sT0}, {sH}, 2"); e(f"s_add_u32 {sT0}, {sT0}, {sW}"); e(f"s_lshl_b32 {sT0}, {sT0}, 14")
        e(f"s_add_u32 {sSW}, {sT0}, {SW_OFF}"); e(f"s_add_u32 {sSW2}, {sSW}, 4096"); e(f"s_add_u32 {sSW3}, {sSW}, 8192"); e(f"s_add_u32 {sSW4}, {sSW}, 12288")
        e("s_mov_b32 s10, %d"%(640*8192)); e("s_mov_b32 s11, 0x20000")
        if OPT["stg"]: e(f"s_lshl_b32 {sT1}, {sW}, 12")
    groups=[(m,k) for m in "qkv" for k in range(10)]+[("o",j,ko) for j in range(5) for ko in range(2)]
    LB=[16,32,48,240][:OPT["idepth"]+1]
    lbuf=lambda i: LB[i%len(LB)] if (len(LB)<4 or i<36) else LB[(0,1,2,0)[i-36]]
    base={"q":54,"k":56,"v":58,"o":60}
    cur=[None]
    STG=OPT["stg"]
    if STG:
        groups=groups[:30]+[("o2",c,ko) for c in range(2) for ko in range(4)]+[("o",4,ko) for ko in range(2)]
        base["o2"]=60
        assert all(TL[k]>=9 for k in TL if k[0]=="o") and all(TL[k]<9 for k in TL if k[0]!="o")
    NS=OPT["ns"]; SD=OPT["sd"]
    slot=lambda i: L_W+(i%NS)*17*2048+9*2048 if i%NS<4 else 0
    def issue(i):
        g=groups[i]; lb=lbuf(i)
        if cur[0]!=g[0]:
            e(f"s_mov_b32 s8, s{base[g[0]]}"); e(f"s_mov_b32 s9, s{base[g[0]]+1}"); cur[0]=g[0]
        if STG and i<30:
            for j in range(4):
                e(f"s_add_u32 m0, {sT1}, {slot(i)+1024*j}"); e(f"s_mov_b32 {sT0}, {(64*g[1]+4*j)*8192}")
                e(f"buffer_load_dwordx4 v1, {S_T}, {sT0} offen {OPT['wfl']} lds",f"w{i}")
            return
        if g[0]=="o2":
            for j in range(4):
                for x in range(2):
                    row=32*g[2]+16*(j>>1)+2*(j&1)+x
                    e(f"s_mov_b32 {sT0}, {row*1280+512*g[1]}")
                    e(f"buffer_load_dwordx2 {vr(lb+4*j+2*x,2)}, v14, {S_T}, {sT0} offen",f"w{i}")
            return
        for j in range(8):
            for x in range(2):
                row=64*g[-1]+32*(j>>2)+16*((j>>1)&1)+2*(j&1)+x
                if g[0]!="o": off=row*8192; vo="v1"
                elif g[1]<4: off=row*1280+512*(g[1]>>1)+4*(g[1]&1); vo="v14"
                else: off=row*1280+1024; vo="v2"
                e(f"s_mov_b32 {sT0}, {off}")
                e(f"buffer_load_dword v{lb+2*j+x}, {vo}, {S_T}, {sT0} offen",f"w{i}")
    tmp=[4,8]
    def put(key,lb,st=2,dx=1):
        src=lambda R: f"v{lb+st*(R>>1)+dx}, v{lb+st*(R>>1)}, {sPHI if R&1 else sPLO}"
        if key in TR and TR[key][0]=="v":
            for R in range(8): e(f"v_perm_b32 v{TR[key][1]+R}, {src(R)}")
            return
        for half in range(2):
            t=tmp[half]
            for R in range(4): e(f"v_perm_b32 v{t+R}, {src(4*half+R)}")
            if key in TR:
                for R in range(4): e(f"v_accvgpr_write_b32 a{TR[key][1]+4*half+R}, v{t+R}")
            elif key in TL:
                e(f"ds_write_b128 v3, {vr(t,4)} offset:{TL[key]*2048+half*1024}")
            else:
                sg,imm=sw_ref(TG[key])
                e(f"buffer_store_dwordx4 {vr(t,4)}, v0, {S_WS}, {sg} offen offset:{imm+half*1024} {OPT['swfl']}","st")
    def process(i):
        g=groups[i]; lb=lbuf(i)
        a.wait(vm=f"w{i}")
        if STG and i<30:
            lb=16
            e("s_barrier")
            if i+SD<30: issue(i+SD)
            elif i==30-SD: issue(30)
            elif i==31-SD: issue(31)
            e(f"v_add_u32 v12, {slot(i)}, v13")
            for j in range(8):
                row=32*(j>>2)+16*((j>>1)&1)+2*(j&1)
                e(f"ds_read2st64_b32 {vr(lb+2*j,2)}, v12 offset0:{row} offset1:{row+1}")
            e("s_waitcnt lgkmcnt(0)"); a.lg=[]
            if i==29: e("s_barrier")
        elif OPT["lock"] and not STG: e("s_barrier")
        for u in range(2):
            if g[0]=="o2": put(("o",8*g[1]+4*u+g[2]),lb+u,4,2)
            else: put((g[0],2*g[1]+u) if g[0]!="o" else ("o",4*g[1]+2*g[2]+u),lb+8*u)
    waddr(); e("s_waitcnt lgkmcnt(0)")
    issue(0); issue(1); q0=list(a.vm)
    lanes()
    e(f"s_mul_i32 {sT0}, {sH}, 10240"); e(f"s_add_u32 {sT0}, {sT0}, {P_OFF}"); e(f"s_lshl_b32 {sT1}, {sW}, 10")
    e(f"s_add_u32 {sP0}, {sT0}, {sT1}"); e(f"s_add_u32 {sP1}, {sP0}, 4096"); e(f"s_lshl_b32 {sT1}, {sW}, 9"); e(f"s_add_u32 {sP2}, {sT0}, {sT1}"); e(f"s_add_u32 {sP2}, {sP2}, 8192")
    for m in range(4): e(f"s_mov_b32 {sPR[m]}, {P_OFF+m*81920}")
    e(f"s_lshl_b32 {sT0}, {sH}, 13"); e(f"s_add_u32 {sKX}, {sT0}, {XK_OFF}"); e(f"s_add_u32 {sKX2}, {sKX}, 4096")
    e(f"s_lshl_b32 {sT1}, {sW}, 11"); e(f"s_add_u32 {sVX}, {sT0}, {XV_OFF}"); e(f"s_add_u32 {sVXN}, {sVX}, {32*8192}"); e(f"s_add_u32 {sVX}, {sVX}, {sT1}")
    e(f"s_add_u32 {sKXN}, {sKX}, {32*8192}")
    e(f"s_mul_i32 {sPC}, {sH}, {OPT['piece']}"); e(f"s_add_u32 {sMP}, {sPC}, {MEMP_OFF-10240}")
    c=(128**-0.5)*math.log2(math.e)
    import struct
    e(f"s_mov_b32 {sC}, 0x%08x"%struct.unpack("<I",struct.pack("<f",c))[0])
    e(f"s_mov_b32 s96, {sC}"); e(f"s_mov_b32 s97, {sC}")
    e("s_mov_b32 s98, 0x3f803f80"); e("s_mov_b32 s99, 0x3f803f80"); e("s_mov_b32 s100, 0x3f003f00"); e("s_mov_b32 s101, 0x3f003f00")
    e(f"s_lshl_b32 {sF1W}, {sW}, 7"); e(f"s_add_u32 {sF1W}, {sF1W}, {sH}"); e(f"s_add_u32 {sF1W}, {sF1W}, {F1_OFF}")
    e(f"s_cmp_lt_u32 {sW}, 2"); e(f"s_cselect_b32 {sT0}, 3, 2"); e(f"s_lshr_b32 {sT0}, {sH}, {sT0}"); e(f"s_and_b32 {sT0}, {sT0}, 3")
    e(f"s_lshl_b32 {sT1}, {sW}, 2"); e(f"s_add_u32 {sT0}, {sT0}, {sT1}"); e(f"s_lshl_b32 {sT0}, {sT0}, 7"); e(f"s_add_u32 {sF1R}, {sT0}, {F1_OFF}")
    e(f"s_mov_b32 {sFE}, 0xfffffffe")
    e("s_mov_b32 s44, 0x33333333"); e("s_mov_b32 s45, 0x33333333")
    e(f"s_lshl_b32 {sT0}, {sW}, 12"); e(f"s_add_u32 {sMR}, {sT0}, {M_OFF}")
    if OPT["probe"]=="b":
        e(f"s_and_b32 {sT0}, {sH}, {OPT['nrep']-1}"); e(f"s_lshl_b32 {sT0}, {sT0}, 8"); e(f"s_lshl_b32 {sT1}, {sW}, 5"); e(f"s_add_u32 {sT0}, {sT0}, {sT1}")
        e(f"s_add_u32 {sMF}, {sT0}, {FL_OFF}"); e(f"s_mov_b32 {sPAT}, 0")
    else:
        e(f"s_lshl_b32 {sT0}, {sW}, 8"); e(f"s_add_u32 {sMF}, {sT0}, {M_OFF+10240}")
    e(f"s_mov_b32 {sMW}, {M_OFF+16384}"); e(f"s_mov_b32 {sMZ}, {M_OFF+49152}")
    e(f"s_mov_b32 {sSTEP}, 0"); e(f"s_mov_b32 {sTAG}, 1"); e(f"s_mov_b32 {sTAGM}, -1"); e(f"s_mov_b32 {sCNT}, 0")
    e("v_mov_b64 v[56:57], 0"); e("v_mov_b64 v[58:59], 0"); e("v_mov_b64 v[60:61], -1")
    e(f"buffer_store_dwordx4 v[56:59], {vL16}, {S_WS}, {sP0} offen sc1"); e(f"buffer_store_dwordx4 v[56:59], {vL16}, {S_WS}, {sP1} offen sc1")
    e(f"buffer_store_dwordx2 v[56:57], {vL8}, {S_WS}, {sP2} offen sc1")
    e("s_mov_b64 exec, 1")
    for c in range(3): e(f"buffer_store_byte v56, v56, {S_WS}, {sF1W} offen offset:{512*c} sc1")
    e("s_mov_b64 exec, -1")
    e(f"s_cmp_ge_u32 {sUNIT}, 80"); e("s_cbranch_scc1 C_noM")
    e("s_mov_b32 s8, s62"); e("s_mov_b32 s9, s63"); e("s_mov_b32 s10, 10240")
    e(f"s_and_b32 {sT0}, {sMU}, 3"); e(f"s_mul_i32 {sT0}, {sT0}, 2560"); e(f"s_lshr_b32 {sT1}, {sMU}, 2"); e(f"s_lshl_b32 {sT1}, {sT1}, 6"); e(f"s_add_u32 {sT0}, {sT0}, {sT1}")
    e("v_bfe_u32 v12, v15, 4, 1"); e("v_mul_u32_u24 v12, 1280, v12"); e("v_and_b32 v13, 7, v15"); e("v_lshl_add_u32 v12, v13, 3, v12")
    e(f"buffer_load_dwordx2 v[62:63], v12, {S_T}, {sT0} offen")
    for k in range(1,4):
        e(f"s_mov_b32 {sT1}, {M_OFF+16384*k}"); e(f"buffer_store_dwordx2 v[60:61], {vRS}, {S_WS}, {sT1} offen sc1")
    e("s_waitcnt vmcnt(0)")
    e(f"v_min_u32 v62, {sFE}, v62")
    e(f"s_mov_b32 {sT1}, {M_OFF}"); e(f"buffer_store_dwordx2 v[62:63], {vRS}, {S_WS}, {sT1} offen sc1")
    a.label("C_noM")
    e("s_mov_b32 s8, s4"); e("s_mov_b32 s9, s5"); e("s_mov_b32 s10, 0")
    if OPT["probe"]=="b":
        e(f"s_cmp_eq_u32 {sW}, 3"); e("s_cbranch_scc1 C_noF")
        e(f"s_add_u32 s8, s4, {FL_OFF}"); e("s_addc_u32 s9, s5, 0"); e(f"s_mov_b32 s10, {OPT['nrep']*256}")
        e("v_lshlrev_b32 v12, 4, v0"); e("v_mov_b32 v13, 0")
        e(f"buffer_store_byte v13, v12, {S_T}, {sUNIT} offen sc1")
        a.label("C_noF")

    e(f"s_cmp_eq_u32 {sW}, 3"); e("s_cbranch_scc0 C_noZ")
    e(f"s_lshl_b32 {sT0}, {sH}, 10"); e(f"buffer_store_dwordx4 v[56:59], v0, {S_WS}, {sT0} offen sc1")
    e(f"s_add_u32 {sT0}, {sT0}, {OCNT4}"); e(f"buffer_store_dwordx4 v[56:59], v0, {S_WS}, {sT0} offen sc1")
    e("s_mov_b64 exec, 1"); e(f"s_lshl_b32 {sT0}, 1, {sXCC}"); e("v_mov_b32 v12, 8"); e(f"v_mov_b32 v13, {sT0}")
    e(f"global_atomic_or v12, v13, {sDBG}"); e("s_mov_b64 exec, -1")
    a.label("C_noZ"); a.vm=[]
    e("v_and_b32 v12, 15, v15"); e("v_and_b32 v52, 0xff, v0")
    for tab,neg in ((0,0),):
        for r,ent in enumerate([((0,2),(1,3)),((4,6),(5,7)),((2,None),(3,None)),((6,None),(7,None))]):
            e(f"v_mov_b32 v{48+r}, 0")
            for half,(pos,ng) in enumerate(ent):
                for row,val in ((pos,0x3f80),(ng if neg else None,0xbf80)):
                    if row is None: continue
                    e(f"v_mov_b32 v13, 0x{val<<(16*half):x}"); e(f"v_cmp_eq_u32 vcc, {row}, v12"); e(f"v_cndmask_b32 v{48+r}, v{48+r}, v13, vcc")
        e(f"ds_write_b128 v52, v[48:51] offset:{L_SEL+tab}")
        e("s_waitcnt lgkmcnt(0)")
    waddr(); a.vm=q0
    DD=OPT["idepth"]
    e("s_mov_b32 s8, s54"); e("s_mov_b32 s9, s55")
    if STG:
        for i in range(2,SD): issue(i)
        lbuf=lambda i: (32,48,16)[(i-30)%3]
    else:
        for i in range(2,DD): issue(i)
    for i in range(len(groups)):
        if STG:
            if 32<=i+2<len(groups): issue(i+2)
        elif i+DD<len(groups) and not (DD==3 and i==36): issue(i+DD)
        process(i)
        if DD==3 and i==36 and not STG: issue(39)
        if i==(2 if not STG else max(SD,3)-1):
            if not OPT["lock"]: e("s_barrier")
            e(f"s_cmp_eq_u32 {sW}, 3"); e("s_cbranch_scc0 C_noA")
            q=list(a.vm)
            e("s_mov_b64 exec, 1"); e("v_mov_b32 v4, 4"); e("v_mov_b32 v5, 1"); e(f"global_atomic_add v4, v5, {sDBG}"); e("s_mov_b64 exec, -1")
            a.label("C_noA"); a.vm=q
    a.wait(vm="all",lg="all")
    lanes()
    e("s_mov_b32 s8, s4"); e("s_mov_b32 s9, s5"); e("s_mov_b32 s10, 0")
    e(f"s_cmp_eq_u32 {sW}, 3"); e("s_cbranch_scc1 C_noF2")
    e(f"s_add_u32 s8, s4, {FL_OFF}"); e("s_addc_u32 s9, s5, 0"); e(f"s_mov_b32 s10, {OPT['nrep']*256}")
    a.label("C_noF2")

STAMPS=[]
OPT={"kvstride":32*8192,"d0":25,"d1":70,"d1b":90,"m1pos":0,"d2":0,"d3":0,"pf":1,"nosync":0,"stamps":[],"lock":1,"rl":20,"pub":1,"pipe":2,"probe":"b","owx":2,"fine":"","win":(4,60),"sweep":0,"swpfl":"","showinit":0,"vxe":0,"gq2":0,"vo":1,"one":1,"kxw":(2,3),"xo":1,"g9pre":1,"b1c":35,"g0p":0,"blind":0,"nanchk":1,"ns":4,"sd":3,"wfl":"","stg":1,"b4p":3,"nv":12,"rtail":0,"half":1,"kxb0":0,"pubp":6,"qs":0,"os":5,"b0w0":1,"pfw":0,"w2late":1,"b0":3,"rot":1,"al":(6,0),"gate":0,"swfl":"","wb":1,"warm":1,"nat":("p0","p2","p2"),"dbgout":0,"lastlds":2,"f1":0,"q1":16,"spec":0,"kvfl":"sc1","piece":320,"m1in":0,"pairw":0,"b4":0,"ststag":0,"g9in":0,"g1pv":1,"kxout":(11,1),"b1b":13,"g19":(2,4),"idepth":2,"prep":(13,14,15,17),"m1pre":0,"gq":(0,1),"stag":1,"kxp":(7,1),"pfp":13,"go1p":"exp","g18":(10,11),"unr":4,"goearly":1,"mpstride":10240,"pubfl":"sc1","pubpos":"qk","pfsplit":0,"kvmask":7,"kvchk":1,"pfwait":0,"pffl":"sc1","nrep":2,"np":5,"l1":(),"gfl":"","prepos":"early","percu":0,"at":40,"d4":0,"ab":"","pfpos":"qk"}
def delay(a,n):
    while n>0:
        k=min(n,16); a.e(f"s_nop {k-1}"); n-=k
def stamp(a,tim,name):
    if OPT["fine"] and not name.startswith(OPT["fine"]) and name!="b1": return
    if not OPT["fine"] and name[0]=="_": return
    if name not in STAMPS: STAMPS.append(name)
    if tim==3:
        i=STAMPS.index(name); assert i<19; a.e(f"s_memtime s[{54+2*i}:{55+2*i}]")
        if OPT["fine"]: a.lg+= [None,None]
        return
    if tim!=1 or name not in OPT["stamps"]: return
    i=OPT["stamps"].index(name)
    a.e("s_memtime s[70:71]"); a.e("s_waitcnt lgkmcnt(0)"); a.lg=[]
    a.e("s_sub_u32 s72, s70, s73"); a.e("s_mov_b32 s73, s70"); a.e(f"s_add_u32 s{76+i}, s{76+i}, s72")

def dma(a,n,soff,tag,first=0):
    fl=OPT["kvfl"] if tag=="kx" else "sc1"
    for i in range(first,first+n):
        a.e(f"buffer_load_dwordx4 {vL16}, {S_WS}, {soff} offen offset:{1024*i} {fl} lds",tag)

def chain_wave(a, w, st, pfx, tim=0):
    use_map(w)
    e=a.e; L=lambda s: f"{pfx}{w}_{s}"
    nd=[4,4,2,0][w]
    def chk(l):
        if OPT["nosync"] or (OPT["blind"] and l=="mr"): e("s_nop 0")
        else: e(f"s_cbranch_vccnz {L(l)}")
    def spin(c=None):
        if tim in(1,2) and c: e(f"s_add_u32 {c}, {c}, 1")
        e(f"s_add_u32 {sCNT}, {sCNT}, 1"); e(f"s_cmp_gt_u32 {sCNT}, 0x40000"); e("s_cbranch_scc1 L_abort")
    def aread(k,buf): e(f"ds_read_b128 {vr(buf,4)}, {vA} offset:{L_MEM+512*k}",f"A{k}")
    tg=lambda key: "t%s%d"%key
    def prestage():
        for p in range(2):
            if p in Q_SLOT: lload_tile(a,QSEQ[p],SLOT[QSEQ[p]][0],None)
    B0L=[(QSEQ[p],h) for p in GPOS for h in range(2)][:max(OPT["b0"]-1,0)]
    def b0loads():
        for k,h in B0L: gload_half(a,k,SLOT[k][0],tg(k),h)
    def zero_acc():
        for r in (QA,KA,VA): zero4(a,r)
    NREP=OPT["nrep"]
    def paddr(r):
        if OPT["probe"]=="b": e(f"v_bfe_u32 v{r}, {vL16}, 2, {4 if w==2 else 5}")
        elif OPT["probe"]=="c": e(f"v_and_b32 v{r}, {0x7f if w==2 else 0xff}, {vL8}")
        else:
            e(f"v_lshlrev_b32 v{r}, 2, {vL16}")
            if w==2: e(f"v_and_b32 v{r}, 0x7ff, v{r}")
    def probe(d,r,tag=None):
        e(f"buffer_load_dword v{d}, v{r}, {S_WS}, {sMR if OPT['probe']=='d' else sMF} offen sc1",tag)
    def pcmp(d):
        if OPT["probe"]=="b": e(f"v_cmp_ne_u32 vcc, {sPAT}, v{d}")
        else: e(f"v_cmp_eq_u32 vcc, -1, v{d}")
    def mfetch():
        paddr(T1); probe(T1,T1,"pr")
        dma(a,nd,sMR,"dma")
    if w==3: e(f"s_cmp_eq_u32 {sH}, 0"); e(f"s_cselect_b32 {sALL}, 0, 1")
    if tim in(1,2):
        e("s_memtime s[70:71]"); e("s_waitcnt lgkmcnt(0)"); e("s_mov_b32 s73, s70"); e("s_mov_b32 s74, s70")
        for i in range(11): e(f"s_mov_b32 s{76+i}, 0")
    if OPT["warm"]:
        e(f"v_lshlrev_b32 v{T1}, 3, {vL16}")
        if w<3:
            for k in range(4): e(f"s_mov_b32 {sT0}, {M_OFF+16384*k}"); e(f"buffer_load_dwordx2 v[12:13], {vRS}, {S_WS}, {sT0} offen sc1")
            e(f"buffer_load_dword v14, v{T1}, {S_WS}, {sP0} offen sc1") if w==0 else None
        else:
            e(f"s_sub_u32 {sT0}, {sVXN}, {32*8192}"); e(f"buffer_load_dword v14, v{T1}, {S_WS}, {sT0} offen sc1")
    if tim==5 and w==0:
        e("s_memrealtime s[70:71]"); e("s_waitcnt lgkmcnt(0)")
        e(f"s_lshl_b32 s72, {sH}, 8"); e(f"s_add_u32 s72, s72, {DBG_OFF+0x40000}")
        e(f"v_mov_b32 v{T0}, s70"); e(f"v_lshlrev_b32 v{T1}, 24, {vL16}")
        e(f"buffer_store_dword v{T0}, v{T1}, {S_WS}, s72 offen")
    if OPT["gate"] and w==0:
        e(f"v_mov_b32 v{T0}, 0x7f"); e(f"v_lshlrev_b32 v{T1}, 24, {vL16}")
        e(f"buffer_store_byte v{T0}, v{T1}, {S_WS}, {sF1W} offen {st}")
        e(f"v_bfe_u32 v{T1}, {vL16}, 2, 5"); e(f"s_mov_b32 {sT0}, {F1_OFF}"); e(f"s_mov_b32 {sT1}, 0x7f7f7f7f")
        a.label(L("gate"))
        e(f"buffer_load_dword v{T0}, v{T1}, {S_WS}, {sT0} offen sc1"); spin(); e("s_waitcnt vmcnt(0)")
        e(f"v_cmp_ne_u32 vcc, {sT1}, v{T0}"); e(f"s_cbranch_vccz {L('gated')}"); e("s_sleep 2"); e(f"s_branch {L('gate')}")
        a.label(L("gated"))
    a.label(L("rec"))
    e("s_waitcnt vmcnt(0) lgkmcnt(0)"); a.vm=[]; a.lg=[]
    spin("s84")
    e("s_barrier")
    prestage()
    if OPT["kxout"] and w in(0,3):
        e(f"s_mov_b32 m0, {L_KX+(4096 if w else 0)}"); dma(a,4,sKX2 if w else sKX,"kx")
    if w<3: e(f"s_mov_b32 m0, {4096*w}")
    if w==0 or (w<3 and OPT["m1pre"]): dma(a,nd,sMR,"dma")
    if OPT["b0"] and (w==1 or (w==2 and not OPT["w2late"])): mfetch()
    if w or OPT["b0w0"]: b0loads()
    zero_acc()
    e("s_waitcnt vmcnt(0) lgkmcnt(0)"); a.vm=[]; a.lg=[]
    top_vm={0:[],1:["rs","fl","mz"],2:["rs","fl","mz"],3:[]}[w]
    if OPT["m1pre"] and w in(1,2): top_vm=["dma"]*nd
    if OPT["b0"] and (w==1 or (w==2 and not OPT["w2late"])): top_vm=top_vm+["pr"]+["dma"]*nd
    if w or OPT["b0w0"]: top_vm=top_vm+[tg(k) for k,h in B0L]
    if OPT["kxb0"] and w==3: top_vm=top_vm+["kx"]*8
    if OPT["pub"] and OPT["pubpos"]=="hop" and w==3: top_vm=["pub"]
    a.vm=list(top_vm)
    if OPT["al"]:
        e(f"s_branch HZ_{L('top')}"); a.ins.append(Ins(f".p2align {OPT['al'][0]}"))
        for i in range(OPT["al"][1]): a.ins.append(Ins("s_nop 0"))
    if OPT["rot"] and w==0:
        a.label(L("pretop")); e(f"s_waitcnt vmcnt({len(top_vm)+2*OPT['half']})")
        if OPT["half"]: a.vm=["dmb","dmb"]+a.vm
    a.label("HZ_"+L("top"))
    e("s_barrier")
    for k in range(4): aread(k,AB[k])
    if w==2 and OPT["b0"] and OPT["w2late"]: mfetch()
    if w in(1,2) and not OPT["m1pre"] and not OPT["b0"]:
        if OPT["m1in"]: paddr(T1); probe(T1,T1,"pr")
        else: mfetch()
    stamp(a,tim,"b1")
    def slow_ops(where):
        if w==OPT["pfw"] and OPT['pf'] and OPT["pfpos"]==where:
            tr=T1 if w==3 else 4*0+T0
            e(f"v_lshlrev_b32 v{tr}, 3, {vL16}"); e(f"s_mov_b32 m0, {L_ROLE}")
            e(f"buffer_load_dword v{tr}, {S_WS}, {sKXN} offen {OPT['pffl']} lds","pf")
            e(f"buffer_load_dword v{tr}, {S_WS}, {sVXN} offen {OPT['pffl']} lds","pf")
            if w in(1,2): e(f"s_mov_b32 m0, {4096*w}")
        if w!=3: return
        if OPT["pub"] and OPT["pubpos"]==where:
            e(f"buffer_store_dwordx2 v[4:5], {vL8}, {S_T}, {sMP} offen {OPT['pubfl']}","pub")
            e("s_mov_b32 s10, 0")
    ACC={"q":QA,"k":KA,"v":VA}
    def nxt(seq,tab,p):
        later=[x for x in sorted(tab) if x>p and tab[x][0]==tab[p][0]]
        return later[0] if later else None
    def qkv(key,buf,p=None):
        if key in TG: a.wait(vm=tg(key))
        elif key in TL and p>1: a.wait(lg=tg(key))
        sm(a,ACC[key[0]],buf,key,SLOT.get(key,(0,))[0])
        if p in Q_SLOT:
            n=nxt(QSEQ,Q_SLOT,p)
            if n is not None and Q_SLOT[n][1]=="L": lload_tile(a,QSEQ[n],Q_SLOT[n][0],tg(QSEQ[n]))
    kxw = w in(0,3)
    def kxread(kt,ke,dst): e(f"ds_read_b128 {vr(dst,4)}, {vL16} offset:{L_KX+1024*(4*kt+ke)}",f"K{kt}{ke}")
    cvt=lambda d,x,y: e(f"v_cvt_pk_bf16_f32 v{d}, v{x}, v{y}")
    gs=[(QSEQ[p],h) for p in GPOS for h in range(2)]
    seen=set(); read=set(range(4)); NQ=len(QSEQ); NV=OPT["nv"]
    for p,key in enumerate(QSEQ):
        m,k=key; b=AB[k%4]
        if p==OPT["b1b"]:
            stamp(a,tim,"k2")
            if w==2 and OPT["w2late"] and OPT["b1c"]: chk("mr"); a.label(L("mok"))
            elif w in(1,2) and not OPT["m1pre"]: chk("mr"); a.wait(vm="dma"); a.label(L("mok"))
            elif w in(1,2): a.wait(vm="dma")
            e("s_barrier"); stamp(a,tim,"b1b")
            for kk in range(8,k+4):
                if kk not in read: aread(kk,AB[kk%4]); read.add(kk)
        if k not in seen:
            if OPT["pairw"] and k>=10 and k%2==0 and k+1 in read: a.wait(lg=f"A{k+1}"); seen.add(k+1)
            else: a.wait(lg=f"A{k}")
            seen.add(k)
        qkv(key,b,p)
        if p==2 and OPT["half"]:
            if w==0: a.wait(vm="dmb")
            e("s_barrier")
        last=all(x[1]!=k for x in QSEQ[p+1:])
        if last and k+4<20 and (k+4<8 or p>=OPT["b1b"]) and k+4 not in read: aread(k+4,b); read.add(k+4)
        if not OPT['nanchk'] and p==1: a.wait(lg="A3"); e(f"v_max3_u32 v{T0}, v{AB[0]}, v{AB[1]}, v{AB[2]}")
        if p==2: e(f"v_max_u32 v{T0}, v{T0}, v{AB[3]}") if False else None
        if not OPT['nanchk'] and p==3: e(f"v_max_u32 v{T0}, v{T0}, v{AB[3]}")
        if not OPT['nanchk'] and p==4: e(f"v_cmp_eq_u32 vcc, -1, v{T0}")
        if not OPT['nanchk'] and p==6: chk("rec")
        if not OPT['nanchk'] and m=="q" and k==4: e(f"v_mov_b32 v{T0}, v{b}")
        if not OPT['nanchk'] and m=="q" and 5<=k<=17:
            if OPT["pairw"] and k>=10:
                if k%2==0: e(f"v_max3_u32 v{T0}, v{T0}, v{b}, v{AB[(k+1)%4]}")
            else: e(f"v_max_u32 v{T0}, v{T0}, v{b}")
        m1=OPT["m1in"] and w in(1,2) and not OPT["m1pre"]
        if m1 and p<nd: dma(a,1,sMR,"dma",p)
        for j,(gk,h) in enumerate(gs):
            if (w or OPT["b0w0"]) and j<OPT["b0"]-1: continue
            if OPT["gq2"]:
                if p==(j-2)//2: gload_half(a,gk,SLOT[gk][0],tg(gk),h)
                continue
            if p==(OPT["gq"][0]+OPT["gq"][1]*j if not m1 else max(OPT["gq"][0]+OPT["gq"][1]*j,nd+j)): gload_half(a,gk,SLOT[gk][0],tg(gk),h)
        if not OPT["kxout"]:
            if kxw and p==OPT["kxp"][0]-1: e(f"s_mov_b32 m0, {L_KX+(4096 if w else 0)}")
            for j in range(4):
                if kxw and p==OPT["kxp"][0]+OPT["kxp"][1]*j: dma(a,1,sKX2 if w else sKX,"kx",j)
        if p==OPT["pfp"]: slow_ops("qk")
        if p==OPT["pubp"]: slow_ops("qk2")
        if p==OPT["b1b"]-2 and w in(1,2) and not OPT["m1pre"]: a.wait(vm="pr"); pcmp(T1)
        if p==OPT["b1c"] and OPT["w2late"] and OPT["b1c"]:
            if w==2: a.wait(vm="dma")
            if w==3: a.wait(vm="kx")
            e("s_barrier")
        if p==44: stamp(a,tim,"k7")
        if p%3==2: stamp(a,tim,f"_q{p}")
        if p==46 and not OPT["kxout"]: a.wait(vm="kx"); e("s_barrier")
        if p==NQ-5: kxread(0,0,SL3); kxread(1,0,SL3+4)
        if p==NQ-4 and not OPT["nanchk"]: a.wait(lg="A19"); seen.add(19); e(f"v_max3_u32 v{T0}, v{T0}, v{AB[2]}, v{AB[3]}")
        if p==NQ-3 and not OPT["nanchk"]: e(f"v_cmp_eq_u32 vcc, -1, v{T0}")
        if p==NQ-3: kxread(0,1,SL2); kxread(1,1,SL2+4)
        if p==NQ-1 and not OPT["nanchk"]: chk("rec")
        if p==NQ-1 and OPT["nanchk"]: e(f"v_cmp_u_f32 vcc, v{QA}, v{QA+2}")
    stamp(a,tim,"qk")
    slow_ops("qkend")
    if w==3 and OPT["pub"] and OPT["pubpos"]=="lds":
        e(f"v_add_u32 v{T1}, {sPC}, {vL8}"); e(f"ds_read_b64 v[4:5], v{T1} offset:{L_MEM}","pl")
    RR=list(range(NV,16))
    def vre(i,buf):
        if i<len(RR): aread(RR[i],buf)
    def vdo(i,buf):
        if i<len(RR): a.wait(lg=f"A{RR[i]}"); qkv(("v",RR[i]),buf)
    cvt(QA,QA,QA+2); cvt(QA+2,QA+1,QA+3)
    qkv(("v",16),AB[0]); vre(0,AB[0])
    qkv(("v",17),AB[1]); vre(1,AB[1])
    if OPT["nanchk"]: chk("scan"); a.label(L("scanned"))
    cvt(QA+1,KA,KA+2); cvt(QA+3,KA+1,KA+3)
    e(f"ds_write_b64 {vXW}, {vr(QA,2)}","xw"); e(f"ds_write_b64 {vXW}, {vr(QA+2,2)} offset:512","xw")
    qkv(("v",18),AB[2]); vre(2,AB[2])
    qkv(("v",19),AB[3]); vre(3,AB[3])
    vdo(0,AB[0]); vdo(1,AB[1])
    if w==3 and OPT["pub"] and OPT["lastlds"]:
        e(f"s_cmp_ge_u32 {sSTEP}, {NSEG-1-OPT['lastlds']}"); e(f"s_cbranch_scc1 {L('pub62')}"); a.label(L("pub62b"))
    if False:
        e(f"s_add_u32 {sMP}, {sMP}, 10240"); e(f"s_add_u32 s10, {sMP}, {OPT['piece']}")
        e(f"buffer_store_dwordx2 v[4:5], {vL8}, {S_T}, {sMP} offen {OPT['pubfl']}","pub")
    stamp(a,tim,"_s0"); a.wait(lg="xw"); stamp(a,tim,"_s1"); e("s_barrier"); stamp(a,tim,"b2"); stamp(a,tim,"_s2")
    G1=min(n for n,v in O_SLOT.items() if v==(SL1,"G"))
    X=[28,32,40,44]
    S0,S1,SM=AB[0],AB[2],AB[1]
    def mf(d,A,B,first,op="v_mfma_f32_16x16x32_bf16",n=4):
        e(f"{op} {vr(d,4)}, {vr(A,n)}, {vr(B,n)}, {'0' if first else vr(d,4)}")
    VM=VA; VX=SL3; P=SL2; PM=SL2+4
    def xr(ke):
        for x in range(2): e(f"ds_read_b64_tr_b16 {vr(X[ke]+2*x,2)}, {vXR} offset:{1024*ke+512*x}",f"X{ke}")
    xr(0); vdo(2,AB[2]); xr(1); vdo(3,AB[3]); vre(4,AB[3])
    a.wait(lg="X0"); mf(S0,SL3,X[0],1); xr(2); mf(S1,SL3+4,X[0],1)
    kxread(0,2,SL3); kxread(1,2,SL3+4)
    a.wait(lg="X1"); mf(S0,SL2,X[1],0); xr(3); mf(S1,SL2+4,X[1],0)
    kxread(0,3,SL2); kxread(1,3,SL2+4)
    vdo(4,AB[3]); vre(5,AB[3])
    ONE=AB[3] if OPT["one"] else S0
    mf(SM,X[0],X[0],1)
    if OPT["one"] and len(RR)<6: e(f"v_mov_b64 {vr(ONE,2)}, {sONE}"); e(f"v_mov_b64 {vr(ONE+2,2)}, {sONE}")
    mf(SM,X[1],X[1],0)
    vdo(5,AB[3])
    if OPT["one"] and len(RR)==6: e(f"v_mov_b64 {vr(ONE,2)}, {sONE}"); e(f"v_mov_b64 {vr(ONE+2,2)}, {sONE}")
    stamp(a,tim,"_s6"); a.wait(lg="K12"); stamp(a,tim,"_s7"); mf(S0,SL3,X[2],0); mf(S1,SL3+4,X[2],0)
    e(f"buffer_load_dwordx4 {vr(VX,4)}, {vL16}, {S_WS}, {sVX} offen {OPT['kvfl']}","vx")
    cvt(VM,VM,VM+2)
    stamp(a,tim,"_s8"); a.wait(lg="K13"); stamp(a,tim,"_s9"); mf(S0,SL2,X[3],0); cvt(VM+1,VM+1,VM+3); mf(S1,SL2+4,X[3],0)
    if not OPT["vxe"]: e(f"buffer_load_dwordx4 {vr(VX+4,4)}, {vL16}, {S_WS}, {sVX} offen offset:1024 {OPT['kvfl']}","vx")
    mf(SM,X[2],X[2],0)
    if OPT["g0p"]==1: gload_half(a,("o",0),28,"go0",0)
    e(f"v_mov_b32 v{PM+1}, 0"); e(f"v_mov_b32 v{PM+2}, 0")
    mf(SM,X[3],X[3],0)
    if OPT["g0p"]==1: gload_half(a,("o",0),28,"go0",1)
    e(f"v_max3_f32 v{T1}, v{S0}, v{S0+1}, v{S0+2}")
    e(f"v_max3_f32 v{T0}, v{S0+3}, v{S1}, v{S1+1}")
    e(f"v_max3_f32 v{T1}, v{T1}, v{S1+2}, v{S1+3}")
    stamp(a,tim,"scores"); stamp(a,tim,"_sa")
    e(f"v_max_f32 v{T1}, v{T1}, v{T0}")
    if OPT["g0p"]==0: gload_half(a,("o",0),28,"go0",0)
    e(f"v_max3_f32 v{T0}, v{T1}, v{SM+2}, v{SM+3}"); e(f"v_max3_f32 v{T1}, v{T1}, v{SM+2}, v{SM+3}")
    e(f"v_permlane32_swap_b32 v{T0}, v{T1}")
    e(f"v_max_f32 v{SM}, v{T0}, v{T1}"); e(f"v_max_f32 v{T0}, v{T0}, v{T1}")
    if OPT["g0p"]==0: gload_half(a,("o",0),28,"go0",1)
    e(f"v_permlane16_swap_b32 v{T0}, v{SM}")
    e(f"v_max_f32 v{T0}, v{T0}, v{SM}")
    e(f"v_mul_f32 v{T0}, {sC}, v{T0}")
    stamp(a,tim,"max"); stamp(a,tim,"_sb")
    ev=[S0,S0+1,S0+2,S0+3,S1,S1+1,S1+2,S1+3,SM+2,SM+3]
    for r in ev[::2]:
        e(f"v_pk_fma_f32 {vr(r,2)}, {vr(r,2)}, {sCC}, {vr(T0,2)} op_sel_hi:[1,1,0] neg_lo:[0,0,1] neg_hi:[0,0,1]")
    for i,r in enumerate(ev[:8]):
        e(f"v_exp_f32 v{r}, v{r}")
        if i in(1,6) and not OPT["g1pv"]: gload_half(a,("o",G1),SL1,f"go{G1}",i//6)
        if i in(2,4,6): cvt(P+i//2-1,ev[i-2],ev[i-1])
        if i==4 and not OPT["one"]: e(f"v_mov_b64 {vr(S0,2)}, {sONE}")
        if i==6 and not OPT["one"]: e(f"v_mov_b64 {vr(S0+2,2)}, {sONE}")
    e(f"v_exp_f32 v{ev[8]}, v{ev[8]}"); cvt(P+3,ev[6],ev[7])
    e(f"v_exp_f32 v{ev[9]}, v{ev[9]}")
    O=[AB[3],S0] if OPT['one'] else [S0,AB[3]]
    VX1=VX+4
    if OPT['vxe']: O=[S0,SL3+4]; VX1=AB[3]
    stamp(a,tim,"exp"); stamp(a,tim,"_p0")
    mf(S1,ONE,P,1)
    cvt(PM,ev[8],ev[9]); cvt(PM+3,ev[8],ev[9])
    stamp(a,tim,"_p1"); a.wait(vm="vx1" if OPT["vxe"] else "vx"); stamp(a,tim,"_p2")
    mf(O[1],VX1,P,1)
    if OPT["g1pv"]: gload_half(a,("o",G1),SL1,f"go{G1}",0)
    mf(S1,ONE,PM,0,"v_mfma_f32_16x16x16_bf16",2)
    if OPT["g1pv"]: gload_half(a,("o",G1),SL1,f"go{G1}",1)
    if OPT["vxe"]: a.wait(vm="vx")
    mf(O[0],VX,P,1)
    if not OPT["vxe"]: lload_tile(a,("o",2),SL3,"lo2")
    mf(O[1],VM,PM+2,0,"v_mfma_f32_16x16x16_bf16",2)
    if OPT["g0p"]==2: gload_tile(a,("o",0),28,"go0")
    e(f"v_rcp_f32 v{T0}, v{S1}")
    mf(O[0],VM,PM,0,"v_mfma_f32_16x16x16_bf16",2)
    ks=OPT["kvstride"]
    e(f"s_add_u32 {sSTEP}, {sSTEP}, 1"); e(f"s_add_u32 {sVX}, {sVX}, {ks}")
    if w==0: e("s_mov_b32 m0, 0")
    e(f"s_add_u32 {sKX2}, {sKX2}, {ks}"); e(f"s_add_u32 {sKX}, {sKX}, {ks}")
    if w==OPT["pfw"]: e(f"s_add_u32 {sKXN}, {sKXN}, {ks}"); e(f"s_add_u32 {sVXN}, {sVXN}, {ks}")
    PK=P
    stamp(a,tim,"_p7")
    for i in range(0,4,2): e(f"v_pk_mul_f32 {vr(O[1]+i,2)}, {vr(O[1]+i,2)}, {vr(T0,2)} op_sel_hi:[1,0]")
    for i in range(0,4,2):
        e(f"v_pk_mul_f32 {vr(O[0]+i,2)}, {vr(O[0]+i,2)}, {vr(T0,2)} op_sel_hi:[1,0]")
        for k in range(2): cvt(PK+i+k,O[0]+i+k,O[1]+i+k)
    if OPT["owx"]==1: e(f"s_mov_b64 exec, {sEX}")
    e(f"ds_write_b128 {vOW}, {vr(PK,4)}","ow")
    if OPT["owx"]==1: e("s_mov_b64 exec, -1")
    stamp(a,tim,"_p8")
    if OPT["vxe"]: lload_tile(a,("o",2),SL3,"lo2")
    G2=[n for n,v in O_SLOT.items() if v==(SL2,"G")][0]
    ZA,XA,YA=36,28,32
    zero4(a,ZA)
    slow_ops("opack")
    stamp(a,tim,"opack")
    a.wait(lg="ow")
    if OPT["g9pre"]: gload_tile(a,("o",G2),SL2,f"go{G2}")
    stamp(a,tim,"_p9"); e("s_barrier"); stamp(a,tim,"b3"); stamp(a,tim,"_pa")
    for k in range(4): e(f"ds_read_b128 {vr(AB[k],4)}, {vA} offset:{L_MEM+512*k}",f"ao{k}")
    F2=min(n for n,v in O_SLOT.items() if v[0]==SL2)
    if F2!=G2: lload_tile(a,("o",F2),SL2,f"lo{F2}")
    elif not OPT["g9in"] and not OPT["g9pre"]: gload_tile(a,("o",G2),SL2,f"go{G2}")
    RL=[SL2,SL2+4,SL3,SL3+4]
    def red_loads():
        for m in range(4): e(f"buffer_load_dwordx4 {vr(RL[m],4)}, {vRL}, {S_WS}, {sPR[m]} offen sc1",f"r{m}")
    z=lambda r: [f"v_mov_b64 {vr(r,2)}, 0",f"v_mov_b64 {vr(r+2,2)}, 0"]
    cv=lambda d,x,y: f"v_cvt_pk_bf16_f32 v{d}, v{x}, v{y}"
    tagop=lambda r: f"v_and_or_b32 v{r}, v{r}, -2, {sTAG}"
    PACC=[ZA,XA,YA,ZA,XA]
    post={n:[] for n in range(21)}
    post[1]+=z(XA)[:1]; post[2]+=z(XA)[1:]; post[3]+=z(YA)[:1]; post[4]+=z(YA)[1:]
    post[5]+=[cv(ZA,ZA,ZA+1)]; post[6]+=[cv(ZA+1,ZA+2,ZA+3)]; post[7]+=[tagop(ZA)]
    sg=OPT["ststag"]*(w>>1)
    post[9]+=[cv(ZA+2,XA,XA+1),cv(ZA+3,XA+2,XA+3)]
    post[9+sg]+=[(f"buffer_store_dwordx4 {vr(ZA,4)}, {vL16}, {S_WS}, {sP0} offen {st}","p0")]
    post[10+sg]+=z(ZA); post[12]+=z(XA)[:1]; post[13]+=z(XA)[1:]
    post[13]+=[cv(YA,YA,YA+1)]; post[14]+=[cv(YA+1,YA+2,YA+3)]; post[15]+=[tagop(YA)]
    post[17]+=[cv(YA+2,ZA,ZA+1),cv(YA+3,ZA+2,ZA+3)]
    post[17+sg]+=[(f"buffer_store_dwordx4 {vr(YA,4)}, {vL16}, {S_WS}, {sP1} offen {st}","p1")]
    post[20]+=[cv(XA,XA,XA+1),cv(XA+1,XA+2,XA+3),tagop(XA),(f"buffer_store_dwordx2 {vr(XA,2)}, {vL8}, {S_WS}, {sP2} offen {st}","p2")]
    def flag(c): return [(f"buffer_store_byte v{T0}, v{T1}, {S_WS}, {sF1W} offen offset:{512*c} {st}",f"f{c}")]
    if OPT["f1"]:
        post[0]+=[f"v_mov_b32 v{T0}, {sSTEP}"]; post[8]+=[f"v_lshlrev_b32 v{T1}, 24, {vL16}"]
        post[10+sg]=flag(0)+post[10+sg]; post[18+sg]=flag(1)+post[18+sg]; post[20]+=flag(2)
    def emit(l):
        for x in l:
            if isinstance(x,tuple): e(x[0],x[1])
            else: e(x)
    def probe1(d,r): e(f"buffer_load_dword v{d}, v{r}, {S_WS}, {sF1R} offen sc1","q1")
    for n in range(20):
        ko=n&3; key=("o",n)
        if n<4: a.wait(lg=f"ao{ko}")
        if n<2: stamp(a,tim,f"_pb{n}")
        if key in TL: a.wait(lg=f"lo{n}")
        elif key in TG: a.wait(vm=f"go{n}")
        sm(a,PACC[n>>2],AB[ko],key,SLOT.get(key,(0,))[0])
        if n in O_SLOT:
            m=nxt(None,O_SLOT,n)
            if m is not None and O_SLOT[m][1]=="L": lload_tile(a,("o",m),O_SLOT[m][0],f"lo{m}")
        if F2!=G2 and n in OPT["g18"]: gload_half(a,("o",G2),SL2,f"go{G2}",OPT["g18"].index(n))
        if OPT["g9in"] and n<2: gload_half(a,("o",G2),SL2,f"go{G2}",n)
        if n in OPT["g19"]: gload_half(a,("o",19),SL1,"go19",OPT["g19"].index(n))
        if OPT["kxout"] and w in OPT["kxw"] and not OPT["kxb0"]:
            ko_=OPT["kxout"]; nk=8//len(OPT["kxw"]); f0=nk*OPT["kxw"].index(w)
            if n==ko_[0]-1: e(f"s_mov_b32 m0, {L_KX+4096*(f0//4)}")
            for j in range(nk):
                if n==ko_[0]+ko_[1]*j: dma(a,1,sKX2 if f0>=4 else sKX,"kx",f0%4+j)
            if w<3 and n==ko_[0]+ko_[1]*(nk-1)+1: e(f"s_mov_b32 m0, {4096*w}")
        if n==OPT["b4p"] and OPT["b4"]: e("s_barrier")
        if w==0 and n==OPT["rl"]: red_loads()
        if n in(13,): stamp(a,tim,f"o{n}")
        if n>=2: stamp(a,tim,f"_o{n}")
        if OPT["f1"] and w==0 and n==OPT["q1"]:
            e(f"v_bfe_u32 v{SL2}, {vL16}, 2, 5"); e(f"s_add_u32 {sT1}, {sPAT}, 0x01010101"); probe1(SL2,SL2)
        if n==19 and w<3:
            e(f"v_and_b32 v16, 0xff, {vL16}")
            e(f"ds_read_b128 v[12:15], v16 offset:{L_SEL}","sel")
        emit(post[n])
    emit(post[20])
    if w==0 and OPT["rl"]==20.5: red_loads()
    stamp(a,tim,"out")
    def slots():
        e(f"s_add_u32 {sMR}, {sMW}, {4096*w}")
        if w<3 and OPT["probe"]=="c": e(f"s_add_u32 {sMF}, {sMW}, {10240+256*w}")
        if w<3 and OPT["probe"]=="b": e(f"s_add_u32 {sPAT}, {sPAT}, 0x01010101")
        for r in (sMW,sMZ):
            e(f"s_add_u32 {r}, {r}, 16384"); e(f"s_and_b32 {r}, {r}, 0xffff"); e(f"s_or_b32 {r}, {r}, {M_OFF}")
        e(f"s_xor_b32 {sTAG}, {sTAG}, 1"); e(f"s_not_b32 {sTAGM}, {sTAGM}")
    if w<3 and OPT["f1"]:
        if w==2: e(f"s_cmp_ge_u32 {sUNIT}, 80"); e(f"s_cbranch_scc1 {L('nored0')}")
        e(f"v_bfe_u32 v23, {vL16}, 2, 5")
        if w==0:
            a.wait(vm="q1"); e(f"v_cmp_ne_u32 vcc, {sT1}, v{SL2}")
            e(f"v_mov_b32 v20, {sSTEP}"); e(f"v_lshlrev_b32 v21, 4, {vL16}"); e("v_mov_b32 v22, -1")
            e(f"s_cbranch_vccz {L('f1ok')}")
        else:
            e(f"s_add_u32 {sT1}, {sPAT}, 0x01010101")
            e(f"v_mov_b32 v20, {sSTEP}"); e(f"v_lshlrev_b32 v21, 4, {vL16}"); e("v_mov_b32 v22, -1")
            delay(a,OPT['d1'] if w==1 else OPT['d1b'])
        probe1(T0,23); delay(a,OPT["d4"]); probe1(T0,23)
        a.label(L("f1"))
        for u in range(2):
            e("s_waitcnt vmcnt(1)"); e(f"v_cmp_ne_u32 vcc, {sT1}, v{T0}"); probe1(T0,23)
            if OPT["nosync"]: e(f"s_branch {L('f1ok')}")
            else: e(f"s_cbranch_vccz {L('f1ok')}")
        spin(); e(f"s_branch {L('f1')}")
        a.label(L("f1ok")); a.vm=[]
        red_loads()
        zero_acc()
        a.wait(lg="all")
    if w<3 and not OPT["f1"] and OPT["nat"]:
        e(f"v_mov_b32 v20, {sSTEP}"); e(f"v_lshlrev_b32 v21, 4, {vL16}"); e("v_mov_b32 v22, -1")
        if w<2: zero_acc()
        if w==0: paddr(23)
        if w==0 and 0 in Q_SLOT: lload_tile(a,QSEQ[0],SL1,None)
        a.wait(lg="all")
        if OPT["nat"][w]: a.wait(vm=OPT["nat"][w])
        if w==2:
            zero_acc()
            e(f"s_cmp_ge_u32 {sUNIT}, 80"); e(f"s_cbranch_scc1 {L('nored')}")
        if not (w==0 and OPT["rl"]<=20.5 and OPT["rl"]!=20): red_loads()
    elif w<3 and not OPT["f1"]:
        a.wait(lg="all")
        if w==0 and OPT["rl"]>19: delay(a,OPT['d0']); red_loads()
        e(f"v_mov_b32 v20, {sSTEP}"); e(f"v_lshlrev_b32 v21, 4, {vL16}"); e("v_mov_b32 v22, -1")
        zero_acc()
        if w==1: delay(a,OPT['d1']); red_loads()
        if w==2:
            delay(a,OPT['d1b'])
            e(f"s_cmp_ge_u32 {sUNIT}, 80"); e(f"s_cbranch_scc1 {L('nored')}")
            red_loads()
    if w<3:
        stamp(a,tim,"rlis")
        a.label(L("red"))
        for m in range(4):
            a.wait(vm=f"r{m}")
            if m==3 and not OPT["rtail"]:
                e(f"v_bitop3_b32 v{T1}, v{RL[2]}, v{RL[3]}, {sTAGM} bitop3:0x7e")
                e(f"v_bitop3_b32 v{T0}, v{T0}, v{T1}, 1 bitop3:0xa8")
                e(f"v_cmp_ne_u32 vcc, 0, v{T0}")
            mf(16,12,RL[m],m==0)
            if m==1: e(f"v_bitop3_b32 v{T0}, v{RL[0]}, v{RL[1]}, {sTAGM} bitop3:0x7e")
            if m==3 and OPT["rtail"]:
                e(f"v_bitop3_b32 v{T1}, v{RL[2]}, v{RL[3]}, {sTAGM} bitop3:0x7e")
                e(f"v_bitop3_b32 v{T0}, v{T0}, v{T1}, 1 bitop3:0xa8")
                e(f"v_cmp_ne_u32 vcc, 0, v{T0}")
        e(f"s_cmp_eq_u32 {sSTEP}, {NSEG-1}")
        if not OPT["rtail"]: chk("redo")
        for i in range(4): e(f"v_add_f32_dpp v{16+i}, v{16+i}, v{16+i} row_ror:8 row_mask:0xf bank_mask:0xf")
        e(f"v_cvt_pk_bf16_f32 v{T0}, v16, v17"); e(f"v_cvt_pk_bf16_f32 v{T1}, v18, v19")
        e(f"v_min_u32 v{T0}, {sFE}, v{T0}")
        if OPT["rtail"]: chk("redo")
        e(f"s_cbranch_scc1 {L('last')}")
        e(f"buffer_store_dwordx2 {vr(T0,2)}, {vRS}, {S_WS}, {sMW} offen {st}","rs")
        e(f"buffer_store_byte v20, v21, {S_T}, {sUNIT} offen {st}","fl")
        e(f"buffer_store_dword v22, {vRS}, {S_WS}, {sMZ} offen {st}","mz")
        stamp(a,tim,"red")
        if w==2: a.label(L("nored2"))
        if w==0 and OPT["nat"]:
            if 1 in Q_SLOT: lload_tile(a,QSEQ[1],SL2,None)
        else: prestage()
        slots()
    if w==0 or (w<3 and OPT["m1pre"]):
        if not (w==0 and OPT["nat"]): paddr(23)
        if w==0: delay(a,OPT['d2']); stamp(a,tim,"mis")
        NP=OPT["np"] if w==0 else 1
        PD=T0
        if w==0 and OPT["spec"]:
            PD=T1
            probe(T0,23); dma(a,nd,sMR,None)
            for i in range(NP): delay(a,OPT["d4"]); probe(PD,23)
            e(f"s_waitcnt vmcnt({nd+NP})"); pcmp(T0)
            e(f"s_cbranch_vccz {L('m0hit')}")
        else:
            for i in range(NP): probe(PD,23); delay(a,OPT["d4"]) if i<NP-1 else None
        a.label(L("m0"))
        for u in range(OPT["unr"] if w==0 else 1):
            e(f"s_waitcnt vmcnt({NP-1})"); pcmp(PD)
            if w==0: probe(PD,23)
            if tim in(1,2): e("s_add_u32 s86, s86, 1")
            if OPT["nosync"] or OPT["blind"]: e(f"s_branch {L('m0ok')}")
            else: e(f"s_cbranch_vccz {L('m0ok')}")
        if w: probe(PD,23)
        spin(); e(f"s_branch {L('m0')}")
        a.label(L("m0ok"))
        if w==0: stamp(a,tim,"det")
        a.vm=[]
        dma(a,nd,sMR,"dma")
        if w==0 and OPT["spec"]: a.label(L("m0hit"))
        if w==0 and OPT["b0"]: e("s_barrier")
        if w==0: a.vm=[]
        if w==0 and OPT["b0w0"]: b0loads()
        if w==0 and not OPT["rot"]: e(f"s_waitcnt vmcnt({len(a.vm)})")
    if w<3: a.wait(lg="all")
    if w==3:
        delay(a,OPT['d3'])
        prestage()
        if OPT["pub"] and OPT["pubpos"]!="lds":
            e(f"s_add_u32 {sT0}, {sMR}, {sPC}"); e(f"s_sub_u32 {sT0}, {sT0}, {4096*3}")
            e(f"s_add_u32 s10, {sT0}, {OPT['piece']}"); e(f"s_cmp_lt_u32 {sPC}, 10240"); e("s_cselect_b32 s10, s10, 0")
            if "L" not in OPT["ab"]: e(f"buffer_load_dwordx2 v[4:5], {vL8}, {S_T}, {sT0} offen sc1","pl")
            e(f"s_add_u32 {sMP}, {sMP}, {OPT['mpstride']}"); e(f"s_add_u32 s10, {sMP}, {OPT['piece']}"); e(f"s_cmp_lt_u32 {sPC}, 10240"); e("s_cselect_b32 s10, s10, 0")
            if OPT["pubpos"]=="hop":
                a.wait(vm="pl"); e(f"buffer_store_dwordx2 v[4:5], {vL8}, {S_T}, {sMP} offen {OPT['pubfl']}","pub")
        e(f"s_cmp_eq_u32 {sSTEP}, {NSEG-1}"); e(f"s_cbranch_scc1 {L('last')}")
        if OPT["kvchk"]:
            e(f"s_cmp_eq_u32 {sALL}, 1"); e(f"s_cbranch_scc1 {L('kvok')}")
            e(f"s_lshl_b32 {sT0}, {sSTEP}, 7"); e(f"s_add_u32 {sT0}, {sT0}, {KVCNT+256}"); e(f"s_min_u32 {sT0}, {sT0}, {KVCNT+63*128}")
            e(f"s_load_dword s28, s[4:5], {sT0} glc"); e(f"s_load_dword s29, s[4:5], {KVCNT+63*128} glc")
            e("s_waitcnt lgkmcnt(0)")
            e("s_cmp_ge_u32 s29, 32"); e(f"s_cselect_b32 {sALL}, 1, 0")
            e("s_cmp_ge_u32 s28, 32"); e(f"s_cbranch_scc0 {L('kvw')}")
            a.label(L("kvok"))
        slots(); zero_acc()
        if OPT["pub"] and OPT["pubpos"]=="hop": a.wait(lg="all")
        else: a.wait(vm="all",lg="all")
    if OPT["b0"] and w:
        e("s_barrier")
        if w==1 or (w==2 and not OPT["w2late"]): mfetch()
        b0loads()
        if OPT["kxb0"] and w==3:
            e(f"s_mov_b32 m0, {L_KX}"); dma(a,4,sKX,"kx"); e(f"s_mov_b32 m0, {L_KX+4096}"); dma(a,4,sKX2,"kx")
    stamp(a,tim,"pre")
    assert OPT["ab"] or (a.vm[len(a.vm)-len(top_vm):]==top_vm and (top_vm or not a.vm)),(w,a.vm)
    if tim in(4,5) and w==(3 if tim==4 else 0):
        e("s_memtime s[70:71]" if tim==4 else "s_memrealtime s[70:71]"); e("s_waitcnt lgkmcnt(0)")
        e(f"v_writelane_b32 v4, s70, 63") if False else None
        e(f"s_lshl_b32 s72, {sH}, 8"); e(f"s_lshl_b32 s73, {sSTEP}, 2"); e("s_add_u32 s72, s72, s73"); e(f"s_add_u32 s72, s72, {DBG_OFF+0x40000}")
        e(f"v_mov_b32 v{T0}, s70"); e(f"v_lshlrev_b32 v{T1}, 24, {vL16}")
        e(f"buffer_store_dword v{T0}, v{T1}, {S_WS}, s72 offen")
    if tim==6 and w==3:
        e(f"s_cmp_eq_u32 {sSTEP}, {OPT['win'][0]}"); e(f"s_cbranch_scc0 {L('t6a')}"); e("s_memrealtime s[70:71]"); e("s_memtime s[74:75]"); e("s_waitcnt lgkmcnt(0)"); a.label(L("t6a"))
        e(f"s_cmp_eq_u32 {sSTEP}, {OPT['win'][1]}"); e(f"s_cbranch_scc0 {L('t6b')}"); e("s_memrealtime s[72:73]"); e("s_memtime s[76:77]"); e("s_waitcnt lgkmcnt(0)")
        e("s_sub_u32 s70, s72, s70"); e("s_sub_u32 s74, s76, s74"); e(f"s_lshl_b32 s72, {sH}, 3"); e(f"s_add_u32 s72, s72, {DBG_OFF+0x40000}")
        e(f"v_mov_b32 v{T0}, s70"); e(f"v_mov_b32 v{T1}, s74"); e(f"v_lshlrev_b32 v12, 24, {vL16}")
        e(f"buffer_store_dwordx2 {vr(T0,2)}, v12, {S_WS}, s72 offen"); a.label(L("t6b"))
    if tim==3:
        e(f"s_cmp_eq_u32 {sSTEP}, {OPT['at']}"); e(f"s_cbranch_scc0 {L('pretop') if OPT['rot'] and w==0 else 'HZ_'+L('top')}")
        n=len(STAMPS); e(f"s_memrealtime s[{54+2*n}:{55+2*n}]"); e(f"s_memtime s[{56+2*n}:{57+2*n}]")
        e("s_waitcnt lgkmcnt(0)")
        e(f"s_lshl_b32 {sT0}, {sH}, 2"); e(f"s_add_u32 {sT0}, {sT0}, {w}"); e(f"s_lshl_b32 {sT0}, {sT0}, 7"); e(f"s_add_u32 {sT0}, {sT0}, {DBG_OFF+65536}")
        e(f"v_mov_b32 v{T1}, 0"); e("s_mov_b64 exec, 1")
        for i in range(len(STAMPS)+2):
            e(f"v_mov_b32 v{T0}, s{54+2*i}"); e(f"buffer_store_dword v{T0}, v{T1}, {S_WS}, {sT0} offen offset:{4*i}")
        e("s_waitcnt vmcnt(0)"); e("s_mov_b64 exec, -1")
    e(f"s_branch {L('pretop')}" if OPT["rot"] and w==0 else f"s_branch HZ_{L('top')}")
    if w<3:
        a.label(L("redo"))
        if tim in(1,2): e("s_add_u32 s85, s85, 1")
        e("s_mov_b64 exec, vcc")
        a.label(L("redo2"))
        red_loads(); spin()
        e("s_waitcnt vmcnt(0)")
        e(f"v_bitop3_b32 v{T0}, v{RL[0]}, v{RL[1]}, {sTAGM} bitop3:0x7e"); e(f"v_bitop3_b32 v{T1}, v{RL[2]}, v{RL[3]}, {sTAGM} bitop3:0x7e")
        e(f"v_bitop3_b32 v{T0}, v{T0}, v{T1}, 1 bitop3:0xa8"); e(f"v_cmp_ne_u32 vcc, 0, v{T0}")
        e(f"s_cbranch_vccnz {L('redo2')}")
        e("s_mov_b64 exec, -1"); e("s_nop 1")
        e(f"s_branch {L('red')}")
        a.label(L("last"))
        e(f"s_mov_b32 {sT0}, {MEMP_OFF+63*10240}")
        e(f"buffer_store_dwordx2 {vr(T0,2)}, {vRS}, {S_WS}, {sT0} offen sc1")
        e(f"s_branch {L('done')}")
    if OPT["nanchk"]:
        a.label(L("scan"))
        e(f"v_mov_b32 v{T0}, 0")
        for k in range(10):
            e(f"ds_read_b32 v{T1}, {vL16} offset:{L_MEM+1024*k}"); e("s_waitcnt lgkmcnt(0)"); e(f"v_max_u32 v{T0}, v{T0}, v{T1}")
        e(f"v_cmp_eq_u32 vcc, -1, v{T0}"); e(f"s_cbranch_vccnz {L('rec')}"); e(f"s_branch {L('scanned')}")
    if w==2:
        if OPT["f1"]: a.label(L("nored0")); zero_acc(); e("s_waitcnt lgkmcnt(0)")
        a.label(L("nored"))
        e("s_waitcnt vmcnt(0)")
        e(f"s_cmp_eq_u32 {sSTEP}, {NSEG-1}"); e(f"s_cbranch_scc1 {L('done')}")
        e(f"s_branch {L('nored2')}")
    if w==3 and OPT["kvchk"]:
        a.label(L("kvw"))
        if tim in(1,2): e("s_add_u32 s85, s85, 1")
        e(f"v_mov_b32 v{T0}, 0")
        a.label(L("kvw2"))
        e(f"buffer_load_dword v{T1}, v{T0}, {S_WS}, {sT0} offen sc1"); spin(); e("s_waitcnt vmcnt(0)")
        e(f"v_cmp_gt_u32 vcc, 32, v{T1}"); e(f"s_cbranch_vccnz {L('kvw2')}")
        e(f"s_branch {L('kvok')}")
    if w==3 and OPT["pub"] and OPT["lastlds"]:
        a.label(L("pub62"))
        e(f"v_add_u32 v{T1}, {sPC}, {vL8}"); e(f"ds_read_b64 v[4:5], v{T1} offset:{L_MEM}")
        e(f"s_add_u32 {sT0}, {sMP}, 10240"); e(f"s_add_u32 s10, {sT0}, {OPT['piece']}"); e("s_waitcnt lgkmcnt(0)")
        e(f"buffer_store_dwordx2 v[4:5], {vL8}, {S_T}, {sT0} offen sc1"); e("s_mov_b32 s10, 0")
        e(f"s_branch {L('pub62b')}")
    if w==3:
        a.label(L("last"))
        e("s_waitcnt vmcnt(0)")
        if OPT["pub"] and OPT["pubpos"] not in("hop","lds") and not OPT["lastlds"]: e(f"buffer_store_dwordx2 v[4:5], {vL8}, {S_T}, {sMP} offen sc1")
        e(f"s_branch {L('done')}")
    if w in(1,2) and not OPT["m1pre"]:
        a.label(L("mr"))
        spin("s86")
        mfetch(); e(f"s_waitcnt vmcnt({nd})")
        pcmp(T1); e(f"s_cbranch_vccnz {L('mr')}")
        e("s_waitcnt vmcnt(0)")
        e(f"s_branch {L('mok')}")
    a.label(L("done"))
    a.vm=[]; a.lg=[]
    e("s_waitcnt vmcnt(0) lgkmcnt(0)")
    if w==3 and OPT["wb"]:
        e(f"s_cmp_eq_u32 {sH}, 0"); e(f"s_cbranch_scc0 {L('nowb')}"); e("buffer_wbl2 sc1"); e("s_waitcnt vmcnt(0)"); a.label(L("nowb"))
    if tim in(1,2):
        e("s_memtime s[70:71]"); e("s_waitcnt lgkmcnt(0)"); e("s_sub_u32 s83, s70, s74")
        for i in range(11): e(f"v_mov_b32 v{12+i}, s{76+i}")
        e(f"s_lshl_b32 {sT0}, {sH}, 2"); e(f"s_add_u32 {sT0}, {sT0}, {w}"); e(f"s_lshl_b32 {sT0}, {sT0}, 6"); e(f"s_add_u32 {sT0}, {sT0}, {DBG_OFF}")
        e("v_mov_b32 v10, 0"); e("s_mov_b64 exec, 1")
        e("s_memrealtime s[68:69]"); e("s_waitcnt lgkmcnt(0)")
        for i,r in enumerate((90,92,94,66,68)): e(f"v_mov_b32 v{23+i}, s{r}")
        for i in range(4): e(f"buffer_store_dwordx4 {vr(12+4*i,4)}, v10, {S_WS}, {sT0} offen offset:{16*i}")
        if OPT["dbgout"] and w==0:
            for i in range(5):
                e(f"v_mov_b32 v10, {16+4*i}"); e(f"global_atomic_umax v10, v{23+i}, {sDBG}")
            e("v_mov_b32 v10, 36"); e(f"global_atomic_umax v10, v19, {sDBG}")
        e("s_waitcnt vmcnt(0)")
    e("s_endpgm")
```

```python
from asmlib import *
from layout import *
import chain as C
import struct, math
S_WS=C.S_WS; sDBG=C.sDBG
sW="s13"; sROW="s64"; sRANK="s65"
f32=lambda x: "0x%08x"%struct.unpack("<I",struct.pack("<f",x))[0]
OPT={"tim":0,"hold":0,"lastwi":208,"perm":(6,0,1,2,3,4,5),"split":0,"holdn":32,"asleep":1,"bsleep":1}

def rt(a,i):
    if OPT["tim"]: a.e(f"s_memrealtime s[{70+2*i}:{71+2*i}]")

def spin_wait(a,name,load,cmp_fail,sCNT="s32",sleep=1):
    e=a.e
    a.label(name)
    load()
    e(f"s_add_u32 {sCNT}, {sCNT}, 1"); e(f"s_cmp_gt_u32 {sCNT}, 0x40000"); e("s_cbranch_scc1 L_abort")
    e("s_waitcnt vmcnt(0)"); a.vm=[]
    cmp_fail()
    e(f"s_cbranch_vccz {name}_ok")
    if sleep: e(f"s_sleep {sleep}")
    e(f"s_branch {name}")
    a.label(name+"_ok")

XA=0
ACC=32; BI=64; GT=80
vLN="v232"; vL16="v233"; vDA="v234"; vDB="v235"; vVO="v236"; vRD="v237"; TMP=240
S_W="s[8:11]"; S_X="s[20:23]"
sTILE="s24"; sSEG="s26"; sSRC="s27"; sOUT="s28"; sOUT2="s29"; sSTR="s30"; sOFF="s31"; sCNT="s32"; sWI="s33"; sA="s34"; sB="s35"; sKIND="s36"; sMIX="s37"
sSLOT="s16"; sSIG="s17"; sOSTR="s18"; sIT="s19"; sFILL="s38"; sG0="s39"; sOUT3="s14"; sOUT4="s15"; sHS="s25"
def wreg(j,k,t):
    i=160*j+8*k+4*t
    return vr(i,4,'a') if i<256 else vr(i-256+160,4)
def wreg2(j,k,t,x):
    i=160*j+8*k+4*t+2*x
    return vr(i,2,'a') if i<256 else vr(i-256+160,2)

def layernorm(a):
    e=a.e; one=TMP; S=[TMP+4,TMP+8]
    for k in range(20):
        e(f"v_mfma_f32_16x16x32_bf16 {vr(S[0],4)}, {vr(one,4)}, {vr(4*k,4)}, {'0' if k==0 else vr(S[0],4)}")
        e(f"v_mfma_f32_16x16x32_bf16 {vr(S[1],4)}, {vr(4*k,4)}, {vr(4*k,4)}, {'0' if k==0 else vr(S[1],4)}")
    q=S[1]
    for i in range(1,4):
        e(f"v_cmp_eq_u32 vcc, {i}, v{TMP+12}"); e(f"v_cndmask_b32 v{q}, v{q}, v{q+i}, vcc")
    e(f"ds_bpermute_b32 v{q}, v{TMP+13}, v{q}","bp")
    m=S[0]
    e(f"v_mul_f32 v{m}, {f32(1/640)}, v{m}")
    a.wait(lg="bp")
    e(f"v_mul_f32 v{q}, {f32(1/640)}, v{q}"); e(f"v_fma_f32 v{q}, -v{m}, v{m}, v{q}"); e(f"v_max_f32 v{q}, 0, v{q}")
    rb=lambda r: (e(f"v_cvt_pk_bf16_f32 v{r}, v{r}, v{r}"), e(f"v_and_b32 v{r}, {sMIX}, v{r}"))
    rb(m); rb(q); e(f"v_add_f32 v{q}, {f32(1e-5)}, v{q}"); rb(q); e(f"v_sqrt_f32 v{q}, v{q}"); rb(q)
    e(f"v_rcp_f32 v{q}, v{q}"); e(f"v_mul_f32 v{m}, v{m}, v{q}")
    for k in range(20):
        if k and k%4==0: e(f"s_add_u32 {sOUT}, {sOUT}, 4096")
        for r in range(4*k,4*k+4):
            t=TMP+14
            e(f"v_lshlrev_b32 v{t}, 16, v{r}"); e(f"v_and_b32 v{t+1}, {sMIX}, v{r}")
            e(f"v_pk_fma_f32 {vr(t,2)}, {vr(t,2)}, {vr(q,2)}, {vr(m,2)} op_sel_hi:[1,0,0] neg_lo:[0,0,1] neg_hi:[0,0,1]")
            e(f"v_cvt_pk_bf16_f32 v{r}, v{t}, v{t+1}")
        e(f"buffer_store_dwordx4 {vr(4*k,4)}, {vL16}, {S_WS}, {sOUT} offen offset:{1024*(k%4)} sc1")

def add_one(a,off):
    e=a.e
    e("s_mov_b64 exec, 1")
    e(f"v_mov_b32 v{TMP}, 0"); e(f"v_mov_b32 v{TMP+1}, 1")
    e(f"buffer_atomic_add v{TMP+1}, v{TMP}, {S_WS}, {off} offen")
    e("s_mov_b64 exec, -1"); e("s_nop 3")

def seg_dma(a):
    out=[]
    for i in range(10):
        g=[]
        if i%4==0: g.append(f"s_add_u32 m0, {sFILL}, {4096*(i//4)}")
        if i in(4,8): g.append(f"s_add_u32 {sSRC}, {sSRC}, 4096")
        g.append((f"buffer_load_dwordx4 {vL16}, {S_X}, {sSRC} offen offset:{1024*(i%4)} sc1 lds","d"))
        out.append(g)
    out[-1]+= [f"s_add_u32 {sSRC}, {sSRC}, {40960-8192}",f"s_add_u32 {sFILL}, {sFILL}, 40960",f"s_cmp_ge_u32 {sFILL}, 163840",
               f"s_cselect_b32 {sA}, 163840, 0",f"s_sub_u32 {sFILL}, {sFILL}, {sA}"]
    return out
def emit(a,g):
    for x in g:
        if isinstance(x,tuple): a.e(x[0],x[1])
        else: a.e(x)

def seg_loop(a,kind):
    e=a.e; L=lambda s: f"W{kind}_{s}"
    a.label(L("top"))
    NJ=1 if kind=="H" else 2
    e(f"s_waitcnt vmcnt({10+2*NJ})"); e("s_barrier")
    a.vm=[]; a.lg=[]
    rd=lambda f: e(f"ds_read_b128 {vr(4*(f%8),4)}, {vRD} offset:{1024*f}",f"f{f}")
    LA=7 if NJ==1 else 4
    for f in range(LA): rd(f)
    e(f"s_cmp_lt_u32 {sIT}, 2"); e(f"s_cselect_b32 {sA}, 1, {sW}"); e(f"s_cmp_eq_u32 {sA}, 0"); e(f"s_cbranch_scc0 {L('nosig')}")
    add_one(a,sSIG)
    a.label(L("nosig")); a.vm=[]
    fill=seg_dma(a)
    ac=lambda j,tt,t: ACC+16*j+8*tt+4*t
    for f in range(40):
        tt,k=f//20,f%20
        a.wait(lg=f"f{f}")
        for j in range(NJ):
            for t in range(2):
                A,B=wreg(j,k,t),vr(4*(f%8),4)
                if kind=="V": A,B=B,A
                d=vr(ac(j,tt,t),4)
                e(f"v_mfma_f32_16x16x32_bf16 {d}, {A}, {B}, {'0' if k==0 else d}")
                if j==0 and t==0 and f+LA<40: rd(f+LA)
        if f%3==0 and fill: emit(a,fill.pop(0))
    e(f"s_add_u32 {sSLOT}, {sSLOT}, 40960"); e(f"s_cmp_ge_u32 {sSLOT}, 163840"); e(f"s_cselect_b32 {sSLOT}, 0, {sSLOT}")
    e(f"v_add_u32 {vRD}, {sSLOT}, {vL16}")
    so=[[sOUT,sOUT2],[sOUT3,sOUT4]]
    for j in range(NJ):
      if kind=="K":
        for tt in range(2):
            t0,t1=ac(j,tt,0),ac(j,tt,1); o=TMP+4+4*tt
            for i,(x,y) in enumerate(((t0,t0+2),(t1,t1+2),(t0+1,t0+3),(t1+1,t1+3))): e(f"v_cvt_pk_bf16_f32 v{o+i}, v{x}, v{y}")
            e(f"buffer_store_dwordx4 {vr(o,4)}, {vL16}, {S_WS}, {so[j][tt]} offen sc1")
      elif kind=="V":
        for t in range(2):
            t0,t1=ac(j,0,t),ac(j,1,t); o=TMP+4+4*t
            for i,(x,y) in enumerate(((t0,t0+1),(t0+2,t0+3),(t1,t1+1),(t1+2,t1+3))): e(f"v_cvt_pk_bf16_f32 v{o+i}, v{x}, v{y}")
            e(f"buffer_store_dwordx4 {vr(o,4)}, {vVO}, {S_WS}, {so[j][0]} offen offset:{128*t} sc1")
      else:
        for tt in range(2):
            for t in range(2):
                for i in range(4):
                    z=ac(j,tt,t)+i; u=GT+4+i
                    e(f"v_add_f32 v{z}, v{z}, v{BI+8*j+4*t+i}")
                    e(f"v_mul_f32 v{u}, v{z}, v{z}"); e(f"v_fma_f32 v{u}, v{u}, {sG0}, v{GT}"); e(f"v_mul_f32 v{u}, v{u}, v{z}")
                for i in range(4): e(f"v_exp_f32 v{GT+4+i}, v{GT+4+i}")
                for i in range(4): e(f"v_add_f32 v{GT+4+i}, 1.0, v{GT+4+i}")
                for i in range(4): e(f"v_rcp_f32 v{GT+4+i}, v{GT+4+i}")
                for i in range(4): e(f"v_mul_f32 v{ac(j,tt,t)+i}, v{ac(j,tt,t)+i}, v{GT+4+i}")
            t0,t1=ac(j,tt,0),ac(j,tt,1); o=TMP+4+4*tt
            for i,(x,y) in enumerate(((t0,t0+1),(t0+2,t0+3),(t1,t1+1),(t1+2,t1+3))): e(f"v_cvt_pk_bf16_f32 v{o+i}, v{x}, v{y}")
            e(f"buffer_store_dwordx4 {vr(o,4)}, {vL16}, {S_WS}, {so[j][tt]} offen sc1")
    for r in (sOUT,sOUT2,sOUT3,sOUT4): e(f"s_add_u32 {r}, {r}, {sOSTR}")
    e(f"s_add_u32 {sSIG}, {sSIG}, 128")
    if OPT["tim"]:
        e(f"s_cmp_eq_u32 {sIT}, 3"); e(f"s_cbranch_scc0 {L('nt')}"); rt(a,2); e("s_waitcnt lgkmcnt(0)"); a.label(L("nt"))
    e(f"s_add_u32 {sIT}, {sIT}, 1"); e(f"s_cmp_lt_u32 {sIT}, 64"); e(f"s_cbranch_scc1 {L('top')}")
    e("s_branch W_tail")

def zero_wait(a,name):
    e=a.e
    spin_wait(a,name,lambda:(e(f"v_mov_b32 v{TMP+4}, 4"),e(f"global_load_dword v{TMP+5}, v{TMP+4}, {sDBG} sc1")),lambda:e(f"v_cmp_gt_u32 vcc, 32, v{TMP+5}"))

def common(a):
    e=a.e
    e(f"s_load_dwordx2 s[20:21], s[0:1], {A_X}")
    e(f"s_load_dwordx2 s[40:41], s[0:1], {A_WQ}"); e(f"s_load_dwordx2 s[42:43], s[0:1], {A_WK}"); e(f"s_load_dwordx2 s[44:45], s[0:1], {A_WV}")
    e(f"s_load_dwordx2 s[54:55], s[0:1], {A_WO}")
    e(f"s_load_dwordx2 s[46:47], s[0:1], {B_W1}"); e(f"s_load_dwordx2 s[48:49], s[0:1], {B_B1}")
    e(f"v_mov_b32 {vLN}, v0"); e(f"v_lshlrev_b32 {vL16}, 4, v0")
    code=sum(v<<(4*(i+1)) for i,v in enumerate(OPT["perm"]))
    e(f"s_lshl_b32 {sA}, {sROW}, 2"); e(f"s_lshr_b32 {sWI}, 0x{code:x}, {sA}"); e(f"s_and_b32 {sWI}, {sWI}, 7")
    e(f"s_lshl_b32 {sWI}, {sWI}, 5"); e(f"s_add_u32 {sWI}, {sWI}, {sRANK}")
    e(f"s_mov_b32 {sCNT}, 0"); e(f"s_mov_b32 {sMIX}, 0xffff0000")
    e(f"s_mov_b32 s22, {S*D*2}"); e("s_mov_b32 s23, 0x20000"); e("s_mov_b32 s11, 0x20000")
    e("s_waitcnt lgkmcnt(0)")

def norm_rows(a):
    e=a.e; t=TMP
    e(f"s_sub_u32 {sHS}, {sWI}, 64"); e(f"s_cmp_lt_u32 {sHS}, 128"); e(f"s_cselect_b32 {sA}, {sW}, 1")
    e(f"s_cmp_eq_u32 {sA}, 0"); e(f"s_cselect_b32 {sKIND}, 1, 0"); e("s_cbranch_scc0 W_nox")
    e(f"v_and_b32 v{t}, 15, {vLN}"); e(f"v_mul_u32_u24 v{t}, 1280, v{t}"); e(f"v_lshrrev_b32 v{t+1}, 4, {vLN}"); e(f"v_lshl_add_u32 v{t}, v{t+1}, 4, v{t}")
    e(f"s_mul_i32 {sA}, {sHS}, {16*1280}")
    for k in range(20): e(f"buffer_load_dwordx4 {vr(4*k,4)}, v{t}, {S_X}, {sA} offen offset:{64*k}")
    a.label("W_nox")
    if C.OPT["sweep"]:
        e("s_barrier")
        e(f"s_lshl_b32 {sA}, {sHS}, 2"); e(f"s_add_u32 {sA}, {sA}, {sW}"); e(f"s_lshl_b32 {sA}, {sA}, 13")
        e(f"v_lshlrev_b32 v239, 3, {vL16}"); e(f"s_mov_b32 s10, {640*8192}")
        for r in (40,42,44,54):
            e(f"s_mov_b32 s8, s{r}"); e(f"s_mov_b32 s9, s{r+1}")
            e(f"buffer_load_dword v238, v239, s[8:11], {sA} offen {C.OPT['swpfl']}")
    e(f"s_cmp_eq_u32 {sKIND}, 1"); e("s_cbranch_scc0 W_noln")
    e(f"s_mul_i32 {sA}, {sHS}, 5120"); e(f"s_add_u32 {sA}, {sA}, {MEMP_OFF}"); e(f"s_add_u32 {sOUT}, {sA}, 4096")
    e(f"v_mov_b64 {vr(TMP+4,2)}, -1"); e(f"v_mov_b64 {vr(TMP+6,2)}, -1")
    for i in range(5): e(f"buffer_store_dwordx4 {vr(TMP+4,4)}, {vL16}, {S_WS}, {sA if i<4 else sOUT} offen offset:{1024*(i%4)} sc1")
    for i in range(4): e(f"v_mov_b32 v{TMP+i}, 0x3f803f80")
    e(f"v_and_b32 v{TMP+12}, 15, {vLN}"); e(f"v_lshrrev_b32 v{TMP+13}, 2, v{TMP+12}"); e(f"v_lshl_add_u32 v{TMP+13}, v{TMP+13}, 4, v{TMP+12}")
    e(f"v_lshlrev_b32 v{TMP+13}, 2, v{TMP+13}"); e(f"v_and_b32 v{TMP+12}, 3, v{TMP+12}")
    e(f"s_mul_i32 {sOUT}, {sHS}, 20480"); e(f"s_add_u32 {sOUT2}, {sOUT}, {YN_OFF}"); e(f"s_add_u32 {sOUT}, {sOUT}, {XN_OFF}")
    e(f"s_waitcnt vmcnt({9 if C.OPT['sweep'] else 5})")
    rt(a,0)
    e(f"s_mov_b32 {sIT}, 0")
    a.label("W_ln")
    layernorm(a)
    e(f"s_mov_b32 {sOUT}, {sOUT2}"); e(f"s_add_u32 {sIT}, {sIT}, 1"); e(f"s_cmp_lt_u32 {sIT}, 2"); e("s_cbranch_scc1 W_ln")
    zero_wait(a,"W_zero")
    e(f"s_lshr_b32 {sA}, {sHS}, 1"); e(f"s_lshl_b32 {sA}, {sA}, 7"); e(f"s_add_u32 {sA}, {sA}, {LNCNT}")
    add_one(a,sA)
    a.label("W_noln"); a.vm=[]; a.lg=[]

def project(a):
    e=a.e; t=TMP
    e(f"s_lshl_b32 {sTILE}, {sWI}, 1"); e(f"s_add_u32 {sA}, {sWI}, 48"); e(f"s_min_u32 {sTILE}, {sTILE}, {sA}"); e(f"s_lshr_b32 {sKIND}, {sTILE}, 5")
    e(f"s_cmp_eq_u32 {sKIND}, 0"); e("s_cselect_b32 s8, s42, s44"); e("s_cselect_b32 s9, s43, s45")
    e(f"s_cmp_eq_u32 {sKIND}, 2"); e("s_cselect_b32 s8, s40, s8"); e("s_cselect_b32 s9, s41, s9")
    e(f"s_cmp_eq_u32 {sKIND}, 3"); e("s_cselect_b32 s8, s46, s8"); e("s_cselect_b32 s9, s47, s9")
    e(f"s_mov_b32 {sA}, 8192"); e(f"s_cselect_b32 {sSTR}, {F*2}, {sA}"); e(f"s_mul_i32 s10, {sSTR}, {D}")
    e(f"v_lshrrev_b32 v{t+2}, 4, {vLN}"); e(f"v_lshlrev_b32 v{t+3}, 1, v{t+2}"); e(f"v_and_b32 v{t+4}, 15, {vLN}"); e(f"v_xor_b32 v{t+3}, v{t+3}, v{t+4}")
    e(f"s_lshl_b32 {sA}, {sW}, 4"); e(f"v_add_u32 v{t+2}, {sA}, v{t+2}"); e(f"v_mul_lo_u32 v{t+2}, v{t+2}, {sSTR}")
    e(f"v_lshl_add_u32 {vDA}, v{t+3}, 4, v{t+2}"); e(f"v_xor_b32 v{t+3}, 8, v{t+3}"); e(f"v_lshl_add_u32 {vDB}, v{t+3}, 4, v{t+2}")
    e(f"s_lshl_b32 {sSTR}, {sSTR}, 2"); e(f"s_mul_i32 {sSRC}, {sSTR}, 13"); e(f"s_lshl_b32 {sB}, {sW}, 12")
    e(f"v_bfe_u32 v{t}, {vLN}, 2, 2"); e(f"v_bfe_u32 v{t+1}, {vLN}, 4, 1"); e(f"v_lshl_add_u32 v{t+1}, v{t+1}, 2, v{t}")
    e(f"v_lshrrev_b32 v{t+2}, 4, {vLN}"); e(f"v_lshl_add_u32 v{t+2}, v{t+2}, 3, v{t}"); e(f"v_lshlrev_b32 v{t+2}, 8, v{t+2}")
    e(f"v_and_b32 v{t+3}, 3, {vLN}"); e(f"v_lshl_add_u32 v{t+2}, v{t+3}, 3, v{t+2}")
    e(f"s_lshl_b32 {sA}, {sW}, 1")
    e(f"v_xor_b32 v{t+3}, {sA}, v{t+1}"); e(f"v_lshl_add_u32 v{t+8}, v{t+3}, 5, v{t+2}")
    e(f"v_xor_b32 v{t+3}, 1, v{t+3}"); e(f"v_lshl_add_u32 v{t+9}, v{t+3}, 5, v{t+2}")
    def stage(n):
        if n%10==0:
            e(f"s_and_b32 {sOFF}, {sTILE}, 31"); e(f"s_add_u32 {sOFF}, {sOFF}, {n//10}"); e(f"s_lshl_b32 {sOFF}, {sOFF}, 8")
        for i in range(4):
            e(f"s_add_u32 m0, {sB}, {(n%10)*16384+i*1024}")
            e(f"buffer_load_dwordx4 {vDA if i<2 else vDB}, {S_W}, {sOFF} offen lds",f"w{n}")
            e(f"s_add_u32 {sOFF}, {sOFF}, {sSTR if i<3 else sSRC}")
    for n in range(10): stage(n)
    for n in range(20):
        j,st=n//10,n%10
        a.wait(vm=f"w{n}"); e("s_barrier")
        if n==1: e(f"s_cmp_eq_u32 {sKIND}, 3"); e("s_cselect_b32 s10, 0, s10")
        if 1<=n<=10: stage(n+9)
        if st in(4,8): e(f"v_add_u32 v{t+8}, 0x10000, v{t+8}"); e(f"v_add_u32 v{t+9}, 0x10000, v{t+9}")
        if n==10: e(f"v_subrev_u32 v{t+8}, 0x20000, v{t+8}"); e(f"v_subrev_u32 v{t+9}, 0x20000, v{t+9}")
        for ks in range(2):
            for tl in range(2):
                for x in range(2): e(f"ds_read_b64_tr_b16 {wreg2(j,2*st+ks,tl,x)}, v{t+8+tl} offset:{(st%4)*16384+ks*8192+x*1024}")
        e("s_waitcnt lgkmcnt(0)"); a.lg=[]
    e(f"v_and_b32 v{t}, 1, {vLN}"); e(f"v_lshlrev_b32 {vVO}, 10, v{t}"); e(f"v_lshrrev_b32 v{t}, 4, {vLN}"); e(f"v_lshl_add_u32 {vVO}, v{t}, 8, {vVO}")
    e(f"v_bfe_u32 v{t}, {vLN}, 1, 3"); e(f"v_lshl_add_u32 {vVO}, v{t}, 4, {vVO}")
    e("s_mov_b32 s8, s48"); e("s_mov_b32 s9, s49"); e(f"s_cmp_eq_u32 {sKIND}, 3"); e(f"s_cselect_b32 s10, {F*2}, 0")
    e(f"v_lshrrev_b32 v{t}, 4, {vLN}"); e(f"v_lshlrev_b32 v{t}, 3, v{t}"); e(f"s_and_b32 {sA}, {sTILE}, 31"); e(f"s_lshl_b32 {sA}, {sA}, 8"); e(f"s_lshl_b32 {sB}, {sW}, 6"); e(f"s_add_u32 {sA}, {sA}, {sB}")
    for j in range(2):
        for tl in range(2): e(f"buffer_load_dwordx2 {vr(88+4*j+2*tl,2)}, v{t}, {S_W}, {sA} offen offset:{256*j+32*tl}")
    e(f"v_lshlrev_b32 v{t+6}, 3, {vL16}")
    zero_wait(a,"W_zero2")
    spin_wait(a,"W_lnw",lambda:e(f"buffer_load_dword v{t+7}, v{t+6}, {S_WS}, 0 offen sc1"),lambda:e(f"v_cmp_gt_u32 vcc, 2, v{t+7}"),sleep=4)
    for i in range(8):
        e(f"v_lshlrev_b32 v{BI+2*i}, 16, v{88+i}"); e(f"v_and_b32 v{BI+2*i+1}, {sMIX}, v{88+i}")
    k0=math.sqrt(2/math.pi); l2e=math.log2(math.e)
    e(f"s_mov_b32 {sG0}, {f32(-2*k0*0.044715*l2e)}"); e(f"v_mov_b32 v{GT}, {f32(-2*k0*l2e)}")
    e("s_barrier")
    rt(a,1)
    e(f"s_cmp_eq_u32 {sKIND}, 3"); e(f"s_mov_b32 {sA}, {XN_OFF}"); e(f"s_cselect_b32 {sA}, {YN_OFF}, {sA}")
    e(f"s_add_u32 s20, s4, {sA}"); e("s_addc_u32 s21, s5, 0"); e(f"s_mov_b32 s22, {64*40960}")
    e(f"s_mul_i32 {sFILL}, {sW}, 10240"); e(f"s_mov_b32 {sSRC}, {sFILL}")
    e(f"s_mov_b32 {sSLOT}, 0"); e(f"v_mov_b32 {vRD}, {vL16}"); e(f"s_mov_b32 {sIT}, 0")
    e(f"s_and_b32 {sA}, {sTILE}, 31"); e(f"s_cmp_eq_u32 {sKIND}, 3"); e("s_cbranch_scc1 W_setH")
    e(f"s_lshl_b32 {sOUT}, {sA}, 13")
    e(f"s_lshl_b32 {sA}, {sKIND}, 24"); e(f"s_add_u32 {sOUT}, {sOUT}, {sA}"); e(f"s_add_u32 {sOUT}, {sOUT}, {XK_OFF}")
    e(f"s_cmp_eq_u32 {sKIND}, 1"); e(f"s_cselect_b32 {sA}, 11, 10"); e(f"s_lshl_b32 {sA}, {sW}, {sA}"); e(f"s_add_u32 {sOUT}, {sOUT}, {sA}")
    e(f"s_add_u32 {sOUT2}, {sOUT}, 4096"); e(f"s_add_u32 {sOUT3}, {sOUT}, 8192"); e(f"s_add_u32 {sOUT4}, {sOUT}, 12288"); e(f"s_mov_b32 {sOSTR}, {32*8192}"); e("s_branch W_setD")
    a.label("W_setH")
    e(f"s_lshl_b32 {sA}, {sA}, 2"); e(f"s_add_u32 {sA}, {sA}, {sW}")
    e(f"s_lshl_b32 {sOUT}, {sA}, 10"); e(f"s_add_u32 {sOUT}, {sOUT}, {HH_OFF}"); e(f"s_cmp_lt_u32 {sA}, 54"); e(f"s_cselect_b32 {sOUT}, {sOUT}, 0x7f000000")
    e(f"s_add_u32 {sOUT2}, {sOUT}, {54*1024}"); e(f"s_mov_b32 {sOSTR}, {2*54*1024}")
    a.label("W_setD")
    e(f"s_cmp_lt_u32 {sKIND}, 2"); e(f"s_mov_b32 {sA}, {QHCNT-2*128}"); e(f"s_cselect_b32 {sSIG}, {KVCNT-2*128}, {sA}")
    for i in range(3):
        for g in seg_dma(a): emit(a,g)
    e(f"s_cmp_eq_u32 {sKIND}, 1"); e("s_cbranch_scc1 WV_top"); e(f"s_cmp_eq_u32 {sKIND}, 3"); e("s_cbranch_scc1 WH_top")
    seg_loop(a,"K"); seg_loop(a,"V"); seg_loop(a,"H")
    a.label("W_tail")
    e("s_waitcnt vmcnt(0)"); e("s_barrier")
    e(f"s_cmp_eq_u32 {sW}, 0"); e("s_cbranch_scc0 W_tail2")
    for i in range(2):
        add_one(a,sSIG); e(f"s_add_u32 {sSIG}, {sSIG}, 128")
    a.label("W_tail2")
    rt(a,3)
    a.vm=[]; a.lg=[]
    finish(a)

def load_pairs(a,groups,LB,nreg,lock=True):
    e=a.e; sT0="s34"
    def issue(i):
        setup,loads,_,_=groups[i]; lb=LB[i%len(LB)]
        for x in setup: e(x)
        for j,(vo,off) in enumerate(loads):
            e(f"s_mov_b32 {sT0}, {off}"); e(f"buffer_load_dword v{lb+j}, {vo}, s[8:11], {sT0} offen",f"w{i}")
    def process(i):
        _,loads,dlo,dhi=groups[i]; lb=LB[i%len(LB)]
        a.wait(vm=f"w{i}")
        if lock: e("s_barrier")
        for dst,sel in ((dlo,"s38"),(dhi,"s39")):
            for R,(k,r) in enumerate(dst):
                if k=="v": e(f"v_perm_b32 v{r}, v{lb+2*R+1}, v{lb+2*R}, {sel}")
                else:
                    e(f"v_perm_b32 v{4+(R&3)}, v{lb+2*R+1}, v{lb+2*R}, {sel}"); e(f"v_accvgpr_write_b32 a{r}, v{4+(R&3)}")
    e("s_mov_b32 s38, 0x05040100"); e("s_mov_b32 s39, 0x07060302")
    n=len(LB)-1
    for i in range(n): issue(i)
    for i in range(len(groups)):
        if i+n<len(groups): issue(i+n)
        process(i)

def stageA(a):
    e=a.e
    sH="s24"; sS="s25"; sT0="s34"; sT1="s35"; sQ="s26"; sK="s27"; sV="s28"; sM="s29"; sO="s30"; sOC="s31"; sQ2="s36"; sK2="s37"
    sCC="s[96:97]"; sC="s96"
    e(f"s_and_b32 {sH}, s33, 31"); e(f"s_lshr_b32 {sS}, s33, 5"); e(f"s_sub_u32 {sS}, {sS}, 2")
    e(f"v_mov_b32 v15, {vLN}")
    e("v_lshrrev_b32 v4, 5, v15"); e("v_lshlrev_b32 v4, 4, v4"); e("v_bfe_u32 v5, v15, 4, 1"); e("v_lshl_add_u32 v4, v5, 2, v4")
    e("v_and_b32 v5, 15, v15"); e("v_lshlrev_b32 v5, 2, v5")
    e(f"s_lshl_b32 {sT0}, {sH}, 8"); e(f"s_lshl_b32 {sT1}, {sW}, 6"); e(f"s_add_u32 {sT0}, {sT0}, {sT1}")
    e("v_lshl_add_u32 v1, v4, 13, v5"); e(f"v_add_u32 v1, {sT0}, v1")
    e(f"s_mov_b32 s10, {D*8192}")
    place=lambda i: ("a",8*i) if i<32 else ("v",192+8*(i-32))
    T={}
    groups=[]
    for m,(lo,hi) in (("k",("s42","s43")),("v",("s44","s45"))):
        for k in range(10):
            loads=[("v1",(64*k+32*(R>>2)+8*(R&1)+2*((R>>1)&1)+x)*8192) for R in range(8) for x in range(2)]
            d=[]
            for tau in range(2):
                T[(m,k,tau)]=p=place(len(T)); d.append([(p[0],p[1]+R) for R in range(8)])
            groups.append(([f"s_mov_b32 s8, {lo}",f"s_mov_b32 s9, {hi}"] if k==0 else [],loads,d[0],d[1]))
    load_pairs(a,groups,[16,32,48],8)
    vL16="v0"; vA="v1"; vIDX="v2"; vXW="v6"; vXR="v7"; vML="v8"; vML3="v9"; vDG="v3"
    e("v_lshlrev_b32 v0, 4, v15")
    e("v_lshrrev_b32 v12, 5, v15"); e("v_lshlrev_b32 v1, 9, v12"); e("v_bfe_u32 v12, v15, 1, 3"); e("v_lshl_add_u32 v1, v12, 6, v1")
    e("v_bfe_u32 v12, v15, 4, 1"); e("v_lshl_add_u32 v1, v12, 5, v1"); e("v_and_b32 v12, 1, v15"); e("v_lshl_add_u32 v1, v12, 4, v1")
    e("v_mov_b32 v13, 0xaaaa"); e("v_mul_u32_u24 v2, v12, v13"); e("v_add_u32 v2, 0x4444, v2")
    LX=10240
    e("v_lshrrev_b32 v12, 5, v15"); e("v_lshlrev_b32 v12, 2, v12"); e("v_and_b32 v13, 15, v15"); e("v_xor_b32 v12, v12, v13")
    e("v_lshlrev_b32 v6, 3, v12"); e("v_lshrrev_b32 v12, 4, v15"); e("v_lshl_add_u32 v6, v12, 7, v6")
    e(f"s_lshl_b32 {sT0}, {sW}, 10"); e(f"s_add_u32 {sT0}, {sT0}, {LX}"); e(f"v_add_u32 v6, {sT0}, v6")
    e("v_bfe_u32 v12, v15, 3, 1"); e("v_lshlrev_b32 v7, 3, v12"); e("v_lshrrev_b32 v12, 4, v15"); e("v_lshl_add_u32 v7, v12, 1, v7")
    e("v_bfe_u32 v12, v15, 2, 1"); e("v_add_u32 v7, v7, v12"); e("v_bfe_u32 v12, v15, 1, 1"); e("v_lshlrev_b32 v12, 2, v12"); e("v_xor_b32 v7, v7, v12")
    e("v_lshlrev_b32 v7, 3, v7"); e("v_and_b32 v12, 3, v15"); e("v_lshl_add_u32 v7, v12, 7, v7"); e(f"v_add_u32 v7, {LX}, v7")
    e(f"s_mul_i32 {sT0}, {sW}, 2560"); e(f"v_add_u32 v8, {sT0}, v0")
    e("v_and_b32 v9, 0x1ff, v0"); e(f"v_add_u32 v9, {sT0}, v9")
    e("v_lshrrev_b32 v12, 4, v15"); e("v_lshlrev_b32 v12, 2, v12"); e("v_and_b32 v13, 15, v15"); e("v_sub_u32 v3, v13, v12")
    c=(128**-0.5)*math.log2(math.e)
    e(f"s_mov_b32 s96, {f32(c)}"); e(f"s_mov_b32 s97, {f32(c)}")
    e("s_mov_b32 s98, 0x3f803f80"); e("s_mov_b32 s99, 0x3f803f80"); e("s_mov_b32 s100, 0x3f003f00"); e("s_mov_b32 s101, 0x3f003f00")
    Q=16; K=48; VX=80; SX={(0,0):88,(1,0):92,(1,1):96}; SM=[100,104]; AB=108; KA=148; VA=156; X=164; P=[16,24]; O=32; ONE=48; SUM=52; PK=56
    rt(a,4)
    a.label("A_seg")
    e(f"s_lshl_b32 {sT0}, {sS}, 7"); e(f"s_add_u32 {sT0}, {sT0}, {KVCNT}")
    e("v_lshrrev_b32 v12, 9, v0"); e("v_lshlrev_b32 v10, 13, v12"); e("v_mul_u32_u24 v12, 2, v12"); e("v_sub_u32 v12, 32, v12")
    spin_wait(a,"A_qh",lambda:e(f"buffer_load_dword v11, v10, {S_WS}, {sT0} offen sc1"),lambda:e("v_cmp_gt_u32 vcc, v12, v11"),sleep=8)
    e(f"s_lshl_b32 {sT0}, {sS}, 5"); e(f"s_add_u32 {sT0}, {sT0}, {sH}"); e(f"s_lshl_b32 {sT0}, {sT0}, 13")
    e(f"s_add_u32 {sQ}, {sT0}, {XQ_OFF}"); e(f"s_add_u32 {sQ2}, {sQ}, 4096"); e(f"s_add_u32 {sK}, {sT0}, {XK_OFF}"); e(f"s_add_u32 {sK2}, {sK}, 4096")
    e(f"s_lshl_b32 {sT1}, {sW}, 11"); e(f"s_add_u32 {sV}, {sT0}, {sT1}"); e(f"s_add_u32 {sV}, {sV}, {XV_OFF}")
    for t in range(2):
        for ke in range(4):
            e(f"buffer_load_dwordx4 {vr(Q+16*t+4*ke,4)}, {vL16}, {S_WS}, {sQ2 if t else sQ} offen offset:{1024*ke} sc1",f"q{t}")
        for ke in range(4):
            e(f"buffer_load_dwordx4 {vr(K+16*t+4*ke,4)}, {vL16}, {S_WS}, {sK2 if t else sK} offen offset:{1024*ke} sc1",f"k{t}")
    for t in range(2): e(f"buffer_load_dwordx4 {vr(VX+4*t,4)}, {vL16}, {S_WS}, {sV} offen offset:{1024*t} sc1","vx")
    e(f"s_mul_i32 {sM}, {sS}, 10240"); e(f"s_add_u32 {sM}, {sM}, {MEMP_OFF}")
    e(f"s_lshl_b32 {sO}, {sS}, 6"); e(f"s_add_u32 {sO}, {sO}, {sH}"); e(f"s_lshl_b32 {sO}, {sO}, 2"); e(f"s_add_u32 {sO}, {sO}, {sW}"); e(f"s_lshl_b32 {sO}, {sO}, 10"); e(f"s_add_u32 {sO}, {sO}, {O_OFF}")
    e(f"s_lshl_b32 {sOC}, {sS}, 2"); e(f"s_lshr_b32 {sT0}, {sH}, 3"); e(f"s_add_u32 {sOC}, {sOC}, {sT0}"); e(f"s_lshl_b32 {sOC}, {sOC}, 7"); e(f"s_add_u32 {sOC}, {sOC}, {OCNT4}")
    def mf(d,A,B,first,op="v_mfma_f32_16x16x32_bf16",n=4):
        e(f"{op} {vr(d,4)}, {vr(A,n)}, {vr(B,n)}, {'0' if first else vr(d,4)}")
    for (qt,kt),d in SX.items():
        a.wait(vm=[f"q{qt}",f"k{kt}"])
        for ke in range(4): mf(d,K+16*kt+4*ke,Q+16*qt+4*ke,ke==0)
    for r in range(KA,KA+16,2): e(f"v_mov_b64 {vr(r,2)}, 0")
    e("v_mov_b32 v11, 0xff800000")
    for i in range(4):
        e(f"v_cmp_gt_i32 vcc, {i}, {vDG}")
        for d in (SX[(0,0)],SX[(1,1)]): e(f"v_cndmask_b32 v{d+i}, v{d+i}, v11, vcc")
    def ml():
        e(f"buffer_load_dwordx4 {vr(AB,4)}, {vML}, {S_WS}, {sM} offen sc1"); e(f"buffer_load_dwordx4 {vr(AB+4,4)}, {vML}, {S_WS}, {sM} offen offset:1024 sc1")
        e(f"buffer_load_dwordx4 {vr(AB+8,4)}, {vML3}, {S_WS}, {sM} offen offset:2048 sc1")
    def mc():
        e(f"v_max3_u32 v10, v{AB}, v{AB+2}, v{AB+4}"); e(f"v_max3_u32 v10, v10, v{AB+6}, v{AB+8}"); e(f"v_max_u32 v10, v10, v{AB+10}")
        e("v_cmp_eq_u32 vcc, -1, v10")
    spin_wait(a,"A_mem",ml,mc,sleep=OPT["asleep"])
    rt(a,0)
    e(f"ds_write_b128 {vML}, {vr(AB,4)}"); e(f"ds_write_b128 {vML}, {vr(AB+4,4)} offset:1024"); e(f"ds_write_b128 {vML3}, {vr(AB+8,4)} offset:2048")
    a.wait(lg="all"); e("s_barrier")
    for k in range(10): e(f"ds_read_b128 {vr(AB+4*k,4)}, {vA} offset:{1024*k}",f"A{k}")
    def sm(acc_,k,key):
        kk,b=T[key]; e(f"v_smfmac_f32_16x16x64_bf16 {vr(acc_,4)}, {vr(AB+4*k,4)}, {vr(b,8,kk)}, {vIDX}")
    for k in range(10):
        a.wait(lg=f"A{k}")
        for tau in range(2): sm(KA+4*tau,k,("k",k,tau))
    sm(VA,0,("v",0,0)); sm(VA+4,0,("v",0,1))
    for tau in range(2):
        r=KA+4*tau
        e(f"v_add_f32 v{r}, v{r}, v{r+1}"); e(f"v_add_f32 v{r+2}, v{r+2}, v{r+3}"); e(f"v_cvt_pk_bf16_f32 v{r+1}, v{r}, v{r+2}")
        e(f"v_mov_b32 v{r}, 0")
        e(f"ds_write_b64 {vXW}, {vr(r,2)} offset:{512*tau}","xw")
    for k in range(1,4):
        for tau in range(2): sm(VA+4*tau,k,("v",k,tau))
    a.wait(lg="xw"); e("s_barrier")
    for ke in range(4):
        for x in range(2): e(f"ds_read_b64_tr_b16 {vr(X+4*ke+2*x,2)}, {vXR} offset:{1024*ke+512*x}",f"X{ke}")
    for k in range(4,10):
        for tau in range(2): sm(VA+4*tau,k,("v",k,tau))
    for ke in range(4):
        a.wait(lg=f"X{ke}")
        for qt in range(2): mf(SM[qt],X+4*ke,Q+16*qt+4*ke,ke==0)
    for i in range(4): e(f"v_cvt_pk_bf16_f32 v{VA+i}, v{VA+2*i}, v{VA+2*i+1}")
    e(f"v_mov_b64 {vr(ONE,2)}, s[98:99]"); e(f"v_mov_b64 {vr(ONE+2,2)}, s[98:99]"); e(f"v_mov_b64 {vr(KA,2)}, s[100:101]")
    a.wait(vm="vx")
    for qt in range(2):
        ev=[r+i for r in ([SX[(0,0)]] if qt==0 else [SX[(1,0)],SX[(1,1)]]) for i in range(4)]+[SM[qt]+2,SM[qt]+3]
        e(f"v_max3_f32 v10, v{ev[0]}, v{ev[1]}, v{ev[2]}")
        for i in range(3,len(ev)-1,2): e(f"v_max3_f32 v10, v10, v{ev[i]}, v{ev[i+1]}")
        e(f"v_max_f32 v11, v10, v{ev[-1]}"); e(f"v_max_f32 v10, v10, v{ev[-1]}")
        e("v_permlane32_swap_b32 v10, v11"); e("v_max_f32 v12, v10, v11"); e("v_max_f32 v10, v10, v11")
        e("v_permlane16_swap_b32 v10, v12"); e("v_max_f32 v10, v10, v12"); e(f"v_mul_f32 v10, {sC}, v10")
        for r in ev[::2]: e(f"v_pk_fma_f32 {vr(r,2)}, {vr(r,2)}, {sCC}, v[10:11] op_sel_hi:[1,1,0] neg_lo:[0,0,1] neg_hi:[0,0,1]")
        for r in ev: e(f"v_exp_f32 v{r}, v{r}")
        p=P[qt]
        for i in range((len(ev)-2)//2): e(f"v_cvt_pk_bf16_f32 v{p+i}, v{ev[2*i]}, v{ev[2*i+1]}")
        if qt==0: e(f"v_mov_b64 {vr(p+2,2)}, 0")
        e(f"v_cvt_pk_bf16_f32 v{p+4}, v{ev[-2]}, v{ev[-2]}"); e(f"v_cvt_pk_bf16_f32 v{p+5}, v{ev[-1]}, v{ev[-1]}")
        o=O+8*qt
        mf(SUM,ONE,p,1); mf(o,VX,p,1); mf(o+4,VX+4,p,1)
        mf(SUM,KA,p+4,0,"v_mfma_f32_16x16x16_bf16",2); mf(o,VA,p+4,0,"v_mfma_f32_16x16x16_bf16",2); mf(o+4,VA+2,p+4,0,"v_mfma_f32_16x16x16_bf16",2)
        e(f"v_rcp_f32 v10, v{SUM}")
        pk=PK+4*qt
        for i in range(0,4,2):
            for t in range(2): e(f"v_pk_mul_f32 {vr(o+4*t+i,2)}, {vr(o+4*t+i,2)}, v[10:11] op_sel_hi:[1,0]")
            for k in range(2): e(f"v_cvt_pk_bf16_f32 v{pk+i+k}, v{o+i+k}, v{o+4+i+k}")
        if qt: e(f"s_add_u32 {sO}, {sO}, {32*4096}")
        e(f"buffer_store_dwordx4 {vr(pk,4)}, {vL16}, {S_WS}, {sO} offen sc1","o")
    rt(a,1)
    e("s_waitcnt vmcnt(0)"); a.vm=[]; e("s_barrier")
    rt(a,2)
    e(f"s_cmp_eq_u32 {sW}, 0"); e("s_cbranch_scc0 A_nosig")
    e("s_mov_b64 exec, 1"); e("v_mov_b32 v10, 0"); e("v_mov_b32 v11, 1")
    e(f"buffer_atomic_add v11, v10, {S_WS}, {sOC} offen"); e("s_mov_b64 exec, -1"); e("s_nop 3")
    a.label("A_nosig")
    e(f"s_add_u32 {sS}, {sS}, 2"); e(f"s_cmp_lt_u32 {sS}, 64"); e("s_cbranch_scc1 A_seg")
    finish(a)

def finish(a):
    e=a.e
    e("s_waitcnt vmcnt(0)")
    if OPT["tim"]:
        rt(a,5); e("s_waitcnt lgkmcnt(0)")
        for i in range(6): e(f"v_mov_b32 v{12+i}, s{70+2*i}")
        e("v_mov_b32 v18, s90"); e("v_mov_b32 v19, s32")
        e(f"s_lshl_b32 s34, s33, 2"); e(f"s_add_u32 s34, s34, {sW}"); e("s_lshl_b32 s34, s34, 5"); e(f"s_add_u32 s34, s34, {DBG_OFF+131072}")
        e("v_mov_b32 v10, 0"); e("s_mov_b64 exec, 1")
        e(f"buffer_store_dwordx4 v[12:15], v10, {S_WS}, s34 offen"); e(f"buffer_store_dwordx4 v[16:19], v10, {S_WS}, s34 offen offset:16")
        if C.OPT["dbgout"]:
            e("v_mov_b32 v10, 40"); e(f"global_atomic_umax v10, v17, {sDBG}")
        e("s_waitcnt vmcnt(0)")
    e("s_endpgm")

def stageB(a):
    e=a.e
    sN="s24"; sS="s25"; sHF="s26"; sT0="s34"; sT1="s35"; sHS="s27"; sHH="s28"; sOO="s29"; sXO="s30"; sPAR="s31"; sMIX="s37"
    S_O="s[16:19]"; S_XX="s[20:23]"
    e(f"s_load_dwordx2 s[40:41], s[0:1], {A_WO}"); e(f"s_load_dwordx2 s[42:43], s[0:1], {B_W2}"); e(f"s_load_dwordx2 s[44:45], s[0:1], {B_B2}")
    e(f"s_load_dwordx2 s[16:17], s[0:1], {D_OUT}"); e(f"s_load_dwordx2 s[20:21], s[0:1], {A_X}")
    e(f"s_sub_u32 {sT0}, s33, 128")
    e(f"s_mul_i32 {sS}, {sT0}, 1639"); e(f"s_lshr_b32 {sS}, {sS}, 16")
    e(f"s_mul_i32 {sT1}, {sS}, 40"); e(f"s_sub_u32 {sT0}, {sT0}, {sT1}")
    e(f"s_cmp_ge_u32 {sT0}, 20"); e(f"s_cselect_b32 {sHF}, 1, 0"); e(f"s_mul_i32 {sT1}, {sHF}, 20"); e(f"s_sub_u32 {sN}, {sT0}, {sT1}")
    e(f"v_mov_b32 v15, {vLN}")
    e("v_lshrrev_b32 v4, 4, v15"); e("v_and_b32 v5, 15, v15"); e("v_lshlrev_b32 v5, 2, v5"); e(f"s_lshl_b32 {sT0}, {sN}, 6"); e(f"v_add_u32 v5, {sT0}, v5")
    e("v_mul_u32_u24 v1, 10240, v4"); e("v_add_u32 v1, v1, v5"); e(f"s_mul_i32 {sT0}, {sW}, {1024*1280}"); e(f"v_add_u32 v1, {sT0}, v1")
    e("v_mul_u32_u24 v2, 5120, v4"); e("v_add_u32 v2, v2, v5"); e(f"s_mul_i32 {sT0}, {sW}, {14*32*1280}"); e(f"v_add_u32 v2, {sT0}, v2")
    e(f"s_mov_b32 s18, {S*D*2}"); e("s_mov_b32 s19, 0x20000"); e(f"s_mov_b32 s22, {S*D*2}"); e("s_mov_b32 s23, 0x20000")
    e("s_waitcnt lgkmcnt(0)")
    groups=[]
    for kk in range(16):
        loads=[("v1",(64*kk+32*(R>>2)+2*(R&3)+x)*1280) for R in range(8) for x in range(2)]
        d=[[("a",16*kk+8*(R>>2)+4*tau+(R&3)) for R in range(8)] for tau in range(2)]
        groups.append((["s_mov_b32 s8, s40","s_mov_b32 s9, s41",f"s_mov_b32 s10, {4096*1280}"] if kk==0 else [],loads,d[0],d[1]))
    W2=144
    for kk in range(7):
        loads=[("v2",(64*kk+32*(R>>2)+16*((R>>1)&1)+2*(R&1)+x)*1280) for R in range(8) for x in range(2)]
        d=[[("v",W2+16*kk+8*(R>>2)+4*tau+(R&3)) for R in range(8)] for tau in range(2)]
        groups.append((["s_mov_b32 s8, s42","s_mov_b32 s9, s43",f"s_mov_b32 s10, {F*1280}"] if kk==0 else [],loads,d[0],d[1]))
    load_pairs(a,groups,[16,32,48],8,lock=False)
    vL16="v0"; vXO="v1"; vRW="v2"; B2=4
    e("v_lshlrev_b32 v0, 4, v15")
    e("v_and_b32 v12, 15, v15"); e("v_mul_u32_u24 v1, 1280, v12"); e("v_lshrrev_b32 v12, 4, v15"); e("v_lshlrev_b32 v12, 4, v12")
    e(f"s_lshl_b32 {sT0}, {sN}, 6"); e(f"v_add_u32 v12, {sT0}, v12"); e("v_add_u32 v1, v1, v12")
    e(f"s_lshl_b32 {sT0}, {sW}, 11"); e(f"v_add_u32 v2, {sT0}, v0")
    e("s_mov_b32 s8, s44"); e("s_mov_b32 s9, s45"); e(f"s_mov_b32 s10, {D*2}")
    e("buffer_load_dwordx4 v[16:19], v12, s[8:11], 0 offen"); e(f"s_mov_b32 {sMIX}, 0xffff0000")
    e("s_waitcnt vmcnt(0)"); a.vm=[]
    for i in range(4): e(f"v_lshlrev_b32 v{B2+i}, 16, v{16+i}"); e(f"v_and_b32 v{B2+4+i}, {sMIX}, v{16+i}")
    e(f"s_mov_b32 {sPAR}, 0")
    AC=[12,16]; XR=20; RING=32; NR=24; RED=128
    rt(a,4)
    e("v_mov_b32 v28, v0"); e("v_mov_b32 v29, v1"); e(f"s_mov_b32 s39, {sS}")
    a.label("B_unit")
    if OPT["split"]:
        e(f"s_cmp_eq_u32 {sS}, 63"); e("s_cbranch_scc0 B_full")
        e("v_bfe_u32 v24, v0, 7, 1"); e("v_cmp_eq_u32 vcc, s39, v24"); e("v_mov_b32 v24, 0x7ff00000")
        e("v_cndmask_b32 v28, v24, v0, vcc"); e("v_cndmask_b32 v29, v24, v1, vcc")
        a.label("B_full")
    e(f"s_lshl_b32 {sT0}, {sS}, 7"); e(f"s_add_u32 {sT0}, {sT0}, {QHCNT}"); e("v_mov_b32 v24, 0")
    spin_wait(a,"B_qh",lambda:e(f"buffer_load_dword v25, v24, {S_WS}, {sT0} offen sc1"),lambda:e("v_cmp_gt_u32 vcc, 30, v25"),sleep=8)
    e(f"s_lshl_b32 {sHS}, {sS}, 1"); e(f"s_add_u32 {sHS}, {sHS}, {sHF}")
    e(f"s_mul_i32 {sHH}, {sHS}, {54*1024}"); e(f"s_mul_i32 {sT0}, {sW}, {14*1024}"); e(f"s_add_u32 {sHH}, {sHH}, {sT0}"); e(f"s_add_u32 {sHH}, {sHH}, {HH_OFF}")
    e(f"s_lshl_b32 {sOO}, {sHS}, 17"); e(f"s_lshl_b32 {sT0}, {sW}, 15"); e(f"s_add_u32 {sOO}, {sOO}, {sT0}"); e(f"s_add_u32 {sOO}, {sOO}, {O_OFF}")
    e(f"s_mul_i32 {sXO}, {sHS}, {16*1280}")
    def ld(i,sreg,tag):
        if i and i%4==0: e(f"s_add_u32 {sreg}, {sreg}, 4096")
        e(f"buffer_load_dwordx4 {vr(RING+4*(i%NR),4)}, v28, {S_WS}, {sreg} offen offset:{1024*(i%4)} sc1",tag)
    def mm(i,base,kind,first):
        for tau in range(2):
            e(f"v_mfma_f32_16x16x32_bf16 {vr(AC[tau],4)}, {vr(base+8*i+4*tau,4,kind)}, {vr(RING+4*(i%NR),4)}, {'0' if first else vr(AC[tau],4)}")
    for i in range(14):
        if i==12:
            e(f"s_cmp_eq_u32 {sW}, 3"); e(f"s_cselect_b32 {sHH}, 0x7ff00000, {sHH}")
        ld(i,sHH,f"h{i}")
    e(f"buffer_load_dwordx4 {vr(XR,4)}, {vXO}, {S_XX}, {sXO} offen","xr")
    for i in range(14):
        a.wait(vm=f"h{i}"); mm(i,W2,"v",i==0)
    e(f"s_lshl_b32 {sT0}, {sS}, 2"); e(f"s_add_u32 {sT0}, {sT0}, {sW}"); e(f"s_lshl_b32 {sT0}, {sT0}, 7"); e(f"s_add_u32 {sT0}, {sT0}, {OCNT4}")
    spin_wait(a,"B_o",lambda:e(f"buffer_load_dword v25, v24, {S_WS}, {sT0} offen sc1"),lambda:e("v_cmp_gt_u32 vcc, 8, v25"),sleep=OPT["bsleep"])
    rt(a,0)
    for i in range(NR): ld(i,sOO,f"o{i}")
    for i in range(32):
        a.wait(vm=f"o{i}"); mm(i,0,"a",False)
        if i+NR<32: ld(i+NR,sOO,f"o{i+NR}")
    rt(a,1)
    e(f"v_add_u32 v26, {sPAR}, {vRW}"); e(f"v_add_u32 v27, {sPAR}, {vL16}")
    e(f"ds_write_b128 v26, {vr(AC[0],4)}"); e(f"ds_write_b128 v26, {vr(AC[1],4)} offset:1024")
    a.wait(lg="all"); e("s_barrier")
    e(f"s_cmp_eq_u32 {sW}, 0"); e("s_cbranch_scc0 B_next")
    for j in range(6): e(f"ds_read_b128 {vr(RING+4*j,4)}, v27 offset:{2048+1024*j}",f"r{j}")
    for i in range(4):
        e(f"v_lshlrev_b32 v{RING+24+i}, 16, v{XR+i}"); e(f"v_and_b32 v{RING+28+i}, {sMIX}, v{XR+i}")
    for i in range(8): e(f"v_add_f32 v{RING+24+i}, v{RING+24+i}, v{B2+i}")
    for i in range(8): e(f"v_add_f32 v{AC[0]+i}, v{AC[0]+i}, v{RING+24+i}")
    for j in range(3):
        a.wait(lg=f"r{2*j+1}")
        for i in range(8): e(f"v_add_f32 v{AC[0]+i}, v{AC[0]+i}, v{RING+8*j+i}")
    for i in range(4): e(f"v_cvt_pk_bf16_f32 v{XR+i}, v{AC[0]+i}, v{AC[1]+i}")
    e(f"buffer_store_dwordx4 {vr(XR,4)}, v29, {S_O}, {sXO} offen sc1")
    a.label("B_next")
    e(f"s_xor_b32 {sPAR}, {sPAR}, 8192")
    e(f"s_add_u32 {sS}, {sS}, 2")
    if OPT["split"]: e(f"s_cmp_eq_u32 {sS}, 64"); e(f"s_cselect_b32 {sS}, 63, {sS}")
    e(f"s_cmp_lt_u32 {sS}, 64"); e("s_cbranch_scc1 B_unit")
    finish(a)

def hold(a,name):
    if not OPT["hold"]: return
    e=a.e
    e(f"s_mov_b32 {sA}, {OPT['hold']}")
    spin_wait(a,name,lambda:(e(f"v_mov_b32 v{TMP+4}, 0"),e(f"buffer_load_dword v{TMP+5}, v{TMP+4}, {S_WS}, {sA} offen sc1")),lambda:e(f"v_cmp_gt_u32 vcc, {OPT['holdn']}, v{TMP+5}"),sleep=16)

def workers(a):
    e=a.e
    common(a)
    e(f"s_cmp_lt_u32 {sWI}, 62"); e("s_cbranch_scc0 W_notp")
    project(a)
    a.label("W_notp")
    e(f"s_cmp_lt_u32 {sWI}, 64"); e("s_cbranch_scc1 L_exit")
    norm_rows(a)
    e(f"s_cmp_ge_u32 {sWI}, {OPT['lastwi']}"); e("s_cbranch_scc1 L_exit")
    zero_wait(a,"W_zero3")
    hold(a,"W_hold")
    e("s_barrier")
    e(f"s_cmp_lt_u32 {sWI}, 128"); e("s_cbranch_scc0 W_stageB")
    stageA(a)
    a.label("W_stageB")
    stageB(a)
```

```python
from asmlib import *
from layout import *
import math

L_MEM=0; L_X=10240; L_KX=14336; L_SEL=22528; L_ROLE=23552; L_W=24576
S_WS="s[4:7]"; S_T="s[8:11]"
sH="s12"; sSTEP="s14"; sMR="s15"; sMW="s16"; sMZ="s17"; sTAG="s18"; sTAGM="s19"
sKX="s20"; sVX="s21"; sPC="s22"; sMP="s23"; sSW="s24"; sP0="s25"; sP1="s26"; sP2="s27"
sPR=["s28","s29","s30","s31"]; sCNT="s32"; sC="s33"; sFE="s34"; sKX2="s35"; sSW2="s36"; sSW3="s37"; sSW4="s38"
sPLO="s40"; sPHI="s41"; sT0="s42"; sT1="s43"; sEX="s[44:45]"; sUNIT="s46"; sKXN="s47"; sVXN="s48"; sMF="s49"; sPAT="s39"; sALL="s31"; sMU="s53"; sF1W="s88"; sF1R="s89"
sCC="s[96:97]"; sONE="s[98:99]"; sHALF="s[100:101]"; sDBG="s[50:51]"; sXCC="s52"; sMODE="s87"
vL16="v0"; vA="v1"; vIDX="v2"; vW="v3"; vRL="v4"; vRS="v5"; vXW="v6"; vXR="v7"; vOW="v8"; vL8="v9"
T0=10; T1=11
AB=[12,16,20,24]; QA=28; KA=32; VA=36; SL1=40; SL2=48; SL3=56

QSEQ=[]; Q_SLOT={}; O_SLOT={}; SLOT={}; TG={}; TL={}; TR={}; GPOS=[]
QS={0:{0:(SL1,"L"),1:(SL2,"L"),25:(SL3,"G"),29:(SL1,"G"),33:(SL2,"G"),31:(SL3,"L"),37:(SL3,"L"),43:(SL3,"L"),35:(SL1,"L"),41:(SL1,"L"),47:(SL1,"L"),39:(SL2,"L")},
    1:{16:(SL3,"G"),19:(SL1,"G"),22:(SL2,"G"),23:(SL3,"L"),29:(SL3,"L"),35:(SL3,"L"),41:(SL3,"L"),25:(SL1,"L"),31:(SL1,"L"),37:(SL1,"L"),27:(SL2,"L"),33:(SL2,"L")},
    2:{12:(SL3,"G"),16:(SL1,"G"),20:(SL2,"G"),18:(SL3,"L"),24:(SL3,"L"),30:(SL3,"L"),36:(SL3,"L"),22:(SL1,"L"),28:(SL1,"L"),34:(SL1,"L"),26:(SL2,"L"),32:(SL2,"L")},
    3:{14:(SL3,"G"),18:(SL1,"G"),22:(SL2,"G"),20:(SL3,"L"),28:(SL3,"L"),36:(SL3,"L"),44:(SL3,"L"),24:(SL1,"L"),32:(SL1,"L"),40:(SL1,"L"),30:(SL2,"L"),38:(SL2,"L")},
    4:{0:(SL1,"L"),1:(SL2,"L"),12:(SL3,"G"),27:(SL1,"G"),31:(SL2,"G"),18:(SL3,"L"),24:(SL3,"L"),30:(SL3,"L"),33:(SL1,"L"),39:(SL1,"L"),37:(SL2,"L"),43:(SL2,"L")},
    5:{0:(SL1,"L"),1:(SL2,"L"),10:(SL3,"G"),24:(SL1,"G"),28:(SL2,"G"),16:(SL3,"L"),22:(SL3,"L"),30:(SL3,"L"),38:(SL3,"L"),32:(SL1,"L"),42:(SL1,"L"),35:(SL2,"L")},
    6:{0:(SL1,"L"),1:(SL2,"L"),14:(SL3,"G"),25:(SL1,"G"),29:(SL2,"G"),20:(SL3,"L"),27:(SL3,"L"),33:(SL3,"L"),40:(SL3,"L"),31:(SL1,"L"),37:(SL1,"L"),35:(SL2,"L")}}
OS={0:{0:(28,"G"),1:(SL1,"G"),9:(SL2,"G"),19:(SL1,"G"),2:(SL3,"L"),5:(SL3,"L"),8:(SL3,"L"),11:(SL3,"L"),14:(SL3,"L"),17:(SL3,"L"),12:(SL2,"L"),15:(SL2,"L")},
    1:{0:(28,"G"),1:(SL1,"G"),11:(SL2,"G"),19:(SL1,"G"),2:(SL3,"L"),6:(SL3,"L"),10:(SL3,"L"),14:(SL3,"L"),18:(SL3,"L"),5:(SL1,"L"),15:(SL2,"L"),17:(SL3,"X")},
    2:{0:(28,"G"),1:(SL1,"G"),9:(SL2,"G"),19:(SL1,"G"),2:(SL3,"L"),6:(SL3,"L"),10:(SL3,"L"),14:(SL3,"L"),18:(SL3,"L"),5:(SL1,"L"),13:(SL2,"L"),17:(SL2,"L")},
    3:{0:(28,"G"),1:(SL1,"G"),11:(SL2,"G"),19:(SL1,"G"),2:(SL3,"L"),6:(SL3,"L"),10:(SL3,"L"),13:(SL3,"L"),16:(SL3,"L"),5:(SL1,"L"),15:(SL2,"L"),18:(SL2,"L")},
    4:{0:(28,"G"),1:(SL1,"G"),18:(SL2,"G"),19:(SL1,"G"),2:(SL3,"L"),6:(SL3,"L"),10:(SL3,"L"),14:(SL3,"L"),3:(SL2,"L"),7:(SL2,"L"),5:(SL1,"L"),9:(SL1,"L")},
    5:{0:(28,"G"),1:(SL1,"G"),9:(SL2,"G"),19:(SL1,"G"),2:(SL3,"L"),6:(SL3,"L"),10:(SL3,"L"),13:(SL3,"L"),16:(SL3,"L"),12:(SL2,"L"),15:(SL2,"L"),18:(SL2,"L")},
    6:{0:(28,"G"),1:(SL1,"G"),8:(SL2,"G"),19:(SL1,"G"),2:(SL3,"L"),7:(SL3,"L"),10:(SL3,"L"),13:(SL3,"L"),16:(SL3,"L"),11:(SL2,"L"),14:(SL2,"L"),17:(SL2,"L")},
    8:{0:(28,"G"),4:(SL1,"G"),10:(SL2,"G"),19:(SL1,"G"),2:(SL3,"L"),5:(SL3,"L"),8:(SL3,"L"),11:(SL3,"L"),14:(SL3,"L"),17:(SL3,"L"),13:(SL2,"L"),16:(SL2,"L")},
    9:{0:(28,"G"),3:(SL1,"G"),10:(SL2,"G"),19:(SL1,"G"),2:(SL3,"L"),6:(SL3,"L"),9:(SL3,"L"),12:(SL3,"L"),15:(SL3,"L"),18:(SL3,"L"),13:(SL2,"L"),16:(SL2,"L")}}
def setup_tiles():
    NV=OPT['nv']
    QSEQ[:]=[(m,k) for k in range(NV) for m in "qkv"]+[(m,k) for k in range(NV,18) for m in "qk"]+[("q",18),("q",19),("k",18),("k",19)]
    for d in (Q_SLOT,O_SLOT,SLOT,TG,TL,TR): d.clear()
    Q_SLOT.update(QS[OPT["qs"]]); O_SLOT.update(OS[OPT["os"]])
    GPOS[:]=sorted(p for p,v in Q_SLOT.items() if v[1]=="G")
    SLOT.update({QSEQ[p]:v for p,v in Q_SLOT.items()}); SLOT.update({("o",n):v for n,v in O_SLOT.items()})
    for key in [(m,k) for m in "qkvo" for k in range(20)]:
        kind=SLOT.get(key,(0,"R"))[1]
        if kind=="G": TG[key]=len(TG)
        elif kind=="L": TL[key]=len(TL)
        else: i=len(TR); TR[key]=("a",8*i) if i<32 else ("v",64+8*(i-32))
    assert len(TR)==56 and len(TG)==7 and len(TL)==17
def use_map(w): pass

def sw_ref(idx):
    return [sSW,sSW2,sSW3,sSW4][idx//2], (idx&1)*2048

def gload_tile(a,key,slot,tag):
    if "G" in OPT["ab"] or ("O" in OPT["ab"] and tag in("go9","go19")): return
    s,imm=sw_ref(TG[key])
    fl="" if tag in OPT["l1"] else OPT["gfl"]
    a.e(f"buffer_load_dwordx4 {vr(slot,4)}, {vL16}, {S_WS}, {s} offen offset:{imm} {fl}",tag)
    a.e(f"buffer_load_dwordx4 {vr(slot+4,4)}, {vL16}, {S_WS}, {s} offen offset:{imm+1024} {fl}",tag)
def gload_half(a,key,slot,tag,half):
    if "G" in OPT["ab"] or ("O" in OPT["ab"] and tag in("go9","go19")): return
    s,imm=sw_ref(TG[key])
    a.e(f"buffer_load_dwordx4 {vr(slot+4*half,4)}, {vL16}, {S_WS}, {s} offen offset:{imm+1024*half}",tag)
def lload_tile(a,key,slot,tag):
    o=TL[key]*2048
    a.e(f"ds_read_b128 {vr(slot,4)}, {vW} offset:{o}",tag)
    a.e(f"ds_read_b128 {vr(slot+4,4)}, {vW} offset:{o+1024}",tag)
def sm(a,acc,A,key,slot=None):
    if key in TR: k,b=TR[key]
    else: k,b="v",slot
    a.e(f"v_smfmac_f32_16x16x64_bf16 {vr(acc,4)}, {vr(A,4)}, {vr(b,8,k)}, {vIDX}")
def zero4(a,r):
    a.e(f"v_mov_b64 {vr(r,2)}, 0"); a.e(f"v_mov_b64 {vr(r+2,2)}, 0")

def chain_init(a, sW, poll):
    setup_tiles()
    e=a.e
    e("s_load_dwordx2 s[54:55], s[0:1], %d"%A_WQ); e("s_load_dwordx2 s[56:57], s[0:1], %d"%A_WK)
    e("s_load_dwordx2 s[58:59], s[0:1], %d"%A_WV); e("s_load_dwordx2 s[60:61], s[0:1], %d"%A_WO)
    e("s_load_dwordx2 s[62:63], s[0:1], %d"%A_MEM0)
    e(f"s_mov_b32 {sPLO}, 0x05040100"); e(f"s_mov_b32 {sPHI}, 0x07060302")
    e("v_mov_b32 v15, v0"); e("v_lshlrev_b32 v0, 4, v0"); e("s_mov_b32 s11, 0x20000")
    def lanes():
        e("v_bfe_u32 v12, v15, 1, 3"); e("v_lshlrev_b32 v1, 6, v12"); e("v_lshrrev_b32 v12, 4, v15"); e("v_lshl_add_u32 v1, v12, 4, v1")
        e("v_and_b32 v12, 1, v15")
        e("v_mov_b32 v13, 0xaaaa"); e("v_mul_u32_u24 v2, v12, v13"); e("v_add_u32 v2, 0x4444, v2")
        e(f"s_lshl_b32 {sUNIT}, {sW}, 5"); e(f"s_add_u32 {sUNIT}, {sUNIT}, {sH}"); e(f"s_lshl_b32 {sT0}, {sUNIT}, 7")
        e("v_lshrrev_b32 v12, 3, v15"); e("v_mul_u32_u24 v4, 10240, v12"); e("v_and_b32 v12, 7, v15"); e("v_lshl_add_u32 v4, v12, 4, v4")
        e(f"v_add_u32 v4, {sT0}, v4")
        e(f"s_and_b32 {sT1}, {sUNIT}, 1"); e(f"s_lshl_b32 {sT1}, {sT1}, 2"); e(f"s_bfe_u32 {sMU}, {sUNIT}, 0x20001"); e(f"s_or_b32 {sT1}, {sT1}, {sMU}")
        e(f"s_andn2_b32 {sMU}, {sUNIT}, 7"); e(f"s_or_b32 {sT1}, {sT1}, {sMU}"); e(f"s_cmp_lt_u32 {sUNIT}, 64"); e(f"s_cselect_b32 {sMU}, {sT1}, {sUNIT}")
        e(f"s_lshl_b32 {sT0}, {sMU}, 7")
        e("v_lshrrev_b32 v12, 4, v15"); e("v_lshlrev_b32 v5, 6, v12"); e("v_and_b32 v12, 15, v15"); e("v_lshl_add_u32 v5, v12, 3, v5")
        e(f"v_add_u32 v5, {sT0}, v5"); e("v_and_b32 v12, 0x28, v15"); e("v_cmp_eq_u32 vcc, 0, v12"); e("v_mov_b32 v13, 0x7ff00000")
        e("v_cndmask_b32 v5, v13, v5, vcc")
        if OPT["probe"]=="c": e(f"s_lshl_b32 {sT1}, {sUNIT}, 3"); e(f"s_add_u32 {sT1}, {sT1}, 10240"); e(f"v_writelane_b32 v5, {sT1}, 32")
        e("v_lshrrev_b32 v12, 5, v15"); e("v_lshlrev_b32 v12, 2, v12"); e("v_and_b32 v13, 15, v15"); e("v_xor_b32 v12, v12, v13")
        e("v_lshlrev_b32 v6, 3, v12"); e("v_lshrrev_b32 v12, 4, v15"); e("v_lshl_add_u32 v6, v12, 7, v6")
        e(f"s_lshl_b32 {sT0}, {sW}, 10"); e(f"s_add_u32 {sT0}, {sT0}, {L_X}"); e(f"v_add_u32 v6, {sT0}, v6")
        e("v_bfe_u32 v12, v15, 3, 1"); e("v_lshlrev_b32 v7, 3, v12"); e("v_lshrrev_b32 v12, 4, v15"); e("v_lshl_add_u32 v7, v12, 1, v7")
        e("v_bfe_u32 v12, v15, 2, 1"); e("v_add_u32 v7, v7, v12"); e("v_bfe_u32 v12, v15, 1, 1"); e("v_lshlrev_b32 v12, 2, v12"); e("v_xor_b32 v7, v7, v12")
        e("v_lshlrev_b32 v7, 3, v7"); e("v_and_b32 v12, 3, v15"); e("v_lshl_add_u32 v7, v12, 7, v7"); e(f"v_add_u32 v7, {L_X}, v7")
        e("v_bfe_u32 v12, v15, 2, 2"); e("v_lshlrev_b32 v8, 7, v12"); e("v_and_b32 v12, 1, v15"); e("v_lshl_add_u32 v8, v12, 6, v8")
        e("v_lshrrev_b32 v12, 4, v15"); e("v_lshl_add_u32 v8, v12, 4, v8"); e(f"s_lshl_b32 {sT0}, {sW}, 9"); e(f"v_add_u32 v8, {sT0}, v8")
        if OPT["owx"]==2: e("v_and_b32 v12, 2, v15"); e("v_lshl_add_u32 v8, v12, 17, v8")
        if not OPT["owx"]: e(f"v_and_b32 v13, 0x1ff, v8"); e(f"v_add_u32 v13, {L_ROLE+512}, v13"); e("v_and_b32 v12, 2, v15"); e("v_cmp_eq_u32 vcc, 0, v12"); e("v_cndmask_b32 v8, v13, v8, vcc")
        e("v_lshlrev_b32 v9, 3, v15")
    def waddr():
        e("v_lshrrev_b32 v4, 4, v15"); e("v_lshlrev_b32 v4, 2, v4")
        e("v_and_b32 v5, 15, v15"); e("v_lshlrev_b32 v5, 2, v5")
        e(f"s_lshl_b32 {sT0}, {sH}, 8"); e(f"s_lshl_b32 {sT1}, {sW}, 6"); e(f"s_add_u32 {sT0}, {sT0}, {sT1}")
        e("v_lshl_add_u32 v1, v4, 13, v5"); e(f"v_add_u32 v1, {sT0}, v1")
        e("v_mul_u32_u24 v2, 1280, v4"); e("v_add_u32 v2, v2, v5")
        e(f"s_mul_i32 {sT0}, {sH}, {128*1280}"); e(f"s_add_u32 {sT0}, {sT0}, {sT1}"); e(f"v_add_u32 v2, {sT0}, v2")
        e("v_add_u32 v14, v2, v5"); e(f"v_add_u32 v14, {sT1}, v14")
        if "X" in OPT["ab"]:
            e("v_add_u32 v1, v1, v5"); e(f"s_and_b32 {sT0}, {sW}, 1"); e(f"s_mul_i32 {sT0}, {sT0}, {8192-64}"); e(f"v_add_u32 v1, {sT0}, v1")
            e(f"s_and_b32 {sT0}, {sW}, 1"); e(f"s_mul_i32 {sT0}, {sT0}, 1280"); e(f"v_add_u32 v14, {sT0}, v14"); e(f"v_add_u32 v2, {sT0}, v2")
        if OPT["stg"]:
            e("v_lshrrev_b32 v12, 4, v15"); e(f"s_lshl_b32 {sT0}, {sW}, 4"); e(f"v_add_u32 v1, {sT0}, v12"); e("v_lshlrev_b32 v1, 13, v1")
            e("v_and_b32 v13, 15, v15"); e("v_lshl_add_u32 v1, v13, 4, v1"); e(f"s_lshl_b32 {sT0}, {sH}, 8"); e(f"v_add_u32 v1, {sT0}, v1")
            e("v_lshlrev_b32 v13, 10, v12"); e("v_add_u32 v13, v13, v5"); e(f"v_add_u32 v13, {sT1}, v13")
        e(f"s_mul_i32 {sT0}, {sW}, {17*2048}"); e(f"s_add_u32 {sT0}, {sT0}, {L_W}"); e(f"v_add_u32 v3, {sT0}, v0")
        e(f"s_lshl_b32 {sT0}, {sH}, 2"); e(f"s_add_u32 {sT0}, {sT0}, {sW}"); e(f"s_lshl_b32 {sT0}, {sT0}, 14")
        e(f"s_add_u32 {sSW}, {sT0}, {SW_OFF}"); e(f"s_add_u32 {sSW2}, {sSW}, 4096"); e(f"s_add_u32 {sSW3}, {sSW}, 8192"); e(f"s_add_u32 {sSW4}, {sSW}, 12288")
        e("s_mov_b32 s10, %d"%(640*8192)); e("s_mov_b32 s11, 0x20000")
        if OPT["stg"]: e(f"s_lshl_b32 {sT1}, {sW}, 12")
    groups=[(m,k) for m in "qkv" for k in range(10)]+[("o",j,ko) for j in range(5) for ko in range(2)]
    LB=[16,32,48,240][:OPT["idepth"]+1]
    lbuf=lambda i: LB[i%len(LB)] if (len(LB)<4 or i<36) else LB[(0,1,2,0)[i-36]]
    base={"q":54,"k":56,"v":58,"o":60}
    cur=[None]
    STG=OPT["stg"]
    if STG:
        groups=groups[:30]+[("o2",c,ko) for c in range(2) for ko in range(4)]+[("o",4,ko) for ko in range(2)]
        base["o2"]=60
        tiles=lambda g: [("o",8*g[1]+4*u+g[2]) for u in range(2)] if g[0]=="o2" else [("o",4*g[1]+2*g[2]+u) for u in range(2)]
        free=[g for g in groups[30:] if not any(t in TL for t in tiles(g))][:OPT["ofree"]]
        groups=groups[:30]+[g for g in groups[30:] if g not in free]+free
        NF=len(free); NG=len(groups)-NF
        assert all(TL[k]>=9 for k in TL if k[0]=="o") and all(TL[k]<9 for k in TL if k[0]!="o")
    NS=OPT["ns"]; SD=OPT["sd"]
    slot=lambda i: L_W+(i%NS)*17*2048+9*2048 if i%NS<4 else 0
    def issue(i):
        g=groups[i]; lb=lbuf(i)
        if cur[0]!=g[0]:
            e(f"s_mov_b32 s8, s{base[g[0]]}"); e(f"s_mov_b32 s9, s{base[g[0]]+1}"); cur[0]=g[0]
        if STG and i<30:
            for j in range(4):
                e(f"s_add_u32 m0, {sT1}, {slot(i)+1024*j}"); e(f"s_mov_b32 {sT0}, {(64*g[1]+4*j)*8192}")
                e(f"buffer_load_dwordx4 v1, {S_T}, {sT0} offen {OPT['wfl']} lds",f"w{i}")
            return
        if g[0]=="o2":
            for j in range(4):
                for x in range(2):
                    row=32*g[2]+16*(j>>1)+2*(j&1)+x
                    e(f"s_mov_b32 {sT0}, {row*1280+512*g[1]}")
                    e(f"buffer_load_dwordx2 {vr(lb+4*j+2*x,2)}, v14, {S_T}, {sT0} offen",f"w{i}")
            return
        for j in range(8):
            for x in range(2):
                row=64*g[-1]+32*(j>>2)+16*((j>>1)&1)+2*(j&1)+x
                if g[0]!="o": off=row*8192; vo="v1"
                elif g[1]<4: off=row*1280+512*(g[1]>>1)+4*(g[1]&1); vo="v14"
                else: off=row*1280+1024; vo="v2"
                e(f"s_mov_b32 {sT0}, {off}")
                e(f"buffer_load_dword v{lb+2*j+x}, {vo}, {S_T}, {sT0} offen",f"w{i}")
    tmp=[4,8]
    def put(key,lb,st=2,dx=1):
        src=lambda R: f"v{lb+st*(R>>1)+dx}, v{lb+st*(R>>1)}, {sPHI if R&1 else sPLO}"
        if key in TR and TR[key][0]=="v":
            for R in range(8): e(f"v_perm_b32 v{TR[key][1]+R}, {src(R)}")
            return
        for half in range(2):
            t=tmp[half]
            for R in range(4): e(f"v_perm_b32 v{t+R}, {src(4*half+R)}")
            if key in TR:
                for R in range(4): e(f"v_accvgpr_write_b32 a{TR[key][1]+4*half+R}, v{t+R}")
            elif key in TL:
                e(f"ds_write_b128 v3, {vr(t,4)} offset:{TL[key]*2048+half*1024}")
            else:
                sg,imm=sw_ref(TG[key])
                e(f"buffer_store_dwordx4 {vr(t,4)}, v0, {S_WS}, {sg} offen offset:{imm+half*1024} {OPT['swfl']}","st")
    def process(i):
        g=groups[i]; lb=lbuf(i)
        a.wait(vm=f"w{i}")
        if STG and i<30:
            lb=16
            e("s_barrier")
            if i+SD<30: issue(i+SD)
            elif i==30-SD: issue(30)
            elif i==31-SD: issue(31)
            e(f"v_add_u32 v12, {slot(i)}, v13")
            for j in range(8):
                row=32*(j>>2)+16*((j>>1)&1)+2*(j&1)
                e(f"ds_read2st64_b32 {vr(lb+2*j,2)}, v12 offset0:{row} offset1:{row+1}")
            e("s_waitcnt lgkmcnt(0)"); a.lg=[]
            if i==29: e("s_barrier")
        elif OPT["lock"] and not STG: e("s_barrier")
        for u in range(2):
            if g[0]=="o2": put(("o",8*g[1]+4*u+g[2]),lb+u,4,2)
            else: put((g[0],2*g[1]+u) if g[0]!="o" else ("o",4*g[1]+2*g[2]+u),lb+8*u)
    waddr(); e("s_waitcnt lgkmcnt(0)")
    issue(0); issue(1); q0=list(a.vm)
    lanes()
    e(f"s_mul_i32 {sT0}, {sH}, 10240"); e(f"s_add_u32 {sT0}, {sT0}, {P_OFF}"); e(f"s_lshl_b32 {sT1}, {sW}, 10")
    e(f"s_add_u32 {sP0}, {sT0}, {sT1}"); e(f"s_add_u32 {sP1}, {sP0}, 4096"); e(f"s_lshl_b32 {sT1}, {sW}, 9"); e(f"s_add_u32 {sP2}, {sT0}, {sT1}"); e(f"s_add_u32 {sP2}, {sP2}, 8192")
    for m in range(4): e(f"s_mov_b32 {sPR[m]}, {P_OFF+m*81920}")
    e(f"s_lshl_b32 {sT0}, {sH}, 13"); e(f"s_add_u32 {sKX}, {sT0}, {XK_OFF}"); e(f"s_add_u32 {sKX2}, {sKX}, 4096")
    e(f"s_lshl_b32 {sT1}, {sW}, 11"); e(f"s_add_u32 {sVX}, {sT0}, {XV_OFF}"); e(f"s_add_u32 {sVXN}, {sVX}, {32*8192}"); e(f"s_add_u32 {sVX}, {sVX}, {sT1}")
    e(f"s_add_u32 {sKXN}, {sKX}, {32*8192}")
    e(f"s_mul_i32 {sPC}, {sH}, {OPT['piece']}"); e(f"s_add_u32 {sMP}, {sPC}, {MEMP_OFF-10240}")
    c=(128**-0.5)*math.log2(math.e)
    import struct
    e(f"s_mov_b32 {sC}, 0x%08x"%struct.unpack("<I",struct.pack("<f",c))[0])
    e(f"s_mov_b32 s96, {sC}"); e(f"s_mov_b32 s97, {sC}")
    e("s_mov_b32 s98, 0x3f803f80"); e("s_mov_b32 s99, 0x3f803f80"); e("s_mov_b32 s100, 0x3f003f00"); e("s_mov_b32 s101, 0x3f003f00")
    e(f"s_lshl_b32 {sF1W}, {sW}, 7"); e(f"s_add_u32 {sF1W}, {sF1W}, {sH}"); e(f"s_add_u32 {sF1W}, {sF1W}, {F1_OFF}")
    e(f"s_cmp_lt_u32 {sW}, 2"); e(f"s_cselect_b32 {sT0}, 3, 2"); e(f"s_lshr_b32 {sT0}, {sH}, {sT0}"); e(f"s_and_b32 {sT0}, {sT0}, 3")
    e(f"s_lshl_b32 {sT1}, {sW}, 2"); e(f"s_add_u32 {sT0}, {sT0}, {sT1}"); e(f"s_lshl_b32 {sT0}, {sT0}, 7"); e(f"s_add_u32 {sF1R}, {sT0}, {F1_OFF}")
    e(f"s_mov_b32 {sFE}, 0xfffffffe")
    e("s_mov_b32 s44, 0x33333333"); e("s_mov_b32 s45, 0x33333333")
    e(f"s_lshl_b32 {sT0}, {sW}, 12"); e(f"s_add_u32 {sMR}, {sT0}, {M_OFF}")
    if OPT["probe"]=="b":
        e(f"s_and_b32 {sT0}, {sH}, {OPT['nrep']-1}"); e(f"s_lshl_b32 {sT0}, {sT0}, 8"); e(f"s_lshl_b32 {sT1}, {sW}, 5"); e(f"s_add_u32 {sT0}, {sT0}, {sT1}")
        e(f"s_add_u32 {sMF}, {sT0}, {FL_OFF}"); e(f"s_mov_b32 {sPAT}, 0")
    else:
        e(f"s_lshl_b32 {sT0}, {sW}, 8"); e(f"s_add_u32 {sMF}, {sT0}, {M_OFF+10240}")
    e(f"s_mov_b32 {sMW}, {M_OFF+16384}"); e(f"s_mov_b32 {sMZ}, {M_OFF+49152}")
    e(f"s_mov_b32 {sSTEP}, 0"); e(f"s_mov_b32 {sTAG}, 1"); e(f"s_mov_b32 {sTAGM}, -1"); e(f"s_mov_b32 {sCNT}, 0")
    e("v_mov_b64 v[56:57], 0"); e("v_mov_b64 v[58:59], 0"); e("v_mov_b64 v[60:61], -1")
    e(f"buffer_store_dwordx4 v[56:59], {vL16}, {S_WS}, {sP0} offen sc1"); e(f"buffer_store_dwordx4 v[56:59], {vL16}, {S_WS}, {sP1} offen sc1")
    e(f"buffer_store_dwordx2 v[56:57], {vL8}, {S_WS}, {sP2} offen sc1")
    e("s_mov_b64 exec, 1")
    for c in range(3): e(f"buffer_store_byte v56, v56, {S_WS}, {sF1W} offen offset:{512*c} sc1")
    e("s_mov_b64 exec, -1")
    e(f"s_cmp_ge_u32 {sUNIT}, 80"); e("s_cbranch_scc1 C_noM")
    e("s_mov_b32 s8, s62"); e("s_mov_b32 s9, s63"); e("s_mov_b32 s10, 10240")
    e(f"s_and_b32 {sT0}, {sMU}, 3"); e(f"s_mul_i32 {sT0}, {sT0}, 2560"); e(f"s_lshr_b32 {sT1}, {sMU}, 2"); e(f"s_lshl_b32 {sT1}, {sT1}, 6"); e(f"s_add_u32 {sT0}, {sT0}, {sT1}")
    e("v_bfe_u32 v12, v15, 4, 1"); e("v_mul_u32_u24 v12, 1280, v12"); e("v_and_b32 v13, 7, v15"); e("v_lshl_add_u32 v12, v13, 3, v12")
    e(f"buffer_load_dwordx2 v[62:63], v12, {S_T}, {sT0} offen")
    for k in range(1,4):
        e(f"s_mov_b32 {sT1}, {M_OFF+16384*k}"); e(f"buffer_store_dwordx2 v[60:61], {vRS}, {S_WS}, {sT1} offen sc1")
    e("s_waitcnt vmcnt(0)")
    e(f"v_min_u32 v62, {sFE}, v62")
    e(f"s_mov_b32 {sT1}, {M_OFF}"); e(f"buffer_store_dwordx2 v[62:63], {vRS}, {S_WS}, {sT1} offen sc1")
    a.label("C_noM")
    e("s_mov_b32 s8, s4"); e("s_mov_b32 s9, s5"); e("s_mov_b32 s10, 0")
    if OPT["probe"]=="b":
        e(f"s_cmp_eq_u32 {sW}, 3"); e("s_cbranch_scc1 C_noF")
        e(f"s_add_u32 s8, s4, {FL_OFF}"); e("s_addc_u32 s9, s5, 0"); e(f"s_mov_b32 s10, {OPT['nrep']*256}")
        e("v_lshlrev_b32 v12, 4, v0"); e("v_mov_b32 v13, 0")
        e(f"buffer_store_byte v13, v12, {S_T}, {sUNIT} offen sc1")
        a.label("C_noF")

    e(f"s_cmp_eq_u32 {sW}, 3"); e("s_cbranch_scc0 C_noZ")
    e(f"s_lshl_b32 {sT0}, {sH}, 10"); e(f"buffer_store_dwordx4 v[56:59], v0, {S_WS}, {sT0} offen sc1")
    e(f"s_add_u32 {sT0}, {sT0}, {OCNT4}"); e(f"buffer_store_dwordx4 v[56:59], v0, {S_WS}, {sT0} offen sc1")
    e("s_mov_b64 exec, 1"); e(f"s_lshl_b32 {sT0}, 1, {sXCC}"); e("v_mov_b32 v12, 8"); e(f"v_mov_b32 v13, {sT0}")
    e(f"global_atomic_or v12, v13, {sDBG}"); e("s_mov_b64 exec, -1")
    a.label("C_noZ"); a.vm=[]
    e("v_and_b32 v12, 15, v15"); e("v_and_b32 v52, 0xff, v0")
    for tab,neg in ((0,0),):
        for r,ent in enumerate([((0,2),(1,3)),((4,6),(5,7)),((2,None),(3,None)),((6,None),(7,None))]):
            e(f"v_mov_b32 v{48+r}, 0")
            for half,(pos,ng) in enumerate(ent):
                for row,val in ((pos,0x3f80),(ng if neg else None,0xbf80)):
                    if row is None: continue
                    e(f"v_mov_b32 v13, 0x{val<<(16*half):x}"); e(f"v_cmp_eq_u32 vcc, {row}, v12"); e(f"v_cndmask_b32 v{48+r}, v{48+r}, v13, vcc")
        e(f"ds_write_b128 v52, v[48:51] offset:{L_SEL+tab}")
        e("s_waitcnt lgkmcnt(0)")
    waddr(); a.vm=q0
    DD=OPT["idepth"]
    e("s_mov_b32 s8, s54"); e("s_mov_b32 s9, s55")
    if STG:
        for i in range(2,SD): issue(i)
        lbuf=lambda i: (32,48,16)[(i-30)%3] if i<NG else (32,48)[(i-NG)%2]
    else:
        for i in range(2,DD): issue(i)
    for i in range(NG if STG else len(groups)):
        if STG:
            if 32<=i+2<NG: issue(i+2)
            for j in range(NF):
                if i==4+5*j: issue(NG+j)
                if i==10+5*j: process(NG+j)
        elif i+DD<len(groups) and not (DD==3 and i==36): issue(i+DD)
        process(i)
        if OPT["early"] and i==(NG if STG else len(groups))-1-OPT["early"]: poll()
        if DD==3 and i==36 and not STG: issue(39)
        if i==(2 if not STG else max(SD,3)-1):
            if not OPT["lock"]: e("s_barrier")
            e(f"s_cmp_eq_u32 {sW}, 3"); e("s_cbranch_scc0 C_noA")
            q=list(a.vm)
            e("s_mov_b64 exec, 1"); e("v_mov_b32 v4, 4"); e("v_mov_b32 v5, 1"); e(f"global_atomic_add v4, v5, {sDBG}"); e("s_mov_b64 exec, -1")
            a.label("C_noA"); a.vm=q
    a.wait(vm="all",lg="all")
    if not OPT["early"]: poll()
    lanes()
    e("s_mov_b32 s8, s4"); e("s_mov_b32 s9, s5"); e("s_mov_b32 s10, 0")
    e(f"s_cmp_eq_u32 {sW}, 3"); e("s_cbranch_scc1 C_noF2")
    e(f"s_add_u32 s8, s4, {FL_OFF}"); e("s_addc_u32 s9, s5, 0"); e(f"s_mov_b32 s10, {OPT['nrep']*256}")
    a.label("C_noF2")

STAMPS=[]
OPT={"kvstride":32*8192,"d0":25,"d1":70,"d1b":90,"m1pos":0,"d2":0,"d3":0,"pf":1,"nosync":0,"stamps":[],"lock":1,"rl":20,"pub":1,"pipe":2,"probe":"b","owx":2,"fine":"","mrg":0,"ofree":3,"early":2,"win":(4,60),"sweep":0,"swpfl":"","showinit":0,"vxe":0,"gq2":0,"vo":1,"one":1,"kxw":(2,3),"xo":1,"g9pre":1,"b1c":35,"g0p":0,"blind":0,"nanchk":1,"ns":4,"sd":3,"wfl":"","stg":1,"b4p":3,"nv":12,"rtail":0,"half":1,"kxb0":0,"pubp":6,"qs":0,"os":5,"b0w0":1,"pfw":0,"w2late":1,"b0":3,"rot":1,"al":(6,0),"gate":0,"swfl":"","wb":1,"warm":1,"nat":("p0","p2","p2"),"dbgout":0,"lastlds":2,"f1":0,"q1":16,"spec":0,"kvfl":"sc1","piece":320,"m1in":0,"pairw":0,"b4":0,"ststag":0,"g9in":0,"g1pv":1,"kxout":(11,1),"b1b":13,"g19":(2,4),"idepth":2,"prep":(13,14,15,17),"m1pre":0,"gq":(0,1),"stag":1,"kxp":(7,1),"pfp":13,"go1p":"exp","g18":(10,11),"unr":4,"goearly":1,"mpstride":10240,"pubfl":"sc1","pubpos":"qk","pfsplit":0,"kvmask":7,"kvchk":1,"pfwait":0,"pffl":"sc1","nrep":2,"np":5,"l1":(),"gfl":"","prepos":"early","percu":0,"at":40,"d4":0,"ab":"","pfpos":"qk"}
def delay(a,n):
    while n>0:
        k=min(n,16); a.e(f"s_nop {k-1}"); n-=k
def stamp(a,tim,name):
    if OPT["fine"] and not name.startswith(OPT["fine"]) and name!="b1": return
    if not OPT["fine"] and name[0]=="_": return
    if name not in STAMPS: STAMPS.append(name)
    if tim==3:
        i=STAMPS.index(name); assert i<19; a.e(f"s_memtime s[{54+2*i}:{55+2*i}]")
        if OPT["fine"]: a.lg+= [None,None]
        return
    if tim!=1 or name not in OPT["stamps"]: return
    i=OPT["stamps"].index(name)
    a.e("s_memtime s[70:71]"); a.e("s_waitcnt lgkmcnt(0)"); a.lg=[]
    a.e("s_sub_u32 s72, s70, s73"); a.e("s_mov_b32 s73, s70"); a.e(f"s_add_u32 s{76+i}, s{76+i}, s72")

def dma(a,n,soff,tag,first=0):
    fl=OPT["kvfl"] if tag=="kx" else "sc1"
    for i in range(first,first+n):
        a.e(f"buffer_load_dwordx4 {vL16}, {S_WS}, {soff} offen offset:{1024*i} {fl} lds",tag)

def chain_wave(a, w, st, pfx, tim=0):
    use_map(w)
    e=a.e; L=lambda s: f"{pfx}{w}_{s}"
    nd=[4,4,2,0][w]
    def chk(l):
        if OPT["nosync"] or (OPT["blind"] and l=="mr"): e("s_nop 0")
        else: e(f"s_cbranch_vccnz {L(l)}")
    def spin(c=None):
        if tim in(1,2) and c: e(f"s_add_u32 {c}, {c}, 1")
        e(f"s_add_u32 {sCNT}, {sCNT}, 1"); e(f"s_cmp_gt_u32 {sCNT}, 0x40000"); e("s_cbranch_scc1 L_abort")
    def aread(k,buf): e(f"ds_read_b128 {vr(buf,4)}, {vA} offset:{L_MEM+512*k}",f"A{k}")
    tg=lambda key: "t%s%d"%key
    def prestage():
        for p in range(2):
            if p in Q_SLOT: lload_tile(a,QSEQ[p],SLOT[QSEQ[p]][0],None)
    B0L=[(QSEQ[p],h) for p in GPOS for h in range(2)][:max(OPT["b0"]-1,0)]
    def b0loads():
        for k,h in B0L: gload_half(a,k,SLOT[k][0],tg(k),h)
    def zero_acc():
        for r in (QA,KA,VA): zero4(a,r)
    NREP=OPT["nrep"]
    def paddr(r):
        if OPT["probe"]=="b": e(f"v_bfe_u32 v{r}, {vL16}, 2, {4 if w==2 else 5}")
        elif OPT["probe"]=="c": e(f"v_and_b32 v{r}, {0x7f if w==2 else 0xff}, {vL8}")
        else:
            e(f"v_lshlrev_b32 v{r}, 2, {vL16}")
            if w==2: e(f"v_and_b32 v{r}, 0x7ff, v{r}")
    def probe(d,r,tag=None):
        e(f"buffer_load_dword v{d}, v{r}, {S_WS}, {sMR if OPT['probe']=='d' else sMF} offen sc1",tag)
    def pcmp(d):
        if OPT["probe"]=="b": e(f"v_cmp_ne_u32 vcc, {sPAT}, v{d}")
        else: e(f"v_cmp_eq_u32 vcc, -1, v{d}")
    def mfetch():
        paddr(T1); probe(T1,T1,"pr")
        dma(a,nd,sMR,"dma")
    if w==3: e(f"s_cmp_eq_u32 {sH}, 0"); e(f"s_cselect_b32 {sALL}, 0, 1")
    if tim in(1,2):
        e("s_memtime s[70:71]"); e("s_waitcnt lgkmcnt(0)"); e("s_mov_b32 s73, s70"); e("s_mov_b32 s74, s70")
        for i in range(11): e(f"s_mov_b32 s{76+i}, 0")
    if OPT["warm"]:
        e(f"v_lshlrev_b32 v{T1}, 3, {vL16}")
        if w<3:
            for k in range(4): e(f"s_mov_b32 {sT0}, {M_OFF+16384*k}"); e(f"buffer_load_dwordx2 v[12:13], {vRS}, {S_WS}, {sT0} offen sc1")
            e(f"buffer_load_dword v14, v{T1}, {S_WS}, {sP0} offen sc1") if w==0 else None
        else:
            e(f"s_sub_u32 {sT0}, {sVXN}, {32*8192}"); e(f"buffer_load_dword v14, v{T1}, {S_WS}, {sT0} offen sc1")
    if tim==5 and w==0:
        e("s_memrealtime s[70:71]"); e("s_waitcnt lgkmcnt(0)")
        e(f"s_lshl_b32 s72, {sH}, 8"); e(f"s_add_u32 s72, s72, {DBG_OFF+0x40000}")
        e(f"v_mov_b32 v{T0}, s70"); e(f"v_lshlrev_b32 v{T1}, 24, {vL16}")
        e(f"buffer_store_dword v{T0}, v{T1}, {S_WS}, s72 offen")
    if OPT["gate"] and w==0:
        e(f"v_mov_b32 v{T0}, 0x7f"); e(f"v_lshlrev_b32 v{T1}, 24, {vL16}")
        e(f"buffer_store_byte v{T0}, v{T1}, {S_WS}, {sF1W} offen {st}")
        e(f"v_bfe_u32 v{T1}, {vL16}, 2, 5"); e(f"s_mov_b32 {sT0}, {F1_OFF}"); e(f"s_mov_b32 {sT1}, 0x7f7f7f7f")
        a.label(L("gate"))
        e(f"buffer_load_dword v{T0}, v{T1}, {S_WS}, {sT0} offen sc1"); spin(); e("s_waitcnt vmcnt(0)")
        e(f"v_cmp_ne_u32 vcc, {sT1}, v{T0}"); e(f"s_cbranch_vccz {L('gated')}"); e("s_sleep 2"); e(f"s_branch {L('gate')}")
        a.label(L("gated"))
    a.label(L("rec"))
    e("s_waitcnt vmcnt(0) lgkmcnt(0)"); a.vm=[]; a.lg=[]
    spin("s84")
    e("s_barrier")
    prestage()
    if OPT["kxout"] and w in(0,3):
        e(f"s_mov_b32 m0, {L_KX+(4096 if w else 0)}"); dma(a,4,sKX2 if w else sKX,"kx")
    if w<3: e(f"s_mov_b32 m0, {4096*w}")
    if w==0 or (w<3 and OPT["m1pre"]): dma(a,nd,sMR,"dma")
    if OPT["b0"] and (w==1 or (w==2 and not OPT["w2late"])): mfetch()
    if w or OPT["b0w0"]: b0loads()
    zero_acc()
    e("s_waitcnt vmcnt(0) lgkmcnt(0)"); a.vm=[]; a.lg=[]
    top_vm={0:[],1:["rs","fl","mz"],2:["rs","fl","mz"],3:[]}[w]
    if OPT["m1pre"] and w in(1,2): top_vm=["dma"]*nd
    if OPT["b0"] and (w==1 or (w==2 and not OPT["w2late"])): top_vm=top_vm+["pr"]+["dma"]*nd
    if w or OPT["b0w0"]: top_vm=top_vm+[tg(k) for k,h in B0L]
    if OPT["kxb0"] and w==3: top_vm=top_vm+["kx"]*8
    if OPT["pub"] and OPT["pubpos"]=="hop" and w==3: top_vm=["pub"]
    a.vm=list(top_vm)
    if OPT["al"]:
        e(f"s_branch HZ_{L('top')}"); a.ins.append(Ins(f".p2align {OPT['al'][0]}"))
        for i in range(OPT["al"][1]): a.ins.append(Ins("s_nop 0"))
    if OPT["rot"] and w==0:
        a.label(L("pretop")); e(f"s_waitcnt vmcnt({len(top_vm)+2*OPT['half']})")
        if OPT["half"]: a.vm=["dmb","dmb"]+a.vm
    a.label("HZ_"+L("top"))
    e("s_barrier")
    for k in range(4): aread(k,AB[k])
    if w==2 and OPT["b0"] and OPT["w2late"]: mfetch()
    if w in(1,2) and not OPT["m1pre"] and not OPT["b0"]:
        if OPT["m1in"]: paddr(T1); probe(T1,T1,"pr")
        else: mfetch()
    stamp(a,tim,"b1")
    def slow_ops(where):
        if w==OPT["pfw"] and OPT['pf'] and OPT["pfpos"]==where:
            tr=T1 if w==3 else 4*0+T0
            e(f"v_lshlrev_b32 v{tr}, 3, {vL16}"); e(f"s_mov_b32 m0, {L_ROLE}")
            e(f"buffer_load_dword v{tr}, {S_WS}, {sKXN} offen {OPT['pffl']} lds","pf")
            e(f"buffer_load_dword v{tr}, {S_WS}, {sVXN} offen {OPT['pffl']} lds","pf")
            if w in(1,2): e(f"s_mov_b32 m0, {4096*w}")
        if w!=3: return
        if OPT["pub"] and OPT["pubpos"]==where:
            e(f"buffer_store_dwordx2 v[4:5], {vL8}, {S_T}, {sMP} offen {OPT['pubfl']}","pub")
            e("s_mov_b32 s10, 0")
    ACC={"q":QA,"k":KA,"v":VA}
    def nxt(seq,tab,p):
        later=[x for x in sorted(tab) if x>p and tab[x][0]==tab[p][0]]
        return later[0] if later else None
    def qkv(key,buf,p=None):
        if key in TG: a.wait(vm=tg(key))
        elif key in TL and p>1: a.wait(lg=tg(key))
        sm(a,ACC[key[0]],buf,key,SLOT.get(key,(0,))[0])
        if p in Q_SLOT:
            n=nxt(QSEQ,Q_SLOT,p)
            if n is not None and Q_SLOT[n][1]=="L": lload_tile(a,QSEQ[n],Q_SLOT[n][0],tg(QSEQ[n]))
    kxw = w in(0,3)
    def kxread(kt,ke,dst): e(f"ds_read_b128 {vr(dst,4)}, {vL16} offset:{L_KX+1024*(4*kt+ke)}",f"K{kt}{ke}")
    cvt=lambda d,x,y: e(f"v_cvt_pk_bf16_f32 v{d}, v{x}, v{y}")
    gs=[(QSEQ[p],h) for p in GPOS for h in range(2)]
    seen=set(); read=set(range(4)); NQ=len(QSEQ); NV=OPT["nv"]
    for p,key in enumerate(QSEQ):
        m,k=key; b=AB[k%4]
        if p==OPT["b1b"]:
            stamp(a,tim,"k2")
            if OPT["mrg"] and w==0: a.wait(vm="dmb")
            if w==2 and OPT["mrg"]: pass
            elif w==2 and OPT["w2late"] and OPT["b1c"]: chk("mr"); a.label(L("mok"))
            elif w in(1,2) and not OPT["m1pre"]: chk("mr"); a.wait(vm="dma"); a.label(L("mok"))
            elif w in(1,2): a.wait(vm="dma")
            e("s_barrier"); stamp(a,tim,"b1b")
            for kk in range(4 if OPT["mrg"] else 8,k+4):
                if kk not in read: aread(kk,AB[kk%4]); read.add(kk)
        if k not in seen:
            if OPT["pairw"] and k>=10 and k%2==0 and k+1 in read: a.wait(lg=f"A{k+1}"); seen.add(k+1)
            else: a.wait(lg=f"A{k}")
            seen.add(k)
        qkv(key,b,p)
        if p==2 and OPT["half"] and not OPT["mrg"]:
            if w==0: a.wait(vm="dmb")
            e("s_barrier")
        last=all(x[1]!=k for x in QSEQ[p+1:])
        if last and k+4<20 and ((k+4<8 and not OPT["mrg"]) or p>=OPT["b1b"]) and k+4 not in read: aread(k+4,b); read.add(k+4)
        if not OPT['nanchk'] and p==1: a.wait(lg="A3"); e(f"v_max3_u32 v{T0}, v{AB[0]}, v{AB[1]}, v{AB[2]}")
        if p==2: e(f"v_max_u32 v{T0}, v{T0}, v{AB[3]}") if False else None
        if not OPT['nanchk'] and p==3: e(f"v_max_u32 v{T0}, v{T0}, v{AB[3]}")
        if not OPT['nanchk'] and p==4: e(f"v_cmp_eq_u32 vcc, -1, v{T0}")
        if not OPT['nanchk'] and p==6: chk("rec")
        if not OPT['nanchk'] and m=="q" and k==4: e(f"v_mov_b32 v{T0}, v{b}")
        if not OPT['nanchk'] and m=="q" and 5<=k<=17:
            if OPT["pairw"] and k>=10:
                if k%2==0: e(f"v_max3_u32 v{T0}, v{T0}, v{b}, v{AB[(k+1)%4]}")
            else: e(f"v_max_u32 v{T0}, v{T0}, v{b}")
        m1=OPT["m1in"] and w in(1,2) and not OPT["m1pre"]
        if m1 and p<nd: dma(a,1,sMR,"dma",p)
        for j,(gk,h) in enumerate(gs):
            if (w or OPT["b0w0"]) and j<OPT["b0"]-1: continue
            if OPT["gq2"]:
                if p==(j-2)//2: gload_half(a,gk,SLOT[gk][0],tg(gk),h)
                continue
            if p==(OPT["gq"][0]+OPT["gq"][1]*j if not m1 else max(OPT["gq"][0]+OPT["gq"][1]*j,nd+j)): gload_half(a,gk,SLOT[gk][0],tg(gk),h)
        if not OPT["kxout"]:
            if kxw and p==OPT["kxp"][0]-1: e(f"s_mov_b32 m0, {L_KX+(4096 if w else 0)}")
            for j in range(4):
                if kxw and p==OPT["kxp"][0]+OPT["kxp"][1]*j: dma(a,1,sKX2 if w else sKX,"kx",j)
        if p==OPT["pfp"]: slow_ops("qk")
        if p==OPT["pubp"]: slow_ops("qk2")
        if p==(OPT["b1c"] if OPT["mrg"] and w==2 else OPT["b1b"])-2 and w in(1,2) and not OPT["m1pre"]: a.wait(vm="pr"); pcmp(T1)
        if p==OPT["b1c"] and OPT["w2late"] and OPT["b1c"]:
            if w==2 and OPT["mrg"]: chk("mr")
            if w==2: a.wait(vm="dma")
            if w==2 and OPT["mrg"]: a.label(L("mok"))
            if w==3: a.wait(vm="kx")
            e("s_barrier")
        if p==44: stamp(a,tim,"k7")
        if p%3==2: stamp(a,tim,f"_q{p}")
        if p==46 and not OPT["kxout"]: a.wait(vm="kx"); e("s_barrier")
        if p==NQ-5: kxread(0,0,SL3); kxread(1,0,SL3+4)
        if p==NQ-4 and not OPT["nanchk"]: a.wait(lg="A19"); seen.add(19); e(f"v_max3_u32 v{T0}, v{T0}, v{AB[2]}, v{AB[3]}")
        if p==NQ-3 and not OPT["nanchk"]: e(f"v_cmp_eq_u32 vcc, -1, v{T0}")
        if p==NQ-3: kxread(0,1,SL2); kxread(1,1,SL2+4)
        if p==NQ-1 and not OPT["nanchk"]: chk("rec")
        if p==NQ-1 and OPT["nanchk"]: e(f"v_cmp_u_f32 vcc, v{QA}, v{QA+2}")
    stamp(a,tim,"qk")
    slow_ops("qkend")
    if w==3 and OPT["pub"] and OPT["pubpos"]=="lds":
        e(f"v_add_u32 v{T1}, {sPC}, {vL8}"); e(f"ds_read_b64 v[4:5], v{T1} offset:{L_MEM}","pl")
    RR=list(range(NV,16))
    def vre(i,buf):
        if i<len(RR): aread(RR[i],buf)
    def vdo(i,buf):
        if i<len(RR): a.wait(lg=f"A{RR[i]}"); qkv(("v",RR[i]),buf)
    cvt(QA,QA,QA+2); cvt(QA+2,QA+1,QA+3)
    qkv(("v",16),AB[0]); vre(0,AB[0])
    qkv(("v",17),AB[1]); vre(1,AB[1])
    if OPT["nanchk"]: chk("scan"); a.label(L("scanned"))
    cvt(QA+1,KA,KA+2); cvt(QA+3,KA+1,KA+3)
    e(f"ds_write_b64 {vXW}, {vr(QA,2)}","xw"); e(f"ds_write_b64 {vXW}, {vr(QA+2,2)} offset:512","xw")
    qkv(("v",18),AB[2]); vre(2,AB[2])
    qkv(("v",19),AB[3]); vre(3,AB[3])
    vdo(0,AB[0]); vdo(1,AB[1])
    if w==3 and OPT["pub"] and OPT["lastlds"]:
        e(f"s_cmp_ge_u32 {sSTEP}, {NSEG-1-OPT['lastlds']}"); e(f"s_cbranch_scc1 {L('pub62')}"); a.label(L("pub62b"))
    if False:
        e(f"s_add_u32 {sMP}, {sMP}, 10240"); e(f"s_add_u32 s10, {sMP}, {OPT['piece']}")
        e(f"buffer_store_dwordx2 v[4:5], {vL8}, {S_T}, {sMP} offen {OPT['pubfl']}","pub")
    stamp(a,tim,"_s0"); a.wait(lg="xw"); stamp(a,tim,"_s1"); e("s_barrier"); stamp(a,tim,"b2"); stamp(a,tim,"_s2")
    G1=min(n for n,v in O_SLOT.items() if v==(SL1,"G"))
    X=[28,32,40,44]
    S0,S1,SM=AB[0],AB[2],AB[1]
    def mf(d,A,B,first,op="v_mfma_f32_16x16x32_bf16",n=4):
        e(f"{op} {vr(d,4)}, {vr(A,n)}, {vr(B,n)}, {'0' if first else vr(d,4)}")
    VM=VA; VX=SL3; P=SL2; PM=SL2+4
    def xr(ke):
        for x in range(2): e(f"ds_read_b64_tr_b16 {vr(X[ke]+2*x,2)}, {vXR} offset:{1024*ke+512*x}",f"X{ke}")
    xr(0); vdo(2,AB[2]); xr(1); vdo(3,AB[3]); vre(4,AB[3])
    a.wait(lg="X0"); mf(S0,SL3,X[0],1); xr(2); mf(S1,SL3+4,X[0],1)
    kxread(0,2,SL3); kxread(1,2,SL3+4)
    a.wait(lg="X1"); mf(S0,SL2,X[1],0); xr(3); mf(S1,SL2+4,X[1],0)
    kxread(0,3,SL2); kxread(1,3,SL2+4)
    vdo(4,AB[3]); vre(5,AB[3])
    ONE=AB[3] if OPT["one"] else S0
    mf(SM,X[0],X[0],1)
    if OPT["one"] and len(RR)<6: e(f"v_mov_b64 {vr(ONE,2)}, {sONE}"); e(f"v_mov_b64 {vr(ONE+2,2)}, {sONE}")
    mf(SM,X[1],X[1],0)
    vdo(5,AB[3])
    if OPT["one"] and len(RR)==6: e(f"v_mov_b64 {vr(ONE,2)}, {sONE}"); e(f"v_mov_b64 {vr(ONE+2,2)}, {sONE}")
    stamp(a,tim,"_s6"); a.wait(lg="K12"); stamp(a,tim,"_s7"); mf(S0,SL3,X[2],0); mf(S1,SL3+4,X[2],0)
    e(f"buffer_load_dwordx4 {vr(VX,4)}, {vL16}, {S_WS}, {sVX} offen {OPT['kvfl']}","vx")
    cvt(VM,VM,VM+2)
    stamp(a,tim,"_s8"); a.wait(lg="K13"); stamp(a,tim,"_s9"); mf(S0,SL2,X[3],0); cvt(VM+1,VM+1,VM+3); mf(S1,SL2+4,X[3],0)
    if not OPT["vxe"]: e(f"buffer_load_dwordx4 {vr(VX+4,4)}, {vL16}, {S_WS}, {sVX} offen offset:1024 {OPT['kvfl']}","vx")
    mf(SM,X[2],X[2],0)
    if OPT["g0p"]==1: gload_half(a,("o",0),28,"go0",0)
    e(f"v_mov_b32 v{PM+1}, 0"); e(f"v_mov_b32 v{PM+2}, 0")
    mf(SM,X[3],X[3],0)
    if OPT["g0p"]==1: gload_half(a,("o",0),28,"go0",1)
    e(f"v_max3_f32 v{T1}, v{S0}, v{S0+1}, v{S0+2}")
    e(f"v_max3_f32 v{T0}, v{S0+3}, v{S1}, v{S1+1}")
    e(f"v_max3_f32 v{T1}, v{T1}, v{S1+2}, v{S1+3}")
    stamp(a,tim,"scores"); stamp(a,tim,"_sa")
    e(f"v_max_f32 v{T1}, v{T1}, v{T0}")
    if OPT["g0p"]==0: gload_half(a,("o",0),28,"go0",0)
    e(f"v_max3_f32 v{T0}, v{T1}, v{SM+2}, v{SM+3}"); e(f"v_max3_f32 v{T1}, v{T1}, v{SM+2}, v{SM+3}")
    e(f"v_permlane32_swap_b32 v{T0}, v{T1}")
    e(f"v_max_f32 v{SM}, v{T0}, v{T1}"); e(f"v_max_f32 v{T0}, v{T0}, v{T1}")
    if OPT["g0p"]==0: gload_half(a,("o",0),28,"go0",1)
    e(f"v_permlane16_swap_b32 v{T0}, v{SM}")
    e(f"v_max_f32 v{T0}, v{T0}, v{SM}")
    e(f"v_mul_f32 v{T0}, {sC}, v{T0}")
    stamp(a,tim,"max"); stamp(a,tim,"_sb")
    ev=[S0,S0+1,S0+2,S0+3,S1,S1+1,S1+2,S1+3,SM+2,SM+3]
    for r in ev[::2]:
        e(f"v_pk_fma_f32 {vr(r,2)}, {vr(r,2)}, {sCC}, {vr(T0,2)} op_sel_hi:[1,1,0] neg_lo:[0,0,1] neg_hi:[0,0,1]")
    for i,r in enumerate(ev[:8]):
        e(f"v_exp_f32 v{r}, v{r}")
        if i in(1,6) and not OPT["g1pv"]: gload_half(a,("o",G1),SL1,f"go{G1}",i//6)
        if i in(2,4,6): cvt(P+i//2-1,ev[i-2],ev[i-1])
        if i==4 and not OPT["one"]: e(f"v_mov_b64 {vr(S0,2)}, {sONE}")
        if i==6 and not OPT["one"]: e(f"v_mov_b64 {vr(S0+2,2)}, {sONE}")
    e(f"v_exp_f32 v{ev[8]}, v{ev[8]}"); cvt(P+3,ev[6],ev[7])
    e(f"v_exp_f32 v{ev[9]}, v{ev[9]}")
    O=[AB[3],S0] if OPT['one'] else [S0,AB[3]]
    VX1=VX+4
    if OPT['vxe']: O=[S0,SL3+4]; VX1=AB[3]
    stamp(a,tim,"exp"); stamp(a,tim,"_p0")
    mf(S1,ONE,P,1)
    cvt(PM,ev[8],ev[9]); cvt(PM+3,ev[8],ev[9])
    stamp(a,tim,"_p1"); a.wait(vm="vx1" if OPT["vxe"] else "vx"); stamp(a,tim,"_p2")
    mf(O[1],VX1,P,1)
    if OPT["g1pv"]: gload_half(a,("o",G1),SL1,f"go{G1}",0)
    mf(S1,ONE,PM,0,"v_mfma_f32_16x16x16_bf16",2)
    if OPT["g1pv"]: gload_half(a,("o",G1),SL1,f"go{G1}",1)
    if OPT["vxe"]: a.wait(vm="vx")
    mf(O[0],VX,P,1)
    if not OPT["vxe"]: lload_tile(a,("o",2),SL3,"lo2")
    mf(O[1],VM,PM+2,0,"v_mfma_f32_16x16x16_bf16",2)
    if OPT["g0p"]==2: gload_tile(a,("o",0),28,"go0")
    e(f"v_rcp_f32 v{T0}, v{S1}")
    mf(O[0],VM,PM,0,"v_mfma_f32_16x16x16_bf16",2)
    ks=OPT["kvstride"]
    e(f"s_add_u32 {sSTEP}, {sSTEP}, 1"); e(f"s_add_u32 {sVX}, {sVX}, {ks}")
    if w==0: e("s_mov_b32 m0, 0")
    e(f"s_add_u32 {sKX2}, {sKX2}, {ks}"); e(f"s_add_u32 {sKX}, {sKX}, {ks}")
    if w==OPT["pfw"]: e(f"s_add_u32 {sKXN}, {sKXN}, {ks}"); e(f"s_add_u32 {sVXN}, {sVXN}, {ks}")
    PK=P
    stamp(a,tim,"_p7")
    for i in range(0,4,2): e(f"v_pk_mul_f32 {vr(O[1]+i,2)}, {vr(O[1]+i,2)}, {vr(T0,2)} op_sel_hi:[1,0]")
    for i in range(0,4,2):
        e(f"v_pk_mul_f32 {vr(O[0]+i,2)}, {vr(O[0]+i,2)}, {vr(T0,2)} op_sel_hi:[1,0]")
        for k in range(2): cvt(PK+i+k,O[0]+i+k,O[1]+i+k)
    if OPT["owx"]==1: e(f"s_mov_b64 exec, {sEX}")
    e(f"ds_write_b128 {vOW}, {vr(PK,4)}","ow")
    if OPT["owx"]==1: e("s_mov_b64 exec, -1")
    stamp(a,tim,"_p8")
    if OPT["vxe"]: lload_tile(a,("o",2),SL3,"lo2")
    G2=[n for n,v in O_SLOT.items() if v==(SL2,"G")][0]
    ZA,XA,YA=36,28,32
    zero4(a,ZA)
    slow_ops("opack")
    stamp(a,tim,"opack")
    a.wait(lg="ow")
    if OPT["g9pre"]: gload_tile(a,("o",G2),SL2,f"go{G2}")
    stamp(a,tim,"_p9"); e("s_barrier"); stamp(a,tim,"b3"); stamp(a,tim,"_pa")
    for k in range(4): e(f"ds_read_b128 {vr(AB[k],4)}, {vA} offset:{L_MEM+512*k}",f"ao{k}")
    F2=min(n for n,v in O_SLOT.items() if v[0]==SL2)
    if F2!=G2: lload_tile(a,("o",F2),SL2,f"lo{F2}")
    elif not OPT["g9in"] and not OPT["g9pre"]: gload_tile(a,("o",G2),SL2,f"go{G2}")
    RL=[SL2,SL2+4,SL3,SL3+4]
    def red_loads():
        for m in range(4): e(f"buffer_load_dwordx4 {vr(RL[m],4)}, {vRL}, {S_WS}, {sPR[m]} offen sc1",f"r{m}")
    z=lambda r: [f"v_mov_b64 {vr(r,2)}, 0",f"v_mov_b64 {vr(r+2,2)}, 0"]
    cv=lambda d,x,y: f"v_cvt_pk_bf16_f32 v{d}, v{x}, v{y}"
    tagop=lambda r: f"v_and_or_b32 v{r}, v{r}, -2, {sTAG}"
    PACC=[ZA,XA,YA,ZA,XA]
    post={n:[] for n in range(21)}
    post[1]+=z(XA)[:1]; post[2]+=z(XA)[1:]; post[3]+=z(YA)[:1]; post[4]+=z(YA)[1:]
    post[5]+=[cv(ZA,ZA,ZA+1)]; post[6]+=[cv(ZA+1,ZA+2,ZA+3)]; post[7]+=[tagop(ZA)]
    sg=OPT["ststag"]*(w>>1)
    post[9]+=[cv(ZA+2,XA,XA+1),cv(ZA+3,XA+2,XA+3)]
    post[9+sg]+=[(f"buffer_store_dwordx4 {vr(ZA,4)}, {vL16}, {S_WS}, {sP0} offen {st}","p0")]
    post[10+sg]+=z(ZA); post[12]+=z(XA)[:1]; post[13]+=z(XA)[1:]
    post[13]+=[cv(YA,YA,YA+1)]; post[14]+=[cv(YA+1,YA+2,YA+3)]; post[15]+=[tagop(YA)]
    post[17]+=[cv(YA+2,ZA,ZA+1),cv(YA+3,ZA+2,ZA+3)]
    post[17+sg]+=[(f"buffer_store_dwordx4 {vr(YA,4)}, {vL16}, {S_WS}, {sP1} offen {st}","p1")]
    post[20]+=[cv(XA,XA,XA+1),cv(XA+1,XA+2,XA+3),tagop(XA),(f"buffer_store_dwordx2 {vr(XA,2)}, {vL8}, {S_WS}, {sP2} offen {st}","p2")]
    def flag(c): return [(f"buffer_store_byte v{T0}, v{T1}, {S_WS}, {sF1W} offen offset:{512*c} {st}",f"f{c}")]
    if OPT["f1"]:
        post[0]+=[f"v_mov_b32 v{T0}, {sSTEP}"]; post[8]+=[f"v_lshlrev_b32 v{T1}, 24, {vL16}"]
        post[10+sg]=flag(0)+post[10+sg]; post[18+sg]=flag(1)+post[18+sg]; post[20]+=flag(2)
    def emit(l):
        for x in l:
            if isinstance(x,tuple): e(x[0],x[1])
            else: e(x)
    def probe1(d,r): e(f"buffer_load_dword v{d}, v{r}, {S_WS}, {sF1R} offen sc1","q1")
    for n in range(20):
        ko=n&3; key=("o",n)
        if n<4: a.wait(lg=f"ao{ko}")
        if n<2: stamp(a,tim,f"_pb{n}")
        if key in TL: a.wait(lg=f"lo{n}")
        elif key in TG: a.wait(vm=f"go{n}")
        sm(a,PACC[n>>2],AB[ko],key,SLOT.get(key,(0,))[0])
        if n in O_SLOT:
            m=nxt(None,O_SLOT,n)
            if m is not None and O_SLOT[m][1]=="L": lload_tile(a,("o",m),O_SLOT[m][0],f"lo{m}")
        if F2!=G2 and n in OPT["g18"]: gload_half(a,("o",G2),SL2,f"go{G2}",OPT["g18"].index(n))
        if OPT["g9in"] and n<2: gload_half(a,("o",G2),SL2,f"go{G2}",n)
        if n in OPT["g19"]: gload_half(a,("o",19),SL1,"go19",OPT["g19"].index(n))
        if OPT["kxout"] and w in OPT["kxw"] and not OPT["kxb0"]:
            ko_=OPT["kxout"]; nk=8//len(OPT["kxw"]); f0=nk*OPT["kxw"].index(w)
            if n==ko_[0]-1: e(f"s_mov_b32 m0, {L_KX+4096*(f0//4)}")
            for j in range(nk):
                if n==ko_[0]+ko_[1]*j: dma(a,1,sKX2 if f0>=4 else sKX,"kx",f0%4+j)
            if w<3 and n==ko_[0]+ko_[1]*(nk-1)+1: e(f"s_mov_b32 m0, {4096*w}")
        if n==OPT["b4p"] and OPT["b4"]: e("s_barrier")
        if w==0 and n==OPT["rl"]: red_loads()
        if n in(13,): stamp(a,tim,f"o{n}")
        if n>=2: stamp(a,tim,f"_o{n}")
        if OPT["f1"] and w==0 and n==OPT["q1"]:
            e(f"v_bfe_u32 v{SL2}, {vL16}, 2, 5"); e(f"s_add_u32 {sT1}, {sPAT}, 0x01010101"); probe1(SL2,SL2)
        if n==19 and w<3:
            e(f"v_and_b32 v16, 0xff, {vL16}")
            e(f"ds_read_b128 v[12:15], v16 offset:{L_SEL}","sel")
        emit(post[n])
    emit(post[20])
    if w==0 and OPT["rl"]==20.5: red_loads()
    stamp(a,tim,"out")
    def slots():
        e(f"s_add_u32 {sMR}, {sMW}, {4096*w}")
        if w<3 and OPT["probe"]=="c": e(f"s_add_u32 {sMF}, {sMW}, {10240+256*w}")
        if w<3 and OPT["probe"]=="b": e(f"s_add_u32 {sPAT}, {sPAT}, 0x01010101")
        for r in (sMW,sMZ):
            e(f"s_add_u32 {r}, {r}, 16384"); e(f"s_and_b32 {r}, {r}, 0xffff"); e(f"s_or_b32 {r}, {r}, {M_OFF}")
        e(f"s_xor_b32 {sTAG}, {sTAG}, 1"); e(f"s_not_b32 {sTAGM}, {sTAGM}")
    if w<3 and OPT["f1"]:
        if w==2: e(f"s_cmp_ge_u32 {sUNIT}, 80"); e(f"s_cbranch_scc1 {L('nored0')}")
        e(f"v_bfe_u32 v23, {vL16}, 2, 5")
        if w==0:
            a.wait(vm="q1"); e(f"v_cmp_ne_u32 vcc, {sT1}, v{SL2}")
            e(f"v_mov_b32 v20, {sSTEP}"); e(f"v_lshlrev_b32 v21, 4, {vL16}"); e("v_mov_b32 v22, -1")
            e(f"s_cbranch_vccz {L('f1ok')}")
        else:
            e(f"s_add_u32 {sT1}, {sPAT}, 0x01010101")
            e(f"v_mov_b32 v20, {sSTEP}"); e(f"v_lshlrev_b32 v21, 4, {vL16}"); e("v_mov_b32 v22, -1")
            delay(a,OPT['d1'] if w==1 else OPT['d1b'])
        probe1(T0,23); delay(a,OPT["d4"]); probe1(T0,23)
        a.label(L("f1"))
        for u in range(2):
            e("s_waitcnt vmcnt(1)"); e(f"v_cmp_ne_u32 vcc, {sT1}, v{T0}"); probe1(T0,23)
            if OPT["nosync"]: e(f"s_branch {L('f1ok')}")
            else: e(f"s_cbranch_vccz {L('f1ok')}")
        spin(); e(f"s_branch {L('f1')}")
        a.label(L("f1ok")); a.vm=[]
        red_loads()
        zero_acc()
        a.wait(lg="all")
    if w<3 and not OPT["f1"] and OPT["nat"]:
        e(f"v_mov_b32 v20, {sSTEP}"); e(f"v_lshlrev_b32 v21, 4, {vL16}"); e("v_mov_b32 v22, -1")
        if w<2: zero_acc()
        if w==0: paddr(23)
        if w==0 and 0 in Q_SLOT: lload_tile(a,QSEQ[0],SL1,None)
        a.wait(lg="all")
        if OPT["nat"][w]: a.wait(vm=OPT["nat"][w])
        if w==2:
            zero_acc()
            e(f"s_cmp_ge_u32 {sUNIT}, 80"); e(f"s_cbranch_scc1 {L('nored')}")
        if not (w==0 and OPT["rl"]<=20.5 and OPT["rl"]!=20): red_loads()
    elif w<3 and not OPT["f1"]:
        a.wait(lg="all")
        if w==0 and OPT["rl"]>19: delay(a,OPT['d0']); red_loads()
        e(f"v_mov_b32 v20, {sSTEP}"); e(f"v_lshlrev_b32 v21, 4, {vL16}"); e("v_mov_b32 v22, -1")
        zero_acc()
        if w==1: delay(a,OPT['d1']); red_loads()
        if w==2:
            delay(a,OPT['d1b'])
            e(f"s_cmp_ge_u32 {sUNIT}, 80"); e(f"s_cbranch_scc1 {L('nored')}")
            red_loads()
    if w<3:
        stamp(a,tim,"rlis")
        a.label(L("red"))
        for m in range(4):
            a.wait(vm=f"r{m}")
            if m==3 and not OPT["rtail"]:
                e(f"v_bitop3_b32 v{T1}, v{RL[2]}, v{RL[3]}, {sTAGM} bitop3:0x7e")
                e(f"v_bitop3_b32 v{T0}, v{T0}, v{T1}, 1 bitop3:0xa8")
                e(f"v_cmp_ne_u32 vcc, 0, v{T0}")
            mf(16,12,RL[m],m==0)
            if m==1: e(f"v_bitop3_b32 v{T0}, v{RL[0]}, v{RL[1]}, {sTAGM} bitop3:0x7e")
            if m==3 and OPT["rtail"]:
                e(f"v_bitop3_b32 v{T1}, v{RL[2]}, v{RL[3]}, {sTAGM} bitop3:0x7e")
                e(f"v_bitop3_b32 v{T0}, v{T0}, v{T1}, 1 bitop3:0xa8")
                e(f"v_cmp_ne_u32 vcc, 0, v{T0}")
        e(f"s_cmp_eq_u32 {sSTEP}, {NSEG-1}")
        if not OPT["rtail"]: chk("redo")
        for i in range(4): e(f"v_add_f32_dpp v{16+i}, v{16+i}, v{16+i} row_ror:8 row_mask:0xf bank_mask:0xf")
        e(f"v_cvt_pk_bf16_f32 v{T0}, v16, v17"); e(f"v_cvt_pk_bf16_f32 v{T1}, v18, v19")
        e(f"v_min_u32 v{T0}, {sFE}, v{T0}")
        if OPT["rtail"]: chk("redo")
        e(f"s_cbranch_scc1 {L('last')}")
        e(f"buffer_store_dwordx2 {vr(T0,2)}, {vRS}, {S_WS}, {sMW} offen {st}","rs")
        e(f"buffer_store_byte v20, v21, {S_T}, {sUNIT} offen {st}","fl")
        e(f"buffer_store_dword v22, {vRS}, {S_WS}, {sMZ} offen {st}","mz")
        stamp(a,tim,"red")
        if w==2: a.label(L("nored2"))
        if w==0 and OPT["nat"]:
            if 1 in Q_SLOT: lload_tile(a,QSEQ[1],SL2,None)
        else: prestage()
        slots()
    if w==0 or (w<3 and OPT["m1pre"]):
        if not (w==0 and OPT["nat"]): paddr(23)
        if w==0: delay(a,OPT['d2']); stamp(a,tim,"mis")
        NP=OPT["np"] if w==0 else 1
        PD=T0
        if w==0 and OPT["spec"]:
            PD=T1
            probe(T0,23); dma(a,nd,sMR,None)
            for i in range(NP): delay(a,OPT["d4"]); probe(PD,23)
            e(f"s_waitcnt vmcnt({nd+NP})"); pcmp(T0)
            e(f"s_cbranch_vccz {L('m0hit')}")
        else:
            for i in range(NP): probe(PD,23); delay(a,OPT["d4"]) if i<NP-1 else None
        a.label(L("m0"))
        for u in range(OPT["unr"] if w==0 else 1):
            e(f"s_waitcnt vmcnt({NP-1})"); pcmp(PD)
            if w==0: probe(PD,23)
            if tim in(1,2): e("s_add_u32 s86, s86, 1")
            if OPT["nosync"] or OPT["blind"]: e(f"s_branch {L('m0ok')}")
            else: e(f"s_cbranch_vccz {L('m0ok')}")
        if w: probe(PD,23)
        spin(); e(f"s_branch {L('m0')}")
        a.label(L("m0ok"))
        if w==0: stamp(a,tim,"det")
        a.vm=[]
        dma(a,nd,sMR,"dma")
        if w==0 and OPT["spec"]: a.label(L("m0hit"))
        if w==0 and OPT["b0"]: e("s_barrier")
        if w==0: a.vm=[]
        if w==0 and OPT["b0w0"]: b0loads()
        if w==0 and not OPT["rot"]: e(f"s_waitcnt vmcnt({len(a.vm)})")
    if w<3: a.wait(lg="all")
    if w==3:
        delay(a,OPT['d3'])
        prestage()
        if OPT["pub"] and OPT["pubpos"]!="lds":
            e(f"s_add_u32 {sT0}, {sMR}, {sPC}"); e(f"s_sub_u32 {sT0}, {sT0}, {4096*3}")
            e(f"s_add_u32 s10, {sT0}, {OPT['piece']}"); e(f"s_cmp_lt_u32 {sPC}, 10240"); e("s_cselect_b32 s10, s10, 0")
            if "L" not in OPT["ab"]: e(f"buffer_load_dwordx2 v[4:5], {vL8}, {S_T}, {sT0} offen sc1","pl")
            e(f"s_add_u32 {sMP}, {sMP}, {OPT['mpstride']}"); e(f"s_add_u32 s10, {sMP}, {OPT['piece']}"); e(f"s_cmp_lt_u32 {sPC}, 10240"); e("s_cselect_b32 s10, s10, 0")
            if OPT["pubpos"]=="hop":
                a.wait(vm="pl"); e(f"buffer_store_dwordx2 v[4:5], {vL8}, {S_T}, {sMP} offen {OPT['pubfl']}","pub")
        e(f"s_cmp_eq_u32 {sSTEP}, {NSEG-1}"); e(f"s_cbranch_scc1 {L('last')}")
        if OPT["kvchk"]:
            e(f"s_cmp_eq_u32 {sALL}, 1"); e(f"s_cbranch_scc1 {L('kvok')}")
            e(f"s_lshl_b32 {sT0}, {sSTEP}, 7"); e(f"s_add_u32 {sT0}, {sT0}, {KVCNT+256}"); e(f"s_min_u32 {sT0}, {sT0}, {KVCNT+63*128}")
            e(f"s_load_dword s28, s[4:5], {sT0} glc"); e(f"s_load_dword s29, s[4:5], {KVCNT+63*128} glc")
            e("s_waitcnt lgkmcnt(0)")
            e("s_cmp_ge_u32 s29, 32"); e(f"s_cselect_b32 {sALL}, 1, 0")
            e("s_cmp_ge_u32 s28, 32"); e(f"s_cbranch_scc0 {L('kvw')}")
            a.label(L("kvok"))
        slots(); zero_acc()
        if OPT["pub"] and OPT["pubpos"]=="hop": a.wait(lg="all")
        else: a.wait(vm="all",lg="all")
    if OPT["b0"] and w:
        e("s_barrier")
        if w==1 or (w==2 and not OPT["w2late"]): mfetch()
        b0loads()
        if OPT["kxb0"] and w==3:
            e(f"s_mov_b32 m0, {L_KX}"); dma(a,4,sKX,"kx"); e(f"s_mov_b32 m0, {L_KX+4096}"); dma(a,4,sKX2,"kx")
    stamp(a,tim,"pre")
    assert OPT["ab"] or (a.vm[len(a.vm)-len(top_vm):]==top_vm and (top_vm or not a.vm)),(w,a.vm)
    if tim in(4,5) and w==(3 if tim==4 else 0):
        e("s_memtime s[70:71]" if tim==4 else "s_memrealtime s[70:71]"); e("s_waitcnt lgkmcnt(0)")
        e(f"v_writelane_b32 v4, s70, 63") if False else None
        e(f"s_lshl_b32 s72, {sH}, 8"); e(f"s_lshl_b32 s73, {sSTEP}, 2"); e("s_add_u32 s72, s72, s73"); e(f"s_add_u32 s72, s72, {DBG_OFF+0x40000}")
        e(f"v_mov_b32 v{T0}, s70"); e(f"v_lshlrev_b32 v{T1}, 24, {vL16}")
        e(f"buffer_store_dword v{T0}, v{T1}, {S_WS}, s72 offen")
    if tim==6 and w==3:
        e(f"s_cmp_eq_u32 {sSTEP}, {OPT['win'][0]}"); e(f"s_cbranch_scc0 {L('t6a')}"); e("s_memrealtime s[70:71]"); e("s_memtime s[74:75]"); e("s_waitcnt lgkmcnt(0)"); a.label(L("t6a"))
        e(f"s_cmp_eq_u32 {sSTEP}, {OPT['win'][1]}"); e(f"s_cbranch_scc0 {L('t6b')}"); e("s_memrealtime s[72:73]"); e("s_memtime s[76:77]"); e("s_waitcnt lgkmcnt(0)")
        e("s_sub_u32 s70, s72, s70"); e("s_sub_u32 s74, s76, s74"); e(f"s_lshl_b32 s72, {sH}, 3"); e(f"s_add_u32 s72, s72, {DBG_OFF+0x40000}")
        e(f"v_mov_b32 v{T0}, s70"); e(f"v_mov_b32 v{T1}, s74"); e(f"v_lshlrev_b32 v12, 24, {vL16}")
        e(f"buffer_store_dwordx2 {vr(T0,2)}, v12, {S_WS}, s72 offen"); a.label(L("t6b"))
    if tim==3:
        e(f"s_cmp_eq_u32 {sSTEP}, {OPT['at']}"); e(f"s_cbranch_scc0 {L('pretop') if OPT['rot'] and w==0 else 'HZ_'+L('top')}")
        n=len(STAMPS); e(f"s_memrealtime s[{54+2*n}:{55+2*n}]"); e(f"s_memtime s[{56+2*n}:{57+2*n}]")
        e("s_waitcnt lgkmcnt(0)")
        e(f"s_lshl_b32 {sT0}, {sH}, 2"); e(f"s_add_u32 {sT0}, {sT0}, {w}"); e(f"s_lshl_b32 {sT0}, {sT0}, 7"); e(f"s_add_u32 {sT0}, {sT0}, {DBG_OFF+65536}")
        e(f"v_mov_b32 v{T1}, 0"); e("s_mov_b64 exec, 1")
        for i in range(len(STAMPS)+2):
            e(f"v_mov_b32 v{T0}, s{54+2*i}"); e(f"buffer_store_dword v{T0}, v{T1}, {S_WS}, {sT0} offen offset:{4*i}")
        e("s_waitcnt vmcnt(0)"); e("s_mov_b64 exec, -1")
    e(f"s_branch {L('pretop')}" if OPT["rot"] and w==0 else f"s_branch HZ_{L('top')}")
    if w<3:
        a.label(L("redo"))
        if tim in(1,2): e("s_add_u32 s85, s85, 1")
        e("s_mov_b64 exec, vcc")
        a.label(L("redo2"))
        red_loads(); spin()
        e("s_waitcnt vmcnt(0)")
        e(f"v_bitop3_b32 v{T0}, v{RL[0]}, v{RL[1]}, {sTAGM} bitop3:0x7e"); e(f"v_bitop3_b32 v{T1}, v{RL[2]}, v{RL[3]}, {sTAGM} bitop3:0x7e")
        e(f"v_bitop3_b32 v{T0}, v{T0}, v{T1}, 1 bitop3:0xa8"); e(f"v_cmp_ne_u32 vcc, 0, v{T0}")
        e(f"s_cbranch_vccnz {L('redo2')}")
        e("s_mov_b64 exec, -1"); e("s_nop 1")
        e(f"s_branch {L('red')}")
        a.label(L("last"))
        e(f"s_mov_b32 {sT0}, {MEMP_OFF+63*10240}")
        e(f"buffer_store_dwordx2 {vr(T0,2)}, {vRS}, {S_WS}, {sT0} offen sc1")
        e(f"s_branch {L('done')}")
    if OPT["nanchk"]:
        a.label(L("scan"))
        e(f"v_mov_b32 v{T0}, 0")
        for k in range(10):
            e(f"ds_read_b32 v{T1}, {vL16} offset:{L_MEM+1024*k}"); e("s_waitcnt lgkmcnt(0)"); e(f"v_max_u32 v{T0}, v{T0}, v{T1}")
        e(f"v_cmp_eq_u32 vcc, -1, v{T0}"); e(f"s_cbranch_vccnz {L('rec')}"); e(f"s_branch {L('scanned')}")
    if w==2:
        if OPT["f1"]: a.label(L("nored0")); zero_acc(); e("s_waitcnt lgkmcnt(0)")
        a.label(L("nored"))
        e("s_waitcnt vmcnt(0)")
        e(f"s_cmp_eq_u32 {sSTEP}, {NSEG-1}"); e(f"s_cbranch_scc1 {L('done')}")
        e(f"s_branch {L('nored2')}")
    if w==3 and OPT["kvchk"]:
        a.label(L("kvw"))
        if tim in(1,2): e("s_add_u32 s85, s85, 1")
        e(f"v_mov_b32 v{T0}, 0")
        a.label(L("kvw2"))
        e(f"buffer_load_dword v{T1}, v{T0}, {S_WS}, {sT0} offen sc1"); spin(); e("s_waitcnt vmcnt(0)")
        e(f"v_cmp_gt_u32 vcc, 32, v{T1}"); e(f"s_cbranch_vccnz {L('kvw2')}")
        e(f"s_branch {L('kvok')}")
    if w==3 and OPT["pub"] and OPT["lastlds"]:
        a.label(L("pub62"))
        e(f"v_add_u32 v{T1}, {sPC}, {vL8}"); e(f"ds_read_b64 v[4:5], v{T1} offset:{L_MEM}")
        e(f"s_add_u32 {sT0}, {sMP}, 10240"); e(f"s_add_u32 s10, {sT0}, {OPT['piece']}"); e("s_waitcnt lgkmcnt(0)")
        e(f"buffer_store_dwordx2 v[4:5], {vL8}, {S_T}, {sT0} offen sc1"); e("s_mov_b32 s10, 0")
        e(f"s_branch {L('pub62b')}")
    if w==3:
        a.label(L("last"))
        e("s_waitcnt vmcnt(0)")
        if OPT["pub"] and OPT["pubpos"] not in("hop","lds") and not OPT["lastlds"]: e(f"buffer_store_dwordx2 v[4:5], {vL8}, {S_T}, {sMP} offen sc1")
        e(f"s_branch {L('done')}")
    if w in(1,2) and not OPT["m1pre"]:
        a.label(L("mr"))
        spin("s86")
        mfetch(); e(f"s_waitcnt vmcnt({nd})")
        pcmp(T1); e(f"s_cbranch_vccnz {L('mr')}")
        e("s_waitcnt vmcnt(0)")
        e(f"s_branch {L('mok')}")
    a.label(L("done"))
    a.vm=[]; a.lg=[]
    e("s_waitcnt vmcnt(0) lgkmcnt(0)")
    if w==3 and OPT["wb"]:
        e(f"s_cmp_eq_u32 {sH}, 0"); e(f"s_cbranch_scc0 {L('nowb')}"); e("buffer_wbl2 sc1"); e("s_waitcnt vmcnt(0)"); a.label(L("nowb"))
    if tim in(1,2):
        e("s_memtime s[70:71]"); e("s_waitcnt lgkmcnt(0)"); e("s_sub_u32 s83, s70, s74")
        for i in range(11): e(f"v_mov_b32 v{12+i}, s{76+i}")
        e(f"s_lshl_b32 {sT0}, {sH}, 2"); e(f"s_add_u32 {sT0}, {sT0}, {w}"); e(f"s_lshl_b32 {sT0}, {sT0}, 6"); e(f"s_add_u32 {sT0}, {sT0}, {DBG_OFF}")
        e("v_mov_b32 v10, 0"); e("s_mov_b64 exec, 1")
        e("s_memrealtime s[68:69]"); e("s_waitcnt lgkmcnt(0)")
        for i,r in enumerate((90,92,94,66,68)): e(f"v_mov_b32 v{23+i}, s{r}")
        for i in range(4): e(f"buffer_store_dwordx4 {vr(12+4*i,4)}, v10, {S_WS}, {sT0} offen offset:{16*i}")
        if OPT["dbgout"] and w==0:
            for i in range(5):
                e(f"v_mov_b32 v10, {16+4*i}"); e(f"global_atomic_umax v10, v{23+i}, {sDBG}")
            e("v_mov_b32 v10, 36"); e(f"global_atomic_umax v10, v19, {sDBG}")
        e("s_waitcnt vmcnt(0)")
    e("s_endpgm")
```

```python
from asmlib import *
from layout import *
import chain as C
import struct, math
S_WS=C.S_WS; sDBG=C.sDBG
sW="s13"; sROW="s64"; sRANK="s65"
f32=lambda x: "0x%08x"%struct.unpack("<I",struct.pack("<f",x))[0]
OPT={"tim":0,"hold":0,"fast0":1,"lastwi":208,"perm":(6,0,1,2,3,4,5),"split":0,"holdn":32,"asleep":1,"bsleep":1}

def rt(a,i):
    if OPT["tim"]: a.e(f"s_memrealtime s[{70+2*i}:{71+2*i}]")

def spin_wait(a,name,load,cmp_fail,sCNT="s32",sleep=1):
    e=a.e
    a.label(name)
    load()
    e(f"s_add_u32 {sCNT}, {sCNT}, 1"); e(f"s_cmp_gt_u32 {sCNT}, 0x40000"); e("s_cbranch_scc1 L_abort")
    e("s_waitcnt vmcnt(0)"); a.vm=[]
    cmp_fail()
    e(f"s_cbranch_vccz {name}_ok")
    if sleep: e(f"s_sleep {sleep}")
    e(f"s_branch {name}")
    a.label(name+"_ok")

XA=0
ACC=32; BI=64; GT=80
vLN="v232"; vL16="v233"; vDA="v234"; vDB="v235"; vVO="v236"; vRD="v237"; TMP=240
S_W="s[8:11]"; S_X="s[20:23]"
sTILE="s24"; sSEG="s26"; sSRC="s27"; sOUT="s28"; sOUT2="s29"; sSTR="s30"; sOFF="s31"; sCNT="s32"; sWI="s33"; sA="s34"; sB="s35"; sKIND="s36"; sMIX="s37"
sSLOT="s16"; sSIG="s17"; sOSTR="s18"; sIT="s19"; sFILL="s38"; sG0="s39"; sOUT3="s14"; sOUT4="s15"; sHS="s25"
def wreg(j,k,t):
    i=160*j+8*k+4*t
    return vr(i,4,'a') if i<256 else vr(i-256+160,4)
def wreg2(j,k,t,x):
    i=160*j+8*k+4*t+2*x
    return vr(i,2,'a') if i<256 else vr(i-256+160,2)

def layernorm(a):
    e=a.e; one=TMP; S=[TMP+4,TMP+8]
    for k in range(20):
        e(f"v_mfma_f32_16x16x32_bf16 {vr(S[0],4)}, {vr(one,4)}, {vr(4*k,4)}, {'0' if k==0 else vr(S[0],4)}")
        e(f"v_mfma_f32_16x16x32_bf16 {vr(S[1],4)}, {vr(4*k,4)}, {vr(4*k,4)}, {'0' if k==0 else vr(S[1],4)}")
    q=S[1]
    for i in range(1,4):
        e(f"v_cmp_eq_u32 vcc, {i}, v{TMP+12}"); e(f"v_cndmask_b32 v{q}, v{q}, v{q+i}, vcc")
    e(f"ds_bpermute_b32 v{q}, v{TMP+13}, v{q}","bp")
    m=S[0]
    e(f"v_mul_f32 v{m}, {f32(1/640)}, v{m}")
    a.wait(lg="bp")
    e(f"v_mul_f32 v{q}, {f32(1/640)}, v{q}"); e(f"v_fma_f32 v{q}, -v{m}, v{m}, v{q}"); e(f"v_max_f32 v{q}, 0, v{q}")
    rb=lambda r: (e(f"v_cvt_pk_bf16_f32 v{r}, v{r}, v{r}"), e(f"v_and_b32 v{r}, {sMIX}, v{r}"))
    rb(m); rb(q); e(f"v_add_f32 v{q}, {f32(1e-5)}, v{q}"); rb(q); e(f"v_sqrt_f32 v{q}, v{q}"); rb(q)
    e(f"v_rcp_f32 v{q}, v{q}"); e(f"v_mul_f32 v{m}, v{m}, v{q}")
    for k in range(20):
        if k and k%4==0: e(f"s_add_u32 {sOUT}, {sOUT}, 4096")
        for r in range(4*k,4*k+4):
            t=TMP+14
            e(f"v_lshlrev_b32 v{t}, 16, v{r}"); e(f"v_and_b32 v{t+1}, {sMIX}, v{r}")
            e(f"v_pk_fma_f32 {vr(t,2)}, {vr(t,2)}, {vr(q,2)}, {vr(m,2)} op_sel_hi:[1,0,0] neg_lo:[0,0,1] neg_hi:[0,0,1]")
            e(f"v_cvt_pk_bf16_f32 v{r}, v{t}, v{t+1}")
        e(f"buffer_store_dwordx4 {vr(4*k,4)}, {vL16}, {S_WS}, {sOUT} offen offset:{1024*(k%4)} sc1")

def add_one(a,off):
    e=a.e
    e("s_mov_b64 exec, 1")
    e(f"v_mov_b32 v{TMP}, 0"); e(f"v_mov_b32 v{TMP+1}, 1")
    e(f"buffer_atomic_add v{TMP+1}, v{TMP}, {S_WS}, {off} offen")
    e("s_mov_b64 exec, -1"); e("s_nop 3")

def seg_dma(a):
    out=[]
    for i in range(10):
        g=[]
        if i%4==0: g.append(f"s_add_u32 m0, {sFILL}, {4096*(i//4)}")
        if i in(4,8): g.append(f"s_add_u32 {sSRC}, {sSRC}, 4096")
        g.append((f"buffer_load_dwordx4 {vL16}, {S_X}, {sSRC} offen offset:{1024*(i%4)} sc1 lds","d"))
        out.append(g)
    out[-1]+= [f"s_add_u32 {sSRC}, {sSRC}, {40960-8192}",f"s_add_u32 {sFILL}, {sFILL}, 40960",f"s_cmp_ge_u32 {sFILL}, 163840",
               f"s_cselect_b32 {sA}, 163840, 0",f"s_sub_u32 {sFILL}, {sFILL}, {sA}"]
    return out
def emit(a,g):
    for x in g:
        if isinstance(x,tuple): a.e(x[0],x[1])
        else: a.e(x)

def seg_loop(a,kind):
    e=a.e; L=lambda s: f"W{kind}_{s}"
    a.label(L("top"))
    NJ=1 if kind=="H" else 2
    if OPT["fast0"]:
        e(f"s_cmp_eq_u32 {sIT}, 3"); e(f"s_cbranch_scc0 {L('late')}"); e("s_waitcnt vmcnt(0)"); a.label(L("late"))
    e(f"s_waitcnt vmcnt({10+2*NJ})"); e("s_barrier")
    a.vm=[]; a.lg=[]
    rd=lambda f: e(f"ds_read_b128 {vr(4*(f%8),4)}, {vRD} offset:{1024*f}",f"f{f}")
    LA=7 if NJ==1 else 4
    for f in range(LA): rd(f)
    if OPT["fast0"]:
        e(f"s_cmp_eq_u32 {sIT}, 4"); e(f"s_cselect_b32 {sA}, 1, {sW}"); e(f"s_cmp_lt_u32 {sIT}, 2"); e(f"s_cselect_b32 {sA}, 1, {sA}")
        e(f"s_cmp_eq_u32 {sA}, 0"); e(f"s_cbranch_scc0 {L('nosig')}")
        add_one(a,sSIG)
        e(f"s_cmp_eq_u32 {sIT}, 3"); e(f"s_cbranch_scc0 {L('nosig')}"); e(f"s_add_u32 {sB}, {sSIG}, 128")
        add_one(a,sB)
    else:
        e(f"s_cmp_lt_u32 {sIT}, 2"); e(f"s_cselect_b32 {sA}, 1, {sW}"); e(f"s_cmp_eq_u32 {sA}, 0"); e(f"s_cbranch_scc0 {L('nosig')}")
        add_one(a,sSIG)
    a.label(L("nosig")); a.vm=[]
    fill=seg_dma(a)
    ac=lambda j,tt,t: ACC+16*j+8*tt+4*t
    for f in range(40):
        tt,k=f//20,f%20
        a.wait(lg=f"f{f}")
        for j in range(NJ):
            for t in range(2):
                A,B=wreg(j,k,t),vr(4*(f%8),4)
                if kind=="V": A,B=B,A
                d=vr(ac(j,tt,t),4)
                e(f"v_mfma_f32_16x16x32_bf16 {d}, {A}, {B}, {'0' if k==0 else d}")
                if j==0 and t==0 and f+LA<40: rd(f+LA)
        if f%3==0 and fill: emit(a,fill.pop(0))
    e(f"s_add_u32 {sSLOT}, {sSLOT}, 40960"); e(f"s_cmp_ge_u32 {sSLOT}, 163840"); e(f"s_cselect_b32 {sSLOT}, 0, {sSLOT}")
    e(f"v_add_u32 {vRD}, {sSLOT}, {vL16}")
    so=[[sOUT,sOUT2],[sOUT3,sOUT4]]
    for j in range(NJ):
      if kind=="K":
        for tt in range(2):
            t0,t1=ac(j,tt,0),ac(j,tt,1); o=TMP+4+4*tt
            for i,(x,y) in enumerate(((t0,t0+2),(t1,t1+2),(t0+1,t0+3),(t1+1,t1+3))): e(f"v_cvt_pk_bf16_f32 v{o+i}, v{x}, v{y}")
            e(f"buffer_store_dwordx4 {vr(o,4)}, {vL16}, {S_WS}, {so[j][tt]} offen sc1")
      elif kind=="V":
        for t in range(2):
            t0,t1=ac(j,0,t),ac(j,1,t); o=TMP+4+4*t
            for i,(x,y) in enumerate(((t0,t0+1),(t0+2,t0+3),(t1,t1+1),(t1+2,t1+3))): e(f"v_cvt_pk_bf16_f32 v{o+i}, v{x}, v{y}")
            e(f"buffer_store_dwordx4 {vr(o,4)}, {vVO}, {S_WS}, {so[j][0]} offen offset:{128*t} sc1")
      else:
        for tt in range(2):
            for t in range(2):
                for i in range(4):
                    z=ac(j,tt,t)+i; u=GT+4+i
                    e(f"v_add_f32 v{z}, v{z}, v{BI+8*j+4*t+i}")
                    e(f"v_mul_f32 v{u}, v{z}, v{z}"); e(f"v_fma_f32 v{u}, v{u}, {sG0}, v{GT}"); e(f"v_mul_f32 v{u}, v{u}, v{z}")
                for i in range(4): e(f"v_exp_f32 v{GT+4+i}, v{GT+4+i}")
                for i in range(4): e(f"v_add_f32 v{GT+4+i}, 1.0, v{GT+4+i}")
                for i in range(4): e(f"v_rcp_f32 v{GT+4+i}, v{GT+4+i}")
                for i in range(4): e(f"v_mul_f32 v{ac(j,tt,t)+i}, v{ac(j,tt,t)+i}, v{GT+4+i}")
            t0,t1=ac(j,tt,0),ac(j,tt,1); o=TMP+4+4*tt
            for i,(x,y) in enumerate(((t0,t0+1),(t0+2,t0+3),(t1,t1+1),(t1+2,t1+3))): e(f"v_cvt_pk_bf16_f32 v{o+i}, v{x}, v{y}")
            e(f"buffer_store_dwordx4 {vr(o,4)}, {vL16}, {S_WS}, {so[j][tt]} offen sc1")
    for r in (sOUT,sOUT2,sOUT3,sOUT4): e(f"s_add_u32 {r}, {r}, {sOSTR}")
    e(f"s_add_u32 {sSIG}, {sSIG}, 128")
    if OPT["tim"]:
        e(f"s_cmp_eq_u32 {sIT}, 3"); e(f"s_cbranch_scc0 {L('nt')}"); rt(a,2); e("s_waitcnt lgkmcnt(0)"); a.label(L("nt"))
    e(f"s_add_u32 {sIT}, {sIT}, 1"); e(f"s_cmp_lt_u32 {sIT}, 64"); e(f"s_cbranch_scc1 {L('top')}")
    e("s_branch W_tail")

def zero_wait(a,name):
    e=a.e
    spin_wait(a,name,lambda:(e(f"v_mov_b32 v{TMP+4}, 4"),e(f"global_load_dword v{TMP+5}, v{TMP+4}, {sDBG} sc1")),lambda:e(f"v_cmp_gt_u32 vcc, 32, v{TMP+5}"))

def common(a):
    e=a.e
    e(f"s_load_dwordx2 s[20:21], s[0:1], {A_X}")
    e(f"s_load_dwordx2 s[40:41], s[0:1], {A_WQ}"); e(f"s_load_dwordx2 s[42:43], s[0:1], {A_WK}"); e(f"s_load_dwordx2 s[44:45], s[0:1], {A_WV}")
    e(f"s_load_dwordx2 s[54:55], s[0:1], {A_WO}")
    e(f"s_load_dwordx2 s[46:47], s[0:1], {B_W1}"); e(f"s_load_dwordx2 s[48:49], s[0:1], {B_B1}")
    e(f"v_mov_b32 {vLN}, v0"); e(f"v_lshlrev_b32 {vL16}, 4, v0")
    code=sum(v<<(4*(i+1)) for i,v in enumerate(OPT["perm"]))
    e(f"s_lshl_b32 {sA}, {sROW}, 2"); e(f"s_lshr_b32 {sWI}, 0x{code:x}, {sA}"); e(f"s_and_b32 {sWI}, {sWI}, 7")
    e(f"s_lshl_b32 {sWI}, {sWI}, 5"); e(f"s_add_u32 {sWI}, {sWI}, {sRANK}")
    e(f"s_mov_b32 {sCNT}, 0"); e(f"s_mov_b32 {sMIX}, 0xffff0000")
    e(f"s_mov_b32 s22, {S*D*2}"); e("s_mov_b32 s23, 0x20000"); e("s_mov_b32 s11, 0x20000")
    e("s_waitcnt lgkmcnt(0)")

def norm_rows(a):
    e=a.e; t=TMP
    e(f"s_sub_u32 {sHS}, {sWI}, 64"); e(f"s_cmp_lt_u32 {sHS}, 128"); e(f"s_cselect_b32 {sA}, {sW}, 1")
    e(f"s_cmp_eq_u32 {sA}, 0"); e(f"s_cselect_b32 {sKIND}, 1, 0"); e("s_cbranch_scc0 W_nox")
    e(f"v_and_b32 v{t}, 15, {vLN}"); e(f"v_mul_u32_u24 v{t}, 1280, v{t}"); e(f"v_lshrrev_b32 v{t+1}, 4, {vLN}"); e(f"v_lshl_add_u32 v{t}, v{t+1}, 4, v{t}")
    e(f"s_mul_i32 {sA}, {sHS}, {16*1280}")
    for k in range(20): e(f"buffer_load_dwordx4 {vr(4*k,4)}, v{t}, {S_X}, {sA} offen offset:{64*k}")
    a.label("W_nox")
    if C.OPT["sweep"]:
        e("s_barrier")
        e(f"s_lshl_b32 {sA}, {sHS}, 2"); e(f"s_add_u32 {sA}, {sA}, {sW}"); e(f"s_lshl_b32 {sA}, {sA}, 13")
        e(f"v_lshlrev_b32 v239, 3, {vL16}"); e(f"s_mov_b32 s10, {640*8192}")
        for r in (40,42,44,54):
            e(f"s_mov_b32 s8, s{r}"); e(f"s_mov_b32 s9, s{r+1}")
            e(f"buffer_load_dword v238, v239, s[8:11], {sA} offen {C.OPT['swpfl']}")
    e(f"s_cmp_eq_u32 {sKIND}, 1"); e("s_cbranch_scc0 W_noln")
    e(f"s_mul_i32 {sA}, {sHS}, 5120"); e(f"s_add_u32 {sA}, {sA}, {MEMP_OFF}"); e(f"s_add_u32 {sOUT}, {sA}, 4096")
    e(f"v_mov_b64 {vr(TMP+4,2)}, -1"); e(f"v_mov_b64 {vr(TMP+6,2)}, -1")
    for i in range(5): e(f"buffer_store_dwordx4 {vr(TMP+4,4)}, {vL16}, {S_WS}, {sA if i<4 else sOUT} offen offset:{1024*(i%4)} sc1")
    for i in range(4): e(f"v_mov_b32 v{TMP+i}, 0x3f803f80")
    e(f"v_and_b32 v{TMP+12}, 15, {vLN}"); e(f"v_lshrrev_b32 v{TMP+13}, 2, v{TMP+12}"); e(f"v_lshl_add_u32 v{TMP+13}, v{TMP+13}, 4, v{TMP+12}")
    e(f"v_lshlrev_b32 v{TMP+13}, 2, v{TMP+13}"); e(f"v_and_b32 v{TMP+12}, 3, v{TMP+12}")
    e(f"s_mul_i32 {sOUT}, {sHS}, 20480"); e(f"s_add_u32 {sOUT2}, {sOUT}, {YN_OFF}"); e(f"s_add_u32 {sOUT}, {sOUT}, {XN_OFF}")
    e(f"s_waitcnt vmcnt({9 if C.OPT['sweep'] else 5})")
    rt(a,0)
    e(f"s_mov_b32 {sIT}, 0")
    a.label("W_ln")
    layernorm(a)
    e(f"s_mov_b32 {sOUT}, {sOUT2}"); e(f"s_add_u32 {sIT}, {sIT}, 1"); e(f"s_cmp_lt_u32 {sIT}, 2"); e("s_cbranch_scc1 W_ln")
    zero_wait(a,"W_zero")
    e(f"s_lshr_b32 {sA}, {sHS}, 1"); e(f"s_lshl_b32 {sA}, {sA}, 7"); e(f"s_add_u32 {sA}, {sA}, {LNCNT}")
    add_one(a,sA)
    a.label("W_noln"); a.vm=[]; a.lg=[]

def project(a):
    e=a.e; t=TMP
    e(f"s_lshl_b32 {sTILE}, {sWI}, 1"); e(f"s_add_u32 {sA}, {sWI}, 48"); e(f"s_min_u32 {sTILE}, {sTILE}, {sA}"); e(f"s_lshr_b32 {sKIND}, {sTILE}, 5")
    e(f"s_cmp_eq_u32 {sKIND}, 0"); e("s_cselect_b32 s8, s42, s44"); e("s_cselect_b32 s9, s43, s45")
    e(f"s_cmp_eq_u32 {sKIND}, 2"); e("s_cselect_b32 s8, s40, s8"); e("s_cselect_b32 s9, s41, s9")
    e(f"s_cmp_eq_u32 {sKIND}, 3"); e("s_cselect_b32 s8, s46, s8"); e("s_cselect_b32 s9, s47, s9")
    e(f"s_mov_b32 {sA}, 8192"); e(f"s_cselect_b32 {sSTR}, {F*2}, {sA}"); e(f"s_mul_i32 s10, {sSTR}, {D}")
    e(f"v_lshrrev_b32 v{t+2}, 4, {vLN}"); e(f"v_lshlrev_b32 v{t+3}, 1, v{t+2}"); e(f"v_and_b32 v{t+4}, 15, {vLN}"); e(f"v_xor_b32 v{t+3}, v{t+3}, v{t+4}")
    e(f"s_lshl_b32 {sA}, {sW}, 4"); e(f"v_add_u32 v{t+2}, {sA}, v{t+2}"); e(f"v_mul_lo_u32 v{t+2}, v{t+2}, {sSTR}")
    e(f"v_lshl_add_u32 {vDA}, v{t+3}, 4, v{t+2}"); e(f"v_xor_b32 v{t+3}, 8, v{t+3}"); e(f"v_lshl_add_u32 {vDB}, v{t+3}, 4, v{t+2}")
    e(f"s_lshl_b32 {sSTR}, {sSTR}, 2"); e(f"s_mul_i32 {sSRC}, {sSTR}, 13"); e(f"s_lshl_b32 {sB}, {sW}, 12")
    e(f"v_bfe_u32 v{t}, {vLN}, 2, 2"); e(f"v_bfe_u32 v{t+1}, {vLN}, 4, 1"); e(f"v_lshl_add_u32 v{t+1}, v{t+1}, 2, v{t}")
    e(f"v_lshrrev_b32 v{t+2}, 4, {vLN}"); e(f"v_lshl_add_u32 v{t+2}, v{t+2}, 3, v{t}"); e(f"v_lshlrev_b32 v{t+2}, 8, v{t+2}")
    e(f"v_and_b32 v{t+3}, 3, {vLN}"); e(f"v_lshl_add_u32 v{t+2}, v{t+3}, 3, v{t+2}")
    e(f"s_lshl_b32 {sA}, {sW}, 1")
    e(f"v_xor_b32 v{t+3}, {sA}, v{t+1}"); e(f"v_lshl_add_u32 v{t+8}, v{t+3}, 5, v{t+2}")
    e(f"v_xor_b32 v{t+3}, 1, v{t+3}"); e(f"v_lshl_add_u32 v{t+9}, v{t+3}, 5, v{t+2}")
    def stage(n):
        if n%10==0:
            e(f"s_and_b32 {sOFF}, {sTILE}, 31"); e(f"s_add_u32 {sOFF}, {sOFF}, {n//10}"); e(f"s_lshl_b32 {sOFF}, {sOFF}, 8")
        for i in range(4):
            e(f"s_add_u32 m0, {sB}, {(n%10)*16384+i*1024}")
            e(f"buffer_load_dwordx4 {vDA if i<2 else vDB}, {S_W}, {sOFF} offen lds",f"w{n}")
            e(f"s_add_u32 {sOFF}, {sOFF}, {sSTR if i<3 else sSRC}")
    for n in range(10): stage(n)
    for n in range(20):
        j,st=n//10,n%10
        a.wait(vm=f"w{n}"); e("s_barrier")
        if n==1: e(f"s_cmp_eq_u32 {sKIND}, 3"); e("s_cselect_b32 s10, 0, s10")
        if 1<=n<=10: stage(n+9)
        if st in(4,8): e(f"v_add_u32 v{t+8}, 0x10000, v{t+8}"); e(f"v_add_u32 v{t+9}, 0x10000, v{t+9}")
        if n==10: e(f"v_subrev_u32 v{t+8}, 0x20000, v{t+8}"); e(f"v_subrev_u32 v{t+9}, 0x20000, v{t+9}")
        for ks in range(2):
            for tl in range(2):
                for x in range(2): e(f"ds_read_b64_tr_b16 {wreg2(j,2*st+ks,tl,x)}, v{t+8+tl} offset:{(st%4)*16384+ks*8192+x*1024}")
        e("s_waitcnt lgkmcnt(0)"); a.lg=[]
    e(f"v_and_b32 v{t}, 1, {vLN}"); e(f"v_lshlrev_b32 {vVO}, 10, v{t}"); e(f"v_lshrrev_b32 v{t}, 4, {vLN}"); e(f"v_lshl_add_u32 {vVO}, v{t}, 8, {vVO}")
    e(f"v_bfe_u32 v{t}, {vLN}, 1, 3"); e(f"v_lshl_add_u32 {vVO}, v{t}, 4, {vVO}")
    e("s_mov_b32 s8, s48"); e("s_mov_b32 s9, s49"); e(f"s_cmp_eq_u32 {sKIND}, 3"); e(f"s_cselect_b32 s10, {F*2}, 0")
    e(f"v_lshrrev_b32 v{t}, 4, {vLN}"); e(f"v_lshlrev_b32 v{t}, 3, v{t}"); e(f"s_and_b32 {sA}, {sTILE}, 31"); e(f"s_lshl_b32 {sA}, {sA}, 8"); e(f"s_lshl_b32 {sB}, {sW}, 6"); e(f"s_add_u32 {sA}, {sA}, {sB}")
    for j in range(2):
        for tl in range(2): e(f"buffer_load_dwordx2 {vr(88+4*j+2*tl,2)}, v{t}, {S_W}, {sA} offen offset:{256*j+32*tl}")
    e(f"v_lshlrev_b32 v{t+6}, 3, {vL16}")
    zero_wait(a,"W_zero2")
    spin_wait(a,"W_lnw",lambda:e(f"buffer_load_dword v{t+7}, v{t+6}, {S_WS}, 0 offen sc1"),lambda:e(f"v_cmp_gt_u32 vcc, 2, v{t+7}"),sleep=4)
    for i in range(8):
        e(f"v_lshlrev_b32 v{BI+2*i}, 16, v{88+i}"); e(f"v_and_b32 v{BI+2*i+1}, {sMIX}, v{88+i}")
    k0=math.sqrt(2/math.pi); l2e=math.log2(math.e)
    e(f"s_mov_b32 {sG0}, {f32(-2*k0*0.044715*l2e)}"); e(f"v_mov_b32 v{GT}, {f32(-2*k0*l2e)}")
    e("s_barrier")
    rt(a,1)
    e(f"s_cmp_eq_u32 {sKIND}, 3"); e(f"s_mov_b32 {sA}, {XN_OFF}"); e(f"s_cselect_b32 {sA}, {YN_OFF}, {sA}")
    e(f"s_add_u32 s20, s4, {sA}"); e("s_addc_u32 s21, s5, 0"); e(f"s_mov_b32 s22, {64*40960}")
    e(f"s_mul_i32 {sFILL}, {sW}, 10240"); e(f"s_mov_b32 {sSRC}, {sFILL}")
    e(f"s_mov_b32 {sSLOT}, 0"); e(f"v_mov_b32 {vRD}, {vL16}"); e(f"s_mov_b32 {sIT}, 0")
    e(f"s_and_b32 {sA}, {sTILE}, 31"); e(f"s_cmp_eq_u32 {sKIND}, 3"); e("s_cbranch_scc1 W_setH")
    e(f"s_lshl_b32 {sOUT}, {sA}, 13")
    e(f"s_lshl_b32 {sA}, {sKIND}, 24"); e(f"s_add_u32 {sOUT}, {sOUT}, {sA}"); e(f"s_add_u32 {sOUT}, {sOUT}, {XK_OFF}")
    e(f"s_cmp_eq_u32 {sKIND}, 1"); e(f"s_cselect_b32 {sA}, 11, 10"); e(f"s_lshl_b32 {sA}, {sW}, {sA}"); e(f"s_add_u32 {sOUT}, {sOUT}, {sA}")
    e(f"s_add_u32 {sOUT2}, {sOUT}, 4096"); e(f"s_add_u32 {sOUT3}, {sOUT}, 8192"); e(f"s_add_u32 {sOUT4}, {sOUT}, 12288"); e(f"s_mov_b32 {sOSTR}, {32*8192}"); e("s_branch W_setD")
    a.label("W_setH")
    e(f"s_lshl_b32 {sA}, {sA}, 2"); e(f"s_add_u32 {sA}, {sA}, {sW}")
    e(f"s_lshl_b32 {sOUT}, {sA}, 10"); e(f"s_add_u32 {sOUT}, {sOUT}, {HH_OFF}"); e(f"s_cmp_lt_u32 {sA}, 54"); e(f"s_cselect_b32 {sOUT}, {sOUT}, 0x7f000000")
    e(f"s_add_u32 {sOUT2}, {sOUT}, {54*1024}"); e(f"s_mov_b32 {sOSTR}, {2*54*1024}")
    a.label("W_setD")
    e(f"s_cmp_lt_u32 {sKIND}, 2"); e(f"s_mov_b32 {sA}, {QHCNT-2*128}"); e(f"s_cselect_b32 {sSIG}, {KVCNT-2*128}, {sA}")
    for i in range(3):
        for g in seg_dma(a): emit(a,g)
    e(f"s_cmp_eq_u32 {sKIND}, 1"); e("s_cbranch_scc1 WV_top"); e(f"s_cmp_eq_u32 {sKIND}, 3"); e("s_cbranch_scc1 WH_top")
    seg_loop(a,"K"); seg_loop(a,"V"); seg_loop(a,"H")
    a.label("W_tail")
    e("s_waitcnt vmcnt(0)"); e("s_barrier")
    e(f"s_cmp_eq_u32 {sW}, 0"); e("s_cbranch_scc0 W_tail2")
    for i in range(2):
        add_one(a,sSIG); e(f"s_add_u32 {sSIG}, {sSIG}, 128")
    a.label("W_tail2")
    rt(a,3)
    a.vm=[]; a.lg=[]
    finish(a)

def load_pairs(a,groups,LB,nreg,lock=True):
    e=a.e; sT0="s34"
    def issue(i):
        setup,loads,_,_=groups[i]; lb=LB[i%len(LB)]
        for x in setup: e(x)
        for j,(vo,off) in enumerate(loads):
            e(f"s_mov_b32 {sT0}, {off}"); e(f"buffer_load_dword v{lb+j}, {vo}, s[8:11], {sT0} offen",f"w{i}")
    def process(i):
        _,loads,dlo,dhi=groups[i]; lb=LB[i%len(LB)]
        a.wait(vm=f"w{i}")
        if lock: e("s_barrier")
        for dst,sel in ((dlo,"s38"),(dhi,"s39")):
            for R,(k,r) in enumerate(dst):
                if k=="v": e(f"v_perm_b32 v{r}, v{lb+2*R+1}, v{lb+2*R}, {sel}")
                else:
                    e(f"v_perm_b32 v{4+(R&3)}, v{lb+2*R+1}, v{lb+2*R}, {sel}"); e(f"v_accvgpr_write_b32 a{r}, v{4+(R&3)}")
    e("s_mov_b32 s38, 0x05040100"); e("s_mov_b32 s39, 0x07060302")
    n=len(LB)-1
    for i in range(n): issue(i)
    for i in range(len(groups)):
        if i+n<len(groups): issue(i+n)
        process(i)

def stageA(a):
    e=a.e
    sH="s24"; sS="s25"; sT0="s34"; sT1="s35"; sQ="s26"; sK="s27"; sV="s28"; sM="s29"; sO="s30"; sOC="s31"; sQ2="s36"; sK2="s37"
    sCC="s[96:97]"; sC="s96"
    e(f"s_and_b32 {sH}, s33, 31"); e(f"s_lshr_b32 {sS}, s33, 5"); e(f"s_sub_u32 {sS}, {sS}, 2")
    e(f"v_mov_b32 v15, {vLN}")
    e("v_lshrrev_b32 v4, 5, v15"); e("v_lshlrev_b32 v4, 4, v4"); e("v_bfe_u32 v5, v15, 4, 1"); e("v_lshl_add_u32 v4, v5, 2, v4")
    e("v_and_b32 v5, 15, v15"); e("v_lshlrev_b32 v5, 2, v5")
    e(f"s_lshl_b32 {sT0}, {sH}, 8"); e(f"s_lshl_b32 {sT1}, {sW}, 6"); e(f"s_add_u32 {sT0}, {sT0}, {sT1}")
    e("v_lshl_add_u32 v1, v4, 13, v5"); e(f"v_add_u32 v1, {sT0}, v1")
    e(f"s_mov_b32 s10, {D*8192}")
    place=lambda i: ("a",8*i) if i<32 else ("v",192+8*(i-32))
    T={}
    groups=[]
    for m,(lo,hi) in (("k",("s42","s43")),("v",("s44","s45"))):
        for k in range(10):
            loads=[("v1",(64*k+32*(R>>2)+8*(R&1)+2*((R>>1)&1)+x)*8192) for R in range(8) for x in range(2)]
            d=[]
            for tau in range(2):
                T[(m,k,tau)]=p=place(len(T)); d.append([(p[0],p[1]+R) for R in range(8)])
            groups.append(([f"s_mov_b32 s8, {lo}",f"s_mov_b32 s9, {hi}"] if k==0 else [],loads,d[0],d[1]))
    load_pairs(a,groups,[16,32,48],8)
    vL16="v0"; vA="v1"; vIDX="v2"; vXW="v6"; vXR="v7"; vML="v8"; vML3="v9"; vDG="v3"
    e("v_lshlrev_b32 v0, 4, v15")
    e("v_lshrrev_b32 v12, 5, v15"); e("v_lshlrev_b32 v1, 9, v12"); e("v_bfe_u32 v12, v15, 1, 3"); e("v_lshl_add_u32 v1, v12, 6, v1")
    e("v_bfe_u32 v12, v15, 4, 1"); e("v_lshl_add_u32 v1, v12, 5, v1"); e("v_and_b32 v12, 1, v15"); e("v_lshl_add_u32 v1, v12, 4, v1")
    e("v_mov_b32 v13, 0xaaaa"); e("v_mul_u32_u24 v2, v12, v13"); e("v_add_u32 v2, 0x4444, v2")
    LX=10240
    e("v_lshrrev_b32 v12, 5, v15"); e("v_lshlrev_b32 v12, 2, v12"); e("v_and_b32 v13, 15, v15"); e("v_xor_b32 v12, v12, v13")
    e("v_lshlrev_b32 v6, 3, v12"); e("v_lshrrev_b32 v12, 4, v15"); e("v_lshl_add_u32 v6, v12, 7, v6")
    e(f"s_lshl_b32 {sT0}, {sW}, 10"); e(f"s_add_u32 {sT0}, {sT0}, {LX}"); e(f"v_add_u32 v6, {sT0}, v6")
    e("v_bfe_u32 v12, v15, 3, 1"); e("v_lshlrev_b32 v7, 3, v12"); e("v_lshrrev_b32 v12, 4, v15"); e("v_lshl_add_u32 v7, v12, 1, v7")
    e("v_bfe_u32 v12, v15, 2, 1"); e("v_add_u32 v7, v7, v12"); e("v_bfe_u32 v12, v15, 1, 1"); e("v_lshlrev_b32 v12, 2, v12"); e("v_xor_b32 v7, v7, v12")
    e("v_lshlrev_b32 v7, 3, v7"); e("v_and_b32 v12, 3, v15"); e("v_lshl_add_u32 v7, v12, 7, v7"); e(f"v_add_u32 v7, {LX}, v7")
    e(f"s_mul_i32 {sT0}, {sW}, 2560"); e(f"v_add_u32 v8, {sT0}, v0")
    e("v_and_b32 v9, 0x1ff, v0"); e(f"v_add_u32 v9, {sT0}, v9")
    e("v_lshrrev_b32 v12, 4, v15"); e("v_lshlrev_b32 v12, 2, v12"); e("v_and_b32 v13, 15, v15"); e("v_sub_u32 v3, v13, v12")
    c=(128**-0.5)*math.log2(math.e)
    e(f"s_mov_b32 s96, {f32(c)}"); e(f"s_mov_b32 s97, {f32(c)}")
    e("s_mov_b32 s98, 0x3f803f80"); e("s_mov_b32 s99, 0x3f803f80"); e("s_mov_b32 s100, 0x3f003f00"); e("s_mov_b32 s101, 0x3f003f00")
    Q=16; K=48; VX=80; SX={(0,0):88,(1,0):92,(1,1):96}; SM=[100,104]; AB=108; KA=148; VA=156; X=164; P=[16,24]; O=32; ONE=48; SUM=52; PK=56
    rt(a,4)
    a.label("A_seg")
    e(f"s_lshl_b32 {sT0}, {sS}, 7"); e(f"s_add_u32 {sT0}, {sT0}, {KVCNT}")
    e("v_lshrrev_b32 v12, 9, v0"); e("v_lshlrev_b32 v10, 13, v12"); e("v_mul_u32_u24 v12, 2, v12"); e("v_sub_u32 v12, 32, v12")
    spin_wait(a,"A_qh",lambda:e(f"buffer_load_dword v11, v10, {S_WS}, {sT0} offen sc1"),lambda:e("v_cmp_gt_u32 vcc, v12, v11"),sleep=8)
    e(f"s_lshl_b32 {sT0}, {sS}, 5"); e(f"s_add_u32 {sT0}, {sT0}, {sH}"); e(f"s_lshl_b32 {sT0}, {sT0}, 13")
    e(f"s_add_u32 {sQ}, {sT0}, {XQ_OFF}"); e(f"s_add_u32 {sQ2}, {sQ}, 4096"); e(f"s_add_u32 {sK}, {sT0}, {XK_OFF}"); e(f"s_add_u32 {sK2}, {sK}, 4096")
    e(f"s_lshl_b32 {sT1}, {sW}, 11"); e(f"s_add_u32 {sV}, {sT0}, {sT1}"); e(f"s_add_u32 {sV}, {sV}, {XV_OFF}")
    for t in range(2):
        for ke in range(4):
            e(f"buffer_load_dwordx4 {vr(Q+16*t+4*ke,4)}, {vL16}, {S_WS}, {sQ2 if t else sQ} offen offset:{1024*ke} sc1",f"q{t}")
        for ke in range(4):
            e(f"buffer_load_dwordx4 {vr(K+16*t+4*ke,4)}, {vL16}, {S_WS}, {sK2 if t else sK} offen offset:{1024*ke} sc1",f"k{t}")
    for t in range(2): e(f"buffer_load_dwordx4 {vr(VX+4*t,4)}, {vL16}, {S_WS}, {sV} offen offset:{1024*t} sc1","vx")
    e(f"s_mul_i32 {sM}, {sS}, 10240"); e(f"s_add_u32 {sM}, {sM}, {MEMP_OFF}")
    e(f"s_lshl_b32 {sO}, {sS}, 6"); e(f"s_add_u32 {sO}, {sO}, {sH}"); e(f"s_lshl_b32 {sO}, {sO}, 2"); e(f"s_add_u32 {sO}, {sO}, {sW}"); e(f"s_lshl_b32 {sO}, {sO}, 10"); e(f"s_add_u32 {sO}, {sO}, {O_OFF}")
    e(f"s_lshl_b32 {sOC}, {sS}, 2"); e(f"s_lshr_b32 {sT0}, {sH}, 3"); e(f"s_add_u32 {sOC}, {sOC}, {sT0}"); e(f"s_lshl_b32 {sOC}, {sOC}, 7"); e(f"s_add_u32 {sOC}, {sOC}, {OCNT4}")
    def mf(d,A,B,first,op="v_mfma_f32_16x16x32_bf16",n=4):
        e(f"{op} {vr(d,4)}, {vr(A,n)}, {vr(B,n)}, {'0' if first else vr(d,4)}")
    for (qt,kt),d in SX.items():
        a.wait(vm=[f"q{qt}",f"k{kt}"])
        for ke in range(4): mf(d,K+16*kt+4*ke,Q+16*qt+4*ke,ke==0)
    for r in range(KA,KA+16,2): e(f"v_mov_b64 {vr(r,2)}, 0")
    e("v_mov_b32 v11, 0xff800000")
    for i in range(4):
        e(f"v_cmp_gt_i32 vcc, {i}, {vDG}")
        for d in (SX[(0,0)],SX[(1,1)]): e(f"v_cndmask_b32 v{d+i}, v{d+i}, v11, vcc")
    def ml():
        e(f"buffer_load_dwordx4 {vr(AB,4)}, {vML}, {S_WS}, {sM} offen sc1"); e(f"buffer_load_dwordx4 {vr(AB+4,4)}, {vML}, {S_WS}, {sM} offen offset:1024 sc1")
        e(f"buffer_load_dwordx4 {vr(AB+8,4)}, {vML3}, {S_WS}, {sM} offen offset:2048 sc1")
    def mc():
        e(f"v_max3_u32 v10, v{AB}, v{AB+2}, v{AB+4}"); e(f"v_max3_u32 v10, v10, v{AB+6}, v{AB+8}"); e(f"v_max_u32 v10, v10, v{AB+10}")
        e("v_cmp_eq_u32 vcc, -1, v10")
    spin_wait(a,"A_mem",ml,mc,sleep=OPT["asleep"])
    rt(a,0)
    e(f"ds_write_b128 {vML}, {vr(AB,4)}"); e(f"ds_write_b128 {vML}, {vr(AB+4,4)} offset:1024"); e(f"ds_write_b128 {vML3}, {vr(AB+8,4)} offset:2048")
    a.wait(lg="all"); e("s_barrier")
    for k in range(10): e(f"ds_read_b128 {vr(AB+4*k,4)}, {vA} offset:{1024*k}",f"A{k}")
    def sm(acc_,k,key):
        kk,b=T[key]; e(f"v_smfmac_f32_16x16x64_bf16 {vr(acc_,4)}, {vr(AB+4*k,4)}, {vr(b,8,kk)}, {vIDX}")
    for k in range(10):
        a.wait(lg=f"A{k}")
        for tau in range(2): sm(KA+4*tau,k,("k",k,tau))
    sm(VA,0,("v",0,0)); sm(VA+4,0,("v",0,1))
    for tau in range(2):
        r=KA+4*tau
        e(f"v_add_f32 v{r}, v{r}, v{r+1}"); e(f"v_add_f32 v{r+2}, v{r+2}, v{r+3}"); e(f"v_cvt_pk_bf16_f32 v{r+1}, v{r}, v{r+2}")
        e(f"v_mov_b32 v{r}, 0")
        e(f"ds_write_b64 {vXW}, {vr(r,2)} offset:{512*tau}","xw")
    for k in range(1,4):
        for tau in range(2): sm(VA+4*tau,k,("v",k,tau))
    a.wait(lg="xw"); e("s_barrier")
    for ke in range(4):
        for x in range(2): e(f"ds_read_b64_tr_b16 {vr(X+4*ke+2*x,2)}, {vXR} offset:{1024*ke+512*x}",f"X{ke}")
    for k in range(4,10):
        for tau in range(2): sm(VA+4*tau,k,("v",k,tau))
    for ke in range(4):
        a.wait(lg=f"X{ke}")
        for qt in range(2): mf(SM[qt],X+4*ke,Q+16*qt+4*ke,ke==0)
    for i in range(4): e(f"v_cvt_pk_bf16_f32 v{VA+i}, v{VA+2*i}, v{VA+2*i+1}")
    e(f"v_mov_b64 {vr(ONE,2)}, s[98:99]"); e(f"v_mov_b64 {vr(ONE+2,2)}, s[98:99]"); e(f"v_mov_b64 {vr(KA,2)}, s[100:101]")
    a.wait(vm="vx")
    for qt in range(2):
        ev=[r+i for r in ([SX[(0,0)]] if qt==0 else [SX[(1,0)],SX[(1,1)]]) for i in range(4)]+[SM[qt]+2,SM[qt]+3]
        e(f"v_max3_f32 v10, v{ev[0]}, v{ev[1]}, v{ev[2]}")
        for i in range(3,len(ev)-1,2): e(f"v_max3_f32 v10, v10, v{ev[i]}, v{ev[i+1]}")
        e(f"v_max_f32 v11, v10, v{ev[-1]}"); e(f"v_max_f32 v10, v10, v{ev[-1]}")
        e("v_permlane32_swap_b32 v10, v11"); e("v_max_f32 v12, v10, v11"); e("v_max_f32 v10, v10, v11")
        e("v_permlane16_swap_b32 v10, v12"); e("v_max_f32 v10, v10, v12"); e(f"v_mul_f32 v10, {sC}, v10")
        for r in ev[::2]: e(f"v_pk_fma_f32 {vr(r,2)}, {vr(r,2)}, {sCC}, v[10:11] op_sel_hi:[1,1,0] neg_lo:[0,0,1] neg_hi:[0,0,1]")
        for r in ev: e(f"v_exp_f32 v{r}, v{r}")
        p=P[qt]
        for i in range((len(ev)-2)//2): e(f"v_cvt_pk_bf16_f32 v{p+i}, v{ev[2*i]}, v{ev[2*i+1]}")
        if qt==0: e(f"v_mov_b64 {vr(p+2,2)}, 0")
        e(f"v_cvt_pk_bf16_f32 v{p+4}, v{ev[-2]}, v{ev[-2]}"); e(f"v_cvt_pk_bf16_f32 v{p+5}, v{ev[-1]}, v{ev[-1]}")
        o=O+8*qt
        mf(SUM,ONE,p,1); mf(o,VX,p,1); mf(o+4,VX+4,p,1)
        mf(SUM,KA,p+4,0,"v_mfma_f32_16x16x16_bf16",2); mf(o,VA,p+4,0,"v_mfma_f32_16x16x16_bf16",2); mf(o+4,VA+2,p+4,0,"v_mfma_f32_16x16x16_bf16",2)
        e(f"v_rcp_f32 v10, v{SUM}")
        pk=PK+4*qt
        for i in range(0,4,2):
            for t in range(2): e(f"v_pk_mul_f32 {vr(o+4*t+i,2)}, {vr(o+4*t+i,2)}, v[10:11] op_sel_hi:[1,0]")
            for k in range(2): e(f"v_cvt_pk_bf16_f32 v{pk+i+k}, v{o+i+k}, v{o+4+i+k}")
        if qt: e(f"s_add_u32 {sO}, {sO}, {32*4096}")
        e(f"buffer_store_dwordx4 {vr(pk,4)}, {vL16}, {S_WS}, {sO} offen sc1","o")
    rt(a,1)
    e("s_waitcnt vmcnt(0)"); a.vm=[]; e("s_barrier")
    rt(a,2)
    e(f"s_cmp_eq_u32 {sW}, 0"); e("s_cbranch_scc0 A_nosig")
    e("s_mov_b64 exec, 1"); e("v_mov_b32 v10, 0"); e("v_mov_b32 v11, 1")
    e(f"buffer_atomic_add v11, v10, {S_WS}, {sOC} offen"); e("s_mov_b64 exec, -1"); e("s_nop 3")
    a.label("A_nosig")
    e(f"s_add_u32 {sS}, {sS}, 2"); e(f"s_cmp_lt_u32 {sS}, 64"); e("s_cbranch_scc1 A_seg")
    finish(a)

def finish(a):
    e=a.e
    e("s_waitcnt vmcnt(0)")
    if OPT["tim"]:
        rt(a,5); e("s_waitcnt lgkmcnt(0)")
        for i in range(6): e(f"v_mov_b32 v{12+i}, s{70+2*i}")
        e("v_mov_b32 v18, s90"); e("v_mov_b32 v19, s32")
        e(f"s_lshl_b32 s34, s33, 2"); e(f"s_add_u32 s34, s34, {sW}"); e("s_lshl_b32 s34, s34, 5"); e(f"s_add_u32 s34, s34, {DBG_OFF+131072}")
        e("v_mov_b32 v10, 0"); e("s_mov_b64 exec, 1")
        e(f"buffer_store_dwordx4 v[12:15], v10, {S_WS}, s34 offen"); e(f"buffer_store_dwordx4 v[16:19], v10, {S_WS}, s34 offen offset:16")
        if C.OPT["dbgout"]:
            e("v_mov_b32 v10, 40"); e(f"global_atomic_umax v10, v17, {sDBG}")
        e("s_waitcnt vmcnt(0)")
    e("s_endpgm")

def stageB(a):
    e=a.e
    sN="s24"; sS="s25"; sHF="s26"; sT0="s34"; sT1="s35"; sHS="s27"; sHH="s28"; sOO="s29"; sXO="s30"; sPAR="s31"; sMIX="s37"
    S_O="s[16:19]"; S_XX="s[20:23]"
    e(f"s_load_dwordx2 s[40:41], s[0:1], {A_WO}"); e(f"s_load_dwordx2 s[42:43], s[0:1], {B_W2}"); e(f"s_load_dwordx2 s[44:45], s[0:1], {B_B2}")
    e(f"s_load_dwordx2 s[16:17], s[0:1], {D_OUT}"); e(f"s_load_dwordx2 s[20:21], s[0:1], {A_X}")
    e(f"s_sub_u32 {sT0}, s33, 128")
    e(f"s_mul_i32 {sS}, {sT0}, 1639"); e(f"s_lshr_b32 {sS}, {sS}, 16")
    e(f"s_mul_i32 {sT1}, {sS}, 40"); e(f"s_sub_u32 {sT0}, {sT0}, {sT1}")
    e(f"s_cmp_ge_u32 {sT0}, 20"); e(f"s_cselect_b32 {sHF}, 1, 0"); e(f"s_mul_i32 {sT1}, {sHF}, 20"); e(f"s_sub_u32 {sN}, {sT0}, {sT1}")
    e(f"v_mov_b32 v15, {vLN}")
    e("v_lshrrev_b32 v4, 4, v15"); e("v_and_b32 v5, 15, v15"); e("v_lshlrev_b32 v5, 2, v5"); e(f"s_lshl_b32 {sT0}, {sN}, 6"); e(f"v_add_u32 v5, {sT0}, v5")
    e("v_mul_u32_u24 v1, 10240, v4"); e("v_add_u32 v1, v1, v5"); e(f"s_mul_i32 {sT0}, {sW}, {1024*1280}"); e(f"v_add_u32 v1, {sT0}, v1")
    e("v_mul_u32_u24 v2, 5120, v4"); e("v_add_u32 v2, v2, v5"); e(f"s_mul_i32 {sT0}, {sW}, {14*32*1280}"); e(f"v_add_u32 v2, {sT0}, v2")
    e(f"s_mov_b32 s18, {S*D*2}"); e("s_mov_b32 s19, 0x20000"); e(f"s_mov_b32 s22, {S*D*2}"); e("s_mov_b32 s23, 0x20000")
    e("s_waitcnt lgkmcnt(0)")
    groups=[]
    for kk in range(16):
        loads=[("v1",(64*kk+32*(R>>2)+2*(R&3)+x)*1280) for R in range(8) for x in range(2)]
        d=[[("a",16*kk+8*(R>>2)+4*tau+(R&3)) for R in range(8)] for tau in range(2)]
        groups.append((["s_mov_b32 s8, s40","s_mov_b32 s9, s41",f"s_mov_b32 s10, {4096*1280}"] if kk==0 else [],loads,d[0],d[1]))
    W2=144
    for kk in range(7):
        loads=[("v2",(64*kk+32*(R>>2)+16*((R>>1)&1)+2*(R&1)+x)*1280) for R in range(8) for x in range(2)]
        d=[[("v",W2+16*kk+8*(R>>2)+4*tau+(R&3)) for R in range(8)] for tau in range(2)]
        groups.append((["s_mov_b32 s8, s42","s_mov_b32 s9, s43",f"s_mov_b32 s10, {F*1280}"] if kk==0 else [],loads,d[0],d[1]))
    load_pairs(a,groups,[16,32,48],8,lock=False)
    vL16="v0"; vXO="v1"; vRW="v2"; B2=4
    e("v_lshlrev_b32 v0, 4, v15")
    e("v_and_b32 v12, 15, v15"); e("v_mul_u32_u24 v1, 1280, v12"); e("v_lshrrev_b32 v12, 4, v15"); e("v_lshlrev_b32 v12, 4, v12")
    e(f"s_lshl_b32 {sT0}, {sN}, 6"); e(f"v_add_u32 v12, {sT0}, v12"); e("v_add_u32 v1, v1, v12")
    e(f"s_lshl_b32 {sT0}, {sW}, 11"); e(f"v_add_u32 v2, {sT0}, v0")
    e("s_mov_b32 s8, s44"); e("s_mov_b32 s9, s45"); e(f"s_mov_b32 s10, {D*2}")
    e("buffer_load_dwordx4 v[16:19], v12, s[8:11], 0 offen"); e(f"s_mov_b32 {sMIX}, 0xffff0000")
    e("s_waitcnt vmcnt(0)"); a.vm=[]
    for i in range(4): e(f"v_lshlrev_b32 v{B2+i}, 16, v{16+i}"); e(f"v_and_b32 v{B2+4+i}, {sMIX}, v{16+i}")
    e(f"s_mov_b32 {sPAR}, 0")
    AC=[12,16]; XR=20; RING=32; NR=24; RED=128
    rt(a,4)
    e("v_mov_b32 v28, v0"); e("v_mov_b32 v29, v1"); e(f"s_mov_b32 s39, {sS}")
    a.label("B_unit")
    if OPT["split"]:
        e(f"s_cmp_eq_u32 {sS}, 63"); e("s_cbranch_scc0 B_full")
        e("v_bfe_u32 v24, v0, 7, 1"); e("v_cmp_eq_u32 vcc, s39, v24"); e("v_mov_b32 v24, 0x7ff00000")
        e("v_cndmask_b32 v28, v24, v0, vcc"); e("v_cndmask_b32 v29, v24, v1, vcc")
        a.label("B_full")
    e(f"s_lshl_b32 {sT0}, {sS}, 7"); e(f"s_add_u32 {sT0}, {sT0}, {QHCNT}"); e("v_mov_b32 v24, 0")
    spin_wait(a,"B_qh",lambda:e(f"buffer_load_dword v25, v24, {S_WS}, {sT0} offen sc1"),lambda:e("v_cmp_gt_u32 vcc, 30, v25"),sleep=8)
    e(f"s_lshl_b32 {sHS}, {sS}, 1"); e(f"s_add_u32 {sHS}, {sHS}, {sHF}")
    e(f"s_mul_i32 {sHH}, {sHS}, {54*1024}"); e(f"s_mul_i32 {sT0}, {sW}, {14*1024}"); e(f"s_add_u32 {sHH}, {sHH}, {sT0}"); e(f"s_add_u32 {sHH}, {sHH}, {HH_OFF}")
    e(f"s_lshl_b32 {sOO}, {sHS}, 17"); e(f"s_lshl_b32 {sT0}, {sW}, 15"); e(f"s_add_u32 {sOO}, {sOO}, {sT0}"); e(f"s_add_u32 {sOO}, {sOO}, {O_OFF}")
    e(f"s_mul_i32 {sXO}, {sHS}, {16*1280}")
    def ld(i,sreg,tag):
        if i and i%4==0: e(f"s_add_u32 {sreg}, {sreg}, 4096")
        e(f"buffer_load_dwordx4 {vr(RING+4*(i%NR),4)}, v28, {S_WS}, {sreg} offen offset:{1024*(i%4)} sc1",tag)
    def mm(i,base,kind,first):
        for tau in range(2):
            e(f"v_mfma_f32_16x16x32_bf16 {vr(AC[tau],4)}, {vr(base+8*i+4*tau,4,kind)}, {vr(RING+4*(i%NR),4)}, {'0' if first else vr(AC[tau],4)}")
    for i in range(14):
        if i==12:
            e(f"s_cmp_eq_u32 {sW}, 3"); e(f"s_cselect_b32 {sHH}, 0x7ff00000, {sHH}")
        ld(i,sHH,f"h{i}")
    e(f"buffer_load_dwordx4 {vr(XR,4)}, {vXO}, {S_XX}, {sXO} offen","xr")
    for i in range(14):
        a.wait(vm=f"h{i}"); mm(i,W2,"v",i==0)
    e(f"s_lshl_b32 {sT0}, {sS}, 2"); e(f"s_add_u32 {sT0}, {sT0}, {sW}"); e(f"s_lshl_b32 {sT0}, {sT0}, 7"); e(f"s_add_u32 {sT0}, {sT0}, {OCNT4}")
    spin_wait(a,"B_o",lambda:e(f"buffer_load_dword v25, v24, {S_WS}, {sT0} offen sc1"),lambda:e("v_cmp_gt_u32 vcc, 8, v25"),sleep=OPT["bsleep"])
    rt(a,0)
    for i in range(NR): ld(i,sOO,f"o{i}")
    for i in range(32):
        a.wait(vm=f"o{i}"); mm(i,0,"a",False)
        if i+NR<32: ld(i+NR,sOO,f"o{i+NR}")
    rt(a,1)
    e(f"v_add_u32 v26, {sPAR}, {vRW}"); e(f"v_add_u32 v27, {sPAR}, {vL16}")
    e(f"ds_write_b128 v26, {vr(AC[0],4)}"); e(f"ds_write_b128 v26, {vr(AC[1],4)} offset:1024")
    a.wait(lg="all"); e("s_barrier")
    e(f"s_cmp_eq_u32 {sW}, 0"); e("s_cbranch_scc0 B_next")
    for j in range(6): e(f"ds_read_b128 {vr(RING+4*j,4)}, v27 offset:{2048+1024*j}",f"r{j}")
    for i in range(4):
        e(f"v_lshlrev_b32 v{RING+24+i}, 16, v{XR+i}"); e(f"v_and_b32 v{RING+28+i}, {sMIX}, v{XR+i}")
    for i in range(8): e(f"v_add_f32 v{RING+24+i}, v{RING+24+i}, v{B2+i}")
    for i in range(8): e(f"v_add_f32 v{AC[0]+i}, v{AC[0]+i}, v{RING+24+i}")
    for j in range(3):
        a.wait(lg=f"r{2*j+1}")
        for i in range(8): e(f"v_add_f32 v{AC[0]+i}, v{AC[0]+i}, v{RING+8*j+i}")
    for i in range(4): e(f"v_cvt_pk_bf16_f32 v{XR+i}, v{AC[0]+i}, v{AC[1]+i}")
    e(f"buffer_store_dwordx4 {vr(XR,4)}, v29, {S_O}, {sXO} offen sc1")
    a.label("B_next")
    e(f"s_xor_b32 {sPAR}, {sPAR}, 8192")
    e(f"s_add_u32 {sS}, {sS}, 2")
    if OPT["split"]: e(f"s_cmp_eq_u32 {sS}, 64"); e(f"s_cselect_b32 {sS}, 63, {sS}")
    e(f"s_cmp_lt_u32 {sS}, 64"); e("s_cbranch_scc1 B_unit")
    finish(a)

def hold(a,name):
    if not OPT["hold"]: return
    e=a.e
    e(f"s_mov_b32 {sA}, {OPT['hold']}")
    spin_wait(a,name,lambda:(e(f"v_mov_b32 v{TMP+4}, 0"),e(f"buffer_load_dword v{TMP+5}, v{TMP+4}, {S_WS}, {sA} offen sc1")),lambda:e(f"v_cmp_gt_u32 vcc, {OPT['holdn']}, v{TMP+5}"),sleep=16)

def workers(a):
    e=a.e
    common(a)
    e(f"s_cmp_lt_u32 {sWI}, 62"); e("s_cbranch_scc0 W_notp")
    project(a)
    a.label("W_notp")
    e(f"s_cmp_lt_u32 {sWI}, 64"); e("s_cbranch_scc1 L_exit")
    norm_rows(a)
    e(f"s_cmp_ge_u32 {sWI}, {OPT['lastwi']}"); e("s_cbranch_scc1 L_exit")
    zero_wait(a,"W_zero3")
    hold(a,"W_hold")
    e("s_barrier")
    e(f"s_cmp_lt_u32 {sWI}, 128"); e("s_cbranch_scc0 W_stageB")
    stageA(a)
    a.label("W_stageB")
    stageB(a)
```

```python
import sys
from asmlib import *
from layout import *
import chain as C
import worker as W

NAME="parallel_sum__memory_aug_recurrent_mem_tr__mixer_channel_mlp__prompt"
KN=NAME+"_kernel"
sW="s13"; sROW="s64"; sRANK="s65"

DOC=""";
;              CS* (write-through stores) runs for any other placement.
"""
TIM=[0]
def set_chain(mod):
    global C
    C=mod
def prologue(a):
    e=a.e
    e("s_cmp_ge_u32 s2, 256"); e("s_cbranch_scc1 L_exit")
    if TIM[0] in(1,2): e("s_memrealtime s[90:91]")
    e(f"s_load_dwordx2 {C.sDBG}, s[0:1], {D_DBG}"); e(f"s_load_dwordx2 s[4:5], s[0:1], {D_WS}")
    e(f"s_getreg_b32 {C.sXCC}, hwreg(HW_REG_XCC_ID, 0, 4)")
    e("v_lshrrev_b32 v1, 6, v0"); e(f"v_readfirstlane_b32 {sW}, v1"); e("v_and_b32 v0, 63, v0")
    e(f"s_mov_b32 s6, {WS_SIZE}"); e("s_mov_b32 s7, 0x20000")
    e(f"s_and_b32 {sROW}, {C.sXCC}, 7")
    e("s_waitcnt lgkmcnt(0)")
    e(f"s_cmp_eq_u32 {sW}, 0"); e("s_cbranch_scc0 L_gotrole")
    e("s_mov_b64 exec, 1"); e("v_mov_b32 v2, 1"); e("s_mov_b32 s42, 0")
    a.label("L_ticket")
    e(f"s_lshl_b32 s43, {sROW}, 2"); e("s_add_u32 s43, s43, 128"); e(f"s_cmp_eq_u32 {sROW}, 0"); e("s_cselect_b32 s43, 0, s43")
    e("v_mov_b32 v1, s43"); e(f"global_atomic_add v3, v1, v2, {C.sDBG} sc0"); e("s_waitcnt vmcnt(0)")
    e(f"v_readfirstlane_b32 {sRANK}, v3"); e("s_nop 3")
    e(f"s_cmp_lt_u32 {sRANK}, 32"); e("s_cbranch_scc1 L_ticketok")
    e(f"s_add_u32 {sROW}, {sROW}, 1"); e(f"s_and_b32 {sROW}, {sROW}, 7"); e("s_add_u32 s42, s42, 1")
    e("s_cmp_lt_u32 s42, 8"); e("s_cbranch_scc1 L_ticket")
    e(f"s_mov_b32 {sROW}, 8")
    a.label("L_ticketok")
    e(f"s_lshl_b32 s43, {sROW}, 5"); e(f"s_add_u32 s43, s43, {sRANK}")
    e("v_mov_b32 v3, s43"); e(f"v_mov_b32 v1, {C.L_ROLE}"); e("ds_write_b32 v1, v3"); e("s_waitcnt lgkmcnt(0)")
    e("s_mov_b64 exec, -1")
    a.label("L_gotrole")
    e("s_barrier")
    e(f"v_mov_b32 v1, {C.L_ROLE}"); e("ds_read_b32 v3, v1"); e("s_waitcnt lgkmcnt(0)")
    e("v_readfirstlane_b32 s43, v3"); e("s_nop 3")
    e(f"s_lshr_b32 {sROW}, s43, 5"); e(f"s_and_b32 {sRANK}, s43, 31")
    e("s_barrier")
    a.vm=[]; a.lg=[]
    e(f"s_cmp_ge_u32 {sROW}, 8"); e("s_cbranch_scc1 L_exit")
    e(f"s_cmp_eq_u32 {sROW}, 0"); e("s_cbranch_scc0 L_worker")

def chain_poll(a, kv_need):
    e=a.e; q=list(a.vm)
    e(f"s_cmp_eq_u32 {sW}, 0"); e("s_cbranch_scc0 C_arrived")
    e(f"s_mov_b64 exec, {C.OPT['kvmask']}"); e("v_lshlrev_b32 v8, 3, v0"); e(f"v_add_u32 v8, {KVCNT}, v8"); e("v_mov_b32 v4, 4")
    e("s_mov_b32 s66, 0")
    a.label("C_poll")
    e(f"global_load_dwordx2 v[6:7], v4, {C.sDBG} sc1")
    e("s_add_u32 s66, s66, 1"); e("s_cmp_gt_u32 s66, 0x100000"); e("s_cbranch_scc1 C_polled")
    e("s_waitcnt vmcnt(0)")
    e("v_cmp_gt_u32 vcc, 32, v6"); e("s_cbranch_vccnz C_poll")
    a.label("C_pollkv")
    e("buffer_load_dword v9, v8, s[4:7], 0 offen sc1")
    e("s_add_u32 s66, s66, 1"); e("s_cmp_gt_u32 s66, 0x100000"); e("s_cbranch_scc1 C_polled")
    e("s_waitcnt vmcnt(0)")
    e(f"v_cmp_gt_u32 vcc, {kv_need}, v9"); e("s_cbranch_vccz C_polled"); e("s_sleep 4"); e("s_branch C_pollkv")
    a.label("C_polled")
    e("s_waitcnt vmcnt(0)"); e("s_mov_b64 exec, 1")
    e(f"v_mov_b32 v4, {C.L_ROLE}"); e("ds_write_b32 v4, v7"); e("s_waitcnt lgkmcnt(0)")
    e("s_mov_b64 exec, -1")
    if C.OPT["early"]:
        e("v_lshlrev_b32 v4, 3, v0"); e(f"s_mov_b32 m0, {C.L_ROLE+256}"); e(f"s_sub_u32 s66, {C.sVXN}, {32*8192}")
        e(f"buffer_load_dword v4, s[4:7], {C.sKX} offen sc1 lds"); e("buffer_load_dword v4, s[4:7], s66 offen sc1 lds")
    a.label("C_arrived")
    a.vm=q
def chain_start(a):
    e=a.e
    e("s_barrier")
    e(f"v_mov_b32 v12, {C.L_ROLE}"); e("ds_read_b32 v13, v12"); e("s_waitcnt lgkmcnt(0)")
    e("v_readfirstlane_b32 s42, v13"); e("s_nop 3")
    e(f"s_bcnt1_i32_b32 {C.sMODE}, s42")
    a.vm=[]; a.lg=[]

def build(tim=0, force_slow=0, kv_need=0, workers=None):
    a=Asm(); e=a.e; TIM[0]=tim; W.OPT["tim"]=1 if tim==2 else 0
    prologue(a)
    if tim in(1,2): e("s_memrealtime s[92:93]")
    e(f"s_mov_b32 {C.sH}, {sRANK}")
    C.chain_init(a, sW, lambda: chain_poll(a, kv_need))
    if tim in(1,2): e("s_memrealtime s[94:95]")
    chain_start(a)
    if tim in(1,2): e("s_memrealtime s[66:67]")
    e(f"s_cmp_eq_u32 {C.sMODE}, {99 if force_slow else 1}"); e("s_cbranch_scc0 C_slow")
    for pfx,st in (("CF",""),("CS","sc1")):
        if pfx=="CS": a.label("C_slow")
        for w in (1,2,3):
            e(f"s_cmp_eq_u32 {sW}, {w}"); e(f"s_cbranch_scc1 {pfx}_w{w}")
        for w in range(4):
            a.label(f"{pfx}_w{w}")
            C.chain_wave(a,w,st,pfx,tim)
    a.label("L_worker")
    if workers: workers(a)
    a.label("L_abort")
    a.label("L_exit")
    e("s_endpgm")
    head=open("cdna_kernels/"+NAME+".s.ref").read().split("; Override launch")[0]
    out=head+"; @launch grid=(256,1,1) block=(256,1,1) lds=163840\n"+DOC
    out+=f'.amdgcn_target "amdgcn-amd-amdhsa--gfx950"\n.text\n.globl {KN}\n.p2align 8\n.type {KN},@function\n{KN}:\n'
    out+=a.text()
    out+=f""".section .rodata,"a"
.p2align 6
.amdhsa_kernel {KN}
  .amdhsa_next_free_vgpr 512
  .amdhsa_next_free_sgpr 102
  .amdhsa_accum_offset 256
  .amdhsa_group_segment_fixed_size 0
  .amdhsa_kernarg_size 120
  .amdhsa_user_sgpr_count 2
  .amdhsa_user_sgpr_kernarg_segment_ptr 1
  .amdhsa_system_sgpr_workgroup_id_x 1
  .amdhsa_float_denorm_mode_32 3
.end_amdhsa_kernel
"""
    return out, a
if __name__=="__main__":
    full=len(sys.argv)>3
    out,a=build(tim=int(sys.argv[2]) if len(sys.argv)>2 else 0, kv_need=32 if full else 0, workers=W.workers if full else None)
    open(sys.argv[1],"w").write(out); print("instructions",len(a.ins),"pad states",a.npad)
```

```python
from asmlib import *
from layout import *
import math

L_MEM=0; L_X=10240; L_KX=14336; L_SEL=22528; L_ROLE=23552; L_W=24576
S_WS="s[4:7]"; S_T="s[8:11]"
sH="s12"; sSTEP="s14"; sMR="s15"; sMW="s16"; sMZ="s17"; sTAG="s18"; sTAGM="s19"
sKX="s20"; sVX="s21"; sPC="s22"; sMP="s23"; sSW="s24"; sP0="s25"; sP1="s26"; sP2="s27"
sPR=["s28","s29","s30","s31"]; sCNT="s32"; sC="s33"; sFE="s34"; sKX2="s35"; sSW2="s36"; sSW3="s37"; sSW4="s38"
sPLO="s40"; sPHI="s41"; sT0="s42"; sT1="s43"; sEX="s[44:45]"; sUNIT="s46"; sKXN="s47"; sVXN="s48"; sMF="s49"; sPAT="s39"; sALL="s31"; sMU="s53"; sF1W="s88"; sF1R="s89"
sCC="s[96:97]"; sONE="s[98:99]"; sHALF="s[100:101]"; sDBG="s[50:51]"; sXCC="s52"; sMODE="s87"
vL16="v0"; vA="v1"; vIDX="v2"; vW="v3"; vRL="v4"; vRS="v5"; vXW="v6"; vXR="v7"; vOW="v8"; vL8="v9"
T0=10; T1=11
AB=[12,16,20,24]; QA=28; KA=32; VA=36; SL1=40; SL2=48; SL3=56

QSEQ=[]; Q_SLOT={}; O_SLOT={}; SLOT={}; TG={}; TL={}; TR={}; GPOS=[]
QS={0:{0:(SL1,"L"),1:(SL2,"L"),25:(SL3,"G"),29:(SL1,"G"),33:(SL2,"G"),31:(SL3,"L"),37:(SL3,"L"),43:(SL3,"L"),35:(SL1,"L"),41:(SL1,"L"),47:(SL1,"L"),39:(SL2,"L")},
    1:{16:(SL3,"G"),19:(SL1,"G"),22:(SL2,"G"),23:(SL3,"L"),29:(SL3,"L"),35:(SL3,"L"),41:(SL3,"L"),25:(SL1,"L"),31:(SL1,"L"),37:(SL1,"L"),27:(SL2,"L"),33:(SL2,"L")},
    2:{12:(SL3,"G"),16:(SL1,"G"),20:(SL2,"G"),18:(SL3,"L"),24:(SL3,"L"),30:(SL3,"L"),36:(SL3,"L"),22:(SL1,"L"),28:(SL1,"L"),34:(SL1,"L"),26:(SL2,"L"),32:(SL2,"L")},
    3:{14:(SL3,"G"),18:(SL1,"G"),22:(SL2,"G"),20:(SL3,"L"),28:(SL3,"L"),36:(SL3,"L"),44:(SL3,"L"),24:(SL1,"L"),32:(SL1,"L"),40:(SL1,"L"),30:(SL2,"L"),38:(SL2,"L")},
    4:{0:(SL1,"L"),1:(SL2,"L"),12:(SL3,"G"),27:(SL1,"G"),31:(SL2,"G"),18:(SL3,"L"),24:(SL3,"L"),30:(SL3,"L"),33:(SL1,"L"),39:(SL1,"L"),37:(SL2,"L"),43:(SL2,"L")},
    5:{0:(SL1,"L"),1:(SL2,"L"),10:(SL3,"G"),24:(SL1,"G"),28:(SL2,"G"),16:(SL3,"L"),22:(SL3,"L"),30:(SL3,"L"),38:(SL3,"L"),32:(SL1,"L"),42:(SL1,"L"),35:(SL2,"L")},
    6:{0:(SL1,"L"),1:(SL2,"L"),14:(SL3,"G"),25:(SL1,"G"),29:(SL2,"G"),20:(SL3,"L"),27:(SL3,"L"),33:(SL3,"L"),40:(SL3,"L"),31:(SL1,"L"),37:(SL1,"L"),35:(SL2,"L")}}
OS={0:{0:(28,"G"),1:(SL1,"G"),9:(SL2,"G"),19:(SL1,"G"),2:(SL3,"L"),5:(SL3,"L"),8:(SL3,"L"),11:(SL3,"L"),14:(SL3,"L"),17:(SL3,"L"),12:(SL2,"L"),15:(SL2,"L")},
    1:{0:(28,"G"),1:(SL1,"G"),11:(SL2,"G"),19:(SL1,"G"),2:(SL3,"L"),6:(SL3,"L"),10:(SL3,"L"),14:(SL3,"L"),18:(SL3,"L"),5:(SL1,"L"),15:(SL2,"L"),17:(SL3,"X")},
    2:{0:(28,"G"),1:(SL1,"G"),9:(SL2,"G"),19:(SL1,"G"),2:(SL3,"L"),6:(SL3,"L"),10:(SL3,"L"),14:(SL3,"L"),18:(SL3,"L"),5:(SL1,"L"),13:(SL2,"L"),17:(SL2,"L")},
    3:{0:(28,"G"),1:(SL1,"G"),11:(SL2,"G"),19:(SL1,"G"),2:(SL3,"L"),6:(SL3,"L"),10:(SL3,"L"),13:(SL3,"L"),16:(SL3,"L"),5:(SL1,"L"),15:(SL2,"L"),18:(SL2,"L")},
    4:{0:(28,"G"),1:(SL1,"G"),18:(SL2,"G"),19:(SL1,"G"),2:(SL3,"L"),6:(SL3,"L"),10:(SL3,"L"),14:(SL3,"L"),3:(SL2,"L"),7:(SL2,"L"),5:(SL1,"L"),9:(SL1,"L")},
    5:{0:(28,"G"),1:(SL1,"G"),9:(SL2,"G"),19:(SL1,"G"),2:(SL3,"L"),6:(SL3,"L"),10:(SL3,"L"),13:(SL3,"L"),16:(SL3,"L"),12:(SL2,"L"),15:(SL2,"L"),18:(SL2,"L")},
    6:{0:(28,"G"),1:(SL1,"G"),8:(SL2,"G"),19:(SL1,"G"),2:(SL3,"L"),7:(SL3,"L"),10:(SL3,"L"),13:(SL3,"L"),16:(SL3,"L"),11:(SL2,"L"),14:(SL2,"L"),17:(SL2,"L")},
    8:{0:(28,"G"),4:(SL1,"G"),10:(SL2,"G"),19:(SL1,"G"),2:(SL3,"L"),5:(SL3,"L"),8:(SL3,"L"),11:(SL3,"L"),14:(SL3,"L"),17:(SL3,"L"),13:(SL2,"L"),16:(SL2,"L")},
    9:{0:(28,"G"),3:(SL1,"G"),10:(SL2,"G"),19:(SL1,"G"),2:(SL3,"L"),6:(SL3,"L"),9:(SL3,"L"),12:(SL3,"L"),15:(SL3,"L"),18:(SL3,"L"),13:(SL2,"L"),16:(SL2,"L")}}
def setup_tiles():
    NV=OPT['nv']
    QSEQ[:]=[(m,k) for k in range(NV) for m in "qkv"]+[(m,k) for k in range(NV,18) for m in "qk"]+[("q",18),("q",19),("k",18),("k",19)]
    for d in (Q_SLOT,O_SLOT,SLOT,TG,TL,TR): d.clear()
    Q_SLOT.update(QS[OPT["qs"]]); O_SLOT.update(OS[OPT["os"]])
    GPOS[:]=sorted(p for p,v in Q_SLOT.items() if v[1]=="G")
    SLOT.update({QSEQ[p]:v for p,v in Q_SLOT.items()}); SLOT.update({("o",n):v for n,v in O_SLOT.items()})
    for key in [(m,k) for m in "qkvo" for k in range(20)]:
        kind=SLOT.get(key,(0,"R"))[1]
        if kind=="G": TG[key]=len(TG)
        elif kind=="L": TL[key]=len(TL)
        else: i=len(TR); TR[key]=("a",8*i) if i<32 else ("v",64+8*(i-32))
    assert len(TR)==56 and len(TG)==7 and len(TL)==17
CURW=[0]
def use_map(w): CURW[0]=w

def sw_ref(idx):
    return [sSW,sSW2,sSW3,sSW4][idx//2], (idx&1)*2048

def gload_tile(a,key,slot,tag):
    if "G" in OPT["ab"] or ("O" in OPT["ab"] and tag in("go9","go19")): return
    s,imm=sw_ref(TG[key])
    fl="" if tag in OPT["l1"] else OPT["gfl"]
    a.e(f"buffer_load_dwordx4 {vr(slot,4)}, {vL16}, {S_WS}, {s} offen offset:{imm} {fl}",tag)
    a.e(f"buffer_load_dwordx4 {vr(slot+4,4)}, {vL16}, {S_WS}, {s} offen offset:{imm+1024} {fl}",tag)
def gload_half(a,key,slot,tag,half):
    if "G" in OPT["ab"] or ("O" in OPT["ab"] and tag in("go9","go19")) or ("Z" in OPT["ab"] and tag=="go19") or ("Y" in OPT["ab"] and tag=="go19" and CURW[0]<2): return
    s,imm=sw_ref(TG[key])
    a.e(f"buffer_load_dwordx4 {vr(slot+4*half,4)}, {vL16}, {S_WS}, {s} offen offset:{imm+1024*half}",tag)
def lload_tile(a,key,slot,tag):
    o=TL[key]*2048
    a.e(f"ds_read_b128 {vr(slot,4)}, {vW} offset:{o}",tag)
    a.e(f"ds_read_b128 {vr(slot+4,4)}, {vW} offset:{o+1024}",tag)
def sm(a,acc,A,key,slot=None):
    if key in TR: k,b=TR[key]
    else: k,b="v",slot
    a.e(f"v_smfmac_f32_16x16x64_bf16 {vr(acc,4)}, {vr(A,4)}, {vr(b,8,k)}, {vIDX}")
def zero4(a,r):
    a.e(f"v_mov_b64 {vr(r,2)}, 0"); a.e(f"v_mov_b64 {vr(r+2,2)}, 0")

def chain_init(a, sW, poll):
    setup_tiles()
    e=a.e
    e("s_load_dwordx2 s[54:55], s[0:1], %d"%A_WQ); e("s_load_dwordx2 s[56:57], s[0:1], %d"%A_WK)
    e("s_load_dwordx2 s[58:59], s[0:1], %d"%A_WV); e("s_load_dwordx2 s[60:61], s[0:1], %d"%A_WO)
    e("s_load_dwordx2 s[62:63], s[0:1], %d"%A_MEM0)
    e(f"s_mov_b32 {sPLO}, 0x05040100"); e(f"s_mov_b32 {sPHI}, 0x07060302")
    e("v_mov_b32 v15, v0"); e("v_lshlrev_b32 v0, 4, v0"); e("s_mov_b32 s11, 0x20000")
    def lanes():
        e("v_bfe_u32 v12, v15, 1, 3"); e("v_lshlrev_b32 v1, 6, v12"); e("v_lshrrev_b32 v12, 4, v15"); e("v_lshl_add_u32 v1, v12, 4, v1")
        e("v_and_b32 v12, 1, v15")
        e("v_mov_b32 v13, 0xaaaa"); e("v_mul_u32_u24 v2, v12, v13"); e("v_add_u32 v2, 0x4444, v2")
        e(f"s_lshl_b32 {sUNIT}, {sW}, 5"); e(f"s_add_u32 {sUNIT}, {sUNIT}, {sH}"); e(f"s_lshl_b32 {sT0}, {sUNIT}, 7")
        e("v_lshrrev_b32 v12, 3, v15"); e("v_mul_u32_u24 v4, 10240, v12"); e("v_and_b32 v12, 7, v15"); e("v_lshl_add_u32 v4, v12, 4, v4")
        e(f"v_add_u32 v4, {sT0}, v4")
        e(f"s_and_b32 {sT1}, {sUNIT}, 1"); e(f"s_lshl_b32 {sT1}, {sT1}, 2"); e(f"s_bfe_u32 {sMU}, {sUNIT}, 0x20001"); e(f"s_or_b32 {sT1}, {sT1}, {sMU}")
        e(f"s_andn2_b32 {sMU}, {sUNIT}, 7"); e(f"s_or_b32 {sT1}, {sT1}, {sMU}"); e(f"s_cmp_lt_u32 {sUNIT}, 64"); e(f"s_cselect_b32 {sMU}, {sT1}, {sUNIT}")
        e(f"s_lshl_b32 {sT0}, {sMU}, 7")
        e("v_lshrrev_b32 v12, 4, v15"); e("v_lshlrev_b32 v5, 6, v12"); e("v_and_b32 v12, 15, v15"); e("v_lshl_add_u32 v5, v12, 3, v5")
        e(f"v_add_u32 v5, {sT0}, v5"); e("v_and_b32 v12, 0x28, v15"); e("v_cmp_eq_u32 vcc, 0, v12"); e("v_mov_b32 v13, 0x7ff00000")
        e("v_cndmask_b32 v5, v13, v5, vcc")
        if OPT["probe"]=="c": e(f"s_lshl_b32 {sT1}, {sUNIT}, 3"); e(f"s_add_u32 {sT1}, {sT1}, 10240"); e(f"v_writelane_b32 v5, {sT1}, 32")
        e("v_lshrrev_b32 v12, 5, v15"); e("v_lshlrev_b32 v12, 2, v12"); e("v_and_b32 v13, 15, v15"); e("v_xor_b32 v12, v12, v13")
        e("v_lshlrev_b32 v6, 3, v12"); e("v_lshrrev_b32 v12, 4, v15"); e("v_lshl_add_u32 v6, v12, 7, v6")
        e(f"s_lshl_b32 {sT0}, {sW}, 10"); e(f"s_add_u32 {sT0}, {sT0}, {L_X}"); e(f"v_add_u32 v6, {sT0}, v6")
        e("v_bfe_u32 v12, v15, 3, 1"); e("v_lshlrev_b32 v7, 3, v12"); e("v_lshrrev_b32 v12, 4, v15"); e("v_lshl_add_u32 v7, v12, 1, v7")
        e("v_bfe_u32 v12, v15, 2, 1"); e("v_add_u32 v7, v7, v12"); e("v_bfe_u32 v12, v15, 1, 1"); e("v_lshlrev_b32 v12, 2, v12"); e("v_xor_b32 v7, v7, v12")
        e("v_lshlrev_b32 v7, 3, v7"); e("v_and_b32 v12, 3, v15"); e("v_lshl_add_u32 v7, v12, 7, v7"); e(f"v_add_u32 v7, {L_X}, v7")
        e("v_bfe_u32 v12, v15, 2, 2"); e("v_lshlrev_b32 v8, 7, v12"); e("v_and_b32 v12, 1, v15"); e("v_lshl_add_u32 v8, v12, 6, v8")
        e("v_lshrrev_b32 v12, 4, v15"); e("v_lshl_add_u32 v8, v12, 4, v8"); e(f"s_lshl_b32 {sT0}, {sW}, 9"); e(f"v_add_u32 v8, {sT0}, v8")
        if OPT["owx"]==2: e("v_and_b32 v12, 2, v15"); e("v_lshl_add_u32 v8, v12, 17, v8")
        if not OPT["owx"]: e(f"v_and_b32 v13, 0x1ff, v8"); e(f"v_add_u32 v13, {L_ROLE+512}, v13"); e("v_and_b32 v12, 2, v15"); e("v_cmp_eq_u32 vcc, 0, v12"); e("v_cndmask_b32 v8, v13, v8, vcc")
        e("v_lshlrev_b32 v9, 3, v15")
    def waddr():
        e("v_lshrrev_b32 v4, 4, v15"); e("v_lshlrev_b32 v4, 2, v4")
        e("v_and_b32 v5, 15, v15"); e("v_lshlrev_b32 v5, 2, v5")
        e(f"s_lshl_b32 {sT0}, {sH}, 8"); e(f"s_lshl_b32 {sT1}, {sW}, 6"); e(f"s_add_u32 {sT0}, {sT0}, {sT1}")
        e("v_lshl_add_u32 v1, v4, 13, v5"); e(f"v_add_u32 v1, {sT0}, v1")
        e("v_mul_u32_u24 v2, 1280, v4"); e("v_add_u32 v2, v2, v5")
        e(f"s_mul_i32 {sT0}, {sH}, {128*1280}"); e(f"s_add_u32 {sT0}, {sT0}, {sT1}"); e(f"v_add_u32 v2, {sT0}, v2")
        e("v_add_u32 v14, v2, v5"); e(f"v_add_u32 v14, {sT1}, v14")
        if "X" in OPT["ab"]:
            e("v_add_u32 v1, v1, v5"); e(f"s_and_b32 {sT0}, {sW}, 1"); e(f"s_mul_i32 {sT0}, {sT0}, {8192-64}"); e(f"v_add_u32 v1, {sT0}, v1")
            e(f"s_and_b32 {sT0}, {sW}, 1"); e(f"s_mul_i32 {sT0}, {sT0}, 1280"); e(f"v_add_u32 v14, {sT0}, v14"); e(f"v_add_u32 v2, {sT0}, v2")
        if OPT["stg"]:
            e("v_lshrrev_b32 v12, 4, v15"); e(f"s_lshl_b32 {sT0}, {sW}, 4"); e(f"v_add_u32 v1, {sT0}, v12"); e("v_lshlrev_b32 v1, 13, v1")
            e("v_and_b32 v13, 15, v15"); e("v_lshl_add_u32 v1, v13, 4, v1"); e(f"s_lshl_b32 {sT0}, {sH}, 8"); e(f"v_add_u32 v1, {sT0}, v1")
            e("v_lshlrev_b32 v13, 10, v12"); e("v_add_u32 v13, v13, v5"); e(f"v_add_u32 v13, {sT1}, v13")
        e(f"s_mul_i32 {sT0}, {sW}, {17*2048}"); e(f"s_add_u32 {sT0}, {sT0}, {L_W}"); e(f"v_add_u32 v3, {sT0}, v0")
        e(f"s_lshl_b32 {sT0}, {sH}, 2"); e(f"s_add_u32 {sT0}, {sT0}, {sW}"); e(f"s_lshl_b32 {sT0}, {sT0}, 14")
        e(f"s_add_u32 {sSW}, {sT0}, {SW_OFF}"); e(f"s_add_u32 {sSW2}, {sSW}, 4096"); e(f"s_add_u32 {sSW3}, {sSW}, 8192"); e(f"s_add_u32 {sSW4}, {sSW}, 12288")
        e("s_mov_b32 s10, %d"%(640*8192)); e("s_mov_b32 s11, 0x20000")
        if OPT["stg"]: e(f"s_lshl_b32 {sT1}, {sW}, 12")
    groups=[(m,k) for m in "qkv" for k in range(10)]+[("o",j,ko) for j in range(5) for ko in range(2)]
    LB=[16,32,48,240][:OPT["idepth"]+1]
    lbuf=lambda i: LB[i%len(LB)] if (len(LB)<4 or i<36) else LB[(0,1,2,0)[i-36]]
    base={"q":54,"k":56,"v":58,"o":60}
    cur=[None]
    STG=OPT["stg"]
    if STG:
        groups=groups[:30]+[("o2",c,ko) for c in range(2) for ko in range(4)]+[("o",4,ko) for ko in range(2)]
        base["o2"]=60
        tiles=lambda g: [("o",8*g[1]+4*u+g[2]) for u in range(2)] if g[0]=="o2" else [("o",4*g[1]+2*g[2]+u) for u in range(2)]
        free=[g for g in groups[30:] if not any(t in TL for t in tiles(g))][:OPT["ofree"]]
        groups=groups[:30]+[g for g in groups[30:] if g not in free]+free
        NF=len(free); NG=len(groups)-NF
        assert all(TL[k]>=9 for k in TL if k[0]=="o") and all(TL[k]<9 for k in TL if k[0]!="o")
    NS=OPT["ns"]; SD=OPT["sd"]
    slot=lambda i: L_W+(i%NS)*17*2048+9*2048 if i%NS<4 else 0
    def issue(i):
        g=groups[i]; lb=lbuf(i)
        if cur[0]!=g[0]:
            e(f"s_mov_b32 s8, s{base[g[0]]}"); e(f"s_mov_b32 s9, s{base[g[0]]+1}"); cur[0]=g[0]
        if STG and i<30:
            for j in range(4):
                e(f"s_add_u32 m0, {sT1}, {slot(i)+1024*j}"); e(f"s_mov_b32 {sT0}, {(64*g[1]+4*j)*8192}")
                e(f"buffer_load_dwordx4 v1, {S_T}, {sT0} offen {OPT['wfl']} lds",f"w{i}")
            return
        if g[0]=="o2":
            for j in range(4):
                for x in range(2):
                    row=32*g[2]+16*(j>>1)+2*(j&1)+x
                    e(f"s_mov_b32 {sT0}, {row*1280+512*g[1]}")
                    e(f"buffer_load_dwordx2 {vr(lb+4*j+2*x,2)}, v14, {S_T}, {sT0} offen",f"w{i}")
            return
        for j in range(8):
            for x in range(2):
                row=64*g[-1]+32*(j>>2)+16*((j>>1)&1)+2*(j&1)+x
                if g[0]!="o": off=row*8192; vo="v1"
                elif g[1]<4: off=row*1280+512*(g[1]>>1)+4*(g[1]&1); vo="v14"
                else: off=row*1280+1024; vo="v2"
                e(f"s_mov_b32 {sT0}, {off}")
                e(f"buffer_load_dword v{lb+2*j+x}, {vo}, {S_T}, {sT0} offen",f"w{i}")
    tmp=[4,8]
    def put(key,lb,st=2,dx=1):
        src=lambda R: f"v{lb+st*(R>>1)+dx}, v{lb+st*(R>>1)}, {sPHI if R&1 else sPLO}"
        if key in TR and TR[key][0]=="v":
            for R in range(8): e(f"v_perm_b32 v{TR[key][1]+R}, {src(R)}")
            return
        for half in range(2):
            t=tmp[half]
            for R in range(4): e(f"v_perm_b32 v{t+R}, {src(4*half+R)}")
            if key in TR:
                for R in range(4): e(f"v_accvgpr_write_b32 a{TR[key][1]+4*half+R}, v{t+R}")
            elif key in TL:
                e(f"ds_write_b128 v3, {vr(t,4)} offset:{TL[key]*2048+half*1024}")
            else:
                sg,imm=sw_ref(TG[key])
                e(f"buffer_store_dwordx4 {vr(t,4)}, v0, {S_WS}, {sg} offen offset:{imm+half*1024} {OPT['swfl']}","st")
    def process(i):
        g=groups[i]; lb=lbuf(i)
        a.wait(vm=f"w{i}")
        if STG and i<30:
            lb=16
            e("s_barrier")
            if i+SD<30: issue(i+SD)
            elif i==30-SD: issue(30)
            elif i==31-SD: issue(31)
            e(f"v_add_u32 v12, {slot(i)}, v13")
            for j in range(8):
                row=32*(j>>2)+16*((j>>1)&1)+2*(j&1)
                e(f"ds_read2st64_b32 {vr(lb+2*j,2)}, v12 offset0:{row} offset1:{row+1}")
            e("s_waitcnt lgkmcnt(0)"); a.lg=[]
            if i==29: e("s_barrier")
        elif OPT["lock"] and not STG: e("s_barrier")
        for u in range(2):
            if g[0]=="o2": put(("o",8*g[1]+4*u+g[2]),lb+u,4,2)
            else: put((g[0],2*g[1]+u) if g[0]!="o" else ("o",4*g[1]+2*g[2]+u),lb+8*u)
    waddr(); e("s_waitcnt lgkmcnt(0)")
    issue(0); issue(1); q0=list(a.vm)
    lanes()
    e(f"s_mul_i32 {sT0}, {sH}, 10240"); e(f"s_add_u32 {sT0}, {sT0}, {P_OFF}"); e(f"s_lshl_b32 {sT1}, {sW}, 10")
    e(f"s_add_u32 {sP0}, {sT0}, {sT1}"); e(f"s_add_u32 {sP1}, {sP0}, 4096"); e(f"s_lshl_b32 {sT1}, {sW}, 9"); e(f"s_add_u32 {sP2}, {sT0}, {sT1}"); e(f"s_add_u32 {sP2}, {sP2}, 8192")
    for m in range(4): e(f"s_mov_b32 {sPR[m]}, {P_OFF+m*81920}")
    e(f"s_lshl_b32 {sT0}, {sH}, 13"); e(f"s_add_u32 {sKX}, {sT0}, {XK_OFF}"); e(f"s_add_u32 {sKX2}, {sKX}, 4096")
    e(f"s_lshl_b32 {sT1}, {sW}, 11"); e(f"s_add_u32 {sVX}, {sT0}, {XV_OFF}"); e(f"s_add_u32 {sVXN}, {sVX}, {32*8192}"); e(f"s_add_u32 {sVX}, {sVX}, {sT1}")
    e(f"s_add_u32 {sKXN}, {sKX}, {32*8192}")
    e(f"s_mul_i32 {sPC}, {sH}, {OPT['piece']}"); e(f"s_add_u32 {sMP}, {sPC}, {MEMP_OFF-10240}")
    c=(128**-0.5)*math.log2(math.e)
    import struct
    e(f"s_mov_b32 {sC}, 0x%08x"%struct.unpack("<I",struct.pack("<f",c))[0])
    e(f"s_mov_b32 s96, {sC}"); e(f"s_mov_b32 s97, {sC}")
    e("s_mov_b32 s98, 0x3f803f80"); e("s_mov_b32 s99, 0x3f803f80"); e("s_mov_b32 s100, 0x3f003f00"); e("s_mov_b32 s101, 0x3f003f00")
    e(f"s_lshl_b32 {sF1W}, {sW}, 7"); e(f"s_add_u32 {sF1W}, {sF1W}, {sH}"); e(f"s_add_u32 {sF1W}, {sF1W}, {F1_OFF}")
    e(f"s_cmp_lt_u32 {sW}, 2"); e(f"s_cselect_b32 {sT0}, 3, 2"); e(f"s_lshr_b32 {sT0}, {sH}, {sT0}"); e(f"s_and_b32 {sT0}, {sT0}, 3")
    e(f"s_lshl_b32 {sT1}, {sW}, 2"); e(f"s_add_u32 {sT0}, {sT0}, {sT1}"); e(f"s_lshl_b32 {sT0}, {sT0}, 7"); e(f"s_add_u32 {sF1R}, {sT0}, {F1_OFF}")
    e(f"s_mov_b32 {sFE}, 0xfffffffe")
    e("s_mov_b32 s44, 0x33333333"); e("s_mov_b32 s45, 0x33333333")
    e(f"s_lshl_b32 {sT0}, {sW}, 12"); e(f"s_add_u32 {sMR}, {sT0}, {M_OFF}")
    if OPT["probe"]=="b":
        e(f"s_and_b32 {sT0}, {sH}, {OPT['nrep']-1}"); e(f"s_lshl_b32 {sT0}, {sT0}, 8"); e(f"s_lshl_b32 {sT1}, {sW}, 5"); e(f"s_add_u32 {sT0}, {sT0}, {sT1}")
        e(f"s_add_u32 {sMF}, {sT0}, {FL_OFF}"); e(f"s_mov_b32 {sPAT}, 0")
    else:
        e(f"s_lshl_b32 {sT0}, {sW}, 8"); e(f"s_add_u32 {sMF}, {sT0}, {M_OFF+10240}")
    e(f"s_mov_b32 {sMW}, {M_OFF+16384}"); e(f"s_mov_b32 {sMZ}, {M_OFF+49152}")
    e(f"s_mov_b32 {sSTEP}, 0"); e(f"s_mov_b32 {sTAG}, 1"); e(f"s_mov_b32 {sTAGM}, -1"); e(f"s_mov_b32 {sCNT}, 0")
    e("v_mov_b64 v[56:57], 0"); e("v_mov_b64 v[58:59], 0"); e("v_mov_b64 v[60:61], -1")
    e(f"buffer_store_dwordx4 v[56:59], {vL16}, {S_WS}, {sP0} offen sc1"); e(f"buffer_store_dwordx4 v[56:59], {vL16}, {S_WS}, {sP1} offen sc1")
    e(f"buffer_store_dwordx2 v[56:57], {vL8}, {S_WS}, {sP2} offen sc1")
    if OPT["f1"] or OPT["gate"]:
        e("s_mov_b64 exec, 1")
        for c in range(3): e(f"buffer_store_byte v56, v56, {S_WS}, {sF1W} offen offset:{512*c} sc1")
        e("s_mov_b64 exec, -1")
    e(f"s_cmp_ge_u32 {sUNIT}, 80"); e("s_cbranch_scc1 C_noM")
    e("s_mov_b32 s8, s62"); e("s_mov_b32 s9, s63"); e("s_mov_b32 s10, 10240")
    e(f"s_and_b32 {sT0}, {sMU}, 3"); e(f"s_mul_i32 {sT0}, {sT0}, 2560"); e(f"s_lshr_b32 {sT1}, {sMU}, 2"); e(f"s_lshl_b32 {sT1}, {sT1}, 6"); e(f"s_add_u32 {sT0}, {sT0}, {sT1}")
    e("v_bfe_u32 v12, v15, 4, 1"); e("v_mul_u32_u24 v12, 1280, v12"); e("v_and_b32 v13, 7, v15"); e("v_lshl_add_u32 v12, v13, 3, v12")
    e(f"buffer_load_dwordx2 v[62:63], v12, {S_T}, {sT0} offen")
    for k in range(1,4):
        e(f"s_mov_b32 {sT1}, {M_OFF+16384*k}"); e(f"buffer_store_dwordx2 v[60:61], {vRS}, {S_WS}, {sT1} offen sc1")
    e("s_waitcnt vmcnt(0)")
    e(f"v_min_u32 v62, {sFE}, v62")
    e(f"s_mov_b32 {sT1}, {M_OFF}"); e(f"buffer_store_dwordx2 v[62:63], {vRS}, {S_WS}, {sT1} offen sc1")
    a.label("C_noM")
    e("s_mov_b32 s8, s4"); e("s_mov_b32 s9, s5"); e("s_mov_b32 s10, 0")
    if OPT["probe"]=="b":
        e(f"s_cmp_eq_u32 {sW}, 3"); e("s_cbranch_scc1 C_noF")
        e(f"s_add_u32 s8, s4, {FL_OFF}"); e("s_addc_u32 s9, s5, 0"); e(f"s_mov_b32 s10, {OPT['nrep']*256}")
        e("v_lshlrev_b32 v12, 4, v0"); e("v_mov_b32 v13, 0")
        e(f"buffer_store_byte v13, v12, {S_T}, {sUNIT} offen sc1")
        a.label("C_noF")

    e(f"s_cmp_eq_u32 {sW}, 3"); e("s_cbranch_scc0 C_noZ")
    e(f"s_lshl_b32 {sT0}, {sH}, 10"); e(f"buffer_store_dwordx4 v[56:59], v0, {S_WS}, {sT0} offen sc1")
    e(f"s_add_u32 {sT0}, {sT0}, {OCNT4}"); e(f"buffer_store_dwordx4 v[56:59], v0, {S_WS}, {sT0} offen sc1")
    e("s_mov_b64 exec, 1"); e(f"s_lshl_b32 {sT0}, 1, {sXCC}"); e("v_mov_b32 v12, 8"); e(f"v_mov_b32 v13, {sT0}")
    e(f"global_atomic_or v12, v13, {sDBG}"); e("s_mov_b64 exec, -1")
    a.label("C_noZ"); a.vm=[]
    e("v_and_b32 v12, 15, v15"); e("v_and_b32 v52, 0xff, v0")
    for tab,neg in ((0,0),):
        for r,ent in enumerate([((0,2),(1,3)),((4,6),(5,7)),((2,None),(3,None)),((6,None),(7,None))]):
            e(f"v_mov_b32 v{48+r}, 0")
            for half,(pos,ng) in enumerate(ent):
                for row,val in ((pos,0x3f80),(ng if neg else None,0xbf80)):
                    if row is None: continue
                    e(f"v_mov_b32 v13, 0x{val<<(16*half):x}"); e(f"v_cmp_eq_u32 vcc, {row}, v12"); e(f"v_cndmask_b32 v{48+r}, v{48+r}, v13, vcc")
        e(f"ds_write_b128 v52, v[48:51] offset:{L_SEL+tab}")
        e("s_waitcnt lgkmcnt(0)")
    waddr(); a.vm=q0
    DD=OPT["idepth"]
    e("s_mov_b32 s8, s54"); e("s_mov_b32 s9, s55")
    if STG:
        for i in range(2,SD): issue(i)
        lbuf=lambda i: (32,48,16)[(i-30)%3] if i<NG else (32,48)[(i-NG)%2]
    else:
        for i in range(2,DD): issue(i)
    for i in range(NG if STG else len(groups)):
        if STG:
            if 32<=i+2<NG: issue(i+2)
            if OPT["help"] and i==OPT["help"][0]:
                q=list(a.vm); sl=OPT["help"][1]
                e(f"s_and_b32 {sT0}, {sH}, 3"); e(f"s_cmp_eq_u32 {sT0}, {sl}"); e("s_cbranch_scc1 C_nohelp")
                e(f"s_add_u32 {sT0}, {sT0}, {3-sl}"); e(f"s_and_b32 {sT0}, {sT0}, 3"); e(f"s_mul_i32 {sT0}, {sT0}, 54656")
                e(f"s_andn2_b32 s66, {sH}, 3"); e(f"s_or_b32 s66, s66, {sl}"); e("s_mul_i32 s66, s66, 163840"); e(f"s_add_u32 {sT0}, {sT0}, s66")
                e(f"s_lshl_b32 s66, {sW}, 14"); e(f"s_add_u32 {sT0}, {sT0}, s66"); e(f"s_add_u32 s66, {sT0}, 8192")
                e("s_mov_b32 s8, s60"); e("s_mov_b32 s9, s61"); cur[0]="o"
                e("v_lshlrev_b32 v4, 3, v0"); e(f"s_mov_b32 m0, {L_ROLE+256}")
                e(f"buffer_load_dword v4, {S_T}, {sT0} offen lds"); e(f"buffer_load_dword v4, {S_T}, s66 offen lds")
                a.label("C_nohelp"); a.vm=q; cur[0]=None
            for j in range(NF):
                if i==4+5*j: issue(NG+j)
                if i==10+5*j: process(NG+j)
        elif i+DD<len(groups) and not (DD==3 and i==36): issue(i+DD)
        process(i)
        if OPT["early"] and i==(NG if STG else len(groups))-1-OPT["early"]: poll()
        if DD==3 and i==36 and not STG: issue(39)
        if i==(2 if not STG else max(SD,3)-1):
            if not OPT["lock"]: e("s_barrier")
            e(f"s_cmp_eq_u32 {sW}, 3"); e("s_cbranch_scc0 C_noA")
            q=list(a.vm)
            e("s_mov_b64 exec, 1"); e("v_mov_b32 v4, 4"); e("v_mov_b32 v5, 1"); e(f"global_atomic_add v4, v5, {sDBG}"); e("s_mov_b64 exec, -1")
            a.label("C_noA"); a.vm=q
    a.wait(vm="all",lg="all")
    if not OPT["early"]: poll()
    lanes()
    e("s_mov_b32 s8, s4"); e("s_mov_b32 s9, s5"); e("s_mov_b32 s10, 0")
    e(f"s_cmp_eq_u32 {sW}, 3"); e("s_cbranch_scc1 C_noF2")
    e(f"s_add_u32 s8, s4, {FL_OFF}"); e("s_addc_u32 s9, s5, 0"); e(f"s_mov_b32 s10, {OPT['nrep']*256}")
    a.label("C_noF2")

STAMPS=[]
OPT={"kvstride":32*8192,"d0":25,"d1":70,"d1b":90,"m1pos":0,"d2":0,"d3":0,"pf":1,"nosync":0,"stamps":[],"lock":1,"rl":20,"pub":1,"pipe":2,"probe":"b","owx":2,"fine":"","strict":1,"cx":3,"help":None,"scatter":0,"mrg":0,"ofree":3,"early":2,"win":(4,60),"sweep":0,"swpfl":"","showinit":0,"vxe":0,"gq2":0,"vo":1,"one":1,"kxw":(2,3),"xo":1,"g9pre":1,"b1c":35,"g0p":0,"blind":0,"nanchk":1,"ns":4,"sd":3,"wfl":"","stg":1,"b4p":3,"nv":12,"rtail":0,"half":1,"kxb0":0,"pubp":6,"qs":0,"os":5,"b0w0":1,"pfw":0,"w2late":1,"b0":3,"rot":1,"al":(6,0),"gate":0,"swfl":"","wb":0,"warm":1,"nat":("p0","p2","p2"),"dbgout":0,"lastlds":2,"f1":0,"q1":16,"spec":0,"kvfl":"sc1","piece":320,"m1in":0,"pairw":0,"b4":0,"ststag":0,"g9in":0,"g1pv":1,"kxout":(11,1),"b1b":11,"g19":(1,3),"idepth":2,"prep":(13,14,15,17),"m1pre":0,"gq":(0,1),"stag":1,"kxp":(7,1),"pfp":11,"go1p":"exp","g18":(10,11),"unr":4,"goearly":1,"mpstride":10240,"pubfl":"sc1","pubpos":"qk","pfsplit":0,"kvmask":7,"kvchk":1,"pfwait":0,"pffl":"sc1","nrep":2,"np":5,"l1":(),"gfl":"","prepos":"early","percu":0,"at":40,"d4":0,"ab":"","pfpos":"qk"}
def delay(a,n):
    while n>0:
        k=min(n,16); a.e(f"s_nop {k-1}"); n-=k
def stamp(a,tim,name):
    if OPT["fine"] and not name.startswith(OPT["fine"]) and name!="b1": return
    if not OPT["fine"] and name[0]=="_": return
    if name not in STAMPS: STAMPS.append(name)
    if tim==3:
        i=STAMPS.index(name); assert i<19; a.e(f"s_memtime s[{54+2*i}:{55+2*i}]")
        if OPT["fine"]: a.lg+= [None,None]
        return
    if tim!=1 or name not in OPT["stamps"]: return
    i=OPT["stamps"].index(name)
    a.e("s_memtime s[70:71]"); a.e("s_waitcnt lgkmcnt(0)"); a.lg=[]
    a.e("s_sub_u32 s72, s70, s73"); a.e("s_mov_b32 s73, s70"); a.e(f"s_add_u32 s{76+i}, s{76+i}, s72")

def dma(a,n,soff,tag,first=0):
    fl=OPT["kvfl"] if tag=="kx" else "sc1"
    for i in range(first,first+n):
        a.e(f"buffer_load_dwordx4 {vL16}, {S_WS}, {soff} offen offset:{1024*i} {fl} lds",tag)

def chain_wave(a, w, st, pfx, tim=0):
    use_map(w)
    e=a.e; L=lambda s: f"{pfx}{w}_{s}"
    nd=[4,4,2,0][w]
    def chk(l):
        if OPT["nosync"] or (OPT["blind"] and l=="mr"): e("s_nop 0")
        else: e(f"s_cbranch_vccnz {L(l)}")
    def spin(c=None):
        if tim in(1,2) and c: e(f"s_add_u32 {c}, {c}, 1")
        e(f"s_add_u32 {sCNT}, {sCNT}, 1"); e(f"s_cmp_gt_u32 {sCNT}, 0x40000"); e("s_cbranch_scc1 L_abort")
    def aread(k,buf): e(f"ds_read_b128 {vr(buf,4)}, {vA} offset:{L_MEM+512*k}",f"A{k}")
    tg=lambda key: "t%s%d"%key
    def prestage():
        for p in range(2):
            if p in Q_SLOT: lload_tile(a,QSEQ[p],SLOT[QSEQ[p]][0],None)
    B0L=[(QSEQ[p],h) for p in GPOS for h in range(2)][:max(OPT["b0"]-1,0)]
    def b0loads():
        for k,h in B0L: gload_half(a,k,SLOT[k][0],tg(k),h)
    def zero_acc():
        for r in (QA,KA,VA): zero4(a,r)
    NREP=OPT["nrep"]
    def paddr(r):
        if OPT["probe"]=="b": e(f"v_bfe_u32 v{r}, {vL16}, 2, {4 if w==2 else 5}")
        elif OPT["probe"]=="c": e(f"v_and_b32 v{r}, {0x7f if w==2 else 0xff}, {vL8}")
        else:
            e(f"v_lshlrev_b32 v{r}, 2, {vL16}")
            if w==2: e(f"v_and_b32 v{r}, 0x7ff, v{r}")
    def probe(d,r,tag=None):
        e(f"buffer_load_dword v{d}, v{r}, {S_WS}, {sMR if OPT['probe']=='d' else sMF} offen sc1",tag)
    def pcmp(d):
        if OPT["probe"]=="b": e(f"v_cmp_ne_u32 vcc, {sPAT}, v{d}")
        else: e(f"v_cmp_eq_u32 vcc, -1, v{d}")
    def mfetch():
        paddr(T1); probe(T1,T1,"pr")
        dma(a,nd,sMR,"dma")
    if w==3: e(f"s_cmp_eq_u32 {sH}, 0"); e(f"s_cselect_b32 {sALL}, 0, 1")
    if tim in(1,2):
        e("s_memtime s[70:71]"); e("s_waitcnt lgkmcnt(0)"); e("s_mov_b32 s73, s70"); e("s_mov_b32 s74, s70")
        for i in range(11): e(f"s_mov_b32 s{76+i}, 0")
    if OPT["warm"]:
        e(f"v_lshlrev_b32 v{T1}, 3, {vL16}")
        if w<3:
            for k in range(4): e(f"s_mov_b32 {sT0}, {M_OFF+16384*k}"); e(f"buffer_load_dwordx2 v[12:13], {vRS}, {S_WS}, {sT0} offen sc1")
            e(f"buffer_load_dword v14, v{T1}, {S_WS}, {sP0} offen sc1") if w==0 else None
        else:
            e(f"s_sub_u32 {sT0}, {sVXN}, {32*8192}"); e(f"buffer_load_dword v14, v{T1}, {S_WS}, {sT0} offen sc1")
    if tim==5 and w==0:
        e("s_memrealtime s[70:71]"); e("s_waitcnt lgkmcnt(0)")
        e(f"s_lshl_b32 s72, {sH}, 8"); e(f"s_add_u32 s72, s72, {DBG_OFF+0x40000}")
        e(f"v_mov_b32 v{T0}, s70"); e(f"v_lshlrev_b32 v{T1}, 24, {vL16}")
        e(f"buffer_store_dword v{T0}, v{T1}, {S_WS}, s72 offen")
    if OPT["gate"] and w==0:
        e(f"v_mov_b32 v{T0}, 0x7f"); e(f"v_lshlrev_b32 v{T1}, 24, {vL16}")
        e(f"buffer_store_byte v{T0}, v{T1}, {S_WS}, {sF1W} offen {st}")
        e(f"v_bfe_u32 v{T1}, {vL16}, 2, 5"); e(f"s_mov_b32 {sT0}, {F1_OFF}"); e(f"s_mov_b32 {sT1}, 0x7f7f7f7f")
        a.label(L("gate"))
        e(f"buffer_load_dword v{T0}, v{T1}, {S_WS}, {sT0} offen sc1"); spin(); e("s_waitcnt vmcnt(0)")
        e(f"v_cmp_ne_u32 vcc, {sT1}, v{T0}"); e(f"s_cbranch_vccz {L('gated')}"); e("s_sleep 2"); e(f"s_branch {L('gate')}")
        a.label(L("gated"))
    a.label(L("rec"))
    e("s_waitcnt vmcnt(0) lgkmcnt(0)"); a.vm=[]; a.lg=[]
    spin("s84")
    e("s_barrier")
    prestage()
    if OPT["kxout"] and w in(0,3):
        e(f"s_mov_b32 m0, {L_KX+(4096 if w else 0)}"); dma(a,4,sKX2 if w else sKX,"kx")
    if w<3: e(f"s_mov_b32 m0, {4096*w}")
    if w==0 or (w<3 and OPT["m1pre"]): dma(a,nd,sMR,"dma")
    if OPT["b0"] and (w==1 or (w==2 and not OPT["w2late"])): mfetch()
    if w or OPT["b0w0"]: b0loads()
    zero_acc()
    e("s_waitcnt vmcnt(0) lgkmcnt(0)"); a.vm=[]; a.lg=[]
    top_vm={0:[],1:["rs","fl","mz"],2:["rs","fl","mz"],3:[]}[w]
    if OPT["m1pre"] and w in(1,2): top_vm=["dma"]*nd
    if OPT["b0"] and (w==1 or (w==2 and not OPT["w2late"])): top_vm=top_vm+["pr"]+["dma"]*nd
    if w or OPT["b0w0"]: top_vm=top_vm+[tg(k) for k,h in B0L]
    if OPT["kxb0"] and w==3: top_vm=top_vm+["kx"]*8
    if OPT["pub"] and OPT["pubpos"]=="hop" and w==3: top_vm=["pub"]
    a.vm=list(top_vm)
    if OPT["al"]:
        e(f"s_branch HZ_{L('top')}"); a.ins.append(Ins(f".p2align {OPT['al'][0]}"))
        for i in range(OPT["al"][1]): a.ins.append(Ins("s_nop 0"))
    if OPT["rot"] and w==0:
        a.label(L("pretop")); e(f"s_waitcnt vmcnt({len(top_vm)+2*OPT['half']})")
        if OPT["half"]: a.vm=["dmb","dmb"]+a.vm
    a.label("HZ_"+L("top"))
    e("s_barrier")
    for k in range(4): aread(k,AB[k])
    if w==2 and OPT["b0"] and OPT["w2late"]: mfetch()
    if w in(1,2) and not OPT["m1pre"] and not OPT["b0"]:
        if OPT["m1in"]: paddr(T1); probe(T1,T1,"pr")
        else: mfetch()
    stamp(a,tim,"b1")
    def slow_ops(where):
        if w==OPT["pfw"] and OPT['pf'] and OPT["pfpos"]==where:
            tr=T1 if w==3 else 4*0+T0
            e(f"v_lshlrev_b32 v{tr}, 3, {vL16}"); e(f"s_mov_b32 m0, {L_ROLE}")
            e(f"buffer_load_dword v{tr}, {S_WS}, {sKXN} offen {OPT['pffl']} lds","pf")
            e(f"buffer_load_dword v{tr}, {S_WS}, {sVXN} offen {OPT['pffl']} lds","pf")
            if w in(1,2): e(f"s_mov_b32 m0, {4096*w}")
        if w!=3: return
        if OPT["pub"] and OPT["pubpos"]==where:
            e(f"buffer_store_dwordx2 v[4:5], {vL8}, {S_T}, {sMP} offen {OPT['pubfl']}","pub")
            e("s_mov_b32 s10, 0")
    ACC={"q":QA,"k":KA,"v":VA}
    def nxt(seq,tab,p):
        later=[x for x in sorted(tab) if x>p and tab[x][0]==tab[p][0]]
        return later[0] if later else None
    def qkv(key,buf,p=None):
        if key in TG: a.wait(vm=tg(key))
        elif key in TL and p>1: a.wait(lg=tg(key))
        sm(a,ACC[key[0]],buf,key,SLOT.get(key,(0,))[0])
        if p in Q_SLOT:
            n=nxt(QSEQ,Q_SLOT,p)
            if n is not None and Q_SLOT[n][1]=="L": lload_tile(a,QSEQ[n],Q_SLOT[n][0],tg(QSEQ[n]))
    kxw = w in(0,3)
    def kxread(kt,ke,dst): e(f"ds_read_b128 {vr(dst,4)}, {vL16} offset:{L_KX+1024*(4*kt+ke)}",f"K{kt}{ke}")
    cvt=lambda d,x,y: e(f"v_cvt_pk_bf16_f32 v{d}, v{x}, v{y}")
    gs=[(QSEQ[p],h) for p in GPOS for h in range(2)]
    seen=set(); read=set(range(4)); NQ=len(QSEQ); NV=OPT["nv"]
    for p,key in enumerate(QSEQ):
        m,k=key; b=AB[k%4]
        if p==OPT["b1b"]:
            stamp(a,tim,"k2")
            if OPT["mrg"] and w==0: a.wait(vm="dmb")
            if w==2 and OPT["mrg"]: pass
            elif w==2 and OPT["w2late"] and OPT["b1c"]: chk("mr"); a.label(L("mok"))
            elif w in(1,2) and not OPT["m1pre"]: chk("mr"); a.wait(vm="dma"); a.label(L("mok"))
            elif w in(1,2): a.wait(vm="dma")
            e("s_barrier"); stamp(a,tim,"b1b")
            for kk in range(4 if OPT["mrg"] else 8,k+4):
                if kk not in read: aread(kk,AB[kk%4]); read.add(kk)
        if k not in seen:
            if OPT["pairw"] and k>=10 and k%2==0 and k+1 in read: a.wait(lg=f"A{k+1}"); seen.add(k+1)
            else: a.wait(lg=f"A{k}")
            seen.add(k)
        qkv(key,b,p)
        if p==2 and OPT["half"] and not OPT["mrg"]:
            if w==0: a.wait(vm="dmb")
            e("s_barrier")
        last=all(x[1]!=k for x in QSEQ[p+1:])
        if last and k+4<20 and ((k+4<8 and not OPT["mrg"]) or p>=OPT["b1b"]) and k+4 not in read: aread(k+4,b); read.add(k+4)
        if not OPT['nanchk'] and p==1: a.wait(lg="A3"); e(f"v_max3_u32 v{T0}, v{AB[0]}, v{AB[1]}, v{AB[2]}")
        if p==2: e(f"v_max_u32 v{T0}, v{T0}, v{AB[3]}") if False else None
        if not OPT['nanchk'] and p==3: e(f"v_max_u32 v{T0}, v{T0}, v{AB[3]}")
        if not OPT['nanchk'] and p==4: e(f"v_cmp_eq_u32 vcc, -1, v{T0}")
        if not OPT['nanchk'] and p==6: chk("rec")
        if not OPT['nanchk'] and m=="q" and k==4: e(f"v_mov_b32 v{T0}, v{b}")
        if not OPT['nanchk'] and m=="q" and 5<=k<=17:
            if OPT["pairw"] and k>=10:
                if k%2==0: e(f"v_max3_u32 v{T0}, v{T0}, v{b}, v{AB[(k+1)%4]}")
            else: e(f"v_max_u32 v{T0}, v{T0}, v{b}")
        m1=OPT["m1in"] and w in(1,2) and not OPT["m1pre"]
        if m1 and p<nd: dma(a,1,sMR,"dma",p)
        for j,(gk,h) in enumerate(gs):
            if (w or OPT["b0w0"]) and j<OPT["b0"]-1: continue
            if OPT["gq2"]:
                if p==(j-2)//2: gload_half(a,gk,SLOT[gk][0],tg(gk),h)
                continue
            if p==(OPT["gq"][0]+OPT["gq"][1]*j if not m1 else max(OPT["gq"][0]+OPT["gq"][1]*j,nd+j)): gload_half(a,gk,SLOT[gk][0],tg(gk),h)
        if not OPT["kxout"]:
            if kxw and p==OPT["kxp"][0]-1: e(f"s_mov_b32 m0, {L_KX+(4096 if w else 0)}")
            for j in range(4):
                if kxw and p==OPT["kxp"][0]+OPT["kxp"][1]*j: dma(a,1,sKX2 if w else sKX,"kx",j)
        if p==OPT["pfp"]: slow_ops("qk")
        if p==OPT["pubp"]: slow_ops("qk2")
        if p==(OPT["b1c"] if OPT["mrg"] and w==2 else OPT["b1b"])-2 and w in(1,2) and not OPT["m1pre"]: a.wait(vm="pr"); pcmp(T1)
        if p==OPT["b1c"] and OPT["w2late"] and OPT["b1c"]:
            if w==2 and OPT["mrg"]: chk("mr")
            if w==2: a.wait(vm="dma")
            if w==2 and OPT["mrg"]: a.label(L("mok"))
            if w==3: a.wait(vm="kx")
            e("s_barrier")
        if p==44: stamp(a,tim,"k7")
        if p%3==2: stamp(a,tim,f"_q{p}")
        if p==46 and not OPT["kxout"]: a.wait(vm="kx"); e("s_barrier")
        if p==NQ-5: kxread(0,0,SL3); kxread(1,0,SL3+4)
        if p==NQ-4 and not OPT["nanchk"]: a.wait(lg="A19"); seen.add(19); e(f"v_max3_u32 v{T0}, v{T0}, v{AB[2]}, v{AB[3]}")
        if p==NQ-3 and not OPT["nanchk"]: e(f"v_cmp_eq_u32 vcc, -1, v{T0}")
        if p==NQ-3: kxread(0,1,SL2); kxread(1,1,SL2+4)
        if p==NQ-1 and not OPT["nanchk"]: chk("rec")
        if p==NQ-1 and OPT["nanchk"]: e(f"v_cmp_u_f32 vcc, v{QA}, v{QA+2}")
    stamp(a,tim,"qk")
    slow_ops("qkend")
    if w==3 and OPT["pub"] and OPT["pubpos"]=="lds":
        e(f"v_add_u32 v{T1}, {sPC}, {vL8}"); e(f"ds_read_b64 v[4:5], v{T1} offset:{L_MEM}","pl")
    RR=list(range(NV,16))
    def vre(i,buf):
        if i<len(RR): aread(RR[i],buf)
    def vdo(i,buf):
        if i<len(RR): a.wait(lg=f"A{RR[i]}"); qkv(("v",RR[i]),buf)
    cvt(QA,QA,QA+2); cvt(QA+2,QA+1,QA+3)
    qkv(("v",16),AB[0]); vre(0,AB[0])
    qkv(("v",17),AB[1]); vre(1,AB[1])
    if OPT["nanchk"]: chk("scan"); a.label(L("scanned"))
    cvt(QA+1,KA,KA+2); cvt(QA+3,KA+1,KA+3)
    e(f"ds_write_b64 {vXW}, {vr(QA,2)}","xw"); e(f"ds_write_b64 {vXW}, {vr(QA+2,2)} offset:512","xw")
    qkv(("v",18),AB[2]); vre(2,AB[2])
    qkv(("v",19),AB[3]); vre(3,AB[3])
    vdo(0,AB[0]); vdo(1,AB[1])
    if w==3 and OPT["pub"] and OPT["lastlds"]:
        e(f"s_cmp_ge_u32 {sSTEP}, {NSEG-1-OPT['lastlds']}"); e(f"s_cbranch_scc1 {L('pub62')}"); a.label(L("pub62b"))
    if False:
        e(f"s_add_u32 {sMP}, {sMP}, 10240"); e(f"s_add_u32 s10, {sMP}, {OPT['piece']}")
        e(f"buffer_store_dwordx2 v[4:5], {vL8}, {S_T}, {sMP} offen {OPT['pubfl']}","pub")
    stamp(a,tim,"_s0"); a.wait(lg="xw"); stamp(a,tim,"_s1"); e("s_barrier"); stamp(a,tim,"b2"); stamp(a,tim,"_s2")
    G1=min(n for n,v in O_SLOT.items() if v==(SL1,"G"))
    X=[28,32,40,44]
    S0,S1,SM=AB[0],AB[2],AB[1]
    def mf(d,A,B,first,op="v_mfma_f32_16x16x32_bf16",n=4):
        e(f"{op} {vr(d,4)}, {vr(A,n)}, {vr(B,n)}, {'0' if first else vr(d,4)}")
    VM=VA; VX=SL3; P=SL2; PM=SL2+4
    def xr(ke):
        for x in range(2): e(f"ds_read_b64_tr_b16 {vr(X[ke]+2*x,2)}, {vXR} offset:{1024*ke+512*x}",f"X{ke}")
    xr(0); vdo(2,AB[2]); xr(1); vdo(3,AB[3]); vre(4,AB[3])
    if OPT["vxe"]:
        assert len(RR)<=4
        e(f"buffer_load_dwordx4 {vr(AB[3],4)}, {vL16}, {S_WS}, {sVX} offen offset:1024 {OPT['kvfl']}","vx1")
    a.wait(lg="X0"); mf(S0,SL3,X[0],1); xr(2); mf(S1,SL3+4,X[0],1)
    kxread(0,2,SL3); kxread(1,2,SL3+4)
    a.wait(lg="X1"); mf(S0,SL2,X[1],0); xr(3); mf(S1,SL2+4,X[1],0)
    kxread(0,3,SL2); kxread(1,3,SL2+4)
    vdo(4,AB[3]); vre(5,AB[3])
    ONE=AB[3] if OPT["one"] else S0
    mf(SM,X[0],X[0],1)
    if OPT["one"] and len(RR)<6: e(f"v_mov_b64 {vr(ONE,2)}, {sONE}"); e(f"v_mov_b64 {vr(ONE+2,2)}, {sONE}")
    mf(SM,X[1],X[1],0)
    vdo(5,AB[3])
    if OPT["one"] and len(RR)==6: e(f"v_mov_b64 {vr(ONE,2)}, {sONE}"); e(f"v_mov_b64 {vr(ONE+2,2)}, {sONE}")
    stamp(a,tim,"_s6"); a.wait(lg="K12"); stamp(a,tim,"_s7"); mf(S0,SL3,X[2],0); mf(S1,SL3+4,X[2],0)
    e(f"buffer_load_dwordx4 {vr(VX,4)}, {vL16}, {S_WS}, {sVX} offen {OPT['kvfl']}","vx")
    cvt(VM,VM,VM+2)
    stamp(a,tim,"_s8"); a.wait(lg="K13"); stamp(a,tim,"_s9"); mf(S0,SL2,X[3],0); cvt(VM+1,VM+1,VM+3); mf(S1,SL2+4,X[3],0)
    if not OPT["vxe"]: e(f"buffer_load_dwordx4 {vr(VX+4,4)}, {vL16}, {S_WS}, {sVX} offen offset:1024 {OPT['kvfl']}","vx")
    mf(SM,X[2],X[2],0)
    if OPT["g0p"]==1: gload_half(a,("o",0),28,"go0",0)
    e(f"v_mov_b32 v{PM+1}, 0"); e(f"v_mov_b32 v{PM+2}, 0")
    mf(SM,X[3],X[3],0)
    if OPT["g0p"]==1: gload_half(a,("o",0),28,"go0",1)
    e(f"v_max3_f32 v{T1}, v{S0}, v{S0+1}, v{S0+2}")
    e(f"v_max3_f32 v{T0}, v{S0+3}, v{S1}, v{S1+1}")
    e(f"v_max3_f32 v{T1}, v{T1}, v{S1+2}, v{S1+3}")
    stamp(a,tim,"scores"); stamp(a,tim,"_sa")
    e(f"v_max_f32 v{T1}, v{T1}, v{T0}")
    if OPT["g0p"]==0: gload_half(a,("o",0),28,"go0",0)
    e(f"v_max3_f32 v{T0}, v{T1}, v{SM+2}, v{SM+3}"); e(f"v_max3_f32 v{T1}, v{T1}, v{SM+2}, v{SM+3}")
    e(f"v_permlane32_swap_b32 v{T0}, v{T1}")
    e(f"v_max_f32 v{SM}, v{T0}, v{T1}"); e(f"v_max_f32 v{T0}, v{T0}, v{T1}")
    if OPT["g0p"]==0: gload_half(a,("o",0),28,"go0",1)
    e(f"v_permlane16_swap_b32 v{T0}, v{SM}")
    e(f"v_max_f32 v{T0}, v{T0}, v{SM}")
    e(f"v_mul_f32 v{T0}, {sC}, v{T0}")
    stamp(a,tim,"max"); stamp(a,tim,"_sb")
    ev=[S0,S0+1,S0+2,S0+3,S1,S1+1,S1+2,S1+3,SM+2,SM+3]
    for r in ev[::2]:
        e(f"v_pk_fma_f32 {vr(r,2)}, {vr(r,2)}, {sCC}, {vr(T0,2)} op_sel_hi:[1,1,0] neg_lo:[0,0,1] neg_hi:[0,0,1]")
    for i,r in enumerate(ev[:8]):
        e(f"v_exp_f32 v{r}, v{r}")
        if i in(1,6) and not OPT["g1pv"]: gload_half(a,("o",G1),SL1,f"go{G1}",i//6)
        if i in(2,4,6): cvt(P+i//2-1,ev[i-2],ev[i-1])
        if i==4 and not OPT["one"]: e(f"v_mov_b64 {vr(S0,2)}, {sONE}")
        if i==6 and not OPT["one"]: e(f"v_mov_b64 {vr(S0+2,2)}, {sONE}")
    e(f"v_exp_f32 v{ev[8]}, v{ev[8]}"); cvt(P+3,ev[6],ev[7])
    e(f"v_exp_f32 v{ev[9]}, v{ev[9]}")
    O=[AB[3],S0] if OPT['one'] else [S0,AB[3]]
    VX1=VX+4
    if OPT['vxe']: O=[S0,SL3+4]; VX1=AB[3]
    stamp(a,tim,"exp"); stamp(a,tim,"_p0")
    mf(S1,ONE,P,1)
    cvt(PM,ev[8],ev[9]); cvt(PM+3,ev[8],ev[9])
    stamp(a,tim,"_p1"); a.wait(vm="vx1" if OPT["vxe"] else "vx"); stamp(a,tim,"_p2")
    mf(O[1],VX1,P,1)
    if OPT["g1pv"]: gload_half(a,("o",G1),SL1,f"go{G1}",0)
    mf(S1,ONE,PM,0,"v_mfma_f32_16x16x16_bf16",2)
    if OPT["g1pv"]: gload_half(a,("o",G1),SL1,f"go{G1}",1)
    if OPT["vxe"]: a.wait(vm="vx")
    mf(O[0],VX,P,1)
    if not OPT["vxe"]: lload_tile(a,("o",2),SL3,"lo2")
    mf(O[1],VM,PM+2,0,"v_mfma_f32_16x16x16_bf16",2)
    if OPT["g0p"]==2: gload_tile(a,("o",0),28,"go0")
    e(f"v_rcp_f32 v{T0}, v{S1}")
    mf(O[0],VM,PM,0,"v_mfma_f32_16x16x16_bf16",2)
    ks=OPT["kvstride"]
    e(f"s_add_u32 {sSTEP}, {sSTEP}, 1"); e(f"s_add_u32 {sVX}, {sVX}, {ks}")
    if w==0: e("s_mov_b32 m0, 0")
    e(f"s_add_u32 {sKX2}, {sKX2}, {ks}"); e(f"s_add_u32 {sKX}, {sKX}, {ks}")
    if w==OPT["pfw"]: e(f"s_add_u32 {sKXN}, {sKXN}, {ks}"); e(f"s_add_u32 {sVXN}, {sVXN}, {ks}")
    PK=P
    stamp(a,tim,"_p7")
    for i in range(0,4,2): e(f"v_pk_mul_f32 {vr(O[1]+i,2)}, {vr(O[1]+i,2)}, {vr(T0,2)} op_sel_hi:[1,0]")
    for i in range(0,4,2):
        e(f"v_pk_mul_f32 {vr(O[0]+i,2)}, {vr(O[0]+i,2)}, {vr(T0,2)} op_sel_hi:[1,0]")
        for k in range(2): cvt(PK+i+k,O[0]+i+k,O[1]+i+k)
    if OPT["owx"]==1: e(f"s_mov_b64 exec, {sEX}")
    e(f"ds_write_b128 {vOW}, {vr(PK,4)}","ow")
    if OPT["owx"]==1: e("s_mov_b64 exec, -1")
    stamp(a,tim,"_p8")
    if OPT["vxe"]: lload_tile(a,("o",2),SL3,"lo2")
    G2=[n for n,v in O_SLOT.items() if v==(SL2,"G")][0]
    ZA,XA,YA=36,28,32
    zero4(a,ZA)
    slow_ops("opack")
    stamp(a,tim,"opack")
    a.wait(lg="ow")
    if OPT["g9pre"]: gload_tile(a,("o",G2),SL2,f"go{G2}")
    stamp(a,tim,"_p9"); e("s_barrier"); stamp(a,tim,"b3"); stamp(a,tim,"_pa")
    for k in range(4): e(f"ds_read_b128 {vr(AB[k],4)}, {vA} offset:{L_MEM+512*k}",f"ao{k}")
    F2=min(n for n,v in O_SLOT.items() if v[0]==SL2)
    if F2!=G2: lload_tile(a,("o",F2),SL2,f"lo{F2}")
    elif not OPT["g9in"] and not OPT["g9pre"]: gload_tile(a,("o",G2),SL2,f"go{G2}")
    RL=[SL2,SL2+4,SL3,SL3+4]
    def red_loads():
        for m in range(4): e(f"buffer_load_dwordx4 {vr(RL[m],4)}, {vRL}, {S_WS}, {sPR[m]} offen sc1",f"r{m}")
    z=lambda r: [f"v_mov_b64 {vr(r,2)}, 0",f"v_mov_b64 {vr(r+2,2)}, 0"]
    cv=lambda d,x,y: f"v_cvt_pk_bf16_f32 v{d}, v{x}, v{y}"
    tagop=lambda r: f"v_and_or_b32 v{r}, v{r}, -2, {sTAG}"
    PACC=[ZA,XA,YA,ZA,XA]
    post={n:[] for n in range(21)}
    post[1]+=z(XA)[:1]; post[2]+=z(XA)[1:]; post[3]+=z(YA)[:1]; post[4]+=z(YA)[1:]
    post[5]+=[cv(ZA,ZA,ZA+1)]; post[6]+=[cv(ZA+1,ZA+2,ZA+3)]; post[7]+=[tagop(ZA)]
    sg=OPT["ststag"]*(w>>1)
    post[9]+=[cv(ZA+2,XA,XA+1),cv(ZA+3,XA+2,XA+3)]
    post[9+sg]+=[(f"buffer_store_dwordx4 {vr(ZA,4)}, {vL16}, {S_WS}, {sP0} offen {st}","p0")]
    post[10+sg]+=z(ZA); post[12]+=z(XA)[:1]; post[13]+=z(XA)[1:]
    post[13]+=[cv(YA,YA,YA+1)]; post[14]+=[cv(YA+1,YA+2,YA+3)]; post[15]+=[tagop(YA)]
    post[17]+=[cv(YA+2,ZA,ZA+1),cv(YA+3,ZA+2,ZA+3)]
    post[17+sg]+=[(f"buffer_store_dwordx4 {vr(YA,4)}, {vL16}, {S_WS}, {sP1} offen {st}","p1")]
    post[20]+=[cv(XA,XA,XA+1),cv(XA+1,XA+2,XA+3),tagop(XA),(f"buffer_store_dwordx2 {vr(XA,2)}, {vL8}, {S_WS}, {sP2} offen {st}","p2")]
    def flag(c): return [(f"buffer_store_byte v{T0}, v{T1}, {S_WS}, {sF1W} offen offset:{512*c} {st}",f"f{c}")]
    if OPT["f1"]:
        post[0]+=[f"v_mov_b32 v{T0}, {sSTEP}"]; post[8]+=[f"v_lshlrev_b32 v{T1}, 24, {vL16}"]
        post[10+sg]=flag(0)+post[10+sg]; post[18+sg]=flag(1)+post[18+sg]; post[20]+=flag(2)
    def emit(l):
        for x in l:
            if isinstance(x,tuple): e(x[0],x[1])
            else: e(x)
    def probe1(d,r): e(f"buffer_load_dword v{d}, v{r}, {S_WS}, {sF1R} offen sc1","q1")
    for n in range(20):
        ko=n&3; key=("o",n)
        if n<4: a.wait(lg=f"ao{ko}")
        if n<2: stamp(a,tim,f"_pb{n}")
        if key in TL: a.wait(lg=f"lo{n}")
        elif key in TG: a.wait(vm=f"go{n}")
        sm(a,PACC[n>>2],AB[ko],key,SLOT.get(key,(0,))[0])
        if n in O_SLOT:
            m=nxt(None,O_SLOT,n)
            if m is not None and O_SLOT[m][1]=="L": lload_tile(a,("o",m),O_SLOT[m][0],f"lo{m}")
        if F2!=G2 and n in OPT["g18"]: gload_half(a,("o",G2),SL2,f"go{G2}",OPT["g18"].index(n))
        if OPT["g9in"] and n<2: gload_half(a,("o",G2),SL2,f"go{G2}",n)
        if n in OPT["g19"]: gload_half(a,("o",19),SL1,"go19",OPT["g19"].index(n))
        if OPT["kxout"] and w in OPT["kxw"] and not OPT["kxb0"]:
            ko_=OPT["kxout"]; nk=8//len(OPT["kxw"]); f0=nk*OPT["kxw"].index(w)
            if n==ko_[0]-1: e(f"s_mov_b32 m0, {L_KX+4096*(f0//4)}")
            for j in range(nk):
                if n==ko_[0]+ko_[1]*j: dma(a,1,sKX2 if f0>=4 else sKX,"kx",f0%4+j)
            if w<3 and n==ko_[0]+ko_[1]*(nk-1)+1: e(f"s_mov_b32 m0, {4096*w}")
        if n==OPT["b4p"] and OPT["b4"]: e("s_barrier")
        if w==0 and n==OPT["rl"]: red_loads()
        if n in(13,): stamp(a,tim,f"o{n}")
        if n>=2: stamp(a,tim,f"_o{n}")
        if OPT["f1"] and w==0 and n==OPT["q1"]:
            e(f"v_bfe_u32 v{SL2}, {vL16}, 2, 5"); e(f"s_add_u32 {sT1}, {sPAT}, 0x01010101"); probe1(SL2,SL2)
        if n==19 and w<3:
            e(f"v_and_b32 v16, 0xff, {vL16}")
            e(f"ds_read_b128 v[12:15], v16 offset:{L_SEL}","sel")
        emit(post[n])
    emit(post[20])
    if w==0 and OPT["rl"]==20.5: red_loads()
    stamp(a,tim,"out")
    def slots():
        e(f"s_add_u32 {sMR}, {sMW}, {4096*w}")
        if w<3 and OPT["probe"]=="c": e(f"s_add_u32 {sMF}, {sMW}, {10240+256*w}")
        if w<3 and OPT["probe"]=="b": e(f"s_add_u32 {sPAT}, {sPAT}, 0x01010101")
        for r in (sMW,sMZ):
            e(f"s_add_u32 {r}, {r}, 16384"); e(f"s_and_b32 {r}, {r}, 0xffff"); e(f"s_or_b32 {r}, {r}, {M_OFF}")
        e(f"s_xor_b32 {sTAG}, {sTAG}, 1"); e(f"s_not_b32 {sTAGM}, {sTAGM}")
    if w<3 and OPT["f1"]:
        if w==2: e(f"s_cmp_ge_u32 {sUNIT}, 80"); e(f"s_cbranch_scc1 {L('nored0')}")
        e(f"v_bfe_u32 v23, {vL16}, 2, 5")
        if w==0:
            a.wait(vm="q1"); e(f"v_cmp_ne_u32 vcc, {sT1}, v{SL2}")
            e(f"v_mov_b32 v20, {sSTEP}"); e(f"v_lshlrev_b32 v21, 4, {vL16}"); e("v_mov_b32 v22, -1")
            e(f"s_cbranch_vccz {L('f1ok')}")
        else:
            e(f"s_add_u32 {sT1}, {sPAT}, 0x01010101")
            e(f"v_mov_b32 v20, {sSTEP}"); e(f"v_lshlrev_b32 v21, 4, {vL16}"); e("v_mov_b32 v22, -1")
            delay(a,OPT['d1'] if w==1 else OPT['d1b'])
        probe1(T0,23); delay(a,OPT["d4"]); probe1(T0,23)
        a.label(L("f1"))
        for u in range(2):
            e("s_waitcnt vmcnt(1)"); e(f"v_cmp_ne_u32 vcc, {sT1}, v{T0}"); probe1(T0,23)
            if OPT["nosync"]: e(f"s_branch {L('f1ok')}")
            else: e(f"s_cbranch_vccz {L('f1ok')}")
        spin(); e(f"s_branch {L('f1')}")
        a.label(L("f1ok")); a.vm=[]
        red_loads()
        zero_acc()
        a.wait(lg="all")
    if w<3 and not OPT["f1"] and OPT["nat"]:
        e(f"v_mov_b32 v20, {sSTEP}"); e(f"v_lshlrev_b32 v21, 4, {vL16}"); e("v_mov_b32 v22, -1")
        if w<2: zero_acc()
        if w==0: paddr(23)
        if w==0 and 0 in Q_SLOT: lload_tile(a,QSEQ[0],SL1,None)
        a.wait(lg="all")
        if OPT["nat"][w]: a.wait(vm=OPT["nat"][w])
        if w==2:
            zero_acc()
            e(f"s_cmp_ge_u32 {sUNIT}, 80"); e(f"s_cbranch_scc1 {L('nored')}")
        if not (w==0 and OPT["rl"]<=20.5 and OPT["rl"]!=20): red_loads()
    elif w<3 and not OPT["f1"]:
        a.wait(lg="all")
        if w==0 and OPT["rl"]>19: delay(a,OPT['d0']); red_loads()
        e(f"v_mov_b32 v20, {sSTEP}"); e(f"v_lshlrev_b32 v21, 4, {vL16}"); e("v_mov_b32 v22, -1")
        zero_acc()
        if w==1: delay(a,OPT['d1']); red_loads()
        if w==2:
            delay(a,OPT['d1b'])
            e(f"s_cmp_ge_u32 {sUNIT}, 80"); e(f"s_cbranch_scc1 {L('nored')}")
            red_loads()
    if w<3:
        stamp(a,tim,"rlis")
        a.label(L("red"))
        for m in range(4):
            a.wait(vm=f"r{m}")
            if m==3 and not OPT["rtail"]:
                e(f"v_bitop3_b32 v{T1}, v{RL[2]}, v{RL[3]}, {sTAGM} bitop3:0x7e")
                e(f"v_bitop3_b32 v{T0}, v{T0}, v{T1}, 1 bitop3:0xa8")
                e(f"v_cmp_ne_u32 vcc, 0, v{T0}")
            mf(16,12,RL[m],m==0)
            if m==1: e(f"v_bitop3_b32 v{T0}, v{RL[0]}, v{RL[1]}, {sTAGM} bitop3:0x7e")
            if m==3 and OPT["rtail"]:
                e(f"v_bitop3_b32 v{T1}, v{RL[2]}, v{RL[3]}, {sTAGM} bitop3:0x7e")
                e(f"v_bitop3_b32 v{T0}, v{T0}, v{T1}, 1 bitop3:0xa8")
                e(f"v_cmp_ne_u32 vcc, 0, v{T0}")
        e(f"s_cmp_eq_u32 {sSTEP}, {NSEG-1}")
        if not OPT["rtail"]: chk("redo")
        for i in range(4): e(f"v_add_f32_dpp v{16+i}, v{16+i}, v{16+i} row_ror:8 row_mask:0xf bank_mask:0xf")
        e(f"v_cvt_pk_bf16_f32 v{T0}, v16, v17"); e(f"v_cvt_pk_bf16_f32 v{T1}, v18, v19")
        e(f"v_min_u32 v{T0}, {sFE}, v{T0}")
        if OPT["rtail"]: chk("redo")
        e(f"s_cbranch_scc1 {L('last')}")
        e(f"buffer_store_dwordx2 {vr(T0,2)}, {vRS}, {S_WS}, {sMW} offen {st}","rs")
        e(f"buffer_store_byte v20, v21, {S_T}, {sUNIT} offen {st}","fl")
        e(f"buffer_store_dword v22, {vRS}, {S_WS}, {sMZ} offen {st}","mz")
        stamp(a,tim,"red")
        if w==2: a.label(L("nored2"))
        if w==0 and OPT["nat"]:
            if 1 in Q_SLOT: lload_tile(a,QSEQ[1],SL2,None)
        else: prestage()
        slots()
    if w==0 or (w<3 and OPT["m1pre"]):
        if not (w==0 and OPT["nat"]): paddr(23)
        if w==0: delay(a,OPT['d2']); stamp(a,tim,"mis")
        NP=OPT["np"] if w==0 else 1
        PD=T0
        if w==0 and OPT["spec"]:
            PD=T1
            probe(T0,23); dma(a,nd,sMR,None)
            for i in range(NP): delay(a,OPT["d4"]); probe(PD,23)
            e(f"s_waitcnt vmcnt({nd+NP})"); pcmp(T0)
            e(f"s_cbranch_vccz {L('m0hit')}")
        else:
            for i in range(NP): probe(PD,23); delay(a,OPT["d4"]) if i<NP-1 else None
        a.label(L("m0"))
        for u in range(OPT["unr"] if w==0 else 1):
            e(f"s_waitcnt vmcnt({NP-1})"); pcmp(PD)
            if w==0: probe(PD,23)
            if tim in(1,2): e("s_add_u32 s86, s86, 1")
            if OPT["nosync"] or OPT["blind"]: e(f"s_branch {L('m0ok')}")
            else: e(f"s_cbranch_vccz {L('m0ok')}")
        if w: probe(PD,23)
        spin(); e(f"s_branch {L('m0')}")
        a.label(L("m0ok"))
        if w==0: stamp(a,tim,"det")
        a.vm=[]
        dma(a,nd,sMR,"dma")
        if w==0 and OPT["spec"]: a.label(L("m0hit"))
        if w==0 and OPT["b0"]: e("s_barrier")
        if w==0: a.vm=[]
        if w==0 and OPT["b0w0"]: b0loads()
        if w==0 and not OPT["rot"]: e(f"s_waitcnt vmcnt({len(a.vm)})")
    if w<3: a.wait(lg="all")
    if w==3:
        delay(a,OPT['d3'])
        prestage()
        if OPT["pub"] and OPT["pubpos"]!="lds":
            e(f"s_add_u32 {sT0}, {sMR}, {sPC}"); e(f"s_sub_u32 {sT0}, {sT0}, {4096*3}")
            e(f"s_add_u32 s10, {sT0}, {OPT['piece']}"); e(f"s_cmp_lt_u32 {sPC}, 10240"); e("s_cselect_b32 s10, s10, 0")
            if "L" not in OPT["ab"]: e(f"buffer_load_dwordx2 v[4:5], {vL8}, {S_T}, {sT0} offen sc1","pl")
            e(f"s_add_u32 {sMP}, {sMP}, {OPT['mpstride']}"); e(f"s_add_u32 s10, {sMP}, {OPT['piece']}"); e(f"s_cmp_lt_u32 {sPC}, 10240"); e("s_cselect_b32 s10, s10, 0")
            if OPT["pubpos"]=="hop":
                a.wait(vm="pl"); e(f"buffer_store_dwordx2 v[4:5], {vL8}, {S_T}, {sMP} offen {OPT['pubfl']}","pub")
        e(f"s_cmp_eq_u32 {sSTEP}, {NSEG-1}"); e(f"s_cbranch_scc1 {L('last')}")
        if OPT["kvchk"]:
            e(f"s_cmp_eq_u32 {sALL}, 1"); e(f"s_cbranch_scc1 {L('kvok')}")
            e(f"s_lshl_b32 {sT0}, {sSTEP}, 7"); e(f"s_add_u32 {sT0}, {sT0}, {KVCNT+256}"); e(f"s_min_u32 {sT0}, {sT0}, {KVCNT+63*128}")
            e(f"s_load_dword s28, s[4:5], {sT0} glc"); e(f"s_load_dword s29, s[4:5], {KVCNT+63*128} glc")
            e("s_waitcnt lgkmcnt(0)")
            e("s_cmp_ge_u32 s29, 32"); e(f"s_cselect_b32 {sALL}, 1, 0")
            e("s_cmp_ge_u32 s28, 32"); e(f"s_cbranch_scc0 {L('kvw')}")
            a.label(L("kvok"))
        slots(); zero_acc()
        if OPT["pub"] and OPT["pubpos"]=="hop": a.wait(lg="all")
        else: a.wait(vm="all",lg="all")
    if OPT["b0"] and w:
        e("s_barrier")
        if w==1 or (w==2 and not OPT["w2late"]): mfetch()
        b0loads()
        if OPT["kxb0"] and w==3:
            e(f"s_mov_b32 m0, {L_KX}"); dma(a,4,sKX,"kx"); e(f"s_mov_b32 m0, {L_KX+4096}"); dma(a,4,sKX2,"kx")
    stamp(a,tim,"pre")
    assert OPT["ab"] or (a.vm[len(a.vm)-len(top_vm):]==top_vm and (top_vm or not a.vm)),(w,a.vm)
    if tim in(4,5) and w==(3 if tim==4 else 0):
        e("s_memtime s[70:71]" if tim==4 else "s_memrealtime s[70:71]"); e("s_waitcnt lgkmcnt(0)")
        e(f"v_writelane_b32 v4, s70, 63") if False else None
        e(f"s_lshl_b32 s72, {sH}, 8"); e(f"s_lshl_b32 s73, {sSTEP}, 2"); e("s_add_u32 s72, s72, s73"); e(f"s_add_u32 s72, s72, {DBG_OFF+0x40000}")
        e(f"v_mov_b32 v{T0}, s70"); e(f"v_lshlrev_b32 v{T1}, 24, {vL16}")
        e(f"buffer_store_dword v{T0}, v{T1}, {S_WS}, s72 offen")
    if tim==6 and w==3:
        e(f"s_cmp_eq_u32 {sSTEP}, {OPT['win'][0]}"); e(f"s_cbranch_scc0 {L('t6a')}"); e("s_memrealtime s[70:71]"); e("s_memtime s[74:75]"); e("s_waitcnt lgkmcnt(0)"); a.label(L("t6a"))
        e(f"s_cmp_eq_u32 {sSTEP}, {OPT['win'][1]}"); e(f"s_cbranch_scc0 {L('t6b')}"); e("s_memrealtime s[72:73]"); e("s_memtime s[76:77]"); e("s_waitcnt lgkmcnt(0)")
        e("s_sub_u32 s70, s72, s70"); e("s_sub_u32 s74, s76, s74"); e(f"s_lshl_b32 s72, {sH}, 3"); e(f"s_add_u32 s72, s72, {DBG_OFF+0x40000}")
        e(f"v_mov_b32 v{T0}, s70"); e(f"v_mov_b32 v{T1}, s74"); e(f"v_lshlrev_b32 v12, 24, {vL16}")
        e(f"buffer_store_dwordx2 {vr(T0,2)}, v12, {S_WS}, s72 offen"); a.label(L("t6b"))
    if tim==3:
        e(f"s_cmp_eq_u32 {sSTEP}, {OPT['at']}"); e(f"s_cbranch_scc0 {L('pretop') if OPT['rot'] and w==0 else 'HZ_'+L('top')}")
        n=len(STAMPS); e(f"s_memrealtime s[{54+2*n}:{55+2*n}]"); e(f"s_memtime s[{56+2*n}:{57+2*n}]")
        e("s_waitcnt lgkmcnt(0)")
        e(f"s_lshl_b32 {sT0}, {sH}, 2"); e(f"s_add_u32 {sT0}, {sT0}, {w}"); e(f"s_lshl_b32 {sT0}, {sT0}, 7"); e(f"s_add_u32 {sT0}, {sT0}, {DBG_OFF+65536}")
        e(f"v_mov_b32 v{T1}, 0"); e("s_mov_b64 exec, 1")
        for i in range(len(STAMPS)+2):
            e(f"v_mov_b32 v{T0}, s{54+2*i}"); e(f"buffer_store_dword v{T0}, v{T1}, {S_WS}, {sT0} offen offset:{4*i}")
        e("s_waitcnt vmcnt(0)"); e("s_mov_b64 exec, -1")
    e(f"s_branch {L('pretop')}" if OPT["rot"] and w==0 else f"s_branch HZ_{L('top')}")
    if w<3:
        a.label(L("redo"))
        if tim in(1,2): e("s_add_u32 s85, s85, 1")
        e("s_mov_b64 exec, vcc")
        a.label(L("redo2"))
        red_loads(); spin()
        e("s_waitcnt vmcnt(0)")
        e(f"v_bitop3_b32 v{T0}, v{RL[0]}, v{RL[1]}, {sTAGM} bitop3:0x7e"); e(f"v_bitop3_b32 v{T1}, v{RL[2]}, v{RL[3]}, {sTAGM} bitop3:0x7e")
        e(f"v_bitop3_b32 v{T0}, v{T0}, v{T1}, 1 bitop3:0xa8"); e(f"v_cmp_ne_u32 vcc, 0, v{T0}")
        e(f"s_cbranch_vccnz {L('redo2')}")
        e("s_mov_b64 exec, -1"); e("s_nop 1")
        e(f"s_branch {L('red')}")
        a.label(L("last"))
        e(f"s_mov_b32 {sT0}, {MEMP_OFF+63*10240}")
        e(f"buffer_store_dwordx2 {vr(T0,2)}, {vRS}, {S_WS}, {sT0} offen sc1")
        e(f"s_branch {L('done')}")
    if OPT["nanchk"]:
        a.label(L("scan"))
        e(f"v_mov_b32 v{T0}, 0")
        for k in range(10):
            e(f"ds_read_b32 v{T1}, {vL16} offset:{L_MEM+1024*k}"); e("s_waitcnt lgkmcnt(0)"); e(f"v_max_u32 v{T0}, v{T0}, v{T1}")
        e(f"v_cmp_eq_u32 vcc, -1, v{T0}"); e(f"s_cbranch_vccnz {L('rec')}"); e(f"s_branch {L('scanned')}")
    if w==2:
        if OPT["f1"]: a.label(L("nored0")); zero_acc(); e("s_waitcnt lgkmcnt(0)")
        a.label(L("nored"))
        e("s_waitcnt vmcnt(0)")
        e(f"s_cmp_eq_u32 {sSTEP}, {NSEG-1}"); e(f"s_cbranch_scc1 {L('done')}")
        e(f"s_branch {L('nored2')}")
    if w==3 and OPT["kvchk"]:
        a.label(L("kvw"))
        if tim in(1,2): e("s_add_u32 s85, s85, 1")
        e(f"v_mov_b32 v{T0}, 0")
        a.label(L("kvw2"))
        e(f"buffer_load_dword v{T1}, v{T0}, {S_WS}, {sT0} offen sc1"); spin(); e("s_waitcnt vmcnt(0)")
        e(f"v_cmp_gt_u32 vcc, 32, v{T1}"); e(f"s_cbranch_vccnz {L('kvw2')}")
        e(f"s_branch {L('kvok')}")
    if w==3 and OPT["pub"] and OPT["lastlds"]:
        a.label(L("pub62"))
        e(f"v_add_u32 v{T1}, {sPC}, {vL8}"); e(f"ds_read_b64 v[4:5], v{T1} offset:{L_MEM}")
        e(f"s_add_u32 {sT0}, {sMP}, 10240"); e(f"s_add_u32 s10, {sT0}, {OPT['piece']}"); e("s_waitcnt lgkmcnt(0)")
        e(f"buffer_store_dwordx2 v[4:5], {vL8}, {S_T}, {sT0} offen sc1"); e("s_mov_b32 s10, 0")
        e(f"s_branch {L('pub62b')}")
    if w==3:
        a.label(L("last"))
        e("s_waitcnt vmcnt(0)")
        if OPT["pub"] and OPT["pubpos"] not in("hop","lds") and not OPT["lastlds"]: e(f"buffer_store_dwordx2 v[4:5], {vL8}, {S_T}, {sMP} offen sc1")
        e(f"s_branch {L('done')}")
    if w in(1,2) and not OPT["m1pre"]:
        a.label(L("mr"))
        spin("s86")
        mfetch(); e(f"s_waitcnt vmcnt({nd})")
        pcmp(T1); e(f"s_cbranch_vccnz {L('mr')}")
        e("s_waitcnt vmcnt(0)")
        e(f"s_branch {L('mok')}")
    a.label(L("done"))
    a.vm=[]; a.lg=[]
    e("s_waitcnt vmcnt(0) lgkmcnt(0)")
    if w==3 and OPT["wb"]:
        e(f"s_cmp_eq_u32 {sH}, 0"); e(f"s_cbranch_scc0 {L('nowb')}"); e("buffer_wbl2 sc1"); e("s_waitcnt vmcnt(0)"); a.label(L("nowb"))
    if tim in(1,2):
        e("s_memtime s[70:71]"); e("s_waitcnt lgkmcnt(0)"); e("s_sub_u32 s83, s70, s74")
        for i in range(11): e(f"v_mov_b32 v{12+i}, s{76+i}")
        e(f"s_lshl_b32 {sT0}, {sH}, 2"); e(f"s_add_u32 {sT0}, {sT0}, {w}"); e(f"s_lshl_b32 {sT0}, {sT0}, 6"); e(f"s_add_u32 {sT0}, {sT0}, {DBG_OFF}")
        e("v_mov_b32 v10, 0"); e("s_mov_b64 exec, 1")
        e("s_memrealtime s[68:69]"); e("s_waitcnt lgkmcnt(0)")
        for i,r in enumerate((90,92,94,66,68)): e(f"v_mov_b32 v{23+i}, s{r}")
        for i in range(4): e(f"buffer_store_dwordx4 {vr(12+4*i,4)}, v10, {S_WS}, {sT0} offen offset:{16*i}")
        if OPT["dbgout"] and w==0:
            for i in range(5):
                e(f"v_mov_b32 v10, {16+4*i}"); e(f"global_atomic_umax v10, v{23+i}, {sDBG}")
            e("v_mov_b32 v10, 36"); e(f"global_atomic_umax v10, v19, {sDBG}")
        e("s_waitcnt vmcnt(0)")
    e("s_endpgm")
```

```python
import sys
from asmlib import *
from layout import *
import chain as C
import worker as W

NAME="parallel_sum__memory_aug_recurrent_mem_tr__mixer_channel_mlp__prompt"
KN=NAME+"_kernel"
sW="s13"; sROW="s64"; sRANK="s65"

DOC=""";
;              CS* (write-through stores) runs for any other placement.
"""
TIM=[0]
def set_chain(mod):
    global C
    C=mod
def prologue(a):
    e=a.e
    e("s_cmp_ge_u32 s2, 256"); e("s_cbranch_scc1 L_exit")
    if TIM[0] in(1,2): e("s_memrealtime s[90:91]")
    e(f"s_load_dwordx2 {C.sDBG}, s[0:1], {D_DBG}"); e(f"s_load_dwordx2 s[4:5], s[0:1], {D_WS}")
    e(f"s_getreg_b32 {C.sXCC}, hwreg(HW_REG_XCC_ID, 0, 4)")
    e("v_lshrrev_b32 v1, 6, v0"); e(f"v_readfirstlane_b32 {sW}, v1"); e("v_and_b32 v0, 63, v0")
    e(f"s_mov_b32 s6, {WS_SIZE}"); e("s_mov_b32 s7, 0x20000")
    if C.OPT.get("scatter")==1: e(f"s_lshr_b32 {sROW}, s2, 5")
    elif C.OPT.get("scatter")==2: e(f"s_mov_b32 {sROW}, 3")
    elif C.OPT.get("cx"): e(f"s_xor_b32 {sROW}, {C.sXCC}, {C.OPT['cx']}"); e(f"s_and_b32 {sROW}, {sROW}, 7")
    else: e(f"s_and_b32 {sROW}, {C.sXCC}, 7")
    e("s_waitcnt lgkmcnt(0)")
    e(f"s_cmp_eq_u32 {sW}, 0"); e("s_cbranch_scc0 L_gotrole")
    e("s_mov_b64 exec, 1"); e("v_mov_b32 v2, 1"); e("s_mov_b32 s42, 0")
    a.label("L_ticket")
    e(f"s_lshl_b32 s43, {sROW}, 2"); e("s_add_u32 s43, s43, 128"); e(f"s_cmp_eq_u32 {sROW}, 0"); e("s_cselect_b32 s43, 0, s43")
    e("v_mov_b32 v1, s43"); e(f"global_atomic_add v3, v1, v2, {C.sDBG} sc0"); e("s_waitcnt vmcnt(0)")
    e(f"v_readfirstlane_b32 {sRANK}, v3"); e("s_nop 3")
    e(f"s_cmp_lt_u32 {sRANK}, 32"); e("s_cbranch_scc1 L_ticketok")
    e(f"s_add_u32 {sROW}, {sROW}, 1"); e(f"s_and_b32 {sROW}, {sROW}, 7"); e("s_add_u32 s42, s42, 1")
    e("s_cmp_lt_u32 s42, 8"); e("s_cbranch_scc1 L_ticket")
    e(f"s_mov_b32 {sROW}, 8")
    a.label("L_ticketok")
    e(f"s_lshl_b32 s43, {sROW}, 5"); e(f"s_add_u32 s43, s43, {sRANK}")
    e("v_mov_b32 v3, s43"); e(f"v_mov_b32 v1, {C.L_ROLE}"); e("ds_write_b32 v1, v3"); e("s_waitcnt lgkmcnt(0)")
    e("s_mov_b64 exec, -1")
    a.label("L_gotrole")
    e("s_barrier")
    e(f"v_mov_b32 v1, {C.L_ROLE}"); e("ds_read_b32 v3, v1"); e("s_waitcnt lgkmcnt(0)")
    e("v_readfirstlane_b32 s43, v3"); e("s_nop 3")
    e(f"s_lshr_b32 {sROW}, s43, 5"); e(f"s_and_b32 {sRANK}, s43, 31")
    e("s_barrier")
    a.vm=[]; a.lg=[]
    e(f"s_cmp_ge_u32 {sROW}, 8"); e("s_cbranch_scc1 L_exit")
    e(f"s_cmp_eq_u32 {sROW}, 0"); e("s_cbranch_scc0 L_worker")

def chain_poll(a, kv_need):
    e=a.e; q=list(a.vm)
    e(f"s_cmp_eq_u32 {sW}, 0"); e("s_cbranch_scc0 C_arrived")
    e(f"s_mov_b64 exec, {C.OPT['kvmask']}"); e("v_lshlrev_b32 v8, 3, v0"); e(f"v_add_u32 v8, {KVCNT}, v8"); e("v_mov_b32 v4, 4")
    e("s_mov_b32 s66, 0")
    a.label("C_poll")
    e(f"global_load_dwordx2 v[6:7], v4, {C.sDBG} sc1")
    e("s_add_u32 s66, s66, 1"); e("s_cmp_gt_u32 s66, 0x100000"); e("s_cbranch_scc1 C_polled")
    e("s_waitcnt vmcnt(0)")
    e("v_cmp_gt_u32 vcc, 32, v6"); e("s_cbranch_vccnz C_poll")
    a.label("C_pollkv")
    e("buffer_load_dword v9, v8, s[4:7], 0 offen sc1")
    e("s_add_u32 s66, s66, 1"); e("s_cmp_gt_u32 s66, 0x100000"); e("s_cbranch_scc1 C_polled")
    e("s_waitcnt vmcnt(0)")
    e(f"v_cmp_gt_u32 vcc, {kv_need}, v9"); e("s_cbranch_vccz C_polled"); e("s_sleep 4"); e("s_branch C_pollkv")
    a.label("C_polled")
    e("s_waitcnt vmcnt(0)"); e("s_mov_b64 exec, 1")
    e(f"v_mov_b32 v4, {C.L_ROLE}"); e("ds_write_b32 v4, v7"); e("s_waitcnt lgkmcnt(0)")
    e("s_mov_b64 exec, -1")
    if C.OPT["early"]:
        e("v_lshlrev_b32 v4, 3, v0"); e(f"s_mov_b32 m0, {C.L_ROLE+256}"); e(f"s_sub_u32 s66, {C.sVXN}, {32*8192}")
        e(f"buffer_load_dword v4, s[4:7], {C.sKX} offen sc1 lds"); e("buffer_load_dword v4, s[4:7], s66 offen sc1 lds")
    a.label("C_arrived")
    a.vm=q
def chain_start(a):
    e=a.e
    e("s_barrier")
    e(f"v_mov_b32 v12, {C.L_ROLE}"); e("ds_read_b32 v13, v12"); e("s_waitcnt lgkmcnt(0)")
    e("v_readfirstlane_b32 s42, v13"); e("s_nop 3")
    e(f"s_bcnt1_i32_b32 {C.sMODE}, s42")
    a.vm=[]; a.lg=[]

def build(tim=0, force_slow=0, kv_need=0, workers=None):
    a=Asm(timed=not C.OPT.get('strict')); e=a.e; TIM[0]=tim; W.OPT["tim"]=1 if tim==2 else 0
    prologue(a)
    if tim in(1,2): e("s_memrealtime s[92:93]")
    e(f"s_mov_b32 {C.sH}, {sRANK}")
    C.chain_init(a, sW, lambda: chain_poll(a, kv_need))
    if tim in(1,2): e("s_memrealtime s[94:95]")
    chain_start(a)
    if tim in(1,2): e("s_memrealtime s[66:67]")
    e(f"s_cmp_eq_u32 {C.sMODE}, {99 if force_slow else 1}"); e("s_cbranch_scc0 C_slow")
    for pfx,st in (("CF",""),("CS","sc1")):
        if pfx=="CS": a.label("C_slow")
        for w in (1,2,3):
            e(f"s_cmp_eq_u32 {sW}, {w}"); e(f"s_cbranch_scc1 {pfx}_w{w}")
        for w in range(4):
            a.label(f"{pfx}_w{w}")
            C.chain_wave(a,w,st,pfx,tim)
    a.label("L_worker")
    if workers: workers(a)
    a.label("L_abort")
    a.label("L_exit")
    e("s_endpgm")
    head=open("cdna_kernels/"+NAME+".s.ref").read().split("; Override launch")[0]
    out=head+"; @launch grid=(256,1,1) block=(256,1,1) lds=163840\n"+DOC
    out+=f'.amdgcn_target "amdgcn-amd-amdhsa--gfx950"\n.text\n.globl {KN}\n.p2align 8\n.type {KN},@function\n{KN}:\n'
    out+=a.text()
    out+=f""".section .rodata,"a"
.p2align 6
.amdhsa_kernel {KN}
  .amdhsa_next_free_vgpr 512
  .amdhsa_next_free_sgpr 102
  .amdhsa_accum_offset 256
  .amdhsa_group_segment_fixed_size 0
  .amdhsa_kernarg_size 120
  .amdhsa_user_sgpr_count 2
  .amdhsa_user_sgpr_kernarg_segment_ptr 1
  .amdhsa_system_sgpr_workgroup_id_x 1
  .amdhsa_float_denorm_mode_32 3
.end_amdhsa_kernel
"""
    return out, a
if __name__=="__main__":
    full=len(sys.argv)>3
    out,a=build(tim=int(sys.argv[2]) if len(sys.argv)>2 else 0, kv_need=32 if full else 0, workers=W.workers if full else None)
    open(sys.argv[1],"w").write(out); print("instructions",len(a.ins),"pad states",a.npad)
```

```python
from asmlib import *
from layout import *
import chain as C
import struct, math
S_WS=C.S_WS; sDBG=C.sDBG
sW="s13"; sROW="s64"; sRANK="s65"
f32=lambda x: "0x%08x"%struct.unpack("<I",struct.pack("<f",x))[0]
OPT={"tim":0,"hold":0,"pa":0,"pb":0,"fast0":1,"lastwi":208,"perm":(6,0,1,2,3,4,5),"split":0,"holdn":32,"asleep":1,"bsleep":1}

def rt(a,i):
    if OPT["tim"]: a.e(f"s_memrealtime s[{70+2*i}:{71+2*i}]")

def spin_wait(a,name,load,cmp_fail,sCNT="s32",sleep=1,ahead=0):
    e=a.e
    if ahead: load(); e("s_sleep 4")
    a.label(name)
    load()
    e(f"s_add_u32 {sCNT}, {sCNT}, 1"); e(f"s_cmp_gt_u32 {sCNT}, 0x40000"); e("s_cbranch_scc1 L_abort")
    e(f"s_waitcnt vmcnt({ahead})"); a.vm=[None]*ahead
    cmp_fail()
    e(f"s_cbranch_vccz {name}_ok")
    if sleep: e(f"s_sleep {sleep}")
    e(f"s_branch {name}")
    a.label(name+"_ok")

XA=0
ACC=32; BI=64; GT=80
vLN="v232"; vL16="v233"; vDA="v234"; vDB="v235"; vVO="v236"; vRD="v237"; TMP=240
S_W="s[8:11]"; S_X="s[20:23]"
sTILE="s24"; sSEG="s26"; sSRC="s27"; sOUT="s28"; sOUT2="s29"; sSTR="s30"; sOFF="s31"; sCNT="s32"; sWI="s33"; sA="s34"; sB="s35"; sKIND="s36"; sMIX="s37"
sSLOT="s16"; sSIG="s17"; sOSTR="s18"; sIT="s19"; sFILL="s38"; sG0="s39"; sOUT3="s14"; sOUT4="s15"; sHS="s25"
def wreg(j,k,t):
    i=160*j+8*k+4*t
    return vr(i,4,'a') if i<256 else vr(i-256+160,4)
def wreg2(j,k,t,x):
    i=160*j+8*k+4*t+2*x
    return vr(i,2,'a') if i<256 else vr(i-256+160,2)

def layernorm(a):
    e=a.e; one=TMP; S=[TMP+4,TMP+8]
    for k in range(20):
        e(f"v_mfma_f32_16x16x32_bf16 {vr(S[0],4)}, {vr(one,4)}, {vr(4*k,4)}, {'0' if k==0 else vr(S[0],4)}")
        e(f"v_mfma_f32_16x16x32_bf16 {vr(S[1],4)}, {vr(4*k,4)}, {vr(4*k,4)}, {'0' if k==0 else vr(S[1],4)}")
    q=S[1]
    for i in range(1,4):
        e(f"v_cmp_eq_u32 vcc, {i}, v{TMP+12}"); e(f"v_cndmask_b32 v{q}, v{q}, v{q+i}, vcc")
    e(f"ds_bpermute_b32 v{q}, v{TMP+13}, v{q}","bp")
    m=S[0]
    e(f"v_mul_f32 v{m}, {f32(1/640)}, v{m}")
    a.wait(lg="bp")
    e(f"v_mul_f32 v{q}, {f32(1/640)}, v{q}"); e(f"v_fma_f32 v{q}, -v{m}, v{m}, v{q}"); e(f"v_max_f32 v{q}, 0, v{q}")
    rb=lambda r: (e(f"v_cvt_pk_bf16_f32 v{r}, v{r}, v{r}"), e(f"v_and_b32 v{r}, {sMIX}, v{r}"))
    rb(m); rb(q); e(f"v_add_f32 v{q}, {f32(1e-5)}, v{q}"); rb(q); e(f"v_sqrt_f32 v{q}, v{q}"); rb(q)
    e(f"v_rcp_f32 v{q}, v{q}"); e(f"v_mul_f32 v{m}, v{m}, v{q}")
    for k in range(20):
        if k and k%4==0: e(f"s_add_u32 {sOUT}, {sOUT}, 4096")
        for r in range(4*k,4*k+4):
            t=TMP+14
            e(f"v_lshlrev_b32 v{t}, 16, v{r}"); e(f"v_and_b32 v{t+1}, {sMIX}, v{r}")
            e(f"v_pk_fma_f32 {vr(t,2)}, {vr(t,2)}, {vr(q,2)}, {vr(m,2)} op_sel_hi:[1,0,0] neg_lo:[0,0,1] neg_hi:[0,0,1]")
            e(f"v_cvt_pk_bf16_f32 v{r}, v{t}, v{t+1}")
        e(f"buffer_store_dwordx4 {vr(4*k,4)}, {vL16}, {S_WS}, {sOUT} offen offset:{1024*(k%4)} sc1")

def add_one(a,off):
    e=a.e
    e("s_mov_b64 exec, 1")
    e(f"v_mov_b32 v{TMP}, 0"); e(f"v_mov_b32 v{TMP+1}, 1")
    e(f"buffer_atomic_add v{TMP+1}, v{TMP}, {S_WS}, {off} offen")
    e("s_mov_b64 exec, -1"); e("s_nop 3")

def seg_dma(a):
    out=[]
    for i in range(10):
        g=[]
        if i%4==0: g.append(f"s_add_u32 m0, {sFILL}, {4096*(i//4)}")
        if i in(4,8): g.append(f"s_add_u32 {sSRC}, {sSRC}, 4096")
        g.append((f"buffer_load_dwordx4 {vL16}, {S_X}, {sSRC} offen offset:{1024*(i%4)} sc1 lds","d"))
        out.append(g)
    out[-1]+= [f"s_add_u32 {sSRC}, {sSRC}, {40960-8192}",f"s_add_u32 {sFILL}, {sFILL}, 40960",f"s_cmp_ge_u32 {sFILL}, 163840",
               f"s_cselect_b32 {sA}, 163840, 0",f"s_sub_u32 {sFILL}, {sFILL}, {sA}"]
    return out
def emit(a,g):
    for x in g:
        if isinstance(x,tuple): a.e(x[0],x[1])
        else: a.e(x)

def seg_loop(a,kind):
    e=a.e; L=lambda s: f"W{kind}_{s}"
    a.label(L("top"))
    NJ=1 if kind=="H" else 2
    if OPT["fast0"]:
        e(f"s_cmp_eq_u32 {sIT}, 3"); e(f"s_cbranch_scc0 {L('late')}"); e("s_waitcnt vmcnt(0)"); a.label(L("late"))
    e(f"s_waitcnt vmcnt({10+2*NJ})"); e("s_barrier")
    a.vm=[]; a.lg=[]
    rd=lambda f: e(f"ds_read_b128 {vr(4*(f%8),4)}, {vRD} offset:{1024*f}",f"f{f}")
    LA=7 if NJ==1 else 4
    for f in range(LA): rd(f)
    if OPT["fast0"]:
        e(f"s_cmp_eq_u32 {sIT}, 4"); e(f"s_cselect_b32 {sA}, 1, {sW}"); e(f"s_cmp_lt_u32 {sIT}, 2"); e(f"s_cselect_b32 {sA}, 1, {sA}")
        e(f"s_cmp_eq_u32 {sA}, 0"); e(f"s_cbranch_scc0 {L('nosig')}")
        add_one(a,sSIG)
        e(f"s_cmp_eq_u32 {sIT}, 3"); e(f"s_cbranch_scc0 {L('nosig')}"); e(f"s_add_u32 {sB}, {sSIG}, 128")
        add_one(a,sB)
    else:
        e(f"s_cmp_lt_u32 {sIT}, 2"); e(f"s_cselect_b32 {sA}, 1, {sW}"); e(f"s_cmp_eq_u32 {sA}, 0"); e(f"s_cbranch_scc0 {L('nosig')}")
        add_one(a,sSIG)
    a.label(L("nosig")); a.vm=[]
    fill=seg_dma(a)
    ac=lambda j,tt,t: ACC+16*j+8*tt+4*t
    for f in range(40):
        tt,k=f//20,f%20
        a.wait(lg=f"f{f}")
        for j in range(NJ):
            for t in range(2):
                A,B=wreg(j,k,t),vr(4*(f%8),4)
                if kind=="V": A,B=B,A
                d=vr(ac(j,tt,t),4)
                e(f"v_mfma_f32_16x16x32_bf16 {d}, {A}, {B}, {'0' if k==0 else d}")
                if j==0 and t==0 and f+LA<40: rd(f+LA)
        if f%3==0 and fill: emit(a,fill.pop(0))
    e(f"s_add_u32 {sSLOT}, {sSLOT}, 40960"); e(f"s_cmp_ge_u32 {sSLOT}, 163840"); e(f"s_cselect_b32 {sSLOT}, 0, {sSLOT}")
    e(f"v_add_u32 {vRD}, {sSLOT}, {vL16}")
    so=[[sOUT,sOUT2],[sOUT3,sOUT4]]
    for j in range(NJ):
      if kind=="K":
        for tt in range(2):
            t0,t1=ac(j,tt,0),ac(j,tt,1); o=TMP+4+4*tt
            for i,(x,y) in enumerate(((t0,t0+2),(t1,t1+2),(t0+1,t0+3),(t1+1,t1+3))): e(f"v_cvt_pk_bf16_f32 v{o+i}, v{x}, v{y}")
            e(f"buffer_store_dwordx4 {vr(o,4)}, {vL16}, {S_WS}, {so[j][tt]} offen sc1")
      elif kind=="V":
        for t in range(2):
            t0,t1=ac(j,0,t),ac(j,1,t); o=TMP+4+4*t
            for i,(x,y) in enumerate(((t0,t0+1),(t0+2,t0+3),(t1,t1+1),(t1+2,t1+3))): e(f"v_cvt_pk_bf16_f32 v{o+i}, v{x}, v{y}")
            e(f"buffer_store_dwordx4 {vr(o,4)}, {vVO}, {S_WS}, {so[j][0]} offen offset:{128*t} sc1")
      else:
        for tt in range(2):
            for t in range(2):
                for i in range(4):
                    z=ac(j,tt,t)+i; u=GT+4+i
                    e(f"v_add_f32 v{z}, v{z}, v{BI+8*j+4*t+i}")
                    e(f"v_mul_f32 v{u}, v{z}, v{z}"); e(f"v_fma_f32 v{u}, v{u}, {sG0}, v{GT}"); e(f"v_mul_f32 v{u}, v{u}, v{z}")
                for i in range(4): e(f"v_exp_f32 v{GT+4+i}, v{GT+4+i}")
                for i in range(4): e(f"v_add_f32 v{GT+4+i}, 1.0, v{GT+4+i}")
                for i in range(4): e(f"v_rcp_f32 v{GT+4+i}, v{GT+4+i}")
                for i in range(4): e(f"v_mul_f32 v{ac(j,tt,t)+i}, v{ac(j,tt,t)+i}, v{GT+4+i}")
            t0,t1=ac(j,tt,0),ac(j,tt,1); o=TMP+4+4*tt
            for i,(x,y) in enumerate(((t0,t0+1),(t0+2,t0+3),(t1,t1+1),(t1+2,t1+3))): e(f"v_cvt_pk_bf16_f32 v{o+i}, v{x}, v{y}")
            e(f"buffer_store_dwordx4 {vr(o,4)}, {vL16}, {S_WS}, {so[j][tt]} offen sc1")
    for r in (sOUT,sOUT2,sOUT3,sOUT4): e(f"s_add_u32 {r}, {r}, {sOSTR}")
    e(f"s_add_u32 {sSIG}, {sSIG}, 128")
    if OPT["tim"]:
        e(f"s_cmp_eq_u32 {sIT}, 3"); e(f"s_cbranch_scc0 {L('nt')}"); rt(a,2); e("s_waitcnt lgkmcnt(0)"); a.label(L("nt"))
    e(f"s_add_u32 {sIT}, {sIT}, 1"); e(f"s_cmp_lt_u32 {sIT}, 64"); e(f"s_cbranch_scc1 {L('top')}")
    e("s_branch W_tail")

def zero_wait(a,name):
    e=a.e
    spin_wait(a,name,lambda:(e(f"v_mov_b32 v{TMP+4}, 4"),e(f"global_load_dword v{TMP+5}, v{TMP+4}, {sDBG} sc1")),lambda:e(f"v_cmp_gt_u32 vcc, 32, v{TMP+5}"))

def common(a):
    e=a.e
    e(f"s_load_dwordx2 s[20:21], s[0:1], {A_X}")
    e(f"s_load_dwordx2 s[40:41], s[0:1], {A_WQ}"); e(f"s_load_dwordx2 s[42:43], s[0:1], {A_WK}"); e(f"s_load_dwordx2 s[44:45], s[0:1], {A_WV}")
    e(f"s_load_dwordx2 s[54:55], s[0:1], {A_WO}")
    e(f"s_load_dwordx2 s[46:47], s[0:1], {B_W1}"); e(f"s_load_dwordx2 s[48:49], s[0:1], {B_B1}")
    e(f"v_mov_b32 {vLN}, v0"); e(f"v_lshlrev_b32 {vL16}, 4, v0")
    code=sum(v<<(4*(i+1)) for i,v in enumerate(OPT["perm"]))
    e(f"s_lshl_b32 {sA}, {sROW}, 2"); e(f"s_lshr_b32 {sWI}, 0x{code:x}, {sA}"); e(f"s_and_b32 {sWI}, {sWI}, 7")
    e(f"s_lshl_b32 {sWI}, {sWI}, 5"); e(f"s_add_u32 {sWI}, {sWI}, {sRANK}")
    e(f"s_mov_b32 {sCNT}, 0"); e(f"s_mov_b32 {sMIX}, 0xffff0000")
    e(f"s_mov_b32 s22, {S*D*2}"); e("s_mov_b32 s23, 0x20000"); e("s_mov_b32 s11, 0x20000")
    e("s_waitcnt lgkmcnt(0)")

def norm_rows(a):
    e=a.e; t=TMP
    e(f"s_sub_u32 {sHS}, {sWI}, 64"); e(f"s_cmp_lt_u32 {sHS}, 128"); e(f"s_cselect_b32 {sA}, {sW}, 1")
    e(f"s_cmp_eq_u32 {sA}, 0"); e(f"s_cselect_b32 {sKIND}, 1, 0"); e("s_cbranch_scc0 W_nox")
    e(f"v_and_b32 v{t}, 15, {vLN}"); e(f"v_mul_u32_u24 v{t}, 1280, v{t}"); e(f"v_lshrrev_b32 v{t+1}, 4, {vLN}"); e(f"v_lshl_add_u32 v{t}, v{t+1}, 4, v{t}")
    e(f"s_mul_i32 {sA}, {sHS}, {16*1280}")
    for k in range(20): e(f"buffer_load_dwordx4 {vr(4*k,4)}, v{t}, {S_X}, {sA} offen offset:{64*k}")
    a.label("W_nox")
    if C.OPT["sweep"]:
        e("s_barrier")
        e(f"s_lshl_b32 {sA}, {sHS}, 2"); e(f"s_add_u32 {sA}, {sA}, {sW}"); e(f"s_lshl_b32 {sA}, {sA}, 13")
        e(f"v_lshlrev_b32 v239, 3, {vL16}"); e(f"s_mov_b32 s10, {640*8192}")
        for r in (40,42,44,54):
            e(f"s_mov_b32 s8, s{r}"); e(f"s_mov_b32 s9, s{r+1}")
            e(f"buffer_load_dword v238, v239, s[8:11], {sA} offen {C.OPT['swpfl']}")
    e(f"s_cmp_eq_u32 {sKIND}, 1"); e("s_cbranch_scc0 W_noln")
    e(f"s_mul_i32 {sA}, {sHS}, 5120"); e(f"s_add_u32 {sA}, {sA}, {MEMP_OFF}"); e(f"s_add_u32 {sOUT}, {sA}, 4096")
    e(f"v_mov_b64 {vr(TMP+4,2)}, -1"); e(f"v_mov_b64 {vr(TMP+6,2)}, -1")
    for i in range(5): e(f"buffer_store_dwordx4 {vr(TMP+4,4)}, {vL16}, {S_WS}, {sA if i<4 else sOUT} offen offset:{1024*(i%4)} sc1")
    for i in range(4): e(f"v_mov_b32 v{TMP+i}, 0x3f803f80")
    e(f"v_and_b32 v{TMP+12}, 15, {vLN}"); e(f"v_lshrrev_b32 v{TMP+13}, 2, v{TMP+12}"); e(f"v_lshl_add_u32 v{TMP+13}, v{TMP+13}, 4, v{TMP+12}")
    e(f"v_lshlrev_b32 v{TMP+13}, 2, v{TMP+13}"); e(f"v_and_b32 v{TMP+12}, 3, v{TMP+12}")
    e(f"s_mul_i32 {sOUT}, {sHS}, 20480"); e(f"s_add_u32 {sOUT2}, {sOUT}, {YN_OFF}"); e(f"s_add_u32 {sOUT}, {sOUT}, {XN_OFF}")
    e(f"s_waitcnt vmcnt({9 if C.OPT['sweep'] else 5})")
    rt(a,0)
    e(f"s_mov_b32 {sIT}, 0")
    a.label("W_ln")
    layernorm(a)
    e(f"s_mov_b32 {sOUT}, {sOUT2}"); e(f"s_add_u32 {sIT}, {sIT}, 1"); e(f"s_cmp_lt_u32 {sIT}, 2"); e("s_cbranch_scc1 W_ln")
    zero_wait(a,"W_zero")
    e(f"s_lshr_b32 {sA}, {sHS}, 1"); e(f"s_lshl_b32 {sA}, {sA}, 7"); e(f"s_add_u32 {sA}, {sA}, {LNCNT}")
    add_one(a,sA)
    a.label("W_noln"); a.vm=[]; a.lg=[]

def project(a):
    e=a.e; t=TMP
    e(f"s_lshl_b32 {sTILE}, {sWI}, 1"); e(f"s_add_u32 {sA}, {sWI}, 48"); e(f"s_min_u32 {sTILE}, {sTILE}, {sA}"); e(f"s_lshr_b32 {sKIND}, {sTILE}, 5")
    e(f"s_cmp_eq_u32 {sKIND}, 0"); e("s_cselect_b32 s8, s42, s44"); e("s_cselect_b32 s9, s43, s45")
    e(f"s_cmp_eq_u32 {sKIND}, 2"); e("s_cselect_b32 s8, s40, s8"); e("s_cselect_b32 s9, s41, s9")
    e(f"s_cmp_eq_u32 {sKIND}, 3"); e("s_cselect_b32 s8, s46, s8"); e("s_cselect_b32 s9, s47, s9")
    e(f"s_mov_b32 {sA}, 8192"); e(f"s_cselect_b32 {sSTR}, {F*2}, {sA}"); e(f"s_mul_i32 s10, {sSTR}, {D}")
    e(f"v_lshrrev_b32 v{t+2}, 4, {vLN}"); e(f"v_lshlrev_b32 v{t+3}, 1, v{t+2}"); e(f"v_and_b32 v{t+4}, 15, {vLN}"); e(f"v_xor_b32 v{t+3}, v{t+3}, v{t+4}")
    e(f"s_lshl_b32 {sA}, {sW}, 4"); e(f"v_add_u32 v{t+2}, {sA}, v{t+2}"); e(f"v_mul_lo_u32 v{t+2}, v{t+2}, {sSTR}")
    e(f"v_lshl_add_u32 {vDA}, v{t+3}, 4, v{t+2}"); e(f"v_xor_b32 v{t+3}, 8, v{t+3}"); e(f"v_lshl_add_u32 {vDB}, v{t+3}, 4, v{t+2}")
    e(f"s_lshl_b32 {sSTR}, {sSTR}, 2"); e(f"s_mul_i32 {sSRC}, {sSTR}, 13"); e(f"s_lshl_b32 {sB}, {sW}, 12")
    e(f"v_bfe_u32 v{t}, {vLN}, 2, 2"); e(f"v_bfe_u32 v{t+1}, {vLN}, 4, 1"); e(f"v_lshl_add_u32 v{t+1}, v{t+1}, 2, v{t}")
    e(f"v_lshrrev_b32 v{t+2}, 4, {vLN}"); e(f"v_lshl_add_u32 v{t+2}, v{t+2}, 3, v{t}"); e(f"v_lshlrev_b32 v{t+2}, 8, v{t+2}")
    e(f"v_and_b32 v{t+3}, 3, {vLN}"); e(f"v_lshl_add_u32 v{t+2}, v{t+3}, 3, v{t+2}")
    e(f"s_lshl_b32 {sA}, {sW}, 1")
    e(f"v_xor_b32 v{t+3}, {sA}, v{t+1}"); e(f"v_lshl_add_u32 v{t+8}, v{t+3}, 5, v{t+2}")
    e(f"v_xor_b32 v{t+3}, 1, v{t+3}"); e(f"v_lshl_add_u32 v{t+9}, v{t+3}, 5, v{t+2}")
    def stage(n):
        if n%10==0:
            e(f"s_and_b32 {sOFF}, {sTILE}, 31"); e(f"s_add_u32 {sOFF}, {sOFF}, {n//10}"); e(f"s_lshl_b32 {sOFF}, {sOFF}, 8")
        for i in range(4):
            e(f"s_add_u32 m0, {sB}, {(n%10)*16384+i*1024}")
            e(f"buffer_load_dwordx4 {vDA if i<2 else vDB}, {S_W}, {sOFF} offen lds",f"w{n}")
            e(f"s_add_u32 {sOFF}, {sOFF}, {sSTR if i<3 else sSRC}")
    for n in range(10): stage(n)
    for n in range(20):
        j,st=n//10,n%10
        a.wait(vm=f"w{n}"); e("s_barrier")
        if n==1: e(f"s_cmp_eq_u32 {sKIND}, 3"); e("s_cselect_b32 s10, 0, s10")
        if 1<=n<=10: stage(n+9)
        if st in(4,8): e(f"v_add_u32 v{t+8}, 0x10000, v{t+8}"); e(f"v_add_u32 v{t+9}, 0x10000, v{t+9}")
        if n==10: e(f"v_subrev_u32 v{t+8}, 0x20000, v{t+8}"); e(f"v_subrev_u32 v{t+9}, 0x20000, v{t+9}")
        for ks in range(2):
            for tl in range(2):
                for x in range(2): e(f"ds_read_b64_tr_b16 {wreg2(j,2*st+ks,tl,x)}, v{t+8+tl} offset:{(st%4)*16384+ks*8192+x*1024}")
        e("s_waitcnt lgkmcnt(0)"); a.lg=[]
    e(f"v_and_b32 v{t}, 1, {vLN}"); e(f"v_lshlrev_b32 {vVO}, 10, v{t}"); e(f"v_lshrrev_b32 v{t}, 4, {vLN}"); e(f"v_lshl_add_u32 {vVO}, v{t}, 8, {vVO}")
    e(f"v_bfe_u32 v{t}, {vLN}, 1, 3"); e(f"v_lshl_add_u32 {vVO}, v{t}, 4, {vVO}")
    e("s_mov_b32 s8, s48"); e("s_mov_b32 s9, s49"); e(f"s_cmp_eq_u32 {sKIND}, 3"); e(f"s_cselect_b32 s10, {F*2}, 0")
    e(f"v_lshrrev_b32 v{t}, 4, {vLN}"); e(f"v_lshlrev_b32 v{t}, 3, v{t}"); e(f"s_and_b32 {sA}, {sTILE}, 31"); e(f"s_lshl_b32 {sA}, {sA}, 8"); e(f"s_lshl_b32 {sB}, {sW}, 6"); e(f"s_add_u32 {sA}, {sA}, {sB}")
    for j in range(2):
        for tl in range(2): e(f"buffer_load_dwordx2 {vr(88+4*j+2*tl,2)}, v{t}, {S_W}, {sA} offen offset:{256*j+32*tl}")
    e(f"v_lshlrev_b32 v{t+6}, 3, {vL16}")
    zero_wait(a,"W_zero2")
    spin_wait(a,"W_lnw",lambda:e(f"buffer_load_dword v{t+7}, v{t+6}, {S_WS}, 0 offen sc1"),lambda:e(f"v_cmp_gt_u32 vcc, 2, v{t+7}"),sleep=4)
    for i in range(8):
        e(f"v_lshlrev_b32 v{BI+2*i}, 16, v{88+i}"); e(f"v_and_b32 v{BI+2*i+1}, {sMIX}, v{88+i}")
    k0=math.sqrt(2/math.pi); l2e=math.log2(math.e)
    e(f"s_mov_b32 {sG0}, {f32(-2*k0*0.044715*l2e)}"); e(f"v_mov_b32 v{GT}, {f32(-2*k0*l2e)}")
    e("s_barrier")
    rt(a,1)
    e(f"s_cmp_eq_u32 {sKIND}, 3"); e(f"s_mov_b32 {sA}, {XN_OFF}"); e(f"s_cselect_b32 {sA}, {YN_OFF}, {sA}")
    e(f"s_add_u32 s20, s4, {sA}"); e("s_addc_u32 s21, s5, 0"); e(f"s_mov_b32 s22, {64*40960}")
    e(f"s_mul_i32 {sFILL}, {sW}, 10240"); e(f"s_mov_b32 {sSRC}, {sFILL}")
    e(f"s_mov_b32 {sSLOT}, 0"); e(f"v_mov_b32 {vRD}, {vL16}"); e(f"s_mov_b32 {sIT}, 0")
    e(f"s_and_b32 {sA}, {sTILE}, 31"); e(f"s_cmp_eq_u32 {sKIND}, 3"); e("s_cbranch_scc1 W_setH")
    e(f"s_lshl_b32 {sOUT}, {sA}, 13")
    e(f"s_lshl_b32 {sA}, {sKIND}, 24"); e(f"s_add_u32 {sOUT}, {sOUT}, {sA}"); e(f"s_add_u32 {sOUT}, {sOUT}, {XK_OFF}")
    e(f"s_cmp_eq_u32 {sKIND}, 1"); e(f"s_cselect_b32 {sA}, 11, 10"); e(f"s_lshl_b32 {sA}, {sW}, {sA}"); e(f"s_add_u32 {sOUT}, {sOUT}, {sA}")
    e(f"s_add_u32 {sOUT2}, {sOUT}, 4096"); e(f"s_add_u32 {sOUT3}, {sOUT}, 8192"); e(f"s_add_u32 {sOUT4}, {sOUT}, 12288"); e(f"s_mov_b32 {sOSTR}, {32*8192}"); e("s_branch W_setD")
    a.label("W_setH")
    e(f"s_lshl_b32 {sA}, {sA}, 2"); e(f"s_add_u32 {sA}, {sA}, {sW}")
    e(f"s_lshl_b32 {sOUT}, {sA}, 10"); e(f"s_add_u32 {sOUT}, {sOUT}, {HH_OFF}"); e(f"s_cmp_lt_u32 {sA}, 54"); e(f"s_cselect_b32 {sOUT}, {sOUT}, 0x7f000000")
    e(f"s_add_u32 {sOUT2}, {sOUT}, {54*1024}"); e(f"s_mov_b32 {sOSTR}, {2*54*1024}")
    a.label("W_setD")
    e(f"s_cmp_lt_u32 {sKIND}, 2"); e(f"s_mov_b32 {sA}, {QHCNT-2*128}"); e(f"s_cselect_b32 {sSIG}, {KVCNT-2*128}, {sA}")
    for i in range(3):
        for g in seg_dma(a): emit(a,g)
    e(f"s_cmp_eq_u32 {sKIND}, 1"); e("s_cbranch_scc1 WV_top"); e(f"s_cmp_eq_u32 {sKIND}, 3"); e("s_cbranch_scc1 WH_top")
    seg_loop(a,"K"); seg_loop(a,"V"); seg_loop(a,"H")
    a.label("W_tail")
    e("s_waitcnt vmcnt(0)"); e("s_barrier")
    e(f"s_cmp_eq_u32 {sW}, 0"); e("s_cbranch_scc0 W_tail2")
    for i in range(2):
        add_one(a,sSIG); e(f"s_add_u32 {sSIG}, {sSIG}, 128")
    a.label("W_tail2")
    rt(a,3)
    a.vm=[]; a.lg=[]
    finish(a)

def load_pairs(a,groups,LB,nreg,lock=True):
    e=a.e; sT0="s34"
    def issue(i):
        setup,loads,_,_=groups[i]; lb=LB[i%len(LB)]
        for x in setup: e(x)
        for j,(vo,off) in enumerate(loads):
            e(f"s_mov_b32 {sT0}, {off}"); e(f"buffer_load_dword v{lb+j}, {vo}, s[8:11], {sT0} offen",f"w{i}")
    def process(i):
        _,loads,dlo,dhi=groups[i]; lb=LB[i%len(LB)]
        a.wait(vm=f"w{i}")
        if lock: e("s_barrier")
        for dst,sel in ((dlo,"s38"),(dhi,"s39")):
            for R,(k,r) in enumerate(dst):
                if k=="v": e(f"v_perm_b32 v{r}, v{lb+2*R+1}, v{lb+2*R}, {sel}")
                else:
                    e(f"v_perm_b32 v{4+(R&3)}, v{lb+2*R+1}, v{lb+2*R}, {sel}"); e(f"v_accvgpr_write_b32 a{r}, v{4+(R&3)}")
    e("s_mov_b32 s38, 0x05040100"); e("s_mov_b32 s39, 0x07060302")
    n=len(LB)-1
    for i in range(n): issue(i)
    for i in range(len(groups)):
        if i+n<len(groups): issue(i+n)
        process(i)

def stageA(a):
    e=a.e
    sH="s24"; sS="s25"; sT0="s34"; sT1="s35"; sQ="s26"; sK="s27"; sV="s28"; sM="s29"; sO="s30"; sOC="s31"; sQ2="s36"; sK2="s37"
    sCC="s[96:97]"; sC="s96"
    e(f"s_and_b32 {sH}, s33, 31"); e(f"s_lshr_b32 {sS}, s33, 5"); e(f"s_sub_u32 {sS}, {sS}, 2")
    e(f"v_mov_b32 v15, {vLN}")
    e("v_lshrrev_b32 v4, 5, v15"); e("v_lshlrev_b32 v4, 4, v4"); e("v_bfe_u32 v5, v15, 4, 1"); e("v_lshl_add_u32 v4, v5, 2, v4")
    e("v_and_b32 v5, 15, v15"); e("v_lshlrev_b32 v5, 2, v5")
    e(f"s_lshl_b32 {sT0}, {sH}, 8"); e(f"s_lshl_b32 {sT1}, {sW}, 6"); e(f"s_add_u32 {sT0}, {sT0}, {sT1}")
    e("v_lshl_add_u32 v1, v4, 13, v5"); e(f"v_add_u32 v1, {sT0}, v1")
    e(f"s_mov_b32 s10, {D*8192}")
    place=lambda i: ("a",8*i) if i<32 else ("v",192+8*(i-32))
    T={}
    groups=[]
    for m,(lo,hi) in (("k",("s42","s43")),("v",("s44","s45"))):
        for k in range(10):
            loads=[("v1",(64*k+32*(R>>2)+8*(R&1)+2*((R>>1)&1)+x)*8192) for R in range(8) for x in range(2)]
            d=[]
            for tau in range(2):
                T[(m,k,tau)]=p=place(len(T)); d.append([(p[0],p[1]+R) for R in range(8)])
            groups.append(([f"s_mov_b32 s8, {lo}",f"s_mov_b32 s9, {hi}"] if k==0 else [],loads,d[0],d[1]))
    load_pairs(a,groups,[16,32,48],8)
    vL16="v0"; vA="v1"; vIDX="v2"; vXW="v6"; vXR="v7"; vML="v8"; vML3="v9"; vDG="v3"
    e("v_lshlrev_b32 v0, 4, v15")
    e("v_lshrrev_b32 v12, 5, v15"); e("v_lshlrev_b32 v1, 9, v12"); e("v_bfe_u32 v12, v15, 1, 3"); e("v_lshl_add_u32 v1, v12, 6, v1")
    e("v_bfe_u32 v12, v15, 4, 1"); e("v_lshl_add_u32 v1, v12, 5, v1"); e("v_and_b32 v12, 1, v15"); e("v_lshl_add_u32 v1, v12, 4, v1")
    e("v_mov_b32 v13, 0xaaaa"); e("v_mul_u32_u24 v2, v12, v13"); e("v_add_u32 v2, 0x4444, v2")
    LX=10240
    e("v_lshrrev_b32 v12, 5, v15"); e("v_lshlrev_b32 v12, 2, v12"); e("v_and_b32 v13, 15, v15"); e("v_xor_b32 v12, v12, v13")
    e("v_lshlrev_b32 v6, 3, v12"); e("v_lshrrev_b32 v12, 4, v15"); e("v_lshl_add_u32 v6, v12, 7, v6")
    e(f"s_lshl_b32 {sT0}, {sW}, 10"); e(f"s_add_u32 {sT0}, {sT0}, {LX}"); e(f"v_add_u32 v6, {sT0}, v6")
    e("v_bfe_u32 v12, v15, 3, 1"); e("v_lshlrev_b32 v7, 3, v12"); e("v_lshrrev_b32 v12, 4, v15"); e("v_lshl_add_u32 v7, v12, 1, v7")
    e("v_bfe_u32 v12, v15, 2, 1"); e("v_add_u32 v7, v7, v12"); e("v_bfe_u32 v12, v15, 1, 1"); e("v_lshlrev_b32 v12, 2, v12"); e("v_xor_b32 v7, v7, v12")
    e("v_lshlrev_b32 v7, 3, v7"); e("v_and_b32 v12, 3, v15"); e("v_lshl_add_u32 v7, v12, 7, v7"); e(f"v_add_u32 v7, {LX}, v7")
    e(f"s_mul_i32 {sT0}, {sW}, 2560"); e(f"v_add_u32 v8, {sT0}, v0")
    e("v_and_b32 v9, 0x1ff, v0"); e(f"v_add_u32 v9, {sT0}, v9")
    e("v_lshrrev_b32 v12, 4, v15"); e("v_lshlrev_b32 v12, 2, v12"); e("v_and_b32 v13, 15, v15"); e("v_sub_u32 v3, v13, v12")
    c=(128**-0.5)*math.log2(math.e)
    e(f"s_mov_b32 s96, {f32(c)}"); e(f"s_mov_b32 s97, {f32(c)}")
    e("s_mov_b32 s98, 0x3f803f80"); e("s_mov_b32 s99, 0x3f803f80"); e("s_mov_b32 s100, 0x3f003f00"); e("s_mov_b32 s101, 0x3f003f00")
    Q=16; K=48; VX=80; SX={(0,0):88,(1,0):92,(1,1):96}; SM=[100,104]; AB=108; KA=148; VA=156; X=164; P=[16,24]; O=32; ONE=48; SUM=52; PK=56
    rt(a,4)
    a.label("A_seg")
    e(f"s_lshl_b32 {sT0}, {sS}, 7"); e(f"s_add_u32 {sT0}, {sT0}, {KVCNT}")
    e("v_lshrrev_b32 v12, 9, v0"); e("v_lshlrev_b32 v10, 13, v12"); e("v_mul_u32_u24 v12, 2, v12"); e("v_sub_u32 v12, 32, v12")
    spin_wait(a,"A_qh",lambda:e(f"buffer_load_dword v11, v10, {S_WS}, {sT0} offen sc1"),lambda:e("v_cmp_gt_u32 vcc, v12, v11"),sleep=8)
    e(f"s_lshl_b32 {sT0}, {sS}, 5"); e(f"s_add_u32 {sT0}, {sT0}, {sH}"); e(f"s_lshl_b32 {sT0}, {sT0}, 13")
    e(f"s_add_u32 {sQ}, {sT0}, {XQ_OFF}"); e(f"s_add_u32 {sQ2}, {sQ}, 4096"); e(f"s_add_u32 {sK}, {sT0}, {XK_OFF}"); e(f"s_add_u32 {sK2}, {sK}, 4096")
    e(f"s_lshl_b32 {sT1}, {sW}, 11"); e(f"s_add_u32 {sV}, {sT0}, {sT1}"); e(f"s_add_u32 {sV}, {sV}, {XV_OFF}")
    for t in range(2):
        for ke in range(4):
            e(f"buffer_load_dwordx4 {vr(Q+16*t+4*ke,4)}, {vL16}, {S_WS}, {sQ2 if t else sQ} offen offset:{1024*ke} sc1",f"q{t}")
        for ke in range(4):
            e(f"buffer_load_dwordx4 {vr(K+16*t+4*ke,4)}, {vL16}, {S_WS}, {sK2 if t else sK} offen offset:{1024*ke} sc1",f"k{t}")
    for t in range(2): e(f"buffer_load_dwordx4 {vr(VX+4*t,4)}, {vL16}, {S_WS}, {sV} offen offset:{1024*t} sc1","vx")
    e(f"s_mul_i32 {sM}, {sS}, 10240"); e(f"s_add_u32 {sM}, {sM}, {MEMP_OFF}")
    e(f"s_lshl_b32 {sO}, {sS}, 6"); e(f"s_add_u32 {sO}, {sO}, {sH}"); e(f"s_lshl_b32 {sO}, {sO}, 2"); e(f"s_add_u32 {sO}, {sO}, {sW}"); e(f"s_lshl_b32 {sO}, {sO}, 10"); e(f"s_add_u32 {sO}, {sO}, {O_OFF}")
    e(f"s_lshl_b32 {sOC}, {sS}, 2"); e(f"s_lshr_b32 {sT0}, {sH}, 3"); e(f"s_add_u32 {sOC}, {sOC}, {sT0}"); e(f"s_lshl_b32 {sOC}, {sOC}, 7"); e(f"s_add_u32 {sOC}, {sOC}, {OCNT4}")
    def mf(d,A,B,first,op="v_mfma_f32_16x16x32_bf16",n=4):
        e(f"{op} {vr(d,4)}, {vr(A,n)}, {vr(B,n)}, {'0' if first else vr(d,4)}")
    for (qt,kt),d in SX.items():
        a.wait(vm=[f"q{qt}",f"k{kt}"])
        for ke in range(4): mf(d,K+16*kt+4*ke,Q+16*qt+4*ke,ke==0)
    for r in range(KA,KA+16,2): e(f"v_mov_b64 {vr(r,2)}, 0")
    e("v_mov_b32 v11, 0xff800000")
    for i in range(4):
        e(f"v_cmp_gt_i32 vcc, {i}, {vDG}")
        for d in (SX[(0,0)],SX[(1,1)]): e(f"v_cndmask_b32 v{d+i}, v{d+i}, v11, vcc")
    def ml():
        e(f"buffer_load_dwordx4 {vr(AB,4)}, {vML}, {S_WS}, {sM} offen sc1"); e(f"buffer_load_dwordx4 {vr(AB+4,4)}, {vML}, {S_WS}, {sM} offen offset:1024 sc1")
        e(f"buffer_load_dwordx4 {vr(AB+8,4)}, {vML3}, {S_WS}, {sM} offen offset:2048 sc1")
    def mc():
        e(f"v_max3_u32 v10, v{AB}, v{AB+2}, v{AB+4}"); e(f"v_max3_u32 v10, v10, v{AB+6}, v{AB+8}"); e(f"v_max_u32 v10, v10, v{AB+10}")
        e("v_cmp_eq_u32 vcc, -1, v10")
    spin_wait(a,"A_mem",ml,mc,sleep=OPT["asleep"],ahead=3*OPT["pa"])
    rt(a,0)
    e(f"ds_write_b128 {vML}, {vr(AB,4)}"); e(f"ds_write_b128 {vML}, {vr(AB+4,4)} offset:1024"); e(f"ds_write_b128 {vML3}, {vr(AB+8,4)} offset:2048")
    a.wait(lg="all"); e("s_barrier")
    if OPT["pa"]: a.wait(vm="all")
    for k in range(10): e(f"ds_read_b128 {vr(AB+4*k,4)}, {vA} offset:{1024*k}",f"A{k}")
    def sm(acc_,k,key):
        kk,b=T[key]; e(f"v_smfmac_f32_16x16x64_bf16 {vr(acc_,4)}, {vr(AB+4*k,4)}, {vr(b,8,kk)}, {vIDX}")
    for k in range(10):
        a.wait(lg=f"A{k}")
        for tau in range(2): sm(KA+4*tau,k,("k",k,tau))
    sm(VA,0,("v",0,0)); sm(VA+4,0,("v",0,1))
    for tau in range(2):
        r=KA+4*tau
        e(f"v_add_f32 v{r}, v{r}, v{r+1}"); e(f"v_add_f32 v{r+2}, v{r+2}, v{r+3}"); e(f"v_cvt_pk_bf16_f32 v{r+1}, v{r}, v{r+2}")
        e(f"v_mov_b32 v{r}, 0")
        e(f"ds_write_b64 {vXW}, {vr(r,2)} offset:{512*tau}","xw")
    for k in range(1,4):
        for tau in range(2): sm(VA+4*tau,k,("v",k,tau))
    a.wait(lg="xw"); e("s_barrier")
    for ke in range(4):
        for x in range(2): e(f"ds_read_b64_tr_b16 {vr(X+4*ke+2*x,2)}, {vXR} offset:{1024*ke+512*x}",f"X{ke}")
    for k in range(4,10):
        for tau in range(2): sm(VA+4*tau,k,("v",k,tau))
    for ke in range(4):
        a.wait(lg=f"X{ke}")
        for qt in range(2): mf(SM[qt],X+4*ke,Q+16*qt+4*ke,ke==0)
    for i in range(4): e(f"v_cvt_pk_bf16_f32 v{VA+i}, v{VA+2*i}, v{VA+2*i+1}")
    e(f"v_mov_b64 {vr(ONE,2)}, s[98:99]"); e(f"v_mov_b64 {vr(ONE+2,2)}, s[98:99]"); e(f"v_mov_b64 {vr(KA,2)}, s[100:101]")
    a.wait(vm="vx")
    for qt in range(2):
        ev=[r+i for r in ([SX[(0,0)]] if qt==0 else [SX[(1,0)],SX[(1,1)]]) for i in range(4)]+[SM[qt]+2,SM[qt]+3]
        e(f"v_max3_f32 v10, v{ev[0]}, v{ev[1]}, v{ev[2]}")
        for i in range(3,len(ev)-1,2): e(f"v_max3_f32 v10, v10, v{ev[i]}, v{ev[i+1]}")
        e(f"v_max_f32 v11, v10, v{ev[-1]}"); e(f"v_max_f32 v10, v10, v{ev[-1]}")
        e("v_permlane32_swap_b32 v10, v11"); e("v_max_f32 v12, v10, v11"); e("v_max_f32 v10, v10, v11")
        e("v_permlane16_swap_b32 v10, v12"); e("v_max_f32 v10, v10, v12"); e(f"v_mul_f32 v10, {sC}, v10")
        for r in ev[::2]: e(f"v_pk_fma_f32 {vr(r,2)}, {vr(r,2)}, {sCC}, v[10:11] op_sel_hi:[1,1,0] neg_lo:[0,0,1] neg_hi:[0,0,1]")
        for r in ev: e(f"v_exp_f32 v{r}, v{r}")
        p=P[qt]
        for i in range((len(ev)-2)//2): e(f"v_cvt_pk_bf16_f32 v{p+i}, v{ev[2*i]}, v{ev[2*i+1]}")
        if qt==0: e(f"v_mov_b64 {vr(p+2,2)}, 0")
        e(f"v_cvt_pk_bf16_f32 v{p+4}, v{ev[-2]}, v{ev[-2]}"); e(f"v_cvt_pk_bf16_f32 v{p+5}, v{ev[-1]}, v{ev[-1]}")
        o=O+8*qt
        mf(SUM,ONE,p,1); mf(o,VX,p,1); mf(o+4,VX+4,p,1)
        mf(SUM,KA,p+4,0,"v_mfma_f32_16x16x16_bf16",2); mf(o,VA,p+4,0,"v_mfma_f32_16x16x16_bf16",2); mf(o+4,VA+2,p+4,0,"v_mfma_f32_16x16x16_bf16",2)
        e(f"v_rcp_f32 v10, v{SUM}")
        pk=PK+4*qt
        for i in range(0,4,2):
            for t in range(2): e(f"v_pk_mul_f32 {vr(o+4*t+i,2)}, {vr(o+4*t+i,2)}, v[10:11] op_sel_hi:[1,0]")
            for k in range(2): e(f"v_cvt_pk_bf16_f32 v{pk+i+k}, v{o+i+k}, v{o+4+i+k}")
        if qt: e(f"s_add_u32 {sO}, {sO}, {32*4096}")
        e(f"buffer_store_dwordx4 {vr(pk,4)}, {vL16}, {S_WS}, {sO} offen sc1","o")
    rt(a,1)
    e("s_waitcnt vmcnt(0)"); a.vm=[]; e("s_barrier")
    rt(a,2)
    e(f"s_cmp_eq_u32 {sW}, 0"); e("s_cbranch_scc0 A_nosig")
    e("s_mov_b64 exec, 1"); e("v_mov_b32 v10, 0"); e("v_mov_b32 v11, 1")
    e(f"buffer_atomic_add v11, v10, {S_WS}, {sOC} offen"); e("s_mov_b64 exec, -1"); e("s_nop 3")
    a.label("A_nosig")
    e(f"s_add_u32 {sS}, {sS}, 2"); e(f"s_cmp_lt_u32 {sS}, 64"); e("s_cbranch_scc1 A_seg")
    finish(a)

def finish(a):
    e=a.e
    e("s_waitcnt vmcnt(0)")
    if OPT["tim"]:
        rt(a,5); e("s_waitcnt lgkmcnt(0)")
        for i in range(6): e(f"v_mov_b32 v{12+i}, s{70+2*i}")
        e("v_mov_b32 v18, s90"); e("v_mov_b32 v19, s32")
        e(f"s_lshl_b32 s34, s33, 2"); e(f"s_add_u32 s34, s34, {sW}"); e("s_lshl_b32 s34, s34, 5"); e(f"s_add_u32 s34, s34, {DBG_OFF+131072}")
        e("v_mov_b32 v10, 0"); e("s_mov_b64 exec, 1")
        e(f"buffer_store_dwordx4 v[12:15], v10, {S_WS}, s34 offen"); e(f"buffer_store_dwordx4 v[16:19], v10, {S_WS}, s34 offen offset:16")
        if C.OPT["dbgout"]:
            e("v_mov_b32 v10, 40"); e(f"global_atomic_umax v10, v17, {sDBG}")
        e("s_waitcnt vmcnt(0)")
    e("s_endpgm")

def stageB(a):
    e=a.e
    sN="s24"; sS="s25"; sHF="s26"; sT0="s34"; sT1="s35"; sHS="s27"; sHH="s28"; sOO="s29"; sXO="s30"; sPAR="s31"; sMIX="s37"
    S_O="s[16:19]"; S_XX="s[20:23]"
    e(f"s_load_dwordx2 s[40:41], s[0:1], {A_WO}"); e(f"s_load_dwordx2 s[42:43], s[0:1], {B_W2}"); e(f"s_load_dwordx2 s[44:45], s[0:1], {B_B2}")
    e(f"s_load_dwordx2 s[16:17], s[0:1], {D_OUT}"); e(f"s_load_dwordx2 s[20:21], s[0:1], {A_X}")
    e(f"s_sub_u32 {sT0}, s33, 128")
    e(f"s_mul_i32 {sS}, {sT0}, 1639"); e(f"s_lshr_b32 {sS}, {sS}, 16")
    e(f"s_mul_i32 {sT1}, {sS}, 40"); e(f"s_sub_u32 {sT0}, {sT0}, {sT1}")
    e(f"s_cmp_ge_u32 {sT0}, 20"); e(f"s_cselect_b32 {sHF}, 1, 0"); e(f"s_mul_i32 {sT1}, {sHF}, 20"); e(f"s_sub_u32 {sN}, {sT0}, {sT1}")
    e(f"v_mov_b32 v15, {vLN}")
    e("v_lshrrev_b32 v4, 4, v15"); e("v_and_b32 v5, 15, v15"); e("v_lshlrev_b32 v5, 2, v5"); e(f"s_lshl_b32 {sT0}, {sN}, 6"); e(f"v_add_u32 v5, {sT0}, v5")
    e("v_mul_u32_u24 v1, 10240, v4"); e("v_add_u32 v1, v1, v5"); e(f"s_mul_i32 {sT0}, {sW}, {1024*1280}"); e(f"v_add_u32 v1, {sT0}, v1")
    e("v_mul_u32_u24 v2, 5120, v4"); e("v_add_u32 v2, v2, v5"); e(f"s_mul_i32 {sT0}, {sW}, {14*32*1280}"); e(f"v_add_u32 v2, {sT0}, v2")
    e(f"s_mov_b32 s18, {S*D*2}"); e("s_mov_b32 s19, 0x20000"); e(f"s_mov_b32 s22, {S*D*2}"); e("s_mov_b32 s23, 0x20000")
    e("s_waitcnt lgkmcnt(0)")
    groups=[]
    for kk in range(16):
        loads=[("v1",(64*kk+32*(R>>2)+2*(R&3)+x)*1280) for R in range(8) for x in range(2)]
        d=[[("a",16*kk+8*(R>>2)+4*tau+(R&3)) for R in range(8)] for tau in range(2)]
        groups.append((["s_mov_b32 s8, s40","s_mov_b32 s9, s41",f"s_mov_b32 s10, {4096*1280}"] if kk==0 else [],loads,d[0],d[1]))
    W2=144
    for kk in range(7):
        loads=[("v2",(64*kk+32*(R>>2)+16*((R>>1)&1)+2*(R&1)+x)*1280) for R in range(8) for x in range(2)]
        d=[[("v",W2+16*kk+8*(R>>2)+4*tau+(R&3)) for R in range(8)] for tau in range(2)]
        groups.append((["s_mov_b32 s8, s42","s_mov_b32 s9, s43",f"s_mov_b32 s10, {F*1280}"] if kk==0 else [],loads,d[0],d[1]))
    load_pairs(a,groups,[16,32,48],8,lock=False)
    vL16="v0"; vXO="v1"; vRW="v2"; B2=4
    e("v_lshlrev_b32 v0, 4, v15")
    e("v_and_b32 v12, 15, v15"); e("v_mul_u32_u24 v1, 1280, v12"); e("v_lshrrev_b32 v12, 4, v15"); e("v_lshlrev_b32 v12, 4, v12")
    e(f"s_lshl_b32 {sT0}, {sN}, 6"); e(f"v_add_u32 v12, {sT0}, v12"); e("v_add_u32 v1, v1, v12")
    e(f"s_lshl_b32 {sT0}, {sW}, 11"); e(f"v_add_u32 v2, {sT0}, v0")
    e("s_mov_b32 s8, s44"); e("s_mov_b32 s9, s45"); e(f"s_mov_b32 s10, {D*2}")
    e("buffer_load_dwordx4 v[16:19], v12, s[8:11], 0 offen"); e(f"s_mov_b32 {sMIX}, 0xffff0000")
    e("s_waitcnt vmcnt(0)"); a.vm=[]
    for i in range(4): e(f"v_lshlrev_b32 v{B2+i}, 16, v{16+i}"); e(f"v_and_b32 v{B2+4+i}, {sMIX}, v{16+i}")
    e(f"s_mov_b32 {sPAR}, 0")
    AC=[12,16]; XR=20; RING=32; NR=24; RED=128
    rt(a,4)
    e("v_mov_b32 v28, v0"); e("v_mov_b32 v29, v1"); e(f"s_mov_b32 s39, {sS}")
    a.label("B_unit")
    if OPT["split"]:
        e(f"s_cmp_eq_u32 {sS}, 63"); e("s_cbranch_scc0 B_full")
        e("v_bfe_u32 v24, v0, 7, 1"); e("v_cmp_eq_u32 vcc, s39, v24"); e("v_mov_b32 v24, 0x7ff00000")
        e("v_cndmask_b32 v28, v24, v0, vcc"); e("v_cndmask_b32 v29, v24, v1, vcc")
        a.label("B_full")
    e(f"s_lshl_b32 {sT0}, {sS}, 7"); e(f"s_add_u32 {sT0}, {sT0}, {QHCNT}"); e("v_mov_b32 v24, 0")
    spin_wait(a,"B_qh",lambda:e(f"buffer_load_dword v25, v24, {S_WS}, {sT0} offen sc1"),lambda:e("v_cmp_gt_u32 vcc, 30, v25"),sleep=8)
    e(f"s_lshl_b32 {sHS}, {sS}, 1"); e(f"s_add_u32 {sHS}, {sHS}, {sHF}")
    e(f"s_mul_i32 {sHH}, {sHS}, {54*1024}"); e(f"s_mul_i32 {sT0}, {sW}, {14*1024}"); e(f"s_add_u32 {sHH}, {sHH}, {sT0}"); e(f"s_add_u32 {sHH}, {sHH}, {HH_OFF}")
    e(f"s_lshl_b32 {sOO}, {sHS}, 17"); e(f"s_lshl_b32 {sT0}, {sW}, 15"); e(f"s_add_u32 {sOO}, {sOO}, {sT0}"); e(f"s_add_u32 {sOO}, {sOO}, {O_OFF}")
    e(f"s_mul_i32 {sXO}, {sHS}, {16*1280}")
    def ld(i,sreg,tag):
        if i and i%4==0: e(f"s_add_u32 {sreg}, {sreg}, 4096")
        e(f"buffer_load_dwordx4 {vr(RING+4*(i%NR),4)}, v28, {S_WS}, {sreg} offen offset:{1024*(i%4)} sc1",tag)
    def mm(i,base,kind,first):
        for tau in range(2):
            e(f"v_mfma_f32_16x16x32_bf16 {vr(AC[tau],4)}, {vr(base+8*i+4*tau,4,kind)}, {vr(RING+4*(i%NR),4)}, {'0' if first else vr(AC[tau],4)}")
    for i in range(14):
        if i==12:
            e(f"s_cmp_eq_u32 {sW}, 3"); e(f"s_cselect_b32 {sHH}, 0x7ff00000, {sHH}")
        ld(i,sHH,f"h{i}")
    e(f"buffer_load_dwordx4 {vr(XR,4)}, {vXO}, {S_XX}, {sXO} offen","xr")
    for i in range(14):
        a.wait(vm=f"h{i}"); mm(i,W2,"v",i==0)
    e(f"s_lshl_b32 {sT0}, {sS}, 2"); e(f"s_add_u32 {sT0}, {sT0}, {sW}"); e(f"s_lshl_b32 {sT0}, {sT0}, 7"); e(f"s_add_u32 {sT0}, {sT0}, {OCNT4}")
    spin_wait(a,"B_o",lambda:e(f"buffer_load_dword v25, v24, {S_WS}, {sT0} offen sc1"),lambda:e("v_cmp_gt_u32 vcc, 8, v25"),sleep=OPT["bsleep"],ahead=OPT["pb"])
    rt(a,0)
    for i in range(NR): ld(i,sOO,f"o{i}")
    for i in range(32):
        a.wait(vm=f"o{i}"); mm(i,0,"a",False)
        if i+NR<32: ld(i+NR,sOO,f"o{i+NR}")
    rt(a,1)
    e(f"v_add_u32 v26, {sPAR}, {vRW}"); e(f"v_add_u32 v27, {sPAR}, {vL16}")
    e(f"ds_write_b128 v26, {vr(AC[0],4)}"); e(f"ds_write_b128 v26, {vr(AC[1],4)} offset:1024")
    a.wait(lg="all"); e("s_barrier")
    e(f"s_cmp_eq_u32 {sW}, 0"); e("s_cbranch_scc0 B_next")
    for j in range(6): e(f"ds_read_b128 {vr(RING+4*j,4)}, v27 offset:{2048+1024*j}",f"r{j}")
    for i in range(4):
        e(f"v_lshlrev_b32 v{RING+24+i}, 16, v{XR+i}"); e(f"v_and_b32 v{RING+28+i}, {sMIX}, v{XR+i}")
    for i in range(8): e(f"v_add_f32 v{RING+24+i}, v{RING+24+i}, v{B2+i}")
    for i in range(8): e(f"v_add_f32 v{AC[0]+i}, v{AC[0]+i}, v{RING+24+i}")
    for j in range(3):
        a.wait(lg=f"r{2*j+1}")
        for i in range(8): e(f"v_add_f32 v{AC[0]+i}, v{AC[0]+i}, v{RING+8*j+i}")
    for i in range(4): e(f"v_cvt_pk_bf16_f32 v{XR+i}, v{AC[0]+i}, v{AC[1]+i}")
    e(f"buffer_store_dwordx4 {vr(XR,4)}, v29, {S_O}, {sXO} offen sc1")
    a.label("B_next")
    e(f"s_xor_b32 {sPAR}, {sPAR}, 8192")
    e(f"s_add_u32 {sS}, {sS}, 2")
    if OPT["split"]: e(f"s_cmp_eq_u32 {sS}, 64"); e(f"s_cselect_b32 {sS}, 63, {sS}")
    e(f"s_cmp_lt_u32 {sS}, 64"); e("s_cbranch_scc1 B_unit")
    finish(a)

def hold(a,name):
    if not OPT["hold"]: return
    e=a.e
    e(f"s_mov_b32 {sA}, {OPT['hold']}")
    spin_wait(a,name,lambda:(e(f"v_mov_b32 v{TMP+4}, 0"),e(f"buffer_load_dword v{TMP+5}, v{TMP+4}, {S_WS}, {sA} offen sc1")),lambda:e(f"v_cmp_gt_u32 vcc, {OPT['holdn']}, v{TMP+5}"),sleep=16)

def workers(a):
    e=a.e
    common(a)
    e(f"s_cmp_lt_u32 {sWI}, 62"); e("s_cbranch_scc0 W_notp")
    project(a)
    a.label("W_notp")
    e(f"s_cmp_lt_u32 {sWI}, 64"); e("s_cbranch_scc1 L_exit")
    norm_rows(a)
    e(f"s_cmp_ge_u32 {sWI}, {OPT['lastwi']}"); e("s_cbranch_scc1 L_exit")
    zero_wait(a,"W_zero3")
    hold(a,"W_hold")
    e("s_barrier")
    e(f"s_cmp_lt_u32 {sWI}, 128"); e("s_cbranch_scc0 W_stageB")
    stageA(a)
    a.label("W_stageB")
    stageB(a)
```
